```python
import torch

def _softmax(x, axis=-1):
    return torch.softmax(x, dim=axis)
def _gelu(x):
    return torch.nn.functional.gelu(x, approximate="tanh")
def _silu(x):
    return torch.nn.functional.silu(x)
def _sigmoid(x):
    return torch.sigmoid(x)
def _layernorm(x, axis=-1, eps=1e-5):
    m = x.mean(dim=axis, keepdim=True)
    v = x.var(dim=axis, keepdim=True, unbiased=False)
    return (x - m) / torch.sqrt(v + eps)
def _scatter_add(tgt, idx, src, axis=0):
    return tgt.clone().index_add_(axis, idx, src)
def _segment_sum(src, seg, n):
    out = torch.zeros((n,) + src.shape[1:], dtype=src.dtype)
    return out.index_add_(0, seg, src)
def _pad(x, pw):
    flat = tuple(v for pair in reversed(pw) for v in pair)
    return torch.nn.functional.pad(x, flat)

kernel_name = 'interleave_layers__ssm_conv_h3__glu_gated_reglu__prompt'

def setup_inputs():

    _w = (lambda a: (lambda t: t.to(torch.bfloat16) if t.is_floating_point() else t)(torch.as_tensor(a)))
    def _A_setup():
        B, S, D = 1, 2048, 512
        ks = 4
        return {
            "q": _w((lambda *s: torch.randn(*s, dtype=torch.bfloat16) * 0.05)(B, S, D)),
            "k": _w((lambda *s: torch.randn(*s, dtype=torch.bfloat16) * 0.4)(B, S, D)),
            "v": _w((lambda *s: torch.randn(*s, dtype=torch.bfloat16) * 0.4)(B, S, D)),
            "shift_k": _w((lambda *s: torch.randn(*s, dtype=torch.bfloat16) * 0.4)(D, ks) * 0.5),
            "ssm_k": _w((lambda *s: torch.randn(*s, dtype=torch.bfloat16) * 0.4)(D, S) * (1.0 / S ** 0.5)),
            "ssm_D": _w((lambda *s: torch.randn(*s, dtype=torch.bfloat16) * 0.4)(D)),
        }
    _A_in = _A_setup()

    def _B_setup():
        B, S, D, F = 1, 2048, 512, 1376
        return {
            "x": _w((lambda *s: torch.randn(*s, dtype=torch.bfloat16) * 0.05)(B, S, D)),
            "W_gate": _w((lambda *s: torch.randn(*s, dtype=torch.bfloat16) * 0.8)(D, F) * (2.0 / D) ** 0.5),
            "W_up": _w((lambda *s: torch.randn(*s, dtype=torch.bfloat16) * 0.8)(D, F) * (2.0 / D) ** 0.5),
            "W_down": _w((lambda *s: torch.randn(*s, dtype=torch.bfloat16) * 0.8)(F, D) * (1.0 / F) ** 0.5),
        }
    _B_in = _B_setup()

    return {
        "A_q": _A_in["q"],
        "A_k": _A_in["k"],
        "A_v": _A_in["v"],
        "A_shift_k": _A_in["shift_k"],
        "A_ssm_k": _A_in["ssm_k"],
        "A_ssm_D": _A_in["ssm_D"],
        "B_x": _B_in["x"],
        "B_W_gate": _B_in["W_gate"],
        "B_W_up": _B_in["W_up"],
        "B_W_down": _B_in["W_down"],
    }

def reference(A_q, A_k, A_v, A_shift_k, A_ssm_k, A_ssm_D, B_x, B_W_gate, B_W_up, B_W_down):
    def _A_ref(q, k, v, shift_k, ssm_k, ssm_D):
        B, S, D = q.shape
        ks = shift_k.shape[-1]
        k_pad = _pad(k, ((0, 0), (ks - 1, 0), (0, 0)))
        k_shift = torch.zeros_like(k)
        for t in range(ks):
            k_shift = k_shift + k_pad[:, t:t + S, :] * shift_k[:, ks - 1 - t][None, None, :]
        kv = k_shift * v
        L = 2 * S
        kv_pad = _pad(kv, ((0, 0), (0, S), (0, 0)))
        kf_pad = _pad(ssm_k, ((0, 0), (0, S)))
        kv_f = (lambda x, axes=(-2,-1): torch.fft.rfft2(x.float(), dim=axes))(kv_pad[:, None, :, :], axes=(1, 2))
        kf_f = (lambda x, axes=(-2,-1): torch.fft.rfft2(x.float(), dim=axes))(kf_pad[:, None, :], axes=(1, 2))
        kf_f = (lambda x, *d: x.permute(*d))(kf_f, 1, 2, 0)
        y_f = kv_f * kf_f[None, :, :, :]
        y = (lambda x, s, axes=(-2,-1): torch.fft.irfft2(x, s=s, dim=axes).to(torch.bfloat16))(y_f, (1, L), axes=(1, 2))[:, 0, :S, :]
        y = y + kv * ssm_D[None, None, :]
        return q * y

    def _B_ref(x, W_gate, W_up, W_down):
        gate = torch.einsum("bsd,df->bsf", x, W_gate)
        up = torch.einsum("bsd,df->bsf", x, W_up)
        gate = gate * (lambda x, dt: x.to(dt))(gate > 0, gate.dtype)
        h = gate * up
        return torch.einsum("bsf,fd->bsd", h, W_down)

    x = A_q
    x = x + _A_ref(_layernorm(x, axis=-1), A_k, A_v, A_shift_k, A_ssm_k, A_ssm_D)
    x = x + _B_ref(_layernorm(x, axis=-1), B_W_gate, B_W_up, B_W_down)
    x = x + _A_ref(_layernorm(x, axis=-1), A_k, A_v, A_shift_k, A_ssm_k, A_ssm_D)
    x = x + _B_ref(_layernorm(x, axis=-1), B_W_gate, B_W_up, B_W_down)
    return x
```

```python
import re

REG_RE = re.compile(r'\b([vas])(\d+)\b|\b([vas])\[(\d+):(\d+)\]')

def regs_of(op):
    out=set()
    op=op.strip()
    for m in REG_RE.finditer(op):
        if m.group(1): out.add((m.group(1),int(m.group(2))))
        else:
            for i in range(int(m.group(4)),int(m.group(5))+1): out.add((m.group(3),i))
    if re.search(r'\bvcc\b',op): out|={('s','vcc')}
    if re.search(r'\bexec\b',op): out|={('s','exec')}
    if re.search(r'\bm0\b',op): out|={('s','m0')}
    return out

TRANS=('v_exp_f32','v_log_f32','v_rcp_f32','v_rsq_f32','v_sqrt_f32','v_sin_f32','v_cos_f32')

class I:
    def __init__(s, text, tok=None):
        s.text=text; s.tok=tok
        t=text.split(';')[0].strip()
        s.label = t.endswith(':')
        s.directive = t.startswith('.')
        s.op = t.split()[0] if t else ''
        rest = t[len(s.op):].strip()
        ops=[]; d=0; cur=''
        for ch in rest:
            if ch in '[(': d+=1
            if ch in '])': d-=1
            if ch==',' and d==0: ops.append(cur.strip()); cur=''
            else: cur+=ch
        if cur.strip(): ops.append(cur.strip())
        s.ops=ops
        op=s.op
        s.kind='other'; s.defs=set(); s.uses=set(); s.dma=False
        if s.label or s.directive or not op: s.kind='none'; return
        allr=[regs_of(o.split(' ')[0] if i==len(ops)-1 else o) for i,o in enumerate(ops)]
        U=lambda idx: set().union(*[allr[i] for i in idx]) if idx else set()
        n=len(ops)
        if op.startswith('v_mfma'):
            s.kind='mfma'; s.defs=allr[0]; s.A=allr[1]; s.B=allr[2]; s.C=allr[3]; s.uses=s.A|s.B|s.C
            s.passes = 4 if '16x16x32' in op else 8
        elif op.startswith('buffer_load') or op.startswith('global_load'):
            s.kind='vmem'; s.load=True
            if re.search(r'\blds\b',t) : s.dma=True; s.uses=U(range(n))|{('s','m0')}
            else: s.defs=allr[0]; s.uses=U(range(1,n))
        elif op.startswith('buffer_store') or op.startswith('global_store'):
            s.kind='vmem'; s.load=False; s.uses=U(range(n))
            di = 0 if op.startswith('buffer') else 1
            s.sdata=allr[di]; s.wide = op.endswith('x4') or op.endswith('x3')
        elif op.startswith('buffer_wbl2') or op.startswith('buffer_inv'):
            s.kind='vmem'; s.load=False; s.sdata=set(); s.wide=False
        elif op.startswith('ds_read'):
            s.kind='ds'; s.defs=allr[0]; s.uses=U(range(1,n))
        elif op.startswith('ds_write'):
            s.kind='ds'; s.uses=U(range(n))
        elif op.startswith('ds_bpermute') or op.startswith('ds_swizzle') or op.startswith('ds_permute'):
            s.kind='ds'; s.defs=allr[0]; s.uses=U(range(1,n))
        elif op.startswith('s_load') or op.startswith('s_memtime') or op.startswith('s_memrealtime'):
            s.kind='smem'; s.defs=allr[0]; s.uses=U(range(1,n))
        elif op in('s_waitcnt','s_nop','s_barrier','s_endpgm','s_branch','s_setprio','s_sleep') or op.startswith('s_cbranch'):
            s.kind='ctl'
            if op=='s_cbranch_vccz' or op=='s_cbranch_vccnz': s.uses={('s','vcc')}
            if op.startswith('s_cbranch_exec'): s.uses={('s','exec')}
        elif op.startswith('s_cmp') or op.startswith('s_bitcmp'):
            s.kind='salu'; s.uses=U(range(n))
        elif op.startswith('s_'):
            s.kind='salu'; s.defs=allr[0]; s.uses=U(range(1,n))
            if 'saveexec' in op: s.defs|={('s','exec')}; s.uses|={('s','exec')}
            if op in('s_addk_i32','s_mulk_i32'): s.uses|=allr[0]
        elif op.startswith('v_'):
            s.kind='valu'
            if op.startswith('v_cmp'):
                s.defs=allr[0]; s.uses=U(range(1,n))
            elif op.startswith('v_permlane') and 'swap' in op:
                s.defs=allr[0]|allr[1]; s.uses=allr[0]|allr[1]
            elif op.startswith('v_add_co') or op.startswith('v_sub_co') or op.startswith('v_addc_co'):
                s.defs=allr[0]|allr[1]; s.uses=U(range(2,n))
            else:
                s.defs=allr[0]; s.uses=U(range(1,n))
                if op.startswith('v_fmac') or op.startswith('v_dot2c') or op.startswith('v_writelane'): s.uses|=allr[0]
                if 'dpp' in op or 'row_' in t or 'quad_perm' in t: s.uses|=allr[0]; s.dpp=True
                if op.startswith('v_cndmask') and n==3: s.uses|={('s','vcc')}
        else:
            raise ValueError('unknown op '+text)
    def states(s):
        if s.kind=='none': return 0
        if s.op=='s_nop': return int(s.ops[0],0)+1
        return 1

class Asm:
    def __init__(s): s.L=[]; s.nlab=0
    def __call__(s, text, tok=None):
        for line in text.split('\n'):
            line=line.strip()
            if line: s.L.append(I(line,tok))
        return s
    def lab(s,name): s.L.append(I(name+':'))
    def newlab(s,p='L'): s.nlab+=1; return f'{p}_{s.nlab}'
    def waitvm(s,tok): s.L.append(('WVM',tok))
    def waitlg(s,tok): s.L.append(('WLG',tok))
    def ext(s, items): s.L.extend(items)

def mk(text,tok=None): return I(text,tok)

def interleave(backbone, fillers, slots=2, start=0, per=None):
    out=[]; fi=0; nm=0; i=0
    fillers=list(fillers)
    while i<len(backbone):
        it=backbone[i]; out.append(it); i+=1
        if isinstance(it,I) and it.kind=='mfma':
            nm+=1
            used=0; j=i
            while j<len(backbone) and not(isinstance(backbone[j],I) and backbone[j].kind=='mfma'):
                used+=1; j+=1
            free=slots-used
            while fi<len(fillers) and nm>start:
                f=fillers[fi]
                if isinstance(f,tuple) and f[0]=='AT':
                    if nm>=f[1]: fi+=1; continue
                    break
                g=f if isinstance(f,list) else [f]
                if len(g)>free and not(free>=slots and len(g)>slots) : break
                out.extend(g); free-=len(g); fi+=1
                if free<=0: break
    rest=[]
    for f in fillers[fi:]:
        if isinstance(f,tuple) and f[0]=='AT': continue
        rest.extend(f if isinstance(f,list) else [f])
    return out, rest

def resolve(items, verbose=False):
    out=[]; vm=[]; lg=[]
    def emit_wait(nv,nl):
        parts=[]
        if nv is not None: parts.append(f'vmcnt({nv})')
        if nl is not None: parts.append(f'lgkmcnt({nl})')
        out.append(I('s_waitcnt '+' '.join(parts)))
    for it in items:
        if isinstance(it,tuple):
            q = vm if it[0]=='WVM' else lg
            idx=[k for k,e in enumerate(q) if e[1]==it[1]]
            if idx:
                n=len(q)-1-idx[-1]
                if it[0]=='WVM':
                    assert n<=63,('vmcnt overflow',n); emit_wait(n,None); del vm[:idx[-1]+1]
                else:
                    if any(e[2] for e in lg): n=0
                    if n>15: n=15
                    emit_wait(None,n); del lg[:len(lg)-n]
            continue
        if it.kind=='none': out.append(it); continue
        if it.op=='s_waitcnt':
            m=re.search(r'vmcnt\((\d+)\)',it.text)
            if m: n=int(m.group(1)); del vm[:max(0,len(vm)-n)]
            m=re.search(r'lgkmcnt\((\d+)\)',it.text)
            if m:
                n=int(m.group(1))
                if n==0 or not any(e[2] for e in lg): del lg[:max(0,len(lg)-n)]
            out.append(it); continue
        touch=it.defs|it.uses
        nv=nl=None
        idx=[k for k,e in enumerate(vm) if e[0]&touch]
        if idx:
            nv=len(vm)-1-idx[-1]; assert nv<=63; del vm[:idx[-1]+1]
        idx=[k for k,e in enumerate(lg) if e[0]&touch]
        if idx:
            nl=len(lg)-1-idx[-1]
            if any(e[2] for e in lg): nl=0
            if nl>15: nl=15
            del lg[:len(lg)-nl]
        if nv is not None or nl is not None: emit_wait(nv,nl)
        out.append(it)
        if it.kind=='vmem':
            vm.append((set(it.defs),it.tok,False))
            if len(vm)>63 and verbose: print('note: >63 vmem outstanding at',it.text)
        elif it.kind=='ds': lg.append((set(it.defs),it.tok,False))
        elif it.kind=='smem': lg.append((set(it.defs),it.tok,True))
    return out

def need(p,c):
    n=0
    isv=lambda S:{r for r in S if r[0] in 'va'}
    iss=lambda S:{r for r in S if r[0]=='s'}
    if p.kind=='valu':
        pv=isv(p.defs); ps=iss(p.defs)
        if c.kind=='mfma' and pv&c.uses: n=max(n,2)
        if c.kind=='valu':
            if c.op.startswith('v_permlane') and pv&c.uses: n=max(n,2)
            if getattr(c,'dpp',False) and pv&c.uses: n=max(n,2)
            if (c.op.startswith('v_readfirstlane') or c.op.startswith('v_readlane')) and pv&c.uses: n=max(n,1)
            if p.op.replace('_e32','').replace('_e64','') in TRANS and pv&c.uses: n=max(n,1)
            if 'sdwa' in p.text and pv&(c.uses|c.defs): n=max(n,1)
            if ps&c.uses: n=max(n,4 if c.op.startswith(('v_readlane','v_writelane')) else 2)
        if c.kind=='vmem' and ps&c.uses: n=max(n,5)
        if c.kind in('salu','ctl','smem') and ps&c.uses: n=max(n,1)
    if p.kind=='mfma':
        big={4:8,8:12}[p.passes]
        if c.kind=='mfma':
            if p.defs&(c.A|c.B): n=max(n,big)
            if p.defs&c.C and not(p.defs==c.C and p.passes==c.passes): n=max(n,{4:6,8:10}[p.passes])
            if p.defs&c.defs and not p.defs&c.C: n=max(n,{4:6,8:10}[p.passes])
        elif c.kind in('valu','vmem','ds'):
            if p.defs&(c.uses|c.defs): n=max(n,big)
            if c.kind=='valu' and p.C&c.defs: n=max(n,{4:3,8:7}[p.passes])
    if p.kind=='vmem' and not p.load and p.wide:
        if p.sdata&c.defs: n=max(n,2)
    if p.kind=='ds' and p.op.startswith('ds_write') and (p.op.endswith('b128') or p.op.endswith('b96')):
        pass
    if p.kind=='salu' and ('s','m0') in p.defs and c.kind=='vmem' and c.dma: n=max(n,1)
    if p.kind=='salu' and ('s','exec') in p.defs and c.kind=='valu' and getattr(c,'dpp',False): n=max(n,0)
    return n

def pad_hazards(items, report=None):
    out=[]
    for it in items:
        if it.kind!='none':
            dist=0; add=0
            for p in reversed(out):
                if dist>=20: break
                if p.kind=='none': continue
                k=need(p,it)
                if k>dist: add=max(add,k-dist)
                dist+=p.states()
            if add:
                if report is not None: report.append((add,it.text))
                out.append(I(f's_nop {add-1}'))
        out.append(it)
    return out

def finish(items, report=None):
    return pad_hazards(resolve(items), report)

def text(items): return '\n'.join(('' if (i.label or i.directive) else '  ')+i.text for i in items)+'\n'

def kernel_file(name, body_text, launch, nvgpr=512, accum=256, nsgpr=102, header=''):
    return (header + launch + '\n.amdgcn_target "amdgcn-amd-amdhsa--gfx950"\n.text\n'
      f'.globl {name}\n.p2align 8\n.type {name},@function\n{name}:\n' + body_text +
      '.section .rodata,"a"\n.p2align 6\n'
      f'.amdhsa_kernel {name}\n  .amdhsa_next_free_vgpr {nvgpr}\n  .amdhsa_next_free_sgpr {nsgpr}\n  .amdhsa_accum_offset {accum}\n'
      '  .amdhsa_group_segment_fixed_size 0\n  .amdhsa_kernarg_size 104\n  .amdhsa_user_sgpr_count 2\n'
      '  .amdhsa_user_sgpr_kernarg_segment_ptr 1\n  .amdhsa_system_sgpr_workgroup_id_x 1\n.end_amdhsa_kernel\n')
```

```python
OFF_NONCE=0
OFF_HELLO=0x1000
OFF_HELLO2=0x10000
OFF_F1=0x20000
OFF_XFLAG=0x22000
OFF_HFLAG=0x28000
OFF_S5=0x40000
OFF_GRAN=0x100000
OFF_KVT=0x200000
OFF_XF=0x200000
OFF_YT=0x400000
HKS=48
OFF_H=0x600000
OFF_STAMP=0x1000000
```

```python
import sys, os
from asmlib import *
from layout import *

NAME="interleave_layers__ssm_conv_h3__glu_gated_reglu__prompt_kernel"
CFG=dict(stamps=0, stop=None, slow=1, prefetch=1)
for a_ in sys.argv[2:]:
    k,v=a_.split('='); CFG[k]=int(v) if v.lstrip('-').isdigit() else v

sX,sR,sWV,sG,sM,sRH,sCT2,sKH,sCHH,sTAG,sHELLO=4,5,6,7,8,9,10,11,12,13,14
sT0,sT1,sT2,sT3=3,15,60,61
sCNT=62; sSOFF=63
WS,SK_,SV_,SQ_,SH_,SWG,SWU,SWD,SO_,SSK,SD_=16,20,24,28,32,36,40,44,48,52,56
srd=lambda b:f"s[{b}:{b+3}]"
sXW,sHW,sHK,sHS,sXS,sFL,sGR,sS5,sGRl,sS5l=64,65,66,67,68,69,70,71,72,73
sW2W,sW2M,sHF,sKMASK=74,75,76,77
STAMP0=78
Q=[0,32768,65536,98304,131072]
TCP=4160; TCH=4*TCP; L_TOEP=0
L_U=2*TCH; UCH=4608
L_K=L_U+2*UCH; CHP=1056; L_V=L_K+9*CHP
L_CX=L_K
L_YS=0
L_WS=65536; WSL=24576
assert L_V+8*CHP<=65536 and L_CX+16384<=65536
vL=1
vOne=2
vTok=3; vGs=4; vGl=5; vS5s=6; vS5l=7; vXD=8; vHD=9; vHS1=10; vHS2=11; vFX=12; vFH=13
vXst=[16,24]
vYY=[32,36]
vR2=[14,15]
VF=40
W2V=144; W2A=192
def W1(s,t): b=(s*3+t)*4; return f"a[{b}:{b+3}]"
def W1h(s,t,hh): b=(s*3+t)*4+2*hh; return f"a[{b}:{b+1}]"
def W2(i,t):
    k=(i*2+t)*4
    return f"v[{W2V+k}:{W2V+k+3}]" if k<112 else f"a[{W2A+k-112}:{W2A+k-112+3}]"
def W2h(i,t,hh):
    k=(i*2+t)*4+2*hh
    return f"v[{W2V+k}:{W2V+k+1}]" if k<112 else f"a[{W2A+k-112}:{W2A+k-112+1}]"
V=lambda b,n=4: f"v[{b}:{b+n-1}]"
OOB=0x7FFFFF00
POLLMAX=1<<16

stamp_names=[]
class G(Asm):
    def __init__(s,tag='',sc=''):
        super().__init__(); s.tag=tag; s.sc=sc
    def stamp(s,name):
        if not CFG['stamps']: return
        if s.tag!='S':
            stamp_names.append(name); i=len(stamp_names)-1
        else: return
        assert i<22, "too many stamps"
        s(f"s_memrealtime s[100:101]\ns_waitcnt lgkmcnt(0)\ns_mov_b32 s{STAMP0+i}, s100")
    def label(s,p): s.nlab+=1; return f"L{s.tag}_{p}_{s.nlab}"

def poll(a, loads, checks, name):
    L=a.label(name); E=a.label(name+'e')
    a(f"s_mov_b32 s{sCNT}, 0")
    a.lab(L)
    for l in loads: a(l)
    a("s_waitcnt vmcnt(0)")
    for c in checks: a(c)
    a(f"s_cbranch_vccz {E}")
    a(f"s_add_u32 s{sCNT}, s{sCNT}, 1\ns_cmp_lt_u32 s{sCNT}, {POLLMAX}\ns_cbranch_scc1 {L}")
    a.lab(E)

def entry(a):
    a.stamp("entry")
    a("s_cmp_ge_u32 s2, 256\ns_cbranch_scc1 L_end")
    for b,off in ((SK_,8),(SV_,16),(WS,96),(SH_,32),(SSK,24),(SD_,40),(SQ_,0),(SWG,56),(SWU,64),(SWD,72),(SO_,80)):
        a(f"s_load_dwordx2 s[{b}:{b+1}], s[0:1], {off}")
    a(f"v_lshrrev_b32 v40, 6, v0\nv_and_b32 v41, 63, v0")
    a(f"s_and_b32 s{sX}, s2, 7\ns_lshr_b32 s{sR}, s2, 3")
    a(f"v_readfirstlane_b32 s{sWV}, v40")
    a(f"v_lshlrev_b32 v{vL}, 4, v41")
    if CFG['prefetch']:
        a(f"s_getpc_b64 s[{sT2}:{sT2+1}]")
        a("L_pc:")
        a(f"s_lshl_b32 s{sT0}, s{sWV}, 5\ns_add_u32 s{sT0}, s{sT0}, s{sR}\ns_lshl_b32 s{sT0}, s{sT0}, 10")
        a(f"v_add_u32 v42, s{sT0}, v{vL}\nv_min_u32 v42, L_fast_end-L_pc-16, v42")
        a(f"v_mov_b32 v43, s{sT2+1}\nv_add_co_u32 v42, vcc, s{sT2}, v42\nv_addc_co_u32 v43, vcc, 0, v43, vcc")
        a("global_load_dwordx4 v[44:47], v[42:43], off")
    a(f"v_lshrrev_b32 v48, 3, v41\nv_and_b32 v49, 7, v41\nv_lshlrev_b32 v49, 4, v49\nv_lshl_add_u32 v48, v48, 10, v49")
    a(f"s_lshl_b32 s{sT0}, s{sR}, 16\ns_lshl_b32 s{sT1}, s{sX}, 7\ns_add_u32 s{sT0}, s{sT0}, s{sT1}")
    a(f"s_sub_u32 s{sT1}, s{sT0}, 8192\nv_add_u32 v49, s{sT1}, v48")
    a(f"s_lshl_b32 s{sT1}, s{sWV}, 13\ns_add_u32 s{sT0}, s{sT0}, s{sT1}\nv_add_u32 v48, s{sT0}, v48")
    a(f"s_mul_i32 s{sT1}, s{sWV}, {CHP}\ns_mov_b32 s{sSOFF}, 32768")
    for b,n in ((SK_,2<<20),(SV_,2<<20),(WS,256<<20)):
        a(f"s_mov_b32 s{b+2}, {n}\ns_mov_b32 s{b+3}, 0x20000")
    a(f"v_mov_b32 v50, 0")
    a(f"buffer_load_dword v51, v50, {srd(WS)}, 0 offen sc1", "nonce")
    a(f"s_add_u32 m0, s{sT1}, {L_K+CHP}");   a(f"buffer_load_dwordx4 v48, {srd(SK_)}, 0 offen lds","kv")
    a(f"s_add_u32 m0, s{sT1}, {L_V}");       a(f"buffer_load_dwordx4 v48, {srd(SV_)}, 0 offen lds","kv")
    a(f"s_add_u32 m0, s{sT1}, {L_K+5*CHP}"); a(f"buffer_load_dwordx4 v48, {srd(SK_)}, s{sSOFF} offen lds","kv")
    a(f"s_add_u32 m0, s{sT1}, {L_V+4*CHP}"); a(f"buffer_load_dwordx4 v48, {srd(SV_)}, s{sSOFF} offen lds","kv")
    a(f"s_mov_b32 m0, {L_K}");               a(f"buffer_load_dwordx4 v49, {srd(SK_)}, 0 offen lds","kv")
    for b,n in ((SH_,4096),(SSK,4096),(SD_,1024),(SQ_,2<<20),(SWG,512*1376*2),(SWU,512*1376*2),(SWD,512*1376*2),(SO_,2<<20)):
        a(f"s_mov_b32 s{b+2}, {n}\ns_mov_b32 s{b+3}, 0x20000")
    a(f"""s_lshr_b32 s{sT0}, s{sR}, 4
        s_lshl_b32 s{sG}, s{sX}, 1
        s_add_u32 s{sG}, s{sG}, s{sT0}
        s_and_b32 s{sM}, s{sR}, 15
        s_lshr_b32 s{sRH}, s{sM}, 3
        s_and_b32 s{sCT2}, s{sM}, 7
        s_lshr_b32 s{sKH}, s{sWV}, 1
        s_and_b32 s{sCHH}, s{sWV}, 1""")
    a(f"s_cmp_eq_u32 s{sM}, 15\ns_cselect_b32 s{SWG+2}, 0, s{SWG+2}\ns_cselect_b32 s{SWU+2}, 0, s{SWU+2}")
    a(f"s_lshl_b32 s{sT0}, s{sX}, 6\ns_lshl_b32 s{sT1}, s{sR}, 1\ns_add_u32 s{sT0}, s{sT0}, s{sT1}\ns_add_u32 s{sT2}, s{sT0}, s{sKH}")
    a(f"s_lshl_b32 s{sT0}, s{sT2}, 12\ns_add_u32 s{SH_}, s{SH_}, s{sT0}\ns_addc_u32 s{SH_+1}, s{SH_+1}, 0")
    a(f"s_lshl_b32 s{sT0}, s{sCHH}, 11\nv_add_u32 v52, s{sT0}, v{vL}")
    a(f"v_min_u32 v53, 1, v41\nv_lshlrev_b32 v53, 4, v53\nv_subrev_u32 v53, 32, v53\nv_add_u32 v54, 16, v53")
    for rho,(va,off) in enumerate(((52,0),(52,1024))):
        d=56+8*rho
        a(f"buffer_load_dwordx4 {V(d)}, v{va}, {srd(SH_)}, 0 offen offset:{off}")
        a(f"buffer_load_dwordx2 {V(d+4,2)}, v{va}, {srd(SH_)}, 0 offen offset:{off+16}")
    a(f"buffer_load_dwordx4 {V(72)}, v53, {srd(SH_)}, 0 offen")
    a(f"buffer_load_dwordx2 {V(76,2)}, v54, {srd(SH_)}, 0 offen")
    a(f"v_and_b32 v42, 15, v41\nv_lshrrev_b32 v43, 4, v41")
    a(f"s_lshl_b32 s{sT0}, s{sX}, 6\ns_lshl_b32 s{sT1}, s{sWV}, 4\ns_add_u32 s{sT0}, s{sT0}, s{sT1}\nv_add_u32 v55, s{sT0}, v42")
    a(f"v_lshlrev_b32 v78, 3, v55")
    a(f"buffer_load_dwordx2 {V(80,2)}, v78, {srd(SSK)}, 0 offen")
    a(f"s_lshl_b32 s{sT0}, s{sT2}, 1\nv_mov_b32 v78, s{sT0}")
    a(f"buffer_load_ushort v82, v78, {srd(SD_)}, 0 offen")
    a(f"v_mov_b32 v{vOne}, {OOB}\nv_cmp_eq_u32 vcc, 0, v41\nv_cndmask_b32 v{vOne}, v{vOne}, v50, vcc")
    a(f"""s_lshl_b32 s{sT0}, s{sG}, 2
        s_lshl_b32 s{sT1}, s{sRH}, 1
        s_add_u32 s{sT1}, s{sT1}, s{sKH}
        s_add_u32 s{sT0}, s{sT0}, s{sT1}""")
    a(f"""s_lshl_b32 s{sGRl}, s{sT0}, 12
        s_add_u32 s{sGRl}, s{sGRl}, {OFF_GRAN}
        s_lshl_b32 s{sS5l}, s{sT0}, 10
        s_add_u32 s{sS5l}, s{sS5l}, {OFF_S5}
        s_lshl_b32 s{sT3}, s{sCT2}, 1
        s_add_u32 s{sT3}, s{sT3}, s{sCHH}""")
    a(f"""s_lshl_b32 s{sGR}, s{sT3}, 8
        s_add_u32 s{sGR}, s{sGR}, s{sGRl}
        s_lshl_b32 s{sS5}, s{sT3}, 2
        s_add_u32 s{sS5}, s{sS5}, s{sS5l}
        s_lshl_b32 s{sXS}, s{sG}, 17
        s_lshl_b32 s{sT1}, s{sT1}, 14
        s_add_u32 s{sXS}, s{sXS}, s{sT1}
        s_lshl_b32 s{sT1}, s{sT3}, 10
        s_add_u32 s{sXS}, s{sXS}, s{sT1}
        s_add_u32 s{sXS}, s{sXS}, {OFF_XF}
        s_lshl_b32 s{sT0}, s{sT0}, 14
        s_lshl_b32 s{sT1}, s{sT3}, 6
        s_add_u32 s{sT0}, s{sT0}, s{sT1}""")
    a(f"v_lshlrev_b32 v{vTok}, 10, v42\nv_lshl_add_u32 v{vTok}, v43, 4, v{vTok}\nv_add_u32 v{vTok}, s{sT0}, v{vTok}")
    a(f"s_mov_b32 s{sSOFF}, 0x100000")
    a(f"buffer_load_dwordx4 {V(84)}, v{vTok}, {srd(SQ_)}, 0 offen")
    a(f"buffer_load_dwordx4 {V(88)}, v{vTok}, {srd(SQ_)}, s{sSOFF} offen")
    a(f"v_lshlrev_b32 v{vGs}, 4, v42\nv_lshl_add_u32 v{vGl}, v43, 10, v{vGs}\nv_lshl_add_u32 v{vGs}, v43, 2, v{vGs}")
    a(f"v_lshlrev_b32 v{vS5l}, 6, v42\nv_mov_b32 v{vS5s}, {OOB}\nv_cmp_eq_u32 vcc, 0, v43\nv_cndmask_b32 v{vS5s}, v{vS5s}, v{vS5l}, vcc")
    a(f"v_mov_b32 v92, -1\nv_mov_b32 v93, -1\nv_mov_b32 v94, -1\nv_mov_b32 v95, -1")
    a(f"v_lshlrev_b32 v78, 4, v42\nv_lshl_add_u32 v78, v43, 18, v78")
    a(f"buffer_store_dwordx4 {V(92)}, v78, {srd(WS)}, s{sGR} offen sc1")
    a(f"v_lshl_add_u32 v79, v43, 16, v{vS5l}")
    a(f"buffer_store_dword v92, v79, {srd(WS)}, s{sS5} offen sc1")
    a(f"v_lshl_add_u32 v{vS5l}, v43, 4, v{vS5l}")
    a(f"""v_and_b32 v96, 1, v43
        v_lshlrev_b32 v96, 2, v96
        v_lshrrev_b32 v97, 2, v42
        v_add_u32 v96, v96, v97
        v_lshlrev_b32 v96, 16, v96
        v_and_b32 v97, 3, v42
        v_lshl_add_u32 v96, v97, 5, v96
        v_lshrrev_b32 v97, 1, v43
        v_lshl_add_u32 v96, v97, 4, v96
        s_lshl_b32 s{sT0}, s{sCHH}, 19
        s_lshl_b32 s{sT1}, s{sT2}, 7
        s_add_u32 s{sT0}, s{sT0}, s{sT1}
        s_add_u32 s{sT0}, s{sT0}, {OFF_YT}
        v_add_u32 v96, s{sT0}, v96""")
    a(f"buffer_store_dwordx4 {V(92)}, v96, {srd(WS)}, 0 offen sc1")
    a(f"buffer_store_dwordx4 {V(92)}, v96, {srd(WS)}, s{sSOFF} offen sc1")
    a(f"s_getreg_b32 s{sHELLO}, hwreg(HW_REG_XCC_ID, 0, 4)")
    a(f"v_readfirstlane_b32 s{sTAG}, v51")
    a(f"s_add_u32 s{sTAG}, s{sTAG}, 0x9E3779B0\ns_and_b32 s{sTAG}, s{sTAG}, 0xFFFFFFF0\ns_and_b32 s{sHELLO}, s{sHELLO}, 15\ns_or_b32 s{sHELLO}, s{sHELLO}, s{sTAG}")
    a(f"s_lshl_b32 s{sT0}, s{sX}, 5\ns_add_u32 s{sT0}, s{sT0}, s{sR}\ns_lshl_b32 s{sHF}, s{sT0}, 7")
    a(f"s_add_u32 s{sT0}, s{sHF}, {OFF_HELLO}\ns_cmp_eq_u32 s{sWV}, 0\ns_cselect_b32 s{sT0}, s{sT0}, {OOB}")
    a(f"v_mov_b32 v97, s{sHELLO}")
    a(f"buffer_store_dword v97, v{vOne}, {srd(WS)}, s{sT0} offen sc1")
    a(f"""s_lshl_b32 s{sXW}, s{sCHH}, 14
        s_lshl_b32 s{sT0}, s{sKH}, 12
        s_add_u32 s{sXW}, s{sXW}, s{sT0}
        s_lshl_b32 s{sT0}, s{sG}, 17
        s_add_u32 s{sT0}, s{sT0}, s{sXW}
        s_add_u32 s{sT0}, s{sT0}, {OFF_XF}
        v_add_u32 v{vXD}, s{sT0}, v{vL}
        s_lshl_b32 s{sHW}, s{sWV}, 13
        s_mul_i32 s{sHK}, s{sKH}, {3*8192}
        s_lshl_b32 s{sHS}, s{sKH}, 13
        s_add_u32 s{sHS}, s{sHS}, 8192
        s_lshl_b32 s{sT0}, s{sG}, 3
        s_lshl_b32 s{sT1}, s{sRH}, 1
        s_add_u32 s{sT1}, s{sT1}, s{sCHH}
        s_add_u32 s{sT1}, s{sT1}, s{sT0}
        s_mul_i32 s{sT1}, s{sT1}, {HKS}
        s_mul_i32 s{sT3}, s{sKH}, 21
        s_add_u32 s{sT1}, s{sT1}, s{sT3}
        s_lshl_b32 s{sT1}, s{sT1}, 10
        s_add_u32 s{sT1}, s{sT1}, {OFF_H}
        v_add_u32 v{vHD}, s{sT1}, v{vL}""")
    a(f"""s_mul_i32 s{sT0}, s{sT0}, {HKS*1024}
        s_mul_i32 s{sT1}, s{sM}, 12
        s_mul_i32 s{sT3}, s{sWV}, 3
        s_add_u32 s{sT1}, s{sT1}, s{sT3}
        s_lshl_b32 s{sT1}, s{sT1}, 8
        s_add_u32 s{sT0}, s{sT0}, s{sT1}
        s_add_u32 s{sT0}, s{sT0}, {OFF_H}
        s_mov_b32 s{sT1}, {HKS*1024}
        v_lshlrev_b32 v97, 4, v42
        v_add_u32 v97, s{sT0}, v97
        v_mad_u32_u24 v{vHS2}, v43, s{sT1}, v97
        v_add_u32 v{vHS2}, 512, v{vHS2}
        v_and_b32 v98, 1, v43
        v_mad_u32_u24 v{vHS1}, v98, s{sT1}, v97
        v_lshrrev_b32 v98, 1, v43
        v_lshl_add_u32 v{vHS1}, v98, 8, v{vHS1}
        v_lshlrev_b32 v{vFX}, 2, v41
        v_min_u32 v{vFH}, 57, v41
        v_lshlrev_b32 v{vFH}, 2, v{vFH}
        s_lshl_b32 s{sFL}, s{sM}, 2
        s_add_u32 s{sFL}, s{sFL}, s{sWV}
        s_lshl_b32 s{sFL}, s{sFL}, 2
        s_sub_u32 s{sKMASK}, s{sKH}, 1""")
    a.stamp("issued")

def toeplitz(a):
    a(f"s_mul_i32 s{sT0}, s{sKH}, {TCH}\ns_add_u32 s{sT0}, s{sT0}, {L_TOEP+32}")
    a(f"v_add_u32 v52, s{sT0}, v52\nv_add_u32 v53, s{sT0}, v53")
    for rho,(va,off) in enumerate(((52,0),(52,1024),(53,0))):
        d=56+8*rho
        a(f"ds_write_b128 v{va}, {V(d)} offset:{off}")
        for i in range(4): a(f"v_alignbit_b32 v{100+i}, v{d+i+1}, v{d+i}, 16")
        for i in range(4): a(f"v_mov_b32 v{104+i}, v{d+i+1}")
        for i in range(4): a(f"v_alignbit_b32 v{108+i}, v{d+i+2}, v{d+i+1}, 16")
        a(f"ds_write_b128 v{va}, {V(100)} offset:{off+TCP}")
        a(f"ds_write_b128 v{va}, {V(104)} offset:{off+2*TCP}")
        a(f"ds_write_b128 v{va}, {V(108)} offset:{off+3*TCP}")
    a(f"v_lshrrev_b32 v100, 5, v41\nv_mul_u32_u24 v100, {UCH-512}, v100\nv_add_u32 v100, v100, v{vL}")
    a("v_mov_b32 v104, 0\nv_mov_b32 v105, 0\nv_mov_b32 v106, 0\nv_mov_b32 v107, 0")
    a(f"ds_write_b128 v100, {V(104)} offset:{L_U}")
    for mu in range(2):
        for i in range(4):
            a(f"v_lshlrev_b32 v{vXst[mu]+2*i}, 16, v{84+4*mu+i}\nv_and_b32 v{vXst[mu]+2*i+1}, 0xffff0000, v{84+4*mu+i}")
    a("v_lshlrev_b32 v82, 16, v82")

def p0(a):
    a.waitvm("kv"); a("s_barrier")
    a.stamp("kv landed")
    a(f"v_and_b32 v97, 31, v41\nv_lshlrev_b32 v97, 7, v97\ns_lshl_b32 s{sT3}, s{sX}, 12\ns_add_u32 s{sT3}, s{sT3}, {OFF_HELLO}")
    a(f"""v_mul_u32_u24 v100, {2*CHP}, v43
        v_bfe_u32 v101, v41, 2, 2
        v_lshl_add_u32 v100, v101, 7, v100
        v_and_b32 v101, 3, v41
        v_lshl_add_u32 v100, v101, 3, v100
        s_lshl_b32 s{sT0}, s{sWV}, 5
        v_add_u32 v100, s{sT0}, v100""")
    for i in range(5):
        R=4+4*i; a(f"ds_read_b64_tr_b16 {V(56+2*i,2)}, v100 offset:{L_K+(R>>3)*CHP+(R&7)*128}")
    for i in range(4):
        R=4*i; a(f"ds_read_b64_tr_b16 {V(66+2*i,2)}, v100 offset:{L_V+(R>>3)*CHP+(R&7)*128}")
    a("v_lshlrev_b32 v74, 16, v80\nv_and_b32 v75, 0xffff0000, v80\nv_lshlrev_b32 v76, 16, v81\nv_and_b32 v77, 0xffff0000, v81")
    K=lambda t: 108+t
    for i in range(10):
        if i>0: a(f"v_lshlrev_b32 v{104+2*i}, 16, v{56+i}")
        a(f"v_and_b32 v{105+2*i}, 0xffff0000, v{56+i}")
    for t in range(16):
        a(f"v_mul_f32 v{124+t}, v74, v{K(t)}")
        a(f"v_fmac_f32 v{124+t}, v75, v{K(t-1)}")
        a(f"v_fmac_f32 v{124+t}, v76, v{K(t-2)}")
        a(f"v_fmac_f32 v{124+t}, v77, v{K(t-3)}")
    for i in range(8):
        a(f"v_lshlrev_b32 v104, 16, v{66+i}\nv_and_b32 v105, 0xffff0000, v{66+i}")
        a(f"v_mul_f32 v{124+2*i}, v{124+2*i}, v104\nv_mul_f32 v{125+2*i}, v{125+2*i}, v105")
    for o in range(2):
        for d in range(4):
            a(f"v_cvt_pk_bf16_f32 v{56+4*o+d}, v{124+8*o+7-2*d}, v{124+8*o+6-2*d}")
    a(f"v_lshlrev_b32 v55, 12, v55\nv_lshl_add_u32 v55, v43, 5, v55\ns_lshl_b32 s{sT0}, s{sR}, 7\ns_add_u32 s{sT0}, s{sT0}, {OFF_KVT}\nv_add_u32 v55, s{sT0}, v55")
    poll(a,[f"buffer_load_dword v98, v97, {srd(WS)}, s{sT3} offen sc1"],
         [f"v_and_b32 v99, 0xfffffff0, v98", f"v_cmp_ne_u32 vcc, s{sTAG}, v99"],"hello")
    a(f"v_cmp_ne_u32 vcc, s{sHELLO}, v98")
    if CFG['slow']==2: a("s_branch L_slow")
    elif CFG['slow']: a("s_cbranch_vccnz L_slow")

def flag_store(a, soff_expr_lines, sreg, vtmp):
    for l in soff_expr_lines: a(l)
    a(f"v_mov_b32 v{vtmp}, s{sTAG}")
    a(f"buffer_store_dword v{vtmp}, v{vOne}, {srd(WS)}, s{sreg} offen{a.sc}")

def seam1(a):
    a(f"buffer_store_dwordx4 {V(56)}, v55, {srd(WS)}, 0 offen{a.sc}")
    a(f"buffer_store_dwordx4 {V(60)}, v55, {srd(WS)}, 0 offen offset:16{a.sc}")
    a("s_waitcnt vmcnt(0)")
    flag_store(a,[f"s_lshl_b32 s{sT0}, s{sX}, 2",f"s_add_u32 s{sT0}, s{sT0}, s{sWV}",f"s_lshl_b32 s{sT0}, s{sT0}, 5",f"s_add_u32 s{sT0}, s{sT0}, s{sR}",f"s_lshl_b32 s{sT0}, s{sT0}, 2",f"s_add_u32 s{sT0}, s{sT0}, {OFF_F1}"],sT0,98)
    a(f"s_lshl_b32 s{sT0}, s{sWV}, 2\ns_add_u32 s{sT0}, s{sT0}, s{sHF}\ns_add_u32 s{sT0}, s{sT0}, {OFF_HELLO2}")
    a(f"buffer_store_dword v98, v{vOne}, {srd(WS)}, s{sT0} offen sc1")
    a.stamp("kvT published")
    a(f"s_lshr_b32 s{sT0}, s{sR}, 3\ns_lshl_b32 s{sT1}, s{sX}, 2\ns_add_u32 s{sT0}, s{sT0}, s{sT1}\ns_lshl_b32 s{sT0}, s{sT0}, 7\ns_add_u32 s{sT0}, s{sT0}, {OFF_F1}")
    a(f"v_and_b32 v97, 31, v41\nv_lshlrev_b32 v97, 2, v97")
    poll(a,[f"buffer_load_dword v99, v97, {srd(WS)}, s{sT0} offen sc1"],[f"v_cmp_ne_u32 vcc, s{sTAG}, v99"],"f1")
    a(f"""s_lshl_b32 s{sT0}, s{sX}, 6
        s_lshl_b32 s{sT1}, s{sR}, 1
        s_add_u32 s{sT0}, s{sT0}, s{sT1}
        s_add_u32 s{sT0}, s{sT0}, s{sKH}
        s_lshl_b32 s{sT0}, s{sT0}, 12
        s_lshl_b32 s{sT1}, s{sCHH}, 11
        s_add_u32 s{sT0}, s{sT0}, s{sT1}
        s_add_u32 s{sT0}, s{sT0}, {OFF_KVT}
        s_mul_i32 s{sT2}, s{sKH}, {UCH}
        s_add_u32 s{sT1}, s{sT1}, s{sT2}
        s_add_u32 m0, s{sT1}, {L_U+512}""")
    a(f"buffer_load_dwordx4 v{vL}, {srd(WS)}, s{sT0} offen sc1 lds","u")
    a(f"buffer_load_dwordx4 v{vL}, {srd(WS)}, s{sT0} offen offset:1024 sc1 lds","u")

def conv(a):
    ACC=40; UR=100; GR=56
    a("v_mov_b32 v136, v41\nv_mov_b32 v137, v42\nv_mov_b32 v138, v43\nv_mov_b32 v139, v96\nv_mov_b32 v140, v82")
    lane,j,q=136,137,138
    a(f"""s_lshl_b32 s{sT1}, s{sCHH}, 8
        s_sub_u32 s{sT0}, s{sT2}, s{sT1}
        s_add_u32 s{sT0}, s{sT0}, {L_U+480-192}
        v_lshlrev_b32 v141, 5, v{j}
        v_lshl_add_u32 v141, v{q}, 4, v141
        v_add_u32 v141, s{sT0}, v141
        v_add_u32 v142, 1, v{j}
        v_and_b32 v143, 3, v142
        v_mul_u32_u24 v143, {TCP}, v143
        v_lshrrev_b32 v142, 2, v142
        v_lshl_add_u32 v142, v142, 3, v143
        v_lshlrev_b32 v143, 4, v{q}
        v_sub_u32 v142, v142, v143
        s_mul_i32 s{sT0}, s{sKH}, {TCH}
        s_add_u32 s{sT0}, s{sT0}, s{sT1}
        s_add_u32 s{sT0}, s{sT0}, {L_TOEP+48}
        v_add_u32 v142, s{sT0}, v142""")
    a.waitvm("u"); a("s_waitcnt lgkmcnt(0)\ns_barrier")
    a.stamp("U landed")
    ACC=40; GR=72; UR=104
    rdU=lambda w,it: mk(f"ds_read_b128 {V(UR+4*w)}, v141 offset:{512*w+192-64*it}")
    rdG=lambda e,it: [mk(f"ds_read_b64 {V(GR+4*e,2)}, v142 offset:{512*e+64*it}"), mk(f"ds_read_b64 {V(GR+4*e+2,2)}, v142 offset:{512*e+64*it+8}")]
    a.ext(rdG(0,0))
    for w in range(7,-1,-1): a.ext([rdU(w,0)])
    for e in range(1,8): a.ext(rdG(e,0))
    for it in range(4):
        bb=[]; pend=[]
        for e in range(8):
            for w in range(7-e,-1,-1):
                c=w+e; C = "0" if (it==0 and e==0) else V(ACC+4*c)
                bb.append(mk(f"v_mfma_f32_16x16x32_bf16 {V(ACC+4*c)}, {V(GR+4*e)}, {V(UR+4*w)}, {C}"))
                k=0
                while pend and k<2: bb.append(pend.pop(0)); k+=1
            if it<3: pend += [rdU(7-e,it+1)]+rdG(e,it+1)
        bb+=pend
        a.ext(bb)
    a.stamp("conv mfma done")
    a(f"s_lshl_b32 s{sT0}, s{sWV}, 12\ns_add_u32 s{sT1}, s{sT0}, {L_CX}\nv_add_u32 v141, s{sT1}, v{vL}\ns_xor_b32 s{sT0}, s{sT0}, 4096\ns_add_u32 s{sT0}, s{sT0}, {L_CX}\nv_add_u32 v142, s{sT0}, v{vL}")
    keep=[[0,1,4,5],[2,3,6,7]]
    L1=a.label("cx"); L2=a.label("cx")
    a("s_nop 7")
    a(f"s_cmp_eq_u32 s{sCHH}, 1\ns_cbranch_scc1 {L1}")
    for k,c in enumerate(keep[1]): a(f"ds_write_b128 v141, {V(ACC+4*c)} offset:{1024*k}")
    a(f"s_branch {L2}"); a.lab(L1)
    for k,c in enumerate(keep[0]): a(f"ds_write_b128 v141, {V(ACC+4*c)} offset:{1024*k}")
    a("s_waitcnt lgkmcnt(0)")
    for k in range(16): a(f"v_mov_b32 v{ACC+4*keep[0][k//4]+k%4}, v{ACC+4*keep[1][k//4]+k%4}")
    a.lab(L2)
    a(f"""s_lshl_b32 s{sT0}, s{sCHH}, 10
        s_add_u32 s{sT0}, s{sT0}, s{sT2}
        s_add_u32 s{sT0}, s{sT0}, {L_U+512+8}
        v_lshlrev_b32 v143, 5, v{j}
        v_lshrrev_b32 v72, 1, v{q}
        v_lshl_add_u32 v143, v72, 4, v143
        v_and_b32 v72, 1, v{q}
        v_lshlrev_b32 v72, 3, v72
        v_sub_u32 v143, v143, v72
        v_add_u32 v143, s{sT0}, v143""")
    for k,c in enumerate(keep[0]): a(f"ds_read_b64 {V(72+2*k,2)}, v143 offset:{512*c}")
    a("s_waitcnt lgkmcnt(0)\ns_barrier")
    for k in range(4): a(f"ds_read_b128 {V(80+4*k)}, v142 offset:{1024*k}")
    for k,c in enumerate(keep[0]):
        A=ACC+4*c
        a(f"v_and_b32 v100, 0xffff0000, v{73+2*k}\nv_lshlrev_b32 v101, 16, v{73+2*k}\nv_and_b32 v102, 0xffff0000, v{72+2*k}\nv_lshlrev_b32 v103, 16, v{72+2*k}")
        for r in range(4): a(f"v_fmac_f32 v{A+r}, v140, v{100+r}")
        for r in range(4): a(f"v_add_f32 v{A+r}, v{A+r}, v{80+4*k+r}")
        a(f"v_cvt_pk_bf16_f32 v{104+2*k}, v{A}, v{A+1}\nv_cvt_pk_bf16_f32 v{105+2*k}, v{A+2}, v{A+3}")
    a(f"s_mov_b32 s{sSOFF}, 0x100000")
    for pi in range(2):
        b=104+4*pi
        a(f"v_permlane16_swap_b32 v{b}, v{b+2}\nv_permlane16_swap_b32 v{b+1}, v{b+3}")
        a(f"buffer_store_dwordx4 {V(b)}, v139, {srd(WS)}, {'0' if pi==0 else 's%d'%sSOFF} offen sc1","yt")
    a.stamp("yT stored")

vW1=[120,121,122]; vTa,vTm,vW2,vT2=123,124,125,126; vWc0,vWc1=127,128
def w_setup(a, lane,j,q):
    for b in range(3):
        a(f"v_add_u32 v100, {64*b}, v{lane}\nv_mul_u32_u24 v101, 43691, v100\nv_lshrrev_b32 v101, 19, v101")
        a(f"v_mul_u32_u24 v102, 12, v101\nv_sub_u32 v100, v100, v102\nv_lshlrev_b32 v100, 4, v100")
        a(f"v_mul_u32_u24 v101, 2752, v101\nv_add_u32 v{vW1[b]}, v100, v101")
    a(f"s_mul_i32 s{sT0}, s{sWV}, {16*2752}\ns_mul_i32 s{sT1}, s{sM}, 192\ns_add_u32 s{sT0}, s{sT0}, s{sT1}")
    for b in range(3):
        a(f"v_add_u32 v{vW1[b]}, s{sT0}, v{vW1[b]}")
        if b: a(f"v_subrev_u32 v{vW1[b]}, {1024*b}, v{vW1[b]}")
    a(f"""v_bfe_u32 v100, v{lane}, 2, 2
        v_lshl_add_u32 v100, v{q}, 3, v100
        v_and_b32 v101, 3, v{lane}
        v_mul_u32_u24 v102, 192, v100
        s_mul_i32 s{sT0}, s{sWV}, 48
        v_add_u32 v102, s{sT0}, v102
        v_lshl_add_u32 v{vTa}, v101, 3, v102
        v_and_b32 v103, 1, v101
        v_mul_u32_u24 v103, 12288, v103
        v_add_u32 v102, v102, v103
        v_lshrrev_b32 v103, 1, v101
        v_lshl_add_u32 v102, v103, 3, v102
        v_add_u32 v{vTm}, 32, v102
        v_lshlrev_b32 v102, 7, v100
        v_lshl_add_u32 v102, v101, 4, v102
        s_mul_i32 s{sT0}, s{sKH}, 12288
        s_lshl_b32 s{sT1}, s{sCHH}, 6
        s_add_u32 s{sT0}, s{sT0}, s{sT1}
        v_add_u32 v{vT2}, s{sT0}, v102
        v_lshrrev_b32 v100, 3, v{lane}
        v_and_b32 v101, 7, v{lane}
        v_lshlrev_b32 v101, 4, v101
        v_lshl_add_u32 v100, v100, 10, v101
        s_mul_i32 s{sT0}, s{sKH}, {21*32*1024}
        s_lshl_b32 s{sT1}, s{sCT2}, 7
        s_add_u32 s{sT0}, s{sT0}, s{sT1}
        v_add_u32 v{vW2}, s{sT0}, v100
        s_mul_i32 s{sW2W}, s{sWV}, 3072""")

def w_dma(n, slot):
    L=[]; tok=f"w{n}"
    if n<8:
        L.append(mk(f"s_mov_b32 s{sW2M}, {n*64*2752}"))
        for mat,S in ((0,SWG),(1,SWU)):
            L.append(mk(f"s_add_u32 m0, s{sW2W}, {slot+mat*12288}"))
            for b in range(3): L.append(mk(f"buffer_load_dwordx4 v{vW1[b]}, {srd(S)}, s{sW2M} offen offset:{1024*b} lds",tok))
    else:
        jj=n-8
        nb,rows=(6,48) if jj<7 else (2,16)
        L.append(mk(f"s_mul_i32 s{sW2M}, s{sCHH}, {rows*1024}"))
        L.append(mk(f"s_mul_i32 s{sT3}, s{sCHH}, {rows*128}"))
        L.append(mk(f"s_mul_i32 s{sT2}, s{sKH}, 12288"))
        L.append(mk(f"s_add_u32 s{sT3}, s{sT3}, s{sT2}"))
        L.append(mk(f"s_add_u32 s{sW2M}, s{sW2M}, {3*jj*32*1024}"))
        for b in range(nb):
            L.append(mk(f"s_add_u32 m0, s{sT3}, {slot+b*1024}"))
            if b: L.append(mk(f"s_add_u32 s{sW2M}, s{sW2M}, 8192"))
            else: L.append(mk("s_nop 0"))
            L.append(mk(f"buffer_load_dwordx4 v{vW2}, {srd(SWD)}, s{sW2M} offen lds",tok))
    return L

def w_read(n, slot):
    L=[]
    if n<8:
        L.append(mk(f"v_add_u32 v{vWc0}, {slot}, v{vTa}")); L.append(mk(f"v_add_u32 v{vWc1}, {slot}, v{vTm}"))
        for sp in range(2):
            s=2*n+sp
            for hh in range(2):
                o=sp*6144+hh*768
                L.append(mk(f"ds_read_b64_tr_b16 {W1h(s,0,hh)}, v{vWc0} offset:{o}",f"wr{n}"))
                L.append(mk(f"ds_read_b64_tr_b16 {W1h(s,1,hh)}, v{vWc0} offset:{o+12288}",f"wr{n}"))
                L.append(mk(f"ds_read_b64_tr_b16 {W1h(s,2,hh)}, v{vWc1} offset:{o}",f"wr{n}"))
    else:
        jj=n-8
        L.append(mk(f"v_add_u32 v{vWc0}, {slot}, v{vT2}"))
        for ip in range(3 if jj<7 else 1):
            for t in range(2):
                for hh in range(2):
                    L.append(mk(f"ds_read_b64_tr_b16 {W2h(3*jj+ip,t,hh)}, v{vWc0} offset:{ip*4096+hh*512+t*8}",f"wr{n}"))
        if jj==0:
            for k in range(8): L.append(mk(f"v_and_b32 v{W2V+k}, s{sKMASK}, v{W2V+k}"))
    return L

def w_all_simple(a):
    slot=lambda n: L_WS+(n%4)*WSL
    for n in range(3): a.ext(w_dma(n,slot(n)))
    for n in range(16):
        a.waitvm(f"w{n}"); a("s_waitcnt lgkmcnt(0)\ns_barrier")
        if n+3<16: a.ext(w_dma(n+3,slot(n+3)))
        a.ext(w_read(n,slot(n)))
    a("s_waitcnt lgkmcnt(0)\ns_barrier")

def gather_y(a, lane):
    a(f"v_and_b32 v100, 31, v{lane}\nv_lshlrev_b32 v100, 7, v100\ns_lshl_b32 s{sT0}, s{sCT2}, 12\ns_add_u32 s{sT0}, s{sT0}, {OFF_HELLO2}")
    poll(a,[f"buffer_load_dwordx4 {V(104)}, v100, {srd(WS)}, s{sT0} offen sc1"],
         [f"v_xor_b32 v104, s{sTAG}, v104",f"v_xor_b32 v105, s{sTAG}, v105",f"v_xor_b32 v106, s{sTAG}, v106",f"v_xor_b32 v107, s{sTAG}, v107",
          "v_or3_b32 v104, v104, v105, v106","v_or_b32 v104, v104, v107","v_cmp_ne_u32 vcc, 0, v104"],"h2")
    a(f"""v_lshrrev_b32 v100, 2, v0
        v_lshlrev_b32 v100, 7, v100
        v_and_b32 v101, 3, v0
        v_lshl_add_u32 v100, v101, 4, v100
        s_lshl_b32 s{sT0}, s{sG}, 16
        s_lshl_b32 s{sT1}, s{sCT2}, 13
        s_add_u32 s{sT0}, s{sT0}, s{sT1}
        s_lshl_b32 s{sT1}, s{sRH}, 6
        s_add_u32 s{sT0}, s{sT0}, s{sT1}
        s_add_u32 s{sT0}, s{sT0}, {OFF_YT}
        s_add_u32 s{sT1}, s{sT0}, 0x100000
        v_lshlrev_b32 v101, 4, v0""")
    poll(a,[f"buffer_load_dwordx4 {V(104)}, v100, {srd(WS)}, s{sT0} offen sc1",f"buffer_load_dwordx4 {V(108)}, v100, {srd(WS)}, s{sT1} offen sc1"],
         ["v_max3_u32 v102, v104, v105, v106","v_max3_u32 v102, v102, v107, v108","v_max3_u32 v102, v102, v109, v110","v_max_u32 v102, v102, v111","v_cmp_eq_u32 vcc, -1, v102"],"yt")
    a.stamp("yT gathered")
    a(f"ds_write_b128 v101, {V(104)} offset:{L_YS}\nds_write_b128 v101, {V(108)} offset:{L_YS+4096}")
    a(f"""v_bfe_u32 v100, v{lane}, 2, 2
        v_lshrrev_b32 v101, 4, v{lane}
        v_lshl_add_u32 v100, v101, 3, v100
        v_lshlrev_b32 v100, 6, v100
        v_and_b32 v101, 3, v{lane}
        v_lshl_add_u32 v100, v101, 3, v100
        s_lshl_b32 s{sT0}, s{sCHH}, 11
        s_lshl_b32 s{sT1}, s{sKH}, 5
        s_add_u32 s{sT0}, s{sT0}, s{sT1}
        v_add_u32 v100, s{sT0}, v100""")
    a("s_waitcnt lgkmcnt(0)\ns_barrier")
    for mu in range(2):
        for hh in range(2):
            a(f"ds_read_b64_tr_b16 {V(vYY[mu]+2*hh,2)}, v100 offset:{L_YS+4096*mu+256*hh}")

def unpackY(mu,T):
    L=[]
    for i in range(4):
        L.append(mk(f"v_lshlrev_b32 v{T+2*i}, 16, v{vYY[mu]+i}")); L.append(mk(f"v_and_b32 v{T+2*i+1}, 0xffff0000, v{vYY[mu]+i}"))
    return L
def treduce(s0,s1,s2,s3):
    return [mk(f"v_permlane32_swap_b32 v{s0}, v{s2}"),mk(f"v_permlane32_swap_b32 v{s1}, v{s3}"),mk(f"v_add_f32 v{s0}, v{s0}, v{s2}"),mk(f"v_add_f32 v{s1}, v{s1}, v{s3}"),
            mk(f"v_permlane16_swap_b32 v{s0}, v{s1}"),mk(f"v_add_f32 v{s0}, v{s0}, v{s1}")]

def fin1(a, layer, mu, T):
    X=vXst[mu]; L=unpackY(mu,T); S=T+8
    L+= [mk(f"v_add_f32 v{S}, v{X}, v{X+1}"),mk(f"v_mul_f32 v{S+1}, v{X}, v{X}"),mk(f"v_mul_f32 v{S+2}, v{X}, v{T}"),mk(f"v_add_f32 v{S+3}, v{T}, v{T+1}")]
    for e in range(1,8):
        if e>1: L.append(mk(f"v_add_f32 v{S}, v{S}, v{X+e}"))
        L.append(mk(f"v_fmac_f32 v{S+1}, v{X+e}, v{X+e}")); L.append(mk(f"v_fmac_f32 v{S+2}, v{X+e}, v{T+e}"))
        if e>1: L.append(mk(f"v_add_f32 v{S+3}, v{S+3}, v{T+e}"))
    L+=treduce(S,S+1,S+2,S+3)
    L.append(mk(f"s_add_u32 s{sT0}, s{sGR}, {(layer*2+mu)*262144}"))
    L.append(mk(f"buffer_store_dword v{S}, v{vGs}, {srd(WS)}, s{sT0} offen{a.sc}"))
    return L

def fin2(a, layer, mu, T):
    X=vXst[mu]; Gd=T; Y=T+16; S=T+24
    a(f"s_add_u32 s{sT0}, s{sGRl}, {(layer*2+mu)*262144}")
    poll(a,[f"buffer_load_dwordx4 {V(Gd+4*i)}, v{vGl}, {srd(WS)}, s{sT0} offen offset:{256*i} sc1" for i in range(4)],
         [f"v_max3_u32 v{S}, v{Gd}, v{Gd+1}, v{Gd+2}"]+[f"v_max3_u32 v{S}, v{S}, v{Gd+3+2*i}, v{Gd+4+2*i}" for i in range(6)]+[f"v_max_u32 v{S}, v{S}, v{Gd+15}",f"v_cmp_eq_u32 vcc, -1, v{S}"],"gr")
    for k in range(4):
        a(f"v_add_f32 v{Gd+k}, v{Gd+k}, v{Gd+4+k}\nv_add_f32 v{Gd+8+k}, v{Gd+8+k}, v{Gd+12+k}")
    for k in range(4): a(f"v_add_f32 v{Gd+k}, v{Gd+k}, v{Gd+8+k}")
    a.ext(treduce(Gd,Gd+1,Gd+2,Gd+3))
    a.ext(unpackY(mu,Y))
    A,B,C,D=Gd,Gd+1,Gd+2,Gd+3
    a(f"v_mov_b32 v{B}, v{A}\nv_permlane16_swap_b32 v{A}, v{B}\nv_mov_b32 v{C}, v{A}\nv_mov_b32 v{D}, v{B}\nv_permlane32_swap_b32 v{A}, v{C}\nv_permlane32_swap_b32 v{B}, v{D}")
    inv=f"0x3b000000"
    a(f"""v_mul_f32 v{A}, {inv}, v{A}
        v_mul_f32 v{B}, {inv}, v{B}
        v_fma_f32 v{B}, -v{A}, v{A}, v{B}
        v_max_f32 v{B}, 0, v{B}
        v_add_f32 v{B}, 0x3727c5ac, v{B}
        v_rsq_f32 v{B}, v{B}
        v_fma_f32 v{C}, -v{A}, v{D}, v{C}
        v_mul_f32 v{C}, {inv}, v{C}
        v_fma_f32 v{C}, v{B}, v{C}, v{A}
        v_mul_f32 v{A}, v{A}, v{B}""")
    for e in range(8):
        a(f"v_fma_f32 v{Gd+4+e}, v{X+e}, v{B}, -v{A}")
    for e in range(8):
        a(f"v_fmac_f32 v{X+e}, v{Gd+4+e}, v{Y+e}")
    for e in range(8):
        a(f"v_sub_f32 v{Y+e}, v{X+e}, v{C}")
    for i in range(4): a(f"v_cvt_pk_bf16_f32 v{Gd+4+i}, v{Y+2*i}, v{Y+2*i+1}")
    a(f"s_add_u32 s{sT0}, s{sXS}, {mu*65536}")
    a(f"buffer_store_dwordx4 {V(Gd+4)}, v{vL}, {srd(WS)}, s{sT0} offen{a.sc}",f"xs{mu}")
    a(f"v_mul_f32 v{A}, v{Y}, v{Y}")
    for e in range(1,8): a(f"v_fmac_f32 v{A}, v{Y+e}, v{Y+e}")
    a(f"v_mov_b32 v{B}, v{A}\nv_permlane32_swap_b32 v{A}, v{B}\nv_add_f32 v{A}, v{A}, v{B}\nv_mov_b32 v{B}, v{A}\nv_permlane16_swap_b32 v{A}, v{B}\nv_add_f32 v{A}, v{A}, v{B}")
    a.waitvm(f"xs{mu}")
    flag_store(a,[f"s_lshl_b32 s{sT0}, s{sG}, 9",f"s_add_u32 s{sT0}, s{sT0}, s{sFL}",f"s_add_u32 s{sT0}, s{sT0}, {OFF_XFLAG+layer*8192+mu*256}"],sT0,B)
    a(f"s_add_u32 s{sT0}, s{sS5}, {(layer*2+mu)*65536}")
    a(f"buffer_store_dword v{A}, v{vS5s}, {srd(WS)}, s{sT0} offen{a.sc}")

def poll_flags(a, off, vaddr, T, name):
    a(f"s_lshl_b32 s{sT0}, s{sG}, 9\ns_add_u32 s{sT0}, s{sT0}, {off}")
    poll(a,[f"buffer_load_dword v{T}, v{vaddr}, {srd(WS)}, s{sT0} offen sc1"],[f"v_cmp_ne_u32 vcc, s{sTAG}, v{T}"],name)

def x_dma(mu, pair, stage, q):
    L=[mk(f"s_mov_b32 s{sSOFF}, {mu*65536+pair*32768+stage*8192}"), mk(f"s_add_u32 m0, s{sXW}, {q+stage*8192}")]
    for i in range(4): L.append(mk(f"buffer_load_dwordx4 v{vXD}, {srd(WS)}, s{sSOFF} offen offset:{1024*i} sc1 lds",f"x{mu}{pair}{stage}"))
    return L

def h_dma(mu, i0, n, q):
    L=[mk(f"s_mov_b32 s{sSOFF}, {mu*4*HKS*1024+i0*1024}"), mk(f"s_add_u32 m0, s{sHW}, {q+(i0&7)*1024}")]
    for i in range(n): L.append(mk(f"buffer_load_dwordx4 v{vHD}, {srd(WS)}, s{sSOFF} offen offset:{1024*i} sc1 lds",f"h{mu}_{i0}"))
    return L

G1ACC=[40,64]; G1F=88; vXA=112; G1E=114
def g1_backbone(buf, q, bar=None):
    A=G1ACC[buf]; L=[]
    L.append(mk(f"v_add_u32 v{vXA}, {q&~65535}, v{vL}"))
    qo=q&65535
    rd=lambda s: [mk(f"ds_read_b128 {V(G1F+8*(s%3)+4*t)}, v{vXA} offset:{qo+t*16384+s*1024}") for t in range(2)]
    pre=lambda s: (bar or {}).get(s,[])
    L+=pre(0)+rd(0)+pre(1)+rd(1)
    for s in range(16):
        nxt = (pre(s+2)+rd(s+2)) if s+2<16 else []
        k=0
        for t in range(2):
            for w in range(3):
                C="0" if s==0 else V(A+12*t+4*w)
                L.append(mk(f"v_mfma_f32_16x16x32_bf16 {V(A+12*t+4*w)}, {W1(s,w)}, {V(G1F+8*(s%3)+4*t)}, {C}"))
                if t==1 and nxt:
                    take = nxt[:1] if w<2 else nxt[:]
                    if w==0 and len(nxt)>2: take=nxt[:len(nxt)-1]
                    L+=take; nxt=nxt[len(take):]
    return L

def g1_epi(a, buf, mu, pair):
    A=G1ACC[buf]; E=G1E; L=[]
    n=E
    mreg=E+4+2*pair
    t0=E+8
    for t in range(2):
        Gt=A+12*t; Ut=Gt+4
        for r in range(4): L.append(mk(f"v_max_f32 v{Gt+r}, 0, v{Gt+r}"))
        for r in range(4): L.append(mk(f"v_mul_f32 v{Gt+r}, v{Gt+r}, v{Ut+r}"))
        L.append(mk(f"v_cvt_pk_bf16_f32 v{n+2*t}, v{Gt}, v{Gt+1}")); L.append(mk(f"v_cvt_pk_bf16_f32 v{n+2*t+1}, v{Gt+2}, v{Gt+3}"))
    M0=A+8; M1=A+20
    for r in range(4): L.append(mk(f"v_permlane16_swap_b32 v{M0+r}, v{M1+r}"))
    L.append(mk(f"v_permlane16_swap_b32 v{n}, v{n+2}")); L.append(mk(f"v_permlane16_swap_b32 v{n+1}, v{n+3}"))
    L.append(mk(f"s_mov_b32 s{sT1}, {(mu*4+2*pair)*HKS*1024}"))
    for r in range(4): L.append(mk(f"v_max_f32 v{M0+r}, 0, v{M0+r}"))
    L.append(mk(f"buffer_store_dwordx4 {V(n)}, v{vHS1}, {srd(WS)}, s{sT1} offen{a.sc}",f"hs{mu}"))
    for r in range(4): L.append(mk(f"v_mul_f32 v{M0+r}, v{M0+r}, v{M1+r}"))
    L.append(mk(f"v_cvt_pk_bf16_f32 v{mreg}, v{M0}, v{M0+1}")); L.append(mk(f"v_cvt_pk_bf16_f32 v{mreg+1}, v{M0+2}, v{M0+3}"))
    if pair==1:
        L.append(mk(f"s_mov_b32 s{sT1}, {mu*4*HKS*1024}"))
        L.append(mk(f"v_permlane32_swap_b32 v{E+4}, v{E+6}")); L.append(mk(f"v_permlane32_swap_b32 v{E+5}, v{E+7}"))
        L.append(mk(f"buffer_store_dwordx4 {V(E+4)}, v{vHS2}, {srd(WS)}, s{sT1} offen{a.sc}",f"hs{mu}"))
    return L

def h_flag(a, layer, mu, T):
    return [('WVM',f"hs{mu}"), mk(f"s_lshl_b32 s{sT1}, s{sG}, 9"), mk(f"s_add_u32 s{sT1}, s{sT1}, s{sFL}"), mk(f"s_add_u32 s{sT1}, s{sT1}, {OFF_HFLAG+layer*8192+mu*256}"),
            mk(f"v_mov_b32 v{T}, s{sTAG}"), mk(f"buffer_store_dword v{T}, v{vOne}, {srd(WS)}, s{sT1} offen{a.sc}")]

G2ACC=40; G2F=56; vHA0,vHA1=80,81
def g2_backbone(qs, bar=None):
    L=[]
    def setq(q): return [mk(f"s_add_u32 s{sT2}, s{sHK}, {q&~65535}"),mk(f"v_add_u32 v{vHA0}, s{sT2}, v{vL}"),mk(f"s_add_u32 s{sT2}, s{sHS}, {q&~65535}"),mk(f"v_add_u32 v{vHA1}, s{sT2}, v{vL}")]
    def rd(i):
        q=qs[i>>3]; pre=(bar or {}).get(i,[])
        if i%8==0 and (i==0 or (q&~65535)!=(qs[(i>>3)-1]&~65535)): pre=pre+setq(q)
        return pre+[mk(f"ds_read_b128 {V(G2F+8*(i%3)+4*t)}, v{(vHA0,vHA1)[t]} offset:{(q&65535)+(i&7)*1024}") for t in range(2)]
    L+=rd(0)+rd(1)
    for i in range(22):
        nxt=rd(i+2) if i+2<22 else []
        for t in range(2):
            for c in range(2):
                C="0" if i==0 else V(G2ACC+8*t+4*c)
                L.append(mk(f"v_mfma_f32_16x16x32_bf16 {V(G2ACC+8*t+4*c)}, {W2(i,c)}, {V(G2F+8*(i%3)+4*t)}, {C}"))
                if (t,c)==(0,1) and nxt: L+=nxt[:-1]
                if (t,c)==(1,0) and nxt: L+=nxt[-1:]
    return L

def g2_tail(a, layer, mu, qspare, T):
    X=vXst[mu]
    a(f"s_add_u32 s{sT0}, s{sS5l}, {(layer*2+mu)*65536}")
    poll(a,[f"buffer_load_dwordx4 {V(T)}, v{vS5l}, {srd(WS)}, s{sT0} offen sc1"],
         [f"v_max3_u32 v{T+4}, v{T}, v{T+1}, v{T+2}",f"v_max_u32 v{T+4}, v{T+4}, v{T+3}",f"v_cmp_eq_u32 vcc, -1, v{T+4}"],"s5")
    a(f"s_add_u32 s{sT0}, s{sHW}, {qspare+6144}\nv_add_u32 v{T+4}, s{sT0}, v{vL}\ns_xor_b32 s{sT0}, s{sHW}, 16384\ns_add_u32 s{sT0}, s{sT0}, {qspare+6144}\nv_add_u32 v{T+5}, s{sT0}, v{vL}")
    a(f"ds_write_b128 v{T+4}, {V(G2ACC+8)}\nds_write_b128 v{T+4}, {V(G2ACC+12)} offset:1024")
    a(f"v_add_f32 v{T}, v{T}, v{T+1}\nv_add_f32 v{T+2}, v{T+2}, v{T+3}\nv_add_f32 v{T}, v{T}, v{T+2}")
    a(f"v_mov_b32 v{T+1}, v{T}\nv_permlane32_swap_b32 v{T}, v{T+1}\nv_add_f32 v{T}, v{T}, v{T+1}\nv_mov_b32 v{T+1}, v{T}\nv_permlane16_swap_b32 v{T}, v{T+1}\nv_add_f32 v{T}, v{T}, v{T+1}")
    a(f"v_mul_f32 v{T}, 0x3b000000, v{T}\nv_add_f32 v{T}, 0x3727c5ac, v{T}\nv_rcp_f32 v{T}, v{T}")
    a("s_waitcnt lgkmcnt(0)\ns_barrier")
    a(f"ds_read_b128 {V(G2ACC+8)}, v{T+5}\nds_read_b128 {V(G2ACC+12)}, v{T+5} offset:1024")
    for e in range(8): a(f"v_add_f32 v{G2ACC+e}, v{G2ACC+e}, v{G2ACC+8+e}")
    for e in range(8): a(f"v_fmac_f32 v{X+e}, v{T}, v{G2ACC+e}")

def out_store(a, mu, T):
    X=vXst[mu]
    for i in range(4): a(f"v_cvt_pk_bf16_f32 v{T+i}, v{X+2*i}, v{X+2*i+1}")
    a(f"s_mov_b32 s{sT0}, {mu<<20}")
    a(f"buffer_store_dwordx4 {V(T)}, v{vTok}, {srd(SO_)}, s{sT0} offen")

def finish_kernel(a):
    a(f"s_or_b32 s{sT0}, s2, s{sWV}\ns_cmp_eq_u32 s{sT0}, 0\ns_cselect_b32 s{sT0}, {OFF_NONCE}, {OOB}\nv_mov_b32 v40, s{sTAG}")
    a(f"buffer_store_dword v40, v{vOne}, {srd(WS)}, s{sT0} offen")
    if CFG['stamps'] and a.tag!='S':
        a.stamp("end")
        a("s_waitcnt lgkmcnt(0)")
        a(f"s_lshl_b32 s{sT0}, s2, 2\ns_add_u32 s{sT0}, s{sT0}, s{sWV}\ns_lshl_b32 s{sT0}, s{sT0}, 8\ns_add_u32 s{sT0}, s{sT0}, {OFF_STAMP}")
        for i in range(len(stamp_names)):
            a(f"v_mov_b32 v40, s{STAMP0+i}")
            a(f"buffer_store_dword v40, v{vOne}, {srd(WS)}, s{sT0} offen offset:{4*i}")
    a("s_endpgm")

def body(a):
    stop=CFG['stop']
    seam1(a)
    if stop=='kv': a("s_waitcnt vmcnt(0)"); return finish_kernel(a)
    conv(a)
    if stop=='yy': return finish_kernel(a)
    w_setup(a,136,137,138)
    w_all_simple(a)
    a.stamp("W loaded")
    gather_y(a,136)
    for mu in range(2): a.ext(fin1(a,0,mu,VF))
    qs=[Q[0],Q[1],Q[2],Q[3],Q[4]]
    for layer in range(2):
        xa0,xa1,xb0,xb1,e=qs
        for mu in range(2): fin2(a,layer,mu,VF)
        if stop==f'xc{layer}': return finish_kernel(a)
        if layer==0: a.stamp("fin done")
        for mu in range(2):
            xq=(xa0,xa1) if mu==0 else (xb0,xb1)
            poll_flags(a,OFF_XFLAG+layer*8192+mu*256,vFX,VF,"xf")
            for p in range(2):
                for st in range(2): a.ext(x_dma(mu,p,st,xq[p]))
            a("s_waitcnt vmcnt(0)\ns_barrier")
            for p in range(2):
                a.ext(g1_backbone(p,xq[p]))
                a.ext(g1_epi(a,p,mu,p))
            a.ext(h_flag(a,layer,mu,VF))
        if stop==f'hp{layer}': return finish_kernel(a)
        if layer==0: a.stamp("G1 done")
        a("s_waitcnt lgkmcnt(0)\ns_barrier")
        for mu in range(2):
            hq=(xa0,xa1,e) if mu==0 else (xb0,xb1,xa0)
            poll_flags(a,OFF_HFLAG+layer*8192+mu*256,vFH,VF,"hf")
            for i0 in range(0,22,4): a.ext(h_dma(mu,i0,min(4,22-i0),hq[i0>>3]))
            a("s_waitcnt vmcnt(0)\ns_barrier")
            a.ext(g2_backbone(hq))
            g2_tail(a,layer,mu,hq[2],84)
            if layer==0: a.ext(fin1(a,1,mu,84))
            else: out_store(a,mu,84)
            a("s_waitcnt lgkmcnt(0)\ns_barrier")
        if layer==0: a.stamp("G2 done")
        qs=[xa1,e,xb0,xb1,xa0]
    finish_kernel(a)

def main():
    a=G('F','')
    entry(a); toeplitz(a); p0(a)
    body(a)
    a.lab("L_fast_end")
    rep=[]
    items=finish(a.L,rep)
    if CFG['slow']:
        b=G('S',' sc1'); b.lab("L_slow"); b("s_nop 4"); body(b)
        items+=finish(b.L)
    items.append(mk("L_end:")); items.append(mk("s_endpgm"))
    hdr=open(os.path.join(os.path.dirname(os.path.abspath(__file__)),"header.txt")).read()
    src=kernel_file(NAME,text(items),"; @launch grid=(256,1,1) block=(256,1,1) lds=163840",header=hdr)
    open(sys.argv[1],"w").write(src)
    open("stamp_names.txt","w").write("\n".join(stamp_names))
    n=sum(1 for i in items if i.kind!='none')
    print(f"{n} instructions, {len(src)} bytes of text, {sum(x for x,_ in rep)} nop states padded in fast path")
main()
```

```python
import re

REG_RE = re.compile(r'\b([vas])(\d+)\b|\b([vas])\[(\d+):(\d+)\]')

def regs_of(op):
    out=set()
    op=op.strip()
    for m in REG_RE.finditer(op):
        if m.group(1): out.add((m.group(1),int(m.group(2))))
        else:
            for i in range(int(m.group(4)),int(m.group(5))+1): out.add((m.group(3),i))
    if re.search(r'\bvcc(_lo|_hi)?\b',op): out|={('s','vcc')}
    if re.search(r'\bexec\b',op): out|={('s','exec')}
    if re.search(r'\bm0\b',op): out|={('s','m0')}
    return out

TRANS=('v_exp_f32','v_log_f32','v_rcp_f32','v_rsq_f32','v_sqrt_f32','v_sin_f32','v_cos_f32')

class I:
    def __init__(s, text, tok=None):
        s.text=text; s.tok=tok
        t=text.split(';')[0].strip()
        s.label = t.endswith(':')
        s.directive = t.startswith('.')
        s.op = t.split()[0] if t else ''
        rest = t[len(s.op):].strip()
        ops=[]; d=0; cur=''
        for ch in rest:
            if ch in '[(': d+=1
            if ch in '])': d-=1
            if ch==',' and d==0: ops.append(cur.strip()); cur=''
            else: cur+=ch
        if cur.strip(): ops.append(cur.strip())
        s.ops=ops
        op=s.op
        s.kind='other'; s.defs=set(); s.uses=set(); s.dma=False
        if s.label or s.directive or not op: s.kind='none'; return
        allr=[regs_of(o.split(' ')[0] if i==len(ops)-1 else o) for i,o in enumerate(ops)]
        U=lambda idx: set().union(*[allr[i] for i in idx]) if idx else set()
        n=len(ops)
        if op.startswith('v_mfma'):
            s.kind='mfma'; s.defs=allr[0]; s.A=allr[1]; s.B=allr[2]; s.C=allr[3]; s.uses=s.A|s.B|s.C
            s.passes = 4 if '16x16x32' in op else 8
        elif op.startswith('buffer_load') or op.startswith('global_load'):
            s.kind='vmem'; s.load=True
            if re.search(r'\blds\b',t) : s.dma=True; s.uses=U(range(n))|{('s','m0')}
            else: s.defs=allr[0]; s.uses=U(range(1,n))
        elif op.startswith('buffer_store') or op.startswith('global_store'):
            s.kind='vmem'; s.load=False; s.uses=U(range(n))
            di = 0 if op.startswith('buffer') else 1
            s.sdata=allr[di]; s.wide = op.endswith('x4') or op.endswith('x3')
        elif op.startswith('buffer_wbl2') or op.startswith('buffer_inv'):
            s.kind='vmem'; s.load=False; s.sdata=set(); s.wide=False
        elif op.startswith('ds_read'):
            s.kind='ds'; s.defs=allr[0]; s.uses=U(range(1,n))
        elif op.startswith('ds_write'):
            s.kind='ds'; s.uses=U(range(n))
        elif op.startswith('ds_bpermute') or op.startswith('ds_swizzle') or op.startswith('ds_permute'):
            s.kind='ds'; s.defs=allr[0]; s.uses=U(range(1,n))
        elif op.startswith('s_load') or op.startswith('s_memtime') or op.startswith('s_memrealtime'):
            s.kind='smem'; s.defs=allr[0]; s.uses=U(range(1,n))
        elif op in('s_waitcnt','s_nop','s_barrier','s_endpgm','s_branch','s_setprio','s_sleep') or op.startswith('s_cbranch'):
            s.kind='ctl'
            if op=='s_cbranch_vccz' or op=='s_cbranch_vccnz': s.uses={('s','vcc')}
            if op.startswith('s_cbranch_exec'): s.uses={('s','exec')}
        elif op.startswith('s_cmp') or op.startswith('s_bitcmp'):
            s.kind='salu'; s.uses=U(range(n))
        elif op.startswith('s_'):
            s.kind='salu'; s.defs=allr[0]; s.uses=U(range(1,n))
            if 'saveexec' in op: s.defs|={('s','exec')}; s.uses|={('s','exec')}
            if op in('s_addk_i32','s_mulk_i32'): s.uses|=allr[0]
        elif op.startswith('v_'):
            s.kind='valu'
            if op.startswith('v_cmp'):
                s.defs=allr[0]; s.uses=U(range(1,n))
            elif op.startswith('v_permlane') and 'swap' in op:
                s.defs=allr[0]|allr[1]; s.uses=allr[0]|allr[1]
            elif op.startswith('v_add_co') or op.startswith('v_sub_co') or op.startswith('v_addc_co'):
                s.defs=allr[0]|allr[1]; s.uses=U(range(2,n))
            else:
                s.defs=allr[0]; s.uses=U(range(1,n))
                if op.startswith('v_fmac') or op.startswith('v_dot2c') or op.startswith('v_writelane'): s.uses|=allr[0]
                if 'dpp' in op or 'row_' in t or 'quad_perm' in t: s.uses|=allr[0]; s.dpp=True
                if op.startswith('v_cndmask') and n==3: s.uses|={('s','vcc')}
        else:
            raise ValueError('unknown op '+text)
    def states(s):
        if s.kind=='none': return 0
        if s.op=='s_nop': return int(s.ops[0],0)+1
        return 1

class Asm:
    def __init__(s): s.L=[]; s.nlab=0
    def __call__(s, text, tok=None):
        for line in text.split('\n'):
            line=line.strip()
            if line: s.L.append(I(line,tok))
        return s
    def lab(s,name): s.L.append(I(name+':'))
    def newlab(s,p='L'): s.nlab+=1; return f'{p}_{s.nlab}'
    def waitvm(s,tok): s.L.append(('WVM',tok))
    def waitlg(s,tok): s.L.append(('WLG',tok))
    def ext(s, items): s.L.extend(items)

def mk(text,tok=None): return I(text,tok)

def interleave(backbone, fillers, slots=2, start=0, per=None):
    out=[]; fi=0; nm=0; i=0
    fillers=list(fillers)
    while i<len(backbone):
        it=backbone[i]; out.append(it); i+=1
        if isinstance(it,I) and it.kind=='mfma':
            nm+=1
            used=0; j=i
            while j<len(backbone) and not(isinstance(backbone[j],I) and backbone[j].kind=='mfma'):
                used+=1; j+=1
            free=slots-used
            while fi<len(fillers) and nm>start:
                f=fillers[fi]
                if isinstance(f,tuple) and f[0]=='AT':
                    if nm>=f[1]: fi+=1; continue
                    break
                g=f if isinstance(f,list) else [f]
                if len(g)>free and not(free>=slots and len(g)>slots) : break
                out.extend(g); free-=len(g); fi+=1
                if free<=0: break
    rest=[]
    for f in fillers[fi:]:
        if isinstance(f,tuple) and f[0]=='AT': continue
        rest.extend(f if isinstance(f,list) else [f])
    return out, rest

def resolve(items, verbose=False):
    out=[]; vm=[]; lg=[]
    def emit_wait(nv,nl):
        parts=[]
        if nv is not None: parts.append(f'vmcnt({nv})')
        if nl is not None: parts.append(f'lgkmcnt({nl})')
        out.append(I('s_waitcnt '+' '.join(parts)))
    for it in items:
        if isinstance(it,tuple):
            q = vm if it[0]=='WVM' else lg
            idx=[k for k,e in enumerate(q) if e[1]==it[1]]
            if idx:
                n=len(q)-1-idx[-1]
                if it[0]=='WVM':
                    assert n<=63,('vmcnt overflow',n); emit_wait(n,None); del vm[:idx[-1]+1]
                else:
                    if any(e[2] for e in lg): n=0
                    if n>15: n=15
                    emit_wait(None,n); del lg[:len(lg)-n]
            continue
        if it.kind=='none': out.append(it); continue
        if it.op=='s_waitcnt':
            m=re.search(r'vmcnt\((\d+)\)',it.text)
            if m: n=int(m.group(1)); del vm[:max(0,len(vm)-n)]
            m=re.search(r'lgkmcnt\((\d+)\)',it.text)
            if m:
                n=int(m.group(1))
                if n==0 or not any(e[2] for e in lg): del lg[:max(0,len(lg)-n)]
            out.append(it); continue
        touch=it.defs|it.uses
        nv=nl=None
        idx=[k for k,e in enumerate(vm) if e[0]&touch]
        if idx:
            nv=len(vm)-1-idx[-1]; assert nv<=63; del vm[:idx[-1]+1]
        idx=[k for k,e in enumerate(lg) if e[0]&touch]
        if idx:
            nl=len(lg)-1-idx[-1]
            if any(e[2] for e in lg): nl=0
            if nl>15: nl=15
            del lg[:len(lg)-nl]
        if nv is not None or nl is not None: emit_wait(nv,nl)
        out.append(it)
        if it.kind=='vmem':
            vm.append((set(it.defs),it.tok,False))
            if len(vm)>63 and verbose: print('note: >63 vmem outstanding at',it.text)
        elif it.kind=='ds': lg.append((set(it.defs),it.tok,False))
        elif it.kind=='smem': lg.append((set(it.defs),it.tok,True))
    return out

def need(p,c):
    n=0
    isv=lambda S:{r for r in S if r[0] in 'va'}
    iss=lambda S:{r for r in S if r[0]=='s'}
    if p.kind=='valu':
        pv=isv(p.defs); ps=iss(p.defs)
        if c.kind=='mfma' and pv&c.uses: n=max(n,2)
        if c.kind=='valu':
            if c.op.startswith('v_permlane') and pv&c.uses: n=max(n,2)
            if getattr(c,'dpp',False) and pv&c.uses: n=max(n,2)
            if (c.op.startswith('v_readfirstlane') or c.op.startswith('v_readlane')) and pv&c.uses: n=max(n,1)
            if p.op.replace('_e32','').replace('_e64','') in TRANS and pv&c.uses: n=max(n,1)
            if 'sdwa' in p.text and pv&(c.uses|c.defs): n=max(n,1)
            if ps&c.uses: n=max(n,4 if c.op.startswith(('v_readlane','v_writelane')) else 2)
        if c.kind=='vmem' and ps&c.uses: n=max(n,5)
        if c.kind in('salu','smem') and ps&c.uses: n=max(n,1)
    if p.kind=='mfma':
        big={4:8,8:12}[p.passes]
        if c.kind=='mfma':
            if p.defs&(c.A|c.B): n=max(n,big)
            if p.defs&c.C and not(p.defs==c.C and p.passes==c.passes): n=max(n,{4:6,8:10}[p.passes])
            if p.defs&c.defs and not p.defs&c.C: n=max(n,{4:6,8:10}[p.passes])
        elif c.kind in('valu','vmem','ds'):
            if p.defs&(c.uses|c.defs): n=max(n,big)
            if c.kind=='valu' and p.C&c.defs: n=max(n,{4:3,8:7}[p.passes])
    if p.kind=='vmem' and not p.load and p.wide:
        if p.sdata&c.defs: n=max(n,2)
    if p.kind=='ds' and p.op.startswith('ds_write') and (p.op.endswith('b128') or p.op.endswith('b96')):
        pass
    if p.kind=='salu' and ('s','m0') in p.defs and c.kind=='vmem' and c.dma: n=max(n,1)
    if p.kind=='salu' and ('s','exec') in p.defs and c.kind=='valu' and getattr(c,'dpp',False): n=max(n,0)
    return n

def pad_hazards(items, report=None):
    out=[]
    for it in items:
        if it.kind!='none':
            dist=0; add=0
            for p in reversed(out):
                if dist>=20: break
                if p.kind=='none': continue
                k=need(p,it)
                if k>dist: add=max(add,k-dist)
                dist+=p.states()
            if add:
                if report is not None: report.append((add,it.text))
                out.append(I(f's_nop {add-1}'))
        out.append(it)
    return out

def finish(items, report=None):
    return pad_hazards(resolve(items), report)

def text(items): return '\n'.join(('' if (i.label or i.directive) else '  ')+i.text for i in items)+'\n'

def kernel_file(name, body_text, launch, nvgpr=512, accum=256, nsgpr=102, header=''):
    return (header + launch + '\n.amdgcn_target "amdgcn-amd-amdhsa--gfx950"\n.text\n'
      f'.globl {name}\n.p2align 8\n.type {name},@function\n{name}:\n' + body_text +
      '.section .rodata,"a"\n.p2align 6\n'
      f'.amdhsa_kernel {name}\n  .amdhsa_next_free_vgpr {nvgpr}\n  .amdhsa_next_free_sgpr {nsgpr}\n  .amdhsa_accum_offset {accum}\n'
      '  .amdhsa_group_segment_fixed_size 0\n  .amdhsa_kernarg_size 104\n  .amdhsa_user_sgpr_count 2\n'
      '  .amdhsa_user_sgpr_kernarg_segment_ptr 1\n  .amdhsa_system_sgpr_workgroup_id_x 1\n.end_amdhsa_kernel\n')

def lds_check(items, verbose=True):
    vm=[]; lg=[]; nbar=0; hist=[]; errs=0
    def ov(A,B): return any(a<d and c<b for a,b in A for c,d in B)
    for it in items:
        if it.kind=='none': continue
        if it.op=='s_waitcnt':
            m=re.search(r'vmcnt\((\d+)\)',it.text)
            if m:
                n=int(m.group(1))
                while len(vm)>n: vm.pop(0)['done']=nbar
            m=re.search(r'lgkmcnt\((\d+)\)',it.text)
            if m:
                n=int(m.group(1))
                if n==0 or not any(e['smem'] for e in lg):
                    while len(lg)>n: lg.pop(0)['done']=nbar
            continue
        if it.op=='s_barrier': nbar+=1; continue
        if it.kind in('vmem','ds','smem'):
            rec=dict(done=None,smem=it.kind=='smem',it=it,lr=getattr(it,'lr',None),lw=getattr(it,'lw',None))
            if (it.kind=='ds' or it.dma) and rec['lr'] is None and rec['lw'] is None:
                print("unannotated LDS op:",it.text); errs+=1
            for h in hist:
                safe = h['done'] is not None and h['done']<nbar
                if safe: continue
                if rec['lr'] and h['lw'] and ov(rec['lr'],h['lw']): errs+=1; errs<6 and print("RAW",h['it'].text,h['lw'][:2],"->",it.text,rec['lr'][:2])
                if rec['lw'] and h['lr'] and ov(rec['lw'],h['lr']): errs+=1; errs<6 and print("WAR",h['it'].text,h['lr'][:2],"->",it.text,rec['lw'][:2])
                if rec['lw'] and h['lw'] and ov(rec['lw'],h['lw']) and h['it'].tok!=it.tok: errs+=1; errs<6 and print("WAW",h['it'].text,"->",it.text)
            hist=[h for h in hist if not(h['done'] is not None and h['done']<nbar)]
            if rec['lr'] or rec['lw']: hist.append(rec)
            (vm if it.kind=='vmem' else lg).append(rec)
    return errs
def LR(items,*r):
    for i in (items if isinstance(items,list) else [items]):
        if i.kind=='ds' or i.kind=='vmem': i.lr=list(r)
    return items
def LW(items,*r):
    for i in (items if isinstance(items,list) else [items]):
        if i.kind=='ds' or (i.kind=='vmem' and i.dma): i.lw=list(r)
    return items

def weave(backbone, streams, slots=2):
    S=[list(s) for s in streams]; pos=[0]*len(S); last=[-99]*len(S); lastv=[-99]*len(S); done=set()
    out=[]; nm=0; i=0
    def cost(g): return sum(1 for x in g if not(isinstance(x,I) and x.kind=='none'))
    forced=[0]
    def flush(k,upto):
        while pos[k]<upto:
            f=S[k][pos[k]]; pos[k]+=1
            if isinstance(f,tuple) and f[0]=='SYNC': done.add(f[1]); continue
            if isinstance(f,tuple) and f[0]=='AFTER':
                if f[1] not in done:
                    for k2,s2 in enumerate(S):
                        for p2 in range(pos[k2],len(s2)):
                            if s2[p2]==('SYNC',f[1]): flush(k2,p2+1)
                continue
            if isinstance(f,tuple) and f[0] in('AT','GAP','GAPV','BY'): continue
            g=f if isinstance(f,list) else [f]
            out.extend(g); forced[0]+=len(g)
    while i<len(backbone):
        it=backbone[i]
        if isinstance(it,I) and it.kind=='mfma':
            for k,s in enumerate(S):
                idx=[p for p in range(pos[k],len(s)) if isinstance(s[p],tuple) and s[p][0]=='BY' and s[p][1]<=nm]
                if idx: flush(k,idx[-1]+1)
        out.append(it); i+=1
        if isinstance(it,I) and it.kind=='mfma':
            nm+=1; used=0; j=i
            while j<len(backbone) and not(isinstance(backbone[j],I) and backbone[j].kind=='mfma'): used+=1; j+=1
            free=slots-used
            for k,s in enumerate(S):
                while pos[k]<len(s) and free>0:
                    f=s[pos[k]]
                    if isinstance(f,tuple) and f[0]=='AT':
                        if nm>=f[1]: pos[k]+=1; continue
                        break
                    if isinstance(f,tuple) and f[0]=='GAP':
                        if nm-last[k]>=f[1]: pos[k]+=1; continue
                        break
                    if isinstance(f,tuple) and f[0]=='BY': pos[k]+=1; continue
                    if isinstance(f,tuple) and f[0]=='GAPV':
                        if nm-lastv[k]>=f[1]: pos[k]+=1; continue
                        break
                    if isinstance(f,tuple) and f[0]=='SYNC': done.add(f[1]); pos[k]+=1; continue
                    if isinstance(f,tuple) and f[0]=='AFTER':
                        if f[1] in done: pos[k]+=1; continue
                        break
                    g=f if isinstance(f,list) else [f]
                    c=cost(g)
                    if c>free and not(free>=slots): break
                    out.extend(g); free-=c; pos[k]+=1; last[k]=nm
                    if any(isinstance(x,I) and x.kind=='vmem' for x in g): lastv[k]=nm
    rest=[]
    progress=True
    while progress:
        progress=False
        for k,s in enumerate(S):
            while pos[k]<len(s):
                f=s[pos[k]]
                if isinstance(f,tuple) and f[0]=='AFTER' and f[1] not in done: break
                pos[k]+=1; progress=True
                if isinstance(f,tuple) and f[0]=='SYNC': done.add(f[1]); continue
                if isinstance(f,tuple) and f[0] in('AT','GAP','GAPV','AFTER','BY'): continue
                rest.extend(f if isinstance(f,list) else [f])
    assert all(pos[k]==len(S[k]) for k in range(len(S)))
    if forced[0]: print("  weave: forced by deadline:",forced[0])
    return out,rest
def paced(items,gap):
    out=[]
    for it in items:
        if isinstance(it,I) and it.kind=='vmem': out.append(('GAPV',gap))
        out.append(it)
    return out
```

```python
OFF_NONCE=0
OFF_XFLAG=0x2000
OFF_HFLAG=0x6000
OFF_HELLO=0x10000
OFF_F1=0x20000
OFF_S5=0x40000
OFF_GRAN=0x100000
OFF_KVT=0x200000
OFF_XF=0x200000
OFF_YT=0x400000
HKS=48
OFF_H=0x600000
OFF_STAMP=0x1000000
```

```python
import sys, os
from asmlib import *
from layout import *

NAME="interleave_layers__ssm_conv_h3__glu_gated_reglu__prompt_kernel"
CFG=dict(cm2=78, cm3=114, a0fin=24, a1xl=10, gaflag=50, gahl=76, gbfin=24, cgap=6, warm=1, stamps=0, stop=None, slow=1, prefetch=1, touch=1, dgather=1, dstage=1, wbl2=0, outsc=0)
for a_ in sys.argv[2:]:
    k,v=a_.split('='); CFG[k]=int(v) if v.lstrip('-').isdigit() else v

sX,sR,sWV,sG,sM,sRH,sCT2,sKH,sCHH,sTAG,sHELLO=4,5,6,7,8,9,10,11,12,13,14
sT0,sT1,sT2,sT3=3,15,60,61
sCNT=62; sSOFF=63
WS,SK_,SV_,SQ_,SH_,SWG,SWU,SWD,SO_,SSK,SD_=16,20,24,28,32,36,40,44,48,52,56
srd=lambda b:f"s[{b}:{b+3}]"
sXW,sHW,sHK,sHS,sXS,sFL,sGR,sS5,sGRl,sS5l=64,65,66,67,68,69,70,71,72,73
sW1W,sWo,sHF,sKMASK=74,75,76,77
sCK1,sCK2,sCK3,sQ=20,21,24,25
sCH,sUO,sMB=26,27,0
sFLG=1
STAMP0=78
Q=[0,32768,65536,98304,131072]
TCP=4160; TCH=4*TCP; L_TOEP=0
L_U=2*TCH; UCH=4608
L_K=L_U+2*UCH; CHP=1056; L_V=L_K+9*CHP
L_CX=L_K
L_YS=0
L_WS=65536; WSL=24576
SLOT=[L_WS+k*WSL for k in range(4)]
ESLOT=[Q[4],Q[4]+16384]
vL=1; vOne=2; vTok=3; vGs=4; vGl=5; vS5s=6; vS5l=7; vXD=8; vHD=9; vHS1=10; vHS2=11; vFX=12; vFH=13
vTAG=14; vR2=15
vXst=[16,24]; vYY=[32,36]
ACC0,ACC1,FR,vA0,vA1,EP,PT=40,64,88,112,113,114,122
vW2,vT2,vWc0=126,127,128
vW1=[129,130,131]; vTa,vTm,vWc1=132,133,134
vLane,vJ,vQ,vYo,vD=135,136,137,138,139
W2V=144; W2A=192
def W1(s,t): b=(s*3+t)*4; return f"a[{b}:{b+3}]"
def W1h(s,t,hh): b=(s*3+t)*4+2*hh; return f"a[{b}:{b+1}]"
def W2(i,t):
    k=(i*2+t)*4
    return f"v[{W2V+k}:{W2V+k+3}]" if k<112 else f"a[{W2A+k-112}:{W2A+k-112+3}]"
def W2h(i,t,hh):
    k=(i*2+t)*4+2*hh
    return f"v[{W2V+k}:{W2V+k+1}]" if k<112 else f"a[{W2A+k-112}:{W2A+k-112+1}]"
V=lambda b,n=4: f"v[{b}:{b+n-1}]"
OOB=0x7FFFFF00
POLLMAX=1<<16
def M(text,tok=None): return [mk(l.strip(),tok) for l in text.split('\n') if l.strip()]
BAR=lambda *pre: list(pre)+[mk("s_barrier")]

stamp_names=[]
class G(Asm):
    def __init__(s,tag='',sc=''):
        super().__init__(); s.tag=tag; s.sc=sc; s.ool=[]
    def st(s,name,grp='m'):
        if not CFG['stamps'] or s.tag=='S': return []
        if grp not in str(CFG['stamps']) and grp!='*': return []
        stamp_names.append(name); i=len(stamp_names)-1
        assert i<21, "too many stamps"
        return M(f"{'s_memtime' if CFG.get('clk') else 's_memrealtime'} s[100:101]\ns_waitcnt lgkmcnt(0)\ns_mov_b32 s{STAMP0+i}, s100")
    def stamp(s,name,grp='m'): s.ext(s.st(name,grp))
    def lr(s,n,*r): LR([i for i in s.L[-n:] if isinstance(i,I)],*r)
    def lw(s,n,*r): LW([i for i in s.L[-n:] if isinstance(i,I)],*r)
    def label(s,p): s.nlab+=1; return f"L{s.tag}_{p}_{s.nlab}"
    def check(s, loads, checks, name):
        R=s.label(name+'r'); L=s.label(name+'l'); B=s.label(name+'b')
        o=Asm(); o.lab(R); o(f"s_mov_b32 s{sCNT}, 0"); o.lab(L)
        for l in loads: o(l)
        o("s_waitcnt vmcnt(0)")
        for c in checks: o(c)
        o(f"s_cbranch_vccz {B}\ns_add_u32 s{sCNT}, s{sCNT}, 1\ns_cmp_lt_u32 s{sCNT}, {POLLMAX}\ns_cbranch_scc1 {L}\ns_branch {B}")
        s.ool.append(o.L)
        ck=[mk(c) for c in checks]
        return [mk(l) for l in loads], ck[:-1]+[[ck[-1],mk(f"s_cbranch_vccnz {R}"),mk(B+":")]]
    def flat(s, items):
        for it in items:
            if isinstance(it,list): s.ext(it)
            elif isinstance(it,tuple) and it[0] in('AT','GAP','GAPV','SYNC','AFTER'): pass
            else: s.L.append(it)
    def weave(s, bb, *streams, slots=2):
        out,rest=weave(bb,streams,slots)
        s.ext(out); s.ext(rest)
        if rest and CFG.get('v'): print("  leftover fillers:",len(rest),[getattr(r,'text',r) for r in rest[:2]])

def entry(a):
    a.stamp("entry","*")
    if CFG["stamps"]: a("s_memtime s[100:101]\ns_waitcnt lgkmcnt(0)\ns_mov_b32 s99, s100")
    a("s_cmp_ge_u32 s2, 256\ns_cbranch_scc1 L_end")
    for b,off in ((SK_,8),(SV_,16),(WS,96),(SSK,24),(SH_,32),(SD_,40),(SQ_,0),(SWG,56),(SWU,64),(SWD,72),(SO_,80)):
        a(f"s_load_dwordx2 s[{b}:{b+1}], s[0:1], {off}")
    a(f"v_lshrrev_b32 v40, 6, v0\nv_and_b32 v{vLane}, 63, v0")
    a(f"s_and_b32 s{sX}, s2, 7\ns_lshr_b32 s{sR}, s2, 3")
    a(f"v_readfirstlane_b32 s{sWV}, v40")
    a(f"v_lshlrev_b32 v{vL}, 4, v{vLane}")
    if CFG['prefetch']:
        a(f"s_getpc_b64 s[{sT2}:{sT2+1}]")
        a("L_pc:")
        a(f"s_lshl_b32 s{sT0}, s{sWV}, 5\ns_add_u32 s{sT0}, s{sT0}, s{sR}\ns_lshl_b32 s{sT0}, s{sT0}, 10")
        a(f"v_add_u32 v42, s{sT0}, v{vL}\nv_min_u32 v42, L_fast_end-L_pc-16, v42")
        a(f"v_mov_b32 v43, s{sT2+1}\nv_add_co_u32 v42, vcc, s{sT2}, v42")
        a(f"v_lshrrev_b32 v48, 3, v{vLane}\nv_and_b32 v49, 7, v{vLane}")
        a("v_addc_co_u32 v43, vcc, 0, v43, vcc")
        a("global_load_dwordx4 v[44:47], v[42:43], off")
    else:
        a(f"v_lshrrev_b32 v48, 3, v{vLane}\nv_and_b32 v49, 7, v{vLane}")
    a(f"v_lshlrev_b32 v49, 4, v49\nv_lshl_add_u32 v{vW2}, v48, 10, v49")
    a(f"s_lshl_b32 s{sT0}, s{sR}, 16\ns_lshl_b32 s{sT1}, s{sX}, 7\ns_add_u32 s{sT0}, s{sT0}, s{sT1}")
    a(f"s_sub_u32 s{sT1}, s{sT0}, 8192\nv_add_u32 v49, s{sT1}, v{vW2}")
    a(f"s_lshl_b32 s{sT1}, s{sWV}, 13\ns_add_u32 s{sT0}, s{sT0}, s{sT1}\nv_add_u32 v48, s{sT0}, v{vW2}")
    a(f"s_mul_i32 s{sT1}, s{sWV}, {CHP}\ns_mov_b32 s{sSOFF}, 32768")
    for b,n in ((SK_,2<<20),(SV_,2<<20),(WS,256<<20),(SSK,4096)):
        a(f"s_mov_b32 s{b+2}, {n}\ns_mov_b32 s{b+3}, 0x20000")
    a(f"v_and_b32 v{vJ}, 15, v{vLane}\nv_lshrrev_b32 v{vQ}, 4, v{vLane}")
    a(f"s_lshl_b32 s{sT0}, s{sX}, 6\ns_lshl_b32 s{sT2}, s{sWV}, 4\ns_add_u32 s{sT0}, s{sT0}, s{sT2}\nv_add_u32 v55, s{sT0}, v{vJ}")
    a(f"v_lshlrev_b32 v78, 3, v55\nv_mov_b32 v50, 0")
    a(f"s_add_u32 m0, s{sT1}, {L_K+CHP}")
    a("s_waitcnt lgkmcnt(0)"); a.stamp("kernarg","f")
    if CFG.get('probe'):
        if CFG['probe']==1: a("s_load_dwordx2 s[96:97], s[0:1], 48\ns_waitcnt lgkmcnt(0)\ns_mov_b32 s98, 0x200000\ns_mov_b32 s99, 0x20000"); S="s[96:99]"; base=0
        else: S=srd(WS); base=CFG['probe']<<24
        a(f"s_lshl_b32 s95, s2, 2\ns_add_u32 s95, s95, s{sWV}\ns_lshl_b32 s95, s95, 11\ns_add_u32 s95, s95, {base}\nv_mov_b32 v60, s95")
        for i in range(16):
            a(f"buffer_load_dword v61, v60, {S}, 0 offen offset:{128*i}\nv_and_b32 v61, 0, v61\nv_add_u32 v60, v60, v61")
    a(f"buffer_load_dwordx4 v48, {srd(SK_)}, 0 offen lds","kv")
    a(f"s_add_u32 m0, s{sT1}, {L_V}");       a(f"buffer_load_dwordx4 v48, {srd(SV_)}, 0 offen lds","kv")
    a(f"s_add_u32 m0, s{sT1}, {L_K+5*CHP}"); a(f"buffer_load_dwordx4 v48, {srd(SK_)}, s{sSOFF} offen lds","kv")
    a(f"s_add_u32 m0, s{sT1}, {L_V+4*CHP}"); a(f"buffer_load_dwordx4 v48, {srd(SV_)}, s{sSOFF} offen lds","kv")
    a(f"s_mov_b32 m0, {L_K}");               a(f"buffer_load_dwordx4 v49, {srd(SK_)}, 0 offen lds","kv")
    a.lw(10,(L_K,L_V+8*CHP))
    a(f"buffer_load_dwordx2 {V(80,2)}, v78, {srd(SSK)}, 0 offen")
    a(f"buffer_load_dword v51, v50, {srd(WS)}, 0 offen sc1")
    a.stamp("kv issued","f")
    for b,n in ((SH_,4096),(SD_,1024),(SQ_,2<<20),(SWG,512*1376*2),(SWU,512*1376*2),(SWD,512*1376*2),(SO_,2<<20)):
        a(f"s_mov_b32 s{b+2}, {n}\ns_mov_b32 s{b+3}, 0x20000")
    if CFG['warm']:
        a(f"s_mul_i32 s{sT0}, s2, 5504\ns_mul_i32 s{sT1}, s{sWV}, 1376\ns_add_u32 s{sT0}, s{sT0}, s{sT1}\nv_min_u32 v140, 21, v{vLane}\nv_lshlrev_b32 v140, 6, v140\nv_add_u32 v140, s{sT0}, v140")
        a(f"buffer_load_dword v141, v140, {srd(SWG)}, 0 offen\nbuffer_load_dword v142, v140, {srd(SWU)}, 0 offen")
    a(f"""s_lshr_b32 s{sT0}, s{sR}, 4
        s_lshl_b32 s{sG}, s{sX}, 1
        s_add_u32 s{sG}, s{sG}, s{sT0}
        s_and_b32 s{sM}, s{sR}, 15
        s_lshr_b32 s{sRH}, s{sM}, 3
        s_and_b32 s{sCT2}, s{sM}, 7
        s_lshr_b32 s{sKH}, s{sWV}, 1
        s_and_b32 s{sCHH}, s{sWV}, 1
        s_mov_b32 s{sMB}, 0x100000""")
    a(f"s_cmp_eq_u32 s{sM}, 15\ns_cselect_b32 s{SWG+2}, 0, s{SWG+2}\ns_cselect_b32 s{SWU+2}, 0, s{SWU+2}")
    a(f"s_lshl_b32 s{sT0}, s{sX}, 6\ns_lshl_b32 s{sT1}, s{sR}, 1\ns_add_u32 s{sT0}, s{sT0}, s{sT1}\ns_add_u32 s{sT2}, s{sT0}, s{sKH}")
    a(f"s_lshl_b32 s{sT0}, s{sT2}, 12\ns_add_u32 s{SH_}, s{SH_}, s{sT0}\ns_addc_u32 s{SH_+1}, s{SH_+1}, 0")
    a(f"s_lshl_b32 s{sT0}, s{sCHH}, 11\nv_add_u32 v52, s{sT0}, v{vL}")
    a(f"v_min_u32 v53, 1, v{vLane}\nv_lshlrev_b32 v53, 4, v53\nv_subrev_u32 v53, 32, v53\nv_add_u32 v54, 16, v53")
    a(f"s_lshl_b32 s{sT0}, s{sT2}, 1\nv_mov_b32 v{vD}, s{sT0}")
    a(f"""v_and_b32 v96, 1, v{vQ}
        v_lshlrev_b32 v96, 2, v96
        v_lshrrev_b32 v97, 2, v{vJ}
        v_add_u32 v96, v96, v97
        v_lshlrev_b32 v96, 16, v96
        v_and_b32 v97, 3, v{vJ}
        v_lshl_add_u32 v96, v97, 5, v96
        v_lshrrev_b32 v97, 1, v{vQ}
        v_lshl_add_u32 v96, v97, 4, v96
        s_lshl_b32 s{sT0}, s{sCHH}, 19
        s_lshl_b32 s{sT1}, s{sT2}, 7
        s_add_u32 s{sT0}, s{sT0}, s{sT1}
        s_add_u32 s{sT0}, s{sT0}, {OFF_YT}
        v_add_u32 v{vYo}, s{sT0}, v96
        s_mov_b32 s{sHELLO}, s{sT2}""")
    a(f"v_mov_b32 v{vOne}, {OOB}\nv_cmp_eq_u32 vcc, 0, v{vLane}\nv_cndmask_b32 v{vOne}, v{vOne}, v50, vcc")
    a(f"""s_lshl_b32 s{sT0}, s{sG}, 2
        s_lshl_b32 s{sT1}, s{sRH}, 1
        s_add_u32 s{sT1}, s{sT1}, s{sKH}
        s_add_u32 s{sT0}, s{sT0}, s{sT1}""")
    a(f"""s_lshl_b32 s{sGRl}, s{sT0}, 12
        s_add_u32 s{sGRl}, s{sGRl}, {OFF_GRAN}
        s_lshl_b32 s{sS5l}, s{sT0}, 10
        s_add_u32 s{sS5l}, s{sS5l}, {OFF_S5}
        s_lshl_b32 s{sT3}, s{sCT2}, 1
        s_add_u32 s{sT3}, s{sT3}, s{sCHH}""")
    a(f"""s_lshl_b32 s{sGR}, s{sT3}, 8
        s_add_u32 s{sGR}, s{sGR}, s{sGRl}
        s_lshl_b32 s{sS5}, s{sT3}, 2
        s_add_u32 s{sS5}, s{sS5}, s{sS5l}
        s_lshl_b32 s{sXS}, s{sG}, 17
        s_lshl_b32 s{sT1}, s{sT1}, 14
        s_add_u32 s{sXS}, s{sXS}, s{sT1}
        s_lshl_b32 s{sT1}, s{sT3}, 10
        s_add_u32 s{sXS}, s{sXS}, s{sT1}
        s_add_u32 s{sXS}, s{sXS}, {OFF_XF}
        s_lshl_b32 s{sT0}, s{sT0}, 14
        s_lshl_b32 s{sT1}, s{sT3}, 6
        s_add_u32 s{sT0}, s{sT0}, s{sT1}""")
    a(f"v_lshlrev_b32 v{vTok}, 10, v{vJ}\nv_lshl_add_u32 v{vTok}, v{vQ}, 4, v{vTok}\nv_add_u32 v{vTok}, s{sT0}, v{vTok}")
    a(f"v_lshlrev_b32 v{vGs}, 4, v{vJ}\nv_lshl_add_u32 v{vGl}, v{vQ}, 10, v{vGs}\nv_lshl_add_u32 v{vGs}, v{vQ}, 2, v{vGs}")
    a(f"v_lshlrev_b32 v{vS5l}, 6, v{vJ}\nv_mov_b32 v{vS5s}, {OOB}\nv_cmp_eq_u32 vcc, 0, v{vQ}\nv_cndmask_b32 v{vS5s}, v{vS5s}, v{vS5l}, vcc")
    a(f"v_lshl_add_u32 v{vS5l}, v{vQ}, 4, v{vS5l}")
    a(f"s_lshl_b32 s{sT0}, s{sX}, 5\ns_add_u32 s{sT0}, s{sT0}, s{sR}\ns_lshl_b32 s{sHF}, s{sT0}, 7\ns_lshl_b32 s{sT0}, s{sWV}, 2\ns_add_u32 s{sHF}, s{sHF}, s{sT0}\ns_add_u32 s{sHF}, s{sHF}, {OFF_HELLO}")
    a(f"""s_lshl_b32 s{sXW}, s{sCHH}, 14
        s_lshl_b32 s{sT0}, s{sKH}, 12
        s_add_u32 s{sXW}, s{sXW}, s{sT0}
        s_lshl_b32 s{sT0}, s{sG}, 17
        s_add_u32 s{sT0}, s{sT0}, s{sXW}
        s_add_u32 s{sT0}, s{sT0}, {OFF_XF}
        v_add_u32 v{vXD}, s{sT0}, v{vL}
        s_lshl_b32 s{sHW}, s{sWV}, 13
        s_mul_i32 s{sHK}, s{sKH}, {3*8192}
        s_lshl_b32 s{sHS}, s{sKH}, 13
        s_add_u32 s{sHS}, s{sHS}, 8192
        s_lshl_b32 s{sT0}, s{sG}, 3
        s_lshl_b32 s{sT1}, s{sRH}, 1
        s_add_u32 s{sT1}, s{sT1}, s{sCHH}
        s_add_u32 s{sT1}, s{sT1}, s{sT0}
        s_mul_i32 s{sT1}, s{sT1}, {HKS}
        s_mul_i32 s{sT3}, s{sKH}, 21
        s_add_u32 s{sT1}, s{sT1}, s{sT3}
        s_lshl_b32 s{sT1}, s{sT1}, 10
        s_add_u32 s{sT1}, s{sT1}, {OFF_H}
        v_add_u32 v{vHD}, s{sT1}, v{vL}""")
    a(f"""s_mul_i32 s{sT0}, s{sT0}, {HKS*1024}
        s_mul_i32 s{sT1}, s{sM}, 12
        s_mul_i32 s{sT3}, s{sWV}, 3
        s_add_u32 s{sT1}, s{sT1}, s{sT3}
        s_lshl_b32 s{sT1}, s{sT1}, 8
        s_add_u32 s{sT0}, s{sT0}, s{sT1}
        s_add_u32 s{sT0}, s{sT0}, {OFF_H}
        s_mov_b32 s{sT1}, {HKS*1024}
        v_lshlrev_b32 v97, 4, v{vJ}
        v_add_u32 v97, s{sT0}, v97
        v_mad_u32_u24 v{vHS2}, v{vQ}, s{sT1}, v97
        v_add_u32 v{vHS2}, 512, v{vHS2}
        v_and_b32 v98, 1, v{vQ}
        v_mad_u32_u24 v{vHS1}, v98, s{sT1}, v97
        v_lshrrev_b32 v98, 1, v{vQ}
        v_lshl_add_u32 v{vHS1}, v98, 8, v{vHS1}
        v_lshlrev_b32 v{vFX}, 2, v{vLane}
        v_min_u32 v{vFH}, 57, v{vLane}
        v_lshlrev_b32 v{vFH}, 2, v{vFH}
        s_lshl_b32 s{sFL}, s{sG}, 9
        s_lshl_b32 s{sFLG}, s{sM}, 2
        s_add_u32 s{sFLG}, s{sFLG}, s{sWV}
        s_lshl_b32 s{sFLG}, s{sFLG}, 2
        s_add_u32 s{sFLG}, s{sFLG}, s{sFL}
        s_sub_u32 s{sKMASK}, s{sKH}, 1""")
    for rho,(va,off) in enumerate(((52,0),(52,1024))):
        d=56+8*rho
        a(f"buffer_load_dwordx4 {V(d)}, v{va}, {srd(SH_)}, 0 offen offset:{off}")
        a(f"buffer_load_dwordx2 {V(d+4,2)}, v{va}, {srd(SH_)}, 0 offen offset:{off+16}")
    a(f"buffer_load_dwordx4 {V(72)}, v53, {srd(SH_)}, 0 offen")
    a(f"buffer_load_dwordx2 {V(76,2)}, v54, {srd(SH_)}, 0 offen")
    a(f"buffer_load_ushort v{vD}, v{vD}, {srd(SD_)}, 0 offen")
    w_setup(a)
    a(f"""v_mul_u32_u24 v83, {2*CHP}, v{vQ}
        v_bfe_u32 v101, v{vLane}, 2, 2
        v_lshl_add_u32 v83, v101, 7, v83
        v_and_b32 v101, 3, v{vLane}
        v_lshl_add_u32 v83, v101, 3, v83
        s_lshl_b32 s{sT0}, s{sWV}, 5
        v_add_u32 v83, s{sT0}, v83""")
    a(f"v_lshlrev_b32 v55, 12, v55\nv_lshl_add_u32 v55, v{vQ}, 5, v55\ns_lshl_b32 s{sT0}, s{sR}, 7\ns_add_u32 s{sT0}, s{sT0}, {OFF_KVT}\nv_add_u32 v55, s{sT0}, v55")
    a(f"v_lshrrev_b32 v100, 5, v{vLane}\nv_mul_u32_u24 v100, {UCH-512}, v100\nv_add_u32 v100, v100, v{vL}")
    a("v_mov_b32 v104, 0\nv_mov_b32 v105, 0\nv_mov_b32 v106, 0\nv_mov_b32 v107, 0")
    a(f"ds_write_b128 v100, {V(104)} offset:{L_U}"); a.lw(1,(L_U,L_U+512),(L_U+UCH,L_U+UCH+512))
    a.stamp("setup done","f")

def w_setup(a):
    lane,j,q=vLane,vJ,vQ
    for b in range(3):
        a(f"v_add_u32 v100, {64*b}, v{lane}\nv_mul_u32_u24 v101, 43691, v100\nv_lshrrev_b32 v101, 19, v101")
        a(f"v_mul_u32_u24 v102, 12, v101\nv_sub_u32 v100, v100, v102\nv_lshlrev_b32 v100, 4, v100")
        a(f"v_mul_u32_u24 v101, 2752, v101\nv_add_u32 v{vW1[b]}, v100, v101")
    a(f"s_mul_i32 s{sT0}, s{sWV}, {16*2752}\ns_mul_i32 s{sT1}, s{sM}, 192\ns_add_u32 s{sT0}, s{sT0}, s{sT1}")
    for b in range(3):
        a(f"v_add_u32 v{vW1[b]}, s{sT0}, v{vW1[b]}")
        if b: a(f"v_subrev_u32 v{vW1[b]}, {1024*b}, v{vW1[b]}")
    a(f"""v_bfe_u32 v100, v{lane}, 2, 2
        v_lshl_add_u32 v100, v{q}, 3, v100
        v_and_b32 v101, 3, v{lane}
        v_mul_u32_u24 v102, 192, v100
        s_mul_i32 s{sT0}, s{sWV}, 48
        v_add_u32 v102, s{sT0}, v102
        v_lshl_add_u32 v{vTa}, v101, 3, v102
        v_and_b32 v103, 1, v101
        v_mul_u32_u24 v103, 12288, v103
        v_add_u32 v102, v102, v103
        v_lshrrev_b32 v103, 1, v101
        v_lshl_add_u32 v102, v103, 3, v102
        v_add_u32 v{vTm}, 32, v102
        v_lshlrev_b32 v102, 7, v100
        v_lshl_add_u32 v102, v101, 4, v102
        s_lshl_b32 s{sT1}, s{sCHH}, 6
        v_add_u32 v{vT2}, s{sT1}, v102
        s_mul_i32 s{sT0}, s{sKH}, {21*32*1024}
        s_lshl_b32 s{sT1}, s{sCT2}, 7
        s_add_u32 s{sT0}, s{sT0}, s{sT1}
        v_add_u32 v{vW2}, s{sT0}, v{vW2}
        s_mul_i32 s{sW1W}, s{sWV}, 3072""")

def c_dma(n, slot):
    if CFG.get('now1'): return []
    L=M(f"s_mov_b32 s{sWo}, {n*64*2752}")
    for mat,S in ((0,SWG),(1,SWU)):
        L+=M(f"s_add_u32 m0, s{sW1W}, {slot+mat*12288}")
        for b in range(3): L+=M(f"buffer_load_dwordx4 v{vW1[b]}, {srd(S)}, s{sWo} offen offset:{1024*b} lds",f"c{n}")
    return LW(L,(slot,slot+WSL))
def c_read(n, slot):
    L=M(f"v_add_u32 v{vWc0}, {slot}, v{vTa}\nv_add_u32 v{vWc1}, {slot}, v{vTm}")
    for sp in range(2):
        s=2*n+sp
        for hh in range(2):
            o=sp*6144+hh*768
            L+=M(f"""ds_read_b64_tr_b16 {W1h(s,0,hh)}, v{vWc0} offset:{o}
                     ds_read_b64_tr_b16 {W1h(s,1,hh)}, v{vWc0} offset:{o+12288}
                     ds_read_b64_tr_b16 {W1h(s,2,hh)}, v{vWc1} offset:{o}""",f"cr{n}")
    return LR(L,(slot,slot+WSL))
def d_dma(i0, ns, slot):
    L=M(f"s_mul_i32 s{sWo}, s{sCHH}, {ns*16*1024}\ns_mul_i32 s{sT3}, s{sWV}, {ns*2048}")
    for b in range(2*ns):
        L+=M(f"s_add_u32 m0, s{sT3}, {slot+b*1024}")
        L+=M(f"s_add_u32 s{sWo}, s{sWo}, {8192 if b else i0*32*1024}")
        L+=M(f"buffer_load_dwordx4 v{vW2}, {srd(SWD)}, s{sWo} offen lds",f"d{i0}")
    return LW(L,(slot,slot+ns*8192))
def d_read(i0, ns, slot):
    L=M(f"s_mul_i32 s{sT2}, s{sKH}, {ns*4096}\ns_add_u32 s{sT2}, s{sT2}, {slot}\nv_add_u32 v{vWc0}, s{sT2}, v{vT2}")
    for ip in range(ns):
        for t in range(2):
            for hh in range(2):
                L+=M(f"ds_read_b64_tr_b16 {W2h(i0+ip,t,hh)}, v{vWc0} offset:{ip*4096+hh*512+t*8}",f"dr{i0}")
    return LR(L,(slot,slot+ns*8192))
def d_mask(): return [mk(f"v_and_b32 v{W2V+k}, s{sKMASK}, v{W2V+k}") for k in range(8)]

def toeplitz(a):
    a(f"s_mul_i32 s{sT0}, s{sKH}, {TCH}\ns_add_u32 s{sT0}, s{sT0}, {L_TOEP+32}")
    a(f"v_add_u32 v52, s{sT0}, v52\nv_add_u32 v53, s{sT0}, v53")
    for rho,(va,off) in enumerate(((52,0),(52,1024),(53,0))):
        d=56+8*rho; t=100+12*(rho%2)
        a(f"ds_write_b128 v{va}, {V(d)} offset:{off}")
        for i in range(4): a(f"v_alignbit_b32 v{t+i}, v{d+i+1}, v{d+i}, 16")
        a(f"ds_write_b128 v{va}, {V(t)} offset:{off+TCP}")
        for i in range(4): a(f"v_mov_b32 v{t+4+i}, v{d+i+1}")
        a(f"ds_write_b128 v{va}, {V(t+4)} offset:{off+2*TCP}")
        for i in range(4): a(f"v_alignbit_b32 v{t+8+i}, v{d+i+2}, v{d+i+1}, 16")
        a(f"ds_write_b128 v{va}, {V(t+8)} offset:{off+3*TCP}"); a.lw(16,(L_TOEP,L_TOEP+2*TCH))

def p0(a):
    a.waitvm("kv"); a("s_barrier")
    a.stamp("kv landed","f")
    KR=84; VR=94
    for i in range(5):
        R=4+4*i; a(f"ds_read_b64_tr_b16 {V(KR+2*i,2)}, v83 offset:{L_K+(R>>3)*CHP+(R&7)*128}")
    for i in range(4):
        R=4*i; a(f"ds_read_b64_tr_b16 {V(VR+2*i,2)}, v83 offset:{L_V+(R>>3)*CHP+(R&7)*128}")
    a.lr(9,(L_K,L_V+8*CHP))
    a("v_lshlrev_b32 v40, 16, v80\nv_and_b32 v41, 0xffff0000, v80\nv_lshlrev_b32 v42, 16, v81\nv_and_b32 v43, 0xffff0000, v81")
    K=lambda t: 108+t-2
    for i in range(10):
        if i>0: a(f"v_lshlrev_b32 v{102+2*i}, 16, v{KR+i}")
        a(f"v_and_b32 v{103+2*i}, 0xffff0000, v{KR+i}")
    O=16
    for t in range(16):
        a(f"v_mul_f32 v{O+t}, v40, v{K(t)}")
        a(f"v_fmac_f32 v{O+t}, v41, v{K(t-1)}")
        a(f"v_fmac_f32 v{O+t}, v42, v{K(t-2)}")
        a(f"v_fmac_f32 v{O+t}, v43, v{K(t-3)}")
    for i in range(8):
        a(f"v_lshlrev_b32 v102, 16, v{VR+i}\nv_and_b32 v103, 0xffff0000, v{VR+i}")
        a(f"v_mul_f32 v{O+2*i}, v{O+2*i}, v102\nv_mul_f32 v{O+1+2*i}, v{O+1+2*i}, v103")
    for o in range(2):
        for d in range(4):
            a(f"v_cvt_pk_bf16_f32 v{KR+4*o+d}, v{O+8*o+7-2*d}, v{O+8*o+6-2*d}")
        a(f"buffer_store_dwordx4 {V(KR+4*o)}, v55, {srd(WS)}, 0 offen offset:{16*o} sc1","kvs")
    a.stamp("p0 computed","f")
    a.ext(c_dma(0,SLOT[0]))
    a(f"s_mov_b32 s{sCH}, s{sHELLO}\ns_getreg_b32 s{sHELLO}, hwreg(HW_REG_XCC_ID, 0, 4)")
    a(f"v_readfirstlane_b32 s{sTAG}, v51")
    a(f"s_add_u32 s{sTAG}, s{sTAG}, 0x9E3779B0\ns_and_b32 s{sTAG}, s{sTAG}, 0xFFFFFFF0\ns_and_b32 s{sHELLO}, s{sHELLO}, 15\ns_or_b32 s{sHELLO}, s{sHELLO}, s{sTAG}")
    a(f"v_mov_b32 v{vTAG}, s{sTAG}")
    a(f"s_lshl_b32 s{sT0}, s{sX}, 2\ns_add_u32 s{sT1}, s{sT0}, s{sWV}\ns_lshl_b32 s{sT1}, s{sT1}, 5\ns_add_u32 s{sT1}, s{sT1}, s{sR}\ns_lshl_b32 s{sT1}, s{sT1}, 7\ns_add_u32 s{sT1}, s{sT1}, {OFF_F1}")
    a(f"s_lshr_b32 s{sCK1}, s{sR}, 3\ns_add_u32 s{sCK1}, s{sCK1}, s{sT0}\ns_lshl_b32 s{sCK1}, s{sCK1}, 12\ns_add_u32 s{sCK1}, s{sCK1}, {OFF_F1}")
    a(f"v_and_b32 v97, 31, v{vLane}\nv_lshlrev_b32 v97, 7, v97")
    a.waitvm("kvs")
    a(f"buffer_store_dword v{vTAG}, v{vOne}, {srd(WS)}, s{sT1} offen sc1")
    a.stamp("kvT published","f")
    a.ext(c_dma(1,SLOT[1]))
    toeplitz(a)
    a(f"""s_lshl_b32 s{sT0}, s{sCH}, 12
        s_lshl_b32 s{sT1}, s{sCHH}, 11
        s_add_u32 s{sT0}, s{sT0}, s{sT1}
        s_add_u32 s{sT0}, s{sT0}, {OFF_KVT}
        s_mul_i32 s{sUO}, s{sKH}, {UCH}
        s_add_u32 s{sT1}, s{sT1}, s{sUO}""")
    a.stamp("toeplitz","f")
    ld,ck=a.check([f"buffer_load_dword v99, v97, {srd(WS)}, s{sCK1} offen sc1"],[f"v_cmp_ne_u32 vcc, s{sTAG}, v99"],"f1")
    a.flat(ld)
    a(f"""s_lshl_b32 s{sT3}, s{sCHH}, 8
        s_sub_u32 s{sT2}, s{sUO}, s{sT3}
        s_add_u32 s{sT2}, s{sT2}, {L_U+480-192}
        v_lshlrev_b32 v141, 5, v{vJ}
        v_lshl_add_u32 v141, v{vQ}, 4, v141
        v_add_u32 v141, s{sT2}, v141
        v_add_u32 v142, 1, v{vJ}
        v_and_b32 v143, 3, v142
        v_mul_u32_u24 v143, {TCP}, v143
        v_lshrrev_b32 v142, 2, v142
        v_lshl_add_u32 v142, v142, 3, v143
        v_lshlrev_b32 v143, 4, v{vQ}
        v_sub_u32 v142, v142, v143
        s_mul_i32 s{sT2}, s{sKH}, {TCH}
        s_add_u32 s{sT2}, s{sT2}, s{sT3}
        s_add_u32 s{sT2}, s{sT2}, {L_TOEP+48}
        v_add_u32 v142, s{sT2}, v142
        v_lshlrev_b32 v{vD}, 16, v{vD}
        s_add_u32 m0, s{sT1}, {L_U+512}""")
    a.flat(ck)
    a.stamp("f1 seen","f")
    a(f"buffer_load_dwordx4 v{vL}, {srd(WS)}, s{sT0} offen sc1 lds","u")
    a(f"buffer_load_dwordx4 v{vL}, {srd(WS)}, s{sT0} offen offset:1024 sc1 lds","u")
    a.lw(2,(L_U+512,L_U+UCH),(L_U+UCH+512,L_U+2*UCH))
    a.ext(c_dma(2,SLOT[2]))
    a.waitvm("u"); a("s_waitcnt lgkmcnt(0)\ns_barrier")
    a.stamp("U landed","f")

def conv(a):
    ACC=40; GR=72; UR=104-16-0
    GR=72; UR=104
    assert UR+32<=136
    Ureg=[16,20,24,28,32,36,104,108]
    rdU=lambda w,it: LR(mk(f"ds_read_b128 {V(Ureg[w])}, v141 offset:{512*w+192-64*it}"),(L_U,L_U+2*UCH))
    rdG=lambda e,it: LR([mk(f"ds_read_b64 {V(GR+4*e,2)}, v142 offset:{512*e+64*it}"), mk(f"ds_read_b64 {V(GR+4*e+2,2)}, v142 offset:{512*e+64*it+8}")],(L_TOEP,L_TOEP+2*TCH))
    bb=rdG(0,0)
    for w in range(7,-1,-1): bb.append(rdU(w,0))
    pend=[]
    for e in range(1,8): pend+=rdG(e,0)
    nm=0
    BP={}
    for it in range(4):
        for e in range(8):
            for w in range(7-e,-1,-1):
                c=w+e; C = "0" if (it==0 and e==0) else V(ACC+4*c)
                bb.append(mk(f"v_mfma_f32_16x16x32_bf16 {V(ACC+4*c)}, {V(GR+4*e)}, {V(Ureg[w])}, {C}")); nm+=1
                if nm in BP: bb+=BP[nm]; continue
                k=0
                while pend and k<(2 if (it==0 and e==0) or len(pend)>3 else 1): bb.append(pend.pop(0)); k+=1
            if it<3: pend += [rdU(7-e,it+1)]+rdG(e,it+1)
        if it<3: bb+=pend; pend=[]
    PZ=112
    clr=M(f"v_mov_b32 v{PZ}, -1\nv_mov_b32 v{PZ+1}, -1\nv_mov_b32 v{PZ+2}, -1\nv_mov_b32 v{PZ+3}, -1")
    clr+=M(f"v_lshlrev_b32 v116, 4, v{vJ}\nv_lshl_add_u32 v116, v{vQ}, 18, v116\nv_lshlrev_b32 v117, 6, v{vJ}\nv_lshl_add_u32 v117, v{vQ}, 16, v117")
    clr+=M(f"""buffer_store_dwordx4 {V(PZ)}, v{vYo}, {srd(WS)}, 0 offen sc1
               buffer_store_dwordx4 {V(PZ)}, v{vYo}, {srd(WS)}, s{sMB} offen sc1
               buffer_store_dwordx4 {V(PZ)}, v116, {srd(WS)}, s{sGR} offen sc1
               buffer_store_dword v{PZ}, v117, {srd(WS)}, s{sS5} offen sc1""","clr")
    if CFG.get('noclr'): clr=[x for k,x in enumerate(clr) if k<8 or (k-8) not in [int(c) for c in str(CFG['noclr']) if c!='9']]
    clr+=M(f"buffer_load_dwordx4 {V(118)}, v{vTok}, {srd(SQ_)}, 0 offen\nbuffer_load_dwordx4 {V(122)}, v{vTok}, {srd(SQ_)}, s{sMB} offen")
    hello=[('WVM','clr')]+M(f"v_mov_b32 v116, s{sHELLO}\nbuffer_store_dword v116, v{vOne}, {srd(WS)}, s{sHF} offen sc1")
    if CFG['warm']: clr+=M(f"buffer_load_dword v117, v140, {srd(SWD)}, 0 offen")
    B=lambda *w:[list(w)+[mk("s_barrier")]]
    dmas = [('AFTER','z')] + paced(clr[8:],2) + paced(c_dma(3,SLOT[3]),3) + [('AFTER','m1')] + paced(c_dma(4,SLOT[0])+c_dma(5,SLOT[1]),CFG['cgap']) + [('AFTER','m3')] + paced(c_dma(6,SLOT[2]),4)
    fill = clr[:8] + [('SYNC','z')] + c_read(0,SLOT[0]) + c_read(1,SLOT[1]) + [('GAP',4)] + B(('WLG','cr1')) + [('SYNC','m1'),('AT',CFG['cm2'])] + hello + B(('WVM','c2')) + c_read(2,SLOT[2]) \
         + [('AT',CFG['cm3'])] + B(('WVM','c3'),('WLG','cr2')) + [('SYNC','m3')] + c_read(3,SLOT[3])
    fill += M(f"""s_lshl_b32 s{sT0}, s{sWV}, 12
        s_add_u32 s{sT1}, s{sT0}, {L_CX}
        v_add_u32 v112, s{sT1}, v{vL}
        s_xor_b32 s{sT0}, s{sT0}, 4096
        s_add_u32 s{sT0}, s{sT0}, {L_CX}
        v_add_u32 v113, s{sT0}, v{vL}
        s_lshl_b32 s{sT0}, s{sCHH}, 10
        s_add_u32 s{sT0}, s{sT0}, s{sUO}
        s_add_u32 s{sT0}, s{sT0}, {L_U+512+8}
        v_lshlrev_b32 v143, 5, v{vJ}
        v_lshrrev_b32 v114, 1, v{vQ}
        v_lshl_add_u32 v143, v114, 4, v143
        v_and_b32 v114, 1, v{vQ}
        v_lshlrev_b32 v114, 3, v114
        v_sub_u32 v143, v143, v114
        v_add_u32 v143, s{sT0}, v143""")
    a.weave(bb,dmas,fill)
    a.stamp("conv mfma done","f")
    keep=[[0,1,4,5],[2,3,6,7]]
    for k,c in enumerate(keep[0]): a(f"ds_read_b64 {V(72+2*k,2)}, v143 offset:{512*c}")
    a.lr(4,(L_U,L_U+2*UCH))
    L1=a.label("cx"); L2=a.label("cx")
    a(f"s_cmp_eq_u32 s{sCHH}, 1\ns_nop 1\ns_cbranch_scc1 {L1}")
    for k,c in enumerate(keep[1]): a(f"ds_write_b128 v112, {V(ACC+4*c)} offset:{1024*k}")
    a.lw(4,(L_CX,L_CX+16384))
    a(f"s_waitcnt lgkmcnt(0)\ns_branch {L2}"); a.lab(L1)
    for k,c in enumerate(keep[0]): a(f"ds_write_b128 v112, {V(ACC+4*c)} offset:{1024*k}")
    a.lw(4,(L_CX,L_CX+16384))
    a("s_waitcnt lgkmcnt(0)")
    for k in range(16): a(f"v_mov_b32 v{ACC+4*keep[0][k//4]+k%4}, v{ACC+4*keep[1][k//4]+k%4}")
    a.lab(L2)
    a("s_barrier")
    for k in range(4): a(f"ds_read_b128 {V(80+4*k)}, v113 offset:{1024*k}")
    a.lr(4,(L_CX,L_CX+16384))
    for k,c in enumerate(keep[0]):
        A=ACC+4*c
        a(f"v_and_b32 v100, 0xffff0000, v{73+2*k}\nv_lshlrev_b32 v101, 16, v{73+2*k}\nv_and_b32 v102, 0xffff0000, v{72+2*k}\nv_lshlrev_b32 v103, 16, v{72+2*k}")
        for r in range(4): a(f"v_fmac_f32 v{A+r}, v{vD}, v{100+r}")
    for k,c in enumerate(keep[0]):
        A=ACC+4*c
        for r in range(4): a(f"v_add_f32 v{A+r}, v{A+r}, v{80+4*k+r}")
        a(f"v_cvt_pk_bf16_f32 v{104+2*k}, v{A}, v{A+1}\nv_cvt_pk_bf16_f32 v{105+2*k}, v{A+2}, v{A+3}")
        if k&1:
            b=104+2*(k-1)
            a(f"v_permlane16_swap_b32 v{b}, v{b+2}\nv_permlane16_swap_b32 v{b+1}, v{b+3}")
            a(f"buffer_store_dwordx4 {V(b)}, v{vYo}, {srd(WS)}, {'0' if k==1 else 's%d'%sMB} offen sc1","yt")
    a.stamp("yT stored","f")

def gather_y(a):
    lane=vLane
    a(f"v_and_b32 v100, 31, v{lane}\nv_lshlrev_b32 v100, 7, v100\nv_cmp_gt_u32 vcc, 32, v{lane}")
    a(f"s_lshl_b32 s{sT0}, s{sCT2}, 12\ns_lshl_b32 s{sT1}, s{sX}, 12\nv_mov_b32 v101, s{sT0}\nv_mov_b32 v102, s{sT1}\nv_cndmask_b32 v101, v101, v102, vcc\nv_add_u32 v100, v100, v101\ns_mov_b32 s{sCK1}, {OFF_HELLO}")
    hl,hc=a.check([f"buffer_load_dwordx4 {V(40)}, v100, {srd(WS)}, s{sCK1} offen sc1"],
         [f"v_xor_b32 v44, s{sTAG}, v40",f"v_xor_b32 v45, s{sTAG}, v41",f"v_xor_b32 v46, s{sTAG}, v42",f"v_xor_b32 v47, s{sTAG}, v43",
          "v_or3_b32 v44, v44, v45, v46","v_or_b32 v44, v44, v47","v_cmp_lt_u32 vcc, 15, v44"],"h2")
    a.flat(hl)
    a.ext(c_dma(7,SLOT[3]))
    for mu in range(2):
        for i in range(4):
            a(f"v_lshlrev_b32 v{vXst[mu]+2*i}, 16, v{118+4*mu+i}\nv_and_b32 v{vXst[mu]+2*i+1}, 0xffff0000, v{118+4*mu+i}")
    a(f"""v_lshrrev_b32 v101, 2, v0
        v_lshlrev_b32 v101, 7, v101
        v_and_b32 v102, 3, v0
        v_lshl_add_u32 v101, v102, 4, v101
        s_lshl_b32 s{sT0}, s{sG}, 16
        s_lshl_b32 s{sT1}, s{sCT2}, 13
        s_add_u32 s{sT0}, s{sT0}, s{sT1}
        s_lshl_b32 s{sT1}, s{sRH}, 6
        s_add_u32 s{sT0}, s{sT0}, s{sT1}
        s_add_u32 s{sCK2}, s{sT0}, {OFF_YT}
        s_add_u32 s{sCK3}, s{sCK2}, 0x100000
        v_lshlrev_b32 v102, 4, v0
        v_bfe_u32 v103, v{lane}, 2, 2
        v_lshl_add_u32 v103, v{vQ}, 3, v103
        v_lshlrev_b32 v103, 6, v103
        v_and_b32 v104, 3, v{lane}
        v_lshl_add_u32 v103, v104, 3, v103
        s_lshl_b32 s{sT0}, s{sCHH}, 11
        s_lshl_b32 s{sT1}, s{sKH}, 5
        s_add_u32 s{sT0}, s{sT0}, s{sT1}
        v_add_u32 v103, s{sT0}, v103""")
    a.waitvm("c5"); a("s_barrier")
    a.ext(c_read(4,SLOT[0])); a.ext(c_read(5,SLOT[1]))
    a.flat(hc)
    a.stamp("yT acked","f")
    gl,gc=a.check([f"buffer_load_dwordx4 {V(48)}, v101, {srd(WS)}, s{sCK2} offen sc1",f"buffer_load_dwordx4 {V(52)}, v101, {srd(WS)}, s{sCK3} offen sc1"],
         ["v_max3_u32 v56, v48, v49, v50","v_max3_u32 v56, v56, v51, v52","v_max3_u32 v56, v56, v53, v54","v_max_u32 v56, v56, v55","v_cmp_eq_u32 vcc, -1, v56"],"yt")
    a.flat(gl)
    a(f"v_cmp_ne_u32 vcc, s{sHELLO}, v40\ns_mov_b32 s{sHELLO}, vcc_lo")
    a.waitvm("c7"); a("s_waitcnt lgkmcnt(0)\ns_barrier")
    for k in range(CFG['dgather']): a.ext(d_dma(3*k,3,SLOT[k]))
    a.ext(c_read(6,SLOT[2])); a.ext(c_read(7,SLOT[3]))
    a.flat(gc)
    a.stamp("yT gathered","f")
    a(f"ds_write_b128 v102, {V(48)} offset:{L_YS}\nds_write_b128 v102, {V(52)} offset:{L_YS+4096}"); a.lw(2,(L_YS,L_YS+8192))
    a("s_waitcnt lgkmcnt(0)\ns_barrier")
    for mu in range(2):
        for hh in range(2):
            a(f"ds_read_b64_tr_b16 {V(vYY[mu]+2*hh,2)}, v103 offset:{L_YS+4096*mu+256*hh}"); a.lr(1,(L_YS,L_YS+8192) if CFG.get('strict') else (-2,-1))
    for k in range(CFG['dgather'],CFG['dgather']+CFG['dstage']): a.ext(d_dma(3*k,3,SLOT[k]))
    a("s_waitcnt lgkmcnt(0)")
    if CFG['slow']==2: a("s_branch L_slow")
    elif CFG['slow']: a(f"s_cmp_lg_u32 s{sHELLO}, 0\ns_cbranch_scc1 L_slow")

def unpackY(mu,T):
    L=[]
    for i in range(4): L+=M(f"v_lshlrev_b32 v{T+2*i}, 16, v{vYY[mu]+i}\nv_and_b32 v{T+2*i+1}, 0xffff0000, v{vYY[mu]+i}")
    return L
def treduce(s0,s1,s2,s3,gap=[]):
    return M(f"v_permlane32_swap_b32 v{s0}, v{s2}\nv_permlane32_swap_b32 v{s1}, v{s3}\nv_add_f32 v{s0}, v{s0}, v{s2}\nv_add_f32 v{s1}, v{s1}, v{s3}")+gap+M(f"v_permlane16_swap_b32 v{s0}, v{s1}\nv_add_f32 v{s0}, v{s0}, v{s1}")

def fin1(a, layer, mu, T, unpacked=False):
    X=vXst[mu]; L=[] if unpacked else unpackY(mu,T); S=T+8
    L+=M(f"v_add_f32 v{S}, v{X}, v{X+1}\nv_mul_f32 v{S+1}, v{X}, v{X}\nv_mul_f32 v{S+2}, v{X}, v{T}\nv_add_f32 v{S+3}, v{T}, v{T+1}")
    for e in range(1,8):
        if e>1: L+=M(f"v_add_f32 v{S}, v{S}, v{X+e}")
        L+=M(f"v_fmac_f32 v{S+1}, v{X+e}, v{X+e}\nv_fmac_f32 v{S+2}, v{X+e}, v{T+e}")
        if e>1: L+=M(f"v_add_f32 v{S+3}, v{S+3}, v{T+e}")
    L+=treduce(S,S+1,S+2,S+3,M(f"s_add_u32 s{sT0}, s{sGR}, {(layer*2+mu)*262144}"))
    L+=M(f"buffer_store_dword v{S}, v{vGs}, {srd(WS)}, s{sT0} offen{a.sc}")
    return L

def fin2(a, layer, mu, T):
    X=vXst[mu]; Gd=T; Y=T+16
    ld,ck=a.check([f"buffer_load_dwordx4 {V(Gd+4*i)}, v{vGl}, {srd(WS)}, s{sCK2} offen offset:{256*i} sc1" for i in range(4)],
         [f"v_max3_u32 v{PT}, v{Gd}, v{Gd+1}, v{Gd+2}"]+[f"v_max3_u32 v{PT}, v{PT}, v{Gd+3+2*i}, v{Gd+4+2*i}" for i in range(6)]+[f"v_max_u32 v{PT}, v{PT}, v{Gd+15}",f"v_cmp_eq_u32 vcc, -1, v{PT}"],"gr")
    ld=M(f"s_add_u32 s{sCK2}, s{sGRl}, {(layer*2+mu)*262144}")+ld+unpackY(mu,Y)
    L=list(ck)
    for k in range(4): L+=M(f"v_add_f32 v{Gd+k}, v{Gd+k}, v{Gd+4+k}\nv_add_f32 v{Gd+8+k}, v{Gd+8+k}, v{Gd+12+k}")
    for k in (0,2,1,3): L+=M(f"v_add_f32 v{Gd+k}, v{Gd+k}, v{Gd+8+k}")
    L+=treduce(Gd,Gd+1,Gd+2,Gd+3)
    A,B,C,D=Gd,Gd+1,Gd+2,Gd+3
    L+=M(f"v_mov_b32 v{B}, v{A}\nv_permlane16_swap_b32 v{A}, v{B}\nv_mov_b32 v{C}, v{A}\nv_mov_b32 v{D}, v{B}\nv_permlane32_swap_b32 v{A}, v{C}\nv_permlane32_swap_b32 v{B}, v{D}")
    inv="0x3b000000"
    L+=M(f"""v_mul_f32 v{A}, {inv}, v{A}
        v_mul_f32 v{B}, {inv}, v{B}
        v_fma_f32 v{B}, -v{A}, v{A}, v{B}
        v_max_f32 v{B}, 0, v{B}
        v_add_f32 v{B}, 0x3727c5ac, v{B}
        v_rsq_f32 v{B}, v{B}
        v_fma_f32 v{C}, -v{A}, v{D}, v{C}
        v_mul_f32 v{C}, {inv}, v{C}
        v_fma_f32 v{C}, v{B}, v{C}, v{A}
        v_mul_f32 v{A}, v{A}, v{B}""")
    for e in range(8): L+=M(f"v_fma_f32 v{Gd+4+e}, v{X+e}, v{B}, -v{A}")
    for e in range(8): L+=M(f"v_fmac_f32 v{X+e}, v{Gd+4+e}, v{Y+e}")
    for e in range(8): L+=M(f"v_sub_f32 v{Y+e}, v{X+e}, v{C}")
    L+=M(f"s_add_u32 s{sT0}, s{sXS}, {mu*65536}")
    for i in range(4): L+=M(f"v_cvt_pk_bf16_f32 v{Gd+4+i}, v{Y+2*i}, v{Y+2*i+1}")
    L+=M(f"buffer_store_dwordx4 {V(Gd+4)}, v{vL}, {srd(WS)}, s{sT0} offen{a.sc}",f"xs{mu}")
    L+=M(f"v_mul_f32 v{A}, v{Y}, v{Y}")
    for e in range(1,8): L+=M(f"v_fmac_f32 v{A}, v{Y+e}, v{Y+e}")
    L+=M(f"""v_mov_b32 v{B}, v{A}
        s_add_u32 s{sT0}, s{sFLG}, {OFF_XFLAG+layer*8192+mu*256}
        s_add_u32 s{sT1}, s{sS5}, {(layer*2+mu)*65536}
        v_permlane32_swap_b32 v{A}, v{B}
        v_add_f32 v{A}, v{A}, v{B}
        v_mov_b32 v{B}, v{A}
        v_permlane16_swap_b32 v{A}, v{B}
        v_add_f32 v{A}, v{A}, v{B}""")
    tail=[('WVM',f"xs{mu}")]+M(f"buffer_store_dword v{vTAG}, v{vOne}, {srd(WS)}, s{sT0} offen{a.sc}\nbuffer_store_dword v{A}, v{vS5s}, {srd(WS)}, s{sT1} offen{a.sc}")
    return ld,L,tail

def flag_check(a, off, vaddr, name):
    ld,ck=a.check([f"buffer_load_dword v{PT+1}, v{vaddr}, {srd(WS)}, s{sCK1} offen sc1"],[f"v_cmp_ne_u32 vcc, s{sTAG}, v{PT+1}"],name)
    return M(f"s_add_u32 s{sCK1}, s{sFL}, {off}")+ld, ck

def x_dma(mu, pair, stage, q):
    L=M(f"s_add_u32 m0, s{sXW}, {q+stage*8192}\ns_mov_b32 s{sSOFF}, {mu*65536+pair*32768+stage*8192}")
    for i in range(4): L+=M(f"buffer_load_dwordx4 v{vXD}, {srd(WS)}, s{sSOFF} offen offset:{1024*i} sc1 lds",f"x{mu}{pair}{stage}")
    return LW(L,(q+stage*8192,q+stage*8192+8192),(q+16384+stage*8192,q+16384+stage*8192+8192))
def h_dma(mu, i0, n, q):
    L=M(f"s_add_u32 m0, s{sHW}, {q+(i0&7)*1024}\ns_mov_b32 s{sSOFF}, {mu*4*HKS*1024+i0*1024}")
    for i in range(n): L+=M(f"buffer_load_dwordx4 v{vHD}, {srd(WS)}, s{sSOFF} offen offset:{1024*i} sc1 lds",f"h{mu}_{i0}")
    return LW(L,*[(q+w*8192+(i0&7)*1024,q+w*8192+((i0&7)+n)*1024) for w in range(4)])
def h_touch(mu):
    L=[]
    for k,(va,off) in enumerate(((vHS1,(mu*4)*HKS*1024),(vHS1,(mu*4+2)*HKS*1024),(vHS2,mu*4*HKS*1024))):
        L+=M(f"s_mov_b32 s{sT1}, {off}\nbuffer_load_dword v{(140,141,142,143,PT+3,vA1)[3*mu+k]}, v{va}, {srd(WS)}, s{sT1} offen sc1")
    return L

def g1_backbone(buf, q, bar=None):
    A=(ACC0,ACC1)[buf]; bar=bar or {}
    qo=q&65535
    rd=lambda s: bar.get(s,[])+[LR(mk(f"ds_read_b128 {V(FR+8*(s%3)+4*t)}, v{vA0} offset:{qo+t*16384+s*1024}"),(q+t*16384+s*1024,q+t*16384+s*1024+1024)) for t in range(2)]
    L=M(f"v_add_u32 v{vA0}, {q&~65535}, v{vL}")+rd(0)+rd(1)
    for s in range(16):
        nxt = rd(s+2) if s+2<16 else []
        for t in range(2):
            for w in range(3):
                C="0" if s==0 else V(A+12*t+4*w)
                L.append(mk(f"v_mfma_f32_16x16x32_bf16 {V(A+12*t+4*w)}, {W1(s,w)}, {V(FR+8*(s%3)+4*t)}, {C}"))
                if nxt and (t,w)==(0,1): L+=nxt[:-1]
                if nxt and (t,w)==(1,1): L+=nxt[-1:]
    return L

def g1_epi(a, buf, mu, pair, sc):
    A=(ACC0,ACC1)[buf]; E=EP; L=[]
    n=E; mreg=E+4+2*pair
    M0=A+8; M1=A+20
    for t in range(2):
        Gt=A+12*t; Ut=Gt+4
        for r in range(4): L+=M(f"v_max_f32 v{Gt+r}, 0, v{Gt+r}")
        for r in range(4): L+=M(f"v_mul_f32 v{Gt+r}, v{Gt+r}, v{Ut+r}")
        L+=M(f"v_cvt_pk_bf16_f32 v{n+2*t}, v{Gt}, v{Gt+1}\nv_cvt_pk_bf16_f32 v{n+2*t+1}, v{Gt+2}, v{Gt+3}")
    for r in range(4): L+=M(f"v_permlane16_swap_b32 v{M0+r}, v{M1+r}")
    L+=M(f"v_permlane16_swap_b32 v{n}, v{n+2}\nv_permlane16_swap_b32 v{n+1}, v{n+3}\ns_mov_b32 s{sT1}, {(mu*4+2*pair)*HKS*1024}")
    L+=M(f"buffer_store_dwordx4 {V(n)}, v{vHS1}, {srd(WS)}, s{sT1} offen{sc}",f"hs{mu}")
    for r in range(4): L+=M(f"v_max_f32 v{M0+r}, 0, v{M0+r}")
    for r in range(4): L+=M(f"v_mul_f32 v{M0+r}, v{M0+r}, v{M1+r}")
    L+=M(f"v_cvt_pk_bf16_f32 v{mreg}, v{M0}, v{M0+1}\nv_cvt_pk_bf16_f32 v{mreg+1}, v{M0+2}, v{M0+3}")
    if pair==1:
        L+=M(f"s_mov_b32 s{sT1}, {mu*4*HKS*1024}\ns_nop 0\nv_permlane32_swap_b32 v{E+4}, v{E+6}\nv_permlane32_swap_b32 v{E+5}, v{E+7}")
        L+=M(f"buffer_store_dwordx4 {V(E+4)}, v{vHS2}, {srd(WS)}, s{sT1} offen{sc}",f"hs{mu}")
    return L
def h_flag(a, layer, mu):
    return M(f"s_add_u32 s{sT1}, s{sFLG}, {OFF_HFLAG+layer*8192+mu*256}")+[('WVM',f"hs{mu}")]+M(f"buffer_store_dword v{vTAG}, v{vOne}, {srd(WS)}, s{sT1} offen{a.sc}")

def g2_backbone(qs, bar=None):
    bar=bar or {}
    def setq(q): return M(f"s_add_u32 s{sQ}, s{sHK}, {q&~65535}\nv_add_u32 v{vA0}, s{sQ}, v{vL}\ns_add_u32 s{sQ}, s{sHS}, {q&~65535}\nv_add_u32 v{vA1}, s{sQ}, v{vL}")
    def rd(i):
        q=qs[i>>3]; pre=bar.get(i,[])
        if i%8==0 and (i==0 or (q&~65535)!=(qs[(i>>3)-1]&~65535)): pre=setq(q)+pre
        return pre+[LR(mk(f"ds_read_b128 {V(FR+8*(i%3)+4*t)}, v{(vA0,vA1)[t]} offset:{(q&65535)+(i&7)*1024}"),*[(q+w*8192+(i&7)*1024,q+w*8192+(i&7)*1024+1024) for w in range(4)]) for t in (1,0)]
    L=rd(0)+rd(1)
    for i in range(22):
        nxt=rd(i+2) if i+2<22 else []
        for t in (1,0):
            for c in range(2):
                C="0" if i==0 else V(ACC0+8*t+4*c)
                L.append(mk(f"v_mfma_f32_16x16x32_bf16 {V(ACC0+8*t+4*c)}, {W2(i,c)}, {V(FR+8*(i%3)+4*t)}, {C}"))
                if (t,c)==(1,0) and nxt: L+=nxt[:-1]
                if (t,c)==(0,0) and nxt: L+=nxt[-1:]
    return L

def s5_get(a, layer, mu):
    T=140
    ld,ck=a.check([f"buffer_load_dwordx4 {V(T)}, v{vS5l}, {srd(WS)}, s{sCK3} offen sc1"],
         [f"v_max3_u32 v{PT+2}, v{T}, v{T+1}, v{T+2}",f"v_max_u32 v{PT+2}, v{PT+2}, v{T+3}",f"v_cmp_eq_u32 vcc, -1, v{PT+2}"],"s5")
    ld=M(f"s_add_u32 s{sCK3}, s{sS5l}, {(layer*2+mu)*65536}")+ld
    L=list(ck)+M(f"""v_add_f32 v{T}, v{T}, v{T+1}
        v_add_f32 v{T+2}, v{T+2}, v{T+3}
        v_add_f32 v{T}, v{T}, v{T+2}
        v_mov_b32 v{T+1}, v{T}
        s_nop 0
        v_permlane32_swap_b32 v{T}, v{T+1}
        v_add_f32 v{T}, v{T}, v{T+1}
        v_mov_b32 v{T+1}, v{T}
        s_nop 0
        v_permlane16_swap_b32 v{T}, v{T+1}
        v_add_f32 v{T}, v{T}, v{T+1}
        v_mul_f32 v{T}, 0x3b000000, v{T}
        v_add_f32 v{T}, 0x3727c5ac, v{T}
        v_rcp_f32 v{vR2}, v{T}""")
    return ld,L
def ex_addr(qspare):
    return M(f"s_add_u32 s{sT0}, s{sHW}, {qspare+6144}\nv_add_u32 v{EP}, s{sT0}, v{vL}\ns_xor_b32 s{sT0}, s{sHW}, 16384\ns_add_u32 s{sT0}, s{sT0}, {qspare+6144}\nv_add_u32 v{EP+1}, s{sT0}, v{vL}")
def g2_tail(a, mu, qsp, mid=[]):
    X=vXst[mu]
    a(f"ds_write_b128 v{EP}, {V(ACC0+8)}\nds_write_b128 v{EP}, {V(ACC0+12)} offset:1024")
    R=[(qsp+w*8192+6144,qsp+w*8192+8192) for w in range(4)]; a.lw(2,*R)
    for e in range(8): a(f"v_fmac_f32 v{X+e}, v{vR2}, v{ACC0+e}")
    a("s_waitcnt lgkmcnt(0)\ns_barrier")
    a(f"ds_read_b128 {V(ACC0+8)}, v{EP+1}\nds_read_b128 {V(ACC0+12)}, v{EP+1} offset:1024","ex"); a.lr(2,*R)
    a.flat(mid)
    for e in range(8): a(f"v_fmac_f32 v{X+e}, v{vR2}, v{ACC0+8+e}")
def out_store(a, mu, T):
    X=vXst[mu]
    for i in range(4): a(f"v_cvt_pk_bf16_f32 v{T+i}, v{X+2*i}, v{X+2*i+1}")
    a(f"buffer_store_dwordx4 {V(T)}, v{vTok}, {srd(SO_)}, {'0' if mu==0 else 's%d'%sMB} offen{' sc1' if CFG['outsc'] else ''}")

def finish_kernel(a):
    a(f"s_or_b32 s{sT0}, s2, s{sWV}\ns_cmp_eq_u32 s{sT0}, 0\ns_cselect_b32 s{sT0}, {OFF_NONCE}, {OOB}")
    a(f"buffer_store_dword v{vTAG}, v{vOne}, {srd(WS)}, s{sT0} offen")
    if CFG['stamps'] and a.tag!='S':
        a.stamp("end","*")
        a("s_memtime s[100:101]\ns_waitcnt lgkmcnt(0)\ns_sub_u32 s99, s100, s99")
        a(f"s_lshl_b32 s{sT0}, s2, 2\ns_add_u32 s{sT0}, s{sT0}, s{sWV}\ns_lshl_b32 s{sT0}, s{sT0}, 8\ns_add_u32 s{sT0}, s{sT0}, {OFF_STAMP}")
        for i in range(len(stamp_names)):
            a(f"v_mov_b32 v40, s{STAMP0+i}")
            a(f"buffer_store_dword v40, v{vOne}, {srd(WS)}, s{sT0} offen offset:{4*i}")
        a(f"v_mov_b32 v40, s99\nbuffer_store_dword v40, v{vOne}, {srd(WS)}, s{sT0} offen offset:252")
    a("s_endpgm")

WV=lambda t:('WVM',t)
WL=lambda t:('WLG',t)
AT=lambda n:('AT',n)

def body(a):
    nd=CFG['dgather']+CFG['dstage']
    P=paced
    a.flat(fin1(a,0,0,ACC0)); a.flat(fin1(a,0,1,ACC0))
    a.stamp("fin1","f")
    lA,rA,tA=fin2(a,0,0,ACC0); lB,rB,tB=fin2(a,0,1,ACC1)
    a.flat(lA); a.flat(rA)
    a.flat(lB)
    a.flat(tA); a.stamp("fin2 A","f")
    a.flat(rB); a.flat(tB); a.stamp("fin2 B","f")
    qs=list(Q)
    xl,xc=flag_check(a,OFF_XFLAG+0,vFX,"xf")
    a.flat(xl); a.flat(xc)
    a.ext(x_dma(0,0,0,qs[0])+x_dma(0,0,1,qs[0]))
    for layer in range(2):
        g="ab"[layer]
        xa0,xa1,xb0,xb1,e=qs
        hsc = a.sc if not (layer==0 and CFG['touch']==2) else ' sc1'
        L0 = layer==0
        a.stamp(f"L{layer} start",g+'f')
        bb=g1_backbone(0,xa0,{0:BAR(WV("x000")),8:BAR(WV("x001"))})
        xA1=x_dma(0,1,0,xa1)+x_dma(0,1,1,xa1)
        xl,xc=flag_check(a,OFF_XFLAG+layer*8192+256,vFX,"xf")
        xB0=x_dma(1,0,0,xb0)+x_dma(1,0,1,xb0); xB1=x_dma(1,1,0,xb1)+x_dma(1,1,1,xb1)
        if L0:
            s1=P(xA1,4)
            for k in range(nd,4): s1+=P(d_dma(3*k,3,SLOT[k]),4)
            s2=[]
            for k in range(min(nd,4)): s2+=d_read(3*k,3,SLOT[k])
            s2+=d_mask()+[AT(40)]+(P(h_touch(0)+h_touch(1),4) if CFG['touch']==1 else [])
            a.weave(bb,s1+[AT(90)]+xl,s2)
        else:
            a.weave(bb,[AT(4)]+P(xA1,5),[AT(CFG['a0fin'])]+rB+tB)
        a.stamp(f"L{layer} A0",g)
        if L0:
            pre=[WV("x011")]+([WV("d9")] if nd<4 else [])
            late=[]
            for k in range(nd,4): late+=d_read(3*k,3,SLOT[k])
            bb=g1_backbone(1,xa1,{0:BAR(*pre),5:BAR(WL("dr9"))})
            a.weave(bb,xc+[AT(20)]+P(xB0+d_dma(12,2,ESLOT[0])+d_dma(14,2,ESLOT[1]),4),late+g1_epi(a,0,0,0,hsc))
        else:
            bb=g1_backbone(1,xa1,{0:BAR(WV("x011"))})
            a.weave(bb,[AT(CFG['a1xl'])]+xl+[('GAP',16)]+xc+P(xB0+xB1[:6],4),[AT(3)]+g1_epi(a,0,0,0,hsc))
        a.stamp(f"L{layer} A1",g)
        hl,hc=flag_check(a,OFF_HFLAG+layer*8192,vFH,"hf")
        if L0:
            bb=g1_backbone(0,xb0,{0:BAR(WV("d12")),9:BAR(WV("d14"),WL("dr12"))})
            a.weave(bb,P(xB1,4)+[AT(44)]+P(d_dma(16,2,ESLOT[0]),4)+[AT(80)]+hl,
                       [AT(3)]+g1_epi(a,1,0,1,hsc)+d_read(12,2,ESLOT[0])+[AT(44)]+d_read(14,2,ESLOT[1])+[AT(54)]+h_flag(a,layer,0))
        else:
            bb=g1_backbone(0,xb0,{0:BAR(WV("x101"))})
            a.weave(bb,P(xB1[6:],5)+[AT(80)]+hl,[AT(3)]+g1_epi(a,1,0,1,hsc)+[AT(54)]+h_flag(a,layer,0))
        a.stamp(f"L{layer} B0",g)
        hqA=(xa0,xa1,e); hqB=(xb0,xb1,xa0)
        hA=[]
        for i0 in range(0,16,4): hA+=h_dma(0,i0,4,hqA[i0>>3])
        hA3=h_dma(0,16,4,e)+h_dma(0,20,2,e)
        sl,sr=s5_get(a,layer,0)
        if L0:
            bb=g1_backbone(1,xb1,{0:BAR(WV("d16"),WV("x111"),WL("dr14")),6:BAR(WL("dr16")),12:BAR(WV("d18"))})
            a.weave(bb,P(d_dma(18,2,ESLOT[1]),2)+hc+[AT(26)]+P(d_dma(20,2,ESLOT[0]),3)+P(hA,3),
                       d_read(16,2,ESLOT[0])+g1_epi(a,0,1,0,hsc)+sl+[AT(62)]+d_read(18,2,ESLOT[1]))
        else:
            bb=g1_backbone(1,xb1,{0:BAR(WV("x111"))})
            a.weave(bb,hc+P(hA+hA3,4),[AT(3)]+g1_epi(a,0,1,0,hsc)+sl)
        a.stamp(f"L{layer} B1",g)
        hl,hc=flag_check(a,OFF_HFLAG+layer*8192+256,vFH,"hf")
        hB=[]
        for i0 in range(0,16,4): hB+=h_dma(1,i0,4,hqB[i0>>3])
        hB3=h_dma(1,16,4,xa0)+h_dma(1,20,2,xa0)
        s2=[AT(2)]+g1_epi(a,1,1,1,hsc)+sr+[AT(CFG['gaflag'])]+h_flag(a,layer,1)+ex_addr(e)+unpackY(0,ACC1)
        if L0:
            bb=g2_backbone(hqA,{0:BAR(WV("h0_4")),4:BAR(WL("dr20")),8:BAR(WV("h0_12")),16:BAR(WV("h0_20"))})
            a.weave(bb,d_read(20,2,ESLOT[0])+[AT(10)]+P(hA3,3)+[AT(CFG['gahl'])]+hl,s2)
        else:
            bb=g2_backbone(hqA,{0:BAR(WV("h0_4")),8:BAR(WV("h0_12")),16:BAR(WV("h0_20"))})
            a.weave(bb,[AT(CFG['gahl'])]+hl,s2)
        a.stamp(f"L{layer} GA",g)
        sl,sr=s5_get(a,layer,1)
        g2_tail(a,0,e,mid=hc+hB[:12])
        if L0: a.flat(fin1(a,1,0,ACC1,True))
        else: out_store(a,0,ACC1)
        a.flat(sl+hB[12:18])
        if L0:
            lA,rA,tA=fin2(a,1,0,ACC1)
            a.flat(lA)
        a.flat(hB[18:])
        a.stamp(f"L{layer} tailA",g)
        bb=g2_backbone(hqB,{0:BAR(WV("h1_0")),4:BAR(WV("h1_4")),8:BAR(WV("h1_8")),12:BAR(WV("h1_12")),16:BAR(WV("h1_20"))})
        nq=[xa1,e,xb0,xb1,xa0]
        if L0:
            xl,xc=flag_check(a,OFF_XFLAG+8192,vFX,"xf")
            a.weave(bb,P(hB3,2),sr+ex_addr(xa0)+[AT(CFG['gbfin'])]+rA+tA+unpackY(1,ACC1),slots=3)
        else:
            s2=sr+ex_addr(xa0)
            if CFG['wbl2']:
                Lw=a.label("wb")
                s2+=[M(f"s_or_b32 s{sT0}, s{sR}, s{sWV}\ns_cmp_lg_u32 s{sT0}, 0\ns_cbranch_scc1 {Lw}\nbuffer_wbl2 sc1\n{Lw}:")]
            a.weave(bb,P(hB3,2),s2)
        a.stamp(f"L{layer} GB",g)
        if L0:
            g2_tail(a,1,xa0,mid=xl)
            a.flat(fin1(a,1,1,ACC1,True))
            a.flat(xc)
            lB,rB,tB=fin2(a,1,1,ACC1)
            a.ext(x_dma(0,0,0,nq[0])+x_dma(0,0,1,nq[0]))
            a.flat(lB)
        else:
            g2_tail(a,1,xa0)
            out_store(a,1,ACC1)
        a.stamp(f"L{layer} tailB",g)
        qs=nq
    finish_kernel(a)

def main():
    a=G('F','')
    entry(a); p0(a); conv(a); gather_y(a)
    nfront=len(a.L)
    b=G('S',' sc1'); b.nlab=0
    front=list(a.L)
    body(a)
    rep=[]
    items=finish(a.L,rep)
    print("LDS ordering problems:",lds_check(items))
    for o in a.ool: items+=finish(o)
    items.append(mk("L_fast_end:"))
    if CFG['slow']:
        b.L=front+[mk("L_slow:")]; body(b)
        full=finish(b.L)
        k=[i for i,x in enumerate(full) if x.text=="L_slow:"][0]
        items+=full[k:k+1]+[mk("s_nop 4")]+full[k+1:]
        for o in b.ool: items+=finish(o)
    items.append(mk("L_end:")); items.append(mk("s_endpgm"))
    hdr=open(os.path.join(os.path.dirname(os.path.abspath(__file__)),"header.txt")).read()
    src=kernel_file(NAME,text(items),"; @launch grid=(256,1,1) block=(256,1,1) lds=163840",header=hdr)
    open(sys.argv[1],"w").write(src)
    open("stamp_names.txt","w").write("\n".join(stamp_names))
    n=sum(1 for i in items if i.kind!='none')
    print(f"{n} instructions, {len(src)} bytes of text, {sum(x for x,_ in rep)} nop states padded in fast path")
    if CFG.get('v'):
        for x in rep: print("   pad",x)
main()
```

```python
import re

REG_RE = re.compile(r'\b([vas])(\d+)\b|\b([vas])\[(\d+):(\d+)\]')

def regs_of(op):
    out=set()
    op=op.strip()
    for m in REG_RE.finditer(op):
        if m.group(1): out.add((m.group(1),int(m.group(2))))
        else:
            for i in range(int(m.group(4)),int(m.group(5))+1): out.add((m.group(3),i))
    if re.search(r'\bvcc(_lo|_hi)?\b',op): out|={('s','vcc')}
    if re.search(r'\bexec\b',op): out|={('s','exec')}
    if re.search(r'\bm0\b',op): out|={('s','m0')}
    return out

TRANS=('v_exp_f32','v_log_f32','v_rcp_f32','v_rsq_f32','v_sqrt_f32','v_sin_f32','v_cos_f32')

class I:
    def __init__(s, text, tok=None):
        s.text=text; s.tok=tok
        t=text.split(';')[0].strip()
        s.label = t.endswith(':')
        s.directive = t.startswith('.')
        s.op = t.split()[0] if t else ''
        rest = t[len(s.op):].strip()
        ops=[]; d=0; cur=''
        for ch in rest:
            if ch in '[(': d+=1
            if ch in '])': d-=1
            if ch==',' and d==0: ops.append(cur.strip()); cur=''
            else: cur+=ch
        if cur.strip(): ops.append(cur.strip())
        s.ops=ops
        op=s.op
        s.kind='other'; s.defs=set(); s.uses=set(); s.dma=False
        if s.label or s.directive or not op: s.kind='none'; return
        allr=[regs_of(o.split(' ')[0] if i==len(ops)-1 else o) for i,o in enumerate(ops)]
        U=lambda idx: set().union(*[allr[i] for i in idx]) if idx else set()
        n=len(ops)
        if op.startswith('v_mfma'):
            s.kind='mfma'; s.defs=allr[0]; s.A=allr[1]; s.B=allr[2]; s.C=allr[3]; s.uses=s.A|s.B|s.C
            s.passes = 4 if '16x16x32' in op else 8
        elif op.startswith('buffer_load') or op.startswith('global_load'):
            s.kind='vmem'; s.load=True
            if re.search(r'\blds\b',t) : s.dma=True; s.uses=U(range(n))|{('s','m0')}
            else: s.defs=allr[0]; s.uses=U(range(1,n))
        elif op.startswith('buffer_store') or op.startswith('global_store'):
            s.kind='vmem'; s.load=False; s.uses=U(range(n))
            di = 0 if op.startswith('buffer') else 1
            s.sdata=allr[di]; s.wide = op.endswith('x4') or op.endswith('x3')
        elif op.startswith('buffer_wbl2') or op.startswith('buffer_inv'):
            s.kind='vmem'; s.load=False; s.sdata=set(); s.wide=False
        elif op.startswith('ds_read'):
            s.kind='ds'; s.defs=allr[0]; s.uses=U(range(1,n))
        elif op.startswith('ds_write'):
            s.kind='ds'; s.uses=U(range(n))
        elif op.startswith('ds_bpermute') or op.startswith('ds_swizzle') or op.startswith('ds_permute'):
            s.kind='ds'; s.defs=allr[0]; s.uses=U(range(1,n))
        elif op.startswith('s_load') or op.startswith('s_memtime') or op.startswith('s_memrealtime'):
            s.kind='smem'; s.defs=allr[0]; s.uses=U(range(1,n))
        elif op in('s_waitcnt','s_nop','s_barrier','s_endpgm','s_branch','s_setprio','s_sleep') or op.startswith('s_cbranch'):
            s.kind='ctl'
            if op=='s_cbranch_vccz' or op=='s_cbranch_vccnz': s.uses={('s','vcc')}
            if op.startswith('s_cbranch_exec'): s.uses={('s','exec')}
        elif op.startswith('s_cmp') or op.startswith('s_bitcmp'):
            s.kind='salu'; s.uses=U(range(n))
        elif op.startswith('s_'):
            s.kind='salu'; s.defs=allr[0]; s.uses=U(range(1,n))
            if 'saveexec' in op: s.defs|={('s','exec')}; s.uses|={('s','exec')}
            if op in('s_addk_i32','s_mulk_i32','s_bitset1_b32'): s.uses|=allr[0]
        elif op.startswith('v_'):
            s.kind='valu'
            if op.startswith('v_cmp'):
                s.defs=allr[0]; s.uses=U(range(1,n))
            elif op.startswith('v_permlane') and 'swap' in op:
                s.defs=allr[0]|allr[1]; s.uses=allr[0]|allr[1]
            elif op.startswith('v_add_co') or op.startswith('v_sub_co') or op.startswith('v_addc_co'):
                s.defs=allr[0]|allr[1]; s.uses=U(range(2,n))
            else:
                s.defs=allr[0]; s.uses=U(range(1,n))
                if op.startswith('v_fmac') or op.startswith('v_dot2c') or op.startswith('v_writelane'): s.uses|=allr[0]
                if 'dpp' in op or 'row_' in t or 'quad_perm' in t: s.uses|=allr[0]; s.dpp=True
                if op.startswith('v_cndmask') and n==3: s.uses|={('s','vcc')}
        else:
            raise ValueError('unknown op '+text)
    def states(s):
        if s.kind=='none': return 0
        if s.op=='s_nop': return int(s.ops[0],0)+1
        return 1

class Asm:
    def __init__(s): s.L=[]; s.nlab=0
    def __call__(s, text, tok=None):
        for line in text.split('\n'):
            line=line.strip()
            if line: s.L.append(I(line,tok))
        return s
    def lab(s,name): s.L.append(I(name+':'))
    def newlab(s,p='L'): s.nlab+=1; return f'{p}_{s.nlab}'
    def waitvm(s,tok): s.L.append(('WVM',tok))
    def waitlg(s,tok): s.L.append(('WLG',tok))
    def ext(s, items): s.L.extend(items)

def mk(text,tok=None): return I(text,tok)

def interleave(backbone, fillers, slots=2, start=0, per=None):
    out=[]; fi=0; nm=0; i=0
    fillers=list(fillers)
    while i<len(backbone):
        it=backbone[i]; out.append(it); i+=1
        if isinstance(it,I) and it.kind=='mfma':
            nm+=1
            used=0; j=i
            while j<len(backbone) and not(isinstance(backbone[j],I) and backbone[j].kind=='mfma'):
                used+=1; j+=1
            free=slots-used
            while fi<len(fillers) and nm>start:
                f=fillers[fi]
                if isinstance(f,tuple) and f[0]=='AT':
                    if nm>=f[1]: fi+=1; continue
                    break
                g=f if isinstance(f,list) else [f]
                if len(g)>free and not(free>=slots and len(g)>slots) : break
                out.extend(g); free-=len(g); fi+=1
                if free<=0: break
    rest=[]
    for f in fillers[fi:]:
        if isinstance(f,tuple) and f[0]=='AT': continue
        rest.extend(f if isinstance(f,list) else [f])
    return out, rest

def resolve(items, verbose=False):
    out=[]; vm=[]; lg=[]; nmf=[0]; AGE=7
    def emit_wait(nv,nl):
        parts=[]
        if nv is not None: parts.append(f'vmcnt({nv})')
        if nl is not None: parts.append(f'lgkmcnt({nl})')
        out.append(I('s_waitcnt '+' '.join(parts)))
    for it in items:
        if isinstance(it,tuple):
            q = vm if it[0]=='WVM' else lg
            idx=[k for k,e in enumerate(q) if e[1]==it[1]]
            if idx:
                n=len(q)-1-idx[-1]
                if it[0]=='WVM':
                    assert n<=63,('vmcnt overflow',n); emit_wait(n,None); del vm[:idx[-1]+1]
                else:
                    if any(e[2] for e in lg): n=0
                    if n>15: n=15
                    emit_wait(None,n); del lg[:len(lg)-n]
            continue
        if it.kind=='none': out.append(it); continue
        if it.op=='s_waitcnt':
            m=re.search(r'vmcnt\((\d+)\)',it.text)
            if m: n=int(m.group(1)); del vm[:max(0,len(vm)-n)]
            m=re.search(r'lgkmcnt\((\d+)\)',it.text)
            if m:
                n=int(m.group(1))
                if n==0 or not any(e[2] for e in lg): del lg[:max(0,len(lg)-n)]
            out.append(it); continue
        touch=it.defs|it.uses
        nv=nl=None
        idx=[k for k,e in enumerate(vm) if e[0]&touch]
        if idx:
            nv=len(vm)-1-idx[-1]; assert nv<=63; del vm[:idx[-1]+1]
        idx=[k for k,e in enumerate(lg) if e[0]&touch]
        if idx:
            k=idx[-1]
            while k+1<len(lg) and nmf[0]-lg[k+1][3]>=AGE: k+=1
            nl=len(lg)-1-k
            if any(e[2] for e in lg): nl=0
            if nl>15: nl=15
            del lg[:len(lg)-nl]
        if nv is not None or nl is not None: emit_wait(nv,nl)
        out.append(it)
        if it.kind=='mfma': nmf[0]+=1
        if it.kind=='vmem':
            vm.append((set(it.defs),it.tok,False))
            if len(vm)>63 and verbose: print('note: >63 vmem outstanding at',it.text)
        elif it.kind=='ds': lg.append((set(it.defs),it.tok,False,nmf[0]))
        elif it.kind=='smem' and getattr(it,'light',0): pass
        elif it.kind=='smem': lg.append((set(it.defs),it.tok,True,nmf[0]))
    return out

def need(p,c):
    n=0
    isv=lambda S:{r for r in S if r[0] in 'va'}
    iss=lambda S:{r for r in S if r[0]=='s'}
    if p.kind=='valu':
        pv=isv(p.defs); ps=iss(p.defs)
        if c.kind=='mfma' and pv&c.uses: n=max(n,2)
        if c.kind=='valu':
            if c.op.startswith('v_permlane') and pv&c.uses: n=max(n,2)
            if getattr(c,'dpp',False) and pv&c.uses: n=max(n,2)
            if (c.op.startswith('v_readfirstlane') or c.op.startswith('v_readlane')) and pv&c.uses: n=max(n,1)
            if p.op.replace('_e32','').replace('_e64','') in TRANS and pv&c.uses: n=max(n,1)
            if 'sdwa' in p.text and pv&(c.uses|c.defs): n=max(n,1)
            if ps&c.uses: n=max(n,4 if c.op.startswith(('v_readlane','v_writelane')) else 2)
        if c.kind=='vmem' and ps&c.uses: n=max(n,5)
        if c.kind in('salu','smem') and ps&c.uses: n=max(n,1)
    if p.kind=='mfma':
        big={4:8,8:12}[p.passes]
        if c.kind=='mfma':
            if p.defs&(c.A|c.B): n=max(n,big)
            if p.defs&c.C and not(p.defs==c.C and p.passes==c.passes): n=max(n,{4:6,8:10}[p.passes])
            if p.defs&c.defs and not p.defs&c.C: n=max(n,{4:6,8:10}[p.passes])
        elif c.kind in('valu','vmem','ds'):
            if p.defs&(c.uses|c.defs): n=max(n,big)
            if c.kind=='valu' and p.C&c.defs: n=max(n,{4:3,8:7}[p.passes])
    if p.kind=='vmem' and not p.load and p.wide:
        if p.sdata&c.defs: n=max(n,2)
    if p.kind=='ds' and p.op.startswith('ds_write') and (p.op.endswith('b128') or p.op.endswith('b96')):
        pass
    if p.kind=='salu' and ('s','m0') in p.defs and c.kind=='vmem' and c.dma: n=max(n,1)
    if p.kind=='salu' and ('s','exec') in p.defs and c.kind=='valu' and getattr(c,'dpp',False): n=max(n,0)
    return n

def pad_hazards(items, report=None):
    out=[]
    for it in items:
        if it.kind!='none':
            dist=0; add=0
            for p in reversed(out):
                if dist>=20: break
                if p.kind=='none': continue
                k=need(p,it)
                if k>dist: add=max(add,k-dist)
                dist+=p.states()
            if add:
                if report is not None: report.append((add,it.text))
                out.append(I(f's_nop {add-1}'))
        out.append(it)
    return out

def finish(items, report=None):
    return pad_hazards(resolve(items), report)

def text(items): return '\n'.join(('' if (i.label or i.directive) else '  ')+i.text for i in items)+'\n'

def kernel_file(name, body_text, launch, nvgpr=512, accum=256, nsgpr=102, header=''):
    return (header + launch + '\n.amdgcn_target "amdgcn-amd-amdhsa--gfx950"\n.text\n'
      f'.globl {name}\n.p2align 8\n.type {name},@function\n{name}:\n' + body_text +
      '.section .rodata,"a"\n.p2align 6\n'
      f'.amdhsa_kernel {name}\n  .amdhsa_next_free_vgpr {nvgpr}\n  .amdhsa_next_free_sgpr {nsgpr}\n  .amdhsa_accum_offset {accum}\n'
      '  .amdhsa_group_segment_fixed_size 0\n  .amdhsa_kernarg_size 104\n  .amdhsa_user_sgpr_count 2\n'
      '  .amdhsa_user_sgpr_kernarg_segment_ptr 1\n  .amdhsa_system_sgpr_workgroup_id_x 1\n.end_amdhsa_kernel\n')

def lds_check(items, verbose=True):
    vm=[]; lg=[]; nbar=0; hist=[]; errs=0
    def ov(A,B): return any(a<d and c<b for a,b in A for c,d in B)
    for it in items:
        if it.kind=='none': continue
        if it.op=='s_waitcnt':
            m=re.search(r'vmcnt\((\d+)\)',it.text)
            if m:
                n=int(m.group(1))
                while len(vm)>n: vm.pop(0)['done']=nbar
            m=re.search(r'lgkmcnt\((\d+)\)',it.text)
            if m:
                n=int(m.group(1))
                if n==0 or not any(e['smem'] for e in lg):
                    while len(lg)>n: lg.pop(0)['done']=nbar
            continue
        if it.op=='s_barrier': nbar+=1; continue
        if getattr(it,'light',0): continue
        if it.kind in('vmem','ds','smem'):
            rec=dict(done=None,smem=it.kind=='smem',it=it,lr=getattr(it,'lr',None),lw=getattr(it,'lw',None))
            if (it.kind=='ds' or it.dma) and rec['lr'] is None and rec['lw'] is None:
                print("unannotated LDS op:",it.text); errs+=1
            for h in hist:
                safe = h['done'] is not None and h['done']<nbar
                if safe: continue
                if getattr(it,'priv',0) and getattr(h['it'],'priv',0): continue
                if rec['lr'] and h['lw'] and ov(rec['lr'],h['lw']): errs+=1; errs<6 and print("RAW",h['it'].text,h['lw'][:2],"->",it.text,rec['lr'][:2])
                if rec['lw'] and h['lr'] and ov(rec['lw'],h['lr']): errs+=1; errs<6 and print("WAR",h['it'].text,h['lr'][:2],"->",it.text,rec['lw'][:2])
                if rec['lw'] and h['lw'] and ov(rec['lw'],h['lw']) and h['it'].tok!=it.tok: errs+=1; errs<6 and print("WAW",h['it'].text,"->",it.text)
            hist=[h for h in hist if not(h['done'] is not None and h['done']<nbar)]
            if rec['lr'] or rec['lw']: hist.append(rec)
            (vm if it.kind=='vmem' else lg).append(rec)
    return errs
def LR(items,*r):
    for i in (items if isinstance(items,list) else [items]):
        if i.kind=='ds' or i.kind=='vmem': i.lr=list(r)
    return items
def LW(items,*r):
    for i in (items if isinstance(items,list) else [items]):
        if i.kind=='ds' or (i.kind=='vmem' and i.dma): i.lw=list(r)
    return items

def weave(backbone, streams, slots=2):
    S=[list(s) for s in streams]; pos=[0]*len(S); last=[-99]*len(S); lastv=[-99]*len(S); dens=[0]*len(S); done={}
    out=[]; nm=0; i=0
    def c1(x):
        if isinstance(x,tuple): return 0.34
        if x.kind=='none': return 0
        if x.kind=='salu' or x.op in('s_waitcnt','s_nop'): return 0.34
        if x.op.startswith('v_permlane'): return 2
        return 1
    def cost(g): return sum(c1(x) for x in g)
    forced=[0]; flog={}
    def flush(k,upto):
        while pos[k]<upto:
            f=S[k][pos[k]]; pos[k]+=1
            if isinstance(f,tuple) and f[0]=='SYNC': done[f[1]]=nm; continue
            if isinstance(f,tuple) and f[0]=='AFTER':
                if f[1] not in done:
                    for k2,s2 in enumerate(S):
                        for p2 in range(pos[k2],len(s2)):
                            if s2[p2]==('SYNC',f[1]): flush(k2,p2+1)
                continue
            if isinstance(f,tuple) and f[0] in('AT','GAP','GAPV','BY','DENS'): continue
            g=f if isinstance(f,list) else [f]
            out.extend(g); forced[0]+=len(g); flog.setdefault((k,nm),[]).append(getattr(g[0],'text',g[0]))
    while i<len(backbone):
        it=backbone[i]
        if isinstance(it,I) and it.kind=='mfma':
            for k,s in enumerate(S):
                idx=[p for p in range(pos[k],len(s)) if isinstance(s[p],tuple) and s[p][0]=='BY' and s[p][1]<=nm]
                if idx: flush(k,idx[-1]+1)
        out.append(it); i+=1
        if isinstance(it,I) and it.kind=='mfma':
            nm+=1; used=0; j=i
            while j<len(backbone) and not(isinstance(backbone[j],I) and backbone[j].kind=='mfma'): used+=c1(backbone[j]); j+=1
            free=slots+0.35-used; extra=0; base=slots+0.35
            for k,s in enumerate(S):
                while pos[k]<len(s):
                    f=s[pos[k]]
                    if isinstance(f,tuple) and f[0]=='DENS': dens[k]=f[1]; pos[k]+=1; continue
                    if dens[k]>slots+extra: free+=dens[k]-slots-extra; extra=dens[k]-slots
                    if free<=0: break
                    if isinstance(f,tuple) and f[0]=='AT':
                        if nm>=f[1]: pos[k]+=1; continue
                        break
                    if isinstance(f,tuple) and f[0]=='GAP':
                        if nm-last[k]>=f[1]: pos[k]+=1; continue
                        break
                    if isinstance(f,tuple) and f[0]=='BY': pos[k]+=1; continue
                    if isinstance(f,tuple) and f[0]=='GAPV':
                        if nm-lastv[k]>=f[1]: pos[k]+=1; continue
                        break
                    if isinstance(f,tuple) and f[0]=='SYNC': done.setdefault(f[1],nm); pos[k]+=1; continue
                    if isinstance(f,tuple) and f[0]=='AFTER':
                        if f[1] in done and nm>=done[f[1]]+(f[2] if len(f)>2 else 0): pos[k]+=1; continue
                        break
                    g=f if isinstance(f,list) else [f]
                    c=cost(g)
                    if c>free and not(isinstance(f,list) and c<=free+1.4) and not(free>=base): break
                    out.extend(g); free-=c; pos[k]+=1; last[k]=nm
                    if any(isinstance(x,I) and x.kind=='vmem' for x in g): lastv[k]=nm
    rest=[]
    progress=True
    while progress:
        progress=False
        for k,s in enumerate(S):
            while pos[k]<len(s):
                f=s[pos[k]]
                if isinstance(f,tuple) and f[0]=='AFTER' and f[1] not in done: break
                pos[k]+=1; progress=True
                if isinstance(f,tuple) and f[0]=='SYNC': done[f[1]]=nm; continue
                if isinstance(f,tuple) and f[0] in('AT','GAP','GAPV','AFTER','BY','DENS'): continue
                rest.extend(f if isinstance(f,list) else [f])
    assert all(pos[k]==len(S[k]) for k in range(len(S)))
    out=order_gaps(out)
    if forced[0]: print("  weave: forced by deadline:",forced[0],{k:(len(v),v[0][:28] if isinstance(v[0],str) else v[0]) for k,v in flog.items()})
    return out,rest
def paced(items,gap):
    out=[]
    for it in items:
        if isinstance(it,I) and it.kind=='vmem': out.append(('GAPV',gap))
        out.append(it)
    return out

def sprinkle(main, extra, every):
    out=[]; extra=list(extra); n=0
    for it in main:
        out.append(it); n+=1
        if n%every==0 and extra:
            while extra:
                x=extra.pop(0); out.append(x)
                if isinstance(x,I) and x.kind=='vmem': break
    return out, extra

def _rank(x):
    if isinstance(x,tuple): return 0
    if x.kind in('salu',) or x.op in('s_waitcnt','s_nop'): return 0
    if x.kind in('ds','vmem','smem'): return 1
    if x.kind=='valu': return 2
    return None
def _scc_def(x): return x.kind=='salu' and not x.op.startswith(('s_mov','s_mul_i32','s_cselect','s_getreg','s_movk','s_bitset'))
def _scc_use(x): return x.op.startswith(('s_cselect','s_addc','s_cbranch_scc'))
def _indep(x,y):
    if isinstance(x,tuple):
        if isinstance(y,tuple): return False
        if x[0]=='WLG': return not(y.kind=='ds' and y.tok==x[1])
        if x[0]=='WVM': return not(y.kind=='vmem' and y.tok==x[1])
        return False
    if isinstance(y,tuple): return False
    if x.op in('s_waitcnt','s_nop') or y.op in('s_waitcnt','s_nop'): return False
    if (x.defs&(y.defs|y.uses)) or (x.uses&y.defs): return False
    if (_scc_use(x) and _scc_def(y)) or (_scc_def(x) and (_scc_use(y) or False)): return False
    return True
def order_gaps(items):
    out=[]; gap=[]; seen=False
    def flush():
        g=gap[:]
        for i in range(1,len(g)):
            j=i
            while j>0:
                a,b=_rank(g[j]),_rank(g[j-1])
                if a is None or b is None or a>=b or not _indep(g[j],g[j-1]): break
                g[j],g[j-1]=g[j-1],g[j]; j-=1
        out.extend(g); gap.clear()
    for it in items:
        if isinstance(it,I) and it.kind=='mfma':
            if seen and len(gap)<=8: flush()
            else: out.extend(gap); gap.clear()
            out.append(it); seen=True
        else: gap.append(it)
    out.extend(gap)
    return out
```

```python
OFF_NONCE=0
OFF_F1L=0x1000
OFF_XFLAG=0x80000
OFF_HFLAG=0x88000
OFF_HELLO=0x10000
OFF_F1=0x20000
OFF_S5=0x40000
OFF_GRAN=0x100000
OFF_KVT=0x200000
OFF_XF=0x200000
OFF_YT=0x400000
HKS=48
OFF_H=0x600000
OFF_P2F=0x90000
OFF_P2=0xC00000
OFF_STAMP=0x1000000
```

```python
import sys, os
from asmlib import *
from layout import *

NAME="interleave_layers__ssm_conv_h3__glu_gated_reglu__prompt_kernel"
CFG=dict(fbpre=1, cg0=30, gbt0=28, xg0=16, w2af='xc', densb=3, qat=1, gbs5=8, ring4=1, clr=3, plan=5, chl=44, cla=9, cdens=3, cslots=2, chc=30, cack=56, rot=1, cm2=70, cm3=120, a0l=14, a0c=14, a1xl=22, dens=5, fl=30, fl0=60, hca=24, hcg=22, g1=4, g2=5, g3=4, dens1=2, gahl=16, gahc=14, hbgap=4, tev=6, tev2=5, dens2=6, gbl=8, gbc=18, gbt=28, gbxl=20, b0hl=80, w2at=30, w2gap=5, w2lead=40, rrest=56, cgap=5, warm=1, stamps=0, stop=None, slow=1, prefetch=1, touch=2, dgather=1, dstage=1, wbl2=0, outsc=0)
for a_ in sys.argv[2:]:
    k,v=a_.split('='); CFG[k]=int(v) if v.lstrip('-').isdigit() else v

sX,sR,sWV,sG,sM,sRH,sCT2,sKH,sCHH,sTAG,sHELLO=4,5,6,7,8,9,10,11,12,13,14
sT0,sT1,sT2,sT3=3,15,60,61
sCNT=62; sSOFF=63
WS,SK_,SV_,SQ_,SH_,SWG,SWU,SWD,SO_,SSK,SD_=16,20,24,28,32,36,40,44,48,52,56
srd=lambda b:f"s[{b}:{b+3}]"
sXW,sHW,sHK,sHS,sXS,sFL,sGR,sS5,sGRl,sS5l=64,65,66,67,68,69,70,71,72,73
sW1W,sWo,sHF,sW2B=74,75,76,77
sPS,sPD,sPF,sW20=56,57,58,59
sCK1,sCK2,sCK3,sQ=20,21,24,25
sCH,sUO,sMB=26,27,0
sFLH=23; sC4,sC3,sM4,sM3=52,53,54,55
sFLG=1
STAMP0=78
Q=[0,32768,65536,98304,131072]
TCP=4160; TCH=4*TCP; L_TOEP=0
L_U=2*TCH; UCH=4608
L_K=L_U+2*UCH; CHP=1056; L_V=L_K+9*CHP
L_CX=L_K
L_YS=0
L_WS=65536; WSL=24576
SLOT=[L_WS+k*WSL for k in range(4)]
L_PP=SLOT[3]
SLOT=SLOT[:3]+[8192,36864,L_PP]
vL=1; vOne=2; vTok=3; vGs=4; vGl=5; vS5s=6; vS5l=7; vXD=8; vHD=9; vHS1=10; vHS2=11; vFX=12; vFH=13
vTAG=14; vR2=15
vXst=[16,24]; vYY=[32,36]
ACC0,ACC1,FR,vA0,vA1,EP,PT=40,64,88,112,113,114,122
vW2,vT2,vWc0=126,127,128
vW1=[129,130,131]; vTa,vTm,vWc1=132,133,134
vLane,vJ,vQ,vYo,vD=135,136,137,138,139
vCg,vCs=124,125
vHa=15
vCXw,vCXo,vCXp,vKV,vGA,vGW,vGT,vFT=160,161,162,163,164,165,166,167
vKD,vUP,vPK,vGD,vGC,vQT=168,172,176,184,192,196
W2V=144; W2A=192
def W1(s,t): b=(s*3+t)*4; return f"a[{b}:{b+3}]"
def W1h(s,t,hh): b=(s*3+t)*4+2*hh; return f"a[{b}:{b+1}]"
def W2(i,t):
    k=(i*2+t)*4
    return f"v[{W2V+k}:{W2V+k+3}]" if k<112 else f"a[{W2A+k-112}:{W2A+k-112+3}]"
def W2h(i,t,hh):
    k=(i*2+t)*4+2*hh
    return f"v[{W2V+k}:{W2V+k+1}]" if k<112 else f"a[{W2A+k-112}:{W2A+k-112+1}]"
V=lambda b,n=4: f"v[{b}:{b+n-1}]"
OOB=0x7FFFFF00
vST=lambda: 140 if CFG.get('trace')=='CV' else 139
POLLMAX=1<<16
def M(text,tok=None): return [mk(l.strip(),tok) for l in text.split('\n') if l.strip()]
BAR=lambda *pre: list(pre)+[mk("s_barrier")]

trace_names=[]; stamp_names=[]; site_names=[]
class G(Asm):
    def __init__(s,tag='',sc=''):
        super().__init__(); s.tag=tag; s.sc=sc; s.ool=[]
    def st(s,name,grp='m'):
        if not CFG['stamps'] or s.tag=='S': return []
        if grp!='*' and not any(c in str(CFG['stamps']) for c in grp): return []
        stamp_names.append(name); i=len(stamp_names)-1
        assert i<20, "too many stamps"
        return M(f"{'s_memtime' if CFG.get('clk') else 's_memrealtime'} s[100:101]\ns_waitcnt lgkmcnt(0)\ns_mov_b32 s{STAMP0+i}, s100")
    def trace(s, items, every, name):
        if s.tag=='S' or CFG.get('trace')!=name: return items
        out=[]; n=0
        for it in items:
            out.append(it)
            if isinstance(it,I) and it.kind=='mfma':
                if n%every==0: out+=s.light(f"{name}+{n}")
                n+=1
        return out+s.light(name+" end")+M("s_nop 15\ns_nop 15\ns_nop 15\ns_nop 15")+s.light(None)+s.light(None)
    def light(s,name):
        k=len(trace_names); trace_names.append(name or "")
        L=[]
        if name: x=mk(f"s_memtime s[{90+2*(k%3)}:{91+2*(k%3)}]"); x.light=1; x.defs=set(); L.append(x)
        if k>=2: L+=M(f"v_writelane_b32 v{vST()}, s{90+2*((k-2)%3)}, {k-2}")
        return L
    def stamp(s,name,grp='m'): s.ext(s.st(name,grp))
    def lr(s,n,*r): LR([i for i in s.L[-n:] if isinstance(i,I)],*r)
    def lw(s,n,*r): LW([i for i in s.L[-n:] if isinstance(i,I)],*r)
    def label(s,p): s.nlab+=1; return f"L{s.tag}_{p}_{s.nlab}"
    def check(s, loads, checks, name):
        R=s.label(name+'r'); L=s.label(name+'l'); B=s.label(name+'b')
        o=Asm(); o.lab(R); o(f"s_mov_b32 s{sCNT}, 0")
        if CFG['stamps'] and s.tag!='S':
            n=len(site_names); site_names.append(name); o(f"s_bitset1_b32 s98, {n}")
        o.lab(L)
        for l in loads: o(l)
        o("s_waitcnt vmcnt(0)")
        for c in checks: o(c)
        o(f"s_cbranch_vccz {B}\ns_add_u32 s{sCNT}, s{sCNT}, 1\ns_cmp_lt_u32 s{sCNT}, {POLLMAX}\ns_cbranch_scc1 {L}\ns_branch {B}")
        s.ool.append(o.L)
        ck=[mk(c) for c in checks]
        return [mk(l,R) for l in loads], [('WVM',R)]+ck[:-1]+[[ck[-1],mk(f"s_cbranch_vccnz {R}"),mk(B+":")]]
    def flat(s, items):
        for it in items:
            if isinstance(it,list): s.ext(it)
            elif isinstance(it,tuple) and it[0] in('AT','GAP','GAPV','SYNC','AFTER','BY','DENS'): pass
            else: s.L.append(it)
    def weave(s, bb, *streams, slots=2, name=None):
        out,rest=weave(bb,streams,slots)
        s.ext(s.trace(out,CFG.get('tev_',4),name) if name else out); s.ext(rest)
        if rest and CFG.get('v'): print("  leftover fillers:",len(rest),[getattr(r,'text',r) for r in rest[:2]])

def entry(a):
    a.stamp("entry","*")
    if CFG["stamps"]: a("s_memtime s[100:101]\ns_waitcnt lgkmcnt(0)\ns_mov_b32 s99, s100\ns_mov_b32 s98, 0")
    a("s_cmp_ge_u32 s2, 256\ns_cbranch_scc1 L_end")
    for b,off in ((SK_,8),(SV_,16),(WS,96),(SSK,24),(SH_,32),(SD_,40),(SQ_,0),(SWG,56),(SWU,64),(SWD,72),(SO_,80)):
        a(f"s_load_dwordx2 s[{b}:{b+1}], s[0:1], {off}")
    a(f"v_lshrrev_b32 v40, 6, v0\nv_and_b32 v{vLane}, 63, v0")
    a(f"s_and_b32 s{sX}, s2, 7\ns_lshr_b32 s{sR}, s2, 3")
    a(f"v_readfirstlane_b32 s{sWV}, v40")
    a(f"v_lshlrev_b32 v{vL}, 4, v{vLane}")
    if CFG['prefetch']:
        a(f"s_getpc_b64 s[{sT2}:{sT2+1}]")
        a("L_pc:")
        a(f"s_lshl_b32 s{sT0}, s{sWV}, 5\ns_add_u32 s{sT0}, s{sT0}, s{sR}\ns_lshl_b32 s{sT0}, s{sT0}, 10")
        a(f"v_add_u32 v42, s{sT0}, v{vL}\nv_min_u32 v42, L_fast_end-L_pc-16, v42")
        a(f"v_mov_b32 v43, s{sT2+1}\nv_add_co_u32 v42, vcc, s{sT2}, v42")
        a(f"v_lshrrev_b32 v48, 3, v{vLane}\nv_and_b32 v49, 7, v{vLane}")
        a("v_addc_co_u32 v43, vcc, 0, v43, vcc")
        a("global_load_dwordx4 v[44:47], v[42:43], off")
    else:
        a(f"v_lshrrev_b32 v48, 3, v{vLane}\nv_and_b32 v49, 7, v{vLane}")
    a(f"v_lshlrev_b32 v49, 4, v49\nv_lshl_add_u32 v{vW2}, v48, 10, v49")
    a(f"s_lshl_b32 s{sT0}, s{sR}, 16\ns_lshl_b32 s{sT1}, s{sX}, 7\ns_add_u32 s{sT0}, s{sT0}, s{sT1}")
    a(f"s_sub_u32 s{sT1}, s{sT0}, 8192\nv_add_u32 v49, s{sT1}, v{vW2}")
    a(f"s_lshl_b32 s{sT1}, s{sWV}, 13\ns_add_u32 s{sT0}, s{sT0}, s{sT1}\nv_add_u32 v48, s{sT0}, v{vW2}")
    a(f"s_mul_i32 s{sT1}, s{sWV}, {CHP}\ns_mov_b32 s{sSOFF}, 32768")
    for b,n in ((SK_,2<<20),(SV_,2<<20),(WS,256<<20),(SSK,4096)):
        a(f"s_mov_b32 s{b+2}, {n}\ns_mov_b32 s{b+3}, 0x20000")
    a(f"v_and_b32 v{vJ}, 15, v{vLane}\nv_lshrrev_b32 v{vQ}, 4, v{vLane}")
    a(f"s_lshl_b32 s{sT0}, s{sX}, 6\ns_lshl_b32 s{sT2}, s{sWV}, 4\ns_add_u32 s{sT0}, s{sT0}, s{sT2}\nv_add_u32 v55, s{sT0}, v{vJ}")
    a(f"v_lshlrev_b32 v78, 3, v55\nv_mov_b32 v50, 0")
    a(f"s_add_u32 m0, s{sT1}, {L_K+CHP}")
    a("s_waitcnt lgkmcnt(0)"); a.stamp("kernarg","f")
    if CFG.get('probe'):
        if CFG['probe']==1: a("s_load_dwordx2 s[96:97], s[0:1], 48\ns_waitcnt lgkmcnt(0)\ns_mov_b32 s98, 0x200000\ns_mov_b32 s99, 0x20000"); S="s[96:99]"; base=0
        else: S=srd(WS); base=CFG['probe']<<24
        a(f"s_lshl_b32 s95, s2, 2\ns_add_u32 s95, s95, s{sWV}\ns_lshl_b32 s95, s95, 11\ns_add_u32 s95, s95, {base}\nv_mov_b32 v60, s95")
        for i in range(16):
            a(f"buffer_load_dword v61, v60, {S}, 0 offen offset:{128*i}\nv_and_b32 v61, 0, v61\nv_add_u32 v60, v60, v61")
    a(f"buffer_load_dwordx4 v48, {srd(SK_)}, 0 offen lds","kv")
    a(f"s_add_u32 m0, s{sT1}, {L_V}");       a(f"buffer_load_dwordx4 v48, {srd(SV_)}, 0 offen lds","kv")
    a(f"s_add_u32 m0, s{sT1}, {L_K+5*CHP}"); a(f"buffer_load_dwordx4 v48, {srd(SK_)}, s{sSOFF} offen lds","kv")
    a(f"s_add_u32 m0, s{sT1}, {L_V+4*CHP}"); a(f"buffer_load_dwordx4 v48, {srd(SV_)}, s{sSOFF} offen lds","kv")
    a(f"s_mov_b32 m0, {L_K}");               a(f"buffer_load_dwordx4 v49, {srd(SK_)}, 0 offen lds","kv")
    a.lw(10,(L_K,L_V+8*CHP))
    a(f"buffer_load_dwordx2 {V(80,2)}, v78, {srd(SSK)}, 0 offen")
    a(f"buffer_load_dword v51, v50, {srd(WS)}, 0 offen sc1")
    a.stamp("kv issued","f")
    for b,n in ((SH_,4096),(SD_,1024),(SQ_,2<<20),(SWG,512*1376*2),(SWU,512*1376*2),(SWD,512*1376*2),(SO_,2<<20)):
        a(f"s_mov_b32 s{b+2}, {n}\ns_mov_b32 s{b+3}, 0x20000")
    a(f"""s_lshr_b32 s{sT0}, s{sR}, 4
        s_lshl_b32 s{sG}, s{sX}, 1
        s_add_u32 s{sG}, s{sG}, s{sT0}
        s_and_b32 s{sM}, s{sR}, 15
        s_lshr_b32 s{sRH}, s{sM}, 3
        s_and_b32 s{sCT2}, s{sM}, 7
        s_lshr_b32 s{sKH}, s{sWV}, 1
        s_and_b32 s{sCHH}, s{sWV}, 1
        s_mov_b32 s{sMB}, 0x100000""")
    a(f"s_cmp_eq_u32 s{sM}, 15\ns_cselect_b32 s{SWG+2}, 0, s{SWG+2}\ns_cselect_b32 s{SWU+2}, 0, s{SWU+2}")
    a(f"s_lshl_b32 s{sT0}, s{sX}, 6\ns_lshl_b32 s{sT1}, s{sR}, 1\ns_add_u32 s{sT0}, s{sT0}, s{sT1}\ns_add_u32 s{sT2}, s{sT0}, s{sKH}")
    a(f"s_lshl_b32 s{sT0}, s{sT2}, 12\ns_add_u32 s{SH_}, s{SH_}, s{sT0}\ns_addc_u32 s{SH_+1}, s{SH_+1}, 0")
    a(f"s_lshl_b32 s{sT0}, s{sCHH}, 11\nv_add_u32 v52, s{sT0}, v{vL}")
    a(f"v_min_u32 v53, 1, v{vLane}\nv_lshlrev_b32 v53, 4, v53\nv_subrev_u32 v53, 32, v53\nv_add_u32 v54, 16, v53")
    a(f"s_lshl_b32 s{sT0}, s{sT2}, 1\nv_mov_b32 v{vD}, s{sT0}")
    a(f"""v_and_b32 v96, 1, v{vQ}
        v_lshlrev_b32 v96, 2, v96
        v_lshrrev_b32 v97, 2, v{vJ}
        v_add_u32 v96, v96, v97
        v_lshlrev_b32 v96, 16, v96
        v_and_b32 v97, 3, v{vJ}
        v_lshl_add_u32 v96, v97, 5, v96
        v_lshrrev_b32 v97, 1, v{vQ}
        v_lshl_add_u32 v96, v97, 4, v96
        s_lshl_b32 s{sT0}, s{sCHH}, 19
        s_lshl_b32 s{sT1}, s{sT2}, 7
        s_add_u32 s{sT0}, s{sT0}, s{sT1}
        s_add_u32 s{sT0}, s{sT0}, {OFF_YT}
        v_add_u32 v{vYo}, s{sT0}, v96
        s_mov_b32 s{sHELLO}, s{sT2}""")
    a(f"v_mov_b32 v{vOne}, {OOB}\nv_cmp_eq_u32 vcc, 0, v{vLane}\nv_cndmask_b32 v{vOne}, v{vOne}, v50, vcc")
    a(f"""s_lshl_b32 s{sT0}, s{sG}, 2
        s_lshl_b32 s{sT1}, s{sRH}, 1
        s_add_u32 s{sT1}, s{sT1}, s{sKH}
        s_add_u32 s{sT0}, s{sT0}, s{sT1}
        s_lshl_b32 s{sT1}, s{sKH}, 1
        s_add_u32 s{sT1}, s{sT1}, s{sRH}""")
    a(f"""s_lshl_b32 s{sGRl}, s{sT0}, 12
        s_add_u32 s{sGRl}, s{sGRl}, {OFF_GRAN}
        s_lshl_b32 s{sS5l}, s{sT0}, 10
        s_add_u32 s{sS5l}, s{sS5l}, {OFF_S5}
        s_lshl_b32 s{sT3}, s{sCT2}, 1
        s_add_u32 s{sT3}, s{sT3}, s{sCHH}""")
    a(f"""s_lshl_b32 s{sGR}, s{sT3}, 8
        s_add_u32 s{sGR}, s{sGR}, s{sGRl}
        s_lshl_b32 s{sS5}, s{sT3}, 2
        s_add_u32 s{sS5}, s{sS5}, s{sS5l}
        s_lshl_b32 s{sXS}, s{sG}, 17
        s_lshl_b32 s{sT1}, s{sT1}, 14
        s_add_u32 s{sXS}, s{sXS}, s{sT1}
        s_lshl_b32 s{sT1}, s{sX}, {1 if CFG['rot'] else 8}
        s_sub_u32 s{sT1}, s{sT3}, s{sT1}
        s_and_b32 s{sT1}, s{sT1}, 15
        s_lshl_b32 s{sT1}, s{sT1}, 10
        s_add_u32 s{sXS}, s{sXS}, s{sT1}
        s_add_u32 s{sXS}, s{sXS}, {OFF_XF}
        s_lshl_b32 s{sT0}, s{sT0}, 14
        s_lshl_b32 s{sT1}, s{sT3}, 6
        s_add_u32 s{sT0}, s{sT0}, s{sT1}""")
    a(f"v_lshlrev_b32 v{vTok}, 10, v{vJ}\nv_lshl_add_u32 v{vTok}, v{vQ}, 4, v{vTok}\nv_add_u32 v{vTok}, s{sT0}, v{vTok}")
    a(f"v_lshlrev_b32 v{vGs}, 4, v{vJ}\nv_lshl_add_u32 v{vGl}, v{vQ}, 10, v{vGs}\nv_lshl_add_u32 v{vGs}, v{vQ}, 2, v{vGs}")
    a(f"v_lshlrev_b32 v{vS5l}, 6, v{vJ}\nv_mov_b32 v{vS5s}, {OOB}\nv_cmp_eq_u32 vcc, 0, v{vQ}\nv_cndmask_b32 v{vS5s}, v{vS5s}, v{vS5l}, vcc")
    a(f"v_lshl_add_u32 v{vS5l}, v{vQ}, 4, v{vS5l}")
    a(f"s_lshl_b32 s{sT0}, s{sX}, 5\ns_add_u32 s{sT0}, s{sT0}, s{sR}\ns_lshl_b32 s{sHF}, s{sT0}, 7\ns_lshl_b32 s{sT0}, s{sWV}, 2\ns_add_u32 s{sHF}, s{sHF}, s{sT0}\ns_add_u32 s{sHF}, s{sHF}, {OFF_HELLO}")
    a(f"""s_lshl_b32 s{sXW}, s{sCHH}, 14
        s_lshl_b32 s{sT0}, s{sKH}, 12
        s_add_u32 s{sXW}, s{sXW}, s{sT0}
        s_lshl_b32 s{sT0}, s{sG}, 17
        s_add_u32 s{sT0}, s{sT0}, s{sXW}
        s_add_u32 s{sT0}, s{sT0}, {OFF_XF}
        v_add_u32 v{vXD}, s{sT0}, v{vL}
        s_lshl_b32 s{sHW}, s{sWV}, 13
        s_mul_i32 s{sHK}, s{sKH}, {3*8192}
        s_lshl_b32 s{sHS}, s{sKH}, 13
        s_add_u32 s{sHS}, s{sHS}, 8192
        s_lshl_b32 s{sT0}, s{sG}, 3
        s_add_u32 s{sT1}, s{sRH}, s{sT0}
        s_mul_i32 s{sT1}, s{sT1}, {HKS}
        s_mul_i32 s{sT3}, s{sKH}, 21
        s_add_u32 s{sT1}, s{sT1}, s{sT3}
        s_lshl_b32 s{sT1}, s{sT1}, 10
        s_add_u32 s{sT1}, s{sT1}, {OFF_H}
        v_add_u32 v{vHD}, s{sT1}, v{vL}""")
    a(f"""s_mul_i32 s{sT0}, s{sT0}, {HKS*1024}
        s_mul_i32 s{sT1}, s{sM}, 12
        s_mul_i32 s{sT3}, s{sWV}, 3
        s_add_u32 s{sT1}, s{sT1}, s{sT3}
        s_lshl_b32 s{sT1}, s{sT1}, 8
        s_add_u32 s{sT0}, s{sT0}, s{sT1}
        s_add_u32 s{sT0}, s{sT0}, {OFF_H}
        s_mov_b32 s{sT1}, {HKS*1024}
        v_lshlrev_b32 v97, 4, v{vJ}
        v_add_u32 v97, s{sT0}, v97
        v_and_b32 v98, 1, v{vQ}
        v_mad_u32_u24 v{vHS1}, v98, s{sT1}, v97
        v_add_u32 v{vHS2}, 512, v{vHS1}
        v_cmp_gt_u32 vcc, 32, v{vLane}
        v_mov_b32 v97, {OOB}
        v_cndmask_b32 v{vHS2}, v97, v{vHS2}, vcc
        v_lshrrev_b32 v98, 1, v{vQ}
        v_lshl_add_u32 v{vHS1}, v98, 8, v{vHS1}
        v_lshlrev_b32 v{vFX}, 2, v{vLane}
        v_min_u32 v{vFH}, 57, v{vLane}
        v_lshlrev_b32 v{vFH}, 2, v{vFH}
        s_lshl_b32 s{sFL}, s{sG}, 9
        s_lshl_b32 s{sFLG}, s{sM}, 2
        s_add_u32 s{sFLG}, s{sFLG}, s{sWV}
        s_lshl_b32 s{sFLG}, s{sFLG}, 2
        s_add_u32 s{sFLG}, s{sFLG}, s{sFL}
        s_nop 0""")
    w_setup(a)
    a(f"""v_mul_u32_u24 v83, {2*CHP}, v{vQ}
        v_bfe_u32 v101, v{vLane}, 2, 2
        v_lshl_add_u32 v83, v101, 7, v83
        v_and_b32 v101, 3, v{vLane}
        v_lshl_add_u32 v83, v101, 3, v83
        s_lshl_b32 s{sT0}, s{sWV}, 5
        v_add_u32 v83, s{sT0}, v83""")
    a(f"v_and_b32 v55, -9, v55\nv_lshlrev_b32 v55, 12, v55\nv_lshl_add_u32 v55, v{vQ}, 5, v55\nv_lshrrev_b32 v101, 3, v{vJ}\nv_lshl_add_u32 v55, v101, 4, v55\ns_lshl_b32 s{sT0}, s{sR}, 7\ns_add_u32 s{sT0}, s{sT0}, {OFF_KVT}\nv_add_u32 v55, s{sT0}, v55")
    a(f"v_lshrrev_b32 v100, 5, v{vLane}\nv_mul_u32_u24 v100, {UCH-512}, v100\nv_add_u32 v100, v100, v{vL}")
    a("v_mov_b32 v104, 0\nv_mov_b32 v105, 0\nv_mov_b32 v106, 0\nv_mov_b32 v107, 0")
    a(f"ds_write_b128 v100, {V(104)} offset:{L_U}"); a.lw(1,(L_U,L_U+512),(L_U+UCH,L_U+UCH+512))
    a(f"""s_lshl_b32 s{sT0}, s{sWV}, 12
        s_add_u32 s{sT1}, s{sT0}, {L_CX}
        v_add_u32 v{vCXw}, s{sT1}, v{vL}
        s_lshl_b32 s{sT2}, s{sCHH}, 11
        v_add_u32 v{vCXo}, s{sT2}, v{vCXw}
        v_xor_b32 v{vCXp}, 4096, v{vL}
        s_xor_b32 s{sT0}, s{sT0}, 4096
        s_add_u32 s{sT0}, s{sT0}, s{sT2}
        s_add_u32 s{sT0}, s{sT0}, {L_CX}
        v_add_u32 v{vCXp}, s{sT0}, v{vL}
        s_lshl_b32 s{sT0}, s{sCHH}, 10
        s_mul_i32 s{sT1}, s{sKH}, {UCH}
        s_add_u32 s{sT0}, s{sT0}, s{sT1}
        s_add_u32 s{sT0}, s{sT0}, {L_U+512+8}
        v_lshlrev_b32 v{vKV}, 5, v{vJ}
        v_lshrrev_b32 v100, 1, v{vQ}
        v_lshl_add_u32 v{vKV}, v100, 4, v{vKV}
        v_and_b32 v100, 1, v{vQ}
        v_lshlrev_b32 v100, 3, v100
        v_sub_u32 v{vKV}, v{vKV}, v100
        v_add_u32 v{vKV}, s{sT0}, v{vKV}
        v_lshrrev_b32 v100, 2, v0
        v_lshlrev_b32 v100, 7, v100
        v_and_b32 v101, 3, v0
        v_lshl_add_u32 v100, v101, 4, v100
        s_lshl_b32 s{sT0}, s{sG}, 16
        s_lshl_b32 s{sT1}, s{sCT2}, 13
        s_add_u32 s{sT0}, s{sT0}, s{sT1}
        s_lshl_b32 s{sT1}, s{sRH}, 6
        s_add_u32 s{sT0}, s{sT0}, s{sT1}
        s_add_u32 s{sT0}, s{sT0}, {OFF_YT}
        v_add_u32 v{vGA}, s{sT0}, v100
        v_lshlrev_b32 v{vGW}, 4, v0
        v_bfe_u32 v100, v{vLane}, 2, 2
        v_lshl_add_u32 v100, v{vQ}, 3, v100
        v_lshlrev_b32 v100, 6, v100
        v_and_b32 v101, 3, v{vLane}
        v_lshl_add_u32 v100, v101, 3, v100
        s_lshl_b32 s{sT0}, s{sCHH}, 11
        s_lshl_b32 s{sT1}, s{sKH}, 5
        s_add_u32 s{sT0}, s{sT0}, s{sT1}
        v_add_u32 v{vGT}, s{sT0}, v100
        v_and_b32 v100, 7, v{vLane}
        v_lshlrev_b32 v100, 7, v100
        v_bfe_u32 v101, v{vLane}, 3, 2
        v_lshl_add_u32 v100, v101, 14, v100
        s_lshl_b32 s{sT0}, s{sFL}, 1
        s_add_u32 s{sT0}, s{sT0}, {OFF_XFLAG}
        v_add_u32 v{vFT}, s{sT0}, v100
        v_and_b32 v100, 31, v{vLane}
        v_lshlrev_b32 v100, 7, v100
        v_cmp_gt_u32 vcc, 32, v{vLane}
        s_lshl_b32 s{sT0}, s{sCT2}, 12
        s_lshl_b32 s{sT1}, s{sX}, 12
        v_mov_b32 v101, s{sT0}
        v_mov_b32 v102, s{sT1}
        v_cndmask_b32 v101, v101, v102, vcc
        v_add_u32 v100, {OFF_HELLO}, v100
        v_add_u32 v{vHa}, v100, v101""")
    ssm_loads(a)
    a(f"""v_lshlrev_b32 v{vCg}, 4, v{vJ}
        v_lshl_add_u32 v{vCg}, v{vQ}, 18, v{vCg}
        v_lshrrev_b32 v{vCs}, 3, v{vLane}
        v_lshlrev_b32 v{vCs}, 16, v{vCs}
        v_and_b32 v100, 7, v{vLane}
        v_lshl_add_u32 v{vCs}, v100, 4, v{vCs}
        s_lshl_b32 s{sT0}, s{sCHH}, 17
        s_lshl_b32 s{sT1}, s{sCT2}, 7
        s_add_u32 s{sT0}, s{sT0}, s{sT1}
        s_add_u32 s{sT0}, s{sT0}, s{sS5l}
        v_add_u32 v{vCs}, s{sT0}, v{vCs}
        v_cmp_gt_u32 vcc, 16, v{vLane}
        v_mov_b32 v100, {OOB}
        v_add_u32 v{vCg}, s{sGR}, v{vCg}
        v_cndmask_b32 v{vCs}, v100, v{vCs}, vcc""")
    if CFG['clr']==0: clears(a)
    a.stamp("setup done","f")

def ssm_loads(a):
    for rho,(va,off) in enumerate(((52,0),(52,1024))):
        d=56+8*rho
        a(f"buffer_load_dwordx4 {V(d)}, v{va}, {srd(SH_)}, 0 offen offset:{off}")
        a(f"buffer_load_dwordx2 {V(d+4,2)}, v{va}, {srd(SH_)}, 0 offen offset:{off+16}")
    a(f"buffer_load_dwordx4 {V(72)}, v53, {srd(SH_)}, 0 offen")
    a(f"buffer_load_dwordx2 {V(76,2)}, v54, {srd(SH_)}, 0 offen")
    a(f"buffer_load_ushort v{vD}, v{vD}, {srd(SD_)}, 0 offen")

def clears(a):
    a("v_mov_b32 v112, -1\nv_mov_b32 v113, -1\nv_mov_b32 v114, -1\nv_mov_b32 v115, -1")
    a(f"""buffer_store_dwordx4 {V(112)}, v{vYo}, {srd(WS)}, 0 offen sc1
        buffer_store_dwordx4 {V(112)}, v{vYo}, {srd(WS)}, s{sMB} offen sc1
        buffer_store_dwordx4 {V(112)}, v{vCg}, {srd(WS)}, 0 offen sc1
        buffer_store_dwordx4 {V(112)}, v{vCs}, {srd(WS)}, 0 offen sc1""")

def w_setup(a):
    lane,j,q=vLane,vJ,vQ
    for b in range(3):
        a(f"v_add_u32 v100, {64*b}, v{lane}\nv_mul_u32_u24 v101, 43691, v100\nv_lshrrev_b32 v101, 19, v101")
        a(f"v_mul_u32_u24 v102, 12, v101\nv_sub_u32 v100, v100, v102\nv_lshlrev_b32 v100, 4, v100")
        a(f"v_mul_u32_u24 v101, 2752, v101\nv_add_u32 v{vW1[b]}, v100, v101")
    a(f"s_mul_i32 s{sT0}, s{sWV}, {16*2752}\ns_mul_i32 s{sT1}, s{sM}, 192\ns_add_u32 s{sT0}, s{sT0}, s{sT1}")
    for b in range(3):
        a(f"v_add_u32 v{vW1[b]}, s{sT0}, v{vW1[b]}")
        if b: a(f"v_subrev_u32 v{vW1[b]}, {1024*b}, v{vW1[b]}")
    a(f"""v_bfe_u32 v100, v{lane}, 2, 2
        v_lshl_add_u32 v100, v{q}, 3, v100
        v_and_b32 v101, 3, v{lane}
        v_mul_u32_u24 v102, 192, v100
        s_mul_i32 s{sT0}, s{sWV}, 48
        v_add_u32 v102, s{sT0}, v102
        v_lshl_add_u32 v{vTa}, v101, 3, v102
        v_and_b32 v103, 1, v101
        v_mul_u32_u24 v103, 12288, v103
        v_add_u32 v102, v102, v103
        v_lshrrev_b32 v103, 1, v101
        v_lshl_add_u32 v102, v103, 3, v102
        v_add_u32 v{vTm}, 32, v102
        v_lshlrev_b32 v102, 7, v100
        v_lshl_add_u32 v102, v101, 4, v102
        s_lshl_b32 s{sT1}, s{sWV}, 12
        s_add_u32 s{sT1}, s{sT1}, {L_PP}
        v_add_u32 v{vT2}, s{sT1}, v102
        s_mul_i32 s{sW1W}, s{sWV}, 3072""")

def c_dma(n, slot):
    if CFG.get('now1'): return []
    L=M(f"s_add_u32 s{sWo}, s{sX}, {n}\ns_and_b32 s{sWo}, s{sWo}, 7\ns_mul_i32 s{sWo}, s{sWo}, {64*2752}") if CFG['rot'] else M(f"s_mov_b32 s{sWo}, {n*64*2752}")
    for mat,S in ((0,SWG),(1,SWU)):
        L+=M(f"s_add_u32 m0, s{sW1W}, {slot+mat*12288}")
        for b in range(3): L+=M(f"buffer_load_dwordx4 v{vW1[b]}, {srd(S)}, s{sWo} offen offset:{1024*b} lds",f"c{n}")
    return LW(L,(slot,slot+WSL))
def c_read(n, slot):
    if CFG.get('now1'): return []
    L=M(f"v_add_u32 v{vWc0}, {slot}, v{vTa}\nv_add_u32 v{vWc1}, {slot}, v{vTm}")
    for sp in range(2):
        s=2*n+sp
        for hh in range(2):
            o=sp*6144+hh*768
            L+=M(f"""ds_read_b64_tr_b16 {W1h(s,0,hh)}, v{vWc0} offset:{o}
                     ds_read_b64_tr_b16 {W1h(s,1,hh)}, v{vWc0} offset:{o+12288}
                     ds_read_b64_tr_b16 {W1h(s,2,hh)}, v{vWc1} offset:{o}""",f"cr{n}")
    return LR(L,(slot,slot+WSL))
def pp_setup():
    return M(f"""s_lshl_b32 s{sT0}, s{sWV}, 8
        s_add_u32 s{sT0}, s{sT0}, s2
        s_mul_i32 s{sT1}, s{sT0}, 1525
        s_lshr_b32 s{sT1}, s{sT1}, 16
        s_mul_i32 s{sT2}, s{sT1}, 43
        s_sub_u32 s{sT2}, s{sT0}, s{sT2}
        s_lshl_b32 s{sPS}, s{sT2}, 15
        s_lshl_b32 s{sT3}, s{sT1}, 7
        s_add_u32 s{sPS}, s{sPS}, s{sT3}
        s_mul_i32 s{sPD}, s{sT1}, 86
        s_add_u32 s{sPD}, s{sPD}, s{sT2}
        s_lshl_b32 s{sPD}, s{sPD}, 11
        s_add_u32 s{sPD}, s{sPD}, {OFF_P2}
        s_lshl_b32 s{sPF}, s{sT0}, 7
        s_add_u32 s{sPF}, s{sPF}, {OFF_P2F}
        s_cmp_lt_u32 s{sT0}, 344
        s_cselect_b32 s{sPS}, s{sPS}, {OOB}
        s_cselect_b32 s{sPD}, s{sPD}, {OOB}
        s_cselect_b32 s{sPF}, s{sPF}, {OOB}
        s_lshl_b32 s{sT0}, s{sCT2}, 1
        s_add_u32 s{sT0}, s{sT0}, s{sCHH}
        s_mul_i32 s{sT0}, s{sT0}, 43
        s_mul_i32 s{sT1}, s{sKH}, 21
        s_add_u32 s{sT0}, s{sT0}, s{sT1}
        s_lshl_b32 s{sT0}, s{sT0}, 11
        s_add_u32 s{sW2B}, s{sT0}, {OFF_P2}
        s_cmp_eq_u32 s{sKH}, 0
        s_cselect_b32 s{sW20}, s{sW2B}, {OOB}""")
def pp_load():
    L=M(f"s_lshl_b32 s{sT3}, s{sWV}, 12")
    for r in range(4):
        L+=M(f"s_add_u32 m0, s{sT3}, {L_PP+1024*r}\ns_add_u32 s{sWo}, s{sPS}, {8192*r}")
        L+=M(f"buffer_load_dwordx4 v{vW2}, {srd(SWD)}, s{sWo} offen lds","pp")
    for x in L: x.priv=1
    return LW(L,(L_PP,L_PP+16384))
def pp_pack():
    L=[('WVM','pp')]
    for c in range(2):
        for t in range(2):
            for hh in range(2): L+=LR(M(f"ds_read_b64_tr_b16 {V(W2V+8*c+4*t+2*hh,2)}, v{vT2} offset:{hh*512+64*c+8*t}"),(L_PP,L_PP+16384))
    for x in L[1:]: x.priv=1
    S=[]
    for c in range(2):
        S+=M(f"s_add_u32 s{sT2}, s{sPD}, {c*43*2048}")
        for t in range(2): S+=M(f"buffer_store_dwordx4 {V(W2V+8*c+4*t)}, v{vL}, {srd(WS)}, s{sT2} offen offset:{1024*t} sc1","pps")
    return L,S
def w2_loads():
    L=[]
    for i in range(22):
        so=sW20 if i==0 else (sW2B if i==1 else sPS)
        if i>=2 and i%2==0: L+=M(f"s_add_u32 s{sPS}, s{sW2B}, {i*2048}")
        for t in range(2): L+=M(f"buffer_load_dwordx4 {W2(i,t)}, v{vL}, {srd(WS)}, s{so} offen offset:{(i&1)*2048+t*1024} sc1")
    return L
W2Q=[]
def w2_take(n):
    out=[]
    while W2Q and n>0:
        x=W2Q.pop(0); out.append(x)
        if x.kind=='vmem': n-=1
    return out

PLANS={
 0:dict(),
 1:dict(FL="i0", T2="i1", CV=[("a",20,"r0"),("d",40,"i2"),("a",84,"w1 b r1"),("d",100,"i3@0")], YS="i4@5", YA="w3 b r2 r3", GL="i5@1 w4 l b r4", ST="i6@2", PEND=[5,6], REST=["7@0"]),
 3:dict(FL="i0", T2="i1 w0 b r0", CV=[("d",2,"i2"),("d",68,"i3@0")], CE="w2", YS="r1 r2 i4@3", F1="r3", F2="i5@1", FB="r4", XD="", PEND=[5], REST=["6@2","7@0"]),
 4:dict(FL="i0", T2="i1 w0 b r0", CV=[("d",2,"i2"),("d",50,"i3@0")], CE="w2", YS="i4@3 r1 r2", F1="r3", F2="i5@1", FX="i6@2", FB="r4", PEND=[5,6], REST=["7@0"]),
 5:dict(T1="i0", FL="", T2="i1 w0 b r0", CV=[("d",2,"i2"),("d",46,"i3@0"),("a",60,"w1 b r1"),("a",84,"L1 b"),("d",92,"i4@1")], CE="w3", YS="i5@3 r2 r3", SA="w4", F1="r4", F2="i6@2", FX="i7@0", FB="r5", PEND=[6,7]),
 2:dict(FL="i0", T2="i1", CV=[("a",20,"r0"),("d",30,"i2"),("a",70,"w1 b r1"),("d",80,"i3@0"),("a",124,"w2 b r2")], YS="i4@5 i5@1", YA="w4 b r3 r4", GL="i6@2 w5 l b r5", ST="i7@0", PEND=[6,7], FA="p4", FB="p4", XD="p4"),
 9:dict(ST="i0 i1 "+" ".join(f"w{n} l b "+(f"i{n+2} " if n+2<8 else "")+f"r{n}" for n in range(8))+" l b"),
}
slot_of={}
def wops(txt):
    L=[]
    for op in txt.split():
        at=None
        if '@' in op: op,at=op.split('@'); at=int(at)
        k=int(op[1:]) if len(op)>1 else None
        if op[0]=='i': slot_of[k]=SLOT[at if at is not None else k%3]; L+=c_dma(k,slot_of[k])
        elif op[0]=='r': L+=c_read(k,slot_of[k])
        elif op[0]=='w': L.append(('WVM',f"c{k}"))
        elif op[0]=='l': L+=M("s_waitcnt lgkmcnt(0)")
        elif op[0]=='L': L.append(('WLG',f"cr{k}"))
        elif op[0]=='b': L+=M("s_barrier")
        elif op[0]=='p': L+=w2_take(k)
    return L
def PL(): return eval(CFG['plan']) if isinstance(CFG['plan'],str) else PLANS[CFG['plan']]
def Wp(a,point): a.flat(wops(PL().get(point,"")))

def toeplitz(a):
    a(f"s_mul_i32 s{sT0}, s{sKH}, {TCH}\ns_add_u32 s{sT0}, s{sT0}, {L_TOEP+32}")
    a(f"v_add_u32 v52, s{sT0}, v52\nv_add_u32 v53, s{sT0}, v53")
    for rho,(va,off) in enumerate(((52,0),(52,1024),(53,0))):
        d=56+8*rho; t=100+12*(rho%2)
        a(f"ds_write_b128 v{va}, {V(d)} offset:{off}")
        for i in range(4): a(f"v_alignbit_b32 v{t+i}, v{d+i+1}, v{d+i}, 16")
        a(f"ds_write_b128 v{va}, {V(t)} offset:{off+TCP}")
        for i in range(4): a(f"v_mov_b32 v{t+4+i}, v{d+i+1}")
        a(f"ds_write_b128 v{va}, {V(t+4)} offset:{off+2*TCP}")
        for i in range(4): a(f"v_alignbit_b32 v{t+8+i}, v{d+i+2}, v{d+i+1}, 16")
        a(f"ds_write_b128 v{va}, {V(t+8)} offset:{off+3*TCP}"); a.lw(16,(L_TOEP,L_TOEP+2*TCH))

def p0(a):
    a.waitvm("kv"); a("s_barrier")
    a.stamp("kv landed","f")
    KR=84; VR=94
    for i in range(5):
        R=4+4*i; a(f"ds_read_b64_tr_b16 {V(KR+2*i,2)}, v83 offset:{L_K+(R>>3)*CHP+(R&7)*128}")
    for i in range(4):
        R=4*i; a(f"ds_read_b64_tr_b16 {V(VR+2*i,2)}, v83 offset:{L_V+(R>>3)*CHP+(R&7)*128}")
    a.lr(9,(L_K,L_V+8*CHP))
    a("v_lshlrev_b32 v40, 16, v80\nv_and_b32 v41, 0xffff0000, v80\nv_lshlrev_b32 v42, 16, v81\nv_and_b32 v43, 0xffff0000, v81")
    K=lambda t: 108+t-2
    for i in range(10):
        if i>0: a(f"v_lshlrev_b32 v{102+2*i}, 16, v{KR+i}")
        a(f"v_and_b32 v{103+2*i}, 0xffff0000, v{KR+i}")
    O=16
    for t in range(16):
        a(f"v_mul_f32 v{O+t}, v40, v{K(t)}")
        a(f"v_fmac_f32 v{O+t}, v41, v{K(t-1)}")
        a(f"v_fmac_f32 v{O+t}, v42, v{K(t-2)}")
        a(f"v_fmac_f32 v{O+t}, v43, v{K(t-3)}")
    for i in range(8):
        a(f"v_lshlrev_b32 v102, 16, v{VR+i}\nv_and_b32 v103, 0xffff0000, v{VR+i}")
        a(f"v_mul_f32 v{O+2*i}, v{O+2*i}, v102\nv_mul_f32 v{O+1+2*i}, v{O+1+2*i}, v103")
    for o in range(2):
        for d in range(4): a(f"v_cvt_pk_bf16_f32 v{KR+4*o+d}, v{O+8*o+7-2*d}, v{O+8*o+6-2*d}")
    for d in range(4): a(f"v_mov_b32 v{102+d}, v{KR+4+d}")
    for d in range(4): a(f"v_mov_b32_dpp v{KR+4+d}, v{KR+d} row_ror:8 row_mask:0xf bank_mask:0x3")
    for d in range(4): a(f"v_mov_b32_dpp v{KR+d}, v{102+d} row_ror:8 row_mask:0xf bank_mask:0xc")
    a(f"s_mov_b32 s{sT0}, 32768")
    a(f"buffer_store_dwordx4 {V(KR)}, v55, {srd(WS)}, 0 offen sc1\nbuffer_store_dwordx4 {V(KR+4)}, v55, {srd(WS)}, s{sT0} offen sc1","kvs")
    a.stamp("p0 computed","f")
    if CFG['clr']==1: clears(a)
    Wp(a,'T1')
    a(f"s_mov_b32 s{sCH}, s{sHELLO}\ns_getreg_b32 s{sHELLO}, hwreg(HW_REG_XCC_ID, 0, 4)")
    a(f"v_readfirstlane_b32 s{sTAG}, v51")
    a(f"s_add_u32 s{sTAG}, s{sTAG}, 0x9E3779B0\ns_and_b32 s{sTAG}, s{sTAG}, 0xFFFFFFF0\ns_and_b32 s{sHELLO}, s{sHELLO}, 15\ns_or_b32 s{sHELLO}, s{sHELLO}, s{sTAG}")
    a(f"v_mov_b32 v{vTAG}, s{sTAG}\nv_mov_b32 v98, s{sHELLO}")
    a.ext(pp_setup())
    a(f"""s_add_u32 s{sFLH}, s{sFLG}, s{sFL}
        s_lshl_b32 s{sC4}, s{sCHH}, 12
        s_mul_i32 s{sC3}, s{sCHH}, 3072
        s_lshl_b32 s{sM4}, s{sKH}, 14
        s_add_u32 s{sM3}, s{sM4}, s{sC3}
        s_add_u32 s{sM4}, s{sM4}, s{sC4}""")
    a(f"s_lshl_b32 s{sT0}, s{sX}, 2\ns_add_u32 s{sT1}, s{sT0}, s{sWV}\ns_lshl_b32 s{sT1}, s{sT1}, 5\ns_add_u32 s{sT1}, s{sT1}, s{sR}\ns_lshl_b32 s{sT1}, s{sT1}, 7\ns_add_u32 s{sT1}, s{sT1}, {OFF_F1}")
    a(f"s_lshr_b32 s{sCK1}, s{sR}, 3\ns_add_u32 s{sCK1}, s{sCK1}, s{sT0}\ns_lshl_b32 s{sCK1}, s{sCK1}, 12\ns_add_u32 s{sCK1}, s{sCK1}, {OFF_F1}")
    a(f"v_and_b32 v97, 31, v{vLane}\nv_lshlrev_b32 v97, 7, v97")
    a.waitvm("kvs")
    a(f"buffer_store_dword v{vTAG}, v{vOne}, {srd(WS)}, s{sT1} offen sc1")
    if CFG['clr']==0: a(f"buffer_store_dword v98, v{vOne}, {srd(WS)}, s{sHF} offen sc1")
    a.stamp("kvT published","f")
    if CFG['clr']==3: clears(a)
    if CFG['qat']==0: a(f"buffer_load_dwordx4 {V(vQT)}, v{vTok}, {srd(SQ_)}, 0 offen\nbuffer_load_dwordx4 {V(vQT+4)}, v{vTok}, {srd(SQ_)}, s{sMB} offen")
    Wp(a,'FL')
    toeplitz(a)
    a(f"""s_lshl_b32 s{sT0}, s{sCH}, 12
        s_lshl_b32 s{sT1}, s{sCHH}, 11
        s_add_u32 s{sT0}, s{sT0}, s{sT1}
        s_add_u32 s{sT0}, s{sT0}, {OFF_KVT}
        s_mul_i32 s{sUO}, s{sKH}, {UCH}
        s_add_u32 s{sT1}, s{sT1}, s{sUO}""")
    a.stamp("toeplitz","f")
    ld,ck=a.check([f"buffer_load_dword v99, v97, {srd(WS)}, s{sCK1} offen sc1"],[f"v_cmp_ne_u32 vcc, s{sTAG}, v99"],"f1")
    a.flat(ld)
    a(f"""s_lshl_b32 s{sT3}, s{sCHH}, 8
        s_sub_u32 s{sT2}, s{sUO}, s{sT3}
        s_add_u32 s{sT2}, s{sT2}, {L_U+480-192}
        v_lshlrev_b32 v141, 5, v{vJ}
        v_lshl_add_u32 v141, v{vQ}, 4, v141
        v_add_u32 v141, s{sT2}, v141
        v_add_u32 v142, 1, v{vJ}
        v_and_b32 v143, 3, v142
        v_mul_u32_u24 v143, {TCP}, v143
        v_lshrrev_b32 v142, 2, v142
        v_lshl_add_u32 v142, v142, 3, v143
        v_lshlrev_b32 v143, 4, v{vQ}
        v_sub_u32 v142, v142, v143
        s_mul_i32 s{sT2}, s{sKH}, {TCH}
        s_add_u32 s{sT2}, s{sT2}, s{sT3}
        s_add_u32 s{sT2}, s{sT2}, {L_TOEP+48}
        v_add_u32 v142, s{sT2}, v142
        s_add_u32 m0, s{sT1}, {L_U+512}""")
    a.flat(ck)
    a.stamp("f1 seen","f")
    a(f"buffer_load_dwordx4 v{vL}, {srd(WS)}, s{sT0} offen sc1 lds","u")
    a(f"buffer_load_dwordx4 v{vL}, {srd(WS)}, s{sT0} offen offset:1024 sc1 lds","u")
    a.lw(2,(L_U+512,L_U+UCH),(L_U+UCH+512,L_U+2*UCH))
    if CFG['clr'] in(1,3): a(f"buffer_store_dword v98, v{vOne}, {srd(WS)}, s{sHF} offen sc1")
    Wp(a,'T2')
    a(f"v_lshlrev_b32 v{vD}, 16, v{vD}")
    a.waitvm("u"); a("s_waitcnt lgkmcnt(0)\ns_barrier")
    a.stamp("U landed","f")

def conv_backbone():
    ACC=40; GR=72; Ureg=[16,20,24,28,32,36,104,108]
    seq=[]
    for it in range(4):
        o=4*(it&1)
        for e in range(4):
            for w in range(3-e,-1,-1): seq.append((w+e,o+e,o+w,('G',e,it,1),('U',w,it,1),it==0 and e==0))
    n1=len(seq)
    for it in range(4):
        pairs=[(e,w) for e in range(8) for w in range(7-e,max(0,4-e)-1,-1)]
        if it==0: pairs=[p for p in pairs if p[0]<4 and p[1]<4]+[p for p in pairs if not(p[0]<4 and p[1]<4)]
        seen=set()
        for e,w in pairs:
            seq.append((w+e,e,w,('G',e,it,2),('U',w,it,2),it==0 and (w+e) not in seen)); seen.add(w+e)
    reads={}; lastuse={}
    for n,(c,g,u,gid,uid,f) in enumerate(seq):
        for ph,i in ((('G',g),gid),(('U',u),uid)):
            if i not in reads: reads[i]=dict(ph=ph,need=n,earliest=lastuse.get(ph,-1))
            lastuse[ph]=n
    def emit(i):
        kind,k,it,_=i; ph=reads[i]['ph'][1]
        if kind=='U': return [LR(mk(f"ds_read_b128 {V(Ureg[ph])}, v141 offset:{512*k+192-64*it}"),(L_U,L_U+2*UCH))]
        return LR([mk(f"ds_read_b64 {V(GR+4*ph,2)}, v142 offset:{512*k+64*it}"),mk(f"ds_read_b64 {V(GR+4*ph+2,2)}, v142 offset:{512*k+64*it+8}")],(L_TOEP,L_TOEP+2*TCH))
    todo=[]
    for i in sorted(reads,key=lambda i:reads[i]['need']):
        for x in emit(i): todo.append((reads[i]['earliest'],reads[i]['need'],x))
    bb=[x for e,n,x in todo if n<4]; todo=[t for t in todo if t[1]>=4]
    for n,(c,g,u,gid,uid,f) in enumerate(seq):
        bb.append(mk(f"v_mfma_f32_16x16x32_bf16 {V(ACC+4*c)}, {V(GR+4*g)}, {V(Ureg[u])}, {'0' if f else V(ACC+4*c)}"))
        k=0
        while True:
            cand=[t for t in todo if t[0]<=n]
            if not cand: break
            t=cand[0]
            if k>=1 and not(k<2 and t[1]-n<=CFG['cla']) and not t[1]-n<=2: break
            bb.append(t[2]); todo.remove(t); k+=1
    assert not todo
    return bb,n1

def conv_epi(st):
    ACC=40+16*st; P=vPK+4*st; R=(L_CX,L_CX+16384)
    W=LW([mk(f"ds_write_b128 v{vCXw}, {V(ACC+4*k)} offset:{1024*k}",f"cx{st}") for k in range(4)],R)
    K=LR([mk(f"ds_read_b64 {V(vKD+2*k,2)}, v{vKV} offset:{2048*st+512*k}") for k in range(2)],(L_U,L_U+2*UCH))
    L=[]
    for k in range(2): L+=LR(M(f"ds_read_b128 {V(ACC+4*k)}, v{vCXo} offset:{1024*k}\nds_read_b128 {V(ACC+8+4*k)}, v{vCXp} offset:{1024*k}",f"cy{st}"),R)
    for k in range(2):
        A=ACC+4*k
        L+=M(f"v_and_b32 v{vUP}, 0xffff0000, v{vKD+1+2*k}\nv_lshlrev_b32 v{vUP+1}, 16, v{vKD+1+2*k}\nv_and_b32 v{vUP+2}, 0xffff0000, v{vKD+2*k}\nv_lshlrev_b32 v{vUP+3}, 16, v{vKD+2*k}")
        for r in range(4): L+=M(f"v_fmac_f32 v{A+r}, v{vD}, v{vUP+r}")
        for r in range(4): L+=M(f"v_add_f32 v{A+r}, v{A+r}, v{A+8+r}")
        L+=M(f"v_cvt_pk_bf16_f32 v{P+2*k}, v{A}, v{A+1}\nv_cvt_pk_bf16_f32 v{P+1+2*k}, v{A+2}, v{A+3}")
    L+=M(f"s_nop 0\nv_permlane16_swap_b32 v{P}, v{P+2}\nv_permlane16_swap_b32 v{P+1}, v{P+3}")
    L+=M(f"buffer_store_dwordx4 {V(P)}, v{vYo}, {srd(WS)}, {'0' if st==0 else 's%d'%sMB} offen sc1",f"yt{st}")
    return W+K,L

def y_check(a,mu):
    D=vGD+4*mu
    return a.check([f"buffer_load_dwordx4 {V(D)}, v{vGA}, {srd(WS)}, {'0' if mu==0 else 's%d'%sMB} offen sc1"],
         [f"v_max3_u32 v{vGC}, v{D}, v{D+1}, v{D+2}",f"v_max_u32 v{vGC}, v{vGC}, v{D+3}",f"v_cmp_eq_u32 vcc, -1, v{vGC}"],"yt")
def y_stage(a,mu,mid=[]):
    a(f"ds_write_b128 v{vGW}, {V(vGD+4*mu)} offset:{L_YS+4096*mu}"); a.lw(1,(L_YS+4096*mu,L_YS+4096*mu+4096))
    a.flat(mid)
    a("s_waitcnt lgkmcnt(0)\ns_barrier")
    for hh in range(2):
        a(f"ds_read_b64_tr_b16 {V(vYY[mu]+2*hh,2)}, v{vGT} offset:{L_YS+4096*mu+256*hh}")
        a.lr(1,(L_YS+4096*mu,L_YS+4096*mu+4096))

def conv(a):
    C=CFG
    bb,n1=conv_backbone()
    qld=M(f"""buffer_load_dwordx4 {V(vQT)}, v{vTok}, {srd(SQ_)}, 0 offen
        buffer_load_dwordx4 {V(vQT+4)}, v{vTok}, {srd(SQ_)}, s{sMB} offen
        buffer_load_dword v{vCg}, v{vCg}, {srd(WS)}, 0 offen sc1
        buffer_load_dword v{vCs}, v{vCs}, {srd(WS)}, 0 offen sc1
        buffer_load_dword v{vFT}, v{vFT}, {srd(WS)}, 0 offen sc1""")
    hl,hc=a.check([f"buffer_load_dwordx4 {V(112)}, v{vHa}, {srd(WS)}, 0 offen sc1"],
         [f"v_xor_b32 v113, s{sTAG}, v113",f"v_xor_b32 v114, s{sTAG}, v114",f"v_xor_b32 v115, s{sTAG}, v115",
          "v_or3_b32 v113, v113, v114, v115",f"v_xor_b32 v114, s{sTAG}, v112","v_or_b32 v113, v113, v114","v_cmp_lt_u32 vcc, 15, v113"],"h2")
    hc+=[M(f"v_cmp_ne_u32 vcc, s{sHELLO}, v112\ns_nop 0\ns_mov_b32 s{sHELLO}, vcc_lo")]
    pk,ps=pp_pack()
    dmas=paced(qld[:2],3) if C['qat']==1 else []; fill=[]
    for kind,at,ops in PL().get('CV',[]):
        it=wops(ops)
        if kind=='d': dmas+=[('AT',at)]+paced(it,C['cgap'])
        else:
            k=[i for i,x in enumerate(it) if isinstance(x,I) and x.op=='s_barrier']
            if k: it=[it[:k[0]+1]]+it[k[0]+1:]
            fill+=[('AT',at)]+it
    w0,e0=conv_epi(0)
    gl,a.gcA=y_check(a,0)
    crit=[('AT',n1+2),('DENS',C['cdens'])]+w0+[('GAP',3),[('WLG','cx0'),mk("s_barrier")]]+e0[:-1]+[('AFTER','hl')]+e0[-1:]+[('DENS',0),('SYNC','y0'),('GAP',C['chc'])]+hc \
        +[[('WLG','cy0'),mk("s_barrier")],('AFTER','y0',C['cack']),('WVM','yt0')]+gl+[('SYNC','g0')]
    third=[('AT',C['chl'])]+hl+[('SYNC','hl'),('AFTER','g0'),('AFTER','dd')]+paced((qld[:2] if C['qat']==2 else [])+pp_load()+qld[2:],2)
    a.weave(bb,crit,dmas+[('SYNC','dd')],fill,third,slots=C['cslots'],name='CV')
    a.stamp("conv mfma done","f")
    w1,e1=conv_epi(1)
    Wp(a,'CE')
    a.flat(w1); a("s_waitcnt lgkmcnt(0)\ns_barrier"); a.flat(e1)
    if CFG.get('trace')=='CV': a("v_mov_b32 v139, v140")
    a.stamp("yT stored","f")
    Wp(a,'YS')
    for mu in range(2):
        for i in range(4):
            a(f"v_lshlrev_b32 v{vXst[mu]+2*i}, 16, v{vQT+4*mu+i}\nv_and_b32 v{vXst[mu]+2*i+1}, 0xffff0000, v{vQT+4*mu+i}")
    for mu in range(2): a.flat(fin1a(mu))
    Wp(a,'YA')
    a.flat(a.gcA)
    a.pk=(pk,ps)
    a.stamp("yA gathered","f")
    y_stage(a,0,wops(PL().get('SA',"")))
    Wp(a,'ST')
    if CFG['slow']==2: a("s_branch L_slow")
    elif CFG['slow']: a(f"s_cmp_lg_u32 s{sHELLO}, 0\ns_cbranch_scc1 L_slow")

def unpackY(mu,T):
    L=[]
    for i in range(4): L+=M(f"v_lshlrev_b32 v{T+2*i}, 16, v{vYY[mu]+i}\nv_and_b32 v{T+2*i+1}, 0xffff0000, v{vYY[mu]+i}")
    return L
def treduce(s0,s1,s2,s3,gap=[]):
    return M(f"v_permlane32_swap_b32 v{s0}, v{s2}\nv_permlane32_swap_b32 v{s1}, v{s3}\nv_add_f32 v{s0}, v{s0}, v{s2}\nv_add_f32 v{s1}, v{s1}, v{s3}")+gap+M(f"v_permlane16_swap_b32 v{s0}, v{s1}\nv_add_f32 v{s0}, v{s0}, v{s1}")

SX=[104,106]
def fin1a(mu,S=None):
    X=vXst[mu]; S=SX[mu] if S is None else S
    L=M(f"v_add_f32 v{S}, v{X}, v{X+1}\nv_mul_f32 v{S+1}, v{X}, v{X}")
    for e in range(1,8):
        if e>1: L+=M(f"v_add_f32 v{S}, v{S}, v{X+e}")
        L+=M(f"v_fmac_f32 v{S+1}, v{X+e}, v{X+e}")
    return L
def fin1(a, layer, mu, T, unpacked=False):
    X=vXst[mu]; L=[] if unpacked else unpackY(mu,T); S=T+8
    s0=SX[mu] if layer==0 else S
    A=[] if layer==0 else fin1a(mu,S)
    Bq=M(f"v_mul_f32 v{S+2}, v{X}, v{T}\nv_add_f32 v{S+3}, v{T}, v{T+1}")
    for e in range(1,8):
        Bq+=M(f"v_fmac_f32 v{S+2}, v{X+e}, v{T+e}")
        if e>1: Bq+=M(f"v_add_f32 v{S+3}, v{S+3}, v{T+e}")
    while A or Bq:
        if A: L.append(A.pop(0))
        if Bq: L.append(Bq.pop(0))
    L+=treduce(s0,s0+1,S+2,S+3,M(f"s_add_u32 s{sT0}, s{sGR}, {(layer*2+mu)*262144}"))
    L+=M(f"buffer_store_dword v{s0}, v{vGs}, {srd(WS)}, s{sT0} offen{a.sc}")
    return L

def fin2(a, layer, mu, T):
    X=vXst[mu]; Gd=T; Y=T+16
    ld,ck=a.check([f"buffer_load_dwordx4 {V(Gd+4*i)}, v{vGl}, {srd(WS)}, s{sCK2} offen offset:{256*i} sc1" for i in range(4)],
         [f"v_max3_u32 v{PT}, v{Gd}, v{Gd+1}, v{Gd+2}"]+[f"v_max3_u32 v{PT}, v{PT}, v{Gd+3+2*i}, v{Gd+4+2*i}" for i in range(6)]+[f"v_max_u32 v{PT}, v{PT}, v{Gd+15}",f"v_cmp_eq_u32 vcc, -1, v{PT}"],"gr")
    ld=M(f"s_add_u32 s{sCK2}, s{sGRl}, {(layer*2+mu)*262144}")+ld+unpackY(mu,Y)
    L=list(ck)
    for k in range(4): L+=M(f"v_add_f32 v{Gd+k}, v{Gd+k}, v{Gd+4+k}\nv_add_f32 v{Gd+8+k}, v{Gd+8+k}, v{Gd+12+k}")
    for k in (0,2,1,3): L+=M(f"v_add_f32 v{Gd+k}, v{Gd+k}, v{Gd+8+k}")
    L+=treduce(Gd,Gd+1,Gd+2,Gd+3)
    A,B,C,D=Gd,Gd+1,Gd+2,Gd+3
    L+=M(f"v_mov_b32 v{B}, v{A}\nv_permlane16_swap_b32 v{A}, v{B}\nv_mov_b32 v{C}, v{A}\nv_mov_b32 v{D}, v{B}\nv_permlane32_swap_b32 v{A}, v{C}\nv_permlane32_swap_b32 v{B}, v{D}")
    inv="0x3b000000"
    L+=M(f"""v_mul_f32 v{A}, {inv}, v{A}
        v_mul_f32 v{B}, {inv}, v{B}
        v_fma_f32 v{B}, -v{A}, v{A}, v{B}
        v_max_f32 v{B}, 0, v{B}
        v_add_f32 v{B}, 0x3727c5ac, v{B}
        v_rsq_f32 v{B}, v{B}
        v_fma_f32 v{C}, -v{A}, v{D}, v{C}
        v_mul_f32 v{C}, {inv}, v{C}
        v_fma_f32 v{C}, v{B}, v{C}, v{A}
        v_mul_f32 v{A}, v{A}, v{B}""")
    for e in range(8): L+=M(f"v_fma_f32 v{Gd+4+e}, v{X+e}, v{B}, -v{A}")
    for e in range(8): L+=M(f"v_fmac_f32 v{X+e}, v{Gd+4+e}, v{Y+e}")
    for e in range(8): L+=M(f"v_sub_f32 v{Y+e}, v{X+e}, v{C}")
    L+=M(f"s_add_u32 s{sT0}, s{sXS}, {mu*65536}")
    for i in range(4): L+=M(f"v_cvt_pk_bf16_f32 v{Gd+4+i}, v{Y+2*i}, v{Y+2*i+1}")
    L+=M(f"buffer_store_dwordx4 {V(Gd+4)}, v{vL}, {srd(WS)}, s{sT0} offen{a.sc}",f"xs{mu}")
    L+=M(f"v_mul_f32 v{A}, v{Y}, v{Y}")
    for e in range(1,8): L+=M(f"v_fmac_f32 v{A}, v{Y+e}, v{Y+e}")
    L+=M(f"""v_mov_b32 v{B}, v{A}
        s_nop 0
        s_add_u32 s{sT1}, s{sS5}, {(layer*2+mu)*65536}
        v_permlane32_swap_b32 v{A}, v{B}
        v_add_f32 v{A}, v{A}, v{B}
        v_mov_b32 v{B}, v{A}
        v_permlane16_swap_b32 v{A}, v{B}
        v_add_f32 v{A}, v{A}, v{B}""")
    L+=M(f"buffer_store_dword v{A}, v{vS5s}, {srd(WS)}, s{sT1} offen{a.sc}")
    tail=M(f"s_add_u32 s22, s{sFLH}, {XF(layer,mu)}")+[('WVM',f"xs{mu}")]+M(f"buffer_store_dword v{vTAG}, v{vOne}, {srd(WS)}, s22 offen{a.sc}")
    return ld,L,tail

def flag_check(a, off, vaddr, name):
    ld,ck=a.check([f"buffer_load_dword v{PT+1}, v{vaddr}, {srd(WS)}, s{sCK1} offen sc1"],[f"v_cmp_ne_u32 vcc, s{sTAG}, v{PT+1}"],name)
    return M(f"s_lshl_b32 s{sCK1}, s{sFL}, 1\ns_add_u32 s{sCK1}, s{sCK1}, {off}")+ld, ck
XF=lambda layer,mu: OFF_XFLAG+layer*16384+mu*256
HF=lambda layer,k: OFF_HFLAG+layer*16384+k*256

def x_dma(mu, pair, stage, q):
    L=M(f"s_add_u32 m0, s{sXW}, {q+stage*8192}\ns_mov_b32 s{sSOFF}, {mu*65536+pair*32768+stage*8192}")
    for i in range(4): L+=M(f"buffer_load_dwordx4 v{vXD}, {srd(WS)}, s{sSOFF} offen offset:{1024*i} sc1 lds",f"x{mu}{pair}{stage}")
    return LW(L,(q+stage*8192,q+stage*8192+8192),(q+16384+stage*8192,q+16384+stage*8192+8192))
def h_dma(mu, t, grp, q):
    n=4 if grp<2 else 3
    L=M(f"s_add_u32 m0, s{sM4 if grp<2 else sM3}, {q+t*8192}\ns_add_u32 s{sSOFF}, s{sC4 if grp<2 else sC3}, {(mu*4+2*t)*HKS*1024+grp*8192}")
    for i in range(n): L+=M(f"buffer_load_dwordx4 v{vHD}, {srd(WS)}, s{sSOFF} offen offset:{1024*i} sc1 lds",f"h{mu}{t}{grp}")
    return LW(L,*[(q+(2*k+t)*8192,q+(2*k+t)*8192+2*n*1024) for k in range(2)])
def h_touch(mu):
    L=[]
    for k,(va,off) in enumerate(((vHS1,(mu*4)*HKS*1024),(vHS1,(mu*4+2)*HKS*1024),(vHS2,mu*4*HKS*1024))):
        L+=M(f"s_mov_b32 s{sT1}, {off}\nbuffer_load_dword v{(140,141,142,143,PT+3,vA1)[3*mu+k]}, v{va}, {srd(WS)}, s{sT1} offen sc1")
    return L

_uid=[0]
def g1_steps(buf, q, bar=None):
    A=(ACC0,ACC1)[buf]; bar=bar or {}; qo=q&65535; out=[]
    for s in range(16):
        pre=(M(f"v_add_u32 v{vA0}, {q&~65535}, v{vL}") if s==0 else [])+bar.get(s,[])
        rd=lambda F,tok,s=s: [LR(mk(f"ds_read_b128 {V(F+4*t)}, v{vA0} offset:{qo+t*16384+s*1024}",tok),(q+t*16384+s*1024,q+t*16384+s*1024+1024)) for t in range(2)]
        mf=lambda F,s=s: [mk(f"v_mfma_f32_16x16x32_bf16 {V(A+12*t+4*w)}, {W1(s,w)}, {V(F+4*t)}, {'0' if s==0 else V(A+12*t+4*w)}") for t in range(2) for w in range(3)]
        out.append((pre,rd,mf))
    return out
def g2_steps(qs, bar=None):
    bar=bar or {}; out=[]
    def setq(q): return M(f"s_add_u32 s{sQ}, s{sHK}, {q&~65535}\nv_add_u32 v{vA0}, s{sQ}, v{vL}\ns_add_u32 s{sQ}, s{sHS}, {q&~65535}\nv_add_u32 v{vA1}, s{sQ}, v{vL}")
    for i in range(22):
        q=qs[i>>3]; pre=bar.get(i,[])
        if i%8==0 and (i==0 or (q&~65535)!=(qs[(i>>3)-1]&~65535)): pre=setq(q)+pre
        rd=lambda F,tok,i=i,q=q: [LR(mk(f"ds_read_b128 {V(F+4*t)}, v{(vA0,vA1)[t]} offset:{(q&65535)+(i&7)*1024}",tok),*[(q+w*8192+(i&7)*1024,q+w*8192+(i&7)*1024+1024) for w in range(4)]) for t in (1,0)]
        mf=lambda F,i=i: [mk(f"v_mfma_f32_16x16x32_bf16 {V(ACC0+8*t+4*c)}, {W2(i,c)}, {V(F+4*t)}, {'0' if i==0 else V(ACC0+8*t+4*c)}") for t in (1,0) for c in range(2)]
        out.append((pre,rd,mf))
    return out
def backbone(steps, marks=None):
    marks=marks or {}
    N=len(steps); tok=[]
    for _ in steps: _uid[0]+=1; tok.append(f"f{_uid[0]}")
    nm=[len(st[2](FR)) for st in steps]
    last={FR:-3,FR+8:-2,FR+16:-1,ACC0+16:-9}; F=[]; at=[]
    for n in range(N):
        ring=[FR,FR+8,FR+16]+([ACC0+16] if nm[n]==4 and CFG['ring4'] else [])
        f=min(ring,key=lambda r:last[r]); la=len(ring)-1
        F.append(f); at.append(max(n-la,last[f]+1,at[-1] if at else -9)); last[f]=n
    L=[]
    for n in range(N):
        if at[n]<0 or (at[n]==0 and n<=1): L+=steps[n][0]+steps[n][1](F[n],tok[n]); at[n]=-1
    L.append(('WLG',tok[0]))
    for n,(pre,rd,mf) in enumerate(steps):
        ms=mf(F[n]); q=[]
        for m in range(n+1,N):
            if at[m]==n: r=steps[m][1](F[m],tok[m]); q+=[steps[m][0]+r[:1], r[1:]]
        k=len(ms)
        for j,m in enumerate(ms):
            L.append(m)
            if q and (len(q)>2 or j in ((0,2) if k==6 else (0,1)) or j>=k-2): L+=q.pop(0)
            if j==k-1:
                for x in q: L+=x
                if n+1<N: L.append(('WLG',tok[n+1]))
        L+=marks.get(n,[])
    return L

def g1_epi(a, buf, mu, pair, sc):
    A=(ACC0,ACC1)[buf]; E=EP; L=[]
    n=E; mreg=E+4
    M0=A+8; M1=A+20
    for t in range(2):
        Gt=A+12*t; Ut=Gt+4
        for r in range(4): L+=M(f"v_max_f32 v{Gt+r}, 0, v{Gt+r}")
        for r in range(4): L+=M(f"v_mul_f32 v{Gt+r}, v{Gt+r}, v{Ut+r}")
        L+=M(f"v_cvt_pk_bf16_f32 v{n+2*t}, v{Gt}, v{Gt+1}\nv_cvt_pk_bf16_f32 v{n+2*t+1}, v{Gt+2}, v{Gt+3}")
    for r in range(4): L+=M(f"v_permlane16_swap_b32 v{M0+r}, v{M1+r}")
    L+=M(f"v_permlane16_swap_b32 v{n}, v{n+2}\nv_permlane16_swap_b32 v{n+1}, v{n+3}\ns_mov_b32 s{sT1}, {(mu*4+2*pair)*HKS*1024}")
    L+=M(f"buffer_store_dwordx4 {V(n)}, v{vHS1}, {srd(WS)}, s{sT1} offen{sc}",f"hs{mu}{pair}")
    for r in range(4): L+=M(f"v_max_f32 v{M0+r}, 0, v{M0+r}")
    for r in range(4): L+=M(f"v_mul_f32 v{M0+r}, v{M0+r}, v{M1+r}")
    L+=M(f"v_cvt_pk_bf16_f32 v{mreg}, v{M0}, v{M0+1}\nv_cvt_pk_bf16_f32 v{mreg+1}, v{M0+2}, v{M0+3}")
    L+=M(f"v_mov_b32 v{E+6}, v{E+4}\nv_mov_b32 v{E+7}, v{E+5}\ns_nop 0\nv_permlane32_swap_b32 v{E+4}, v{E+6}\nv_permlane32_swap_b32 v{E+5}, v{E+7}")
    L+=M(f"buffer_store_dwordx4 {V(E+4)}, v{vHS2}, {srd(WS)}, s{sT1} offen{sc}",f"hs{mu}{pair}")
    return L
def h_flag(a, layer, k):
    return M(f"s_add_u32 s22, s{sFLH}, {HF(layer,k)}")+[('WVM',f"hs{k>>1}{k&1}")]+M(f"buffer_store_dword v{vTAG}, v{vOne}, {srd(WS)}, s22 offen{a.sc}")

def s5_get(a, layer, mu):
    T=140
    ld,ck=a.check([f"buffer_load_dwordx4 {V(T)}, v{vS5l}, {srd(WS)}, s{sCK3} offen sc1"],
         [f"v_max3_u32 v{PT+2}, v{T}, v{T+1}, v{T+2}",f"v_max_u32 v{PT+2}, v{PT+2}, v{T+3}",f"v_cmp_eq_u32 vcc, -1, v{PT+2}"],"s5")
    ld=M(f"s_add_u32 s{sCK3}, s{sS5l}, {(layer*2+mu)*65536}")+ld
    L=list(ck)+M(f"""v_add_f32 v{T}, v{T}, v{T+1}
        v_add_f32 v{T+2}, v{T+2}, v{T+3}
        v_add_f32 v{T}, v{T}, v{T+2}
        v_mov_b32 v{T+1}, v{T}
        s_nop 0
        v_permlane32_swap_b32 v{T}, v{T+1}
        v_add_f32 v{T}, v{T}, v{T+1}
        v_mov_b32 v{T+1}, v{T}
        s_nop 0
        v_permlane16_swap_b32 v{T}, v{T+1}
        v_add_f32 v{T}, v{T}, v{T+1}
        v_mul_f32 v{T}, 0x3b000000, v{T}
        v_add_f32 v{T}, 0x3727c5ac, v{T}
        v_rcp_f32 v{vR2}, v{T}""")
    return ld,L
def ex_addr(qspare):
    return M(f"s_add_u32 s{sT0}, s{sHW}, {qspare+6144}\nv_add_u32 v{EP}, s{sT0}, v{vL}\ns_xor_b32 s{sT0}, s{sHW}, 16384\ns_add_u32 s{sT0}, s{sT0}, {qspare+6144}\nv_add_u32 v{EP+1}, s{sT0}, v{vL}")
def ex_addr2(q):
    return [mk(x.text.replace(f"s{sT0},",f"s{sT2},")) for x in ex_addr(q)]
def g2_tail(a, mu, qsp, post, extra, every):
    X=vXst[mu]
    a(f"ds_write_b128 v{EP}, {V(ACC0+8)}\nds_write_b128 v{EP}, {V(ACC0+12)} offset:1024")
    R=[(qsp+w*8192+6144,qsp+w*8192+8192) for w in range(4)]; a.lw(2,*R)
    for e in range(8): a(f"v_fmac_f32 v{X+e}, v{vR2}, v{ACC0+e}")
    a("s_waitcnt lgkmcnt(0)\ns_barrier")
    a(f"ds_read_b128 {V(ACC0+8)}, v{EP+1}\nds_read_b128 {V(ACC0+12)}, v{EP+1} offset:1024","ex"); a.lr(2,*R)
    first,extra=sprinkle([mk("s_nop 0")],extra,1)
    a.flat(first[1:])
    L=[mk(f"v_fmac_f32 v{X+e}, v{vR2}, v{ACC0+8+e}") for e in range(8)]+post
    L,extra=sprinkle(L,extra,every)
    a.flat(L)
    return extra
def out_store(a, mu, T):
    X=vXst[mu]
    L=[mk(f"v_cvt_pk_bf16_f32 v{T+i}, v{X+2*i}, v{X+2*i+1}") for i in range(4)]
    return L+M(f"buffer_store_dwordx4 {V(T)}, v{vTok}, {srd(SO_)}, {'0' if mu==0 else 's%d'%sMB} offen{' sc1' if CFG['outsc'] else ''}")

def finish_kernel(a):
    a(f"s_or_b32 s{sT0}, s2, s{sWV}\ns_cmp_eq_u32 s{sT0}, 0\ns_cselect_b32 s{sT0}, {OFF_NONCE}, {OOB}")
    a(f"buffer_store_dword v{vTAG}, v{vOne}, {srd(WS)}, s{sT0} offen")
    if CFG['stamps'] and a.tag!='S':
        a.stamp("end","*")
        a("s_memtime s[100:101]\ns_waitcnt lgkmcnt(0)\ns_sub_u32 s99, s100, s99")
        a(f"s_lshl_b32 s{sT0}, s2, 2\ns_add_u32 s{sT0}, s{sT0}, s{sWV}\ns_lshl_b32 s{sT0}, s{sT0}, 8\ns_add_u32 s{sT0}, s{sT0}, {OFF_STAMP}")
        for i in range(len(stamp_names)):
            a(f"v_mov_b32 v40, s{STAMP0+i}")
            a(f"buffer_store_dword v40, v{vOne}, {srd(WS)}, s{sT0} offen offset:{4*i}")
        if CFG.get('trace'): a(f"s_add_u32 s{sT1}, s{sT0}, 0x100000\nbuffer_store_dword v139, v{vFX}, {srd(WS)}, s{sT1} offen")
        a(f"v_mov_b32 v40, s98\nbuffer_store_dword v40, v{vOne}, {srd(WS)}, s{sT0} offen offset:248")
        a(f"v_mov_b32 v40, s99\nbuffer_store_dword v40, v{vOne}, {srd(WS)}, s{sT0} offen offset:252")
    a("s_endpgm")

WV=lambda t:('WVM',t)
WL=lambda t:('WLG',t)
AT=lambda n:('AT',n)

def body(a):
    P=paced; BY=lambda n:('BY',n); SY=lambda n:('SYNC',n); AF=lambda n,g=0:('AFTER',n,g); GP=lambda n:('GAP',n)
    B=lambda *w:[list(w)+[mk("s_barrier")]]
    C=CFG
    nxs=lambda r,mu: [i for i,x in enumerate(r) if isinstance(x,I) and x.tok==f"xs{mu}"][0]+1
    qs=list(Q)
    a.flat(fin1(a,0,0,ACC0))
    a.stamp("fin1 A","f")
    lA,rA,tA=fin2(a,0,0,ACC0); lB,rB,tB=fin2(a,0,1,232)
    glB,gcB=y_check(a,1)
    pk,ps=pp_pack()
    a.waitvm("yt1")
    Wp(a,'F1')
    a.flat(lA); a.flat(glB); Wp(a,'F2'); a.flat(pk); a.flat(ps)
    a.stamp("yB acked","f")
    a.flat(rA[:10]); Wp(a,'FA'); a.flat(rA[10:]); Wp(a,'FX')
    a.stamp("fin2 A","f")
    a.flat(gcB)
    y_stage(a,1,wops(PL().get('SB',"")))
    a.flat(tA)
    a(f"buffer_store_dword v{vTAG}, v{vOne}, {srd(WS)}, s{sPF} offen sc1")
    Wp(a,'FB')
    a.flat(fin1(a,0,1,ACC1))
    a.stamp("fin1 B","f")
    W2Q[:]=w2_loads()
    a(f"s_mul_i32 s{sT0}, s{sCT2}, 43\ns_mul_i32 s{sT1}, s{sKH}, 21\ns_add_u32 s{sT0}, s{sT0}, s{sT1}\ns_lshl_b32 s{sT0}, s{sT0}, 7\ns_add_u32 s{sCK3}, s{sT0}, {OFF_P2F}")
    a(f"v_min_u32 v{PT+3}, 21, v{vLane}\nv_lshlrev_b32 v{PT+3}, 7, v{PT+3}")
    pl_,pc_=a.check([f"buffer_load_dword v{PT+2}, v{PT+3}, {srd(WS)}, s{sCK3} offen sc1"],[f"v_cmp_ne_u32 vcc, s{sTAG}, v{PT+2}"],"pp")
    xl,xc=flag_check(a,XF(0,0),vFX,"xf")
    Wp(a,'XW'); a.flat(xl); a.flat(xc)
    a("s_waitcnt lgkmcnt(0)\ns_barrier")
    if C['fbpre']: a.flat(lB)
    a.ext(x_dma(0,0,0,qs[0])+x_dma(0,0,1,qs[0]))
    if C['fbpre']: a.flat(rB[:nxs(rB,1)])
    Wp(a,'XD')
    A1,B0,B1,GA=96,192,288,384
    for layer in range(2):
        g="ab"[layer]
        xa0,xa1,xb0,xb1,e=qs
        hsc = a.sc if not (layer==0 and C['touch']==2) else ' sc1'
        L0 = layer==0
        a.stamp(f"L{layer} start",g+'m')
        hq=[(xa0,xa1,e),(xb0,xb1,xa0)]
        X=lambda mu,p,q: x_dma(mu,p,0,q)+x_dma(mu,p,1,q)
        H=lambda mu,t,grp: h_dma(mu,t,grp,hq[mu][grp])
        xl,xc=flag_check(a,XF(layer,1),vFX,"xf")
        def HC(k,after=None,gap=None):
            l,c=flag_check(a,HF(layer,k),vFH,"hf")
            return [AF(f"f{k}",after or C['hca'])]+l+[GP(gap or (C['cg0'] if L0 else C['hcg']))]+c
        sl,sr=s5_get(a,layer,0)
        def SB(n,*w):
            if layer==0: return BAR(*w)
            return a.st(n+" pre","c")+list(w)+a.st(n+" waited","c")+[mk("s_barrier")]+a.st(n+" post","c")
        steps = g1_steps(0,xa0,{0:BAR(WV("x000")),8:BAR(WV("x001"))}) + g1_steps(1,xa1,{0:BAR(WV("x011"))}) \
              + g1_steps(0,xb0,{0:BAR(WV("x101"))}) + g1_steps(1,xb1,{0:BAR(WV("x111"))}) \
              + g2_steps(hq[0],{0:SB("GA0",WV("h010"),WV("h000")),8:SB("GA8",WV("h011"),WV("h001")),16:SB("GA16",WV("h012"),WV("h002"))})
        marks={15:a.st(f"L{layer} A0",g),31:a.st(f"L{layer} A1",g),47:a.st(f"L{layer} B0",g),63:a.st(f"L{layer} B1",g)}
        bb=backbone(steps,marks)
        fl = C['fl0'] if (L0 and C['touch']==2) else C['fl']
        def epi(k):
            if k<3: return [AT(96*(k+1)+2),('DENS',C['dens1'])]+g1_epi(a,k&1,k>>1,k&1,hsc)+[('DENS',0),SY(f"e{k}"),BY(96*(k+2) if k<2 else GA-30)]
            return [AT(GA+1),('DENS',C['dens'])]+g1_epi(a,1,1,1,hsc)+[('DENS',0),SY("e3")]+sr
        s3=[]
        for k in range(4): s3+=[AF(f"e{k}",fl)]+h_flag(a,layer,k)+[SY(f"f{k}")]
        tailpre=ex_addr(e)+unpackY(0,ACC1)
        hB1=H(1,1,0)+H(1,1,1); hB2=H(1,0,2)+H(1,1,2)
        g1=C['g1']
        sA = HC(0)+P(H(0,0,0)+H(0,0,2),g1)+[AT(B0-10)]+P(H(0,0,1),g1)
        sB = HC(1)+P(H(0,1,0),g1)+[BY(GA-40)]+P(H(0,1,1)+H(0,1,2),g1)+[BY(GA-2)]
        sC = HC(2)+P(H(1,0,0),C['g2'])+[AT(GA-10)]+P(H(1,0,1),C['g2'])
        sD = HC(3,C['gahl'],C['gahc'])
        if L0:
            pl=PL(); pend=pl.get('PEND',[]); rest=pl.get('REST',[])
            s1=[];s2=[]
            for k in rest: s1+=P(wops(f"i{k}"),2)
            rest=[int(str(k).split('@')[0]) for k in rest]
            s1+=[SY('irest')]+P(X(0,1,xa1),3)+[BY(A1-30)]
            for k in pend: s2+=wops(f"r{k}")+[BY(max(12*k-4,30))]
            last=pend[-1] if pend else None
            if rest:
                s2+=[AF('irest'),AT(C['rrest'])]+B(WV(f"c{rest[-1]}"))
                for k in rest: s2+=wops(f"r{k}")+[BY(12*k-4)]
                last=rest[-1]
            if last is not None: s2+=[GP(4)]+B(WL(f"cr{last}"))
            s2+=[SY('fr')]
            s4=[AT(C['w2at'])]+pl_+[GP(C['cg0'])]+pc_+[AF(C['w2af'])]
            i=(44-sum(1 for x in W2Q if x.kind=='vmem'))//2
            while W2Q:
                if i==10: s4+=[AF('fB')]
                s4+=P(w2_take(2),C['w2gap'])+[BY(GA+4*i-C['w2lead'])]; i+=1
        else:
            s1=[AT(2)]+P(X(0,1,xa1),5)+[BY(A1-30)]; s2=[SY('fr')]; s4=[]
        s5=[AT(C['a0l'])]+lB+[GP(C['a0c']),('DENS',C['densb'])]+rB[:nxs(rB,1)]+[('DENS',0),SY('rB')]+rB[nxs(rB,1):]+[SY('fB'),BY(A1+24 if L0 else A1)]
        if L0 and C['fbpre']: s5=[SY('rB')]+rB[nxs(rB,1):]+[SY('fB')]
        s3=[AF('rB',C['gbt0'] if L0 else C['gbt'])]+tB+[SY('tB')]+s3
        s1+=[AF('tB',C['a1xl'])]+xl+[GP(C['xg0'] if L0 else 16)]+xc+[SY('xc'),AF('fr')]+P(X(1,0,xb0),4)+[BY(B0-24)]+P(X(1,1,xb1),g1)+[BY(B1-24)]
        s1 += sA+sB+sC+sD
        s6 = epi(0)+epi(1)+epi(2)+sl+epi(3)+tailpre
        out,rest=weave(bb,[s3,s1+[SY('hb')],s4,s2,s5,s6,[AF('hb')]+P(hB1,C['hbgap'])])
        k=max([i for i,x in enumerate(rest) if not(isinstance(x,I) and x in hB1)],default=-1)
        a.ext(a.trace(out,CFG.get('tev_',8),f'G{layer}')); a.ext(rest[:k+1]); left=rest[k+1:]
        if C.get('v'): print("  G2(A): leftover",k+1,"h(B) items left",len(left))
        a.stamp(f"L{layer} GA",g)
        sl,sr=s5_get(a,layer,1)
        a.flat(sl); sl=[]
        left=g2_tail(a,0,e,fin1(a,1,0,ACC1,True) if L0 else out_store(a,0,ACC1),left,C['tev'])
        a.flat(left)
        a.stamp(f"L{layer} tailA",g)
        bb=backbone(g2_steps(hq[1],{0:SB("GB0",WV("h110"),WV("h100")),8:SB("GB8",WV("h111"),WV("h101")),16:SB("GB16",WV("h112"),WV("h102"))}))
        nq=[xa1,e,xb0,xb1,xa0]
        if L0:
            lA,rA,tA=fin2(a,1,0,ACC1)
            xl,xc=flag_check(a,XF(1,0),vFX,"xf")
            ncrit=nxs(rA,0)
            a.weave(bb,[AF('r',C['gbt'])]+tA+[SY('t')],P(hB2,C['g3'])+[BY(40),AF('t',C['gbxl'])]+xl,
                    sl+[AT(C['gbl'])]+lA+[GP(C['gbc']),('DENS',C['dens2'])]+rA[:ncrit]+[('DENS',0),SY('r')]+rA[ncrit:]+sr+ex_addr(xa0)+unpackY(1,ACC1),name='B0')
        else:
            s2=sl+ex_addr(xa0)+[AT(C['gbs5'])]+sr
            if C['wbl2']:
                Lw=a.label("wb")
                s2+=[M(f"s_or_b32 s{sT0}, s{sR}, s{sWV}\ns_cmp_lg_u32 s{sT0}, 0\ns_cbranch_scc1 {Lw}\nbuffer_wbl2 sc1\n{Lw}:")]
            a.weave(bb,P(hB2,C['g3'])+[BY(40)],s2)
        a.stamp(f"L{layer} GB",g)
        if L0:
            lB,rB,tB=fin2(a,1,1,ACC1)
            left=g2_tail(a,1,xa0,fin1(a,1,1,ACC1,True),xc+X(0,0,nq[0]),C['tev2'])
            a.flat(left)
        else:
            g2_tail(a,1,xa0,out_store(a,1,ACC1),[],99)
        a.stamp(f"L{layer} tailB",g)
        qs=nq
    finish_kernel(a)

def main():
    a=G('F','')
    entry(a); p0(a); conv(a)
    nfront=len(a.L)
    b=G('S',' sc1'); b.nlab=0
    front=list(a.L)
    body(a)
    rep=[]
    items=finish(a.L,rep)
    print("LDS ordering problems:",lds_check(items))
    for o in a.ool: items+=finish(o)
    items.append(mk("L_fast_end:"))
    if CFG['slow']:
        b.L=front+[mk("L_slow:")]; body(b)
        full=finish(b.L)
        k=[i for i,x in enumerate(full) if x.text=="L_slow:"][0]
        items+=full[k:k+1]+[mk("s_nop 4")]+full[k+1:]
        for o in b.ool: items+=finish(o)
    items.append(mk("L_end:")); items.append(mk("s_endpgm"))
    hdr=open(os.path.join(os.path.dirname(os.path.abspath(__file__)),"header.txt")).read()
    src=kernel_file(NAME,text(items),"; @launch grid=(256,1,1) block=(256,1,1) lds=163840",header=hdr)
    open(sys.argv[1],"w").write(src)
    open("stamp_names.txt","w").write("\n".join(stamp_names)); open("trace_names.txt","w").write("\n".join(trace_names)); open("site_names.txt","w").write(" ".join(site_names))
    n=sum(1 for i in items if i.kind!='none')
    print(f"{n} instructions, {len(src)} bytes of text, {sum(x for x,_ in rep)} nop states padded in fast path")
    if CFG.get('v'):
        for x in rep: print("   pad",x)
main()
```

```python
import re

REG_RE = re.compile(r'\b([vas])(\d+)\b|\b([vas])\[(\d+):(\d+)\]')

def regs_of(op):
    out=set()
    op=op.strip()
    for m in REG_RE.finditer(op):
        if m.group(1): out.add((m.group(1),int(m.group(2))))
        else:
            for i in range(int(m.group(4)),int(m.group(5))+1): out.add((m.group(3),i))
    if re.search(r'\bvcc(_lo|_hi)?\b',op): out|={('s','vcc')}
    if re.search(r'\bexec\b',op): out|={('s','exec')}
    if re.search(r'\bm0\b',op): out|={('s','m0')}
    return out

TRANS=('v_exp_f32','v_log_f32','v_rcp_f32','v_rsq_f32','v_sqrt_f32','v_sin_f32','v_cos_f32')

class I:
    def __init__(s, text, tok=None):
        s.text=text; s.tok=tok
        t=text.split(';')[0].strip()
        s.label = t.endswith(':')
        s.directive = t.startswith('.')
        s.op = t.split()[0] if t else ''
        rest = t[len(s.op):].strip()
        ops=[]; d=0; cur=''
        for ch in rest:
            if ch in '[(': d+=1
            if ch in '])': d-=1
            if ch==',' and d==0: ops.append(cur.strip()); cur=''
            else: cur+=ch
        if cur.strip(): ops.append(cur.strip())
        s.ops=ops
        op=s.op
        s.kind='other'; s.defs=set(); s.uses=set(); s.dma=False
        if s.label or s.directive or not op: s.kind='none'; return
        allr=[regs_of(o.split(' ')[0] if i==len(ops)-1 else o) for i,o in enumerate(ops)]
        U=lambda idx: set().union(*[allr[i] for i in idx]) if idx else set()
        n=len(ops)
        if op.startswith('v_mfma'):
            s.kind='mfma'; s.defs=allr[0]; s.A=allr[1]; s.B=allr[2]; s.C=allr[3]; s.uses=s.A|s.B|s.C
            s.passes = 4 if '16x16x32' in op else 8
        elif op.startswith('buffer_load') or op.startswith('global_load'):
            s.kind='vmem'; s.load=True
            if re.search(r'\blds\b',t) : s.dma=True; s.uses=U(range(n))|{('s','m0')}
            else: s.defs=allr[0]; s.uses=U(range(1,n))
        elif op.startswith('buffer_store') or op.startswith('global_store'):
            s.kind='vmem'; s.load=False; s.uses=U(range(n))
            di = 0 if op.startswith('buffer') else 1
            s.sdata=allr[di]; s.wide = op.endswith('x4') or op.endswith('x3')
        elif op.startswith('buffer_wbl2') or op.startswith('buffer_inv'):
            s.kind='vmem'; s.load=False; s.sdata=set(); s.wide=False
        elif op.startswith('ds_read'):
            s.kind='ds'; s.defs=allr[0]; s.uses=U(range(1,n))
        elif op.startswith('ds_write'):
            s.kind='ds'; s.uses=U(range(n))
        elif op.startswith('ds_bpermute') or op.startswith('ds_swizzle') or op.startswith('ds_permute'):
            s.kind='ds'; s.defs=allr[0]; s.uses=U(range(1,n))
        elif op.startswith('s_load') or op.startswith('s_memtime') or op.startswith('s_memrealtime'):
            s.kind='smem'; s.defs=allr[0]; s.uses=U(range(1,n))
        elif op in('s_waitcnt','s_nop','s_barrier','s_endpgm','s_branch','s_setprio','s_sleep') or op.startswith('s_cbranch'):
            s.kind='ctl'
            if op=='s_cbranch_vccz' or op=='s_cbranch_vccnz': s.uses={('s','vcc')}
            if op.startswith('s_cbranch_exec'): s.uses={('s','exec')}
        elif op.startswith('s_cmp') or op.startswith('s_bitcmp'):
            s.kind='salu'; s.uses=U(range(n))
        elif op.startswith('s_'):
            s.kind='salu'; s.defs=allr[0]; s.uses=U(range(1,n))
            if 'saveexec' in op: s.defs|={('s','exec')}; s.uses|={('s','exec')}
            if op in('s_addk_i32','s_mulk_i32','s_bitset1_b32'): s.uses|=allr[0]
        elif op.startswith('v_'):
            s.kind='valu'
            if op.startswith('v_cmp'):
                s.defs=allr[0]; s.uses=U(range(1,n))
            elif op.startswith('v_permlane') and 'swap' in op:
                s.defs=allr[0]|allr[1]; s.uses=allr[0]|allr[1]
            elif op.startswith('v_add_co') or op.startswith('v_sub_co') or op.startswith('v_addc_co'):
                s.defs=allr[0]|allr[1]; s.uses=U(range(2,n))
            else:
                s.defs=allr[0]; s.uses=U(range(1,n))
                if op.startswith('v_fmac') or op.startswith('v_dot2c') or op.startswith('v_writelane'): s.uses|=allr[0]
                if 'dpp' in op or 'row_' in t or 'quad_perm' in t: s.uses|=allr[0]; s.dpp=True
                if op.startswith('v_cndmask') and n==3: s.uses|={('s','vcc')}
        else:
            raise ValueError('unknown op '+text)
    def states(s):
        if s.kind=='none': return 0
        if s.op=='s_nop': return int(s.ops[0],0)+1
        return 1

class Asm:
    def __init__(s): s.L=[]; s.nlab=0
    def __call__(s, text, tok=None):
        for line in text.split('\n'):
            line=line.strip()
            if line: s.L.append(I(line,tok))
        return s
    def lab(s,name): s.L.append(I(name+':'))
    def newlab(s,p='L'): s.nlab+=1; return f'{p}_{s.nlab}'
    def waitvm(s,tok): s.L.append(('WVM',tok))
    def waitlg(s,tok): s.L.append(('WLG',tok))
    def ext(s, items): s.L.extend(items)

def mk(text,tok=None): return I(text,tok)

def interleave(backbone, fillers, slots=2, start=0, per=None):
    out=[]; fi=0; nm=0; i=0
    fillers=list(fillers)
    while i<len(backbone):
        it=backbone[i]; out.append(it); i+=1
        if isinstance(it,I) and it.kind=='mfma':
            nm+=1
            used=0; j=i
            while j<len(backbone) and not(isinstance(backbone[j],I) and backbone[j].kind=='mfma'):
                used+=1; j+=1
            free=slots-used
            while fi<len(fillers) and nm>start:
                f=fillers[fi]
                if isinstance(f,tuple) and f[0]=='AT':
                    if nm>=f[1]: fi+=1; continue
                    break
                g=f if isinstance(f,list) else [f]
                if len(g)>free and not(free>=slots and len(g)>slots) : break
                out.extend(g); free-=len(g); fi+=1
                if free<=0: break
    rest=[]
    for f in fillers[fi:]:
        if isinstance(f,tuple) and f[0]=='AT': continue
        rest.extend(f if isinstance(f,list) else [f])
    return out, rest

def resolve(items, verbose=False):
    out=[]; vm=[]; lg=[]
    def emit_wait(nv,nl):
        parts=[]
        if nv is not None: parts.append(f'vmcnt({nv})')
        if nl is not None: parts.append(f'lgkmcnt({nl})')
        out.append(I('s_waitcnt '+' '.join(parts)))
    for it in items:
        if isinstance(it,tuple):
            q = vm if it[0]=='WVM' else lg
            idx=[k for k,e in enumerate(q) if e[1]==it[1]]
            if idx:
                n=len(q)-1-idx[-1]
                if it[0]=='WVM':
                    assert n<=63,('vmcnt overflow',n); emit_wait(n,None); del vm[:idx[-1]+1]
                else:
                    if any(e[2] for e in lg): n=0
                    if n>15: n=15
                    emit_wait(None,n); del lg[:len(lg)-n]
            continue
        if it.kind=='none': out.append(it); continue
        if it.op=='s_waitcnt':
            m=re.search(r'vmcnt\((\d+)\)',it.text)
            if m: n=int(m.group(1)); del vm[:max(0,len(vm)-n)]
            m=re.search(r'lgkmcnt\((\d+)\)',it.text)
            if m:
                n=int(m.group(1))
                if n==0 or not any(e[2] for e in lg): del lg[:max(0,len(lg)-n)]
            out.append(it); continue
        touch=it.defs|it.uses
        nv=nl=None
        idx=[k for k,e in enumerate(vm) if e[0]&touch]
        if idx:
            nv=len(vm)-1-idx[-1]; assert nv<=63; del vm[:idx[-1]+1]
        idx=[k for k,e in enumerate(lg) if e[0]&touch]
        if idx:
            nl=len(lg)-1-idx[-1]
            if any(e[2] for e in lg): nl=0
            if nl>15: nl=15
            del lg[:len(lg)-nl]
        if nv is not None or nl is not None: emit_wait(nv,nl)
        out.append(it)
        if it.kind=='vmem':
            vm.append((set(it.defs),it.tok,False))
            if len(vm)>63 and verbose: print('note: >63 vmem outstanding at',it.text)
        elif it.kind=='ds': lg.append((set(it.defs),it.tok,False))
        elif it.kind=='smem': lg.append((set(it.defs),it.tok,True))
    return out

def need(p,c):
    n=0
    isv=lambda S:{r for r in S if r[0] in 'va'}
    iss=lambda S:{r for r in S if r[0]=='s'}
    if p.kind=='valu':
        pv=isv(p.defs); ps=iss(p.defs)
        if c.kind=='mfma' and pv&c.uses: n=max(n,2)
        if c.kind=='valu':
            if c.op.startswith('v_permlane') and pv&c.uses: n=max(n,2)
            if getattr(c,'dpp',False) and pv&c.uses: n=max(n,2)
            if (c.op.startswith('v_readfirstlane') or c.op.startswith('v_readlane')) and pv&c.uses: n=max(n,1)
            if p.op.replace('_e32','').replace('_e64','') in TRANS and pv&c.uses: n=max(n,1)
            if 'sdwa' in p.text and pv&(c.uses|c.defs): n=max(n,1)
            if ps&c.uses: n=max(n,4 if c.op.startswith(('v_readlane','v_writelane')) else 2)
        if c.kind=='vmem' and ps&c.uses: n=max(n,5)
        if c.kind in('salu','smem') and ps&c.uses: n=max(n,1)
    if p.kind=='mfma':
        big={4:8,8:12}[p.passes]
        if c.kind=='mfma':
            if p.defs&(c.A|c.B): n=max(n,big)
            if p.defs&c.C and not(p.defs==c.C and p.passes==c.passes): n=max(n,{4:6,8:10}[p.passes])
            if p.defs&c.defs and not p.defs&c.C: n=max(n,{4:6,8:10}[p.passes])
        elif c.kind in('valu','vmem','ds'):
            if p.defs&(c.uses|c.defs): n=max(n,big)
            if c.kind=='valu' and p.C&c.defs: n=max(n,{4:3,8:7}[p.passes])
    if p.kind=='vmem' and not p.load and p.wide:
        if p.sdata&c.defs: n=max(n,2)
    if p.kind=='ds' and p.op.startswith('ds_write') and (p.op.endswith('b128') or p.op.endswith('b96')):
        pass
    if p.kind=='salu' and ('s','m0') in p.defs and c.kind=='vmem' and c.dma: n=max(n,1)
    if p.kind=='salu' and ('s','exec') in p.defs and c.kind=='valu' and getattr(c,'dpp',False): n=max(n,0)
    return n

def pad_hazards(items, report=None):
    out=[]
    for it in items:
        if it.kind!='none':
            dist=0; add=0
            for p in reversed(out):
                if dist>=20: break
                if p.kind=='none': continue
                k=need(p,it)
                if k>dist: add=max(add,k-dist)
                dist+=p.states()
            if add:
                if report is not None: report.append((add,it.text))
                out.append(I(f's_nop {add-1}'))
        out.append(it)
    return out

def finish(items, report=None):
    return pad_hazards(resolve(items), report)

def text(items): return '\n'.join(('' if (i.label or i.directive) else '  ')+i.text for i in items)+'\n'

def kernel_file(name, body_text, launch, nvgpr=512, accum=256, nsgpr=102, header=''):
    return (header + launch + '\n.amdgcn_target "amdgcn-amd-amdhsa--gfx950"\n.text\n'
      f'.globl {name}\n.p2align 8\n.type {name},@function\n{name}:\n' + body_text +
      '.section .rodata,"a"\n.p2align 6\n'
      f'.amdhsa_kernel {name}\n  .amdhsa_next_free_vgpr {nvgpr}\n  .amdhsa_next_free_sgpr {nsgpr}\n  .amdhsa_accum_offset {accum}\n'
      '  .amdhsa_group_segment_fixed_size 0\n  .amdhsa_kernarg_size 104\n  .amdhsa_user_sgpr_count 2\n'
      '  .amdhsa_user_sgpr_kernarg_segment_ptr 1\n  .amdhsa_system_sgpr_workgroup_id_x 1\n.end_amdhsa_kernel\n')

def lds_check(items, verbose=True):
    vm=[]; lg=[]; nbar=0; hist=[]; errs=0
    def ov(A,B): return any(a<d and c<b for a,b in A for c,d in B)
    for it in items:
        if it.kind=='none': continue
        if it.op=='s_waitcnt':
            m=re.search(r'vmcnt\((\d+)\)',it.text)
            if m:
                n=int(m.group(1))
                while len(vm)>n: vm.pop(0)['done']=nbar
            m=re.search(r'lgkmcnt\((\d+)\)',it.text)
            if m:
                n=int(m.group(1))
                if n==0 or not any(e['smem'] for e in lg):
                    while len(lg)>n: lg.pop(0)['done']=nbar
            continue
        if it.op=='s_barrier': nbar+=1; continue
        if it.kind in('vmem','ds','smem'):
            rec=dict(done=None,smem=it.kind=='smem',it=it,lr=getattr(it,'lr',None),lw=getattr(it,'lw',None))
            if (it.kind=='ds' or it.dma) and rec['lr'] is None and rec['lw'] is None:
                print("unannotated LDS op:",it.text); errs+=1
            for h in hist:
                safe = h['done'] is not None and h['done']<nbar
                if safe: continue
                if rec['lr'] and h['lw'] and ov(rec['lr'],h['lw']): errs+=1; errs<6 and print("RAW",h['it'].text,h['lw'][:2],"->",it.text,rec['lr'][:2])
                if rec['lw'] and h['lr'] and ov(rec['lw'],h['lr']): errs+=1; errs<6 and print("WAR",h['it'].text,h['lr'][:2],"->",it.text,rec['lw'][:2])
                if rec['lw'] and h['lw'] and ov(rec['lw'],h['lw']) and h['it'].tok!=it.tok: errs+=1; errs<6 and print("WAW",h['it'].text,"->",it.text)
            hist=[h for h in hist if not(h['done'] is not None and h['done']<nbar)]
            if rec['lr'] or rec['lw']: hist.append(rec)
            (vm if it.kind=='vmem' else lg).append(rec)
    return errs
def LR(items,*r):
    for i in (items if isinstance(items,list) else [items]):
        if i.kind=='ds' or i.kind=='vmem': i.lr=list(r)
    return items
def LW(items,*r):
    for i in (items if isinstance(items,list) else [items]):
        if i.kind=='ds' or (i.kind=='vmem' and i.dma): i.lw=list(r)
    return items

def weave(backbone, streams, slots=2):
    S=[list(s) for s in streams]; pos=[0]*len(S); last=[-99]*len(S); lastv=[-99]*len(S); dens=[0]*len(S); done={}
    out=[]; nm=0; i=0
    def cost(g): return sum(1 for x in g if not(isinstance(x,I) and x.kind=='none'))
    forced=[0]
    def flush(k,upto):
        while pos[k]<upto:
            f=S[k][pos[k]]; pos[k]+=1
            if isinstance(f,tuple) and f[0]=='SYNC': done[f[1]]=nm; continue
            if isinstance(f,tuple) and f[0]=='AFTER':
                if f[1] not in done:
                    for k2,s2 in enumerate(S):
                        for p2 in range(pos[k2],len(s2)):
                            if s2[p2]==('SYNC',f[1]): flush(k2,p2+1)
                continue
            if isinstance(f,tuple) and f[0] in('AT','GAP','GAPV','BY','DENS'): continue
            g=f if isinstance(f,list) else [f]
            out.extend(g); forced[0]+=len(g)
    while i<len(backbone):
        it=backbone[i]
        if isinstance(it,I) and it.kind=='mfma':
            for k,s in enumerate(S):
                idx=[p for p in range(pos[k],len(s)) if isinstance(s[p],tuple) and s[p][0]=='BY' and s[p][1]<=nm]
                if idx: flush(k,idx[-1]+1)
        out.append(it); i+=1
        if isinstance(it,I) and it.kind=='mfma':
            nm+=1; used=0; j=i
            while j<len(backbone) and not(isinstance(backbone[j],I) and backbone[j].kind=='mfma'): used+=1; j+=1
            free=slots-used; extra=0
            for k,s in enumerate(S):
                while pos[k]<len(s):
                    f=s[pos[k]]
                    if isinstance(f,tuple) and f[0]=='DENS': dens[k]=f[1]; pos[k]+=1; continue
                    if dens[k]>slots+extra: free+=dens[k]-slots-extra; extra=dens[k]-slots
                    if free<=0: break
                    if isinstance(f,tuple) and f[0]=='AT':
                        if nm>=f[1]: pos[k]+=1; continue
                        break
                    if isinstance(f,tuple) and f[0]=='GAP':
                        if nm-last[k]>=f[1]: pos[k]+=1; continue
                        break
                    if isinstance(f,tuple) and f[0]=='BY': pos[k]+=1; continue
                    if isinstance(f,tuple) and f[0]=='GAPV':
                        if nm-lastv[k]>=f[1]: pos[k]+=1; continue
                        break
                    if isinstance(f,tuple) and f[0]=='SYNC': done.setdefault(f[1],nm); pos[k]+=1; continue
                    if isinstance(f,tuple) and f[0]=='AFTER':
                        if f[1] in done and nm>=done[f[1]]+(f[2] if len(f)>2 else 0): pos[k]+=1; continue
                        break
                    g=f if isinstance(f,list) else [f]
                    c=cost(g)
                    if c>free and not(free>=slots): break
                    out.extend(g); free-=c; pos[k]+=1; last[k]=nm
                    if any(isinstance(x,I) and x.kind=='vmem' for x in g): lastv[k]=nm
    rest=[]
    progress=True
    while progress:
        progress=False
        for k,s in enumerate(S):
            while pos[k]<len(s):
                f=s[pos[k]]
                if isinstance(f,tuple) and f[0]=='AFTER' and f[1] not in done: break
                pos[k]+=1; progress=True
                if isinstance(f,tuple) and f[0]=='SYNC': done[f[1]]=nm; continue
                if isinstance(f,tuple) and f[0] in('AT','GAP','GAPV','AFTER','BY','DENS'): continue
                rest.extend(f if isinstance(f,list) else [f])
    assert all(pos[k]==len(S[k]) for k in range(len(S)))
    if forced[0]: print("  weave: forced by deadline:",forced[0])
    return out,rest
def paced(items,gap):
    out=[]
    for it in items:
        if isinstance(it,I) and it.kind=='vmem': out.append(('GAPV',gap))
        out.append(it)
    return out

def sprinkle(main, extra, every):
    out=[]; extra=list(extra); n=0
    for it in main:
        out.append(it); n+=1
        if n%every==0 and extra:
            while extra:
                x=extra.pop(0); out.append(x)
                if isinstance(x,I) and x.kind=='vmem': break
    return out, extra
```

```python
import sys, os
from asmlib import *
from layout import *

NAME="interleave_layers__ssm_conv_h3__glu_gated_reglu__prompt_kernel"
CFG=dict(gbs5=8, ring4=1, clr=1, plan=2, cq=12, chl=128, cpp=104, rot=1, cm2=70, cm3=120, a0l=14, a0c=14, a1xl=10, dens=5, fl=30, fl0=60, hca=24, hcg=16, g1=4, gahl=16, gahc=12, hbgap=2, tev=6, tev2=5, dens2=6, gbl=8, gbc=18, gbt=28, gbxl=80, b0hl=80, w2at=30, w2gap=8, rrest=56, cgap=7, warm=1, stamps=0, stop=None, slow=1, prefetch=1, touch=2, dgather=1, dstage=1, wbl2=0, outsc=0)
for a_ in sys.argv[2:]:
    k,v=a_.split('='); CFG[k]=int(v) if v.lstrip('-').isdigit() else v

sX,sR,sWV,sG,sM,sRH,sCT2,sKH,sCHH,sTAG,sHELLO=4,5,6,7,8,9,10,11,12,13,14
sT0,sT1,sT2,sT3=3,15,60,61
sCNT=62; sSOFF=63
WS,SK_,SV_,SQ_,SH_,SWG,SWU,SWD,SO_,SSK,SD_=16,20,24,28,32,36,40,44,48,52,56
srd=lambda b:f"s[{b}:{b+3}]"
sXW,sHW,sHK,sHS,sXS,sFL,sGR,sS5,sGRl,sS5l=64,65,66,67,68,69,70,71,72,73
sW1W,sWo,sHF,sW2B=74,75,76,77
sPS,sPD,sPF,sW20=56,57,58,59
sCK1,sCK2,sCK3,sQ=20,21,24,25
sCH,sUO,sMB=26,27,0
sFLH=23; sC4,sC3,sM4,sM3=52,53,54,55
sFLG=1
STAMP0=78
Q=[0,32768,65536,98304,131072]
TCP=4160; TCH=4*TCP; L_TOEP=0
L_U=2*TCH; UCH=4608
L_K=L_U+2*UCH; CHP=1056; L_V=L_K+9*CHP
L_CX=L_K
L_YS=0
L_WS=65536; WSL=24576
SLOT=[L_WS+k*WSL for k in range(4)]
L_PP=SLOT[3]
SLOT=SLOT[:3]+[8192,36864,L_PP]
vL=1; vOne=2; vTok=3; vGs=4; vGl=5; vS5s=6; vS5l=7; vXD=8; vHD=9; vHS1=10; vHS2=11; vFX=12; vFH=13
vTAG=14; vR2=15
vXst=[16,24]; vYY=[32,36]
ACC0,ACC1,FR,vA0,vA1,EP,PT=40,64,88,112,113,114,122
vW2,vT2,vWc0=126,127,128
vW1=[129,130,131]; vTa,vTm,vWc1=132,133,134
vLane,vJ,vQ,vYo,vD=135,136,137,138,139
vCg,vCs=124,125
vHa=15
W2V=144; W2A=192
def W1(s,t): b=(s*3+t)*4; return f"a[{b}:{b+3}]"
def W1h(s,t,hh): b=(s*3+t)*4+2*hh; return f"a[{b}:{b+1}]"
def W2(i,t):
    k=(i*2+t)*4
    return f"v[{W2V+k}:{W2V+k+3}]" if k<112 else f"a[{W2A+k-112}:{W2A+k-112+3}]"
def W2h(i,t,hh):
    k=(i*2+t)*4+2*hh
    return f"v[{W2V+k}:{W2V+k+1}]" if k<112 else f"a[{W2A+k-112}:{W2A+k-112+1}]"
V=lambda b,n=4: f"v[{b}:{b+n-1}]"
OOB=0x7FFFFF00
POLLMAX=1<<16
def M(text,tok=None): return [mk(l.strip(),tok) for l in text.split('\n') if l.strip()]
BAR=lambda *pre: list(pre)+[mk("s_barrier")]

stamp_names=[]; site_names=[]
class G(Asm):
    def __init__(s,tag='',sc=''):
        super().__init__(); s.tag=tag; s.sc=sc; s.ool=[]
    def st(s,name,grp='m'):
        if not CFG['stamps'] or s.tag=='S': return []
        if grp!='*' and not any(c in str(CFG['stamps']) for c in grp): return []
        stamp_names.append(name); i=len(stamp_names)-1
        assert i<20, "too many stamps"
        return M(f"{'s_memtime' if CFG.get('clk') else 's_memrealtime'} s[100:101]\ns_waitcnt lgkmcnt(0)\ns_mov_b32 s{STAMP0+i}, s100")
    def stamp(s,name,grp='m'): s.ext(s.st(name,grp))
    def lr(s,n,*r): LR([i for i in s.L[-n:] if isinstance(i,I)],*r)
    def lw(s,n,*r): LW([i for i in s.L[-n:] if isinstance(i,I)],*r)
    def label(s,p): s.nlab+=1; return f"L{s.tag}_{p}_{s.nlab}"
    def check(s, loads, checks, name):
        R=s.label(name+'r'); L=s.label(name+'l'); B=s.label(name+'b')
        o=Asm(); o.lab(R); o(f"s_mov_b32 s{sCNT}, 0")
        if CFG['stamps'] and s.tag!='S':
            n=len(site_names); site_names.append(name); o(f"s_bitset1_b32 s98, {n}")
        o.lab(L)
        for l in loads: o(l)
        o("s_waitcnt vmcnt(0)")
        for c in checks: o(c)
        o(f"s_cbranch_vccz {B}\ns_add_u32 s{sCNT}, s{sCNT}, 1\ns_cmp_lt_u32 s{sCNT}, {POLLMAX}\ns_cbranch_scc1 {L}\ns_branch {B}")
        s.ool.append(o.L)
        ck=[mk(c) for c in checks]
        return [mk(l) for l in loads], ck[:-1]+[[ck[-1],mk(f"s_cbranch_vccnz {R}"),mk(B+":")]]
    def flat(s, items):
        for it in items:
            if isinstance(it,list): s.ext(it)
            elif isinstance(it,tuple) and it[0] in('AT','GAP','GAPV','SYNC','AFTER','BY','DENS'): pass
            else: s.L.append(it)
    def weave(s, bb, *streams, slots=2):
        out,rest=weave(bb,streams,slots)
        s.ext(out); s.ext(rest)
        if rest and CFG.get('v'): print("  leftover fillers:",len(rest),[getattr(r,'text',r) for r in rest[:2]])

def entry(a):
    a.stamp("entry","*")
    if CFG["stamps"]: a("s_memtime s[100:101]\ns_waitcnt lgkmcnt(0)\ns_mov_b32 s99, s100\ns_mov_b32 s98, 0")
    a("s_cmp_ge_u32 s2, 256\ns_cbranch_scc1 L_end")
    for b,off in ((SK_,8),(SV_,16),(WS,96),(SSK,24),(SH_,32),(SD_,40),(SQ_,0),(SWG,56),(SWU,64),(SWD,72),(SO_,80)):
        a(f"s_load_dwordx2 s[{b}:{b+1}], s[0:1], {off}")
    a(f"v_lshrrev_b32 v40, 6, v0\nv_and_b32 v{vLane}, 63, v0")
    a(f"s_and_b32 s{sX}, s2, 7\ns_lshr_b32 s{sR}, s2, 3")
    a(f"v_readfirstlane_b32 s{sWV}, v40")
    a(f"v_lshlrev_b32 v{vL}, 4, v{vLane}")
    if CFG['prefetch']:
        a(f"s_getpc_b64 s[{sT2}:{sT2+1}]")
        a("L_pc:")
        a(f"s_lshl_b32 s{sT0}, s{sWV}, 5\ns_add_u32 s{sT0}, s{sT0}, s{sR}\ns_lshl_b32 s{sT0}, s{sT0}, 10")
        a(f"v_add_u32 v42, s{sT0}, v{vL}\nv_min_u32 v42, L_fast_end-L_pc-16, v42")
        a(f"v_mov_b32 v43, s{sT2+1}\nv_add_co_u32 v42, vcc, s{sT2}, v42")
        a(f"v_lshrrev_b32 v48, 3, v{vLane}\nv_and_b32 v49, 7, v{vLane}")
        a("v_addc_co_u32 v43, vcc, 0, v43, vcc")
        a("global_load_dwordx4 v[44:47], v[42:43], off")
    else:
        a(f"v_lshrrev_b32 v48, 3, v{vLane}\nv_and_b32 v49, 7, v{vLane}")
    a(f"v_lshlrev_b32 v49, 4, v49\nv_lshl_add_u32 v{vW2}, v48, 10, v49")
    a(f"s_lshl_b32 s{sT0}, s{sR}, 16\ns_lshl_b32 s{sT1}, s{sX}, 7\ns_add_u32 s{sT0}, s{sT0}, s{sT1}")
    a(f"s_sub_u32 s{sT1}, s{sT0}, 8192\nv_add_u32 v49, s{sT1}, v{vW2}")
    a(f"s_lshl_b32 s{sT1}, s{sWV}, 13\ns_add_u32 s{sT0}, s{sT0}, s{sT1}\nv_add_u32 v48, s{sT0}, v{vW2}")
    a(f"s_mul_i32 s{sT1}, s{sWV}, {CHP}\ns_mov_b32 s{sSOFF}, 32768")
    for b,n in ((SK_,2<<20),(SV_,2<<20),(WS,256<<20),(SSK,4096)):
        a(f"s_mov_b32 s{b+2}, {n}\ns_mov_b32 s{b+3}, 0x20000")
    a(f"v_and_b32 v{vJ}, 15, v{vLane}\nv_lshrrev_b32 v{vQ}, 4, v{vLane}")
    a(f"s_lshl_b32 s{sT0}, s{sX}, 6\ns_lshl_b32 s{sT2}, s{sWV}, 4\ns_add_u32 s{sT0}, s{sT0}, s{sT2}\nv_add_u32 v55, s{sT0}, v{vJ}")
    a(f"v_lshlrev_b32 v78, 3, v55\nv_mov_b32 v50, 0")
    a(f"s_add_u32 m0, s{sT1}, {L_K+CHP}")
    a("s_waitcnt lgkmcnt(0)"); a.stamp("kernarg","f")
    if CFG.get('probe'):
        if CFG['probe']==1: a("s_load_dwordx2 s[96:97], s[0:1], 48\ns_waitcnt lgkmcnt(0)\ns_mov_b32 s98, 0x200000\ns_mov_b32 s99, 0x20000"); S="s[96:99]"; base=0
        else: S=srd(WS); base=CFG['probe']<<24
        a(f"s_lshl_b32 s95, s2, 2\ns_add_u32 s95, s95, s{sWV}\ns_lshl_b32 s95, s95, 11\ns_add_u32 s95, s95, {base}\nv_mov_b32 v60, s95")
        for i in range(16):
            a(f"buffer_load_dword v61, v60, {S}, 0 offen offset:{128*i}\nv_and_b32 v61, 0, v61\nv_add_u32 v60, v60, v61")
    a(f"buffer_load_dwordx4 v48, {srd(SK_)}, 0 offen lds","kv")
    a(f"s_add_u32 m0, s{sT1}, {L_V}");       a(f"buffer_load_dwordx4 v48, {srd(SV_)}, 0 offen lds","kv")
    a(f"s_add_u32 m0, s{sT1}, {L_K+5*CHP}"); a(f"buffer_load_dwordx4 v48, {srd(SK_)}, s{sSOFF} offen lds","kv")
    a(f"s_add_u32 m0, s{sT1}, {L_V+4*CHP}"); a(f"buffer_load_dwordx4 v48, {srd(SV_)}, s{sSOFF} offen lds","kv")
    a(f"s_mov_b32 m0, {L_K}");               a(f"buffer_load_dwordx4 v49, {srd(SK_)}, 0 offen lds","kv")
    a.lw(10,(L_K,L_V+8*CHP))
    a(f"buffer_load_dwordx2 {V(80,2)}, v78, {srd(SSK)}, 0 offen")
    a(f"buffer_load_dword v51, v50, {srd(WS)}, 0 offen sc1")
    a.stamp("kv issued","f")
    for b,n in ((SH_,4096),(SD_,1024),(SQ_,2<<20),(SWG,512*1376*2),(SWU,512*1376*2),(SWD,512*1376*2),(SO_,2<<20)):
        a(f"s_mov_b32 s{b+2}, {n}\ns_mov_b32 s{b+3}, 0x20000")
    a(f"""s_lshr_b32 s{sT0}, s{sR}, 4
        s_lshl_b32 s{sG}, s{sX}, 1
        s_add_u32 s{sG}, s{sG}, s{sT0}
        s_and_b32 s{sM}, s{sR}, 15
        s_lshr_b32 s{sRH}, s{sM}, 3
        s_and_b32 s{sCT2}, s{sM}, 7
        s_lshr_b32 s{sKH}, s{sWV}, 1
        s_and_b32 s{sCHH}, s{sWV}, 1
        s_mov_b32 s{sMB}, 0x100000""")
    a(f"s_cmp_eq_u32 s{sM}, 15\ns_cselect_b32 s{SWG+2}, 0, s{SWG+2}\ns_cselect_b32 s{SWU+2}, 0, s{SWU+2}")
    a(f"s_lshl_b32 s{sT0}, s{sX}, 6\ns_lshl_b32 s{sT1}, s{sR}, 1\ns_add_u32 s{sT0}, s{sT0}, s{sT1}\ns_add_u32 s{sT2}, s{sT0}, s{sKH}")
    a(f"s_lshl_b32 s{sT0}, s{sT2}, 12\ns_add_u32 s{SH_}, s{SH_}, s{sT0}\ns_addc_u32 s{SH_+1}, s{SH_+1}, 0")
    a(f"s_lshl_b32 s{sT0}, s{sCHH}, 11\nv_add_u32 v52, s{sT0}, v{vL}")
    a(f"v_min_u32 v53, 1, v{vLane}\nv_lshlrev_b32 v53, 4, v53\nv_subrev_u32 v53, 32, v53\nv_add_u32 v54, 16, v53")
    a(f"s_lshl_b32 s{sT0}, s{sT2}, 1\nv_mov_b32 v{vD}, s{sT0}")
    a(f"""v_and_b32 v96, 1, v{vQ}
        v_lshlrev_b32 v96, 2, v96
        v_lshrrev_b32 v97, 2, v{vJ}
        v_add_u32 v96, v96, v97
        v_lshlrev_b32 v96, 16, v96
        v_and_b32 v97, 3, v{vJ}
        v_lshl_add_u32 v96, v97, 5, v96
        v_lshrrev_b32 v97, 1, v{vQ}
        v_lshl_add_u32 v96, v97, 4, v96
        s_lshl_b32 s{sT0}, s{sCHH}, 19
        s_lshl_b32 s{sT1}, s{sT2}, 7
        s_add_u32 s{sT0}, s{sT0}, s{sT1}
        s_add_u32 s{sT0}, s{sT0}, {OFF_YT}
        v_add_u32 v{vYo}, s{sT0}, v96
        s_mov_b32 s{sHELLO}, s{sT2}""")
    a(f"v_mov_b32 v{vOne}, {OOB}\nv_cmp_eq_u32 vcc, 0, v{vLane}\nv_cndmask_b32 v{vOne}, v{vOne}, v50, vcc")
    a(f"""s_lshl_b32 s{sT0}, s{sG}, 2
        s_lshl_b32 s{sT1}, s{sRH}, 1
        s_add_u32 s{sT1}, s{sT1}, s{sKH}
        s_add_u32 s{sT0}, s{sT0}, s{sT1}
        s_lshl_b32 s{sT1}, s{sKH}, 1
        s_add_u32 s{sT1}, s{sT1}, s{sRH}""")
    a(f"""s_lshl_b32 s{sGRl}, s{sT0}, 12
        s_add_u32 s{sGRl}, s{sGRl}, {OFF_GRAN}
        s_lshl_b32 s{sS5l}, s{sT0}, 10
        s_add_u32 s{sS5l}, s{sS5l}, {OFF_S5}
        s_lshl_b32 s{sT3}, s{sCT2}, 1
        s_add_u32 s{sT3}, s{sT3}, s{sCHH}""")
    a(f"""s_lshl_b32 s{sGR}, s{sT3}, 8
        s_add_u32 s{sGR}, s{sGR}, s{sGRl}
        s_lshl_b32 s{sS5}, s{sT3}, 2
        s_add_u32 s{sS5}, s{sS5}, s{sS5l}
        s_lshl_b32 s{sXS}, s{sG}, 17
        s_lshl_b32 s{sT1}, s{sT1}, 14
        s_add_u32 s{sXS}, s{sXS}, s{sT1}
        s_lshl_b32 s{sT1}, s{sX}, {1 if CFG['rot'] else 8}
        s_sub_u32 s{sT1}, s{sT3}, s{sT1}
        s_and_b32 s{sT1}, s{sT1}, 15
        s_lshl_b32 s{sT1}, s{sT1}, 10
        s_add_u32 s{sXS}, s{sXS}, s{sT1}
        s_add_u32 s{sXS}, s{sXS}, {OFF_XF}
        s_lshl_b32 s{sT0}, s{sT0}, 14
        s_lshl_b32 s{sT1}, s{sT3}, 6
        s_add_u32 s{sT0}, s{sT0}, s{sT1}""")
    a(f"v_lshlrev_b32 v{vTok}, 10, v{vJ}\nv_lshl_add_u32 v{vTok}, v{vQ}, 4, v{vTok}\nv_add_u32 v{vTok}, s{sT0}, v{vTok}")
    a(f"v_lshlrev_b32 v{vGs}, 4, v{vJ}\nv_lshl_add_u32 v{vGl}, v{vQ}, 10, v{vGs}\nv_lshl_add_u32 v{vGs}, v{vQ}, 2, v{vGs}")
    a(f"v_lshlrev_b32 v{vS5l}, 6, v{vJ}\nv_mov_b32 v{vS5s}, {OOB}\nv_cmp_eq_u32 vcc, 0, v{vQ}\nv_cndmask_b32 v{vS5s}, v{vS5s}, v{vS5l}, vcc")
    a(f"v_lshl_add_u32 v{vS5l}, v{vQ}, 4, v{vS5l}")
    a(f"s_lshl_b32 s{sT0}, s{sX}, 5\ns_add_u32 s{sT0}, s{sT0}, s{sR}\ns_lshl_b32 s{sHF}, s{sT0}, 7\ns_lshl_b32 s{sT0}, s{sWV}, 2\ns_add_u32 s{sHF}, s{sHF}, s{sT0}\ns_add_u32 s{sHF}, s{sHF}, {OFF_HELLO}")
    a(f"""s_lshl_b32 s{sXW}, s{sCHH}, 14
        s_lshl_b32 s{sT0}, s{sKH}, 12
        s_add_u32 s{sXW}, s{sXW}, s{sT0}
        s_lshl_b32 s{sT0}, s{sG}, 17
        s_add_u32 s{sT0}, s{sT0}, s{sXW}
        s_add_u32 s{sT0}, s{sT0}, {OFF_XF}
        v_add_u32 v{vXD}, s{sT0}, v{vL}
        s_lshl_b32 s{sHW}, s{sWV}, 13
        s_mul_i32 s{sHK}, s{sKH}, {3*8192}
        s_lshl_b32 s{sHS}, s{sKH}, 13
        s_add_u32 s{sHS}, s{sHS}, 8192
        s_lshl_b32 s{sT0}, s{sG}, 3
        s_add_u32 s{sT1}, s{sRH}, s{sT0}
        s_mul_i32 s{sT1}, s{sT1}, {HKS}
        s_mul_i32 s{sT3}, s{sKH}, 21
        s_add_u32 s{sT1}, s{sT1}, s{sT3}
        s_lshl_b32 s{sT1}, s{sT1}, 10
        s_add_u32 s{sT1}, s{sT1}, {OFF_H}
        v_add_u32 v{vHD}, s{sT1}, v{vL}""")
    a(f"""s_mul_i32 s{sT0}, s{sT0}, {HKS*1024}
        s_mul_i32 s{sT1}, s{sM}, 12
        s_mul_i32 s{sT3}, s{sWV}, 3
        s_add_u32 s{sT1}, s{sT1}, s{sT3}
        s_lshl_b32 s{sT1}, s{sT1}, 8
        s_add_u32 s{sT0}, s{sT0}, s{sT1}
        s_add_u32 s{sT0}, s{sT0}, {OFF_H}
        s_mov_b32 s{sT1}, {HKS*1024}
        v_lshlrev_b32 v97, 4, v{vJ}
        v_add_u32 v97, s{sT0}, v97
        v_and_b32 v98, 1, v{vQ}
        v_mad_u32_u24 v{vHS1}, v98, s{sT1}, v97
        v_add_u32 v{vHS2}, 512, v{vHS1}
        v_cmp_gt_u32 vcc, 32, v{vLane}
        v_mov_b32 v97, {OOB}
        v_cndmask_b32 v{vHS2}, v97, v{vHS2}, vcc
        v_lshrrev_b32 v98, 1, v{vQ}
        v_lshl_add_u32 v{vHS1}, v98, 8, v{vHS1}
        v_lshlrev_b32 v{vFX}, 2, v{vLane}
        v_min_u32 v{vFH}, 57, v{vLane}
        v_lshlrev_b32 v{vFH}, 2, v{vFH}
        s_lshl_b32 s{sFL}, s{sG}, 9
        s_lshl_b32 s{sFLG}, s{sM}, 2
        s_add_u32 s{sFLG}, s{sFLG}, s{sWV}
        s_lshl_b32 s{sFLG}, s{sFLG}, 2
        s_add_u32 s{sFLG}, s{sFLG}, s{sFL}
        s_nop 0""")
    w_setup(a)
    a(f"""v_mul_u32_u24 v83, {2*CHP}, v{vQ}
        v_bfe_u32 v101, v{vLane}, 2, 2
        v_lshl_add_u32 v83, v101, 7, v83
        v_and_b32 v101, 3, v{vLane}
        v_lshl_add_u32 v83, v101, 3, v83
        s_lshl_b32 s{sT0}, s{sWV}, 5
        v_add_u32 v83, s{sT0}, v83""")
    a(f"v_and_b32 v55, -9, v55\nv_lshlrev_b32 v55, 12, v55\nv_lshl_add_u32 v55, v{vQ}, 5, v55\nv_lshrrev_b32 v101, 3, v{vJ}\nv_lshl_add_u32 v55, v101, 4, v55\ns_lshl_b32 s{sT0}, s{sR}, 7\ns_add_u32 s{sT0}, s{sT0}, {OFF_KVT}\nv_add_u32 v55, s{sT0}, v55")
    a(f"v_lshrrev_b32 v100, 5, v{vLane}\nv_mul_u32_u24 v100, {UCH-512}, v100\nv_add_u32 v100, v100, v{vL}")
    a("v_mov_b32 v104, 0\nv_mov_b32 v105, 0\nv_mov_b32 v106, 0\nv_mov_b32 v107, 0")
    a(f"ds_write_b128 v100, {V(104)} offset:{L_U}"); a.lw(1,(L_U,L_U+512),(L_U+UCH,L_U+UCH+512))
    ssm_loads(a)
    a(f"""v_lshlrev_b32 v{vCg}, 4, v{vJ}
        v_lshl_add_u32 v{vCg}, v{vQ}, 18, v{vCg}
        v_lshrrev_b32 v{vCs}, 3, v{vLane}
        v_lshlrev_b32 v{vCs}, 16, v{vCs}
        v_and_b32 v100, 7, v{vLane}
        v_lshl_add_u32 v{vCs}, v100, 4, v{vCs}
        s_lshl_b32 s{sT0}, s{sCHH}, 17
        s_lshl_b32 s{sT1}, s{sCT2}, 7
        s_add_u32 s{sT0}, s{sT0}, s{sT1}
        s_add_u32 s{sT0}, s{sT0}, s{sS5l}
        v_add_u32 v{vCs}, s{sT0}, v{vCs}
        v_cmp_gt_u32 vcc, 16, v{vLane}
        v_mov_b32 v100, {OOB}
        v_add_u32 v{vCg}, s{sGR}, v{vCg}
        v_cndmask_b32 v{vCs}, v100, v{vCs}, vcc""")
    if CFG['clr']==0: clears(a)
    a.stamp("setup done","f")

def ssm_loads(a):
    for rho,(va,off) in enumerate(((52,0),(52,1024))):
        d=56+8*rho
        a(f"buffer_load_dwordx4 {V(d)}, v{va}, {srd(SH_)}, 0 offen offset:{off}")
        a(f"buffer_load_dwordx2 {V(d+4,2)}, v{va}, {srd(SH_)}, 0 offen offset:{off+16}")
    a(f"buffer_load_dwordx4 {V(72)}, v53, {srd(SH_)}, 0 offen")
    a(f"buffer_load_dwordx2 {V(76,2)}, v54, {srd(SH_)}, 0 offen")
    a(f"buffer_load_ushort v{vD}, v{vD}, {srd(SD_)}, 0 offen")

def clears(a):
    a("v_mov_b32 v112, -1\nv_mov_b32 v113, -1\nv_mov_b32 v114, -1\nv_mov_b32 v115, -1")
    a(f"""buffer_store_dwordx4 {V(112)}, v{vYo}, {srd(WS)}, 0 offen sc1
        buffer_store_dwordx4 {V(112)}, v{vYo}, {srd(WS)}, s{sMB} offen sc1
        buffer_store_dwordx4 {V(112)}, v{vCg}, {srd(WS)}, 0 offen sc1
        buffer_store_dwordx4 {V(112)}, v{vCs}, {srd(WS)}, 0 offen sc1""")

def w_setup(a):
    lane,j,q=vLane,vJ,vQ
    for b in range(3):
        a(f"v_add_u32 v100, {64*b}, v{lane}\nv_mul_u32_u24 v101, 43691, v100\nv_lshrrev_b32 v101, 19, v101")
        a(f"v_mul_u32_u24 v102, 12, v101\nv_sub_u32 v100, v100, v102\nv_lshlrev_b32 v100, 4, v100")
        a(f"v_mul_u32_u24 v101, 2752, v101\nv_add_u32 v{vW1[b]}, v100, v101")
    a(f"s_mul_i32 s{sT0}, s{sWV}, {16*2752}\ns_mul_i32 s{sT1}, s{sM}, 192\ns_add_u32 s{sT0}, s{sT0}, s{sT1}")
    for b in range(3):
        a(f"v_add_u32 v{vW1[b]}, s{sT0}, v{vW1[b]}")
        if b: a(f"v_subrev_u32 v{vW1[b]}, {1024*b}, v{vW1[b]}")
    a(f"""v_bfe_u32 v100, v{lane}, 2, 2
        v_lshl_add_u32 v100, v{q}, 3, v100
        v_and_b32 v101, 3, v{lane}
        v_mul_u32_u24 v102, 192, v100
        s_mul_i32 s{sT0}, s{sWV}, 48
        v_add_u32 v102, s{sT0}, v102
        v_lshl_add_u32 v{vTa}, v101, 3, v102
        v_and_b32 v103, 1, v101
        v_mul_u32_u24 v103, 12288, v103
        v_add_u32 v102, v102, v103
        v_lshrrev_b32 v103, 1, v101
        v_lshl_add_u32 v102, v103, 3, v102
        v_add_u32 v{vTm}, 32, v102
        v_lshlrev_b32 v102, 7, v100
        v_lshl_add_u32 v102, v101, 4, v102
        s_lshl_b32 s{sT1}, s{sWV}, 12
        s_add_u32 s{sT1}, s{sT1}, {L_PP}
        v_add_u32 v{vT2}, s{sT1}, v102
        s_mul_i32 s{sW1W}, s{sWV}, 3072""")

def c_dma(n, slot):
    if CFG.get('now1'): return []
    L=M(f"s_add_u32 s{sWo}, s{sX}, {n}\ns_and_b32 s{sWo}, s{sWo}, 7\ns_mul_i32 s{sWo}, s{sWo}, {64*2752}") if CFG['rot'] else M(f"s_mov_b32 s{sWo}, {n*64*2752}")
    for mat,S in ((0,SWG),(1,SWU)):
        L+=M(f"s_add_u32 m0, s{sW1W}, {slot+mat*12288}")
        for b in range(3): L+=M(f"buffer_load_dwordx4 v{vW1[b]}, {srd(S)}, s{sWo} offen offset:{1024*b} lds",f"c{n}")
    return LW(L,(slot,slot+WSL))
def c_read(n, slot):
    if CFG.get('now1'): return []
    L=M(f"v_add_u32 v{vWc0}, {slot}, v{vTa}\nv_add_u32 v{vWc1}, {slot}, v{vTm}")
    for sp in range(2):
        s=2*n+sp
        for hh in range(2):
            o=sp*6144+hh*768
            L+=M(f"""ds_read_b64_tr_b16 {W1h(s,0,hh)}, v{vWc0} offset:{o}
                     ds_read_b64_tr_b16 {W1h(s,1,hh)}, v{vWc0} offset:{o+12288}
                     ds_read_b64_tr_b16 {W1h(s,2,hh)}, v{vWc1} offset:{o}""",f"cr{n}")
    return LR(L,(slot,slot+WSL))
def pp_setup():
    return M(f"""s_lshl_b32 s{sT0}, s{sWV}, 8
        s_add_u32 s{sT0}, s{sT0}, s2
        s_mul_i32 s{sT1}, s{sT0}, 1525
        s_lshr_b32 s{sT1}, s{sT1}, 16
        s_mul_i32 s{sT2}, s{sT1}, 43
        s_sub_u32 s{sT2}, s{sT0}, s{sT2}
        s_lshl_b32 s{sPS}, s{sT2}, 15
        s_lshl_b32 s{sT3}, s{sT1}, 7
        s_add_u32 s{sPS}, s{sPS}, s{sT3}
        s_mul_i32 s{sPD}, s{sT1}, 86
        s_add_u32 s{sPD}, s{sPD}, s{sT2}
        s_lshl_b32 s{sPD}, s{sPD}, 11
        s_add_u32 s{sPD}, s{sPD}, {OFF_P2}
        s_lshl_b32 s{sPF}, s{sT0}, 7
        s_add_u32 s{sPF}, s{sPF}, {OFF_P2F}
        s_cmp_lt_u32 s{sT0}, 344
        s_cselect_b32 s{sPS}, s{sPS}, {OOB}
        s_cselect_b32 s{sPD}, s{sPD}, {OOB}
        s_cselect_b32 s{sPF}, s{sPF}, {OOB}
        s_lshl_b32 s{sT0}, s{sCT2}, 1
        s_add_u32 s{sT0}, s{sT0}, s{sCHH}
        s_mul_i32 s{sT0}, s{sT0}, 43
        s_mul_i32 s{sT1}, s{sKH}, 21
        s_add_u32 s{sT0}, s{sT0}, s{sT1}
        s_lshl_b32 s{sT0}, s{sT0}, 11
        s_add_u32 s{sW2B}, s{sT0}, {OFF_P2}
        s_cmp_eq_u32 s{sKH}, 0
        s_cselect_b32 s{sW20}, s{sW2B}, {OOB}""")
def pp_load():
    L=M(f"s_lshl_b32 s{sT3}, s{sWV}, 12")
    for r in range(4):
        L+=M(f"s_add_u32 m0, s{sT3}, {L_PP+1024*r}\ns_add_u32 s{sWo}, s{sPS}, {8192*r}")
        L+=M(f"buffer_load_dwordx4 v{vW2}, {srd(SWD)}, s{sWo} offen lds","pp")
    return LW(L,(-4,-3))
def pp_pack():
    L=[('WVM','pp')]
    for c in range(2):
        for t in range(2):
            for hh in range(2): L+=LR(M(f"ds_read_b64_tr_b16 {V(W2V+8*c+4*t+2*hh,2)}, v{vT2} offset:{hh*512+64*c+8*t}"),(-6,-5))
    S=[]
    for c in range(2):
        S+=M(f"s_add_u32 s{sT2}, s{sPD}, {c*43*2048}")
        for t in range(2): S+=M(f"buffer_store_dwordx4 {V(W2V+8*c+4*t)}, v{vL}, {srd(WS)}, s{sT2} offen offset:{1024*t} sc1","pps")
    return L,S
def w2_loads():
    L=[]
    for i in range(22):
        so=sW20 if i==0 else (sW2B if i==1 else sPS)
        if i>=2 and i%2==0: L+=M(f"s_add_u32 s{sPS}, s{sW2B}, {i*2048}")
        for t in range(2): L+=M(f"buffer_load_dwordx4 {W2(i,t)}, v{vL}, {srd(WS)}, s{so} offen offset:{(i&1)*2048+t*1024} sc1")
    return L
W2Q=[]
def w2_take(n):
    out=[]
    while W2Q and n>0:
        x=W2Q.pop(0); out.append(x)
        if x.kind=='vmem': n-=1
    return out

PLANS={
 0:dict(),
 1:dict(FL="i0", T2="i1", CV=[("a",20,"r0"),("d",40,"i2"),("a",84,"w1 b r1"),("d",100,"i3@0")], YS="i4@5", YA="w3 b r2 r3", GL="i5@1 w4 l b r4", ST="i6@2", PEND=[5,6], REST=["7@0"]),
 2:dict(FL="i0", T2="i1", CV=[("a",20,"r0"),("d",30,"i2"),("a",70,"w1 b r1"),("d",80,"i3@0"),("a",124,"w2 b r2")], YS="i4@5 i5@1", YA="w4 b r3 r4", GL="i6@2 w5 l b r5", ST="i7@0", PEND=[6,7], FA="p4", FB="p4", XD="p4"),
 9:dict(ST="i0 i1 "+" ".join(f"w{n} l b "+(f"i{n+2} " if n+2<8 else "")+f"r{n}" for n in range(8))+" l b"),
}
slot_of={}
def wops(txt):
    L=[]
    for op in txt.split():
        at=None
        if '@' in op: op,at=op.split('@'); at=int(at)
        k=int(op[1:]) if len(op)>1 else None
        if op[0]=='i': slot_of[k]=SLOT[at if at is not None else k%3]; L+=c_dma(k,slot_of[k])
        elif op[0]=='r': L+=c_read(k,slot_of[k])
        elif op[0]=='w': L.append(('WVM',f"c{k}"))
        elif op[0]=='l': L+=M("s_waitcnt lgkmcnt(0)")
        elif op[0]=='L': L.append(('WLG',f"cr{k}"))
        elif op[0]=='b': L+=M("s_barrier")
        elif op[0]=='p': L+=w2_take(k)
    return L
def PL(): return eval(CFG['plan']) if isinstance(CFG['plan'],str) else PLANS[CFG['plan']]
def Wp(a,point): a.flat(wops(PL().get(point,"")))

def toeplitz(a):
    a(f"s_mul_i32 s{sT0}, s{sKH}, {TCH}\ns_add_u32 s{sT0}, s{sT0}, {L_TOEP+32}")
    a(f"v_add_u32 v52, s{sT0}, v52\nv_add_u32 v53, s{sT0}, v53")
    for rho,(va,off) in enumerate(((52,0),(52,1024),(53,0))):
        d=56+8*rho; t=100+12*(rho%2)
        a(f"ds_write_b128 v{va}, {V(d)} offset:{off}")
        for i in range(4): a(f"v_alignbit_b32 v{t+i}, v{d+i+1}, v{d+i}, 16")
        a(f"ds_write_b128 v{va}, {V(t)} offset:{off+TCP}")
        for i in range(4): a(f"v_mov_b32 v{t+4+i}, v{d+i+1}")
        a(f"ds_write_b128 v{va}, {V(t+4)} offset:{off+2*TCP}")
        for i in range(4): a(f"v_alignbit_b32 v{t+8+i}, v{d+i+2}, v{d+i+1}, 16")
        a(f"ds_write_b128 v{va}, {V(t+8)} offset:{off+3*TCP}"); a.lw(16,(L_TOEP,L_TOEP+2*TCH))

def p0(a):
    a.waitvm("kv"); a("s_barrier")
    a.stamp("kv landed","f")
    KR=84; VR=94
    for i in range(5):
        R=4+4*i; a(f"ds_read_b64_tr_b16 {V(KR+2*i,2)}, v83 offset:{L_K+(R>>3)*CHP+(R&7)*128}")
    for i in range(4):
        R=4*i; a(f"ds_read_b64_tr_b16 {V(VR+2*i,2)}, v83 offset:{L_V+(R>>3)*CHP+(R&7)*128}")
    a.lr(9,(L_K,L_V+8*CHP))
    a("v_lshlrev_b32 v40, 16, v80\nv_and_b32 v41, 0xffff0000, v80\nv_lshlrev_b32 v42, 16, v81\nv_and_b32 v43, 0xffff0000, v81")
    K=lambda t: 108+t-2
    for i in range(10):
        if i>0: a(f"v_lshlrev_b32 v{102+2*i}, 16, v{KR+i}")
        a(f"v_and_b32 v{103+2*i}, 0xffff0000, v{KR+i}")
    O=16
    for t in range(16):
        a(f"v_mul_f32 v{O+t}, v40, v{K(t)}")
        a(f"v_fmac_f32 v{O+t}, v41, v{K(t-1)}")
        a(f"v_fmac_f32 v{O+t}, v42, v{K(t-2)}")
        a(f"v_fmac_f32 v{O+t}, v43, v{K(t-3)}")
    for i in range(8):
        a(f"v_lshlrev_b32 v102, 16, v{VR+i}\nv_and_b32 v103, 0xffff0000, v{VR+i}")
        a(f"v_mul_f32 v{O+2*i}, v{O+2*i}, v102\nv_mul_f32 v{O+1+2*i}, v{O+1+2*i}, v103")
    for o in range(2):
        for d in range(4): a(f"v_cvt_pk_bf16_f32 v{KR+4*o+d}, v{O+8*o+7-2*d}, v{O+8*o+6-2*d}")
    for d in range(4): a(f"v_mov_b32 v{102+d}, v{KR+4+d}")
    for d in range(4): a(f"v_mov_b32_dpp v{KR+4+d}, v{KR+d} row_ror:8 row_mask:0xf bank_mask:0x3")
    for d in range(4): a(f"v_mov_b32_dpp v{KR+d}, v{102+d} row_ror:8 row_mask:0xf bank_mask:0xc")
    a(f"s_mov_b32 s{sT0}, 32768")
    a(f"buffer_store_dwordx4 {V(KR)}, v55, {srd(WS)}, 0 offen sc1\nbuffer_store_dwordx4 {V(KR+4)}, v55, {srd(WS)}, s{sT0} offen sc1","kvs")
    a.stamp("p0 computed","f")
    if CFG['clr']==1: clears(a)
    Wp(a,'T1')
    a(f"s_mov_b32 s{sCH}, s{sHELLO}\ns_getreg_b32 s{sHELLO}, hwreg(HW_REG_XCC_ID, 0, 4)")
    a(f"v_readfirstlane_b32 s{sTAG}, v51")
    a(f"s_add_u32 s{sTAG}, s{sTAG}, 0x9E3779B0\ns_and_b32 s{sTAG}, s{sTAG}, 0xFFFFFFF0\ns_and_b32 s{sHELLO}, s{sHELLO}, 15\ns_or_b32 s{sHELLO}, s{sHELLO}, s{sTAG}")
    a(f"v_mov_b32 v{vTAG}, s{sTAG}\nv_mov_b32 v98, s{sHELLO}")
    a.ext(pp_setup())
    a(f"""s_add_u32 s{sFLH}, s{sFLG}, s{sFL}
        s_lshl_b32 s{sC4}, s{sCHH}, 12
        s_mul_i32 s{sC3}, s{sCHH}, 3072
        s_lshl_b32 s{sM4}, s{sKH}, 14
        s_add_u32 s{sM3}, s{sM4}, s{sC3}
        s_add_u32 s{sM4}, s{sM4}, s{sC4}""")
    a(f"s_lshl_b32 s{sT0}, s{sX}, 2\ns_add_u32 s{sT1}, s{sT0}, s{sWV}\ns_lshl_b32 s{sT1}, s{sT1}, 5\ns_add_u32 s{sT1}, s{sT1}, s{sR}\ns_lshl_b32 s{sT1}, s{sT1}, 7\ns_add_u32 s{sT1}, s{sT1}, {OFF_F1}")
    a(f"s_lshr_b32 s{sCK1}, s{sR}, 3\ns_add_u32 s{sCK1}, s{sCK1}, s{sT0}\ns_lshl_b32 s{sCK1}, s{sCK1}, 12\ns_add_u32 s{sCK1}, s{sCK1}, {OFF_F1}")
    a(f"v_and_b32 v97, 31, v{vLane}\nv_lshlrev_b32 v97, 7, v97")
    a.waitvm("kvs")
    a(f"buffer_store_dword v{vTAG}, v{vOne}, {srd(WS)}, s{sT1} offen sc1")
    if CFG['clr']==0: a(f"buffer_store_dword v98, v{vOne}, {srd(WS)}, s{sHF} offen sc1")
    a.stamp("kvT published","f")
    Wp(a,'FL')
    toeplitz(a)
    a(f"""s_lshl_b32 s{sT0}, s{sCH}, 12
        s_lshl_b32 s{sT1}, s{sCHH}, 11
        s_add_u32 s{sT0}, s{sT0}, s{sT1}
        s_add_u32 s{sT0}, s{sT0}, {OFF_KVT}
        s_mul_i32 s{sUO}, s{sKH}, {UCH}
        s_add_u32 s{sT1}, s{sT1}, s{sUO}""")
    a.stamp("toeplitz","f")
    ld,ck=a.check([f"buffer_load_dword v99, v97, {srd(WS)}, s{sCK1} offen sc1"],[f"v_cmp_ne_u32 vcc, s{sTAG}, v99"],"f1")
    a.flat(ld)
    a(f"""s_lshl_b32 s{sT3}, s{sCHH}, 8
        s_sub_u32 s{sT2}, s{sUO}, s{sT3}
        s_add_u32 s{sT2}, s{sT2}, {L_U+480-192}
        v_lshlrev_b32 v141, 5, v{vJ}
        v_lshl_add_u32 v141, v{vQ}, 4, v141
        v_add_u32 v141, s{sT2}, v141
        v_add_u32 v142, 1, v{vJ}
        v_and_b32 v143, 3, v142
        v_mul_u32_u24 v143, {TCP}, v143
        v_lshrrev_b32 v142, 2, v142
        v_lshl_add_u32 v142, v142, 3, v143
        v_lshlrev_b32 v143, 4, v{vQ}
        v_sub_u32 v142, v142, v143
        s_mul_i32 s{sT2}, s{sKH}, {TCH}
        s_add_u32 s{sT2}, s{sT2}, s{sT3}
        s_add_u32 s{sT2}, s{sT2}, {L_TOEP+48}
        v_add_u32 v142, s{sT2}, v142
        s_add_u32 m0, s{sT1}, {L_U+512}""")
    a.flat(ck)
    a.stamp("f1 seen","f")
    a(f"buffer_load_dwordx4 v{vL}, {srd(WS)}, s{sT0} offen sc1 lds","u")
    a(f"buffer_load_dwordx4 v{vL}, {srd(WS)}, s{sT0} offen offset:1024 sc1 lds","u")
    a.lw(2,(L_U+512,L_U+UCH),(L_U+UCH+512,L_U+2*UCH))
    if CFG['clr']==1: a(f"buffer_store_dword v98, v{vOne}, {srd(WS)}, s{sHF} offen sc1")
    Wp(a,'T2')
    a(f"v_lshlrev_b32 v{vD}, 16, v{vD}")
    a.waitvm("u"); a("s_waitcnt lgkmcnt(0)\ns_barrier")
    a.stamp("U landed","f")

def conv(a):
    ACC=40; GR=72; UR=104-16-0
    GR=72; UR=104
    assert UR+32<=136
    Ureg=[16,20,24,28,32,36,104,108]
    rdU=lambda w,it: LR(mk(f"ds_read_b128 {V(Ureg[w])}, v141 offset:{512*w+192-64*it}"),(L_U,L_U+2*UCH))
    rdG=lambda e,it: LR([mk(f"ds_read_b64 {V(GR+4*e,2)}, v142 offset:{512*e+64*it}"), mk(f"ds_read_b64 {V(GR+4*e+2,2)}, v142 offset:{512*e+64*it+8}")],(L_TOEP,L_TOEP+2*TCH))
    bb=rdG(0,0)
    for w in range(7,-1,-1): bb.append(rdU(w,0))
    pend=[]
    for e in range(1,8): pend+=rdG(e,0)
    nm=0
    BP={}
    for it in range(4):
        for e in range(8):
            for w in range(7-e,-1,-1):
                c=w+e; C = "0" if (it==0 and e==0) else V(ACC+4*c)
                bb.append(mk(f"v_mfma_f32_16x16x32_bf16 {V(ACC+4*c)}, {V(GR+4*e)}, {V(Ureg[w])}, {C}")); nm+=1
                if nm in BP: bb+=BP[nm]; continue
                k=0
                while pend and k<(2 if (it==0 and e==0) or len(pend)>3 else 1): bb.append(pend.pop(0)); k+=1
            if it<3: pend += [rdU(7-e,it+1)]+rdG(e,it+1)
        if it<3: bb+=pend; pend=[]
    qld=M(f"""buffer_load_dwordx4 {V(116)}, v{vTok}, {srd(SQ_)}, 0 offen
        buffer_load_dwordx4 {V(120)}, v{vTok}, {srd(SQ_)}, s{sMB} offen
        buffer_load_dword v{vCg}, v{vCg}, {srd(WS)}, 0 offen sc1
        buffer_load_dword v{vCs}, v{vCs}, {srd(WS)}, 0 offen sc1""")
    pre=M(f"""v_and_b32 v112, 7, v{vLane}
        v_lshlrev_b32 v112, 7, v112
        v_bfe_u32 v113, v{vLane}, 3, 2
        v_lshl_add_u32 v112, v113, 14, v112
        s_lshl_b32 s{sCK2}, s{sFL}, 1
        s_add_u32 s{sCK2}, s{sCK2}, {OFF_XFLAG}
        v_and_b32 v143, 31, v{vLane}
        v_lshlrev_b32 v143, 7, v143
        v_cmp_gt_u32 vcc, 32, v{vLane}
        s_lshl_b32 s{sT0}, s{sCT2}, 12
        s_lshl_b32 s{sT1}, s{sX}, 12
        v_mov_b32 v113, s{sT0}
        v_mov_b32 v114, s{sT1}
        v_cndmask_b32 v113, v113, v114, vcc
        s_mov_b32 s{sCK1}, {OFF_HELLO}
        v_add_u32 v{vHa}, v143, v113""")
    qld+=M(f"buffer_load_dword v112, v112, {srd(WS)}, s{sCK2} offen sc1")
    hl,hc=a.check([f"buffer_load_dwordx4 {V(112)}, v{vHa}, {srd(WS)}, s{sCK1} offen sc1"],
         [f"v_xor_b32 v113, s{sTAG}, v113",f"v_xor_b32 v114, s{sTAG}, v114",f"v_xor_b32 v115, s{sTAG}, v115",
          "v_or3_b32 v113, v113, v114, v115",f"v_xor_b32 v114, s{sTAG}, v112","v_or_b32 v113, v113, v114","v_cmp_lt_u32 vcc, 15, v113"],"h2")
    hc+=[M(f"v_cmp_ne_u32 vcc, s{sHELLO}, v112\ns_nop 0\ns_mov_b32 s{sHELLO}, vcc_lo")]
    g=CFG['cgap']
    pk,ps=pp_pack()
    dmas=paced(pp_load(),2)+[('AFTER','z'),('AT',CFG['cq'])]+paced(qld,3); fill=pre+[('SYNC','z')]
    for kind,at,ops in PL().get('CV',[]):
        it=wops(ops)
        if kind=='d': dmas+=[('AT',at)]+paced(it,g)
        else:
            k=[i for i,x in enumerate(it) if isinstance(x,I) and x.op=='s_barrier']
            if k: it=[it[:k[0]+1]]+it[k[0]+1:]
            fill+=[('AT',at)]+it
    dmas+=[('AT',CFG['chl'])]+hl
    third=[('AT',CFG['cpp'])]+pk+[('GAP',5)]+paced(ps,4)
    a.hc=hc
    fill += [('AT',112)] + M(f"""s_lshl_b32 s{sT0}, s{sWV}, 12
        s_add_u32 s{sT1}, s{sT0}, {L_CX}
        v_add_u32 v141, s{sT1}, v{vL}
        s_xor_b32 s{sT0}, s{sT0}, 4096
        s_add_u32 s{sT0}, s{sT0}, {L_CX}
        v_add_u32 v142, s{sT0}, v{vL}
        s_lshl_b32 s{sT0}, s{sCHH}, 10
        s_add_u32 s{sT0}, s{sT0}, s{sUO}
        s_add_u32 s{sT0}, s{sT0}, {L_U+512+8}
        v_lshlrev_b32 v143, 5, v{vJ}
        v_lshrrev_b32 v124, 1, v{vQ}
        v_lshl_add_u32 v143, v124, 4, v143
        v_and_b32 v124, 1, v{vQ}
        v_lshlrev_b32 v124, 3, v124
        v_sub_u32 v143, v143, v124
        v_add_u32 v143, s{sT0}, v143""")
    a.weave(bb,dmas,fill,third)
    a.stamp("conv mfma done","f")
    keep=[[0,1,4,5],[2,3,6,7]]
    for k,c in enumerate(keep[0]): a(f"ds_read_b64 {V(72+2*k,2)}, v143 offset:{512*c}")
    a.lr(4,(L_U,L_U+2*UCH))
    Wp(a,'CE')
    L1=a.label("cx"); L2=a.label("cx")
    a(f"s_cmp_eq_u32 s{sCHH}, 1\ns_nop 1\ns_cbranch_scc1 {L1}")
    for k,c in enumerate(keep[1]): a(f"ds_write_b128 v141, {V(ACC+4*c)} offset:{1024*k}")
    a.lw(4,(L_CX,L_CX+16384))
    a(f"s_waitcnt lgkmcnt(0)\ns_branch {L2}"); a.lab(L1)
    for k,c in enumerate(keep[0]): a(f"ds_write_b128 v141, {V(ACC+4*c)} offset:{1024*k}")
    a.lw(4,(L_CX,L_CX+16384))
    a("s_waitcnt lgkmcnt(0)")
    for k in range(16): a(f"v_mov_b32 v{ACC+4*keep[0][k//4]+k%4}, v{ACC+4*keep[1][k//4]+k%4}")
    a.lab(L2)
    a("s_barrier")
    for k in range(4): a(f"ds_read_b128 {V(80+4*k)}, v142 offset:{1024*k}")
    a.lr(4,(L_CX,L_CX+16384))
    for k,c in enumerate(keep[0]):
        A=ACC+4*c
        a(f"v_and_b32 v100, 0xffff0000, v{73+2*k}\nv_lshlrev_b32 v101, 16, v{73+2*k}\nv_and_b32 v102, 0xffff0000, v{72+2*k}\nv_lshlrev_b32 v103, 16, v{72+2*k}")
        for r in range(4): a(f"v_fmac_f32 v{A+r}, v{vD}, v{100+r}")
    for k,c in enumerate(keep[0]):
        A=ACC+4*c
        for r in range(4): a(f"v_add_f32 v{A+r}, v{A+r}, v{80+4*k+r}")
        a(f"v_cvt_pk_bf16_f32 v{104+2*k}, v{A}, v{A+1}\nv_cvt_pk_bf16_f32 v{105+2*k}, v{A+2}, v{A+3}")
        if k&1:
            b=104+2*(k-1)
            a(f"v_permlane16_swap_b32 v{b}, v{b+2}\nv_permlane16_swap_b32 v{b+1}, v{b+3}")
            a(f"buffer_store_dwordx4 {V(b)}, v{vYo}, {srd(WS)}, {'0' if k==1 else 's%d'%sMB} offen sc1","yt")
    a.stamp("yT stored","f")

def gather_y(a):
    lane=vLane
    Wp(a,'YS')
    for mu in range(2):
        for i in range(4):
            a(f"v_lshlrev_b32 v{vXst[mu]+2*i}, 16, v{116+4*mu+i}\nv_and_b32 v{vXst[mu]+2*i+1}, 0xffff0000, v{116+4*mu+i}")
    a(f"""v_lshrrev_b32 v101, 2, v0
        v_lshlrev_b32 v101, 7, v101
        v_and_b32 v102, 3, v0
        v_lshl_add_u32 v101, v102, 4, v101
        s_lshl_b32 s{sT0}, s{sG}, 16
        s_lshl_b32 s{sT1}, s{sCT2}, 13
        s_add_u32 s{sT0}, s{sT0}, s{sT1}
        s_lshl_b32 s{sT1}, s{sRH}, 6
        s_add_u32 s{sT0}, s{sT0}, s{sT1}
        s_add_u32 s{sCK2}, s{sT0}, {OFF_YT}
        s_add_u32 s{sCK3}, s{sCK2}, 0x100000
        v_lshlrev_b32 v102, 4, v0
        v_bfe_u32 v103, v{lane}, 2, 2
        v_lshl_add_u32 v103, v{vQ}, 3, v103
        v_lshlrev_b32 v103, 6, v103
        v_and_b32 v104, 3, v{lane}
        v_lshl_add_u32 v103, v104, 3, v103
        s_lshl_b32 s{sT0}, s{sCHH}, 11
        s_lshl_b32 s{sT1}, s{sKH}, 5
        s_add_u32 s{sT0}, s{sT0}, s{sT1}
        v_add_u32 v103, s{sT0}, v103""")
    for mu in range(2): a.flat(fin1a(mu))
    a.flat(a.hc)
    Wp(a,'YA')
    a.waitvm("yt")
    a(f"buffer_store_dword v{vTAG}, v{vOne}, {srd(WS)}, s{sPF} offen sc1")
    a.stamp("yT acked","f")
    gl,gc=a.check([f"buffer_load_dwordx4 {V(48)}, v101, {srd(WS)}, s{sCK2} offen sc1",f"buffer_load_dwordx4 {V(52)}, v101, {srd(WS)}, s{sCK3} offen sc1"],
         ["v_max3_u32 v56, v48, v49, v50","v_max3_u32 v56, v56, v51, v52","v_max3_u32 v56, v56, v53, v54","v_max_u32 v56, v56, v55","v_cmp_eq_u32 vcc, -1, v56"],"yt")
    a.flat(gl)
    Wp(a,'GL')
    a.flat(gc)
    a.stamp("yT gathered","f")
    a(f"ds_write_b128 v102, {V(48)} offset:{L_YS}\nds_write_b128 v102, {V(52)} offset:{L_YS+4096}"); a.lw(2,(L_YS,L_YS+8192))
    a("s_waitcnt lgkmcnt(0)\ns_barrier")
    for mu in range(2):
        for hh in range(2):
            a(f"ds_read_b64_tr_b16 {V(vYY[mu]+2*hh,2)}, v103 offset:{L_YS+4096*mu+256*hh}"); a.lr(1,(L_YS,L_YS+8192) if CFG.get('strict') else (-2,-1))
    Wp(a,'ST')
    a("s_waitcnt lgkmcnt(0)")
    if CFG['slow']==2: a("s_branch L_slow")
    elif CFG['slow']: a(f"s_cmp_lg_u32 s{sHELLO}, 0\ns_cbranch_scc1 L_slow")

def unpackY(mu,T):
    L=[]
    for i in range(4): L+=M(f"v_lshlrev_b32 v{T+2*i}, 16, v{vYY[mu]+i}\nv_and_b32 v{T+2*i+1}, 0xffff0000, v{vYY[mu]+i}")
    return L
def treduce(s0,s1,s2,s3,gap=[]):
    return M(f"v_permlane32_swap_b32 v{s0}, v{s2}\nv_permlane32_swap_b32 v{s1}, v{s3}\nv_add_f32 v{s0}, v{s0}, v{s2}\nv_add_f32 v{s1}, v{s1}, v{s3}")+gap+M(f"v_permlane16_swap_b32 v{s0}, v{s1}\nv_add_f32 v{s0}, v{s0}, v{s1}")

SX=[104,106]
def fin1a(mu,S=None):
    X=vXst[mu]; S=SX[mu] if S is None else S
    L=M(f"v_add_f32 v{S}, v{X}, v{X+1}\nv_mul_f32 v{S+1}, v{X}, v{X}")
    for e in range(1,8):
        if e>1: L+=M(f"v_add_f32 v{S}, v{S}, v{X+e}")
        L+=M(f"v_fmac_f32 v{S+1}, v{X+e}, v{X+e}")
    return L
def fin1(a, layer, mu, T, unpacked=False):
    X=vXst[mu]; L=[] if unpacked else unpackY(mu,T); S=T+8
    s0=SX[mu] if layer==0 else S
    A=[] if layer==0 else fin1a(mu,S)
    Bq=M(f"v_mul_f32 v{S+2}, v{X}, v{T}\nv_add_f32 v{S+3}, v{T}, v{T+1}")
    for e in range(1,8):
        Bq+=M(f"v_fmac_f32 v{S+2}, v{X+e}, v{T+e}")
        if e>1: Bq+=M(f"v_add_f32 v{S+3}, v{S+3}, v{T+e}")
    while A or Bq:
        if A: L.append(A.pop(0))
        if Bq: L.append(Bq.pop(0))
    L+=treduce(s0,s0+1,S+2,S+3,M(f"s_add_u32 s{sT0}, s{sGR}, {(layer*2+mu)*262144}"))
    L+=M(f"buffer_store_dword v{s0}, v{vGs}, {srd(WS)}, s{sT0} offen{a.sc}")
    return L

def fin2(a, layer, mu, T):
    X=vXst[mu]; Gd=T; Y=T+16
    ld,ck=a.check([f"buffer_load_dwordx4 {V(Gd+4*i)}, v{vGl}, {srd(WS)}, s{sCK2} offen offset:{256*i} sc1" for i in range(4)],
         [f"v_max3_u32 v{PT}, v{Gd}, v{Gd+1}, v{Gd+2}"]+[f"v_max3_u32 v{PT}, v{PT}, v{Gd+3+2*i}, v{Gd+4+2*i}" for i in range(6)]+[f"v_max_u32 v{PT}, v{PT}, v{Gd+15}",f"v_cmp_eq_u32 vcc, -1, v{PT}"],"gr")
    ld=M(f"s_add_u32 s{sCK2}, s{sGRl}, {(layer*2+mu)*262144}")+ld+unpackY(mu,Y)
    L=list(ck)
    for k in range(4): L+=M(f"v_add_f32 v{Gd+k}, v{Gd+k}, v{Gd+4+k}\nv_add_f32 v{Gd+8+k}, v{Gd+8+k}, v{Gd+12+k}")
    for k in (0,2,1,3): L+=M(f"v_add_f32 v{Gd+k}, v{Gd+k}, v{Gd+8+k}")
    L+=treduce(Gd,Gd+1,Gd+2,Gd+3)
    A,B,C,D=Gd,Gd+1,Gd+2,Gd+3
    L+=M(f"v_mov_b32 v{B}, v{A}\nv_permlane16_swap_b32 v{A}, v{B}\nv_mov_b32 v{C}, v{A}\nv_mov_b32 v{D}, v{B}\nv_permlane32_swap_b32 v{A}, v{C}\nv_permlane32_swap_b32 v{B}, v{D}")
    inv="0x3b000000"
    L+=M(f"""v_mul_f32 v{A}, {inv}, v{A}
        v_mul_f32 v{B}, {inv}, v{B}
        v_fma_f32 v{B}, -v{A}, v{A}, v{B}
        v_max_f32 v{B}, 0, v{B}
        v_add_f32 v{B}, 0x3727c5ac, v{B}
        v_rsq_f32 v{B}, v{B}
        v_fma_f32 v{C}, -v{A}, v{D}, v{C}
        v_mul_f32 v{C}, {inv}, v{C}
        v_fma_f32 v{C}, v{B}, v{C}, v{A}
        v_mul_f32 v{A}, v{A}, v{B}""")
    for e in range(8): L+=M(f"v_fma_f32 v{Gd+4+e}, v{X+e}, v{B}, -v{A}")
    for e in range(8): L+=M(f"v_fmac_f32 v{X+e}, v{Gd+4+e}, v{Y+e}")
    for e in range(8): L+=M(f"v_sub_f32 v{Y+e}, v{X+e}, v{C}")
    L+=M(f"s_add_u32 s{sT0}, s{sXS}, {mu*65536}")
    for i in range(4): L+=M(f"v_cvt_pk_bf16_f32 v{Gd+4+i}, v{Y+2*i}, v{Y+2*i+1}")
    L+=M(f"buffer_store_dwordx4 {V(Gd+4)}, v{vL}, {srd(WS)}, s{sT0} offen{a.sc}",f"xs{mu}")
    L+=M(f"v_mul_f32 v{A}, v{Y}, v{Y}")
    for e in range(1,8): L+=M(f"v_fmac_f32 v{A}, v{Y+e}, v{Y+e}")
    L+=M(f"""v_mov_b32 v{B}, v{A}
        s_add_u32 s{sT0}, s{sFLH}, {XF(layer,mu)}
        s_add_u32 s{sT1}, s{sS5}, {(layer*2+mu)*65536}
        v_permlane32_swap_b32 v{A}, v{B}
        v_add_f32 v{A}, v{A}, v{B}
        v_mov_b32 v{B}, v{A}
        v_permlane16_swap_b32 v{A}, v{B}
        v_add_f32 v{A}, v{A}, v{B}""")
    tail=[('WVM',f"xs{mu}")]+M(f"buffer_store_dword v{vTAG}, v{vOne}, {srd(WS)}, s{sT0} offen{a.sc}\nbuffer_store_dword v{A}, v{vS5s}, {srd(WS)}, s{sT1} offen{a.sc}")
    return ld,L,tail

def flag_check(a, off, vaddr, name):
    ld,ck=a.check([f"buffer_load_dword v{PT+1}, v{vaddr}, {srd(WS)}, s{sCK1} offen sc1"],[f"v_cmp_ne_u32 vcc, s{sTAG}, v{PT+1}"],name)
    return M(f"s_lshl_b32 s{sCK1}, s{sFL}, 1\ns_add_u32 s{sCK1}, s{sCK1}, {off}")+ld, ck
XF=lambda layer,mu: OFF_XFLAG+layer*16384+mu*256
HF=lambda layer,k: OFF_HFLAG+layer*16384+k*256

def x_dma(mu, pair, stage, q):
    L=M(f"s_add_u32 m0, s{sXW}, {q+stage*8192}\ns_mov_b32 s{sSOFF}, {mu*65536+pair*32768+stage*8192}")
    for i in range(4): L+=M(f"buffer_load_dwordx4 v{vXD}, {srd(WS)}, s{sSOFF} offen offset:{1024*i} sc1 lds",f"x{mu}{pair}{stage}")
    return LW(L,(q+stage*8192,q+stage*8192+8192),(q+16384+stage*8192,q+16384+stage*8192+8192))
def h_dma(mu, t, grp, q):
    n=4 if grp<2 else 3
    L=M(f"s_add_u32 m0, s{sM4 if grp<2 else sM3}, {q+t*8192}\ns_add_u32 s{sSOFF}, s{sC4 if grp<2 else sC3}, {(mu*4+2*t)*HKS*1024+grp*8192}")
    for i in range(n): L+=M(f"buffer_load_dwordx4 v{vHD}, {srd(WS)}, s{sSOFF} offen offset:{1024*i} sc1 lds",f"h{mu}{t}{grp}")
    return LW(L,*[(q+(2*k+t)*8192,q+(2*k+t)*8192+2*n*1024) for k in range(2)])
def h_touch(mu):
    L=[]
    for k,(va,off) in enumerate(((vHS1,(mu*4)*HKS*1024),(vHS1,(mu*4+2)*HKS*1024),(vHS2,mu*4*HKS*1024))):
        L+=M(f"s_mov_b32 s{sT1}, {off}\nbuffer_load_dword v{(140,141,142,143,PT+3,vA1)[3*mu+k]}, v{va}, {srd(WS)}, s{sT1} offen sc1")
    return L

_uid=[0]
def g1_steps(buf, q, bar=None):
    A=(ACC0,ACC1)[buf]; bar=bar or {}; qo=q&65535; out=[]
    for s in range(16):
        pre=(M(f"v_add_u32 v{vA0}, {q&~65535}, v{vL}") if s==0 else [])+bar.get(s,[])
        rd=lambda F,tok,s=s: [LR(mk(f"ds_read_b128 {V(F+4*t)}, v{vA0} offset:{qo+t*16384+s*1024}",tok),(q+t*16384+s*1024,q+t*16384+s*1024+1024)) for t in range(2)]
        mf=lambda F,s=s: [mk(f"v_mfma_f32_16x16x32_bf16 {V(A+12*t+4*w)}, {W1(s,w)}, {V(F+4*t)}, {'0' if s==0 else V(A+12*t+4*w)}") for t in range(2) for w in range(3)]
        out.append((pre,rd,mf))
    return out
def g2_steps(qs, bar=None):
    bar=bar or {}; out=[]
    def setq(q): return M(f"s_add_u32 s{sQ}, s{sHK}, {q&~65535}\nv_add_u32 v{vA0}, s{sQ}, v{vL}\ns_add_u32 s{sQ}, s{sHS}, {q&~65535}\nv_add_u32 v{vA1}, s{sQ}, v{vL}")
    for i in range(22):
        q=qs[i>>3]; pre=bar.get(i,[])
        if i%8==0 and (i==0 or (q&~65535)!=(qs[(i>>3)-1]&~65535)): pre=setq(q)+pre
        rd=lambda F,tok,i=i,q=q: [LR(mk(f"ds_read_b128 {V(F+4*t)}, v{(vA0,vA1)[t]} offset:{(q&65535)+(i&7)*1024}",tok),*[(q+w*8192+(i&7)*1024,q+w*8192+(i&7)*1024+1024) for w in range(4)]) for t in (1,0)]
        mf=lambda F,i=i: [mk(f"v_mfma_f32_16x16x32_bf16 {V(ACC0+8*t+4*c)}, {W2(i,c)}, {V(F+4*t)}, {'0' if i==0 else V(ACC0+8*t+4*c)}") for t in (1,0) for c in range(2)]
        out.append((pre,rd,mf))
    return out
def backbone(steps, marks=None):
    marks=marks or {}
    N=len(steps); tok=[]
    for _ in steps: _uid[0]+=1; tok.append(f"f{_uid[0]}")
    nm=[len(st[2](FR)) for st in steps]
    last={FR:-3,FR+8:-2,FR+16:-1,ACC0+16:-9}; F=[]; at=[]
    for n in range(N):
        ring=[FR,FR+8,FR+16]+([ACC0+16] if nm[n]==4 and CFG['ring4'] else [])
        f=min(ring,key=lambda r:last[r]); la=len(ring)-1
        F.append(f); at.append(max(n-la,last[f]+1,at[-1] if at else -9)); last[f]=n
    L=[]
    for n in range(N):
        if at[n]<0 or (at[n]==0 and n<=1): L+=steps[n][0]+steps[n][1](F[n],tok[n]); at[n]=-1
    L.append(('WLG',tok[0]))
    for n,(pre,rd,mf) in enumerate(steps):
        ms=mf(F[n]); q=[]
        for m in range(n+1,N):
            if at[m]==n: r=steps[m][1](F[m],tok[m]); q+=[steps[m][0]+r[:1], r[1:]]
        k=len(ms)
        for j,m in enumerate(ms):
            L.append(m)
            if q and (len(q)>2 or j in ((0,2) if k==6 else (0,1)) or j>=k-2): L+=q.pop(0)
            if j==k-1:
                for x in q: L+=x
                if n+1<N: L.append(('WLG',tok[n+1]))
        L+=marks.get(n,[])
    return L

def g1_epi(a, buf, mu, pair, sc):
    A=(ACC0,ACC1)[buf]; E=EP; L=[]
    n=E; mreg=E+4
    M0=A+8; M1=A+20
    for t in range(2):
        Gt=A+12*t; Ut=Gt+4
        for r in range(4): L+=M(f"v_max_f32 v{Gt+r}, 0, v{Gt+r}")
        for r in range(4): L+=M(f"v_mul_f32 v{Gt+r}, v{Gt+r}, v{Ut+r}")
        L+=M(f"v_cvt_pk_bf16_f32 v{n+2*t}, v{Gt}, v{Gt+1}\nv_cvt_pk_bf16_f32 v{n+2*t+1}, v{Gt+2}, v{Gt+3}")
    for r in range(4): L+=M(f"v_permlane16_swap_b32 v{M0+r}, v{M1+r}")
    L+=M(f"v_permlane16_swap_b32 v{n}, v{n+2}\nv_permlane16_swap_b32 v{n+1}, v{n+3}\ns_mov_b32 s{sT1}, {(mu*4+2*pair)*HKS*1024}")
    L+=M(f"buffer_store_dwordx4 {V(n)}, v{vHS1}, {srd(WS)}, s{sT1} offen{sc}",f"hs{mu}{pair}")
    for r in range(4): L+=M(f"v_max_f32 v{M0+r}, 0, v{M0+r}")
    for r in range(4): L+=M(f"v_mul_f32 v{M0+r}, v{M0+r}, v{M1+r}")
    L+=M(f"v_cvt_pk_bf16_f32 v{mreg}, v{M0}, v{M0+1}\nv_cvt_pk_bf16_f32 v{mreg+1}, v{M0+2}, v{M0+3}")
    L+=M(f"v_mov_b32 v{E+6}, v{E+4}\nv_mov_b32 v{E+7}, v{E+5}\ns_nop 0\nv_permlane32_swap_b32 v{E+4}, v{E+6}\nv_permlane32_swap_b32 v{E+5}, v{E+7}")
    L+=M(f"buffer_store_dwordx4 {V(E+4)}, v{vHS2}, {srd(WS)}, s{sT1} offen{sc}",f"hs{mu}{pair}")
    return L
def h_flag(a, layer, k):
    return M(f"s_add_u32 s22, s{sFLH}, {HF(layer,k)}")+[('WVM',f"hs{k>>1}{k&1}")]+M(f"buffer_store_dword v{vTAG}, v{vOne}, {srd(WS)}, s22 offen{a.sc}")

def s5_get(a, layer, mu):
    T=140
    ld,ck=a.check([f"buffer_load_dwordx4 {V(T)}, v{vS5l}, {srd(WS)}, s{sCK3} offen sc1"],
         [f"v_max3_u32 v{PT+2}, v{T}, v{T+1}, v{T+2}",f"v_max_u32 v{PT+2}, v{PT+2}, v{T+3}",f"v_cmp_eq_u32 vcc, -1, v{PT+2}"],"s5")
    ld=M(f"s_add_u32 s{sCK3}, s{sS5l}, {(layer*2+mu)*65536}")+ld
    L=list(ck)+M(f"""v_add_f32 v{T}, v{T}, v{T+1}
        v_add_f32 v{T+2}, v{T+2}, v{T+3}
        v_add_f32 v{T}, v{T}, v{T+2}
        v_mov_b32 v{T+1}, v{T}
        s_nop 0
        v_permlane32_swap_b32 v{T}, v{T+1}
        v_add_f32 v{T}, v{T}, v{T+1}
        v_mov_b32 v{T+1}, v{T}
        s_nop 0
        v_permlane16_swap_b32 v{T}, v{T+1}
        v_add_f32 v{T}, v{T}, v{T+1}
        v_mul_f32 v{T}, 0x3b000000, v{T}
        v_add_f32 v{T}, 0x3727c5ac, v{T}
        v_rcp_f32 v{vR2}, v{T}""")
    return ld,L
def ex_addr(qspare):
    return M(f"s_add_u32 s{sT0}, s{sHW}, {qspare+6144}\nv_add_u32 v{EP}, s{sT0}, v{vL}\ns_xor_b32 s{sT0}, s{sHW}, 16384\ns_add_u32 s{sT0}, s{sT0}, {qspare+6144}\nv_add_u32 v{EP+1}, s{sT0}, v{vL}")
def ex_addr2(q):
    return [mk(x.text.replace(f"s{sT0},",f"s{sT2},")) for x in ex_addr(q)]
def g2_tail(a, mu, qsp, post, extra, every):
    X=vXst[mu]
    a(f"ds_write_b128 v{EP}, {V(ACC0+8)}\nds_write_b128 v{EP}, {V(ACC0+12)} offset:1024")
    R=[(qsp+w*8192+6144,qsp+w*8192+8192) for w in range(4)]; a.lw(2,*R)
    for e in range(8): a(f"v_fmac_f32 v{X+e}, v{vR2}, v{ACC0+e}")
    a("s_waitcnt lgkmcnt(0)\ns_barrier")
    a(f"ds_read_b128 {V(ACC0+8)}, v{EP+1}\nds_read_b128 {V(ACC0+12)}, v{EP+1} offset:1024","ex"); a.lr(2,*R)
    first,extra=sprinkle([mk("s_nop 0")],extra,1)
    a.flat(first[1:])
    L=[mk(f"v_fmac_f32 v{X+e}, v{vR2}, v{ACC0+8+e}") for e in range(8)]+post
    L,extra=sprinkle(L,extra,every)
    a.flat(L)
    return extra
def out_store(a, mu, T):
    X=vXst[mu]
    L=[mk(f"v_cvt_pk_bf16_f32 v{T+i}, v{X+2*i}, v{X+2*i+1}") for i in range(4)]
    return L+M(f"buffer_store_dwordx4 {V(T)}, v{vTok}, {srd(SO_)}, {'0' if mu==0 else 's%d'%sMB} offen{' sc1' if CFG['outsc'] else ''}")

def finish_kernel(a):
    a(f"s_or_b32 s{sT0}, s2, s{sWV}\ns_cmp_eq_u32 s{sT0}, 0\ns_cselect_b32 s{sT0}, {OFF_NONCE}, {OOB}")
    a(f"buffer_store_dword v{vTAG}, v{vOne}, {srd(WS)}, s{sT0} offen")
    if CFG['stamps'] and a.tag!='S':
        a.stamp("end","*")
        a("s_memtime s[100:101]\ns_waitcnt lgkmcnt(0)\ns_sub_u32 s99, s100, s99")
        a(f"s_lshl_b32 s{sT0}, s2, 2\ns_add_u32 s{sT0}, s{sT0}, s{sWV}\ns_lshl_b32 s{sT0}, s{sT0}, 8\ns_add_u32 s{sT0}, s{sT0}, {OFF_STAMP}")
        for i in range(len(stamp_names)):
            a(f"v_mov_b32 v40, s{STAMP0+i}")
            a(f"buffer_store_dword v40, v{vOne}, {srd(WS)}, s{sT0} offen offset:{4*i}")
        a(f"v_mov_b32 v40, s98\nbuffer_store_dword v40, v{vOne}, {srd(WS)}, s{sT0} offen offset:248")
        a(f"v_mov_b32 v40, s99\nbuffer_store_dword v40, v{vOne}, {srd(WS)}, s{sT0} offen offset:252")
    a("s_endpgm")

WV=lambda t:('WVM',t)
WL=lambda t:('WLG',t)
AT=lambda n:('AT',n)

def body(a):
    P=paced; BY=lambda n:('BY',n); SY=lambda n:('SYNC',n); AF=lambda n,g=0:('AFTER',n,g); GP=lambda n:('GAP',n)
    B=lambda *w:[list(w)+[mk("s_barrier")]]
    C=CFG
    a.flat(fin1(a,0,0,ACC0)); a.flat(fin1(a,0,1,ACC0))
    a.stamp("fin1","f")
    lA,rA,tA=fin2(a,0,0,ACC0); lB,rB,tB=fin2(a,0,1,ACC1)
    W2Q[:]=w2_loads()
    a(f"s_mul_i32 s{sT0}, s{sCT2}, 43\ns_mul_i32 s{sT1}, s{sKH}, 21\ns_add_u32 s{sT0}, s{sT0}, s{sT1}\ns_lshl_b32 s{sT0}, s{sT0}, 7\ns_add_u32 s{sCK3}, s{sT0}, {OFF_P2F}")
    a(f"v_min_u32 v{PT+3}, 21, v{vLane}\nv_lshlrev_b32 v{PT+3}, 7, v{PT+3}")
    pl_,pc_=a.check([f"buffer_load_dword v{PT+2}, v{PT+3}, {srd(WS)}, s{sCK3} offen sc1"],[f"v_cmp_ne_u32 vcc, s{sTAG}, v{PT+2}"],"pp")
    Wp(a,'F1'); a.flat(lA); a.flat(pl_); a.flat(rA[:9]); a.flat(pc_); Wp(a,'FA'); a.flat(rA[9:])
    a.flat(lB)
    a.flat(tA); a.stamp("fin2 A","f")
    a.flat(rB[:9]); Wp(a,'FB'); a.flat(rB[9:]); a.flat(tB); a.stamp("fin2 B","f")
    qs=list(Q)
    xl,xc=flag_check(a,XF(0,0),vFX,"xf")
    Wp(a,'XW'); a.flat(xl); a.flat(xc)
    a.ext(x_dma(0,0,0,qs[0])+x_dma(0,0,1,qs[0]))
    Wp(a,'XD')
    A1,B0,B1,GA=96,192,288,384
    for layer in range(2):
        g="ab"[layer]
        xa0,xa1,xb0,xb1,e=qs
        hsc = a.sc if not (layer==0 and C['touch']==2) else ' sc1'
        L0 = layer==0
        a.stamp(f"L{layer} start",g+'m')
        hq=[(xa0,xa1,e),(xb0,xb1,xa0)]
        X=lambda mu,p,q: x_dma(mu,p,0,q)+x_dma(mu,p,1,q)
        H=lambda mu,t,grp: h_dma(mu,t,grp,hq[mu][grp])
        xl,xc=flag_check(a,XF(layer,1),vFX,"xf")
        def HC(k,after=None,gap=None):
            l,c=flag_check(a,HF(layer,k),vFH,"hf")
            return [AF(f"f{k}",after or C['hca'])]+l+[GP(gap or C['hcg'])]+c
        sl,sr=s5_get(a,layer,0)
        def SB(n,*w):
            if layer==0: return BAR(*w)
            return a.st(n+" pre","c")+list(w)+a.st(n+" waited","c")+[mk("s_barrier")]+a.st(n+" post","c")
        steps = g1_steps(0,xa0,{0:BAR(WV("x000")),8:BAR(WV("x001"))}) + g1_steps(1,xa1,{0:BAR(WV("x011"))}) \
              + g1_steps(0,xb0,{0:BAR(WV("x101"))}) + g1_steps(1,xb1,{0:BAR(WV("x111"))}) \
              + g2_steps(hq[0],{0:SB("GA0",WV("h010"),WV("h000")),8:SB("GA8",WV("h011"),WV("h001")),16:SB("GA16",WV("h012"),WV("h002"))})
        marks={15:a.st(f"L{layer} A0",g),31:a.st(f"L{layer} A1",g),47:a.st(f"L{layer} B0",g),63:a.st(f"L{layer} B1",g)}
        bb=backbone(steps,marks)
        fl = C['fl0'] if (L0 and C['touch']==2) else C['fl']
        def epi(k):
            if k<3: return [AT(96*(k+1)+2)]+g1_epi(a,k&1,k>>1,k&1,hsc)+[SY(f"e{k}"),BY(96*(k+2) if k<2 else GA-30)]
            return [AT(GA+1),('DENS',C['dens'])]+g1_epi(a,1,1,1,hsc)+[('DENS',0),SY("e3")]+sr
        s3=[]
        for k in range(4): s3+=[AF(f"e{k}",fl)]+h_flag(a,layer,k)+[SY(f"f{k}")]
        tailpre=ex_addr(e)+unpackY(0,ACC1)
        hB1=H(1,1,0)+H(1,1,1)+H(1,1,2)
        g1=C['g1']
        sA = HC(0)+P(H(0,0,0)+H(0,0,2),g1)+[AT(B0-10)]+P(H(0,0,1),g1)
        sB = HC(1)+P(H(0,1,0),g1)+[BY(GA-40)]+P(H(0,1,1)+H(0,1,2),g1)+[BY(GA-2)]
        sC = HC(2)+P(H(1,0,0),3)+[AT(GA-10)]+P(H(1,0,1),4)
        sD = [AT(GA+56)]+P(H(1,0,2),2)+HC(3,C['gahl'],C['gahc'])
        if L0:
            pl=PL(); pend=pl.get('PEND',[]); rest=pl.get('REST',[])
            s1=[];s2=[]
            for k in rest: s1+=P(wops(f"i{k}"),2)
            rest=[int(str(k).split('@')[0]) for k in rest]
            s1+=[SY('irest')]+P(X(0,1,xa1),3)+[BY(A1-30)]
            for k in pend: s2+=wops(f"r{k}")+[BY(max(12*k-4,30))]
            last=pend[-1] if pend else None
            if rest:
                s2+=[AF('irest'),AT(C['rrest'])]+B(WV(f"c{rest[-1]}"))
                for k in rest: s2+=wops(f"r{k}")+[BY(12*k-4)]
                last=rest[-1]
            if last is not None: s2+=[GP(4)]+B(WL(f"cr{last}"))
            s2+=[SY('fr')]
            s1+=xl+[GP(14)]+xc+[AF('fr')]+P(X(1,0,xb0),4)+[BY(B0-30)]+P(X(1,1,xb1),g1)+[BY(B1-30)]
            s4=[AT(C['w2at'])]+P(w2_take(99),C['w2gap'])+[BY(GA+20)]
        else:
            s1 = [AT(2)]+P(X(0,1,xa1),5)+[BY(A1-30),AF('tB'),AT(A1+C['a1xl'])]+xl+[GP(16)]+xc+P(X(1,0,xb0),4)+[BY(B0-24)]+P(X(1,1,xb1),g1)+[BY(B1-24)]
            s2 = [AT(C['a0l'])]+lB+[GP(C['a0c'])]+rB+tB+[SY('tB'),BY(A1)]; s4=[]
        s1 += sA+sB+sC+sD
        s2 += epi(0)+epi(1)+epi(2)+sl+epi(3)+tailpre
        out,rest=weave(bb,[s3,s1+[SY('hb')],s2,s4,[AF('hb')]+P(hB1,C['hbgap'])])
        k=max([i for i,x in enumerate(rest) if not(isinstance(x,I) and x in hB1)],default=-1)
        a.ext(out); a.ext(rest[:k+1]); left=rest[k+1:]
        if C.get('v'): print("  G2(A): leftover",k+1,"h(B) items left",len(left))
        a.stamp(f"L{layer} GA",g)
        sl,sr=s5_get(a,layer,1)
        a.flat(sl); sl=[]
        left=g2_tail(a,0,e,fin1(a,1,0,ACC1,True) if L0 else out_store(a,0,ACC1),left,C['tev'])
        a.flat(left)
        a.stamp(f"L{layer} tailA",g)
        bb=backbone(g2_steps(hq[1],{0:SB("GB0",WV("h110"),WV("h100")),8:SB("GB8",WV("h111"),WV("h101")),16:SB("GB16",WV("h112"),WV("h102"))}))
        nq=[xa1,e,xb0,xb1,xa0]
        if L0:
            lA,rA,tA=fin2(a,1,0,ACC1)
            xl,xc=flag_check(a,XF(1,0),vFX,"xf")
            ncrit=[i for i,x in enumerate(rA) if isinstance(x,I) and x.tok=="xs0"][0]+1
            a.weave(bb,[AF('t'),AT(C['gbxl'])]+xl,
                    sl+[AT(C['gbl'])]+lA+[GP(C['gbc']),('DENS',C['dens2'])]+rA[:ncrit]+[('DENS',0)]+rA[ncrit:]+sr+ex_addr2(xa0)+[('GAPV',C['gbt'])]+tA+[SY('t')]+unpackY(1,ACC1))
        else:
            s2=sl+ex_addr(xa0)+[AT(C['gbs5'])]+sr
            if C['wbl2']:
                Lw=a.label("wb")
                s2+=[M(f"s_or_b32 s{sT0}, s{sR}, s{sWV}\ns_cmp_lg_u32 s{sT0}, 0\ns_cbranch_scc1 {Lw}\nbuffer_wbl2 sc1\n{Lw}:")]
            a.weave(bb,s2)
        a.stamp(f"L{layer} GB",g)
        if L0:
            lB,rB,tB=fin2(a,1,1,ACC1)
            left=g2_tail(a,1,xa0,fin1(a,1,1,ACC1,True),xc+X(0,0,nq[0]),C['tev2'])
            a.flat(left)
        else:
            g2_tail(a,1,xa0,out_store(a,1,ACC1),[],99)
        a.stamp(f"L{layer} tailB",g)
        qs=nq
    finish_kernel(a)

def main():
    a=G('F','')
    entry(a); p0(a); conv(a); gather_y(a)
    nfront=len(a.L)
    b=G('S',' sc1'); b.nlab=0
    front=list(a.L)
    body(a)
    rep=[]
    items=finish(a.L,rep)
    print("LDS ordering problems:",lds_check(items))
    for o in a.ool: items+=finish(o)
    items.append(mk("L_fast_end:"))
    if CFG['slow']:
        b.L=front+[mk("L_slow:")]; body(b)
        full=finish(b.L)
        k=[i for i,x in enumerate(full) if x.text=="L_slow:"][0]
        items+=full[k:k+1]+[mk("s_nop 4")]+full[k+1:]
        for o in b.ool: items+=finish(o)
    items.append(mk("L_end:")); items.append(mk("s_endpgm"))
    hdr=open(os.path.join(os.path.dirname(os.path.abspath(__file__)),"header.txt")).read()
    src=kernel_file(NAME,text(items),"; @launch grid=(256,1,1) block=(256,1,1) lds=163840",header=hdr)
    open(sys.argv[1],"w").write(src)
    open("stamp_names.txt","w").write("\n".join(stamp_names)); open("site_names.txt","w").write(" ".join(site_names))
    n=sum(1 for i in items if i.kind!='none')
    print(f"{n} instructions, {len(src)} bytes of text, {sum(x for x,_ in rep)} nop states padded in fast path")
    if CFG.get('v'):
        for x in rep: print("   pad",x)
main()
```

```python
import re

REG_RE = re.compile(r'\b([vas])(\d+)\b|\b([vas])\[(\d+):(\d+)\]')

def regs_of(op):
    out=set()
    op=op.strip()
    for m in REG_RE.finditer(op):
        if m.group(1): out.add((m.group(1),int(m.group(2))))
        else:
            for i in range(int(m.group(4)),int(m.group(5))+1): out.add((m.group(3),i))
    if re.search(r'\bvcc(_lo|_hi)?\b',op): out|={('s','vcc')}
    if re.search(r'\bexec\b',op): out|={('s','exec')}
    if re.search(r'\bm0\b',op): out|={('s','m0')}
    return out

TRANS=('v_exp_f32','v_log_f32','v_rcp_f32','v_rsq_f32','v_sqrt_f32','v_sin_f32','v_cos_f32')

class I:
    def __init__(s, text, tok=None):
        s.text=text; s.tok=tok
        t=text.split(';')[0].strip()
        s.label = t.endswith(':')
        s.directive = t.startswith('.')
        s.op = t.split()[0] if t else ''
        rest = t[len(s.op):].strip()
        ops=[]; d=0; cur=''
        for ch in rest:
            if ch in '[(': d+=1
            if ch in '])': d-=1
            if ch==',' and d==0: ops.append(cur.strip()); cur=''
            else: cur+=ch
        if cur.strip(): ops.append(cur.strip())
        s.ops=ops
        op=s.op
        s.kind='other'; s.defs=set(); s.uses=set(); s.dma=False
        if s.label or s.directive or not op: s.kind='none'; return
        allr=[regs_of(o.split(' ')[0] if i==len(ops)-1 else o) for i,o in enumerate(ops)]
        U=lambda idx: set().union(*[allr[i] for i in idx]) if idx else set()
        n=len(ops)
        if op.startswith('v_mfma'):
            s.kind='mfma'; s.defs=allr[0]; s.A=allr[1]; s.B=allr[2]; s.C=allr[3]; s.uses=s.A|s.B|s.C
            s.passes = 4 if '16x16x32' in op else 8
        elif op.startswith('buffer_load') or op.startswith('global_load'):
            s.kind='vmem'; s.load=True
            if re.search(r'\blds\b',t) : s.dma=True; s.uses=U(range(n))|{('s','m0')}
            else: s.defs=allr[0]; s.uses=U(range(1,n))
        elif op.startswith('buffer_store') or op.startswith('global_store'):
            s.kind='vmem'; s.load=False; s.uses=U(range(n))
            di = 0 if op.startswith('buffer') else 1
            s.sdata=allr[di]; s.wide = op.endswith('x4') or op.endswith('x3')
        elif op.startswith('buffer_wbl2') or op.startswith('buffer_inv'):
            s.kind='vmem'; s.load=False; s.sdata=set(); s.wide=False
        elif op.startswith('ds_read'):
            s.kind='ds'; s.defs=allr[0]; s.uses=U(range(1,n))
        elif op.startswith('ds_write'):
            s.kind='ds'; s.uses=U(range(n))
        elif op.startswith('ds_bpermute') or op.startswith('ds_swizzle') or op.startswith('ds_permute'):
            s.kind='ds'; s.defs=allr[0]; s.uses=U(range(1,n))
        elif op.startswith('s_load') or op.startswith('s_memtime') or op.startswith('s_memrealtime'):
            s.kind='smem'; s.defs=allr[0]; s.uses=U(range(1,n))
        elif op in('s_waitcnt','s_nop','s_barrier','s_endpgm','s_branch','s_setprio','s_sleep') or op.startswith('s_cbranch'):
            s.kind='ctl'
            if op=='s_cbranch_vccz' or op=='s_cbranch_vccnz': s.uses={('s','vcc')}
            if op.startswith('s_cbranch_exec'): s.uses={('s','exec')}
        elif op.startswith('s_cmp') or op.startswith('s_bitcmp'):
            s.kind='salu'; s.uses=U(range(n))
        elif op.startswith('s_'):
            s.kind='salu'; s.defs=allr[0]; s.uses=U(range(1,n))
            if 'saveexec' in op: s.defs|={('s','exec')}; s.uses|={('s','exec')}
            if op in('s_addk_i32','s_mulk_i32','s_bitset1_b32'): s.uses|=allr[0]
        elif op.startswith('v_'):
            s.kind='valu'
            if op.startswith('v_cmp'):
                s.defs=allr[0]; s.uses=U(range(1,n))
            elif op.startswith('v_permlane') and 'swap' in op:
                s.defs=allr[0]|allr[1]; s.uses=allr[0]|allr[1]
            elif op.startswith('v_add_co') or op.startswith('v_sub_co') or op.startswith('v_addc_co'):
                s.defs=allr[0]|allr[1]; s.uses=U(range(2,n))
            else:
                s.defs=allr[0]; s.uses=U(range(1,n))
                if op.startswith('v_fmac') or op.startswith('v_dot2c') or op.startswith('v_writelane'): s.uses|=allr[0]
                if 'dpp' in op or 'row_' in t or 'quad_perm' in t: s.uses|=allr[0]; s.dpp=True
                if op.startswith('v_cndmask') and n==3: s.uses|={('s','vcc')}
        else:
            raise ValueError('unknown op '+text)
    def states(s):
        if s.kind=='none': return 0
        if s.op=='s_nop': return int(s.ops[0],0)+1
        return 1

class Asm:
    def __init__(s): s.L=[]; s.nlab=0
    def __call__(s, text, tok=None):
        for line in text.split('\n'):
            line=line.strip()
            if line: s.L.append(I(line,tok))
        return s
    def lab(s,name): s.L.append(I(name+':'))
    def newlab(s,p='L'): s.nlab+=1; return f'{p}_{s.nlab}'
    def waitvm(s,tok): s.L.append(('WVM',tok))
    def waitlg(s,tok): s.L.append(('WLG',tok))
    def ext(s, items): s.L.extend(items)

def mk(text,tok=None): return I(text,tok)

def interleave(backbone, fillers, slots=2, start=0, per=None):
    out=[]; fi=0; nm=0; i=0
    fillers=list(fillers)
    while i<len(backbone):
        it=backbone[i]; out.append(it); i+=1
        if isinstance(it,I) and it.kind=='mfma':
            nm+=1
            used=0; j=i
            while j<len(backbone) and not(isinstance(backbone[j],I) and backbone[j].kind=='mfma'):
                used+=1; j+=1
            free=slots-used
            while fi<len(fillers) and nm>start:
                f=fillers[fi]
                if isinstance(f,tuple) and f[0]=='AT':
                    if nm>=f[1]: fi+=1; continue
                    break
                g=f if isinstance(f,list) else [f]
                if len(g)>free and not(free>=slots and len(g)>slots) : break
                out.extend(g); free-=len(g); fi+=1
                if free<=0: break
    rest=[]
    for f in fillers[fi:]:
        if isinstance(f,tuple) and f[0]=='AT': continue
        rest.extend(f if isinstance(f,list) else [f])
    return out, rest

def resolve(items, verbose=False):
    out=[]; vm=[]; lg=[]; nmf=[0]; AGE=7
    def emit_wait(nv,nl):
        parts=[]
        if nv is not None: parts.append(f'vmcnt({nv})')
        if nl is not None: parts.append(f'lgkmcnt({nl})')
        out.append(I('s_waitcnt '+' '.join(parts)))
    for it in items:
        if isinstance(it,tuple):
            q = vm if it[0]=='WVM' else lg
            idx=[k for k,e in enumerate(q) if e[1]==it[1]]
            if idx:
                n=len(q)-1-idx[-1]
                if it[0]=='WVM':
                    assert n<=63,('vmcnt overflow',n); emit_wait(n,None); del vm[:idx[-1]+1]
                else:
                    if any(e[2] for e in lg): n=0
                    if n>15: n=15
                    emit_wait(None,n); del lg[:len(lg)-n]
            continue
        if it.kind=='none': out.append(it); continue
        if it.op=='s_waitcnt':
            m=re.search(r'vmcnt\((\d+)\)',it.text)
            if m: n=int(m.group(1)); del vm[:max(0,len(vm)-n)]
            m=re.search(r'lgkmcnt\((\d+)\)',it.text)
            if m:
                n=int(m.group(1))
                if n==0 or not any(e[2] for e in lg): del lg[:max(0,len(lg)-n)]
            out.append(it); continue
        touch=it.defs|it.uses
        nv=nl=None
        idx=[k for k,e in enumerate(vm) if e[0]&touch]
        if idx:
            nv=len(vm)-1-idx[-1]; assert nv<=63; del vm[:idx[-1]+1]
        idx=[k for k,e in enumerate(lg) if e[0]&touch]
        if idx:
            k=idx[-1]
            while k+1<len(lg) and nmf[0]-lg[k+1][3]>=AGE: k+=1
            nl=len(lg)-1-k
            if any(e[2] for e in lg): nl=0
            if nl>15: nl=15
            del lg[:len(lg)-nl]
        if nv is not None or nl is not None: emit_wait(nv,nl)
        out.append(it)
        if it.kind=='mfma': nmf[0]+=1
        if it.kind=='vmem' and getattr(it,'ghost',0): pass
        elif it.kind=='vmem':
            vm.append((set(it.defs),it.tok,False))
            if len(vm)>63 and verbose: print('note: >63 vmem outstanding at',it.text)
        elif it.kind=='ds': lg.append((set(it.defs),it.tok,False,nmf[0]))
        elif it.kind=='smem' and getattr(it,'light',0): pass
        elif it.kind=='smem': lg.append((set(it.defs),it.tok,True,nmf[0]))
    return out

def need(p,c):
    n=0
    isv=lambda S:{r for r in S if r[0] in 'va'}
    iss=lambda S:{r for r in S if r[0]=='s'}
    if p.kind=='valu':
        pv=isv(p.defs); ps=iss(p.defs)
        if c.kind=='mfma' and pv&c.uses: n=max(n,2)
        if c.kind=='valu':
            if c.op.startswith('v_permlane') and pv&c.uses: n=max(n,2)
            if getattr(c,'dpp',False) and pv&c.uses: n=max(n,2)
            if (c.op.startswith('v_readfirstlane') or c.op.startswith('v_readlane')) and pv&c.uses: n=max(n,1)
            if p.op.replace('_e32','').replace('_e64','') in TRANS and pv&c.uses: n=max(n,1)
            if 'sdwa' in p.text and pv&(c.uses|c.defs): n=max(n,1)
            if ps&c.uses: n=max(n,4 if c.op.startswith(('v_readlane','v_writelane')) else 2)
        if c.kind=='vmem' and ps&c.uses: n=max(n,5)
        if c.kind in('salu','smem') and ps&c.uses: n=max(n,1)
    if p.kind=='mfma':
        big={4:8,8:12}[p.passes]
        if c.kind=='mfma':
            if p.defs&(c.A|c.B): n=max(n,big)
            if p.defs&c.C and not(p.defs==c.C and p.passes==c.passes): n=max(n,{4:6,8:10}[p.passes])
            if p.defs&c.defs and not p.defs&c.C: n=max(n,{4:6,8:10}[p.passes])
        elif c.kind in('valu','vmem','ds'):
            if p.defs&(c.uses|c.defs): n=max(n,big)
            if c.kind=='valu' and p.C&c.defs: n=max(n,{4:3,8:7}[p.passes])
    if p.kind=='vmem' and not p.load and p.wide:
        if p.sdata&c.defs: n=max(n,2)
    if p.kind=='ds' and p.op.startswith('ds_write') and (p.op.endswith('b128') or p.op.endswith('b96')):
        pass
    if p.kind=='salu' and ('s','m0') in p.defs and c.kind=='vmem' and c.dma: n=max(n,1)
    if p.kind=='salu' and ('s','exec') in p.defs and c.kind=='valu' and getattr(c,'dpp',False): n=max(n,0)
    return n

def pad_hazards(items, report=None):
    out=[]
    for it in items:
        if it.kind!='none':
            dist=0; add=0
            for p in reversed(out):
                if dist>=20: break
                if p.kind=='none': continue
                k=need(p,it)
                if k>dist: add=max(add,k-dist)
                dist+=p.states()
            if add:
                if report is not None: report.append((add,it.text))
                out.append(I(f's_nop {add-1}'))
        out.append(it)
    return out

def finish(items, report=None):
    return pad_hazards(resolve(items), report)

def text(items): return '\n'.join(('' if (i.label or i.directive) else '  ')+i.text for i in items)+'\n'

def kernel_file(name, body_text, launch, nvgpr=512, accum=256, nsgpr=102, header=''):
    return (header + launch + '\n.amdgcn_target "amdgcn-amd-amdhsa--gfx950"\n.text\n'
      f'.globl {name}\n.p2align 8\n.type {name},@function\n{name}:\n' + body_text +
      '.section .rodata,"a"\n.p2align 6\n'
      f'.amdhsa_kernel {name}\n  .amdhsa_next_free_vgpr {nvgpr}\n  .amdhsa_next_free_sgpr {nsgpr}\n  .amdhsa_accum_offset {accum}\n'
      '  .amdhsa_group_segment_fixed_size 0\n  .amdhsa_kernarg_size 104\n  .amdhsa_user_sgpr_count 2\n'
      '  .amdhsa_user_sgpr_kernarg_segment_ptr 1\n  .amdhsa_system_sgpr_workgroup_id_x 1\n.end_amdhsa_kernel\n')

def lds_check(items, verbose=True):
    vm=[]; lg=[]; nbar=0; hist=[]; errs=0
    def ov(A,B): return any(a<d and c<b for a,b in A for c,d in B)
    for it in items:
        if it.kind=='none': continue
        if it.op=='s_waitcnt':
            m=re.search(r'vmcnt\((\d+)\)',it.text)
            if m:
                n=int(m.group(1))
                while len(vm)>n: vm.pop(0)['done']=nbar
            m=re.search(r'lgkmcnt\((\d+)\)',it.text)
            if m:
                n=int(m.group(1))
                if n==0 or not any(e['smem'] for e in lg):
                    while len(lg)>n: lg.pop(0)['done']=nbar
            continue
        if it.op=='s_barrier': nbar+=1; continue
        if getattr(it,'light',0) or getattr(it,'ghost',0): continue
        if it.kind in('vmem','ds','smem'):
            rec=dict(done=None,smem=it.kind=='smem',it=it,lr=getattr(it,'lr',None),lw=getattr(it,'lw',None))
            if (it.kind=='ds' or it.dma) and rec['lr'] is None and rec['lw'] is None:
                print("unannotated LDS op:",it.text); errs+=1
            for h in hist:
                safe = h['done'] is not None and h['done']<nbar
                if safe: continue
                if getattr(it,'priv',0) and getattr(h['it'],'priv',0): continue
                if rec['lr'] and h['lw'] and ov(rec['lr'],h['lw']): errs+=1; errs<6 and print("RAW",h['it'].text,h['lw'][:2],"->",it.text,rec['lr'][:2])
                if rec['lw'] and h['lr'] and ov(rec['lw'],h['lr']): errs+=1; errs<6 and print("WAR",h['it'].text,h['lr'][:2],"->",it.text,rec['lw'][:2])
                if rec['lw'] and h['lw'] and ov(rec['lw'],h['lw']) and h['it'].tok!=it.tok: errs+=1; errs<6 and print("WAW",h['it'].text,"->",it.text)
            hist=[h for h in hist if not(h['done'] is not None and h['done']<nbar)]
            if rec['lr'] or rec['lw']: hist.append(rec)
            (vm if it.kind=='vmem' else lg).append(rec)
    return errs
def LR(items,*r):
    for i in (items if isinstance(items,list) else [items]):
        if i.kind=='ds' or i.kind=='vmem': i.lr=list(r)
    return items
def LW(items,*r):
    for i in (items if isinstance(items,list) else [items]):
        if i.kind=='ds' or (i.kind=='vmem' and i.dma): i.lw=list(r)
    return items

def weave(backbone, streams, slots=2):
    S=[list(s) for s in streams]; pos=[0]*len(S); last=[-99]*len(S); lastv=[-99]*len(S); dens=[0]*len(S); done={}
    out=[]; nm=0; i=0
    def c1(x):
        if isinstance(x,tuple): return 0.34
        if x.kind=='none': return 0
        if x.kind=='salu' or x.op in('s_waitcnt','s_nop'): return 0.34
        if x.op.startswith('v_permlane'): return 2
        return 1
    def cost(g): return sum(c1(x) for x in g)
    forced=[0]; flog={}
    def flush(k,upto):
        while pos[k]<upto:
            f=S[k][pos[k]]; pos[k]+=1
            if isinstance(f,tuple) and f[0]=='SYNC': done[f[1]]=nm; continue
            if isinstance(f,tuple) and f[0]=='AFTER':
                if f[1] not in done:
                    for k2,s2 in enumerate(S):
                        for p2 in range(pos[k2],len(s2)):
                            if s2[p2]==('SYNC',f[1]): flush(k2,p2+1)
                continue
            if isinstance(f,tuple) and f[0] in('AT','GAP','GAPV','BY','DENS'): continue
            g=f if isinstance(f,list) else [f]
            out.extend(g); forced[0]+=len(g); flog.setdefault((k,nm),[]).append(getattr(g[0],'text',g[0]))
    while i<len(backbone):
        it=backbone[i]
        if isinstance(it,I) and it.kind=='mfma':
            for k,s in enumerate(S):
                idx=[p for p in range(pos[k],len(s)) if isinstance(s[p],tuple) and s[p][0]=='BY' and s[p][1]<=nm]
                if idx: flush(k,idx[-1]+1)
        out.append(it); i+=1
        if isinstance(it,I) and it.kind=='mfma':
            nm+=1; used=0; j=i
            while j<len(backbone) and not(isinstance(backbone[j],I) and backbone[j].kind=='mfma'): used+=c1(backbone[j]); j+=1
            free=slots+0.35-used; extra=0; base=slots+0.35
            for k,s in enumerate(S):
                while pos[k]<len(s):
                    f=s[pos[k]]
                    if isinstance(f,tuple) and f[0]=='DENS': dens[k]=f[1]; pos[k]+=1; continue
                    if dens[k]>slots+extra: free+=dens[k]-slots-extra; extra=dens[k]-slots
                    if free<=0: break
                    if isinstance(f,tuple) and f[0]=='AT':
                        if nm>=f[1]: pos[k]+=1; continue
                        break
                    if isinstance(f,tuple) and f[0]=='GAP':
                        if nm-last[k]>=f[1]: pos[k]+=1; continue
                        break
                    if isinstance(f,tuple) and f[0]=='BY': pos[k]+=1; continue
                    if isinstance(f,tuple) and f[0]=='GAPV':
                        if nm-lastv[k]>=f[1]: pos[k]+=1; continue
                        break
                    if isinstance(f,tuple) and f[0]=='SYNC': done.setdefault(f[1],nm); pos[k]+=1; continue
                    if isinstance(f,tuple) and f[0]=='AFTER':
                        if f[1] in done and nm>=done[f[1]]+(f[2] if len(f)>2 else 0): pos[k]+=1; continue
                        break
                    g=f if isinstance(f,list) else [f]
                    c=cost(g)
                    if c>free and not(isinstance(f,list) and c<=free+1.4) and not(free>=base): break
                    out.extend(g); free-=c; pos[k]+=1; last[k]=nm
                    if any(isinstance(x,I) and x.kind=='vmem' for x in g): lastv[k]=nm
    rest=[]
    progress=True
    while progress:
        progress=False
        for k,s in enumerate(S):
            while pos[k]<len(s):
                f=s[pos[k]]
                if isinstance(f,tuple) and f[0]=='AFTER' and f[1] not in done: break
                pos[k]+=1; progress=True
                if isinstance(f,tuple) and f[0]=='SYNC': done[f[1]]=nm; continue
                if isinstance(f,tuple) and f[0] in('AT','GAP','GAPV','AFTER','BY','DENS'): continue
                rest.extend(f if isinstance(f,list) else [f])
    assert all(pos[k]==len(S[k]) for k in range(len(S)))
    out=order_gaps(out)
    if forced[0]: print("  weave: forced by deadline:",forced[0],{k:(len(v),v[0][:28] if isinstance(v[0],str) else v[0]) for k,v in flog.items()})
    return out,rest
def paced(items,gap):
    out=[]
    for it in items:
        if isinstance(it,I) and it.kind=='vmem': out.append(('GAPV',gap))
        out.append(it)
    return out

def sprinkle(main, extra, every):
    out=[]; extra=list(extra); n=0
    for it in main:
        out.append(it); n+=1
        if n%every==0 and extra:
            while extra:
                x=extra.pop(0); out.append(x)
                if isinstance(x,I) and x.kind=='vmem': break
    return out, extra

def _rank(x):
    if isinstance(x,tuple): return 0
    if x.kind in('salu',) or x.op in('s_waitcnt','s_nop'): return 0
    if x.kind in('ds','vmem','smem'): return 1
    if x.kind=='valu': return 2
    return None
def _scc_def(x): return x.kind=='salu' and not x.op.startswith(('s_mov','s_mul_i32','s_cselect','s_getreg','s_movk','s_bitset'))
def _scc_use(x): return x.op.startswith(('s_cselect','s_addc','s_cbranch_scc'))
def _indep(x,y):
    if isinstance(x,tuple):
        if isinstance(y,tuple): return False
        if x[0]=='WLG': return not(y.kind=='ds' and y.tok==x[1])
        if x[0]=='WVM': return not(y.kind=='vmem' and y.tok==x[1])
        return False
    if isinstance(y,tuple): return False
    if x.op in('s_waitcnt','s_nop') or y.op in('s_waitcnt','s_nop'): return False
    if (x.defs&(y.defs|y.uses)) or (x.uses&y.defs): return False
    if (_scc_use(x) and _scc_def(y)) or (_scc_def(x) and (_scc_use(y) or False)): return False
    return True
def order_gaps(items):
    out=[]; gap=[]; seen=False
    def flush():
        g=gap[:]
        for i in range(1,len(g)):
            j=i
            while j>0:
                a,b=_rank(g[j]),_rank(g[j-1])
                if a is None or b is None or a>=b or not _indep(g[j],g[j-1]): break
                g[j],g[j-1]=g[j-1],g[j]; j-=1
        out.extend(g); gap.clear()
    for it in items:
        if isinstance(it,I) and it.kind=='mfma':
            if seen and len(gap)<=8: flush()
            else: out.extend(gap); gap.clear()
            out.append(it); seen=True
        else: gap.append(it)
    out.extend(gap)
    return out
```

```python
import sys, os
from asmlib import *
from layout import *

NAME="interleave_layers__ssm_conv_h3__glu_gated_reglu__prompt_kernel"
CFG=dict(nth=0, ntx=0, wbat=1, wbid=0, ppat=2, fbpre=1, cg0=30, gbt0=28, xg0=16, w2af='xc', densb=3, qat=1, gbs5=8, ring4=1, clr=3, utouch=1, f1max=2048, cann=56, plan=6, chl=56, cla=9, cdens=3, cslots=2, chc=28, cack=56, rot=1, cm2=70, cm3=120, a0l=14, a0c=14, a1xl=22, dens=5, fl=30, fl0=60, hca=24, hcg=22, g1=4, g2=5, g3=4, dens1=2, gahl=16, gahc=14, hbgap=4, tev=6, tev2=5, dens2=6, gbl=8, gbc=18, gbt=28, gbxl=20, b0hl=80, w2at=30, w2gap=5, w2lead=40, rrest=56, cgap=5, warm=1, stamps=0, stop=None, slow=1, prefetch=1, touch=2, dgather=1, dstage=1, wbl2=0, outsc=1)
for a_ in sys.argv[2:]:
    k,v=a_.split('='); CFG[k]=int(v) if v.lstrip('-').isdigit() else v

sX,sR,sWV,sG,sM,sRH,sCT2,sKH,sCHH,sTAG,sHELLO=4,5,6,7,8,9,10,11,12,13,14
sT0,sT1,sT2,sT3=3,15,60,61
sCNT=62; sSOFF=63
WS,SK_,SV_,SQ_,SH_,SWG,SWU,SWD,SO_,SSK,SD_=16,20,24,28,32,36,40,44,48,52,56
srd=lambda b:f"s[{b}:{b+3}]"
sXW,sHW,sHK,sHS,sXS,sFL,sGR,sS5,sGRl,sS5l=64,65,66,67,68,69,70,71,72,73
sW1W,sWo,sHF,sW2B=74,75,76,77
sPS,sPD,sPF,sW20=56,57,58,59
sCK1,sCK2,sCK3,sQ=20,21,24,25
sCH,sUO,sMB=26,27,0
sMODE=34; sFLH=23; sC4,sC3,sM4,sM3=52,53,54,55
sFLG=1
STAMP0=78
Q=[0,32768,65536,98304,131072]
TCP=4160; TCH=4*TCP; L_TOEP=0
L_U=2*TCH; UCH=4608
L_K=L_U+2*UCH; CHP=1056; L_V=L_K+9*CHP
L_CX=L_K
L_YS=0
L_WS=65536; WSL=24576
SLOT=[L_WS+k*WSL for k in range(4)]
L_PP=SLOT[3]
SLOT=SLOT[:3]+[8192,36864,L_PP]
vL=1; vOne=2; vTok=3; vGs=4; vGl=5; vS5s=6; vS5l=7; vXD=8; vHD=9; vHS1=10; vHS2=11; vFX=12; vFH=13
vTAG=14; vR2=15
vXst=[16,24]; vYY=[32,36]
ACC0,ACC1,FR,vA0,vA1,EP,PT=40,64,88,112,113,114,122
vW2,vT2,vWc0=126,127,128
vW1=[129,130,131]; vTa,vTm,vWc1=132,133,134
vLane,vJ,vQ,vYo,vD=135,136,137,138,139
vCg,vCs=124,125
vHa=15
vCXw,vCXo,vCXp,vKV,vGA,vGW,vGT,vFT=160,161,162,163,164,165,166,167
vKD,vUP,vPK,vGD,vGC,vQT,vTch=168,172,176,184,192,196,193
W2V=144; W2A=192
def W1(s,t): b=(s*3+t)*4; return f"a[{b}:{b+3}]"
def W1h(s,t,hh): b=(s*3+t)*4+2*hh; return f"a[{b}:{b+1}]"
def W2(i,t):
    k=(i*2+t)*4
    return f"v[{W2V+k}:{W2V+k+3}]" if k<112 else f"a[{W2A+k-112}:{W2A+k-112+3}]"
def W2h(i,t,hh):
    k=(i*2+t)*4+2*hh
    return f"v[{W2V+k}:{W2V+k+1}]" if k<112 else f"a[{W2A+k-112}:{W2A+k-112+1}]"
V=lambda b,n=4: f"v[{b}:{b+n-1}]"
OOB=0x7FFFFF00
vST=lambda: 140 if CFG.get('trace')=='CV' else 139
POLLMAX=1<<16
def M(text,tok=None): return [mk(l.strip(),tok) for l in text.split('\n') if l.strip()]
BAR=lambda *pre: list(pre)+[mk("s_barrier")]

trace_names=[]; stamp_names=[]; site_names=[]
class G(Asm):
    def __init__(s,tag='',sc=''):
        super().__init__(); s.tag=tag; s.sc=sc; s.ool=[]
    def st(s,name,grp='m'):
        if not CFG['stamps'] or s.tag=='S': return []
        if grp!='*' and not any(c in str(CFG['stamps']) for c in grp): return []
        stamp_names.append(name); i=len(stamp_names)-1
        assert i<20, "too many stamps"
        return M(f"{'s_memtime' if CFG.get('clk') else 's_memrealtime'} s[100:101]\ns_waitcnt lgkmcnt(0)\ns_mov_b32 s{STAMP0+i}, s100")
    def trace(s, items, every, name):
        if s.tag=='S' or CFG.get('trace')!=name: return items
        out=[]; n=0
        for it in items:
            out.append(it)
            if isinstance(it,I) and it.kind=='mfma':
                if n%every==0: out+=s.light(f"{name}+{n}")
                n+=1
        return out+s.light(name+" end")+M("s_nop 15\ns_nop 15\ns_nop 15\ns_nop 15")+s.light(None)+s.light(None)
    def light(s,name):
        k=len(trace_names); trace_names.append(name or "")
        L=[]
        if name: x=mk(f"s_memtime s[{90+2*(k%3)}:{91+2*(k%3)}]"); x.light=1; x.defs=set(); L.append(x)
        if k>=2: L+=M(f"v_writelane_b32 v{vST()}, s{90+2*((k-2)%3)}, {k-2}")
        return L
    def stamp(s,name,grp='m'): s.ext(s.st(name,grp))
    def lr(s,n,*r): LR([i for i in s.L[-n:] if isinstance(i,I)],*r)
    def lw(s,n,*r): LW([i for i in s.L[-n:] if isinstance(i,I)],*r)
    def label(s,p): s.nlab+=1; return f"L{s.tag}_{p}_{s.nlab}"
    def check(s, loads, checks, name):
        R=s.label(name+'r'); L=s.label(name+'l'); B=s.label(name+'b')
        o=Asm(); o.lab(R); o(f"s_mov_b32 s{sCNT}, 0")
        if CFG['stamps'] and s.tag!='S':
            n=len(site_names); site_names.append(name); o(f"s_bitset1_b32 s98, {n}")
        o.lab(L)
        for l in loads: o(l)
        o("s_waitcnt vmcnt(0)")
        for c in checks: o(c)
        o(f"s_cbranch_vccz {B}\ns_add_u32 s{sCNT}, s{sCNT}, 1\ns_cmp_lt_u32 s{sCNT}, {POLLMAX}\ns_cbranch_scc1 {L}\ns_branch {B}")
        s.ool.append(o.L)
        ck=[mk(c) for c in checks]
        return [mk(l,R) for l in loads], [('WVM',R)]+ck[:-1]+[[ck[-1],mk(f"s_cbranch_vccnz {R}"),mk(B+":")]]
    def flat(s, items):
        for it in items:
            if isinstance(it,list): s.ext(it)
            elif isinstance(it,tuple) and it[0] in('AT','GAP','GAPV','SYNC','AFTER','BY','DENS'): pass
            else: s.L.append(it)
    def weave(s, bb, *streams, slots=2, name=None):
        out,rest=weave(bb,streams,slots)
        s.ext(s.trace(out,CFG.get('tev_',4),name) if name else out); s.ext(rest)
        if rest and CFG.get('v'): print("  leftover fillers:",len(rest),[getattr(r,'text',r) for r in rest[:2]])

def entry(a):
    a.stamp("entry","*")
    if CFG["stamps"]: a("s_memtime s[100:101]\ns_waitcnt lgkmcnt(0)\ns_mov_b32 s99, s100\ns_mov_b32 s98, 0")
    a("s_cmp_ge_u32 s2, 256\ns_cbranch_scc1 L_end")
    for b,off in ((SK_,8),(SV_,16),(WS,96),(SSK,24),(SH_,32),(SD_,40),(SQ_,0),(SWG,56),(SWU,64),(SWD,72),(SO_,80)):
        a(f"s_load_dwordx2 s[{b}:{b+1}], s[0:1], {off}")
    a(f"v_lshrrev_b32 v40, 6, v0\nv_and_b32 v{vLane}, 63, v0")
    a(f"s_and_b32 s{sX}, s2, 7\ns_lshr_b32 s{sR}, s2, 3")
    a(f"v_readfirstlane_b32 s{sWV}, v40")
    a(f"v_lshlrev_b32 v{vL}, 4, v{vLane}")
    if CFG['prefetch']:
        a(f"s_getpc_b64 s[{sT2}:{sT2+1}]")
        a("L_pc:")
        a(f"s_lshl_b32 s{sT0}, s{sWV}, 5\ns_add_u32 s{sT0}, s{sT0}, s{sR}\ns_lshl_b32 s{sT0}, s{sT0}, 10")
        a(f"v_add_u32 v42, s{sT0}, v{vL}\nv_min_u32 v42, L_fast_end-L_pc-16, v42")
        a(f"v_mov_b32 v43, s{sT2+1}\nv_add_co_u32 v42, vcc, s{sT2}, v42")
        a(f"v_lshrrev_b32 v48, 3, v{vLane}\nv_and_b32 v49, 7, v{vLane}")
        a("v_addc_co_u32 v43, vcc, 0, v43, vcc")
        a("global_load_dwordx4 v[44:47], v[42:43], off")
    else:
        a(f"v_lshrrev_b32 v48, 3, v{vLane}\nv_and_b32 v49, 7, v{vLane}")
    a(f"v_lshlrev_b32 v49, 4, v49\nv_lshl_add_u32 v{vW2}, v48, 10, v49")
    a(f"s_lshl_b32 s{sT0}, s{sR}, 16\ns_lshl_b32 s{sT1}, s{sX}, 7\ns_add_u32 s{sT0}, s{sT0}, s{sT1}")
    a(f"s_sub_u32 s{sT1}, s{sT0}, 8192\nv_add_u32 v49, s{sT1}, v{vW2}")
    a(f"s_lshl_b32 s{sT1}, s{sWV}, 13\ns_add_u32 s{sT0}, s{sT0}, s{sT1}\nv_add_u32 v48, s{sT0}, v{vW2}")
    a(f"s_mul_i32 s{sT1}, s{sWV}, {CHP}\ns_mov_b32 s{sSOFF}, 32768")
    for b,n in ((SK_,2<<20),(SV_,2<<20),(WS,256<<20),(SSK,4096)):
        a(f"s_mov_b32 s{b+2}, {n}\ns_mov_b32 s{b+3}, 0x20000")
    a(f"v_and_b32 v{vJ}, 15, v{vLane}\nv_lshrrev_b32 v{vQ}, 4, v{vLane}")
    a(f"s_lshl_b32 s{sT0}, s{sX}, 6\ns_lshl_b32 s{sT2}, s{sWV}, 4\ns_add_u32 s{sT0}, s{sT0}, s{sT2}\nv_add_u32 v55, s{sT0}, v{vJ}")
    a(f"v_lshlrev_b32 v78, 3, v55\nv_mov_b32 v50, 0")
    a(f"s_add_u32 m0, s{sT1}, {L_K+CHP}")
    a("s_waitcnt lgkmcnt(0)"); a.stamp("kernarg","f")
    if CFG.get('probe'):
        if CFG['probe']==1: a("s_load_dwordx2 s[96:97], s[0:1], 48\ns_waitcnt lgkmcnt(0)\ns_mov_b32 s98, 0x200000\ns_mov_b32 s99, 0x20000"); S="s[96:99]"; base=0
        else: S=srd(WS); base=CFG['probe']<<24
        a(f"s_lshl_b32 s95, s2, 2\ns_add_u32 s95, s95, s{sWV}\ns_lshl_b32 s95, s95, 11\ns_add_u32 s95, s95, {base}\nv_mov_b32 v60, s95")
        for i in range(16):
            a(f"buffer_load_dword v61, v60, {S}, 0 offen offset:{128*i}\nv_and_b32 v61, 0, v61\nv_add_u32 v60, v60, v61")
    a(f"buffer_load_dwordx4 v48, {srd(SK_)}, 0 offen lds","kv")
    a(f"s_add_u32 m0, s{sT1}, {L_V}");       a(f"buffer_load_dwordx4 v48, {srd(SV_)}, 0 offen lds","kv")
    a(f"s_add_u32 m0, s{sT1}, {L_K+5*CHP}"); a(f"buffer_load_dwordx4 v48, {srd(SK_)}, s{sSOFF} offen lds","kv")
    a(f"s_add_u32 m0, s{sT1}, {L_V+4*CHP}"); a(f"buffer_load_dwordx4 v48, {srd(SV_)}, s{sSOFF} offen lds","kv")
    a(f"s_mov_b32 m0, {L_K}");               a(f"buffer_load_dwordx4 v49, {srd(SK_)}, 0 offen lds","kv")
    a.lw(10,(L_K,L_V+8*CHP))
    a(f"buffer_load_dwordx2 {V(80,2)}, v78, {srd(SSK)}, 0 offen")
    a(f"buffer_load_dword v51, v50, {srd(WS)}, 0 offen sc1")
    a.stamp("kv issued","f")
    for b,n in ((SH_,4096),(SD_,1024),(SQ_,2<<20),(SWG,512*1376*2),(SWU,512*1376*2),(SWD,512*1376*2),(SO_,2<<20)):
        a(f"s_mov_b32 s{b+2}, {n}\ns_mov_b32 s{b+3}, 0x20000")
    a(f"""s_lshr_b32 s{sT0}, s{sR}, 4
        s_lshl_b32 s{sG}, s{sX}, 1
        s_add_u32 s{sG}, s{sG}, s{sT0}
        s_and_b32 s{sM}, s{sR}, 15
        s_lshr_b32 s{sRH}, s{sM}, 3
        s_and_b32 s{sCT2}, s{sM}, 7
        s_lshr_b32 s{sKH}, s{sWV}, 1
        s_and_b32 s{sCHH}, s{sWV}, 1
        s_mov_b32 s{sMB}, 0x100000""")
    a(f"s_cmp_eq_u32 s{sM}, 15\ns_cselect_b32 s{SWG+2}, 0, s{SWG+2}\ns_cselect_b32 s{SWU+2}, 0, s{SWU+2}")
    a(f"s_lshl_b32 s{sT0}, s{sX}, 6\ns_lshl_b32 s{sT1}, s{sR}, 1\ns_add_u32 s{sT0}, s{sT0}, s{sT1}\ns_add_u32 s{sT2}, s{sT0}, s{sKH}")
    a(f"s_lshl_b32 s{sT0}, s{sT2}, 12\ns_add_u32 s{SH_}, s{SH_}, s{sT0}\ns_addc_u32 s{SH_+1}, s{SH_+1}, 0")
    a(f"s_lshl_b32 s{sT0}, s{sCHH}, 11\nv_add_u32 v52, s{sT0}, v{vL}")
    a(f"v_min_u32 v53, 1, v{vLane}\nv_lshlrev_b32 v53, 4, v53\nv_subrev_u32 v53, 32, v53\nv_add_u32 v54, 16, v53")
    a(f"s_lshl_b32 s{sT0}, s{sT2}, 1\nv_mov_b32 v{vD}, s{sT0}")
    a(f"""v_and_b32 v96, 1, v{vQ}
        v_lshlrev_b32 v96, 2, v96
        v_lshrrev_b32 v97, 2, v{vJ}
        v_add_u32 v96, v96, v97
        v_lshlrev_b32 v96, 16, v96
        v_and_b32 v97, 3, v{vJ}
        v_lshl_add_u32 v96, v97, 5, v96
        v_lshrrev_b32 v97, 1, v{vQ}
        v_lshl_add_u32 v96, v97, 4, v96
        s_lshl_b32 s{sT0}, s{sCHH}, 19
        s_lshl_b32 s{sT1}, s{sT2}, 7
        s_add_u32 s{sT0}, s{sT0}, s{sT1}
        s_add_u32 s{sT0}, s{sT0}, {OFF_YT}
        v_add_u32 v{vYo}, s{sT0}, v96
        s_mov_b32 s{sHELLO}, s{sT2}""")
    a(f"v_mov_b32 v{vOne}, {OOB}\nv_cmp_eq_u32 vcc, 0, v{vLane}\nv_cndmask_b32 v{vOne}, v{vOne}, v50, vcc")
    a(f"""s_lshl_b32 s{sT0}, s{sG}, 2
        s_lshl_b32 s{sT1}, s{sRH}, 1
        s_add_u32 s{sT1}, s{sT1}, s{sKH}
        s_add_u32 s{sT0}, s{sT0}, s{sT1}
        s_lshl_b32 s{sT1}, s{sKH}, 1
        s_add_u32 s{sT1}, s{sT1}, s{sRH}""")
    a(f"""s_lshl_b32 s{sGRl}, s{sT0}, 12
        s_add_u32 s{sGRl}, s{sGRl}, {OFF_GRAN}
        s_lshl_b32 s{sS5l}, s{sT0}, 10
        s_add_u32 s{sS5l}, s{sS5l}, {OFF_S5}
        s_lshl_b32 s{sT3}, s{sCT2}, 1
        s_add_u32 s{sT3}, s{sT3}, s{sCHH}""")
    a(f"""s_lshl_b32 s{sGR}, s{sT3}, 8
        s_add_u32 s{sGR}, s{sGR}, s{sGRl}
        s_lshl_b32 s{sS5}, s{sT3}, 2
        s_add_u32 s{sS5}, s{sS5}, s{sS5l}
        s_lshl_b32 s{sXS}, s{sG}, 17
        s_lshl_b32 s{sT1}, s{sT1}, 14
        s_add_u32 s{sXS}, s{sXS}, s{sT1}
        s_lshl_b32 s{sT1}, s{sX}, {1 if CFG['rot'] else 8}
        s_sub_u32 s{sT1}, s{sT3}, s{sT1}
        s_and_b32 s{sT1}, s{sT1}, 15
        s_lshl_b32 s{sT1}, s{sT1}, 10
        s_add_u32 s{sXS}, s{sXS}, s{sT1}
        s_add_u32 s{sXS}, s{sXS}, {OFF_XF}
        s_lshl_b32 s{sT0}, s{sT0}, 14
        s_lshl_b32 s{sT1}, s{sT3}, 6
        s_add_u32 s{sT0}, s{sT0}, s{sT1}""")
    a(f"v_lshlrev_b32 v{vTok}, 10, v{vJ}\nv_lshl_add_u32 v{vTok}, v{vQ}, 4, v{vTok}\nv_add_u32 v{vTok}, s{sT0}, v{vTok}")
    a(f"v_lshlrev_b32 v{vGs}, 4, v{vJ}\nv_lshl_add_u32 v{vGl}, v{vQ}, 10, v{vGs}\nv_lshl_add_u32 v{vGs}, v{vQ}, 2, v{vGs}")
    a(f"v_lshlrev_b32 v{vS5l}, 6, v{vJ}\nv_mov_b32 v{vS5s}, {OOB}\nv_cmp_eq_u32 vcc, 0, v{vQ}\nv_cndmask_b32 v{vS5s}, v{vS5s}, v{vS5l}, vcc")
    a(f"v_lshl_add_u32 v{vS5l}, v{vQ}, 4, v{vS5l}")
    a(f"s_lshl_b32 s{sT0}, s{sX}, 5\ns_add_u32 s{sT0}, s{sT0}, s{sR}\ns_lshl_b32 s{sHF}, s{sT0}, 7\ns_lshl_b32 s{sT0}, s{sWV}, 2\ns_add_u32 s{sHF}, s{sHF}, s{sT0}\ns_add_u32 s{sHF}, s{sHF}, {OFF_HELLO}")
    a(f"""s_lshl_b32 s{sXW}, s{sCHH}, 14
        s_lshl_b32 s{sT0}, s{sKH}, 12
        s_add_u32 s{sXW}, s{sXW}, s{sT0}
        s_lshl_b32 s{sT0}, s{sG}, 17
        s_add_u32 s{sT0}, s{sT0}, s{sXW}
        s_add_u32 s{sT0}, s{sT0}, {OFF_XF}
        v_add_u32 v{vXD}, s{sT0}, v{vL}
        s_lshl_b32 s{sHW}, s{sWV}, 13
        s_mul_i32 s{sHK}, s{sKH}, {3*8192}
        s_lshl_b32 s{sHS}, s{sKH}, 13
        s_add_u32 s{sHS}, s{sHS}, 8192
        s_lshl_b32 s{sT0}, s{sG}, 3
        s_add_u32 s{sT1}, s{sRH}, s{sT0}
        s_mul_i32 s{sT1}, s{sT1}, {HKS}
        s_mul_i32 s{sT3}, s{sKH}, 21
        s_add_u32 s{sT1}, s{sT1}, s{sT3}
        s_lshl_b32 s{sT1}, s{sT1}, 10
        s_add_u32 s{sT1}, s{sT1}, {OFF_H}
        v_add_u32 v{vHD}, s{sT1}, v{vL}""")
    a(f"""s_mul_i32 s{sT0}, s{sT0}, {HKS*1024}
        s_mul_i32 s{sT1}, s{sM}, 12
        s_mul_i32 s{sT3}, s{sWV}, 3
        s_add_u32 s{sT1}, s{sT1}, s{sT3}
        s_lshl_b32 s{sT1}, s{sT1}, 8
        s_add_u32 s{sT0}, s{sT0}, s{sT1}
        s_add_u32 s{sT0}, s{sT0}, {OFF_H}
        s_mov_b32 s{sT1}, {HKS*1024}
        v_lshlrev_b32 v97, 4, v{vJ}
        v_add_u32 v97, s{sT0}, v97
        v_and_b32 v98, 1, v{vQ}
        v_mad_u32_u24 v{vHS1}, v98, s{sT1}, v97
        v_add_u32 v{vHS2}, 512, v{vHS1}
        v_cmp_gt_u32 vcc, 32, v{vLane}
        v_mov_b32 v97, {OOB}
        v_cndmask_b32 v{vHS2}, v97, v{vHS2}, vcc
        v_lshrrev_b32 v98, 1, v{vQ}
        v_lshl_add_u32 v{vHS1}, v98, 8, v{vHS1}
        v_lshlrev_b32 v{vFX}, 2, v{vLane}
        v_min_u32 v{vFH}, 57, v{vLane}
        v_lshlrev_b32 v{vFH}, 2, v{vFH}
        s_lshl_b32 s{sFL}, s{sG}, 9
        s_lshl_b32 s{sFLG}, s{sM}, 2
        s_add_u32 s{sFLG}, s{sFLG}, s{sWV}
        s_lshl_b32 s{sFLG}, s{sFLG}, 2
        s_add_u32 s{sFLG}, s{sFLG}, s{sFL}
        s_nop 0""")
    w_setup(a)
    a(f"""v_mul_u32_u24 v83, {2*CHP}, v{vQ}
        v_bfe_u32 v101, v{vLane}, 2, 2
        v_lshl_add_u32 v83, v101, 7, v83
        v_and_b32 v101, 3, v{vLane}
        v_lshl_add_u32 v83, v101, 3, v83
        s_lshl_b32 s{sT0}, s{sWV}, 5
        v_add_u32 v83, s{sT0}, v83""")
    a(f"v_and_b32 v55, -9, v55\nv_lshlrev_b32 v55, 12, v55\nv_lshl_add_u32 v55, v{vQ}, 5, v55\nv_lshrrev_b32 v101, 3, v{vJ}\nv_lshl_add_u32 v55, v101, 4, v55\ns_lshl_b32 s{sT0}, s{sR}, 7\ns_add_u32 s{sT0}, s{sT0}, {OFF_KVT}\nv_add_u32 v55, s{sT0}, v55")
    a(f"v_lshrrev_b32 v100, 5, v{vLane}\nv_mul_u32_u24 v100, {UCH-512}, v100\nv_add_u32 v100, v100, v{vL}")
    a("v_mov_b32 v104, 0\nv_mov_b32 v105, 0\nv_mov_b32 v106, 0\nv_mov_b32 v107, 0")
    a(f"ds_write_b128 v100, {V(104)} offset:{L_U}"); a.lw(1,(L_U,L_U+512),(L_U+UCH,L_U+UCH+512))
    a(f"""s_lshl_b32 s{sT0}, s{sWV}, 12
        s_add_u32 s{sT1}, s{sT0}, {L_CX}
        v_add_u32 v{vCXw}, s{sT1}, v{vL}
        s_lshl_b32 s{sT2}, s{sCHH}, 11
        v_add_u32 v{vCXo}, s{sT2}, v{vCXw}
        v_xor_b32 v{vCXp}, 4096, v{vL}
        s_xor_b32 s{sT0}, s{sT0}, 4096
        s_add_u32 s{sT0}, s{sT0}, s{sT2}
        s_add_u32 s{sT0}, s{sT0}, {L_CX}
        v_add_u32 v{vCXp}, s{sT0}, v{vL}
        s_lshl_b32 s{sT0}, s{sCHH}, 10
        s_mul_i32 s{sT1}, s{sKH}, {UCH}
        s_add_u32 s{sT0}, s{sT0}, s{sT1}
        s_add_u32 s{sT0}, s{sT0}, {L_U+512+8}
        v_lshlrev_b32 v{vKV}, 5, v{vJ}
        v_lshrrev_b32 v100, 1, v{vQ}
        v_lshl_add_u32 v{vKV}, v100, 4, v{vKV}
        v_and_b32 v100, 1, v{vQ}
        v_lshlrev_b32 v100, 3, v100
        v_sub_u32 v{vKV}, v{vKV}, v100
        v_add_u32 v{vKV}, s{sT0}, v{vKV}
        v_lshrrev_b32 v100, 2, v0
        v_lshlrev_b32 v100, 7, v100
        v_and_b32 v101, 3, v0
        v_lshl_add_u32 v100, v101, 4, v100
        s_lshl_b32 s{sT0}, s{sG}, 16
        s_lshl_b32 s{sT1}, s{sCT2}, 13
        s_add_u32 s{sT0}, s{sT0}, s{sT1}
        s_lshl_b32 s{sT1}, s{sRH}, 6
        s_add_u32 s{sT0}, s{sT0}, s{sT1}
        s_add_u32 s{sT0}, s{sT0}, {OFF_YT}
        v_add_u32 v{vGA}, s{sT0}, v100
        v_lshlrev_b32 v{vGW}, 4, v0
        v_bfe_u32 v100, v{vLane}, 2, 2
        v_lshl_add_u32 v100, v{vQ}, 3, v100
        v_lshlrev_b32 v100, 6, v100
        v_and_b32 v101, 3, v{vLane}
        v_lshl_add_u32 v100, v101, 3, v100
        s_lshl_b32 s{sT0}, s{sCHH}, 11
        s_lshl_b32 s{sT1}, s{sKH}, 5
        s_add_u32 s{sT0}, s{sT0}, s{sT1}
        v_add_u32 v{vGT}, s{sT0}, v100
        v_and_b32 v100, 7, v{vLane}
        v_lshlrev_b32 v100, 7, v100
        v_bfe_u32 v101, v{vLane}, 3, 2
        v_lshl_add_u32 v100, v101, 14, v100
        s_lshl_b32 s{sT0}, s{sFL}, 1
        s_add_u32 s{sT0}, s{sT0}, {OFF_XFLAG}
        v_add_u32 v{vFT}, s{sT0}, v100
        v_and_b32 v100, 31, v{vLane}
        v_lshlrev_b32 v100, 7, v100
        v_cmp_gt_u32 vcc, 32, v{vLane}
        s_lshl_b32 s{sT0}, s{sCT2}, 12
        s_lshl_b32 s{sT1}, s{sX}, 12
        v_mov_b32 v101, s{sT0}
        v_mov_b32 v102, s{sT1}
        v_cndmask_b32 v101, v101, v102, vcc
        v_add_u32 v100, {OFF_HELLO}, v100
        v_add_u32 v{vHa}, v100, v101""")
    a(f"""s_lshl_b32 s{sT0}, s{sHELLO}, 12
        s_lshl_b32 s{sT1}, s{sCHH}, 11
        s_add_u32 s{sT0}, s{sT0}, s{sT1}
        s_add_u32 s{sT0}, s{sT0}, {OFF_KVT}
        v_lshlrev_b32 v100, 7, v{vLane}
        v_add_u32 v100, s{sT0}, v100
        s_lshr_b32 s{sT0}, s{sR}, 3
        s_lshl_b32 s{sT1}, s{sX}, 2
        s_add_u32 s{sT0}, s{sT0}, s{sT1}
        s_lshl_b32 s{sT0}, s{sT0}, 7
        s_add_u32 s{sT0}, s{sT0}, {OFF_F1L}
        v_mov_b32 v101, s{sT0}
        v_cmp_gt_u32 vcc, 16, v{vLane}
        v_cndmask_b32 v{vTch}, v101, v100, vcc""")
    if CFG['utouch']==0: a(f"buffer_load_dword v{vTch}, v{vTch}, {srd(WS)}, 0 offen sc1")
    ssm_loads(a)
    a(f"""v_lshlrev_b32 v{vCg}, 4, v{vJ}
        v_lshl_add_u32 v{vCg}, v{vQ}, 18, v{vCg}
        v_lshrrev_b32 v{vCs}, 3, v{vLane}
        v_lshlrev_b32 v{vCs}, 16, v{vCs}
        v_and_b32 v100, 7, v{vLane}
        v_lshl_add_u32 v{vCs}, v100, 4, v{vCs}
        s_lshl_b32 s{sT0}, s{sCHH}, 17
        s_lshl_b32 s{sT1}, s{sCT2}, 7
        s_add_u32 s{sT0}, s{sT0}, s{sT1}
        s_add_u32 s{sT0}, s{sT0}, s{sS5l}
        v_add_u32 v{vCs}, s{sT0}, v{vCs}
        v_cmp_gt_u32 vcc, 16, v{vLane}
        v_mov_b32 v100, {OOB}
        v_add_u32 v{vCg}, s{sGR}, v{vCg}
        v_cndmask_b32 v{vCs}, v100, v{vCs}, vcc""")
    if CFG['clr']==0: clears(a)
    a.stamp("setup done","f")

def ssm_loads(a):
    for rho,(va,off) in enumerate(((52,0),(52,1024))):
        d=56+8*rho
        a(f"buffer_load_dwordx4 {V(d)}, v{va}, {srd(SH_)}, 0 offen offset:{off}")
        a(f"buffer_load_dwordx2 {V(d+4,2)}, v{va}, {srd(SH_)}, 0 offen offset:{off+16}")
    a(f"buffer_load_dwordx4 {V(72)}, v53, {srd(SH_)}, 0 offen")
    a(f"buffer_load_dwordx2 {V(76,2)}, v54, {srd(SH_)}, 0 offen")
    a(f"buffer_load_ushort v{vD}, v{vD}, {srd(SD_)}, 0 offen")

def clears(a,tok=None):
    a("v_mov_b32 v112, -1\nv_mov_b32 v113, -1\nv_mov_b32 v114, -1\nv_mov_b32 v115, -1")
    a(f"""buffer_store_dwordx4 {V(112)}, v{vYo}, {srd(WS)}, 0 offen sc1
        buffer_store_dwordx4 {V(112)}, v{vYo}, {srd(WS)}, s{sMB} offen sc1
        buffer_store_dwordx4 {V(112)}, v{vCg}, {srd(WS)}, 0 offen sc1
        buffer_store_dwordx4 {V(112)}, v{vCs}, {srd(WS)}, 0 offen sc1""",tok)

def w_setup(a):
    lane,j,q=vLane,vJ,vQ
    for b in range(3):
        a(f"v_add_u32 v100, {64*b}, v{lane}\nv_mul_u32_u24 v101, 43691, v100\nv_lshrrev_b32 v101, 19, v101")
        a(f"v_mul_u32_u24 v102, 12, v101\nv_sub_u32 v100, v100, v102\nv_lshlrev_b32 v100, 4, v100")
        a(f"v_mul_u32_u24 v101, 2752, v101\nv_add_u32 v{vW1[b]}, v100, v101")
    a(f"s_mul_i32 s{sT0}, s{sWV}, {16*2752}\ns_mul_i32 s{sT1}, s{sM}, 192\ns_add_u32 s{sT0}, s{sT0}, s{sT1}")
    for b in range(3):
        a(f"v_add_u32 v{vW1[b]}, s{sT0}, v{vW1[b]}")
        if b: a(f"v_subrev_u32 v{vW1[b]}, {1024*b}, v{vW1[b]}")
    a(f"""v_bfe_u32 v100, v{lane}, 2, 2
        v_lshl_add_u32 v100, v{q}, 3, v100
        v_and_b32 v101, 3, v{lane}
        v_mul_u32_u24 v102, 192, v100
        s_mul_i32 s{sT0}, s{sWV}, 48
        v_add_u32 v102, s{sT0}, v102
        v_lshl_add_u32 v{vTa}, v101, 3, v102
        v_and_b32 v103, 1, v101
        v_mul_u32_u24 v103, 12288, v103
        v_add_u32 v102, v102, v103
        v_lshrrev_b32 v103, 1, v101
        v_lshl_add_u32 v102, v103, 3, v102
        v_add_u32 v{vTm}, 32, v102
        v_lshlrev_b32 v102, 7, v100
        v_lshl_add_u32 v102, v101, 4, v102
        s_lshl_b32 s{sT1}, s{sWV}, 12
        s_add_u32 s{sT1}, s{sT1}, {L_PP}
        v_add_u32 v{vT2}, s{sT1}, v102
        s_mul_i32 s{sW1W}, s{sWV}, 3072""")

def c_dma(n, slot):
    if CFG.get('now1'): return []
    L=M(f"s_add_u32 s{sWo}, s{sX}, {n}\ns_and_b32 s{sWo}, s{sWo}, 7\ns_mul_i32 s{sWo}, s{sWo}, {64*2752}") if CFG['rot'] else M(f"s_mov_b32 s{sWo}, {n*64*2752}")
    for mat,S in ((0,SWG),(1,SWU)):
        L+=M(f"s_add_u32 m0, s{sW1W}, {slot+mat*12288}")
        for b in range(3): L+=M(f"buffer_load_dwordx4 v{vW1[b]}, {srd(S)}, s{sWo} offen offset:{1024*b} lds",f"c{n}")
    return LW(L,(slot,slot+WSL))
def c_read(n, slot):
    if CFG.get('now1'): return []
    L=M(f"v_add_u32 v{vWc0}, {slot}, v{vTa}\nv_add_u32 v{vWc1}, {slot}, v{vTm}")
    for sp in range(2):
        s=2*n+sp
        for hh in range(2):
            o=sp*6144+hh*768
            L+=M(f"""ds_read_b64_tr_b16 {W1h(s,0,hh)}, v{vWc0} offset:{o}
                     ds_read_b64_tr_b16 {W1h(s,1,hh)}, v{vWc0} offset:{o+12288}
                     ds_read_b64_tr_b16 {W1h(s,2,hh)}, v{vWc1} offset:{o}""",f"cr{n}")
    return LR(L,(slot,slot+WSL))
def pp_setup():
    return M(f"""s_lshl_b32 s{sT0}, s{sWV}, 8
        s_add_u32 s{sT0}, s{sT0}, s2
        s_mul_i32 s{sT1}, s{sT0}, 1525
        s_lshr_b32 s{sT1}, s{sT1}, 16
        s_mul_i32 s{sT2}, s{sT1}, 43
        s_sub_u32 s{sT2}, s{sT0}, s{sT2}
        s_lshl_b32 s{sPS}, s{sT2}, 15
        s_lshl_b32 s{sT3}, s{sT1}, 7
        s_add_u32 s{sPS}, s{sPS}, s{sT3}
        s_mul_i32 s{sPD}, s{sT1}, 86
        s_add_u32 s{sPD}, s{sPD}, s{sT2}
        s_lshl_b32 s{sPD}, s{sPD}, 11
        s_add_u32 s{sPD}, s{sPD}, {OFF_P2}
        s_lshl_b32 s{sPF}, s{sT0}, 7
        s_add_u32 s{sPF}, s{sPF}, {OFF_P2F}
        s_cmp_lt_u32 s{sT0}, 344
        s_cselect_b32 s{sPS}, s{sPS}, {OOB}
        s_cselect_b32 s{sPD}, s{sPD}, {OOB}
        s_cselect_b32 s{sPF}, s{sPF}, {OOB}
        s_lshl_b32 s{sT0}, s{sCT2}, 1
        s_add_u32 s{sT0}, s{sT0}, s{sCHH}
        s_mul_i32 s{sT0}, s{sT0}, 43
        s_mul_i32 s{sT1}, s{sKH}, 21
        s_add_u32 s{sT0}, s{sT0}, s{sT1}
        s_lshl_b32 s{sT0}, s{sT0}, 11
        s_add_u32 s{sW2B}, s{sT0}, {OFF_P2}
        s_cmp_eq_u32 s{sKH}, 0
        s_cselect_b32 s{sW20}, s{sW2B}, {OOB}""")
def pp_load():
    L=M(f"s_lshl_b32 s{sT3}, s{sWV}, 12")
    for r in range(4):
        L+=M(f"s_add_u32 m0, s{sT3}, {L_PP+1024*r}\ns_add_u32 s{sWo}, s{sPS}, {8192*r}")
        L+=M(f"buffer_load_dwordx4 v{vW2}, {srd(SWD)}, s{sWo} offen lds","pp")
    for x in L: x.priv=1
    return LW(L,(L_PP,L_PP+16384))
def pp_pack():
    L=[('WVM','pp')]
    for c in range(2):
        for t in range(2):
            for hh in range(2): L+=LR(M(f"ds_read_b64_tr_b16 {V(W2V+8*c+4*t+2*hh,2)}, v{vT2} offset:{hh*512+64*c+8*t}"),(L_PP,L_PP+16384))
    for x in L[1:]: x.priv=1
    S=[]
    for c in range(2):
        S+=M(f"s_add_u32 s{sT2}, s{sPD}, {c*43*2048}")
        for t in range(2): S+=M(f"buffer_store_dwordx4 {V(W2V+8*c+4*t)}, v{vL}, {srd(WS)}, s{sT2} offen offset:{1024*t} sc1","pps")
    return L,S
def w2_loads():
    L=[]
    for i in range(22):
        so=sW20 if i==0 else (sW2B if i==1 else sPS)
        if i>=2 and i%2==0: L+=M(f"s_add_u32 s{sPS}, s{sW2B}, {i*2048}")
        for t in range(2): L+=M(f"buffer_load_dwordx4 {W2(i,t)}, v{vL}, {srd(WS)}, s{so} offen offset:{(i&1)*2048+t*1024} sc1")
    return L
W2Q=[]
def w2_take(n):
    out=[]
    while W2Q and n>0:
        x=W2Q.pop(0); out.append(x)
        if x.kind=='vmem': n-=1
    return out

PLANS={
 0:dict(),
 1:dict(FL="i0", T2="i1", CV=[("a",20,"r0"),("d",40,"i2"),("a",84,"w1 b r1"),("d",100,"i3@0")], YS="i4@5", YA="w3 b r2 r3", GL="i5@1 w4 l b r4", ST="i6@2", PEND=[5,6], REST=["7@0"]),
 3:dict(FL="i0", T2="i1 w0 b r0", CV=[("d",2,"i2"),("d",68,"i3@0")], CE="w2", YS="r1 r2 i4@3", F1="r3", F2="i5@1", FB="r4", XD="", PEND=[5], REST=["6@2","7@0"]),
 6:dict(T2="i0", CV=[("d",40,"i1"),("d",90,"i2")], CE="w1", YS="i3@3 r0 r1", SA="w2", F1="r2 i4@0", F2="", FX="i5@1", SB="w4", FB="r3 r4", XD="", PEND=[5], REST=["6@2","7@0"]),
 7:dict(FL="i0", T2="i1 w0 b r0", CV=[("d",20,"i2"),("d",68,"i3@0")], CE="w2", YS="i4@3 r1 r2", F1="r3", F2="i5@1", FX="i6@2", FB="r4", PEND=[5,6], REST=["7@0"]),
 4:dict(FL="i0", T2="i1 w0 b r0", CV=[("d",2,"i2"),("d",50,"i3@0")], CE="w2", YS="i4@3 r1 r2", F1="r3", F2="i5@1", FX="i6@2", FB="r4", PEND=[5,6], REST=["7@0"]),
 5:dict(T1="i0", FL="", T2="i1 w0 b r0", CV=[("d",2,"i2"),("d",46,"i3@0"),("a",60,"w1 b r1"),("a",84,"L1 b"),("d",92,"i4@1")], CE="w3", YS="i5@3 r2 r3", SA="w4", F1="r4", F2="i6@2", FX="i7@0", FB="r5", PEND=[6,7]),
 2:dict(FL="i0", T2="i1", CV=[("a",20,"r0"),("d",30,"i2"),("a",70,"w1 b r1"),("d",80,"i3@0"),("a",124,"w2 b r2")], YS="i4@5 i5@1", YA="w4 b r3 r4", GL="i6@2 w5 l b r5", ST="i7@0", PEND=[6,7], FA="p4", FB="p4", XD="p4"),
 9:dict(ST="i0 i1 "+" ".join(f"w{n} l b "+(f"i{n+2} " if n+2<8 else "")+f"r{n}" for n in range(8))+" l b"),
}
slot_of={}
def wops(txt):
    L=[]
    for op in txt.split():
        at=None
        if '@' in op: op,at=op.split('@'); at=int(at)
        k=int(op[1:]) if len(op)>1 else None
        if op[0]=='i': slot_of[k]=SLOT[at if at is not None else k%3]; L+=c_dma(k,slot_of[k])
        elif op[0]=='r': L+=c_read(k,slot_of[k])
        elif op[0]=='w': L.append(('WVM',f"c{k}"))
        elif op[0]=='l': L+=M("s_waitcnt lgkmcnt(0)")
        elif op[0]=='L': L.append(('WLG',f"cr{k}"))
        elif op[0]=='b': L+=M("s_barrier")
        elif op[0]=='p': L+=w2_take(k)
    return L
def PL(): return eval(CFG['plan']) if isinstance(CFG['plan'],str) else PLANS[CFG['plan']]
def Wp(a,point): a.flat(wops(PL().get(point,"")))

def toeplitz(a):
    a(f"s_mul_i32 s{sT0}, s{sKH}, {TCH}\ns_add_u32 s{sT0}, s{sT0}, {L_TOEP+32}")
    a(f"v_add_u32 v52, s{sT0}, v52\nv_add_u32 v53, s{sT0}, v53")
    for rho,(va,off) in enumerate(((52,0),(52,1024),(53,0))):
        d=56+8*rho; t=100+12*(rho%2)
        a(f"ds_write_b128 v{va}, {V(d)} offset:{off}")
        for i in range(4): a(f"v_alignbit_b32 v{t+i}, v{d+i+1}, v{d+i}, 16")
        a(f"ds_write_b128 v{va}, {V(t)} offset:{off+TCP}")
        for i in range(4): a(f"v_mov_b32 v{t+4+i}, v{d+i+1}")
        a(f"ds_write_b128 v{va}, {V(t+4)} offset:{off+2*TCP}")
        for i in range(4): a(f"v_alignbit_b32 v{t+8+i}, v{d+i+2}, v{d+i+1}, 16")
        a(f"ds_write_b128 v{va}, {V(t+8)} offset:{off+3*TCP}"); a.lw(16,(L_TOEP,L_TOEP+2*TCH))

def p0(a):
    a.waitvm("kv"); a("s_barrier")
    a.stamp("kv landed","f")
    KR=84; VR=94
    for i in range(5):
        R=4+4*i; a(f"ds_read_b64_tr_b16 {V(KR+2*i,2)}, v83 offset:{L_K+(R>>3)*CHP+(R&7)*128}")
    for i in range(4):
        R=4*i; a(f"ds_read_b64_tr_b16 {V(VR+2*i,2)}, v83 offset:{L_V+(R>>3)*CHP+(R&7)*128}")
    a.lr(9,(L_K,L_V+8*CHP))
    a("v_lshlrev_b32 v40, 16, v80\nv_and_b32 v41, 0xffff0000, v80\nv_lshlrev_b32 v42, 16, v81\nv_and_b32 v43, 0xffff0000, v81")
    K=lambda t: 108+t-2
    for i in range(10):
        if i>0: a(f"v_lshlrev_b32 v{102+2*i}, 16, v{KR+i}")
        a(f"v_and_b32 v{103+2*i}, 0xffff0000, v{KR+i}")
    O=16
    for t in range(16):
        a(f"v_mul_f32 v{O+t}, v40, v{K(t)}")
        a(f"v_fmac_f32 v{O+t}, v41, v{K(t-1)}")
        a(f"v_fmac_f32 v{O+t}, v42, v{K(t-2)}")
        a(f"v_fmac_f32 v{O+t}, v43, v{K(t-3)}")
    for i in range(8):
        a(f"v_lshlrev_b32 v102, 16, v{VR+i}\nv_and_b32 v103, 0xffff0000, v{VR+i}")
        a(f"v_mul_f32 v{O+2*i}, v{O+2*i}, v102\nv_mul_f32 v{O+1+2*i}, v{O+1+2*i}, v103")
    for o in range(2):
        for d in range(4): a(f"v_cvt_pk_bf16_f32 v{KR+4*o+d}, v{O+8*o+7-2*d}, v{O+8*o+6-2*d}")
    for d in range(4): a(f"v_mov_b32 v{102+d}, v{KR+4+d}")
    for d in range(4): a(f"v_mov_b32_dpp v{KR+4+d}, v{KR+d} row_ror:8 row_mask:0xf bank_mask:0x3")
    for d in range(4): a(f"v_mov_b32_dpp v{KR+d}, v{102+d} row_ror:8 row_mask:0xf bank_mask:0xc")
    a(f"s_mov_b32 s{sT0}, 32768")
    a(f"buffer_store_dwordx4 {V(KR)}, v55, {srd(WS)}, 0 offen\nbuffer_store_dwordx4 {V(KR+4)}, v55, {srd(WS)}, s{sT0} offen","kvs")
    if CFG['utouch']==1: a(f"buffer_load_dword v{vTch}, v{vTch}, {srd(WS)}, 0 offen sc1")
    a.stamp("p0 computed","f")
    if CFG['clr']==1: clears(a)
    Wp(a,'T1')
    a(f"s_mov_b32 s{sCH}, s{sHELLO}\ns_getreg_b32 s{sHELLO}, hwreg(HW_REG_XCC_ID, 0, 4)")
    a(f"v_readfirstlane_b32 s{sTAG}, v51")
    a(f"s_add_u32 s{sTAG}, s{sTAG}, 0x9E3779B0\ns_and_b32 s{sTAG}, s{sTAG}, 0xFFFFFFF0\ns_and_b32 s{sHELLO}, s{sHELLO}, 15\ns_or_b32 s{sHELLO}, s{sHELLO}, s{sTAG}")
    a(f"v_mov_b32 v{vTAG}, s{sTAG}\nv_mov_b32 v98, s{sHELLO}")
    a.ext(pp_setup())
    a(f"""s_add_u32 s{sFLH}, s{sFLG}, s{sFL}
        s_lshl_b32 s{sC4}, s{sCHH}, 12
        s_mul_i32 s{sC3}, s{sCHH}, 3072
        s_lshl_b32 s{sM4}, s{sKH}, 14
        s_add_u32 s{sM3}, s{sM4}, s{sC3}
        s_add_u32 s{sM4}, s{sM4}, s{sC4}""")
    a(f"s_lshl_b32 s{sT0}, s{sX}, 2\ns_add_u32 s{sT1}, s{sT0}, s{sWV}\ns_lshl_b32 s{sT1}, s{sT1}, 5\ns_add_u32 s{sT1}, s{sT1}, s{sR}\ns_lshl_b32 s{sT1}, s{sT1}, 2\ns_add_u32 s{sT1}, s{sT1}, {OFF_F1L}")
    a(f"s_lshr_b32 s{sCK1}, s{sR}, 3\ns_add_u32 s{sCK1}, s{sCK1}, s{sT0}\ns_lshl_b32 s{sCK1}, s{sCK1}, 7\ns_add_u32 s{sCK1}, s{sCK1}, {OFF_F1L}")
    a(f"v_and_b32 v97, 31, v{vLane}\nv_lshlrev_b32 v97, 2, v97\ns_mov_b32 s{sMODE}, 0")
    a.waitvm("kvs")
    a(f"buffer_store_dword v98, v{vOne}, {srd(WS)}, s{sT1} offen")
    a.stamp("kvT published","f")
    if CFG['clr']==3: clears(a)
    if CFG['qat']==0: a(f"buffer_load_dwordx4 {V(vQT)}, v{vTok}, {srd(SQ_)}, 0 offen\nbuffer_load_dwordx4 {V(vQT+4)}, v{vTok}, {srd(SQ_)}, s{sMB} offen")
    Wp(a,'FL')
    toeplitz(a)
    a(f"""s_lshl_b32 s{sT0}, s{sCH}, 12
        s_lshl_b32 s{sT1}, s{sCHH}, 11
        s_add_u32 s{sT0}, s{sT0}, s{sT1}
        s_add_u32 s{sT0}, s{sT0}, {OFF_KVT}
        s_mul_i32 s{sUO}, s{sKH}, {UCH}
        s_add_u32 s{sT1}, s{sT1}, s{sUO}""")
    a.stamp("toeplitz","f")
    o=Asm(); o.lab("L_f1r"); o(f"s_mov_b32 s{sCNT}, 0")
    if CFG['stamps']: site_names.append("f1"); o(f"s_bitset1_b32 s98, {len(site_names)-1}")
    o.lab("L_f1l")
    o(f"""buffer_load_dword v99, v97, {srd(WS)}, s{sCK1} offen sc1
        s_waitcnt vmcnt(0)
        v_cmp_ne_u32 vcc, s{sHELLO}, v99
        s_cbranch_vccz L_f1b
        s_add_u32 s{sCNT}, s{sCNT}, 1
        s_cmp_lt_u32 s{sCNT}, {CFG['f1max']}
        s_cbranch_scc1 L_f1l""")
    o.lab("L_f1s")
    o(f"""s_mov_b32 s{sMODE}, 1
        s_mov_b32 s{sT2}, 32768
        buffer_store_dwordx4 {V(KR)}, v55, {srd(WS)}, 0 offen sc1
        buffer_store_dwordx4 {V(KR+4)}, v55, {srd(WS)}, s{sT2} offen sc1
        s_lshl_b32 s{sT2}, s{sX}, 2
        s_add_u32 s{sT3}, s{sT2}, s{sWV}
        s_lshl_b32 s{sT3}, s{sT3}, 5
        s_add_u32 s{sT3}, s{sT3}, s{sR}
        s_lshl_b32 s{sT3}, s{sT3}, 7
        s_add_u32 s{sT3}, s{sT3}, {OFF_F1}
        s_lshr_b32 s{sCK1}, s{sR}, 3
        s_add_u32 s{sCK1}, s{sCK1}, s{sT2}
        s_lshl_b32 s{sCK1}, s{sCK1}, 12
        s_add_u32 s{sCK1}, s{sCK1}, {OFF_F1}
        v_lshlrev_b32 v97, 5, v97
        s_waitcnt vmcnt(0)
        buffer_store_dword v{vTAG}, v{vOne}, {srd(WS)}, s{sT3} offen sc1
        s_mov_b32 s{sCNT}, 0""")
    o.lab("L_f1g")
    o(f"""buffer_load_dword v99, v97, {srd(WS)}, s{sCK1} offen sc1
        s_waitcnt vmcnt(0)
        v_cmp_ne_u32 vcc, s{sTAG}, v99
        s_cbranch_vccz L_f1b
        s_add_u32 s{sCNT}, s{sCNT}, 1
        s_cmp_lt_u32 s{sCNT}, {POLLMAX}
        s_cbranch_scc1 L_f1g
        s_branch L_f1b""")
    a.ool.append(o.L)
    ck=M(f"v_cmp_ne_u32 vcc, s{sHELLO}, v99\ns_cbranch_vccnz L_f1r\nL_f1b:") if CFG['slow']!=2 else M("s_waitcnt vmcnt(0)\ns_branch L_f1s\nL_f1b:")
    a(f"buffer_load_dword v99, v97, {srd(WS)}, s{sCK1} offen sc1")
    a(f"""s_lshl_b32 s{sT3}, s{sCHH}, 8
        s_sub_u32 s{sT2}, s{sUO}, s{sT3}
        s_add_u32 s{sT2}, s{sT2}, {L_U+480-192}
        v_lshlrev_b32 v141, 5, v{vJ}
        v_lshl_add_u32 v141, v{vQ}, 4, v141
        v_add_u32 v141, s{sT2}, v141
        v_add_u32 v142, 1, v{vJ}
        v_and_b32 v143, 3, v142
        v_mul_u32_u24 v143, {TCP}, v143
        v_lshrrev_b32 v142, 2, v142
        v_lshl_add_u32 v142, v142, 3, v143
        v_lshlrev_b32 v143, 4, v{vQ}
        v_sub_u32 v142, v142, v143
        s_mul_i32 s{sT2}, s{sKH}, {TCH}
        s_add_u32 s{sT2}, s{sT2}, s{sT3}
        s_add_u32 s{sT2}, s{sT2}, {L_TOEP+48}
        v_add_u32 v142, s{sT2}, v142
        s_add_u32 m0, s{sT1}, {L_U+512}""")
    a.flat(ck)
    a.stamp("f1 seen","f")
    a(f"buffer_load_dwordx4 v{vL}, {srd(WS)}, s{sT0} offen sc1 lds","u")
    a(f"buffer_load_dwordx4 v{vL}, {srd(WS)}, s{sT0} offen offset:1024 sc1 lds","u")
    a.lw(2,(L_U+512,L_U+UCH),(L_U+UCH+512,L_U+2*UCH))
    if CFG['clr']==4: clears(a,"clr")
    if CFG['clr'] in(1,3): a(f"buffer_store_dword v98, v{vOne}, {srd(WS)}, s{sHF} offen sc1")
    Wp(a,'T2')
    a(f"v_lshlrev_b32 v{vD}, 16, v{vD}")
    a.waitvm("u"); a("s_waitcnt lgkmcnt(0)\ns_barrier")
    a.stamp("U landed","f")

def conv_backbone():
    ACC=40; GR=72; Ureg=[16,20,24,28,32,36,104,108]
    seq=[]
    for it in range(4):
        o=4*(it&1)
        for e in range(4):
            for w in range(3-e,-1,-1): seq.append((w+e,o+e,o+w,('G',e,it,1),('U',w,it,1),it==0 and e==0))
    n1=len(seq)
    for it in range(4):
        pairs=[(e,w) for e in range(8) for w in range(7-e,max(0,4-e)-1,-1)]
        if it==0: pairs=[p for p in pairs if p[0]<4 and p[1]<4]+[p for p in pairs if not(p[0]<4 and p[1]<4)]
        seen=set()
        for e,w in pairs:
            seq.append((w+e,e,w,('G',e,it,2),('U',w,it,2),it==0 and (w+e) not in seen)); seen.add(w+e)
    reads={}; lastuse={}
    for n,(c,g,u,gid,uid,f) in enumerate(seq):
        for ph,i in ((('G',g),gid),(('U',u),uid)):
            if i not in reads: reads[i]=dict(ph=ph,need=n,earliest=lastuse.get(ph,-1))
            lastuse[ph]=n
    def emit(i):
        kind,k,it,_=i; ph=reads[i]['ph'][1]
        if kind=='U': return [LR(mk(f"ds_read_b128 {V(Ureg[ph])}, v141 offset:{512*k+192-64*it}"),(L_U,L_U+2*UCH))]
        return LR([mk(f"ds_read_b64 {V(GR+4*ph,2)}, v142 offset:{512*k+64*it}"),mk(f"ds_read_b64 {V(GR+4*ph+2,2)}, v142 offset:{512*k+64*it+8}")],(L_TOEP,L_TOEP+2*TCH))
    todo=[]
    for i in sorted(reads,key=lambda i:reads[i]['need']):
        for x in emit(i): todo.append((reads[i]['earliest'],reads[i]['need'],x))
    bb=[x for e,n,x in todo if n<4]; todo=[t for t in todo if t[1]>=4]
    for n,(c,g,u,gid,uid,f) in enumerate(seq):
        bb.append(mk(f"v_mfma_f32_16x16x32_bf16 {V(ACC+4*c)}, {V(GR+4*g)}, {V(Ureg[u])}, {'0' if f else V(ACC+4*c)}"))
        k=0
        while True:
            cand=[t for t in todo if t[0]<=n]
            if not cand: break
            t=cand[0]
            if k>=1 and not(k<2 and t[1]-n<=CFG['cla']) and not t[1]-n<=2: break
            bb.append(t[2]); todo.remove(t); k+=1
    assert not todo
    return bb,n1

def conv_epi(st):
    ACC=40+16*st; P=vPK+4*st; R=(L_CX,L_CX+16384)
    W=LW([mk(f"ds_write_b128 v{vCXw}, {V(ACC+4*k)} offset:{1024*k}",f"cx{st}") for k in range(4)],R)
    K=LR([mk(f"ds_read_b64 {V(vKD+2*k,2)}, v{vKV} offset:{2048*st+512*k}") for k in range(2)],(L_U,L_U+2*UCH))
    L=[]
    for k in range(2): L+=LR(M(f"ds_read_b128 {V(ACC+4*k)}, v{vCXo} offset:{1024*k}\nds_read_b128 {V(ACC+8+4*k)}, v{vCXp} offset:{1024*k}",f"cy{st}"),R)
    for k in range(2):
        A=ACC+4*k
        L+=M(f"v_and_b32 v{vUP}, 0xffff0000, v{vKD+1+2*k}\nv_lshlrev_b32 v{vUP+1}, 16, v{vKD+1+2*k}\nv_and_b32 v{vUP+2}, 0xffff0000, v{vKD+2*k}\nv_lshlrev_b32 v{vUP+3}, 16, v{vKD+2*k}")
        for r in range(4): L+=M(f"v_fmac_f32 v{A+r}, v{vD}, v{vUP+r}")
        for r in range(4): L+=M(f"v_add_f32 v{A+r}, v{A+r}, v{A+8+r}")
        L+=M(f"v_cvt_pk_bf16_f32 v{P+2*k}, v{A}, v{A+1}\nv_cvt_pk_bf16_f32 v{P+1+2*k}, v{A+2}, v{A+3}")
    L+=M(f"s_nop 0\nv_permlane16_swap_b32 v{P}, v{P+2}\nv_permlane16_swap_b32 v{P+1}, v{P+3}")
    L+=M(f"buffer_store_dwordx4 {V(P)}, v{vYo}, {srd(WS)}, {'0' if st==0 else 's%d'%sMB} offen sc1",f"yt{st}")
    return W+K,L

def y_check(a,mu):
    D=vGD+4*mu
    return a.check([f"buffer_load_dwordx4 {V(D)}, v{vGA}, {srd(WS)}, {'0' if mu==0 else 's%d'%sMB} offen sc1"],
         [f"v_max3_u32 v{vGC}, v{D}, v{D+1}, v{D+2}",f"v_max_u32 v{vGC}, v{vGC}, v{D+3}",f"v_cmp_eq_u32 vcc, -1, v{vGC}"],"yt")
def y_stage(a,mu,mid=[]):
    a(f"ds_write_b128 v{vGW}, {V(vGD+4*mu)} offset:{L_YS+4096*mu}"); a.lw(1,(L_YS+4096*mu,L_YS+4096*mu+4096))
    a.flat(mid)
    a("s_waitcnt lgkmcnt(0)\ns_barrier")
    for hh in range(2):
        a(f"ds_read_b64_tr_b16 {V(vYY[mu]+2*hh,2)}, v{vGT} offset:{L_YS+4096*mu+256*hh}")
        a.lr(1,(L_YS+4096*mu,L_YS+4096*mu+4096))

def conv(a):
    C=CFG
    bb,n1=conv_backbone()
    qld=M(f"""buffer_load_dwordx4 {V(vQT)}, v{vTok}, {srd(SQ_)}, 0 offen
        buffer_load_dwordx4 {V(vQT+4)}, v{vTok}, {srd(SQ_)}, s{sMB} offen
        buffer_load_dword v{vCg}, v{vCg}, {srd(WS)}, 0 offen sc1
        buffer_load_dword v{vCs}, v{vCs}, {srd(WS)}, 0 offen sc1
        buffer_load_dword v{vFT}, v{vFT}, {srd(WS)}, 0 offen sc1""")
    hl,hc=a.check([f"buffer_load_dwordx4 {V(112)}, v{vHa}, {srd(WS)}, 0 offen sc1"],
         [f"v_xor_b32 v113, s{sTAG}, v113",f"v_xor_b32 v114, s{sTAG}, v114",f"v_xor_b32 v115, s{sTAG}, v115",
          "v_or3_b32 v113, v113, v114, v115",f"v_xor_b32 v114, s{sTAG}, v112","v_or_b32 v113, v113, v114","v_cmp_lt_u32 vcc, 15, v113"],"h2")
    pk,ps=pp_pack()
    dmas=paced((qld[:2] if C['qat']==1 else [])+(pp_load()+qld[2:] if C['ppat']==1 else []),3); fill=[]; a.late=pp_load()+qld[2:]
    for kind,at,ops in PL().get('CV',[]):
        it=wops(ops)
        if kind=='d': dmas+=[('AT',at)]+paced(it,C['cgap'])
        else:
            k=[i for i,x in enumerate(it) if isinstance(x,I) and x.op=='s_barrier']
            if k: it=[it[:k[0]+1]]+it[k[0]+1:]
            fill+=[('AT',at)]+it
    w0,e0=conv_epi(0)
    gl,a.gcA=y_check(a,0)
    crit=[('AT',n1+2),('DENS',C['cdens'])]+w0+[('GAP',3),[('WLG','cx0'),mk("s_barrier")]]+e0[:-1]+([] if C['clr']==4 else [('AFTER','hl')])+e0[-1:]+[('DENS',0),('SYNC','y0'),('AFTER','hl',C['chc'])]+hc \
        +[[('WLG','cy0'),mk("s_barrier")],('AFTER','y0',C['cack']),('WVM','yt0')]+gl+[('SYNC','g0')]
    ann=[('AT',C['cann']),('WVM','clr')]+M(f"buffer_store_dword v{vTAG}, v{vOne}, {srd(WS)}, s{sHF} offen sc1") if C['clr']==4 else []
    third=ann+[('AT',C['chl'])]+hl+[('SYNC','hl'),('AFTER','g0'),('AFTER','dd')]+paced((qld[:2] if C['qat']==2 else [])+(pp_load()+qld[2:] if C['ppat']==2 else []),2)
    a.weave(bb,crit,dmas+[('SYNC','dd')],fill,third,slots=C['cslots'],name='CV')
    a.stamp("conv mfma done","f")
    w1,e1=conv_epi(1)
    Wp(a,'CE')
    a.flat(w1); a("s_waitcnt lgkmcnt(0)\ns_barrier"); a.flat(e1)
    if CFG.get('trace')=='CV': a("v_mov_b32 v139, v140")
    a.stamp("yT stored","f")
    if C['ppat']==3: a.flat(a.late)
    Wp(a,'YS')
    for mu in range(2):
        for i in range(4):
            a(f"v_lshlrev_b32 v{vXst[mu]+2*i}, 16, v{vQT+4*mu+i}\nv_and_b32 v{vXst[mu]+2*i+1}, 0xffff0000, v{vQT+4*mu+i}")
    for mu in range(2): a.flat(fin1a(mu))
    Wp(a,'YA')
    a.flat(a.gcA)
    a.pk=(pk,ps)
    a.stamp("yA gathered","f")
    y_stage(a,0,wops(PL().get('SA',"")))
    Wp(a,'ST')
    if CFG['slow']: a(f"s_cmp_lg_u32 s{sMODE}, 0\ns_cbranch_scc1 L_slow")

def unpackY(mu,T):
    L=[]
    for i in range(4): L+=M(f"v_lshlrev_b32 v{T+2*i}, 16, v{vYY[mu]+i}\nv_and_b32 v{T+2*i+1}, 0xffff0000, v{vYY[mu]+i}")
    return L
def treduce(s0,s1,s2,s3,gap=[]):
    return M(f"v_permlane32_swap_b32 v{s0}, v{s2}\nv_permlane32_swap_b32 v{s1}, v{s3}\nv_add_f32 v{s0}, v{s0}, v{s2}\nv_add_f32 v{s1}, v{s1}, v{s3}")+gap+M(f"v_permlane16_swap_b32 v{s0}, v{s1}\nv_add_f32 v{s0}, v{s0}, v{s1}")

SX=[104,106]
def fin1a(mu,S=None):
    X=vXst[mu]; S=SX[mu] if S is None else S
    L=M(f"v_add_f32 v{S}, v{X}, v{X+1}\nv_mul_f32 v{S+1}, v{X}, v{X}")
    for e in range(1,8):
        if e>1: L+=M(f"v_add_f32 v{S}, v{S}, v{X+e}")
        L+=M(f"v_fmac_f32 v{S+1}, v{X+e}, v{X+e}")
    return L
def fin1(a, layer, mu, T, unpacked=False):
    X=vXst[mu]; L=[] if unpacked else unpackY(mu,T); S=T+8
    s0=SX[mu] if layer==0 else S
    A=[] if layer==0 else fin1a(mu,S)
    Bq=M(f"v_mul_f32 v{S+2}, v{X}, v{T}\nv_add_f32 v{S+3}, v{T}, v{T+1}")
    for e in range(1,8):
        Bq+=M(f"v_fmac_f32 v{S+2}, v{X+e}, v{T+e}")
        if e>1: Bq+=M(f"v_add_f32 v{S+3}, v{S+3}, v{T+e}")
    while A or Bq:
        if A: L.append(A.pop(0))
        if Bq: L.append(Bq.pop(0))
    L+=treduce(s0,s0+1,S+2,S+3,M(f"s_add_u32 s{sT0}, s{sGR}, {(layer*2+mu)*262144}"))
    L+=M(f"buffer_store_dword v{s0}, v{vGs}, {srd(WS)}, s{sT0} offen{a.sc}")
    return L

def fin2(a, layer, mu, T):
    X=vXst[mu]; Gd=T; Y=T+16
    ld,ck=a.check([f"buffer_load_dwordx4 {V(Gd+4*i)}, v{vGl}, {srd(WS)}, s{sCK2} offen offset:{256*i} sc1" for i in range(4)],
         [f"v_max3_u32 v{PT}, v{Gd}, v{Gd+1}, v{Gd+2}"]+[f"v_max3_u32 v{PT}, v{PT}, v{Gd+3+2*i}, v{Gd+4+2*i}" for i in range(6)]+[f"v_max_u32 v{PT}, v{PT}, v{Gd+15}",f"v_cmp_eq_u32 vcc, -1, v{PT}"],"gr")
    ld=M(f"s_add_u32 s{sCK2}, s{sGRl}, {(layer*2+mu)*262144}")+ld+unpackY(mu,Y)
    L=list(ck)
    for k in range(4): L+=M(f"v_add_f32 v{Gd+k}, v{Gd+k}, v{Gd+4+k}\nv_add_f32 v{Gd+8+k}, v{Gd+8+k}, v{Gd+12+k}")
    for k in (0,2,1,3): L+=M(f"v_add_f32 v{Gd+k}, v{Gd+k}, v{Gd+8+k}")
    L+=treduce(Gd,Gd+1,Gd+2,Gd+3)
    A,B,C,D=Gd,Gd+1,Gd+2,Gd+3
    L+=M(f"v_mov_b32 v{B}, v{A}\nv_permlane16_swap_b32 v{A}, v{B}\nv_mov_b32 v{C}, v{A}\nv_mov_b32 v{D}, v{B}\nv_permlane32_swap_b32 v{A}, v{C}\nv_permlane32_swap_b32 v{B}, v{D}")
    inv="0x3b000000"
    L+=M(f"""v_mul_f32 v{A}, {inv}, v{A}
        v_mul_f32 v{B}, {inv}, v{B}
        v_fma_f32 v{B}, -v{A}, v{A}, v{B}
        v_max_f32 v{B}, 0, v{B}
        v_add_f32 v{B}, 0x3727c5ac, v{B}
        v_rsq_f32 v{B}, v{B}
        v_fma_f32 v{C}, -v{A}, v{D}, v{C}
        v_mul_f32 v{C}, {inv}, v{C}
        v_fma_f32 v{C}, v{B}, v{C}, v{A}
        v_mul_f32 v{A}, v{A}, v{B}""")
    for e in range(8): L+=M(f"v_fma_f32 v{Gd+4+e}, v{X+e}, v{B}, -v{A}")
    for e in range(8): L+=M(f"v_fmac_f32 v{X+e}, v{Gd+4+e}, v{Y+e}")
    for e in range(8): L+=M(f"v_sub_f32 v{Y+e}, v{X+e}, v{C}")
    L+=M(f"s_add_u32 s{sT0}, s{sXS}, {mu*65536}")
    for i in range(4): L+=M(f"v_cvt_pk_bf16_f32 v{Gd+4+i}, v{Y+2*i}, v{Y+2*i+1}")
    L+=M(f"buffer_store_dwordx4 {V(Gd+4)}, v{vL}, {srd(WS)}, s{sT0} offen{a.sc or (' nt' if CFG['ntx']>layer else '')}",f"xs{mu}")
    L+=M(f"v_mul_f32 v{A}, v{Y}, v{Y}")
    for e in range(1,8): L+=M(f"v_fmac_f32 v{A}, v{Y+e}, v{Y+e}")
    L+=M(f"""v_mov_b32 v{B}, v{A}
        s_nop 0
        s_add_u32 s{sT1}, s{sS5}, {(layer*2+mu)*65536}
        v_permlane32_swap_b32 v{A}, v{B}
        v_add_f32 v{A}, v{A}, v{B}
        v_mov_b32 v{B}, v{A}
        v_permlane16_swap_b32 v{A}, v{B}
        v_add_f32 v{A}, v{A}, v{B}""")
    L+=M(f"buffer_store_dword v{A}, v{vS5s}, {srd(WS)}, s{sT1} offen{a.sc}")
    tail=M(f"s_add_u32 s22, s{sFLH}, {XF(layer,mu)}")+[('WVM',f"xs{mu}")]+M(f"buffer_store_dword v{vTAG}, v{vOne}, {srd(WS)}, s22 offen{a.sc}")
    return ld,L,tail

def flag_check(a, off, vaddr, name):
    ld,ck=a.check([f"buffer_load_dword v{PT+1}, v{vaddr}, {srd(WS)}, s{sCK1} offen sc1"],[f"v_cmp_ne_u32 vcc, s{sTAG}, v{PT+1}"],name)
    return M(f"s_lshl_b32 s{sCK1}, s{sFL}, 1\ns_add_u32 s{sCK1}, s{sCK1}, {off}")+ld, ck
XF=lambda layer,mu: OFF_XFLAG+layer*16384+mu*256
HF=lambda layer,k: OFF_HFLAG+layer*16384+k*256

def x_dma(mu, pair, stage, q):
    L=M(f"s_add_u32 m0, s{sXW}, {q+stage*8192}\ns_mov_b32 s{sSOFF}, {mu*65536+pair*32768+stage*8192}")
    for i in range(4): L+=M(f"buffer_load_dwordx4 v{vXD}, {srd(WS)}, s{sSOFF} offen offset:{1024*i} sc1 lds",f"x{mu}{pair}{stage}")
    return LW(L,(q+stage*8192,q+stage*8192+8192),(q+16384+stage*8192,q+16384+stage*8192+8192))
def h_dma(mu, t, grp, q):
    n=4 if grp<2 else 3
    L=M(f"s_add_u32 m0, s{sM4 if grp<2 else sM3}, {q+t*8192}\ns_add_u32 s{sSOFF}, s{sC4 if grp<2 else sC3}, {(mu*4+2*t)*HKS*1024+grp*8192}")
    for i in range(n): L+=M(f"buffer_load_dwordx4 v{vHD}, {srd(WS)}, s{sSOFF} offen offset:{1024*i} sc1 lds",f"h{mu}{t}{grp}")
    return LW(L,*[(q+(2*k+t)*8192,q+(2*k+t)*8192+2*n*1024) for k in range(2)])
def h_touch(mu):
    L=[]
    for k,(va,off) in enumerate(((vHS1,(mu*4)*HKS*1024),(vHS1,(mu*4+2)*HKS*1024),(vHS2,mu*4*HKS*1024))):
        L+=M(f"s_mov_b32 s{sT1}, {off}\nbuffer_load_dword v{(140,141,142,143,PT+3,vA1)[3*mu+k]}, v{va}, {srd(WS)}, s{sT1} offen sc1")
    return L

_uid=[0]
def g1_steps(buf, q, bar=None):
    A=(ACC0,ACC1)[buf]; bar=bar or {}; qo=q&65535; out=[]
    for s in range(16):
        pre=(M(f"v_add_u32 v{vA0}, {q&~65535}, v{vL}") if s==0 else [])+bar.get(s,[])
        rd=lambda F,tok,s=s: [LR(mk(f"ds_read_b128 {V(F+4*t)}, v{vA0} offset:{qo+t*16384+s*1024}",tok),(q+t*16384+s*1024,q+t*16384+s*1024+1024)) for t in range(2)]
        mf=lambda F,s=s: [mk(f"v_mfma_f32_16x16x32_bf16 {V(A+12*t+4*w)}, {W1(s,w)}, {V(F+4*t)}, {'0' if s==0 else V(A+12*t+4*w)}") for t in range(2) for w in range(3)]
        out.append((pre,rd,mf))
    return out
def g2_steps(qs, bar=None):
    bar=bar or {}; out=[]
    def setq(q): return M(f"s_add_u32 s{sQ}, s{sHK}, {q&~65535}\nv_add_u32 v{vA0}, s{sQ}, v{vL}\ns_add_u32 s{sQ}, s{sHS}, {q&~65535}\nv_add_u32 v{vA1}, s{sQ}, v{vL}")
    for i in range(22):
        q=qs[i>>3]; pre=bar.get(i,[])
        if i%8==0 and (i==0 or (q&~65535)!=(qs[(i>>3)-1]&~65535)): pre=setq(q)+pre
        rd=lambda F,tok,i=i,q=q: [LR(mk(f"ds_read_b128 {V(F+4*t)}, v{(vA0,vA1)[t]} offset:{(q&65535)+(i&7)*1024}",tok),*[(q+w*8192+(i&7)*1024,q+w*8192+(i&7)*1024+1024) for w in range(4)]) for t in (1,0)]
        mf=lambda F,i=i: [mk(f"v_mfma_f32_16x16x32_bf16 {V(ACC0+8*t+4*c)}, {W2(i,c)}, {V(F+4*t)}, {'0' if i==0 else V(ACC0+8*t+4*c)}") for t in (1,0) for c in range(2)]
        out.append((pre,rd,mf))
    return out
def backbone(steps, marks=None):
    marks=marks or {}
    N=len(steps); tok=[]
    for _ in steps: _uid[0]+=1; tok.append(f"f{_uid[0]}")
    nm=[len(st[2](FR)) for st in steps]
    last={FR:-3,FR+8:-2,FR+16:-1,ACC0+16:-9}; F=[]; at=[]
    for n in range(N):
        ring=[FR,FR+8,FR+16]+([ACC0+16] if nm[n]==4 and CFG['ring4'] else [])
        f=min(ring,key=lambda r:last[r]); la=len(ring)-1
        F.append(f); at.append(max(n-la,last[f]+1,at[-1] if at else -9)); last[f]=n
    L=[]
    for n in range(N):
        if at[n]<0 or (at[n]==0 and n<=1): L+=steps[n][0]+steps[n][1](F[n],tok[n]); at[n]=-1
    L.append(('WLG',tok[0]))
    for n,(pre,rd,mf) in enumerate(steps):
        ms=mf(F[n]); q=[]
        for m in range(n+1,N):
            if at[m]==n: r=steps[m][1](F[m],tok[m]); q+=[steps[m][0]+r[:1], r[1:]]
        k=len(ms)
        for j,m in enumerate(ms):
            L.append(m)
            if q and (len(q)>2 or j in ((0,2) if k==6 else (0,1)) or j>=k-2): L+=q.pop(0)
            if j==k-1:
                for x in q: L+=x
                if n+1<N: L.append(('WLG',tok[n+1]))
        L+=marks.get(n,[])
    return L

def g1_epi(a, buf, mu, pair, sc):
    A=(ACC0,ACC1)[buf]; E=EP; L=[]
    n=E; mreg=E+4
    M0=A+8; M1=A+20
    for t in range(2):
        Gt=A+12*t; Ut=Gt+4
        for r in range(4): L+=M(f"v_max_f32 v{Gt+r}, 0, v{Gt+r}")
        for r in range(4): L+=M(f"v_mul_f32 v{Gt+r}, v{Gt+r}, v{Ut+r}")
        L+=M(f"v_cvt_pk_bf16_f32 v{n+2*t}, v{Gt}, v{Gt+1}\nv_cvt_pk_bf16_f32 v{n+2*t+1}, v{Gt+2}, v{Gt+3}")
    for r in range(4): L+=M(f"v_permlane16_swap_b32 v{M0+r}, v{M1+r}")
    L+=M(f"v_permlane16_swap_b32 v{n}, v{n+2}\nv_permlane16_swap_b32 v{n+1}, v{n+3}\ns_mov_b32 s{sT1}, {(mu*4+2*pair)*HKS*1024}")
    L+=M(f"buffer_store_dwordx4 {V(n)}, v{vHS1}, {srd(WS)}, s{sT1} offen{sc}",f"hs{mu}{pair}")
    for r in range(4): L+=M(f"v_max_f32 v{M0+r}, 0, v{M0+r}")
    for r in range(4): L+=M(f"v_mul_f32 v{M0+r}, v{M0+r}, v{M1+r}")
    L+=M(f"v_cvt_pk_bf16_f32 v{mreg}, v{M0}, v{M0+1}\nv_cvt_pk_bf16_f32 v{mreg+1}, v{M0+2}, v{M0+3}")
    L+=M(f"v_mov_b32 v{E+6}, v{E+4}\nv_mov_b32 v{E+7}, v{E+5}\ns_nop 0\nv_permlane32_swap_b32 v{E+4}, v{E+6}\nv_permlane32_swap_b32 v{E+5}, v{E+7}")
    L+=M(f"buffer_store_dwordx4 {V(E+4)}, v{vHS2}, {srd(WS)}, s{sT1} offen{sc}",f"hs{mu}{pair}")
    return L
def h_flag(a, layer, k):
    return M(f"s_add_u32 s22, s{sFLH}, {HF(layer,k)}")+[('WVM',f"hs{k>>1}{k&1}")]+M(f"buffer_store_dword v{vTAG}, v{vOne}, {srd(WS)}, s22 offen{a.sc}")

def s5_get(a, layer, mu):
    T=140
    ld,ck=a.check([f"buffer_load_dwordx4 {V(T)}, v{vS5l}, {srd(WS)}, s{sCK3} offen sc1"],
         [f"v_max3_u32 v{PT+2}, v{T}, v{T+1}, v{T+2}",f"v_max_u32 v{PT+2}, v{PT+2}, v{T+3}",f"v_cmp_eq_u32 vcc, -1, v{PT+2}"],"s5")
    ld=M(f"s_add_u32 s{sCK3}, s{sS5l}, {(layer*2+mu)*65536}")+ld
    L=list(ck)+M(f"""v_add_f32 v{T}, v{T}, v{T+1}
        v_add_f32 v{T+2}, v{T+2}, v{T+3}
        v_add_f32 v{T}, v{T}, v{T+2}
        v_mov_b32 v{T+1}, v{T}
        s_nop 0
        v_permlane32_swap_b32 v{T}, v{T+1}
        v_add_f32 v{T}, v{T}, v{T+1}
        v_mov_b32 v{T+1}, v{T}
        s_nop 0
        v_permlane16_swap_b32 v{T}, v{T+1}
        v_add_f32 v{T}, v{T}, v{T+1}
        v_mul_f32 v{T}, 0x3b000000, v{T}
        v_add_f32 v{T}, 0x3727c5ac, v{T}
        v_rcp_f32 v{vR2}, v{T}""")
    return ld,L
def ex_addr(qspare):
    return M(f"s_add_u32 s{sT0}, s{sHW}, {qspare+6144}\nv_add_u32 v{EP}, s{sT0}, v{vL}\ns_xor_b32 s{sT0}, s{sHW}, 16384\ns_add_u32 s{sT0}, s{sT0}, {qspare+6144}\nv_add_u32 v{EP+1}, s{sT0}, v{vL}")
def ex_addr2(q):
    return [mk(x.text.replace(f"s{sT0},",f"s{sT2},")) for x in ex_addr(q)]
def g2_tail(a, mu, qsp, post, extra, every):
    X=vXst[mu]
    a(f"ds_write_b128 v{EP}, {V(ACC0+8)}\nds_write_b128 v{EP}, {V(ACC0+12)} offset:1024")
    R=[(qsp+w*8192+6144,qsp+w*8192+8192) for w in range(4)]; a.lw(2,*R)
    for e in range(8): a(f"v_fmac_f32 v{X+e}, v{vR2}, v{ACC0+e}")
    a("s_waitcnt lgkmcnt(0)\ns_barrier")
    a(f"ds_read_b128 {V(ACC0+8)}, v{EP+1}\nds_read_b128 {V(ACC0+12)}, v{EP+1} offset:1024","ex"); a.lr(2,*R)
    first,extra=sprinkle([mk("s_nop 0")],extra,1)
    a.flat(first[1:])
    L=[mk(f"v_fmac_f32 v{X+e}, v{vR2}, v{ACC0+8+e}") for e in range(8)]+post
    L,extra=sprinkle(L,extra,every)
    a.flat(L)
    return extra
def out_store(a, mu, T):
    X=vXst[mu]
    L=[mk(f"v_cvt_pk_bf16_f32 v{T+i}, v{X+2*i}, v{X+2*i+1}") for i in range(4)]
    return L+M(f"buffer_store_dwordx4 {V(T)}, v{vTok}, {srd(SO_)}, {'0' if mu==0 else 's%d'%sMB} offen{('',' sc1',' nt')[CFG['outsc']]}")

def wbl2(a):
    Lw=a.label("wb"); w=mk("buffer_wbl2 sc1"); w.ghost=1
    return [M(f"s_or_b32 s{sT2}, s{sR}, s{sWV}\ns_cmp_lg_u32 s{sT2}, {CFG['wbid']}\ns_cbranch_scc1 {Lw}")+[w,mk(Lw+":")]]
def finish_kernel(a):
    a(f"s_or_b32 s{sT0}, s2, s{sWV}\ns_cmp_eq_u32 s{sT0}, 0\ns_cselect_b32 s{sT0}, {OFF_NONCE}, {OOB}")
    a(f"buffer_store_dword v{vTAG}, v{vOne}, {srd(WS)}, s{sT0} offen")
    if CFG['stamps'] and a.tag!='S':
        a.stamp("end","*")
        a("s_memtime s[100:101]\ns_waitcnt lgkmcnt(0)\ns_sub_u32 s99, s100, s99")
        a(f"s_lshl_b32 s{sT0}, s2, 2\ns_add_u32 s{sT0}, s{sT0}, s{sWV}\ns_lshl_b32 s{sT0}, s{sT0}, 8\ns_add_u32 s{sT0}, s{sT0}, {OFF_STAMP}")
        for i in range(len(stamp_names)):
            a(f"v_mov_b32 v40, s{STAMP0+i}")
            a(f"buffer_store_dword v40, v{vOne}, {srd(WS)}, s{sT0} offen offset:{4*i}")
        if CFG.get('trace'): a(f"s_add_u32 s{sT1}, s{sT0}, 0x100000\nbuffer_store_dword v139, v{vFX}, {srd(WS)}, s{sT1} offen")
        a(f"v_mov_b32 v40, s98\nbuffer_store_dword v40, v{vOne}, {srd(WS)}, s{sT0} offen offset:248")
        a(f"v_mov_b32 v40, s99\nbuffer_store_dword v40, v{vOne}, {srd(WS)}, s{sT0} offen offset:252")
    a("s_endpgm")

WV=lambda t:('WVM',t)
WL=lambda t:('WLG',t)
AT=lambda n:('AT',n)

def body(a):
    P=paced; BY=lambda n:('BY',n); SY=lambda n:('SYNC',n); AF=lambda n,g=0:('AFTER',n,g); GP=lambda n:('GAP',n)
    B=lambda *w:[list(w)+[mk("s_barrier")]]
    C=CFG
    nxs=lambda r,mu: [i for i,x in enumerate(r) if isinstance(x,I) and x.tok==f"xs{mu}"][0]+1
    qs=list(Q)
    a.flat(fin1(a,0,0,ACC0))
    a.stamp("fin1 A","f")
    lA,rA,tA=fin2(a,0,0,ACC0); lB,rB,tB=fin2(a,0,1,232)
    glB,gcB=y_check(a,1)
    pk,ps=pp_pack()
    a.waitvm("yt1")
    Wp(a,'F1')
    a.flat(lA); a.flat(glB); Wp(a,'F2'); a.flat(pk); a.flat(ps)
    a.stamp("yB acked","f")
    a.flat(rA[:10]); Wp(a,'FA'); a.flat(rA[10:]); Wp(a,'FX')
    a.stamp("fin2 A","f")
    a.flat(gcB)
    y_stage(a,1,wops(PL().get('SB',"")))
    a.flat(tA)
    a(f"buffer_store_dword v{vTAG}, v{vOne}, {srd(WS)}, s{sPF} offen sc1")
    Wp(a,'FB')
    a.flat(fin1(a,0,1,ACC1))
    a.stamp("fin1 B","f")
    W2Q[:]=w2_loads()
    a(f"s_mul_i32 s{sT0}, s{sCT2}, 43\ns_mul_i32 s{sT1}, s{sKH}, 21\ns_add_u32 s{sT0}, s{sT0}, s{sT1}\ns_lshl_b32 s{sT0}, s{sT0}, 7\ns_add_u32 s{sCK3}, s{sT0}, {OFF_P2F}")
    a(f"v_min_u32 v{PT+3}, 21, v{vLane}\nv_lshlrev_b32 v{PT+3}, 7, v{PT+3}")
    pl_,pc_=a.check([f"buffer_load_dword v{PT+2}, v{PT+3}, {srd(WS)}, s{sCK3} offen sc1"],[f"v_cmp_ne_u32 vcc, s{sTAG}, v{PT+2}"],"pp")
    xl,xc=flag_check(a,XF(0,0),vFX,"xf")
    Wp(a,'XW'); a.flat(xl); a.flat(xc)
    a("s_waitcnt lgkmcnt(0)\ns_barrier")
    if C['fbpre']: a.flat(lB)
    a.ext(x_dma(0,0,0,qs[0])+x_dma(0,0,1,qs[0]))
    if C['fbpre']: a.flat(rB[:nxs(rB,1)])
    Wp(a,'XD')
    A1,B0,B1,GA=96,192,288,384
    for layer in range(2):
        g="ab"[layer]
        xa0,xa1,xb0,xb1,e=qs
        hsc = (a.sc or (' nt' if C['nth'] else '')) if not (layer==0 and C['touch']==2) else ' sc1'
        L0 = layer==0
        a.stamp(f"L{layer} start",g+'m')
        hq=[(xa0,xa1,e),(xb0,xb1,xa0)]
        X=lambda mu,p,q: x_dma(mu,p,0,q)+x_dma(mu,p,1,q)
        H=lambda mu,t,grp: h_dma(mu,t,grp,hq[mu][grp])
        xl,xc=flag_check(a,XF(layer,1),vFX,"xf")
        def HC(k,after=None,gap=None):
            l,c=flag_check(a,HF(layer,k),vFH,"hf")
            return [AF(f"f{k}",after or C['hca'])]+l+[GP(gap or (C['cg0'] if L0 else C['hcg']))]+c
        sl,sr=s5_get(a,layer,0)
        def SB(n,*w):
            if layer==0: return BAR(*w)
            return a.st(n+" pre","c")+list(w)+a.st(n+" waited","c")+[mk("s_barrier")]+a.st(n+" post","c")
        steps = g1_steps(0,xa0,{0:BAR(WV("x000")),8:BAR(WV("x001"))}) + g1_steps(1,xa1,{0:BAR(WV("x011"))}) \
              + g1_steps(0,xb0,{0:BAR(WV("x101"))}) + g1_steps(1,xb1,{0:BAR(WV("x111"))}) \
              + g2_steps(hq[0],{0:SB("GA0",WV("h010"),WV("h000")),8:SB("GA8",WV("h011"),WV("h001")),16:SB("GA16",WV("h012"),WV("h002"))})
        marks={15:a.st(f"L{layer} A0",g),31:a.st(f"L{layer} A1",g),47:a.st(f"L{layer} B0",g),63:a.st(f"L{layer} B1",g)}
        bb=backbone(steps,marks)
        fl = C['fl0'] if (L0 and C['touch']==2) else C['fl']
        def epi(k):
            if k<3: return [AT(96*(k+1)+2),('DENS',C['dens1'])]+g1_epi(a,k&1,k>>1,k&1,hsc)+[('DENS',0),SY(f"e{k}"),BY(96*(k+2) if k<2 else GA-30)]
            return [AT(GA+1),('DENS',C['dens'])]+g1_epi(a,1,1,1,hsc)+[('DENS',0),SY("e3")]+sr
        s3=[]
        for k in range(4): s3+=[AF(f"e{k}",fl)]+h_flag(a,layer,k)+[SY(f"f{k}")]
        tailpre=ex_addr(e)+unpackY(0,ACC1)
        hB1=H(1,1,0)+H(1,1,1); hB2=H(1,0,2)+H(1,1,2)
        g1=C['g1']
        sA = HC(0)+P(H(0,0,0)+H(0,0,2),g1)+[AT(B0-10)]+P(H(0,0,1),g1)
        sB = HC(1)+P(H(0,1,0),g1)+[BY(GA-40)]+P(H(0,1,1)+H(0,1,2),g1)+[BY(GA-2)]
        sC = HC(2)+P(H(1,0,0),C['g2'])+[AT(GA-10)]+P(H(1,0,1),C['g2'])
        sD = HC(3,C['gahl'],C['gahc'])
        if L0:
            pl=PL(); pend=pl.get('PEND',[]); rest=pl.get('REST',[])
            s1=[];s2=[]
            for k in rest: s1+=P(wops(f"i{k}"),2)
            rest=[int(str(k).split('@')[0]) for k in rest]
            s1+=[SY('irest')]+P(X(0,1,xa1),3)+[BY(A1-30)]
            for k in pend: s2+=wops(f"r{k}")+[BY(max(12*k-4,30))]
            last=pend[-1] if pend else None
            if rest:
                s2+=[AF('irest'),AT(C['rrest'])]+B(WV(f"c{rest[-1]}"))
                for k in rest: s2+=wops(f"r{k}")+[BY(12*k-4)]
                last=rest[-1]
            if last is not None: s2+=[GP(4)]+B(WL(f"cr{last}"))
            s2+=[SY('fr')]
            s4=[AT(C['w2at'])]+pl_+[GP(C['cg0'])]+pc_+[AF(C['w2af'])]
            i=(44-sum(1 for x in W2Q if x.kind=='vmem'))//2
            while W2Q:
                if i==10: s4+=[AF('fB')]
                s4+=P(w2_take(2),C['w2gap'])+[BY(GA+4*i-C['w2lead'])]; i+=1
        else:
            s1=[AT(2)]+P(X(0,1,xa1),5)+[BY(A1-30)]; s2=[SY('fr')]; s4=[]
        s5=[AT(C['a0l'])]+lB+[GP(C['a0c']),('DENS',C['densb'])]+rB[:nxs(rB,1)]+[('DENS',0),SY('rB')]+rB[nxs(rB,1):]+[SY('fB'),BY(A1+24 if L0 else A1)]
        if L0 and C['fbpre']: s5=[SY('rB')]+rB[nxs(rB,1):]+[SY('fB')]
        s3=[AF('rB',C['gbt0'] if L0 else C['gbt'])]+tB+[SY('tB')]+s3
        s1+=[AF('tB',C['a1xl'])]+xl+[GP(C['xg0'] if L0 else 16)]+xc+[SY('xc'),AF('fr')]+P(X(1,0,xb0),4)+[BY(B0-24)]+P(X(1,1,xb1),g1)+[BY(B1-24)]
        s1 += sA+sB+sC+sD
        s6 = epi(0)+epi(1)+epi(2)+sl+epi(3)+tailpre+((wbl2(a)) if (layer==1 and C['wbl2']==2) else [])
        out,rest=weave(bb,[s3,s1+[SY('hb')],s4,s2,s5,s6,[AF('hb')]+P(hB1,C['hbgap'])])
        k=max([i for i,x in enumerate(rest) if not(isinstance(x,I) and x in hB1)],default=-1)
        a.ext(a.trace(out,CFG.get('tev_',8),f'G{layer}')); a.ext(rest[:k+1]); left=rest[k+1:]
        if C.get('v'): print("  G2(A): leftover",k+1,"h(B) items left",len(left))
        a.stamp(f"L{layer} GA",g)
        sl,sr=s5_get(a,layer,1)
        a.flat(sl); sl=[]
        left=g2_tail(a,0,e,fin1(a,1,0,ACC1,True) if L0 else out_store(a,0,ACC1),left,C['tev'])
        a.flat(left)
        a.stamp(f"L{layer} tailA",g)
        bb=backbone(g2_steps(hq[1],{0:SB("GB0",WV("h110"),WV("h100")),8:SB("GB8",WV("h111"),WV("h101")),16:SB("GB16",WV("h112"),WV("h102"))}))
        nq=[xa1,e,xb0,xb1,xa0]
        if L0:
            lA,rA,tA=fin2(a,1,0,ACC1)
            xl,xc=flag_check(a,XF(1,0),vFX,"xf")
            ncrit=nxs(rA,0)
            a.weave(bb,[AF('r',C['gbt'])]+tA+[SY('t')],P(hB2,C['g3'])+[BY(40),AF('t',C['gbxl'])]+xl,
                    sl+[AT(C['gbl'])]+lA+[GP(C['gbc']),('DENS',C['dens2'])]+rA[:ncrit]+[('DENS',0),SY('r')]+rA[ncrit:]+sr+ex_addr(xa0)+unpackY(1,ACC1),name='B0')
        else:
            s2=sl+ex_addr(xa0)+[AT(C['gbs5'])]+sr
            if C['wbl2']==1: s2=[AT(C['wbat'])]+wbl2(a)+s2
            a.weave(bb,P(hB2,C['g3'])+[BY(40)],s2)
        a.stamp(f"L{layer} GB",g)
        if L0:
            lB,rB,tB=fin2(a,1,1,ACC1)
            left=g2_tail(a,1,xa0,fin1(a,1,1,ACC1,True),xc+X(0,0,nq[0]),C['tev2'])
            a.flat(left)
        else:
            g2_tail(a,1,xa0,out_store(a,1,ACC1),[],99)
        a.stamp(f"L{layer} tailB",g)
        qs=nq
    finish_kernel(a)

def main():
    a=G('F','')
    entry(a); p0(a); conv(a)
    nfront=len(a.L)
    b=G('S',' sc1'); b.nlab=0
    front=list(a.L)
    body(a)
    rep=[]
    items=finish(a.L,rep)
    print("LDS ordering problems:",lds_check(items))
    for o in a.ool: items+=finish(o)
    items.append(mk("L_fast_end:"))
    if CFG['slow']:
        b.L=front+[mk("L_slow:")]; body(b)
        full=finish(b.L)
        k=[i for i,x in enumerate(full) if x.text=="L_slow:"][0]
        items+=full[k:k+1]+[mk("s_nop 4")]+full[k+1:]
        for o in b.ool: items+=finish(o)
    items.append(mk("L_end:")); items.append(mk("s_endpgm"))
    hdr=open(os.path.join(os.path.dirname(os.path.abspath(__file__)),"header.txt")).read()
    src=kernel_file(NAME,text(items),"; @launch grid=(256,1,1) block=(256,1,1) lds=163840",header=hdr)
    open(sys.argv[1],"w").write(src)
    open("stamp_names.txt","w").write("\n".join(stamp_names)); open("trace_names.txt","w").write("\n".join(trace_names)); open("site_names.txt","w").write(" ".join(site_names))
    n=sum(1 for i in items if i.kind!='none')
    print(f"{n} instructions, {len(src)} bytes of text, {sum(x for x,_ in rep)} nop states padded in fast path")
    if CFG.get('v'):
        for x in rep: print("   pad",x)
main()
```

```python
import sys, os
from asmlib import *
from layout import *

NAME="interleave_layers__ssm_conv_h3__glu_gated_reglu__prompt_kernel"
CFG=dict(nth=1, ntx=2, wbat=56, wbid=0, ppat=2, fbpre=1, cg0=30, gbt0=28, xg0=16, w2af='xc', densb=3, qat=1, gbs5=8, ring4=1, clr=3, utouch=1, f1max=2048, cann=56, plan=7, chl=56, cla=9, cdens=3, cslots=2, chc=28, cack=56, rot=1, cm2=70, cm3=120, a0l=14, a0c=14, a1xl=22, dens=5, fl=30, fl0=60, hca=24, hcg=22, g1=4, g2=5, g3=4, dens1=2, gahl=16, gahc=14, hbgap=4, tev=6, tev2=5, dens2=6, gbl=8, gbc=18, gbt=28, gbxl=20, b0hl=80, w2at=30, w2gap=5, w2lead=40, rrest=56, cgap=5, warm=1, stamps=0, stop=None, slow=1, prefetch=1, touch=2, dgather=1, dstage=1, wbl2=1, outsc=2)
for a_ in sys.argv[2:]:
    k,v=a_.split('='); CFG[k]=int(v) if v.lstrip('-').isdigit() else v

sX,sR,sWV,sG,sM,sRH,sCT2,sKH,sCHH,sTAG,sHELLO=4,5,6,7,8,9,10,11,12,13,14
sT0,sT1,sT2,sT3=3,15,60,61
sCNT=62; sSOFF=63
WS,SK_,SV_,SQ_,SH_,SWG,SWU,SWD,SO_,SSK,SD_=16,20,24,28,32,36,40,44,48,52,56
srd=lambda b:f"s[{b}:{b+3}]"
sXW,sHW,sHK,sHS,sXS,sFL,sGR,sS5,sGRl,sS5l=64,65,66,67,68,69,70,71,72,73
sW1W,sWo,sHF,sW2B=74,75,76,77
sPS,sPD,sPF,sW20=56,57,58,59
sCK1,sCK2,sCK3,sQ=20,21,24,25
sCH,sUO,sMB=26,27,0
sMODE=34; sFLH=23; sC4,sC3,sM4,sM3=52,53,54,55
sFLG=1
STAMP0=78
Q=[0,32768,65536,98304,131072]
TCP=4160; TCH=4*TCP; L_TOEP=0
L_U=2*TCH; UCH=4608
L_K=L_U+2*UCH; CHP=1056; L_V=L_K+9*CHP
L_CX=L_K
L_YS=0
L_WS=65536; WSL=24576
SLOT=[L_WS+k*WSL for k in range(4)]
L_PP=SLOT[3]
SLOT=SLOT[:3]+[8192,36864,L_PP]
vL=1; vOne=2; vTok=3; vGs=4; vGl=5; vS5s=6; vS5l=7; vXD=8; vHD=9; vHS1=10; vHS2=11; vFX=12; vFH=13
vTAG=14; vR2=15
vXst=[16,24]; vYY=[32,36]
ACC0,ACC1,FR,vA0,vA1,EP,PT=40,64,88,112,113,114,122
vW2,vT2,vWc0=126,127,128
vW1=[129,130,131]; vTa,vTm,vWc1=132,133,134
vLane,vJ,vQ,vYo,vD=135,136,137,138,139
vCg,vCs=124,125
vHa=15
vCXw,vCXo,vCXp,vKV,vGA,vGW,vGT,vFT=160,161,162,163,164,165,166,167
vKD,vUP,vPK,vGD,vGC,vQT,vTch=168,172,176,184,192,196,193
W2V=144; W2A=192
def W1(s,t): b=(s*3+t)*4; return f"a[{b}:{b+3}]"
def W1h(s,t,hh): b=(s*3+t)*4+2*hh; return f"a[{b}:{b+1}]"
def W2(i,t):
    k=(i*2+t)*4
    return f"v[{W2V+k}:{W2V+k+3}]" if k<112 else f"a[{W2A+k-112}:{W2A+k-112+3}]"
def W2h(i,t,hh):
    k=(i*2+t)*4+2*hh
    return f"v[{W2V+k}:{W2V+k+1}]" if k<112 else f"a[{W2A+k-112}:{W2A+k-112+1}]"
V=lambda b,n=4: f"v[{b}:{b+n-1}]"
OOB=0x7FFFFF00
vST=lambda: 140 if CFG.get('trace')=='CV' else 139
POLLMAX=1<<16
def M(text,tok=None): return [mk(l.strip(),tok) for l in text.split('\n') if l.strip()]
BAR=lambda *pre: list(pre)+[mk("s_barrier")]

trace_names=[]; stamp_names=[]; site_names=[]
class G(Asm):
    def __init__(s,tag='',sc=''):
        super().__init__(); s.tag=tag; s.sc=sc; s.ool=[]
    def st(s,name,grp='m'):
        if not CFG['stamps'] or s.tag=='S': return []
        if grp!='*' and not any(c in str(CFG['stamps']) for c in grp): return []
        stamp_names.append(name); i=len(stamp_names)-1
        assert i<20, "too many stamps"
        return M(f"{'s_memtime' if CFG.get('clk') else 's_memrealtime'} s[100:101]\ns_waitcnt lgkmcnt(0)\ns_mov_b32 s{STAMP0+i}, s100")
    def trace(s, items, every, name):
        if s.tag=='S' or CFG.get('trace')!=name: return items
        out=[]; n=0
        for it in items:
            out.append(it)
            if isinstance(it,I) and it.kind=='mfma':
                if n%every==0: out+=s.light(f"{name}+{n}")
                n+=1
        return out+s.light(name+" end")+M("s_nop 15\ns_nop 15\ns_nop 15\ns_nop 15")+s.light(None)+s.light(None)
    def light(s,name):
        k=len(trace_names); trace_names.append(name or "")
        L=[]
        if name: x=mk(f"s_memtime s[{90+2*(k%3)}:{91+2*(k%3)}]"); x.light=1; x.defs=set(); L.append(x)
        if k>=2: L+=M(f"v_writelane_b32 v{vST()}, s{90+2*((k-2)%3)}, {k-2}")
        return L
    def stamp(s,name,grp='m'): s.ext(s.st(name,grp))
    def lr(s,n,*r): LR([i for i in s.L[-n:] if isinstance(i,I)],*r)
    def lw(s,n,*r): LW([i for i in s.L[-n:] if isinstance(i,I)],*r)
    def label(s,p): s.nlab+=1; return f"L{s.tag}_{p}_{s.nlab}"
    def check(s, loads, checks, name):
        R=s.label(name+'r'); L=s.label(name+'l'); B=s.label(name+'b')
        o=Asm(); o.lab(R); o(f"s_mov_b32 s{sCNT}, 0")
        if CFG['stamps'] and s.tag!='S':
            n=len(site_names); site_names.append(name); o(f"s_bitset1_b32 s98, {n}")
        o.lab(L)
        for l in loads: o(l)
        o("s_waitcnt vmcnt(0)")
        for c in checks: o(c)
        o(f"s_cbranch_vccz {B}\ns_add_u32 s{sCNT}, s{sCNT}, 1\ns_cmp_lt_u32 s{sCNT}, {POLLMAX}\ns_cbranch_scc1 {L}\ns_branch {B}")
        s.ool.append(o.L)
        ck=[mk(c) for c in checks]
        return [mk(l,R) for l in loads], [('WVM',R)]+ck[:-1]+[[ck[-1],mk(f"s_cbranch_vccnz {R}"),mk(B+":")]]
    def flat(s, items):
        for it in items:
            if isinstance(it,list): s.ext(it)
            elif isinstance(it,tuple) and it[0] in('AT','GAP','GAPV','SYNC','AFTER','BY','DENS'): pass
            else: s.L.append(it)
    def weave(s, bb, *streams, slots=2, name=None):
        out,rest=weave(bb,streams,slots)
        s.ext(s.trace(out,CFG.get('tev_',4),name) if name else out); s.ext(rest)
        if rest and CFG.get('v'): print("  leftover fillers:",len(rest),[getattr(r,'text',r) for r in rest[:2]])

def entry(a):
    a.stamp("entry","*")
    if CFG["stamps"]: a("s_memtime s[100:101]\ns_waitcnt lgkmcnt(0)\ns_mov_b32 s99, s100\ns_mov_b32 s98, 0")
    a("s_cmp_ge_u32 s2, 256\ns_cbranch_scc1 L_end")
    for b,off in ((SK_,8),(SV_,16),(WS,96),(SSK,24),(SH_,32),(SD_,40),(SQ_,0),(SWG,56),(SWU,64),(SWD,72),(SO_,80)):
        a(f"s_load_dwordx2 s[{b}:{b+1}], s[0:1], {off}")
    a(f"v_lshrrev_b32 v40, 6, v0\nv_and_b32 v{vLane}, 63, v0")
    a(f"s_and_b32 s{sX}, s2, 7\ns_lshr_b32 s{sR}, s2, 3")
    a(f"v_readfirstlane_b32 s{sWV}, v40")
    a(f"v_lshlrev_b32 v{vL}, 4, v{vLane}")
    if CFG['prefetch']:
        a(f"s_getpc_b64 s[{sT2}:{sT2+1}]")
        a("L_pc:")
        a(f"s_lshl_b32 s{sT0}, s{sWV}, 5\ns_add_u32 s{sT0}, s{sT0}, s{sR}\ns_lshl_b32 s{sT0}, s{sT0}, 10")
        a(f"v_add_u32 v42, s{sT0}, v{vL}\nv_min_u32 v42, L_fast_end-L_pc-16, v42")
        a(f"v_mov_b32 v43, s{sT2+1}\nv_add_co_u32 v42, vcc, s{sT2}, v42")
        a(f"v_lshrrev_b32 v48, 3, v{vLane}\nv_and_b32 v49, 7, v{vLane}")
        a("v_addc_co_u32 v43, vcc, 0, v43, vcc")
        a("global_load_dwordx4 v[44:47], v[42:43], off")
    else:
        a(f"v_lshrrev_b32 v48, 3, v{vLane}\nv_and_b32 v49, 7, v{vLane}")
    a(f"v_lshlrev_b32 v49, 4, v49\nv_lshl_add_u32 v{vW2}, v48, 10, v49")
    a(f"s_lshl_b32 s{sT0}, s{sR}, 16\ns_lshl_b32 s{sT1}, s{sX}, 7\ns_add_u32 s{sT0}, s{sT0}, s{sT1}")
    a(f"s_sub_u32 s{sT1}, s{sT0}, 8192\nv_add_u32 v49, s{sT1}, v{vW2}")
    a(f"s_lshl_b32 s{sT1}, s{sWV}, 13\ns_add_u32 s{sT0}, s{sT0}, s{sT1}\nv_add_u32 v48, s{sT0}, v{vW2}")
    a(f"s_mul_i32 s{sT1}, s{sWV}, {CHP}\ns_mov_b32 s{sSOFF}, 32768")
    for b,n in ((SK_,2<<20),(SV_,2<<20),(WS,256<<20),(SSK,4096)):
        a(f"s_mov_b32 s{b+2}, {n}\ns_mov_b32 s{b+3}, 0x20000")
    a(f"v_and_b32 v{vJ}, 15, v{vLane}\nv_lshrrev_b32 v{vQ}, 4, v{vLane}")
    a(f"s_lshl_b32 s{sT0}, s{sX}, 6\ns_lshl_b32 s{sT2}, s{sWV}, 4\ns_add_u32 s{sT0}, s{sT0}, s{sT2}\nv_add_u32 v55, s{sT0}, v{vJ}")
    a(f"v_lshlrev_b32 v78, 3, v55\nv_mov_b32 v50, 0")
    a(f"s_add_u32 m0, s{sT1}, {L_K+CHP}")
    a("s_waitcnt lgkmcnt(0)"); a.stamp("kernarg","f")
    if CFG.get('probe'):
        if CFG['probe']==1: a("s_load_dwordx2 s[96:97], s[0:1], 48\ns_waitcnt lgkmcnt(0)\ns_mov_b32 s98, 0x200000\ns_mov_b32 s99, 0x20000"); S="s[96:99]"; base=0
        else: S=srd(WS); base=CFG['probe']<<24
        a(f"s_lshl_b32 s95, s2, 2\ns_add_u32 s95, s95, s{sWV}\ns_lshl_b32 s95, s95, 11\ns_add_u32 s95, s95, {base}\nv_mov_b32 v60, s95")
        for i in range(16):
            a(f"buffer_load_dword v61, v60, {S}, 0 offen offset:{128*i}\nv_and_b32 v61, 0, v61\nv_add_u32 v60, v60, v61")
    a(f"buffer_load_dwordx4 v48, {srd(SK_)}, 0 offen lds","kv")
    a(f"s_add_u32 m0, s{sT1}, {L_V}");       a(f"buffer_load_dwordx4 v48, {srd(SV_)}, 0 offen lds","kv")
    a(f"s_add_u32 m0, s{sT1}, {L_K+5*CHP}"); a(f"buffer_load_dwordx4 v48, {srd(SK_)}, s{sSOFF} offen lds","kv")
    a(f"s_add_u32 m0, s{sT1}, {L_V+4*CHP}"); a(f"buffer_load_dwordx4 v48, {srd(SV_)}, s{sSOFF} offen lds","kv")
    a(f"s_mov_b32 m0, {L_K}");               a(f"buffer_load_dwordx4 v49, {srd(SK_)}, 0 offen lds","kv")
    a.lw(10,(L_K,L_V+8*CHP))
    a(f"buffer_load_dwordx2 {V(80,2)}, v78, {srd(SSK)}, 0 offen")
    a(f"buffer_load_dword v51, v50, {srd(WS)}, 0 offen sc1")
    a.stamp("kv issued","f")
    for b,n in ((SH_,4096),(SD_,1024),(SQ_,2<<20),(SWG,512*1376*2),(SWU,512*1376*2),(SWD,512*1376*2),(SO_,2<<20)):
        a(f"s_mov_b32 s{b+2}, {n}\ns_mov_b32 s{b+3}, 0x20000")
    a(f"""s_lshr_b32 s{sT0}, s{sR}, 4
        s_lshl_b32 s{sG}, s{sX}, 1
        s_add_u32 s{sG}, s{sG}, s{sT0}
        s_and_b32 s{sM}, s{sR}, 15
        s_lshr_b32 s{sRH}, s{sM}, 3
        s_and_b32 s{sCT2}, s{sM}, 7
        s_lshr_b32 s{sKH}, s{sWV}, 1
        s_and_b32 s{sCHH}, s{sWV}, 1
        s_mov_b32 s{sMB}, 0x100000""")
    a(f"s_cmp_eq_u32 s{sM}, 15\ns_cselect_b32 s{SWG+2}, 0, s{SWG+2}\ns_cselect_b32 s{SWU+2}, 0, s{SWU+2}")
    a(f"s_lshl_b32 s{sT0}, s{sX}, 6\ns_lshl_b32 s{sT1}, s{sR}, 1\ns_add_u32 s{sT0}, s{sT0}, s{sT1}\ns_add_u32 s{sT2}, s{sT0}, s{sKH}")
    a(f"s_lshl_b32 s{sT0}, s{sT2}, 12\ns_add_u32 s{SH_}, s{SH_}, s{sT0}\ns_addc_u32 s{SH_+1}, s{SH_+1}, 0")
    a(f"s_lshl_b32 s{sT0}, s{sCHH}, 11\nv_add_u32 v52, s{sT0}, v{vL}")
    a(f"v_min_u32 v53, 1, v{vLane}\nv_lshlrev_b32 v53, 4, v53\nv_subrev_u32 v53, 32, v53\nv_add_u32 v54, 16, v53")
    a(f"s_lshl_b32 s{sT0}, s{sT2}, 1\nv_mov_b32 v{vD}, s{sT0}")
    a(f"""v_and_b32 v96, 1, v{vQ}
        v_lshlrev_b32 v96, 2, v96
        v_lshrrev_b32 v97, 2, v{vJ}
        v_add_u32 v96, v96, v97
        v_lshlrev_b32 v96, 16, v96
        v_and_b32 v97, 3, v{vJ}
        v_lshl_add_u32 v96, v97, 5, v96
        v_lshrrev_b32 v97, 1, v{vQ}
        v_lshl_add_u32 v96, v97, 4, v96
        s_lshl_b32 s{sT0}, s{sCHH}, 19
        s_lshl_b32 s{sT1}, s{sT2}, 7
        s_add_u32 s{sT0}, s{sT0}, s{sT1}
        s_add_u32 s{sT0}, s{sT0}, {OFF_YT}
        v_add_u32 v{vYo}, s{sT0}, v96
        s_mov_b32 s{sHELLO}, s{sT2}""")
    a(f"v_mov_b32 v{vOne}, {OOB}\nv_cmp_eq_u32 vcc, 0, v{vLane}\nv_cndmask_b32 v{vOne}, v{vOne}, v50, vcc")
    a(f"""s_lshl_b32 s{sT0}, s{sG}, 2
        s_lshl_b32 s{sT1}, s{sRH}, 1
        s_add_u32 s{sT1}, s{sT1}, s{sKH}
        s_add_u32 s{sT0}, s{sT0}, s{sT1}
        s_lshl_b32 s{sT1}, s{sKH}, 1
        s_add_u32 s{sT1}, s{sT1}, s{sRH}""")
    a(f"""s_lshl_b32 s{sGRl}, s{sT0}, 12
        s_add_u32 s{sGRl}, s{sGRl}, {OFF_GRAN}
        s_lshl_b32 s{sS5l}, s{sT0}, 10
        s_add_u32 s{sS5l}, s{sS5l}, {OFF_S5}
        s_lshl_b32 s{sT3}, s{sCT2}, 1
        s_add_u32 s{sT3}, s{sT3}, s{sCHH}""")
    a(f"""s_lshl_b32 s{sGR}, s{sT3}, 8
        s_add_u32 s{sGR}, s{sGR}, s{sGRl}
        s_lshl_b32 s{sS5}, s{sT3}, 2
        s_add_u32 s{sS5}, s{sS5}, s{sS5l}
        s_lshl_b32 s{sXS}, s{sG}, 17
        s_lshl_b32 s{sT1}, s{sT1}, 14
        s_add_u32 s{sXS}, s{sXS}, s{sT1}
        s_lshl_b32 s{sT1}, s{sX}, {1 if CFG['rot'] else 8}
        s_sub_u32 s{sT1}, s{sT3}, s{sT1}
        s_and_b32 s{sT1}, s{sT1}, 15
        s_lshl_b32 s{sT1}, s{sT1}, 10
        s_add_u32 s{sXS}, s{sXS}, s{sT1}
        s_add_u32 s{sXS}, s{sXS}, {OFF_XF}
        s_lshl_b32 s{sT0}, s{sT0}, 14
        s_lshl_b32 s{sT1}, s{sT3}, 6
        s_add_u32 s{sT0}, s{sT0}, s{sT1}""")
    a(f"v_lshlrev_b32 v{vTok}, 10, v{vJ}\nv_lshl_add_u32 v{vTok}, v{vQ}, 4, v{vTok}\nv_add_u32 v{vTok}, s{sT0}, v{vTok}")
    a(f"v_lshlrev_b32 v{vGs}, 4, v{vJ}\nv_lshl_add_u32 v{vGl}, v{vQ}, 10, v{vGs}\nv_lshl_add_u32 v{vGs}, v{vQ}, 2, v{vGs}")
    a(f"v_lshlrev_b32 v{vS5l}, 6, v{vJ}\nv_mov_b32 v{vS5s}, {OOB}\nv_cmp_eq_u32 vcc, 0, v{vQ}\nv_cndmask_b32 v{vS5s}, v{vS5s}, v{vS5l}, vcc")
    a(f"v_lshl_add_u32 v{vS5l}, v{vQ}, 4, v{vS5l}")
    a(f"s_lshl_b32 s{sT0}, s{sX}, 5\ns_add_u32 s{sT0}, s{sT0}, s{sR}\ns_lshl_b32 s{sHF}, s{sT0}, 7\ns_lshl_b32 s{sT0}, s{sWV}, 2\ns_add_u32 s{sHF}, s{sHF}, s{sT0}\ns_add_u32 s{sHF}, s{sHF}, {OFF_HELLO}")
    a(f"""s_lshl_b32 s{sXW}, s{sCHH}, 14
        s_lshl_b32 s{sT0}, s{sKH}, 12
        s_add_u32 s{sXW}, s{sXW}, s{sT0}
        s_lshl_b32 s{sT0}, s{sG}, 17
        s_add_u32 s{sT0}, s{sT0}, s{sXW}
        s_add_u32 s{sT0}, s{sT0}, {OFF_XF}
        v_add_u32 v{vXD}, s{sT0}, v{vL}
        s_lshl_b32 s{sHW}, s{sWV}, 13
        s_mul_i32 s{sHK}, s{sKH}, {3*8192}
        s_lshl_b32 s{sHS}, s{sKH}, 13
        s_add_u32 s{sHS}, s{sHS}, 8192
        s_lshl_b32 s{sT0}, s{sG}, 3
        s_add_u32 s{sT1}, s{sRH}, s{sT0}
        s_mul_i32 s{sT1}, s{sT1}, {HKS}
        s_mul_i32 s{sT3}, s{sKH}, 21
        s_add_u32 s{sT1}, s{sT1}, s{sT3}
        s_lshl_b32 s{sT1}, s{sT1}, 10
        s_add_u32 s{sT1}, s{sT1}, {OFF_H}
        v_add_u32 v{vHD}, s{sT1}, v{vL}""")
    a(f"""s_mul_i32 s{sT0}, s{sT0}, {HKS*1024}
        s_mul_i32 s{sT1}, s{sM}, 12
        s_mul_i32 s{sT3}, s{sWV}, 3
        s_add_u32 s{sT1}, s{sT1}, s{sT3}
        s_lshl_b32 s{sT1}, s{sT1}, 8
        s_add_u32 s{sT0}, s{sT0}, s{sT1}
        s_add_u32 s{sT0}, s{sT0}, {OFF_H}
        s_mov_b32 s{sT1}, {HKS*1024}
        v_lshlrev_b32 v97, 4, v{vJ}
        v_add_u32 v97, s{sT0}, v97
        v_and_b32 v98, 1, v{vQ}
        v_mad_u32_u24 v{vHS1}, v98, s{sT1}, v97
        v_add_u32 v{vHS2}, 512, v{vHS1}
        v_cmp_gt_u32 vcc, 32, v{vLane}
        v_mov_b32 v97, {OOB}
        v_cndmask_b32 v{vHS2}, v97, v{vHS2}, vcc
        v_lshrrev_b32 v98, 1, v{vQ}
        v_lshl_add_u32 v{vHS1}, v98, 8, v{vHS1}
        v_lshlrev_b32 v{vFX}, 2, v{vLane}
        v_min_u32 v{vFH}, 57, v{vLane}
        v_lshlrev_b32 v{vFH}, 2, v{vFH}
        s_lshl_b32 s{sFL}, s{sG}, 9
        s_lshl_b32 s{sFLG}, s{sM}, 2
        s_add_u32 s{sFLG}, s{sFLG}, s{sWV}
        s_lshl_b32 s{sFLG}, s{sFLG}, 2
        s_add_u32 s{sFLG}, s{sFLG}, s{sFL}
        s_nop 0""")
    w_setup(a)
    a(f"""v_mul_u32_u24 v83, {2*CHP}, v{vQ}
        v_bfe_u32 v101, v{vLane}, 2, 2
        v_lshl_add_u32 v83, v101, 7, v83
        v_and_b32 v101, 3, v{vLane}
        v_lshl_add_u32 v83, v101, 3, v83
        s_lshl_b32 s{sT0}, s{sWV}, 5
        v_add_u32 v83, s{sT0}, v83""")
    a(f"v_and_b32 v55, -9, v55\nv_lshlrev_b32 v55, 12, v55\nv_lshl_add_u32 v55, v{vQ}, 5, v55\nv_lshrrev_b32 v101, 3, v{vJ}\nv_lshl_add_u32 v55, v101, 4, v55\ns_lshl_b32 s{sT0}, s{sR}, 7\ns_add_u32 s{sT0}, s{sT0}, {OFF_KVT}\nv_add_u32 v55, s{sT0}, v55")
    a(f"v_lshrrev_b32 v100, 5, v{vLane}\nv_mul_u32_u24 v100, {UCH-512}, v100\nv_add_u32 v100, v100, v{vL}")
    a("v_mov_b32 v104, 0\nv_mov_b32 v105, 0\nv_mov_b32 v106, 0\nv_mov_b32 v107, 0")
    a(f"ds_write_b128 v100, {V(104)} offset:{L_U}"); a.lw(1,(L_U,L_U+512),(L_U+UCH,L_U+UCH+512))
    a(f"""s_lshl_b32 s{sT0}, s{sWV}, 12
        s_add_u32 s{sT1}, s{sT0}, {L_CX}
        v_add_u32 v{vCXw}, s{sT1}, v{vL}
        s_lshl_b32 s{sT2}, s{sCHH}, 11
        v_add_u32 v{vCXo}, s{sT2}, v{vCXw}
        v_xor_b32 v{vCXp}, 4096, v{vL}
        s_xor_b32 s{sT0}, s{sT0}, 4096
        s_add_u32 s{sT0}, s{sT0}, s{sT2}
        s_add_u32 s{sT0}, s{sT0}, {L_CX}
        v_add_u32 v{vCXp}, s{sT0}, v{vL}
        s_lshl_b32 s{sT0}, s{sCHH}, 10
        s_mul_i32 s{sT1}, s{sKH}, {UCH}
        s_add_u32 s{sT0}, s{sT0}, s{sT1}
        s_add_u32 s{sT0}, s{sT0}, {L_U+512+8}
        v_lshlrev_b32 v{vKV}, 5, v{vJ}
        v_lshrrev_b32 v100, 1, v{vQ}
        v_lshl_add_u32 v{vKV}, v100, 4, v{vKV}
        v_and_b32 v100, 1, v{vQ}
        v_lshlrev_b32 v100, 3, v100
        v_sub_u32 v{vKV}, v{vKV}, v100
        v_add_u32 v{vKV}, s{sT0}, v{vKV}
        v_lshrrev_b32 v100, 2, v0
        v_lshlrev_b32 v100, 7, v100
        v_and_b32 v101, 3, v0
        v_lshl_add_u32 v100, v101, 4, v100
        s_lshl_b32 s{sT0}, s{sG}, 16
        s_lshl_b32 s{sT1}, s{sCT2}, 13
        s_add_u32 s{sT0}, s{sT0}, s{sT1}
        s_lshl_b32 s{sT1}, s{sRH}, 6
        s_add_u32 s{sT0}, s{sT0}, s{sT1}
        s_add_u32 s{sT0}, s{sT0}, {OFF_YT}
        v_add_u32 v{vGA}, s{sT0}, v100
        v_lshlrev_b32 v{vGW}, 4, v0
        v_bfe_u32 v100, v{vLane}, 2, 2
        v_lshl_add_u32 v100, v{vQ}, 3, v100
        v_lshlrev_b32 v100, 6, v100
        v_and_b32 v101, 3, v{vLane}
        v_lshl_add_u32 v100, v101, 3, v100
        s_lshl_b32 s{sT0}, s{sCHH}, 11
        s_lshl_b32 s{sT1}, s{sKH}, 5
        s_add_u32 s{sT0}, s{sT0}, s{sT1}
        v_add_u32 v{vGT}, s{sT0}, v100
        v_and_b32 v100, 7, v{vLane}
        v_lshlrev_b32 v100, 7, v100
        v_bfe_u32 v101, v{vLane}, 3, 2
        v_lshl_add_u32 v100, v101, 14, v100
        s_lshl_b32 s{sT0}, s{sFL}, 1
        s_add_u32 s{sT0}, s{sT0}, {OFF_XFLAG}
        v_add_u32 v{vFT}, s{sT0}, v100
        v_and_b32 v100, 31, v{vLane}
        v_lshlrev_b32 v100, 7, v100
        v_cmp_gt_u32 vcc, 32, v{vLane}
        s_lshl_b32 s{sT0}, s{sCT2}, 12
        s_lshl_b32 s{sT1}, s{sX}, 12
        v_mov_b32 v101, s{sT0}
        v_mov_b32 v102, s{sT1}
        v_cndmask_b32 v101, v101, v102, vcc
        v_add_u32 v100, {OFF_HELLO}, v100
        v_add_u32 v{vHa}, v100, v101""")
    a(f"""s_lshl_b32 s{sT0}, s{sHELLO}, 12
        s_lshl_b32 s{sT1}, s{sCHH}, 11
        s_add_u32 s{sT0}, s{sT0}, s{sT1}
        s_add_u32 s{sT0}, s{sT0}, {OFF_KVT}
        v_lshlrev_b32 v100, 7, v{vLane}
        v_add_u32 v100, s{sT0}, v100
        s_lshr_b32 s{sT0}, s{sR}, 3
        s_lshl_b32 s{sT1}, s{sX}, 2
        s_add_u32 s{sT0}, s{sT0}, s{sT1}
        s_lshl_b32 s{sT0}, s{sT0}, 7
        s_add_u32 s{sT0}, s{sT0}, {OFF_F1L}
        v_mov_b32 v101, s{sT0}
        v_cmp_gt_u32 vcc, 16, v{vLane}
        v_cndmask_b32 v{vTch}, v101, v100, vcc""")
    if CFG['utouch']==0: a(f"buffer_load_dword v{vTch}, v{vTch}, {srd(WS)}, 0 offen sc1")
    ssm_loads(a)
    a(f"""v_lshlrev_b32 v{vCg}, 4, v{vJ}
        v_lshl_add_u32 v{vCg}, v{vQ}, 18, v{vCg}
        v_lshrrev_b32 v{vCs}, 3, v{vLane}
        v_lshlrev_b32 v{vCs}, 16, v{vCs}
        v_and_b32 v100, 7, v{vLane}
        v_lshl_add_u32 v{vCs}, v100, 4, v{vCs}
        s_lshl_b32 s{sT0}, s{sCHH}, 17
        s_lshl_b32 s{sT1}, s{sCT2}, 7
        s_add_u32 s{sT0}, s{sT0}, s{sT1}
        s_add_u32 s{sT0}, s{sT0}, s{sS5l}
        v_add_u32 v{vCs}, s{sT0}, v{vCs}
        v_cmp_gt_u32 vcc, 16, v{vLane}
        v_mov_b32 v100, {OOB}
        v_add_u32 v{vCg}, s{sGR}, v{vCg}
        v_cndmask_b32 v{vCs}, v100, v{vCs}, vcc""")
    if CFG['clr']==0: clears(a)
    a.stamp("setup done","f")

def ssm_loads(a):
    for rho,(va,off) in enumerate(((52,0),(52,1024))):
        d=56+8*rho
        a(f"buffer_load_dwordx4 {V(d)}, v{va}, {srd(SH_)}, 0 offen offset:{off}")
        a(f"buffer_load_dwordx2 {V(d+4,2)}, v{va}, {srd(SH_)}, 0 offen offset:{off+16}")
    a(f"buffer_load_dwordx4 {V(72)}, v53, {srd(SH_)}, 0 offen")
    a(f"buffer_load_dwordx2 {V(76,2)}, v54, {srd(SH_)}, 0 offen")
    a(f"buffer_load_ushort v{vD}, v{vD}, {srd(SD_)}, 0 offen")

def clears(a,tok=None):
    a("v_mov_b32 v112, -1\nv_mov_b32 v113, -1\nv_mov_b32 v114, -1\nv_mov_b32 v115, -1")
    a(f"""buffer_store_dwordx4 {V(112)}, v{vYo}, {srd(WS)}, 0 offen sc1
        buffer_store_dwordx4 {V(112)}, v{vYo}, {srd(WS)}, s{sMB} offen sc1
        buffer_store_dwordx4 {V(112)}, v{vCg}, {srd(WS)}, 0 offen sc1
        buffer_store_dwordx4 {V(112)}, v{vCs}, {srd(WS)}, 0 offen sc1""",tok)

def w_setup(a):
    lane,j,q=vLane,vJ,vQ
    for b in range(3):
        a(f"v_add_u32 v100, {64*b}, v{lane}\nv_mul_u32_u24 v101, 43691, v100\nv_lshrrev_b32 v101, 19, v101")
        a(f"v_mul_u32_u24 v102, 12, v101\nv_sub_u32 v100, v100, v102\nv_lshlrev_b32 v100, 4, v100")
        a(f"v_mul_u32_u24 v101, 2752, v101\nv_add_u32 v{vW1[b]}, v100, v101")
    a(f"s_mul_i32 s{sT0}, s{sWV}, {16*2752}\ns_mul_i32 s{sT1}, s{sM}, 192\ns_add_u32 s{sT0}, s{sT0}, s{sT1}")
    for b in range(3):
        a(f"v_add_u32 v{vW1[b]}, s{sT0}, v{vW1[b]}")
        if b: a(f"v_subrev_u32 v{vW1[b]}, {1024*b}, v{vW1[b]}")
    a(f"""v_bfe_u32 v100, v{lane}, 2, 2
        v_lshl_add_u32 v100, v{q}, 3, v100
        v_and_b32 v101, 3, v{lane}
        v_mul_u32_u24 v102, 192, v100
        s_mul_i32 s{sT0}, s{sWV}, 48
        v_add_u32 v102, s{sT0}, v102
        v_lshl_add_u32 v{vTa}, v101, 3, v102
        v_and_b32 v103, 1, v101
        v_mul_u32_u24 v103, 12288, v103
        v_add_u32 v102, v102, v103
        v_lshrrev_b32 v103, 1, v101
        v_lshl_add_u32 v102, v103, 3, v102
        v_add_u32 v{vTm}, 32, v102
        v_lshlrev_b32 v102, 7, v100
        v_lshl_add_u32 v102, v101, 4, v102
        s_lshl_b32 s{sT1}, s{sWV}, 12
        s_add_u32 s{sT1}, s{sT1}, {L_PP}
        v_add_u32 v{vT2}, s{sT1}, v102
        s_mul_i32 s{sW1W}, s{sWV}, 3072""")

def c_dma(n, slot):
    if CFG.get('now1'): return []
    L=M(f"s_add_u32 s{sWo}, s{sX}, {n}\ns_and_b32 s{sWo}, s{sWo}, 7\ns_mul_i32 s{sWo}, s{sWo}, {64*2752}") if CFG['rot'] else M(f"s_mov_b32 s{sWo}, {n*64*2752}")
    for mat,S in ((0,SWG),(1,SWU)):
        L+=M(f"s_add_u32 m0, s{sW1W}, {slot+mat*12288}")
        for b in range(3): L+=M(f"buffer_load_dwordx4 v{vW1[b]}, {srd(S)}, s{sWo} offen offset:{1024*b} lds",f"c{n}")
    return LW(L,(slot,slot+WSL))
def c_read(n, slot):
    if CFG.get('now1'): return []
    L=M(f"v_add_u32 v{vWc0}, {slot}, v{vTa}\nv_add_u32 v{vWc1}, {slot}, v{vTm}")
    for sp in range(2):
        s=2*n+sp
        for hh in range(2):
            o=sp*6144+hh*768
            L+=M(f"""ds_read_b64_tr_b16 {W1h(s,0,hh)}, v{vWc0} offset:{o}
                     ds_read_b64_tr_b16 {W1h(s,1,hh)}, v{vWc0} offset:{o+12288}
                     ds_read_b64_tr_b16 {W1h(s,2,hh)}, v{vWc1} offset:{o}""",f"cr{n}")
    return LR(L,(slot,slot+WSL))
def pp_setup():
    return M(f"""s_lshl_b32 s{sT0}, s{sWV}, 8
        s_add_u32 s{sT0}, s{sT0}, s2
        s_mul_i32 s{sT1}, s{sT0}, 1525
        s_lshr_b32 s{sT1}, s{sT1}, 16
        s_mul_i32 s{sT2}, s{sT1}, 43
        s_sub_u32 s{sT2}, s{sT0}, s{sT2}
        s_lshl_b32 s{sPS}, s{sT2}, 15
        s_lshl_b32 s{sT3}, s{sT1}, 7
        s_add_u32 s{sPS}, s{sPS}, s{sT3}
        s_mul_i32 s{sPD}, s{sT1}, 86
        s_add_u32 s{sPD}, s{sPD}, s{sT2}
        s_lshl_b32 s{sPD}, s{sPD}, 11
        s_add_u32 s{sPD}, s{sPD}, {OFF_P2}
        s_lshl_b32 s{sPF}, s{sT0}, 7
        s_add_u32 s{sPF}, s{sPF}, {OFF_P2F}
        s_cmp_lt_u32 s{sT0}, 344
        s_cselect_b32 s{sPS}, s{sPS}, {OOB}
        s_cselect_b32 s{sPD}, s{sPD}, {OOB}
        s_cselect_b32 s{sPF}, s{sPF}, {OOB}
        s_lshl_b32 s{sT0}, s{sCT2}, 1
        s_add_u32 s{sT0}, s{sT0}, s{sCHH}
        s_mul_i32 s{sT0}, s{sT0}, 43
        s_mul_i32 s{sT1}, s{sKH}, 21
        s_add_u32 s{sT0}, s{sT0}, s{sT1}
        s_lshl_b32 s{sT0}, s{sT0}, 11
        s_add_u32 s{sW2B}, s{sT0}, {OFF_P2}
        s_cmp_eq_u32 s{sKH}, 0
        s_cselect_b32 s{sW20}, s{sW2B}, {OOB}""")
def pp_load():
    L=M(f"s_lshl_b32 s{sT3}, s{sWV}, 12")
    for r in range(4):
        L+=M(f"s_add_u32 m0, s{sT3}, {L_PP+1024*r}\ns_add_u32 s{sWo}, s{sPS}, {8192*r}")
        L+=M(f"buffer_load_dwordx4 v{vW2}, {srd(SWD)}, s{sWo} offen lds","pp")
    for x in L: x.priv=1
    return LW(L,(L_PP,L_PP+16384))
def pp_pack():
    L=[('WVM','pp')]
    for c in range(2):
        for t in range(2):
            for hh in range(2): L+=LR(M(f"ds_read_b64_tr_b16 {V(W2V+8*c+4*t+2*hh,2)}, v{vT2} offset:{hh*512+64*c+8*t}"),(L_PP,L_PP+16384))
    for x in L[1:]: x.priv=1
    S=[]
    for c in range(2):
        S+=M(f"s_add_u32 s{sT2}, s{sPD}, {c*43*2048}")
        for t in range(2): S+=M(f"buffer_store_dwordx4 {V(W2V+8*c+4*t)}, v{vL}, {srd(WS)}, s{sT2} offen offset:{1024*t} sc1","pps")
    return L,S
def w2_loads():
    L=[]
    for i in range(22):
        so=sW20 if i==0 else (sW2B if i==1 else sPS)
        if i>=2 and i%2==0: L+=M(f"s_add_u32 s{sPS}, s{sW2B}, {i*2048}")
        for t in range(2): L+=M(f"buffer_load_dwordx4 {W2(i,t)}, v{vL}, {srd(WS)}, s{so} offen offset:{(i&1)*2048+t*1024} sc1")
    return L
W2Q=[]
def w2_take(n):
    out=[]
    while W2Q and n>0:
        x=W2Q.pop(0); out.append(x)
        if x.kind=='vmem': n-=1
    return out

PLANS={
 0:dict(),
 1:dict(FL="i0", T2="i1", CV=[("a",20,"r0"),("d",40,"i2"),("a",84,"w1 b r1"),("d",100,"i3@0")], YS="i4@5", YA="w3 b r2 r3", GL="i5@1 w4 l b r4", ST="i6@2", PEND=[5,6], REST=["7@0"]),
 3:dict(FL="i0", T2="i1 w0 b r0", CV=[("d",2,"i2"),("d",68,"i3@0")], CE="w2", YS="r1 r2 i4@3", F1="r3", F2="i5@1", FB="r4", XD="", PEND=[5], REST=["6@2","7@0"]),
 6:dict(T2="i0", CV=[("d",40,"i1"),("d",90,"i2")], CE="w1", YS="i3@3 r0 r1", SA="w2", F1="r2 i4@0", F2="", FX="i5@1", SB="w4", FB="r3 r4", XD="", PEND=[5], REST=["6@2","7@0"]),
 7:dict(FL="i0", T2="i1 w0 b r0", CV=[("d",20,"i2"),("d",68,"i3@0")], CE="w2", YS="i4@3 r1 r2", F1="r3", F2="i5@1", FX="i6@2", FB="r4", PEND=[5,6], REST=["7@0"]),
 4:dict(FL="i0", T2="i1 w0 b r0", CV=[("d",2,"i2"),("d",50,"i3@0")], CE="w2", YS="i4@3 r1 r2", F1="r3", F2="i5@1", FX="i6@2", FB="r4", PEND=[5,6], REST=["7@0"]),
 5:dict(T1="i0", FL="", T2="i1 w0 b r0", CV=[("d",2,"i2"),("d",46,"i3@0"),("a",60,"w1 b r1"),("a",84,"L1 b"),("d",92,"i4@1")], CE="w3", YS="i5@3 r2 r3", SA="w4", F1="r4", F2="i6@2", FX="i7@0", FB="r5", PEND=[6,7]),
 2:dict(FL="i0", T2="i1", CV=[("a",20,"r0"),("d",30,"i2"),("a",70,"w1 b r1"),("d",80,"i3@0"),("a",124,"w2 b r2")], YS="i4@5 i5@1", YA="w4 b r3 r4", GL="i6@2 w5 l b r5", ST="i7@0", PEND=[6,7], FA="p4", FB="p4", XD="p4"),
 9:dict(ST="i0 i1 "+" ".join(f"w{n} l b "+(f"i{n+2} " if n+2<8 else "")+f"r{n}" for n in range(8))+" l b"),
}
slot_of={}
def wops(txt):
    L=[]
    for op in txt.split():
        at=None
        if '@' in op: op,at=op.split('@'); at=int(at)
        k=int(op[1:]) if len(op)>1 else None
        if op[0]=='i': slot_of[k]=SLOT[at if at is not None else k%3]; L+=c_dma(k,slot_of[k])
        elif op[0]=='r': L+=c_read(k,slot_of[k])
        elif op[0]=='w': L.append(('WVM',f"c{k}"))
        elif op[0]=='l': L+=M("s_waitcnt lgkmcnt(0)")
        elif op[0]=='L': L.append(('WLG',f"cr{k}"))
        elif op[0]=='b': L+=M("s_barrier")
        elif op[0]=='p': L+=w2_take(k)
    return L
def PL(): return eval(CFG['plan']) if isinstance(CFG['plan'],str) else PLANS[CFG['plan']]
def Wp(a,point): a.flat(wops(PL().get(point,"")))

def toeplitz(a):
    a(f"s_mul_i32 s{sT0}, s{sKH}, {TCH}\ns_add_u32 s{sT0}, s{sT0}, {L_TOEP+32}")
    a(f"v_add_u32 v52, s{sT0}, v52\nv_add_u32 v53, s{sT0}, v53")
    for rho,(va,off) in enumerate(((52,0),(52,1024),(53,0))):
        d=56+8*rho; t=100+12*(rho%2)
        a(f"ds_write_b128 v{va}, {V(d)} offset:{off}")
        for i in range(4): a(f"v_alignbit_b32 v{t+i}, v{d+i+1}, v{d+i}, 16")
        a(f"ds_write_b128 v{va}, {V(t)} offset:{off+TCP}")
        for i in range(4): a(f"v_mov_b32 v{t+4+i}, v{d+i+1}")
        a(f"ds_write_b128 v{va}, {V(t+4)} offset:{off+2*TCP}")
        for i in range(4): a(f"v_alignbit_b32 v{t+8+i}, v{d+i+2}, v{d+i+1}, 16")
        a(f"ds_write_b128 v{va}, {V(t+8)} offset:{off+3*TCP}"); a.lw(16,(L_TOEP,L_TOEP+2*TCH))

def p0(a):
    a.waitvm("kv"); a("s_barrier")
    a.stamp("kv landed","f")
    KR=84; VR=94
    for i in range(5):
        R=4+4*i; a(f"ds_read_b64_tr_b16 {V(KR+2*i,2)}, v83 offset:{L_K+(R>>3)*CHP+(R&7)*128}")
    for i in range(4):
        R=4*i; a(f"ds_read_b64_tr_b16 {V(VR+2*i,2)}, v83 offset:{L_V+(R>>3)*CHP+(R&7)*128}")
    a.lr(9,(L_K,L_V+8*CHP))
    a("v_lshlrev_b32 v40, 16, v80\nv_and_b32 v41, 0xffff0000, v80\nv_lshlrev_b32 v42, 16, v81\nv_and_b32 v43, 0xffff0000, v81")
    K=lambda t: 108+t-2
    for i in range(10):
        if i>0: a(f"v_lshlrev_b32 v{102+2*i}, 16, v{KR+i}")
        a(f"v_and_b32 v{103+2*i}, 0xffff0000, v{KR+i}")
    O=16
    for t in range(16):
        a(f"v_mul_f32 v{O+t}, v40, v{K(t)}")
        a(f"v_fmac_f32 v{O+t}, v41, v{K(t-1)}")
        a(f"v_fmac_f32 v{O+t}, v42, v{K(t-2)}")
        a(f"v_fmac_f32 v{O+t}, v43, v{K(t-3)}")
    for i in range(8):
        a(f"v_lshlrev_b32 v102, 16, v{VR+i}\nv_and_b32 v103, 0xffff0000, v{VR+i}")
        a(f"v_mul_f32 v{O+2*i}, v{O+2*i}, v102\nv_mul_f32 v{O+1+2*i}, v{O+1+2*i}, v103")
    for o in range(2):
        for d in range(4): a(f"v_cvt_pk_bf16_f32 v{KR+4*o+d}, v{O+8*o+7-2*d}, v{O+8*o+6-2*d}")
    for d in range(4): a(f"v_mov_b32 v{102+d}, v{KR+4+d}")
    for d in range(4): a(f"v_mov_b32_dpp v{KR+4+d}, v{KR+d} row_ror:8 row_mask:0xf bank_mask:0x3")
    for d in range(4): a(f"v_mov_b32_dpp v{KR+d}, v{102+d} row_ror:8 row_mask:0xf bank_mask:0xc")
    a(f"s_mov_b32 s{sT0}, 32768")
    a(f"buffer_store_dwordx4 {V(KR)}, v55, {srd(WS)}, 0 offen\nbuffer_store_dwordx4 {V(KR+4)}, v55, {srd(WS)}, s{sT0} offen","kvs")
    if CFG['utouch']==1: a(f"buffer_load_dword v{vTch}, v{vTch}, {srd(WS)}, 0 offen sc1")
    a.stamp("p0 computed","f")
    if CFG['clr']==1: clears(a)
    Wp(a,'T1')
    a(f"s_mov_b32 s{sCH}, s{sHELLO}\ns_getreg_b32 s{sHELLO}, hwreg(HW_REG_XCC_ID, 0, 4)")
    a(f"v_readfirstlane_b32 s{sTAG}, v51")
    a(f"s_add_u32 s{sTAG}, s{sTAG}, 0x9E3779B0\ns_and_b32 s{sTAG}, s{sTAG}, 0xFFFFFFF0\ns_and_b32 s{sHELLO}, s{sHELLO}, 15\ns_or_b32 s{sHELLO}, s{sHELLO}, s{sTAG}")
    a(f"v_mov_b32 v{vTAG}, s{sTAG}\nv_mov_b32 v98, s{sHELLO}")
    a.ext(pp_setup())
    a(f"""s_add_u32 s{sFLH}, s{sFLG}, s{sFL}
        s_lshl_b32 s{sC4}, s{sCHH}, 12
        s_mul_i32 s{sC3}, s{sCHH}, 3072
        s_lshl_b32 s{sM4}, s{sKH}, 14
        s_add_u32 s{sM3}, s{sM4}, s{sC3}
        s_add_u32 s{sM4}, s{sM4}, s{sC4}""")
    a(f"s_lshl_b32 s{sT0}, s{sX}, 2\ns_add_u32 s{sT1}, s{sT0}, s{sWV}\ns_lshl_b32 s{sT1}, s{sT1}, 5\ns_add_u32 s{sT1}, s{sT1}, s{sR}\ns_lshl_b32 s{sT1}, s{sT1}, 2\ns_add_u32 s{sT1}, s{sT1}, {OFF_F1L}")
    a(f"s_lshr_b32 s{sCK1}, s{sR}, 3\ns_add_u32 s{sCK1}, s{sCK1}, s{sT0}\ns_lshl_b32 s{sCK1}, s{sCK1}, 7\ns_add_u32 s{sCK1}, s{sCK1}, {OFF_F1L}")
    a(f"v_and_b32 v97, 31, v{vLane}\nv_lshlrev_b32 v97, 2, v97\ns_mov_b32 s{sMODE}, 0")
    a.waitvm("kvs")
    a(f"buffer_store_dword v98, v{vOne}, {srd(WS)}, s{sT1} offen")
    a.stamp("kvT published","f")
    if CFG['clr']==3: clears(a)
    if CFG['qat']==0: a(f"buffer_load_dwordx4 {V(vQT)}, v{vTok}, {srd(SQ_)}, 0 offen\nbuffer_load_dwordx4 {V(vQT+4)}, v{vTok}, {srd(SQ_)}, s{sMB} offen")
    Wp(a,'FL')
    toeplitz(a)
    a(f"""s_lshl_b32 s{sT0}, s{sCH}, 12
        s_lshl_b32 s{sT1}, s{sCHH}, 11
        s_add_u32 s{sT0}, s{sT0}, s{sT1}
        s_add_u32 s{sT0}, s{sT0}, {OFF_KVT}
        s_mul_i32 s{sUO}, s{sKH}, {UCH}
        s_add_u32 s{sT1}, s{sT1}, s{sUO}""")
    a.stamp("toeplitz","f")
    o=Asm(); o.lab("L_f1r"); o(f"s_mov_b32 s{sCNT}, 0")
    if CFG['stamps']: site_names.append("f1"); o(f"s_bitset1_b32 s98, {len(site_names)-1}")
    o.lab("L_f1l")
    o(f"""buffer_load_dword v99, v97, {srd(WS)}, s{sCK1} offen sc1
        s_waitcnt vmcnt(0)
        v_cmp_ne_u32 vcc, s{sHELLO}, v99
        s_cbranch_vccz L_f1b
        s_add_u32 s{sCNT}, s{sCNT}, 1
        s_cmp_lt_u32 s{sCNT}, {CFG['f1max']}
        s_cbranch_scc1 L_f1l""")
    o.lab("L_f1s")
    o(f"""s_mov_b32 s{sMODE}, 1
        s_mov_b32 s{sT2}, 32768
        buffer_store_dwordx4 {V(KR)}, v55, {srd(WS)}, 0 offen sc1
        buffer_store_dwordx4 {V(KR+4)}, v55, {srd(WS)}, s{sT2} offen sc1
        s_lshl_b32 s{sT2}, s{sX}, 2
        s_add_u32 s{sT3}, s{sT2}, s{sWV}
        s_lshl_b32 s{sT3}, s{sT3}, 5
        s_add_u32 s{sT3}, s{sT3}, s{sR}
        s_lshl_b32 s{sT3}, s{sT3}, 7
        s_add_u32 s{sT3}, s{sT3}, {OFF_F1}
        s_lshr_b32 s{sCK1}, s{sR}, 3
        s_add_u32 s{sCK1}, s{sCK1}, s{sT2}
        s_lshl_b32 s{sCK1}, s{sCK1}, 12
        s_add_u32 s{sCK1}, s{sCK1}, {OFF_F1}
        v_lshlrev_b32 v97, 5, v97
        s_waitcnt vmcnt(0)
        buffer_store_dword v{vTAG}, v{vOne}, {srd(WS)}, s{sT3} offen sc1
        s_mov_b32 s{sCNT}, 0""")
    o.lab("L_f1g")
    o(f"""buffer_load_dword v99, v97, {srd(WS)}, s{sCK1} offen sc1
        s_waitcnt vmcnt(0)
        v_cmp_ne_u32 vcc, s{sTAG}, v99
        s_cbranch_vccz L_f1b
        s_add_u32 s{sCNT}, s{sCNT}, 1
        s_cmp_lt_u32 s{sCNT}, {POLLMAX}
        s_cbranch_scc1 L_f1g
        s_branch L_f1b""")
    a.ool.append(o.L)
    ck=M(f"v_cmp_ne_u32 vcc, s{sHELLO}, v99\ns_cbranch_vccnz L_f1r\nL_f1b:") if CFG['slow']!=2 else M("s_waitcnt vmcnt(0)\ns_branch L_f1s\nL_f1b:")
    a(f"buffer_load_dword v99, v97, {srd(WS)}, s{sCK1} offen sc1")
    a(f"""s_lshl_b32 s{sT3}, s{sCHH}, 8
        s_sub_u32 s{sT2}, s{sUO}, s{sT3}
        s_add_u32 s{sT2}, s{sT2}, {L_U+480-192}
        v_lshlrev_b32 v141, 5, v{vJ}
        v_lshl_add_u32 v141, v{vQ}, 4, v141
        v_add_u32 v141, s{sT2}, v141
        v_add_u32 v142, 1, v{vJ}
        v_and_b32 v143, 3, v142
        v_mul_u32_u24 v143, {TCP}, v143
        v_lshrrev_b32 v142, 2, v142
        v_lshl_add_u32 v142, v142, 3, v143
        v_lshlrev_b32 v143, 4, v{vQ}
        v_sub_u32 v142, v142, v143
        s_mul_i32 s{sT2}, s{sKH}, {TCH}
        s_add_u32 s{sT2}, s{sT2}, s{sT3}
        s_add_u32 s{sT2}, s{sT2}, {L_TOEP+48}
        v_add_u32 v142, s{sT2}, v142
        s_add_u32 m0, s{sT1}, {L_U+512}""")
    a.flat(ck)
    a.stamp("f1 seen","f")
    a(f"buffer_load_dwordx4 v{vL}, {srd(WS)}, s{sT0} offen sc1 lds","u")
    a(f"buffer_load_dwordx4 v{vL}, {srd(WS)}, s{sT0} offen offset:1024 sc1 lds","u")
    a.lw(2,(L_U+512,L_U+UCH),(L_U+UCH+512,L_U+2*UCH))
    if CFG['clr']==4: clears(a,"clr")
    if CFG['clr'] in(1,3): a(f"buffer_store_dword v98, v{vOne}, {srd(WS)}, s{sHF} offen sc1")
    Wp(a,'T2')
    a(f"v_lshlrev_b32 v{vD}, 16, v{vD}")
    a.waitvm("u"); a("s_waitcnt lgkmcnt(0)\ns_barrier")
    a.stamp("U landed","f")

def conv_backbone():
    ACC=40; GR=72; Ureg=[16,20,24,28,32,36,104,108]
    seq=[]
    for it in range(4):
        o=4*(it&1)
        for e in range(4):
            for w in range(3-e,-1,-1): seq.append((w+e,o+e,o+w,('G',e,it,1),('U',w,it,1),it==0 and e==0))
    n1=len(seq)
    for it in range(4):
        pairs=[(e,w) for e in range(8) for w in range(7-e,max(0,4-e)-1,-1)]
        if it==0: pairs=[p for p in pairs if p[0]<4 and p[1]<4]+[p for p in pairs if not(p[0]<4 and p[1]<4)]
        seen=set()
        for e,w in pairs:
            seq.append((w+e,e,w,('G',e,it,2),('U',w,it,2),it==0 and (w+e) not in seen)); seen.add(w+e)
    reads={}; lastuse={}
    for n,(c,g,u,gid,uid,f) in enumerate(seq):
        for ph,i in ((('G',g),gid),(('U',u),uid)):
            if i not in reads: reads[i]=dict(ph=ph,need=n,earliest=lastuse.get(ph,-1))
            lastuse[ph]=n
    def emit(i):
        kind,k,it,_=i; ph=reads[i]['ph'][1]
        if kind=='U': return [LR(mk(f"ds_read_b128 {V(Ureg[ph])}, v141 offset:{512*k+192-64*it}"),(L_U,L_U+2*UCH))]
        return LR([mk(f"ds_read_b64 {V(GR+4*ph,2)}, v142 offset:{512*k+64*it}"),mk(f"ds_read_b64 {V(GR+4*ph+2,2)}, v142 offset:{512*k+64*it+8}")],(L_TOEP,L_TOEP+2*TCH))
    todo=[]
    for i in sorted(reads,key=lambda i:reads[i]['need']):
        for x in emit(i): todo.append((reads[i]['earliest'],reads[i]['need'],x))
    bb=[x for e,n,x in todo if n<4]; todo=[t for t in todo if t[1]>=4]
    for n,(c,g,u,gid,uid,f) in enumerate(seq):
        bb.append(mk(f"v_mfma_f32_16x16x32_bf16 {V(ACC+4*c)}, {V(GR+4*g)}, {V(Ureg[u])}, {'0' if f else V(ACC+4*c)}"))
        k=0
        while True:
            cand=[t for t in todo if t[0]<=n]
            if not cand: break
            t=cand[0]
            if k>=1 and not(k<2 and t[1]-n<=CFG['cla']) and not t[1]-n<=2: break
            bb.append(t[2]); todo.remove(t); k+=1
    assert not todo
    return bb,n1

def conv_epi(st):
    ACC=40+16*st; P=vPK+4*st; R=(L_CX,L_CX+16384)
    W=LW([mk(f"ds_write_b128 v{vCXw}, {V(ACC+4*k)} offset:{1024*k}",f"cx{st}") for k in range(4)],R)
    K=LR([mk(f"ds_read_b64 {V(vKD+2*k,2)}, v{vKV} offset:{2048*st+512*k}") for k in range(2)],(L_U,L_U+2*UCH))
    L=[]
    for k in range(2): L+=LR(M(f"ds_read_b128 {V(ACC+4*k)}, v{vCXo} offset:{1024*k}\nds_read_b128 {V(ACC+8+4*k)}, v{vCXp} offset:{1024*k}",f"cy{st}"),R)
    for k in range(2):
        A=ACC+4*k
        L+=M(f"v_and_b32 v{vUP}, 0xffff0000, v{vKD+1+2*k}\nv_lshlrev_b32 v{vUP+1}, 16, v{vKD+1+2*k}\nv_and_b32 v{vUP+2}, 0xffff0000, v{vKD+2*k}\nv_lshlrev_b32 v{vUP+3}, 16, v{vKD+2*k}")
        for r in range(4): L+=M(f"v_fmac_f32 v{A+r}, v{vD}, v{vUP+r}")
        for r in range(4): L+=M(f"v_add_f32 v{A+r}, v{A+r}, v{A+8+r}")
        L+=M(f"v_cvt_pk_bf16_f32 v{P+2*k}, v{A}, v{A+1}\nv_cvt_pk_bf16_f32 v{P+1+2*k}, v{A+2}, v{A+3}")
    L+=M(f"s_nop 0\nv_permlane16_swap_b32 v{P}, v{P+2}\nv_permlane16_swap_b32 v{P+1}, v{P+3}")
    L+=M(f"buffer_store_dwordx4 {V(P)}, v{vYo}, {srd(WS)}, {'0' if st==0 else 's%d'%sMB} offen sc1",f"yt{st}")
    return W+K,L

def y_check(a,mu):
    D=vGD+4*mu
    return a.check([f"buffer_load_dwordx4 {V(D)}, v{vGA}, {srd(WS)}, {'0' if mu==0 else 's%d'%sMB} offen sc1"],
         [f"v_max3_u32 v{vGC}, v{D}, v{D+1}, v{D+2}",f"v_max_u32 v{vGC}, v{vGC}, v{D+3}",f"v_cmp_eq_u32 vcc, -1, v{vGC}"],"yt")
def y_stage(a,mu,mid=[]):
    a(f"ds_write_b128 v{vGW}, {V(vGD+4*mu)} offset:{L_YS+4096*mu}"); a.lw(1,(L_YS+4096*mu,L_YS+4096*mu+4096))
    a.flat(mid)
    a("s_waitcnt lgkmcnt(0)\ns_barrier")
    for hh in range(2):
        a(f"ds_read_b64_tr_b16 {V(vYY[mu]+2*hh,2)}, v{vGT} offset:{L_YS+4096*mu+256*hh}")
        a.lr(1,(L_YS+4096*mu,L_YS+4096*mu+4096))

def conv(a):
    C=CFG
    bb,n1=conv_backbone()
    qld=M(f"""buffer_load_dwordx4 {V(vQT)}, v{vTok}, {srd(SQ_)}, 0 offen
        buffer_load_dwordx4 {V(vQT+4)}, v{vTok}, {srd(SQ_)}, s{sMB} offen
        buffer_load_dword v{vCg}, v{vCg}, {srd(WS)}, 0 offen sc1
        buffer_load_dword v{vCs}, v{vCs}, {srd(WS)}, 0 offen sc1
        buffer_load_dword v{vFT}, v{vFT}, {srd(WS)}, 0 offen sc1""")
    hl,hc=a.check([f"buffer_load_dwordx4 {V(112)}, v{vHa}, {srd(WS)}, 0 offen sc1"],
         [f"v_xor_b32 v113, s{sTAG}, v113",f"v_xor_b32 v114, s{sTAG}, v114",f"v_xor_b32 v115, s{sTAG}, v115",
          "v_or3_b32 v113, v113, v114, v115",f"v_xor_b32 v114, s{sTAG}, v112","v_or_b32 v113, v113, v114","v_cmp_lt_u32 vcc, 15, v113"],"h2")
    pk,ps=pp_pack()
    dmas=paced((qld[:2] if C['qat']==1 else [])+(pp_load()+qld[2:] if C['ppat']==1 else []),3); fill=[]; a.late=pp_load()+qld[2:]
    for kind,at,ops in PL().get('CV',[]):
        it=wops(ops)
        if kind=='d': dmas+=[('AT',at)]+paced(it,C['cgap'])
        else:
            k=[i for i,x in enumerate(it) if isinstance(x,I) and x.op=='s_barrier']
            if k: it=[it[:k[0]+1]]+it[k[0]+1:]
            fill+=[('AT',at)]+it
    w0,e0=conv_epi(0)
    gl,a.gcA=y_check(a,0)
    crit=[('AT',n1+2),('DENS',C['cdens'])]+w0+[('GAP',3),[('WLG','cx0'),mk("s_barrier")]]+e0[:-1]+([] if C['clr']==4 else [('AFTER','hl')])+e0[-1:]+[('DENS',0),('SYNC','y0'),('AFTER','hl',C['chc'])]+hc \
        +[[('WLG','cy0'),mk("s_barrier")],('AFTER','y0',C['cack']),('WVM','yt0')]+gl+[('SYNC','g0')]
    ann=[('AT',C['cann']),('WVM','clr')]+M(f"buffer_store_dword v{vTAG}, v{vOne}, {srd(WS)}, s{sHF} offen sc1") if C['clr']==4 else []
    third=ann+[('AT',C['chl'])]+hl+[('SYNC','hl'),('AFTER','g0'),('AFTER','dd')]+paced((qld[:2] if C['qat']==2 else [])+(pp_load()+qld[2:] if C['ppat']==2 else []),2)
    a.weave(bb,crit,dmas+[('SYNC','dd')],fill,third,slots=C['cslots'],name='CV')
    a.stamp("conv mfma done","f")
    w1,e1=conv_epi(1)
    Wp(a,'CE')
    a.flat(w1); a("s_waitcnt lgkmcnt(0)\ns_barrier"); a.flat(e1)
    if CFG.get('trace')=='CV': a("v_mov_b32 v139, v140")
    a.stamp("yT stored","f")
    if C['ppat']==3: a.flat(a.late)
    Wp(a,'YS')
    for mu in range(2):
        for i in range(4):
            a(f"v_lshlrev_b32 v{vXst[mu]+2*i}, 16, v{vQT+4*mu+i}\nv_and_b32 v{vXst[mu]+2*i+1}, 0xffff0000, v{vQT+4*mu+i}")
    for mu in range(2): a.flat(fin1a(mu))
    Wp(a,'YA')
    a.flat(a.gcA)
    a.pk=(pk,ps)
    a.stamp("yA gathered","f")
    y_stage(a,0,wops(PL().get('SA',"")))
    Wp(a,'ST')
    if CFG['slow']: a(f"s_cmp_lg_u32 s{sMODE}, 0\ns_cbranch_scc1 L_slow")

def unpackY(mu,T):
    L=[]
    for i in range(4): L+=M(f"v_lshlrev_b32 v{T+2*i}, 16, v{vYY[mu]+i}\nv_and_b32 v{T+2*i+1}, 0xffff0000, v{vYY[mu]+i}")
    return L
def treduce(s0,s1,s2,s3,gap=[]):
    return M(f"v_permlane32_swap_b32 v{s0}, v{s2}\nv_permlane32_swap_b32 v{s1}, v{s3}\nv_add_f32 v{s0}, v{s0}, v{s2}\nv_add_f32 v{s1}, v{s1}, v{s3}")+gap+M(f"v_permlane16_swap_b32 v{s0}, v{s1}\nv_add_f32 v{s0}, v{s0}, v{s1}")

SX=[104,106]
def fin1a(mu,S=None):
    X=vXst[mu]; S=SX[mu] if S is None else S
    L=M(f"v_add_f32 v{S}, v{X}, v{X+1}\nv_mul_f32 v{S+1}, v{X}, v{X}")
    for e in range(1,8):
        if e>1: L+=M(f"v_add_f32 v{S}, v{S}, v{X+e}")
        L+=M(f"v_fmac_f32 v{S+1}, v{X+e}, v{X+e}")
    return L
def fin1(a, layer, mu, T, unpacked=False):
    X=vXst[mu]; L=[] if unpacked else unpackY(mu,T); S=T+8
    s0=SX[mu] if layer==0 else S
    A=[] if layer==0 else fin1a(mu,S)
    Bq=M(f"v_mul_f32 v{S+2}, v{X}, v{T}\nv_add_f32 v{S+3}, v{T}, v{T+1}")
    for e in range(1,8):
        Bq+=M(f"v_fmac_f32 v{S+2}, v{X+e}, v{T+e}")
        if e>1: Bq+=M(f"v_add_f32 v{S+3}, v{S+3}, v{T+e}")
    while A or Bq:
        if A: L.append(A.pop(0))
        if Bq: L.append(Bq.pop(0))
    L+=treduce(s0,s0+1,S+2,S+3,M(f"s_add_u32 s{sT0}, s{sGR}, {(layer*2+mu)*262144}"))
    L+=M(f"buffer_store_dword v{s0}, v{vGs}, {srd(WS)}, s{sT0} offen{a.sc}")
    return L

def fin2(a, layer, mu, T):
    X=vXst[mu]; Gd=T; Y=T+16
    ld,ck=a.check([f"buffer_load_dwordx4 {V(Gd+4*i)}, v{vGl}, {srd(WS)}, s{sCK2} offen offset:{256*i} sc1" for i in range(4)],
         [f"v_max3_u32 v{PT}, v{Gd}, v{Gd+1}, v{Gd+2}"]+[f"v_max3_u32 v{PT}, v{PT}, v{Gd+3+2*i}, v{Gd+4+2*i}" for i in range(6)]+[f"v_max_u32 v{PT}, v{PT}, v{Gd+15}",f"v_cmp_eq_u32 vcc, -1, v{PT}"],"gr")
    ld=M(f"s_add_u32 s{sCK2}, s{sGRl}, {(layer*2+mu)*262144}")+ld+unpackY(mu,Y)
    L=list(ck)
    for k in range(4): L+=M(f"v_add_f32 v{Gd+k}, v{Gd+k}, v{Gd+4+k}\nv_add_f32 v{Gd+8+k}, v{Gd+8+k}, v{Gd+12+k}")
    for k in (0,2,1,3): L+=M(f"v_add_f32 v{Gd+k}, v{Gd+k}, v{Gd+8+k}")
    L+=treduce(Gd,Gd+1,Gd+2,Gd+3)
    A,B,C,D=Gd,Gd+1,Gd+2,Gd+3
    L+=M(f"v_mov_b32 v{B}, v{A}\nv_permlane16_swap_b32 v{A}, v{B}\nv_mov_b32 v{C}, v{A}\nv_mov_b32 v{D}, v{B}\nv_permlane32_swap_b32 v{A}, v{C}\nv_permlane32_swap_b32 v{B}, v{D}")
    inv="0x3b000000"
    L+=M(f"""v_mul_f32 v{A}, {inv}, v{A}
        v_mul_f32 v{B}, {inv}, v{B}
        v_fma_f32 v{B}, -v{A}, v{A}, v{B}
        v_max_f32 v{B}, 0, v{B}
        v_add_f32 v{B}, 0x3727c5ac, v{B}
        v_rsq_f32 v{B}, v{B}
        v_fma_f32 v{C}, -v{A}, v{D}, v{C}
        v_mul_f32 v{C}, {inv}, v{C}
        v_fma_f32 v{C}, v{B}, v{C}, v{A}
        v_mul_f32 v{A}, v{A}, v{B}""")
    for e in range(8): L+=M(f"v_fma_f32 v{Gd+4+e}, v{X+e}, v{B}, -v{A}")
    for e in range(8): L+=M(f"v_fmac_f32 v{X+e}, v{Gd+4+e}, v{Y+e}")
    for e in range(8): L+=M(f"v_sub_f32 v{Y+e}, v{X+e}, v{C}")
    L+=M(f"s_add_u32 s{sT0}, s{sXS}, {mu*65536}")
    for i in range(4): L+=M(f"v_cvt_pk_bf16_f32 v{Gd+4+i}, v{Y+2*i}, v{Y+2*i+1}")
    L+=M(f"buffer_store_dwordx4 {V(Gd+4)}, v{vL}, {srd(WS)}, s{sT0} offen{a.sc or (' nt' if CFG['ntx']>layer else '')}",f"xs{mu}")
    L+=M(f"v_mul_f32 v{A}, v{Y}, v{Y}")
    for e in range(1,8): L+=M(f"v_fmac_f32 v{A}, v{Y+e}, v{Y+e}")
    L+=M(f"""v_mov_b32 v{B}, v{A}
        s_nop 0
        s_add_u32 s{sT1}, s{sS5}, {(layer*2+mu)*65536}
        v_permlane32_swap_b32 v{A}, v{B}
        v_add_f32 v{A}, v{A}, v{B}
        v_mov_b32 v{B}, v{A}
        v_permlane16_swap_b32 v{A}, v{B}
        v_add_f32 v{A}, v{A}, v{B}""")
    L+=M(f"buffer_store_dword v{A}, v{vS5s}, {srd(WS)}, s{sT1} offen{a.sc}")
    tail=M(f"s_add_u32 s22, s{sFLH}, {XF(layer,mu)}")+[('WVM',f"xs{mu}")]+M(f"buffer_store_dword v{vTAG}, v{vOne}, {srd(WS)}, s22 offen{a.sc}")
    return ld,L,tail

def flag_check(a, off, vaddr, name):
    ld,ck=a.check([f"buffer_load_dword v{PT+1}, v{vaddr}, {srd(WS)}, s{sCK1} offen sc1"],[f"v_cmp_ne_u32 vcc, s{sTAG}, v{PT+1}"],name)
    return M(f"s_lshl_b32 s{sCK1}, s{sFL}, 1\ns_add_u32 s{sCK1}, s{sCK1}, {off}")+ld, ck
XF=lambda layer,mu: OFF_XFLAG+layer*16384+mu*256
HF=lambda layer,k: OFF_HFLAG+layer*16384+k*256

def x_dma(mu, pair, stage, q):
    L=M(f"s_add_u32 m0, s{sXW}, {q+stage*8192}\ns_mov_b32 s{sSOFF}, {mu*65536+pair*32768+stage*8192}")
    for i in range(4): L+=M(f"buffer_load_dwordx4 v{vXD}, {srd(WS)}, s{sSOFF} offen offset:{1024*i} sc1 lds",f"x{mu}{pair}{stage}")
    return LW(L,(q+stage*8192,q+stage*8192+8192),(q+16384+stage*8192,q+16384+stage*8192+8192))
def h_dma(mu, t, grp, q):
    n=4 if grp<2 else 3
    L=M(f"s_add_u32 m0, s{sM4 if grp<2 else sM3}, {q+t*8192}\ns_add_u32 s{sSOFF}, s{sC4 if grp<2 else sC3}, {(mu*4+2*t)*HKS*1024+grp*8192}")
    for i in range(n): L+=M(f"buffer_load_dwordx4 v{vHD}, {srd(WS)}, s{sSOFF} offen offset:{1024*i} sc1 lds",f"h{mu}{t}{grp}")
    return LW(L,*[(q+(2*k+t)*8192,q+(2*k+t)*8192+2*n*1024) for k in range(2)])
def h_touch(mu):
    L=[]
    for k,(va,off) in enumerate(((vHS1,(mu*4)*HKS*1024),(vHS1,(mu*4+2)*HKS*1024),(vHS2,mu*4*HKS*1024))):
        L+=M(f"s_mov_b32 s{sT1}, {off}\nbuffer_load_dword v{(140,141,142,143,PT+3,vA1)[3*mu+k]}, v{va}, {srd(WS)}, s{sT1} offen sc1")
    return L

_uid=[0]
def g1_steps(buf, q, bar=None):
    A=(ACC0,ACC1)[buf]; bar=bar or {}; qo=q&65535; out=[]
    for s in range(16):
        pre=(M(f"v_add_u32 v{vA0}, {q&~65535}, v{vL}") if s==0 else [])+bar.get(s,[])
        rd=lambda F,tok,s=s: [LR(mk(f"ds_read_b128 {V(F+4*t)}, v{vA0} offset:{qo+t*16384+s*1024}",tok),(q+t*16384+s*1024,q+t*16384+s*1024+1024)) for t in range(2)]
        mf=lambda F,s=s: [mk(f"v_mfma_f32_16x16x32_bf16 {V(A+12*t+4*w)}, {W1(s,w)}, {V(F+4*t)}, {'0' if s==0 else V(A+12*t+4*w)}") for t in range(2) for w in range(3)]
        out.append((pre,rd,mf))
    return out
def g2_steps(qs, bar=None):
    bar=bar or {}; out=[]
    def setq(q): return M(f"s_add_u32 s{sQ}, s{sHK}, {q&~65535}\nv_add_u32 v{vA0}, s{sQ}, v{vL}\ns_add_u32 s{sQ}, s{sHS}, {q&~65535}\nv_add_u32 v{vA1}, s{sQ}, v{vL}")
    for i in range(22):
        q=qs[i>>3]; pre=bar.get(i,[])
        if i%8==0 and (i==0 or (q&~65535)!=(qs[(i>>3)-1]&~65535)): pre=setq(q)+pre
        rd=lambda F,tok,i=i,q=q: [LR(mk(f"ds_read_b128 {V(F+4*t)}, v{(vA0,vA1)[t]} offset:{(q&65535)+(i&7)*1024}",tok),*[(q+w*8192+(i&7)*1024,q+w*8192+(i&7)*1024+1024) for w in range(4)]) for t in (1,0)]
        mf=lambda F,i=i: [mk(f"v_mfma_f32_16x16x32_bf16 {V(ACC0+8*t+4*c)}, {W2(i,c)}, {V(F+4*t)}, {'0' if i==0 else V(ACC0+8*t+4*c)}") for t in (1,0) for c in range(2)]
        out.append((pre,rd,mf))
    return out
def backbone(steps, marks=None):
    marks=marks or {}
    N=len(steps); tok=[]
    for _ in steps: _uid[0]+=1; tok.append(f"f{_uid[0]}")
    nm=[len(st[2](FR)) for st in steps]
    last={FR:-3,FR+8:-2,FR+16:-1,ACC0+16:-9}; F=[]; at=[]
    for n in range(N):
        ring=[FR,FR+8,FR+16]+([ACC0+16] if nm[n]==4 and CFG['ring4'] else [])
        f=min(ring,key=lambda r:last[r]); la=len(ring)-1
        F.append(f); at.append(max(n-la,last[f]+1,at[-1] if at else -9)); last[f]=n
    L=[]
    for n in range(N):
        if at[n]<0 or (at[n]==0 and n<=1): L+=steps[n][0]+steps[n][1](F[n],tok[n]); at[n]=-1
    L.append(('WLG',tok[0]))
    for n,(pre,rd,mf) in enumerate(steps):
        ms=mf(F[n]); q=[]
        for m in range(n+1,N):
            if at[m]==n: r=steps[m][1](F[m],tok[m]); q+=[steps[m][0]+r[:1], r[1:]]
        k=len(ms)
        for j,m in enumerate(ms):
            L.append(m)
            if q and (len(q)>2 or j in ((0,2) if k==6 else (0,1)) or j>=k-2): L+=q.pop(0)
            if j==k-1:
                for x in q: L+=x
                if n+1<N: L.append(('WLG',tok[n+1]))
        L+=marks.get(n,[])
    return L

def g1_epi(a, buf, mu, pair, sc):
    A=(ACC0,ACC1)[buf]; E=EP; L=[]
    n=E; mreg=E+4
    M0=A+8; M1=A+20
    for t in range(2):
        Gt=A+12*t; Ut=Gt+4
        for r in range(4): L+=M(f"v_max_f32 v{Gt+r}, 0, v{Gt+r}")
        for r in range(4): L+=M(f"v_mul_f32 v{Gt+r}, v{Gt+r}, v{Ut+r}")
        L+=M(f"v_cvt_pk_bf16_f32 v{n+2*t}, v{Gt}, v{Gt+1}\nv_cvt_pk_bf16_f32 v{n+2*t+1}, v{Gt+2}, v{Gt+3}")
    for r in range(4): L+=M(f"v_permlane16_swap_b32 v{M0+r}, v{M1+r}")
    L+=M(f"v_permlane16_swap_b32 v{n}, v{n+2}\nv_permlane16_swap_b32 v{n+1}, v{n+3}\ns_mov_b32 s{sT1}, {(mu*4+2*pair)*HKS*1024}")
    L+=M(f"buffer_store_dwordx4 {V(n)}, v{vHS1}, {srd(WS)}, s{sT1} offen{sc}",f"hs{mu}{pair}")
    for r in range(4): L+=M(f"v_max_f32 v{M0+r}, 0, v{M0+r}")
    for r in range(4): L+=M(f"v_mul_f32 v{M0+r}, v{M0+r}, v{M1+r}")
    L+=M(f"v_cvt_pk_bf16_f32 v{mreg}, v{M0}, v{M0+1}\nv_cvt_pk_bf16_f32 v{mreg+1}, v{M0+2}, v{M0+3}")
    L+=M(f"v_mov_b32 v{E+6}, v{E+4}\nv_mov_b32 v{E+7}, v{E+5}\ns_nop 0\nv_permlane32_swap_b32 v{E+4}, v{E+6}\nv_permlane32_swap_b32 v{E+5}, v{E+7}")
    L+=M(f"buffer_store_dwordx4 {V(E+4)}, v{vHS2}, {srd(WS)}, s{sT1} offen{sc}",f"hs{mu}{pair}")
    return L
def h_flag(a, layer, k):
    return M(f"s_add_u32 s22, s{sFLH}, {HF(layer,k)}")+[('WVM',f"hs{k>>1}{k&1}")]+M(f"buffer_store_dword v{vTAG}, v{vOne}, {srd(WS)}, s22 offen{a.sc}")

def s5_get(a, layer, mu):
    T=140
    ld,ck=a.check([f"buffer_load_dwordx4 {V(T)}, v{vS5l}, {srd(WS)}, s{sCK3} offen sc1"],
         [f"v_max3_u32 v{PT+2}, v{T}, v{T+1}, v{T+2}",f"v_max_u32 v{PT+2}, v{PT+2}, v{T+3}",f"v_cmp_eq_u32 vcc, -1, v{PT+2}"],"s5")
    ld=M(f"s_add_u32 s{sCK3}, s{sS5l}, {(layer*2+mu)*65536}")+ld
    L=list(ck)+M(f"""v_add_f32 v{T}, v{T}, v{T+1}
        v_add_f32 v{T+2}, v{T+2}, v{T+3}
        v_add_f32 v{T}, v{T}, v{T+2}
        v_mov_b32 v{T+1}, v{T}
        s_nop 0
        v_permlane32_swap_b32 v{T}, v{T+1}
        v_add_f32 v{T}, v{T}, v{T+1}
        v_mov_b32 v{T+1}, v{T}
        s_nop 0
        v_permlane16_swap_b32 v{T}, v{T+1}
        v_add_f32 v{T}, v{T}, v{T+1}
        v_mul_f32 v{T}, 0x3b000000, v{T}
        v_add_f32 v{T}, 0x3727c5ac, v{T}
        v_rcp_f32 v{vR2}, v{T}""")
    return ld,L
def ex_addr(qspare):
    return M(f"s_add_u32 s{sT0}, s{sHW}, {qspare+6144}\nv_add_u32 v{EP}, s{sT0}, v{vL}\ns_xor_b32 s{sT0}, s{sHW}, 16384\ns_add_u32 s{sT0}, s{sT0}, {qspare+6144}\nv_add_u32 v{EP+1}, s{sT0}, v{vL}")
def ex_addr2(q):
    return [mk(x.text.replace(f"s{sT0},",f"s{sT2},")) for x in ex_addr(q)]
def g2_tail(a, mu, qsp, post, extra, every):
    X=vXst[mu]
    a(f"ds_write_b128 v{EP}, {V(ACC0+8)}\nds_write_b128 v{EP}, {V(ACC0+12)} offset:1024")
    R=[(qsp+w*8192+6144,qsp+w*8192+8192) for w in range(4)]; a.lw(2,*R)
    for e in range(8): a(f"v_fmac_f32 v{X+e}, v{vR2}, v{ACC0+e}")
    a("s_waitcnt lgkmcnt(0)\ns_barrier")
    a(f"ds_read_b128 {V(ACC0+8)}, v{EP+1}\nds_read_b128 {V(ACC0+12)}, v{EP+1} offset:1024","ex"); a.lr(2,*R)
    first,extra=sprinkle([mk("s_nop 0")],extra,1)
    a.flat(first[1:])
    L=[mk(f"v_fmac_f32 v{X+e}, v{vR2}, v{ACC0+8+e}") for e in range(8)]+post
    L,extra=sprinkle(L,extra,every)
    a.flat(L)
    return extra
def out_store(a, mu, T):
    X=vXst[mu]
    L=[mk(f"v_cvt_pk_bf16_f32 v{T+i}, v{X+2*i}, v{X+2*i+1}") for i in range(4)]
    return L+M(f"buffer_store_dwordx4 {V(T)}, v{vTok}, {srd(SO_)}, {'0' if mu==0 else 's%d'%sMB} offen{('',' sc1',' nt')[CFG['outsc']]}")

def wbl2(a):
    Lw=a.label("wb"); w=mk("buffer_wbl2 sc1"); w.ghost=1
    return [M(f"s_or_b32 s{sT2}, s{sR}, s{sWV}\ns_cmp_lg_u32 s{sT2}, {CFG['wbid']}\ns_cbranch_scc1 {Lw}")+[w,mk(Lw+":")]]
def finish_kernel(a):
    a(f"s_or_b32 s{sT0}, s2, s{sWV}\ns_cmp_eq_u32 s{sT0}, 0\ns_cselect_b32 s{sT0}, {OFF_NONCE}, {OOB}")
    a(f"buffer_store_dword v{vTAG}, v{vOne}, {srd(WS)}, s{sT0} offen")
    if CFG['stamps'] and a.tag!='S':
        a.stamp("end","*")
        if CFG.get('amp') is not None:
            j=CFG['amp']
            a(f"s_sub_u32 s96, s{STAMP0+j}, s{STAMP0}\ns_mul_i32 s96, s96, {CFG.get('ampk',4)}\ns_add_u32 s96, s96, s{STAMP0+len(stamp_names)-1}")
            a("L_amp:\ns_memrealtime s[100:101]\ns_waitcnt lgkmcnt(0)\ns_sub_u32 s97, s100, s96\ns_cmp_lt_i32 s97, 0\ns_cbranch_scc1 L_amp")
        a("s_memtime s[100:101]\ns_waitcnt lgkmcnt(0)\ns_sub_u32 s99, s100, s99")
        a(f"s_lshl_b32 s{sT0}, s2, 2\ns_add_u32 s{sT0}, s{sT0}, s{sWV}\ns_lshl_b32 s{sT0}, s{sT0}, 8\ns_add_u32 s{sT0}, s{sT0}, {OFF_STAMP}")
        for i in range(len(stamp_names)):
            a(f"v_mov_b32 v40, s{STAMP0+i}")
            a(f"buffer_store_dword v40, v{vOne}, {srd(WS)}, s{sT0} offen offset:{4*i}")
        if CFG.get('trace'): a(f"s_add_u32 s{sT1}, s{sT0}, 0x100000\nbuffer_store_dword v139, v{vFX}, {srd(WS)}, s{sT1} offen")
        a(f"v_mov_b32 v40, s98\nbuffer_store_dword v40, v{vOne}, {srd(WS)}, s{sT0} offen offset:248")
        a(f"v_mov_b32 v40, s99\nbuffer_store_dword v40, v{vOne}, {srd(WS)}, s{sT0} offen offset:252")
    a("s_endpgm")

WV=lambda t:('WVM',t)
WL=lambda t:('WLG',t)
AT=lambda n:('AT',n)

def body(a):
    P=paced; BY=lambda n:('BY',n); SY=lambda n:('SYNC',n); AF=lambda n,g=0:('AFTER',n,g); GP=lambda n:('GAP',n)
    B=lambda *w:[list(w)+[mk("s_barrier")]]
    C=CFG
    nxs=lambda r,mu: [i for i,x in enumerate(r) if isinstance(x,I) and x.tok==f"xs{mu}"][0]+1
    qs=list(Q)
    a.flat(fin1(a,0,0,ACC0))
    a.stamp("fin1 A","f")
    lA,rA,tA=fin2(a,0,0,ACC0); lB,rB,tB=fin2(a,0,1,232)
    glB,gcB=y_check(a,1)
    pk,ps=pp_pack()
    a.waitvm("yt1")
    Wp(a,'F1')
    a.flat(lA); a.flat(glB); Wp(a,'F2'); a.flat(pk); a.flat(ps)
    a.stamp("yB acked","f")
    a.flat(rA[:10]); Wp(a,'FA'); a.flat(rA[10:]); Wp(a,'FX')
    a.stamp("fin2 A","f")
    a.flat(gcB)
    y_stage(a,1,wops(PL().get('SB',"")))
    a.flat(tA)
    a(f"buffer_store_dword v{vTAG}, v{vOne}, {srd(WS)}, s{sPF} offen sc1")
    Wp(a,'FB')
    a.flat(fin1(a,0,1,ACC1))
    a.stamp("fin1 B","f")
    W2Q[:]=w2_loads()
    a(f"s_mul_i32 s{sT0}, s{sCT2}, 43\ns_mul_i32 s{sT1}, s{sKH}, 21\ns_add_u32 s{sT0}, s{sT0}, s{sT1}\ns_lshl_b32 s{sT0}, s{sT0}, 7\ns_add_u32 s{sCK3}, s{sT0}, {OFF_P2F}")
    a(f"v_min_u32 v{PT+3}, 21, v{vLane}\nv_lshlrev_b32 v{PT+3}, 7, v{PT+3}")
    pl_,pc_=a.check([f"buffer_load_dword v{PT+2}, v{PT+3}, {srd(WS)}, s{sCK3} offen sc1"],[f"v_cmp_ne_u32 vcc, s{sTAG}, v{PT+2}"],"pp")
    xl,xc=flag_check(a,XF(0,0),vFX,"xf")
    Wp(a,'XW'); a.flat(xl); a.flat(xc)
    a("s_waitcnt lgkmcnt(0)\ns_barrier")
    if C['fbpre']: a.flat(lB)
    a.ext(x_dma(0,0,0,qs[0])+x_dma(0,0,1,qs[0]))
    if C['fbpre']: a.flat(rB[:nxs(rB,1)])
    Wp(a,'XD')
    A1,B0,B1,GA=96,192,288,384
    for layer in range(2):
        g="ab"[layer]
        xa0,xa1,xb0,xb1,e=qs
        hsc = (a.sc or (' nt' if C['nth'] else '')) if not (layer==0 and C['touch']==2) else ' sc1'
        L0 = layer==0
        a.stamp(f"L{layer} start",g+'m')
        hq=[(xa0,xa1,e),(xb0,xb1,xa0)]
        X=lambda mu,p,q: x_dma(mu,p,0,q)+x_dma(mu,p,1,q)
        H=lambda mu,t,grp: h_dma(mu,t,grp,hq[mu][grp])
        xl,xc=flag_check(a,XF(layer,1),vFX,"xf")
        def HC(k,after=None,gap=None):
            l,c=flag_check(a,HF(layer,k),vFH,"hf")
            return [AF(f"f{k}",after or C['hca'])]+l+[GP(gap or (C['cg0'] if L0 else C['hcg']))]+c
        sl,sr=s5_get(a,layer,0)
        def SB(n,*w):
            if layer==0: return BAR(*w)
            return a.st(n+" pre","c")+list(w)+a.st(n+" waited","c")+[mk("s_barrier")]+a.st(n+" post","c")
        steps = g1_steps(0,xa0,{0:BAR(WV("x000")),8:BAR(WV("x001"))}) + g1_steps(1,xa1,{0:BAR(WV("x011"))}) \
              + g1_steps(0,xb0,{0:BAR(WV("x101"))}) + g1_steps(1,xb1,{0:BAR(WV("x111"))}) \
              + g2_steps(hq[0],{0:SB("GA0",WV("h010"),WV("h000")),8:SB("GA8",WV("h011"),WV("h001")),16:SB("GA16",WV("h012"),WV("h002"))})
        marks={15:a.st(f"L{layer} A0",g),31:a.st(f"L{layer} A1",g),47:a.st(f"L{layer} B0",g),63:a.st(f"L{layer} B1",g)}
        bb=backbone(steps,marks)
        fl = C['fl0'] if (L0 and C['touch']==2) else C['fl']
        def epi(k):
            if k<3: return [AT(96*(k+1)+2),('DENS',C['dens1'])]+g1_epi(a,k&1,k>>1,k&1,hsc)+[('DENS',0),SY(f"e{k}"),BY(96*(k+2) if k<2 else GA-30)]
            return [AT(GA+1),('DENS',C['dens'])]+g1_epi(a,1,1,1,hsc)+[('DENS',0),SY("e3")]+sr
        s3=[]
        for k in range(4): s3+=[AF(f"e{k}",fl)]+h_flag(a,layer,k)+[SY(f"f{k}")]
        tailpre=ex_addr(e)+unpackY(0,ACC1)
        hB1=H(1,1,0)+H(1,1,1); hB2=H(1,0,2)+H(1,1,2)
        g1=C['g1']
        sA = HC(0)+P(H(0,0,0)+H(0,0,2),g1)+[AT(B0-10)]+P(H(0,0,1),g1)
        sB = HC(1)+P(H(0,1,0),g1)+[BY(GA-40)]+P(H(0,1,1)+H(0,1,2),g1)+[BY(GA-2)]
        sC = HC(2)+P(H(1,0,0),C['g2'])+[AT(GA-10)]+P(H(1,0,1),C['g2'])
        sD = HC(3,C['gahl'],C['gahc'])
        if L0:
            pl=PL(); pend=pl.get('PEND',[]); rest=pl.get('REST',[])
            s1=[];s2=[]
            for k in rest: s1+=P(wops(f"i{k}"),2)
            rest=[int(str(k).split('@')[0]) for k in rest]
            s1+=[SY('irest')]+P(X(0,1,xa1),3)+[BY(A1-30)]
            for k in pend: s2+=wops(f"r{k}")+[BY(max(12*k-4,30))]
            last=pend[-1] if pend else None
            if rest:
                s2+=[AF('irest'),AT(C['rrest'])]+B(WV(f"c{rest[-1]}"))
                for k in rest: s2+=wops(f"r{k}")+[BY(12*k-4)]
                last=rest[-1]
            if last is not None: s2+=[GP(4)]+B(WL(f"cr{last}"))
            s2+=[SY('fr')]
            s4=[AT(C['w2at'])]+pl_+[GP(C['cg0'])]+pc_+[AF(C['w2af'])]
            i=(44-sum(1 for x in W2Q if x.kind=='vmem'))//2
            while W2Q:
                if i==10: s4+=[AF('fB')]
                s4+=P(w2_take(2),C['w2gap'])+[BY(GA+4*i-C['w2lead'])]; i+=1
        else:
            s1=[AT(2)]+P(X(0,1,xa1),5)+[BY(A1-30)]; s2=[SY('fr')]; s4=[]
        s5=[AT(C['a0l'])]+lB+[GP(C['a0c']),('DENS',C['densb'])]+rB[:nxs(rB,1)]+[('DENS',0),SY('rB')]+rB[nxs(rB,1):]+[SY('fB'),BY(A1+24 if L0 else A1)]
        if L0 and C['fbpre']: s5=[SY('rB')]+rB[nxs(rB,1):]+[SY('fB')]
        s3=[AF('rB',C['gbt0'] if L0 else C['gbt'])]+tB+[SY('tB')]+s3
        s1+=[AF('tB',C['a1xl'])]+xl+[GP(C['xg0'] if L0 else 16)]+xc+[SY('xc'),AF('fr')]+P(X(1,0,xb0),4)+[BY(B0-24)]+P(X(1,1,xb1),g1)+[BY(B1-24)]
        s1 += sA+sB+sC+sD
        s6 = epi(0)+epi(1)+epi(2)+sl+epi(3)+tailpre+((wbl2(a)) if (layer==1 and C['wbl2']==2) else [])
        out,rest=weave(bb,[s3,s1+[SY('hb')],s4,s2,s5,s6,[AF('hb')]+P(hB1,C['hbgap'])])
        k=max([i for i,x in enumerate(rest) if not(isinstance(x,I) and x in hB1)],default=-1)
        a.ext(a.trace(out,CFG.get('tev_',8),f'G{layer}')); a.ext(rest[:k+1]); left=rest[k+1:]
        if C.get('v'): print("  G2(A): leftover",k+1,"h(B) items left",len(left))
        a.stamp(f"L{layer} GA",g)
        sl,sr=s5_get(a,layer,1)
        a.flat(sl); sl=[]
        left=g2_tail(a,0,e,fin1(a,1,0,ACC1,True) if L0 else out_store(a,0,ACC1),left,C['tev'])
        a.flat(left)
        a.stamp(f"L{layer} tailA",g)
        bb=backbone(g2_steps(hq[1],{0:SB("GB0",WV("h110"),WV("h100")),8:SB("GB8",WV("h111"),WV("h101")),16:SB("GB16",WV("h112"),WV("h102"))}))
        nq=[xa1,e,xb0,xb1,xa0]
        if L0:
            lA,rA,tA=fin2(a,1,0,ACC1)
            xl,xc=flag_check(a,XF(1,0),vFX,"xf")
            ncrit=nxs(rA,0)
            a.weave(bb,[AF('r',C['gbt'])]+tA+[SY('t')],P(hB2,C['g3'])+[BY(40),AF('t',C['gbxl'])]+xl,
                    sl+[AT(C['gbl'])]+lA+[GP(C['gbc']),('DENS',C['dens2'])]+rA[:ncrit]+[('DENS',0),SY('r')]+rA[ncrit:]+sr+ex_addr(xa0)+unpackY(1,ACC1),name='B0')
        else:
            s2=sl+ex_addr(xa0)+[AT(C['gbs5'])]+sr
            if C['wbl2']==1: s2=[AT(C['wbat'])]+wbl2(a)+s2
            a.weave(bb,P(hB2,C['g3'])+[BY(40)],s2)
        a.stamp(f"L{layer} GB",g)
        if L0:
            lB,rB,tB=fin2(a,1,1,ACC1)
            left=g2_tail(a,1,xa0,fin1(a,1,1,ACC1,True),xc+X(0,0,nq[0]),C['tev2'])
            a.flat(left)
        else:
            g2_tail(a,1,xa0,out_store(a,1,ACC1),[],99)
        a.stamp(f"L{layer} tailB",g)
        qs=nq
    finish_kernel(a)

def main():
    a=G('F','')
    entry(a); p0(a); conv(a)
    nfront=len(a.L)
    b=G('S',' sc1'); b.nlab=0
    front=list(a.L)
    body(a)
    rep=[]
    items=finish(a.L,rep)
    print("LDS ordering problems:",lds_check(items))
    for o in a.ool: items+=finish(o)
    items.append(mk("L_fast_end:"))
    if CFG['slow']:
        b.L=front+[mk("L_slow:")]; body(b)
        full=finish(b.L)
        k=[i for i,x in enumerate(full) if x.text=="L_slow:"][0]
        items+=full[k:k+1]+[mk("s_nop 4")]+full[k+1:]
        for o in b.ool: items+=finish(o)
    items.append(mk("L_end:")); items.append(mk("s_endpgm"))
    hdr=open(os.path.join(os.path.dirname(os.path.abspath(__file__)),"header.txt")).read()
    src=kernel_file(NAME,text(items),"; @launch grid=(256,1,1) block=(256,1,1) lds=163840",header=hdr)
    open(sys.argv[1],"w").write(src)
    open("stamp_names.txt","w").write("\n".join(stamp_names)); open("trace_names.txt","w").write("\n".join(trace_names)); open("site_names.txt","w").write(" ".join(site_names))
    n=sum(1 for i in items if i.kind!='none')
    print(f"{n} instructions, {len(src)} bytes of text, {sum(x for x,_ in rep)} nop states padded in fast path")
    if CFG.get('v'):
        for x in rep: print("   pad",x)
main()
```

```python
import re

REG_RE = re.compile(r'\b([vas])(\d+)\b|\b([vas])\[(\d+):(\d+)\]')

def regs_of(op):
    out=set()
    op=op.strip()
    for m in REG_RE.finditer(op):
        if m.group(1): out.add((m.group(1),int(m.group(2))))
        else:
            for i in range(int(m.group(4)),int(m.group(5))+1): out.add((m.group(3),i))
    if re.search(r'\bvcc(_lo|_hi)?\b',op): out|={('s','vcc')}
    if re.search(r'\bexec\b',op): out|={('s','exec')}
    if re.search(r'\bm0\b',op): out|={('s','m0')}
    return out

TRANS=('v_exp_f32','v_log_f32','v_rcp_f32','v_rsq_f32','v_sqrt_f32','v_sin_f32','v_cos_f32')

class I:
    def __init__(s, text, tok=None):
        s.text=text; s.tok=tok
        t=text.split(';')[0].strip()
        s.label = t.endswith(':')
        s.directive = t.startswith('.')
        s.op = t.split()[0] if t else ''
        rest = t[len(s.op):].strip()
        ops=[]; d=0; cur=''
        for ch in rest:
            if ch in '[(': d+=1
            if ch in '])': d-=1
            if ch==',' and d==0: ops.append(cur.strip()); cur=''
            else: cur+=ch
        if cur.strip(): ops.append(cur.strip())
        s.ops=ops
        op=s.op
        s.kind='other'; s.defs=set(); s.uses=set(); s.dma=False
        if s.label or s.directive or not op: s.kind='none'; return
        allr=[regs_of(o.split(' ')[0] if i==len(ops)-1 else o) for i,o in enumerate(ops)]
        U=lambda idx: set().union(*[allr[i] for i in idx]) if idx else set()
        n=len(ops)
        if op.startswith('v_mfma'):
            s.kind='mfma'; s.defs=allr[0]; s.A=allr[1]; s.B=allr[2]; s.C=allr[3]; s.uses=s.A|s.B|s.C
            s.passes = 4 if '16x16x32' in op else 8
        elif op.startswith('buffer_load') or op.startswith('global_load'):
            s.kind='vmem'; s.load=True
            if re.search(r'\blds\b',t) : s.dma=True; s.uses=U(range(n))|{('s','m0')}
            else: s.defs=allr[0]; s.uses=U(range(1,n))
        elif op.startswith('buffer_store') or op.startswith('global_store'):
            s.kind='vmem'; s.load=False; s.uses=U(range(n))
            di = 0 if op.startswith('buffer') else 1
            s.sdata=allr[di]; s.wide = op.endswith('x4') or op.endswith('x3')
        elif op.startswith('buffer_wbl2') or op.startswith('buffer_inv'):
            s.kind='vmem'; s.load=False; s.sdata=set(); s.wide=False
        elif op.startswith('ds_read'):
            s.kind='ds'; s.defs=allr[0]; s.uses=U(range(1,n))
        elif op.startswith('ds_write'):
            s.kind='ds'; s.uses=U(range(n))
        elif op.startswith('ds_bpermute') or op.startswith('ds_swizzle') or op.startswith('ds_permute'):
            s.kind='ds'; s.defs=allr[0]; s.uses=U(range(1,n))
        elif op.startswith('s_load') or op.startswith('s_memtime') or op.startswith('s_memrealtime'):
            s.kind='smem'; s.defs=allr[0]; s.uses=U(range(1,n))
        elif op in('s_waitcnt','s_nop','s_barrier','s_endpgm','s_branch','s_setprio','s_sleep') or op.startswith('s_cbranch'):
            s.kind='ctl'
            if op=='s_cbranch_vccz' or op=='s_cbranch_vccnz': s.uses={('s','vcc')}
            if op.startswith('s_cbranch_exec'): s.uses={('s','exec')}
        elif op.startswith('s_cmp') or op.startswith('s_bitcmp'):
            s.kind='salu'; s.uses=U(range(n))
        elif op.startswith('s_'):
            s.kind='salu'; s.defs=allr[0]; s.uses=U(range(1,n))
            if 'saveexec' in op: s.defs|={('s','exec')}; s.uses|={('s','exec')}
            if op in('s_addk_i32','s_mulk_i32','s_bitset1_b32'): s.uses|=allr[0]
        elif op.startswith('v_'):
            s.kind='valu'
            if op.startswith('v_cmp'):
                s.defs=allr[0]; s.uses=U(range(1,n))
            elif (op.startswith('v_permlane') and 'swap' in op) or op.startswith('v_swap'):
                s.defs=allr[0]|allr[1]; s.uses=allr[0]|allr[1]
            elif op.startswith('v_add_co') or op.startswith('v_sub_co') or op.startswith('v_addc_co'):
                s.defs=allr[0]|allr[1]; s.uses=U(range(2,n))
            else:
                s.defs=allr[0]; s.uses=U(range(1,n))
                if op.startswith('v_fmac') or op.startswith('v_dot2c') or op.startswith('v_writelane'): s.uses|=allr[0]
                if 'dpp' in op or 'row_' in t or 'quad_perm' in t: s.uses|=allr[0]; s.dpp=True
                if op.startswith('v_cndmask') and n==3: s.uses|={('s','vcc')}
        else:
            raise ValueError('unknown op '+text)
    def states(s):
        if s.kind=='none': return 0
        if s.op=='s_nop': return int(s.ops[0],0)+1
        return 1

class Asm:
    def __init__(s): s.L=[]; s.nlab=0
    def __call__(s, text, tok=None):
        for line in text.split('\n'):
            line=line.strip()
            if line: s.L.append(I(line,tok))
        return s
    def lab(s,name): s.L.append(I(name+':'))
    def newlab(s,p='L'): s.nlab+=1; return f'{p}_{s.nlab}'
    def waitvm(s,tok): s.L.append(('WVM',tok))
    def waitlg(s,tok): s.L.append(('WLG',tok))
    def ext(s, items): s.L.extend(items)

def mk(text,tok=None): return I(text,tok)

def interleave(backbone, fillers, slots=2, start=0, per=None):
    out=[]; fi=0; nm=0; i=0
    fillers=list(fillers)
    while i<len(backbone):
        it=backbone[i]; out.append(it); i+=1
        if isinstance(it,I) and it.kind=='mfma':
            nm+=1
            used=0; j=i
            while j<len(backbone) and not(isinstance(backbone[j],I) and backbone[j].kind=='mfma'):
                used+=1; j+=1
            free=slots-used
            while fi<len(fillers) and nm>start:
                f=fillers[fi]
                if isinstance(f,tuple) and f[0]=='AT':
                    if nm>=f[1]: fi+=1; continue
                    break
                g=f if isinstance(f,list) else [f]
                if len(g)>free and not(free>=slots and len(g)>slots) : break
                out.extend(g); free-=len(g); fi+=1
                if free<=0: break
    rest=[]
    for f in fillers[fi:]:
        if isinstance(f,tuple) and f[0]=='AT': continue
        rest.extend(f if isinstance(f,list) else [f])
    return out, rest

def resolve(items, verbose=False):
    out=[]; vm=[]; lg=[]; nmf=[0]; AGE=7
    def emit_wait(nv,nl):
        parts=[]
        if nv is not None: parts.append(f'vmcnt({nv})')
        if nl is not None: parts.append(f'lgkmcnt({nl})')
        out.append(I('s_waitcnt '+' '.join(parts)))
    for it in items:
        if isinstance(it,tuple):
            q = vm if it[0]=='WVM' else lg
            idx=[k for k,e in enumerate(q) if e[1]==it[1]]
            if idx:
                n=len(q)-1-idx[-1]
                if it[0]=='WVM':
                    assert n<=63,('vmcnt overflow',n); emit_wait(n,None); del vm[:idx[-1]+1]
                else:
                    if any(e[2] for e in lg): n=0
                    if n>15: n=15
                    emit_wait(None,n); del lg[:len(lg)-n]
            continue
        if it.kind=='none': out.append(it); continue
        if it.op=='s_waitcnt':
            m=re.search(r'vmcnt\((\d+)\)',it.text)
            if m: n=int(m.group(1)); del vm[:max(0,len(vm)-n)]
            m=re.search(r'lgkmcnt\((\d+)\)',it.text)
            if m:
                n=int(m.group(1))
                if n==0 or not any(e[2] for e in lg): del lg[:max(0,len(lg)-n)]
            out.append(it); continue
        touch=it.defs|it.uses
        nv=nl=None
        idx=[k for k,e in enumerate(vm) if e[0]&touch]
        if idx:
            nv=len(vm)-1-idx[-1]; assert nv<=63; del vm[:idx[-1]+1]
        idx=[k for k,e in enumerate(lg) if e[0]&touch]
        if idx:
            k=idx[-1]
            while k+1<len(lg) and nmf[0]-lg[k+1][3]>=AGE: k+=1
            nl=len(lg)-1-k
            if any(e[2] for e in lg): nl=0
            if nl>15: nl=15
            del lg[:len(lg)-nl]
        if nv is not None or nl is not None: emit_wait(nv,nl)
        out.append(it)
        if it.kind=='mfma': nmf[0]+=1
        if it.kind=='vmem' and getattr(it,'ghost',0): pass
        elif it.kind=='vmem':
            vm.append((set(it.defs),it.tok,False))
            if len(vm)>63 and verbose: print('note: >63 vmem outstanding at',it.text)
        elif it.kind=='ds': lg.append((set(it.defs),it.tok,False,nmf[0]))
        elif it.kind=='smem' and getattr(it,'light',0): pass
        elif it.kind=='smem': lg.append((set(it.defs),it.tok,True,nmf[0]))
    return out

def need(p,c):
    n=0
    isv=lambda S:{r for r in S if r[0] in 'va'}
    iss=lambda S:{r for r in S if r[0]=='s'}
    if p.kind=='valu':
        pv=isv(p.defs); ps=iss(p.defs)
        if c.kind=='mfma' and pv&c.uses: n=max(n,2)
        if c.kind=='valu':
            if c.op.startswith('v_permlane') and pv&c.uses: n=max(n,2)
            if getattr(c,'dpp',False) and pv&c.uses: n=max(n,2)
            if (c.op.startswith('v_readfirstlane') or c.op.startswith('v_readlane')) and pv&c.uses: n=max(n,1)
            if p.op.replace('_e32','').replace('_e64','') in TRANS and pv&c.uses: n=max(n,1)
            if 'sdwa' in p.text and pv&(c.uses|c.defs): n=max(n,1)
            if ps&c.uses: n=max(n,4 if c.op.startswith(('v_readlane','v_writelane')) else 2)
        if c.kind=='vmem' and ps&c.uses: n=max(n,5)
        if c.kind in('salu','smem') and ps&c.uses: n=max(n,1)
    if p.kind=='valu' and p.op.startswith('v_dot2') and c.kind in('valu','vmem','ds','mfma'):
        if not(c.op==p.op and not (p.defs&regs_of(','.join(c.ops[1:3])))) and p.defs&(c.uses|c.defs): n=max(n,3)
    if p.kind=='mfma':
        big={4:8,8:12}[p.passes]
        if c.kind=='mfma':
            if p.defs&(c.A|c.B): n=max(n,big)
            if p.defs&c.C and not(p.defs==c.C and p.passes==c.passes): n=max(n,{4:6,8:10}[p.passes])
            if p.defs&c.defs and not p.defs&c.C: n=max(n,{4:6,8:10}[p.passes])
        elif c.kind in('valu','vmem','ds'):
            if p.defs&(c.uses|c.defs): n=max(n,big)
            if c.kind=='valu' and p.C&c.defs: n=max(n,{4:3,8:7}[p.passes])
    if p.kind=='vmem' and not p.load and p.wide:
        if p.sdata&c.defs: n=max(n,2)
    if p.kind=='ds' and p.op.startswith('ds_write') and (p.op.endswith('b128') or p.op.endswith('b96')):
        pass
    if p.kind=='salu' and ('s','m0') in p.defs and c.kind=='vmem' and c.dma: n=max(n,1)
    if p.kind=='salu' and ('s','exec') in p.defs and c.kind=='valu' and getattr(c,'dpp',False): n=max(n,0)
    return n

def pad_hazards(items, report=None):
    out=[]
    for it in items:
        if it.kind!='none':
            dist=0; add=0
            for p in reversed(out):
                if dist>=20: break
                if p.kind=='none': continue
                k=need(p,it)
                if k>dist: add=max(add,k-dist)
                dist+=p.states()
            if add:
                if report is not None: report.append((add,it.text))
                out.append(I(f's_nop {add-1}'))
        out.append(it)
    return out

def finish(items, report=None):
    return pad_hazards(resolve(items), report)

def text(items): return '\n'.join(('' if (i.label or i.directive) else '  ')+i.text for i in items)+'\n'

def kernel_file(name, body_text, launch, nvgpr=512, accum=256, nsgpr=102, header=''):
    return (header + launch + '\n.amdgcn_target "amdgcn-amd-amdhsa--gfx950"\n.text\n'
      f'.globl {name}\n.p2align 8\n.type {name},@function\n{name}:\n' + body_text +
      '.section .rodata,"a"\n.p2align 6\n'
      f'.amdhsa_kernel {name}\n  .amdhsa_next_free_vgpr {nvgpr}\n  .amdhsa_next_free_sgpr {nsgpr}\n  .amdhsa_accum_offset {accum}\n'
      '  .amdhsa_group_segment_fixed_size 0\n  .amdhsa_kernarg_size 104\n  .amdhsa_user_sgpr_count 2\n'
      '  .amdhsa_user_sgpr_kernarg_segment_ptr 1\n  .amdhsa_system_sgpr_workgroup_id_x 1\n.end_amdhsa_kernel\n')

def lds_check(items, verbose=True):
    vm=[]; lg=[]; nbar=0; hist=[]; errs=0
    def ov(A,B): return any(a<d and c<b for a,b in A for c,d in B)
    for it in items:
        if it.kind=='none': continue
        if it.op=='s_waitcnt':
            m=re.search(r'vmcnt\((\d+)\)',it.text)
            if m:
                n=int(m.group(1))
                while len(vm)>n: vm.pop(0)['done']=nbar
            m=re.search(r'lgkmcnt\((\d+)\)',it.text)
            if m:
                n=int(m.group(1))
                if n==0 or not any(e['smem'] for e in lg):
                    while len(lg)>n: lg.pop(0)['done']=nbar
            continue
        if it.op=='s_barrier': nbar+=1; continue
        if getattr(it,'light',0) or getattr(it,'ghost',0): continue
        if it.kind in('vmem','ds','smem'):
            rec=dict(done=None,smem=it.kind=='smem',it=it,lr=getattr(it,'lr',None),lw=getattr(it,'lw',None))
            if (it.kind=='ds' or it.dma) and rec['lr'] is None and rec['lw'] is None:
                print("unannotated LDS op:",it.text); errs+=1
            for h in hist:
                safe = h['done'] is not None and h['done']<nbar
                if safe: continue
                if getattr(it,'priv',0) and getattr(h['it'],'priv',0): continue
                if rec['lr'] and h['lw'] and ov(rec['lr'],h['lw']): errs+=1; errs<6 and print("RAW",h['it'].text,h['lw'][:2],"->",it.text,rec['lr'][:2])
                if rec['lw'] and h['lr'] and ov(rec['lw'],h['lr']): errs+=1; errs<6 and print("WAR",h['it'].text,h['lr'][:2],"->",it.text,rec['lw'][:2])
                if rec['lw'] and h['lw'] and ov(rec['lw'],h['lw']) and h['it'].tok!=it.tok: errs+=1; errs<6 and print("WAW",h['it'].text,"->",it.text)
            hist=[h for h in hist if not(h['done'] is not None and h['done']<nbar)]
            if rec['lr'] or rec['lw']: hist.append(rec)
            (vm if it.kind=='vmem' else lg).append(rec)
    return errs
def LR(items,*r):
    for i in (items if isinstance(items,list) else [items]):
        if i.kind=='ds' or i.kind=='vmem': i.lr=list(r)
    return items
def LW(items,*r):
    for i in (items if isinstance(items,list) else [items]):
        if i.kind=='ds' or (i.kind=='vmem' and i.dma): i.lw=list(r)
    return items

class VMM:
    def __init__(s, par): s.par=par; s.q=[]; s.last=-1e9; s.busy=-1e9; s.done={}
    def ready(s,x,t):
        lat,svc,ln=s.par(x); out=[e for e in s.q if e[0]>t]; tot=sum(e[1] for e in out)+(ln if x.load else 0); k=0
        while tot>64 and k<len(out): tot-=out[k][1]; t=out[k][0]; k+=1
        return t
    def issue(s,x,t):
        lat,svc,ln=s.par(x); t=s.ready(x,t); st=max(t,s.busy); s.busy=st+svc; c=max(st+lat,s.last+4); s.last=c; s.q.append((st+lat,ln if x.load else 0)); s.q.sort(); s.q=s.q[-40:]
        if x.tok: s.done[x.tok]=c
        return t
    def backlog(s,x,t):
        return s.busy-t
    def lines(s,x,t): return sum(e[1] for e in s.q if e[0]>t)+s.par(x)[2]

def weave(backbone, streams, slots=2, vm=None, t0=0, log=None):
    S=[list(s) for s in streams]; pos=[0]*len(S); last=[-99]*len(S); lastv=[-99]*len(S); dens=[0]*len(S); done={}
    out=[]; nm=0; i=0; T=[t0]; stalls=[]; vlog=[]
    MARK=('AT','GAP','GAPV','BY','DENS','BK')
    def c1(x):
        if isinstance(x,tuple): return 0.34
        if x.kind=='none': return 0
        if x.kind=='salu' or x.op in('s_waitcnt','s_nop'): return 0.34
        if x.op.startswith('v_permlane'): return 2
        return 1
    def cost(g): return sum(c1(x) for x in g)
    def account(g):
        if vm is None: return
        for x in g:
            if isinstance(x,tuple):
                if x[0]=='WVM' and vm.done.get(x[1],-1e9)>T[0]: stalls.append((nm,x[1],int(vm.done[x[1]]-T[0]))); T[0]=vm.done[x[1]]
            elif x.kind=='vmem' and not getattr(x,'ghost',0):
                t=vm.issue(x,T[0]); vlog.append(f"{nm}:{(x.tok or x.op[7:12])[:7]}@{int(T[0])}>{int(vm.last)}")
                if t>T[0]+1: stalls.append((nm,'cap',int(t-T[0]))); T[0]=t
            elif x.op=='s_barrier': T[0]+=35
    forced=[0]; flog={}
    def flush(k,upto):
        while pos[k]<upto:
            f=S[k][pos[k]]; pos[k]+=1
            if isinstance(f,tuple) and f[0]=='SYNC': done[f[1]]=nm; continue
            if isinstance(f,tuple) and f[0]=='AFTER':
                if f[1] not in done:
                    for k2,s2 in enumerate(S):
                        for p2 in range(pos[k2],len(s2)):
                            if s2[p2]==('SYNC',f[1]): flush(k2,p2+1)
                continue
            if isinstance(f,tuple) and f[0] in MARK: continue
            g=f if isinstance(f,list) else [f]
            out.extend(g); account(g); T[0]+=4*cost(g); forced[0]+=len(g); flog.setdefault((k,nm),[]).append(getattr(g[0],'text',g[0]))
    while i<len(backbone):
        it=backbone[i]
        if isinstance(it,I) and it.kind=='mfma':
            for k,s in enumerate(S):
                idx=[p for p in range(pos[k],len(s)) if isinstance(s[p],tuple) and s[p][0]=='BY' and s[p][1]<=nm]
                if idx: flush(k,idx[-1]+1)
        out.append(it); i+=1
        if not(isinstance(it,I) and it.kind=='mfma'): account([it])
        else:
            nm+=1; used=0; j=i
            while j<len(backbone) and not(isinstance(backbone[j],I) and backbone[j].kind=='mfma'): used+=c1(backbone[j]); j+=1
            free=slots+0.35-used; extra=0; base=slots+0.35; spent=used
            def nextdl(k):
                p=pos[k]; s=S[k]
                while p<len(s):
                    f=s[p]
                    if isinstance(f,tuple):
                        if f[0]=='BK':
                            for q in range(p,len(s)):
                                if isinstance(s[q],tuple) and s[q][0]=='BY': return s[q][1]
                            return 9999
                        if f[0] in('BY','SYNC') or (f[0]=='AT' and nm>=f[1]) or (f[0]=='AFTER' and f[1] in done and nm>=done[f[1]]+(f[2] if len(f)>2 else 0)): p+=1; continue
                        return None
                    if isinstance(f,I) and f.kind=='salu': p+=1; continue
                    return None
                return None
            dls={k:nextdl(k) for k in range(len(S))}; best=min([v for v in dls.values() if v is not None],default=None)
            for k,s in enumerate(S):
                while pos[k]<len(s):
                    f=s[pos[k]]
                    if isinstance(f,tuple) and f[0]=='DENS': dens[k]=f[1]; pos[k]+=1; continue
                    if dens[k]>slots+extra: free+=dens[k]-slots-extra; extra=dens[k]-slots
                    if free<=0: break
                    if isinstance(f,tuple) and f[0]=='AT':
                        if nm>=f[1]: pos[k]+=1; continue
                        break
                    if isinstance(f,tuple) and f[0]=='GAP':
                        if nm-last[k]>=f[1]: pos[k]+=1; continue
                        break
                    if isinstance(f,tuple) and f[0]=='BY': pos[k]+=1; continue
                    if isinstance(f,tuple) and f[0]=='GAPV':
                        if nm-lastv[k]>=f[1]: pos[k]+=1; continue
                        break
                    if isinstance(f,tuple) and f[0]=='BK':
                        x=s[pos[k]+1]
                        if vm is None or (vm.backlog(x,T[0])<=f[1] and vm.lines(x,T[0])<=f[2] and (dls[k] is None or dls[k]<=best)): pos[k]+=1; continue
                        break
                    if isinstance(f,tuple) and f[0]=='SYNC': done.setdefault(f[1],nm); pos[k]+=1; continue
                    if isinstance(f,tuple) and f[0]=='AFTER':
                        if f[1] in done and nm>=done[f[1]]+(f[2] if len(f)>2 else 0): pos[k]+=1; continue
                        break
                    g=f if isinstance(f,list) else [f]
                    if vm is not None and any(isinstance(x,tuple) and x[0]=='WVM' and vm.done.get(x[1],-1e9)>T[0] for x in g): break
                    c=cost(g)
                    if c>free and not(isinstance(f,list) and c<=free+1.4) and not(free>=base): break
                    out.extend(g); account(g); free-=c; spent+=c; pos[k]+=1; last[k]=nm
                    if any(isinstance(x,I) and x.kind=='vmem' for x in g): lastv[k]=nm
            T[0]+=16.6+max(0,spent-2.4)*4
    rest=[]
    progress=True
    while progress:
        progress=False
        for k,s in enumerate(S):
            while pos[k]<len(s):
                f=s[pos[k]]
                if isinstance(f,tuple) and f[0]=='AFTER' and f[1] not in done: break
                pos[k]+=1; progress=True
                if isinstance(f,tuple) and f[0]=='SYNC': done[f[1]]=nm; continue
                if isinstance(f,tuple) and f[0] in MARK+('AFTER',): continue
                rest.extend(f if isinstance(f,list) else [f])
    assert all(pos[k]==len(S[k]) for k in range(len(S)))
    out=order_gaps(out)
    if log is not None:
        print(f"  [{log}] model {int(T[0]-t0)} cyc, stalls {stalls}, sync {done}")
        if log.endswith('!'): print('     ',' '.join(vlog))
        if forced[0]: print("      forced:",{k:(len(v),v[0][:24] if isinstance(v[0],str) else v[0]) for k,v in flog.items()})
    return out,rest
def bk(items,c,cap=64):
    out=[]
    for it in items:
        if isinstance(it,I) and it.kind=='vmem': out.append(('BK',c,cap))
        out.append(it)
    return out
def paced(items,gap):
    out=[]
    for it in items:
        if isinstance(it,I) and it.kind=='vmem': out.append(('GAPV',gap))
        out.append(it)
    return out

def sprinkle(main, extra, every):
    out=[]; extra=list(extra); n=0
    for it in main:
        out.append(it); n+=1
        if n%every==0 and extra:
            while extra:
                x=extra.pop(0); out.append(x)
                if isinstance(x,I) and x.kind=='vmem': break
    return out, extra

def _rank(x):
    if isinstance(x,tuple): return 0
    if x.kind in('salu',) or x.op in('s_waitcnt','s_nop'): return 0
    if x.kind in('ds','vmem','smem'): return 1
    if x.kind=='valu': return 2
    return None
def _scc_def(x): return x.kind=='salu' and not x.op.startswith(('s_mov','s_mul_i32','s_cselect','s_getreg','s_movk','s_bitset'))
def _scc_use(x): return x.op.startswith(('s_cselect','s_addc','s_cbranch_scc'))
def _indep(x,y):
    if isinstance(x,tuple):
        if isinstance(y,tuple): return False
        if x[0]=='WLG': return not(y.kind=='ds' and y.tok==x[1])
        if x[0]=='WVM': return not(y.kind=='vmem' and y.tok==x[1])
        return False
    if isinstance(y,tuple): return False
    if x.op in('s_waitcnt','s_nop') or y.op in('s_waitcnt','s_nop'): return False
    if (x.defs&(y.defs|y.uses)) or (x.uses&y.defs): return False
    if (_scc_use(x) and _scc_def(y)) or (_scc_def(x) and (_scc_use(y) or False)): return False
    return True
def order_gaps(items):
    out=[]; gap=[]; seen=False
    def flush():
        g=gap[:]
        for i in range(1,len(g)):
            j=i
            while j>0:
                a,b=_rank(g[j]),_rank(g[j-1])
                if a is None or b is None or a>=b or not _indep(g[j],g[j-1]): break
                g[j],g[j-1]=g[j-1],g[j]; j-=1
        out.extend(g); gap.clear()
    for it in items:
        if isinstance(it,I) and it.kind=='mfma':
            if seen and len(gap)<=8: flush()
            else: out.extend(gap); gap.clear()
            out.append(it); seen=True
        else: gap.append(it)
    out.extend(gap)
    return out
```

```python
import sys, os
from asmlib import *
from layout import *

NAME="interleave_layers__ssm_conv_h3__glu_gated_reglu__prompt_kernel"
CFG=dict(a1xl0=30, tin=100, mH=1300, hold=1, hca0=24, dens0=5, mW2=75, hat=2, hmid=100, bk=60, bkw=60, capw=64, mL=350, mLs=80, mM=600, mMs=95, mW=850, mS=600, mS1=1050, ssmat=0, nth=1, ntx=2, wbat=24, wbid=0, ppat=1, tat=1, pkat=2, fbpre=1, cg0=30, gbt0=28, xg0=16, w2af='irest', densb=4, qat=1, gbs5=8, la=12, clr=1, utouch=0, f1max=2048, cann=56, plan=8, chl=56, cla=9, cdens=3, cslots=2, chc=28, cack=56, rot=1, cm2=70, cm3=120, a0l=1, a0c=24, a1xl=18, dens=5, fl=30, fl0=52, hca=18, hcg=22, g1=4, g2=5, g3=4, dens1=3, gahl=16, gahc=14, hbgap=4, tev=6, tev2=5, dens2=8, densa=5, exg=2, exg2=4, gbl=16, gbc=14, gbt=28, gbxl=20, b0hl=80, w2at=1, w2gap=5, w2lead=32, rrest=56, cgap=5, warm=1, stamps=0, stop=None, slow=1, prefetch=1, touch=6, dgather=1, dstage=1, wbl2=0, outsc=2)
for a_ in sys.argv[2:]:
    k,v=a_.split('='); CFG[k]=int(v) if v.lstrip('-').isdigit() else v

sX,sR,sWV,sG,sM,sRH,sCT2,sKH,sCHH,sTAG,sHELLO=4,5,6,7,8,9,10,11,12,13,14
sT0,sT1,sT2,sT3=3,15,60,61
sCNT=62; sSOFF=63
WS,SK_,SV_,SQ_,SH_,SWG,SWU,SWD,SO_,SSK,SD_=16,20,24,28,32,36,40,44,48,52,56
srd=lambda b:f"s[{b}:{b+3}]"
sXW,sHW,sHK,sHS,sXS,sFL,sGR,sS5,sGRl,sS5l=64,65,66,67,68,69,70,71,72,73
sW1W,sWo,sHF,sW2B=74,75,76,77
sPS,sPD,sPF,sW20=56,57,58,59
sCK1,sCK2,sCK3,sQ=20,21,24,25
sCH,sUO,sMB=26,27,0
sMODE=34; sFLH=23; sC4,sC3,sM4,sM3=52,53,54,55
sFLG=1
STAMP0=78
Q=[0,32768,65536,98304,131072]
TCP=4160; TCH=4*TCP; L_TOEP=0
L_U=2*TCH; UCH=4608
L_K=L_U+2*UCH; CHP=1056; L_V=L_K+9*CHP
L_CX=L_K
L_YS=0
L_WS=65536; WSL=24576
SLOT=[L_WS+k*WSL for k in range(4)]
L_PP=SLOT[3]
SLOT=SLOT[:3]+[8192,36864,L_PP]
vL=1; vOne=2; vTok=3; vGs=4; vGl=5; vS5s=6; vS5l=7; vXD=8; vHD=9; vHS1=10; vHS2=11; vFX=12; vFH=13
vTAG=14; vR2=15
vXst=[16,24]; vYY=[32,36]
ACC0,ACC1,FR,vA0,vA1,EP,PT=40,64,88,112,113,114,122
vW2,vT2,vWc0=126,127,128
vW1=[129,130,131]; vTa,vTm,vWc1=132,133,134
vLane,vJ,vQ,vYo,vD=135,136,137,138,139
vCg,vCs=124,125
vHa=15
vCXw,vCXo,vCXp,vKV,vGA,vGW,vGT,vFT=160,161,162,163,164,165,166,167
vKD,vUP,vPK,vGD,vGC,vQT,vTch=168,172,176,184,192,196,193
W2V=144; W2A=192
def W1(s,t): b=(s*3+t)*4; return f"a[{b}:{b+3}]"
def W1h(s,t,hh): b=(s*3+t)*4+2*hh; return f"a[{b}:{b+1}]"
def W2(i,t):
    k=(i*2+t)*4
    return f"v[{W2V+k}:{W2V+k+3}]" if k<112 else f"a[{W2A+k-112}:{W2A+k-112+3}]"
def W2h(i,t,hh):
    k=(i*2+t)*4+2*hh
    return f"v[{W2V+k}:{W2V+k+1}]" if k<112 else f"a[{W2A+k-112}:{W2A+k-112+1}]"
V=lambda b,n=4: f"v[{b}:{b+n-1}]"
OOB=0x7FFFFF00
vST=lambda: 140 if CFG.get('trace')=='CV' else 139
POLLMAX=1<<16
def M(text,tok=None): return [mk(l.strip(),tok) for l in text.split('\n') if l.strip()]
BAR=lambda *pre: list(pre)+[mk("s_barrier")]

trace_names=[]; stamp_names=[]; site_names=[]
class G(Asm):
    def __init__(s,tag='',sc=''):
        super().__init__(); s.tag=tag; s.sc=sc; s.ool=[]
    def st(s,name,grp='m'):
        if not CFG['stamps'] or s.tag=='S': return []
        if grp!='*' and not any(c in str(CFG['stamps']) for c in grp): return []
        stamp_names.append(name); i=len(stamp_names)-1
        assert i<20, "too many stamps"
        return M(f"{'s_memtime' if CFG.get('clk') else 's_memrealtime'} s[100:101]\ns_waitcnt lgkmcnt(0)\ns_mov_b32 s{STAMP0+i}, s100")
    def trace(s, items, every, name):
        if s.tag=='S' or CFG.get('trace')!=name: return items
        out=[]; n=0
        for it in items:
            out.append(it)
            if isinstance(it,I) and it.kind=='mfma':
                if n%every==0: out+=s.light(f"{name}+{n}")
                n+=1
        return out+s.light(name+" end")+M("s_nop 15\ns_nop 15\ns_nop 15\ns_nop 15")+s.light(None)+s.light(None)
    def light(s,name):
        k=len(trace_names); trace_names.append(name or "")
        L=[]
        if name: x=mk(f"s_memtime s[{90+2*(k%3)}:{91+2*(k%3)}]"); x.light=1; x.defs=set(); L.append(x)
        if k>=2: L+=M(f"v_writelane_b32 v{vST()}, s{90+2*((k-2)%3)}, {k-2}")
        return L
    def stamp(s,name,grp='m'): s.ext(s.st(name,grp))
    def lr(s,n,*r): LR([i for i in s.L[-n:] if isinstance(i,I)],*r)
    def lw(s,n,*r): LW([i for i in s.L[-n:] if isinstance(i,I)],*r)
    def label(s,p): s.nlab+=1; return f"L{s.tag}_{p}_{s.nlab}"
    def check(s, loads, checks, name):
        R=s.label(name+'r'); L=s.label(name+'l'); B=s.label(name+'b')
        o=Asm(); o.lab(R); o(f"s_mov_b32 s{sCNT}, 0")
        if CFG['stamps'] and s.tag!='S':
            n=len(site_names); site_names.append(name); o(f"s_bitset1_b32 s98, {n}")
        o.lab(L)
        for l in loads: o(l)
        o("s_waitcnt vmcnt(0)")
        for c in checks: o(c)
        o(f"s_cbranch_vccz {B}\ns_add_u32 s{sCNT}, s{sCNT}, 1\ns_cmp_lt_u32 s{sCNT}, {POLLMAX}\ns_cbranch_scc1 {L}\ns_branch {B}")
        s.ool.append(o.L)
        ck=[mk(c) for c in checks]
        return [mk(l,R) for l in loads], [('WVM',R)]+ck[:-1]+[[ck[-1],mk(f"s_cbranch_vccnz {R}"),mk(B+":")]]
    def flat(s, items):
        for it in items:
            if isinstance(it,list): s.ext(it)
            elif isinstance(it,tuple) and it[0] in('AT','GAP','GAPV','SYNC','AFTER','BY','DENS','BK'): pass
            else: s.L.append(it)
    def weave(s, bb, *streams, slots=2, name=None):
        out,rest=weave(bb,streams,slots)
        s.ext(s.trace(out,CFG.get('tev_',4),name) if name else out); s.ext(rest)
        if rest and CFG.get('v'): print("  leftover fillers:",len(rest),[getattr(r,'text',r) for r in rest[:2]])

def entry(a):
    a.stamp("entry","*")
    if CFG["stamps"]: a("s_memtime s[100:101]\ns_waitcnt lgkmcnt(0)\ns_mov_b32 s99, s100\ns_mov_b32 s98, 0")
    a("s_cmp_ge_u32 s2, 256\ns_cbranch_scc1 L_end")
    for b,off in ((SK_,8),(SV_,16),(WS,96),(SSK,24),(SH_,32),(SD_,40),(SQ_,0),(SWG,56),(SWU,64),(SWD,72),(SO_,80)):
        a(f"s_load_dwordx2 s[{b}:{b+1}], s[0:1], {off}")
    a(f"v_lshrrev_b32 v40, 6, v0\nv_and_b32 v{vLane}, 63, v0")
    a(f"s_and_b32 s{sX}, s2, 7\ns_lshr_b32 s{sR}, s2, 3")
    a(f"v_readfirstlane_b32 s{sWV}, v40")
    a(f"v_lshlrev_b32 v{vL}, 4, v{vLane}")
    if CFG['prefetch']:
        a(f"s_getpc_b64 s[{sT2}:{sT2+1}]")
        a("L_pc:")
        a(f"s_lshl_b32 s{sT0}, s{sWV}, 5\ns_add_u32 s{sT0}, s{sT0}, s{sR}\ns_lshl_b32 s{sT0}, s{sT0}, 10")
        a(f"v_add_u32 v42, s{sT0}, v{vL}\nv_min_u32 v42, L_fast_end-L_pc-16, v42")
        a(f"v_mov_b32 v43, s{sT2+1}\nv_add_co_u32 v42, vcc, s{sT2}, v42")
        a(f"v_lshrrev_b32 v48, 3, v{vLane}\nv_and_b32 v49, 7, v{vLane}")
        a("v_addc_co_u32 v43, vcc, 0, v43, vcc")
        a("global_load_dwordx4 v[44:47], v[42:43], off")
    else:
        a(f"v_lshrrev_b32 v48, 3, v{vLane}\nv_and_b32 v49, 7, v{vLane}")
    a(f"v_lshlrev_b32 v49, 4, v49\nv_lshl_add_u32 v{vW2}, v48, 10, v49")
    a(f"s_lshl_b32 s{sT0}, s{sR}, 16\ns_lshl_b32 s{sT1}, s{sX}, 7\ns_add_u32 s{sT0}, s{sT0}, s{sT1}")
    a(f"s_sub_u32 s{sT1}, s{sT0}, 8192\nv_add_u32 v49, s{sT1}, v{vW2}")
    a(f"s_lshl_b32 s{sT1}, s{sWV}, 13\ns_add_u32 s{sT0}, s{sT0}, s{sT1}\nv_add_u32 v48, s{sT0}, v{vW2}")
    a(f"s_mul_i32 s{sT1}, s{sWV}, {CHP}\ns_mov_b32 s{sSOFF}, 32768")
    for b,n in ((SK_,2<<20),(SV_,2<<20),(WS,256<<20),(SSK,4096)):
        a(f"s_mov_b32 s{b+2}, {n}\ns_mov_b32 s{b+3}, 0x20000")
    a(f"v_and_b32 v{vJ}, 15, v{vLane}\nv_lshrrev_b32 v{vQ}, 4, v{vLane}")
    a(f"s_lshl_b32 s{sT0}, s{sX}, 6\ns_lshl_b32 s{sT2}, s{sWV}, 4\ns_add_u32 s{sT0}, s{sT0}, s{sT2}\nv_add_u32 v55, s{sT0}, v{vJ}")
    a(f"v_lshlrev_b32 v78, 3, v55\nv_mov_b32 v50, 0")
    a(f"s_add_u32 m0, s{sT1}, {L_K+CHP}\ns_mov_b32 s{sT2}, {L_V+8*CHP}")
    a("s_waitcnt lgkmcnt(0)"); a.stamp("kernarg","f")
    if CFG.get('probe'):
        if CFG['probe']==1: a("s_load_dwordx2 s[96:97], s[0:1], 48\ns_waitcnt lgkmcnt(0)\ns_mov_b32 s98, 0x200000\ns_mov_b32 s99, 0x20000"); S="s[96:99]"; base=0
        else: S=srd(WS); base=CFG['probe']<<24
        a(f"s_lshl_b32 s95, s2, 2\ns_add_u32 s95, s95, s{sWV}\ns_lshl_b32 s95, s95, 11\ns_add_u32 s95, s95, {base}\nv_mov_b32 v60, s95")
        for i in range(16):
            a(f"buffer_load_dword v61, v60, {S}, 0 offen offset:{128*i}\nv_and_b32 v61, 0, v61\nv_add_u32 v60, v60, v61")
    a(f"buffer_load_dwordx4 v48, {srd(SK_)}, 0 offen lds","kv")
    a(f"s_add_u32 m0, s{sT1}, {L_V}");       a(f"buffer_load_dwordx4 v48, {srd(SV_)}, 0 offen lds","kv")
    a(f"s_add_u32 m0, s{sT1}, {L_K+5*CHP}"); a(f"buffer_load_dwordx4 v48, {srd(SK_)}, s{sSOFF} offen lds","kv")
    a(f"s_add_u32 m0, s{sT1}, {L_V+4*CHP}"); a(f"buffer_load_dwordx4 v48, {srd(SV_)}, s{sSOFF} offen lds","kv")
    a(f"s_cmp_eq_u32 s{sWV}, 3\ns_cselect_b32 m0, {L_K}, s{sT2}\ns_cselect_b32 s{sSOFF}, 0, {OOB}")
    a(f"buffer_load_dwordx4 v49, {srd(SK_)}, s{sSOFF} offen lds","kv")
    a.lw(13,(L_K,L_V+8*CHP+1024))
    a(f"buffer_load_dwordx2 {V(80,2)}, v78, {srd(SSK)}, 0 offen")
    a(f"buffer_load_dword v51, v50, {srd(WS)}, 0 offen sc1")
    a.stamp("kv issued","f")
    for b,n in ((SH_,4096),(SD_,1024),(SQ_,2<<20),(SWG,512*1376*2),(SWU,512*1376*2),(SWD,512*1376*2),(SO_,2<<20)):
        a(f"s_mov_b32 s{b+2}, {n}\ns_mov_b32 s{b+3}, 0x20000")
    a(f"""s_lshr_b32 s{sT0}, s{sR}, 4
        s_lshl_b32 s{sG}, s{sX}, 1
        s_add_u32 s{sG}, s{sG}, s{sT0}
        s_and_b32 s{sM}, s{sR}, 15
        s_lshr_b32 s{sRH}, s{sM}, 3
        s_and_b32 s{sCT2}, s{sM}, 7
        s_lshr_b32 s{sKH}, s{sWV}, 1
        s_and_b32 s{sCHH}, s{sWV}, 1
        s_mov_b32 s{sMB}, 0x100000""")
    a(f"s_cmp_eq_u32 s{sM}, 15\ns_cselect_b32 s{SWG+2}, 0, s{SWG+2}\ns_cselect_b32 s{SWU+2}, 0, s{SWU+2}")
    a(f"s_lshl_b32 s{sT0}, s{sX}, 6\ns_lshl_b32 s{sT1}, s{sR}, 1\ns_add_u32 s{sT0}, s{sT0}, s{sT1}\ns_add_u32 s{sT2}, s{sT0}, s{sKH}")
    a(f"s_lshl_b32 s{sT0}, s{sT2}, 12\ns_add_u32 s{SH_}, s{SH_}, s{sT0}\ns_addc_u32 s{SH_+1}, s{SH_+1}, 0")
    a(f"s_lshl_b32 s{sT0}, s{sCHH}, 11\nv_add_u32 v52, s{sT0}, v{vL}")
    a(f"v_min_u32 v53, 1, v{vLane}\nv_lshlrev_b32 v53, 4, v53\nv_subrev_u32 v53, 32, v53")
    a(f"s_lshl_b32 s{sT0}, s{sT2}, 1\nv_mov_b32 v{vD}, s{sT0}")
    if CFG['ssmat']==0: ssm_loads(a)
    a(f"""v_and_b32 v96, 1, v{vQ}
        v_lshlrev_b32 v96, 2, v96
        v_lshrrev_b32 v97, 2, v{vJ}
        v_add_u32 v96, v96, v97
        v_lshlrev_b32 v96, 16, v96
        v_and_b32 v97, 3, v{vJ}
        v_lshl_add_u32 v96, v97, 5, v96
        v_lshrrev_b32 v97, 1, v{vQ}
        v_lshl_add_u32 v96, v97, 4, v96
        s_lshl_b32 s{sT0}, s{sCHH}, 19
        s_lshl_b32 s{sT1}, s{sT2}, 7
        s_add_u32 s{sT0}, s{sT0}, s{sT1}
        s_add_u32 s{sT0}, s{sT0}, {OFF_YT}
        v_add_u32 v{vYo}, s{sT0}, v96
        s_mov_b32 s{sHELLO}, s{sT2}""")
    a(f"v_mov_b32 v{vOne}, {OOB}\nv_cmp_eq_u32 vcc, 0, v{vLane}\nv_cndmask_b32 v{vOne}, v{vOne}, v50, vcc")
    a(f"""s_lshl_b32 s{sT0}, s{sG}, 2
        s_lshl_b32 s{sT1}, s{sRH}, 1
        s_add_u32 s{sT1}, s{sT1}, s{sKH}
        s_add_u32 s{sT0}, s{sT0}, s{sT1}
        s_lshl_b32 s{sT1}, s{sKH}, 1
        s_add_u32 s{sT1}, s{sT1}, s{sRH}""")
    a(f"""s_lshl_b32 s{sGRl}, s{sT0}, 12
        s_add_u32 s{sGRl}, s{sGRl}, {OFF_GRAN}
        s_lshl_b32 s{sS5l}, s{sT0}, 10
        s_add_u32 s{sS5l}, s{sS5l}, {OFF_S5}
        s_lshl_b32 s{sT3}, s{sCT2}, 1
        s_add_u32 s{sT3}, s{sT3}, s{sCHH}""")
    a(f"""s_lshl_b32 s{sGR}, s{sT3}, 8
        s_add_u32 s{sGR}, s{sGR}, s{sGRl}
        s_lshl_b32 s{sS5}, s{sT3}, 2
        s_add_u32 s{sS5}, s{sS5}, s{sS5l}
        s_lshl_b32 s{sXS}, s{sG}, 17
        s_lshl_b32 s{sT1}, s{sT1}, 14
        s_add_u32 s{sXS}, s{sXS}, s{sT1}
        s_lshl_b32 s{sT1}, s{sX}, {1 if CFG['rot'] else 8}
        s_sub_u32 s{sT1}, s{sT3}, s{sT1}
        s_and_b32 s{sT1}, s{sT1}, 15
        s_lshl_b32 s{sT1}, s{sT1}, 10
        s_add_u32 s{sXS}, s{sXS}, s{sT1}
        s_add_u32 s{sXS}, s{sXS}, {OFF_XF}
        s_lshl_b32 s{sT0}, s{sT0}, 14
        s_lshl_b32 s{sT1}, s{sT3}, 6
        s_add_u32 s{sT0}, s{sT0}, s{sT1}""")
    a(f"v_lshlrev_b32 v{vTok}, 10, v{vJ}\nv_lshl_add_u32 v{vTok}, v{vQ}, 4, v{vTok}\nv_add_u32 v{vTok}, s{sT0}, v{vTok}")
    a(f"v_lshlrev_b32 v{vGs}, 4, v{vJ}\nv_lshl_add_u32 v{vGl}, v{vQ}, 10, v{vGs}\nv_lshl_add_u32 v{vGs}, v{vQ}, 2, v{vGs}")
    a(f"v_lshlrev_b32 v{vS5l}, 6, v{vJ}\nv_mov_b32 v{vS5s}, {OOB}\nv_cmp_eq_u32 vcc, 0, v{vQ}\nv_cndmask_b32 v{vS5s}, v{vS5s}, v{vS5l}, vcc")
    a(f"v_lshl_add_u32 v{vS5l}, v{vQ}, 4, v{vS5l}")
    a(f"s_lshl_b32 s{sT0}, s{sX}, 5\ns_add_u32 s{sT0}, s{sT0}, s{sR}\ns_lshl_b32 s{sHF}, s{sT0}, 7\ns_lshl_b32 s{sT0}, s{sWV}, 2\ns_add_u32 s{sHF}, s{sHF}, s{sT0}\ns_add_u32 s{sHF}, s{sHF}, {OFF_HELLO}")
    a(f"""s_lshl_b32 s{sXW}, s{sCHH}, 14
        s_lshl_b32 s{sT0}, s{sKH}, 12
        s_add_u32 s{sXW}, s{sXW}, s{sT0}
        s_lshl_b32 s{sT0}, s{sG}, 17
        s_add_u32 s{sT0}, s{sT0}, s{sXW}
        s_add_u32 s{sT0}, s{sT0}, {OFF_XF}
        v_add_u32 v{vXD}, s{sT0}, v{vL}
        s_lshl_b32 s{sHW}, s{sWV}, 13
        s_mul_i32 s{sHK}, s{sKH}, {3*8192}
        s_lshl_b32 s{sHS}, s{sKH}, 13
        s_add_u32 s{sHS}, s{sHS}, 8192
        s_lshl_b32 s{sT0}, s{sG}, 3
        s_add_u32 s{sT1}, s{sRH}, s{sT0}
        s_mul_i32 s{sT1}, s{sT1}, {HKS}
        s_mul_i32 s{sT3}, s{sKH}, 21
        s_add_u32 s{sT1}, s{sT1}, s{sT3}
        s_lshl_b32 s{sT1}, s{sT1}, 10
        s_add_u32 s{sT1}, s{sT1}, {OFF_H}
        v_add_u32 v{vHD}, s{sT1}, v{vL}""")
    a(f"""s_mul_i32 s{sT0}, s{sT0}, {HKS*1024}
        s_mul_i32 s{sT1}, s{sM}, 12
        s_mul_i32 s{sT3}, s{sWV}, 3
        s_add_u32 s{sT1}, s{sT1}, s{sT3}
        s_lshl_b32 s{sT1}, s{sT1}, 8
        s_add_u32 s{sT0}, s{sT0}, s{sT1}
        s_add_u32 s{sT0}, s{sT0}, {OFF_H}
        s_mov_b32 s{sT1}, {HKS*1024}
        v_lshlrev_b32 v97, 4, v{vJ}
        v_add_u32 v97, s{sT0}, v97
        v_and_b32 v98, 1, v{vQ}
        v_mad_u32_u24 v{vHS1}, v98, s{sT1}, v97
        v_add_u32 v{vHS2}, 512, v{vHS1}
        v_cmp_gt_u32 vcc, 32, v{vLane}
        v_mov_b32 v97, {OOB}
        v_cndmask_b32 v{vHS2}, v97, v{vHS2}, vcc
        v_lshrrev_b32 v98, 1, v{vQ}
        v_lshl_add_u32 v{vHS1}, v98, 8, v{vHS1}
        v_lshlrev_b32 v{vFX}, 2, v{vLane}
        v_min_u32 v{vFH}, 57, v{vLane}
        v_lshlrev_b32 v{vFH}, 2, v{vFH}
        s_lshl_b32 s{sFL}, s{sG}, 9
        s_lshl_b32 s{sFLG}, s{sM}, 2
        s_add_u32 s{sFLG}, s{sFLG}, s{sWV}
        s_lshl_b32 s{sFLG}, s{sFLG}, 2
        s_add_u32 s{sFLG}, s{sFLG}, s{sFL}
        s_nop 0""")
    w_setup(a)
    a(f"""v_mul_u32_u24 v83, {2*CHP}, v{vQ}
        v_bfe_u32 v101, v{vLane}, 2, 2
        v_lshl_add_u32 v83, v101, 7, v83
        v_and_b32 v101, 3, v{vLane}
        v_lshl_add_u32 v83, v101, 3, v83
        s_lshl_b32 s{sT0}, s{sWV}, 5
        v_add_u32 v83, s{sT0}, v83""")
    a(f"v_and_b32 v55, -9, v55\nv_lshlrev_b32 v55, 12, v55\nv_lshl_add_u32 v55, v{vQ}, 5, v55\nv_lshrrev_b32 v101, 3, v{vJ}\nv_lshl_add_u32 v55, v101, 4, v55\ns_lshl_b32 s{sT0}, s{sR}, 7\ns_add_u32 s{sT0}, s{sT0}, {OFF_KVT}\nv_add_u32 v55, s{sT0}, v55")
    a(f"v_lshrrev_b32 v100, 5, v{vLane}\nv_mul_u32_u24 v100, {UCH-512}, v100\nv_add_u32 v100, v100, v{vL}")
    a("v_mov_b32 v104, 0\nv_mov_b32 v105, 0\nv_mov_b32 v106, 0\nv_mov_b32 v107, 0")
    a(f"ds_write_b128 v100, {V(104)} offset:{L_U}"); a.lw(1,(L_U,L_U+512),(L_U+UCH,L_U+UCH+512))
    a(f"""s_lshl_b32 s{sT0}, s{sWV}, 12
        s_add_u32 s{sT1}, s{sT0}, {L_CX}
        v_add_u32 v{vCXw}, s{sT1}, v{vL}
        s_lshl_b32 s{sT2}, s{sCHH}, 11
        v_add_u32 v{vCXo}, s{sT2}, v{vCXw}
        v_xor_b32 v{vCXp}, 4096, v{vL}
        s_xor_b32 s{sT0}, s{sT0}, 4096
        s_add_u32 s{sT0}, s{sT0}, s{sT2}
        s_add_u32 s{sT0}, s{sT0}, {L_CX}
        v_add_u32 v{vCXp}, s{sT0}, v{vL}
        s_lshl_b32 s{sT0}, s{sCHH}, 10
        s_mul_i32 s{sT1}, s{sKH}, {UCH}
        s_add_u32 s{sT0}, s{sT0}, s{sT1}
        s_add_u32 s{sT0}, s{sT0}, {L_U+512+8}
        v_lshlrev_b32 v{vKV}, 5, v{vJ}
        v_lshrrev_b32 v100, 1, v{vQ}
        v_lshl_add_u32 v{vKV}, v100, 4, v{vKV}
        v_and_b32 v100, 1, v{vQ}
        v_lshlrev_b32 v100, 3, v100
        v_sub_u32 v{vKV}, v{vKV}, v100
        v_add_u32 v{vKV}, s{sT0}, v{vKV}
        v_lshrrev_b32 v100, 2, v0
        v_lshlrev_b32 v100, 7, v100
        v_and_b32 v101, 3, v0
        v_lshl_add_u32 v100, v101, 4, v100
        s_lshl_b32 s{sT0}, s{sG}, 16
        s_lshl_b32 s{sT1}, s{sCT2}, 13
        s_add_u32 s{sT0}, s{sT0}, s{sT1}
        s_lshl_b32 s{sT1}, s{sRH}, 6
        s_add_u32 s{sT0}, s{sT0}, s{sT1}
        s_add_u32 s{sT0}, s{sT0}, {OFF_YT}
        v_add_u32 v{vGA}, s{sT0}, v100
        v_lshlrev_b32 v{vGW}, 4, v0
        v_bfe_u32 v100, v{vLane}, 2, 2
        v_lshl_add_u32 v100, v{vQ}, 3, v100
        v_lshlrev_b32 v100, 6, v100
        v_and_b32 v101, 3, v{vLane}
        v_lshl_add_u32 v100, v101, 3, v100
        s_lshl_b32 s{sT0}, s{sCHH}, 11
        s_lshl_b32 s{sT1}, s{sKH}, 5
        s_add_u32 s{sT0}, s{sT0}, s{sT1}
        v_add_u32 v{vGT}, s{sT0}, v100
        v_and_b32 v100, 7, v{vLane}
        v_lshlrev_b32 v100, 7, v100
        v_bfe_u32 v101, v{vLane}, 3, 2
        v_lshl_add_u32 v100, v101, 14, v100
        s_lshl_b32 s{sT0}, s{sFL}, 1
        s_add_u32 s{sT0}, s{sT0}, {OFF_XFLAG}
        v_add_u32 v{vFT}, s{sT0}, v100
        v_and_b32 v100, 31, v{vLane}
        v_lshlrev_b32 v100, 7, v100
        v_cmp_gt_u32 vcc, 32, v{vLane}
        s_lshl_b32 s{sT0}, s{sCT2}, 12
        s_lshl_b32 s{sT1}, s{sX}, 12
        v_mov_b32 v101, s{sT0}
        v_mov_b32 v102, s{sT1}
        v_cndmask_b32 v101, v101, v102, vcc
        v_add_u32 v100, {OFF_HELLO}, v100
        v_add_u32 v{vHa}, v100, v101""")
    a(f"""s_lshl_b32 s{sT0}, s{sHELLO}, 12
        s_lshl_b32 s{sT1}, s{sCHH}, 11
        s_add_u32 s{sT0}, s{sT0}, s{sT1}
        s_add_u32 s{sT0}, s{sT0}, {OFF_KVT}
        v_lshlrev_b32 v100, 7, v{vLane}
        v_add_u32 v100, s{sT0}, v100
        s_lshr_b32 s{sT0}, s{sR}, 3
        s_lshl_b32 s{sT1}, s{sX}, 2
        s_add_u32 s{sT0}, s{sT0}, s{sT1}
        s_lshl_b32 s{sT0}, s{sT0}, 7
        s_add_u32 s{sT0}, s{sT0}, {OFF_F1L}
        v_mov_b32 v101, s{sT0}
        v_cmp_gt_u32 vcc, 16, v{vLane}
        v_cndmask_b32 v{vTch}, v101, v100, vcc""")
    if CFG['utouch']==0: a(f"buffer_load_dword v{vTch}, v{vTch}, {srd(WS)}, 0 offen sc1")
    if CFG['ssmat']==1: ssm_loads(a)
    a(f"""v_lshlrev_b32 v{vCg}, 4, v{vJ}
        v_lshl_add_u32 v{vCg}, v{vQ}, 18, v{vCg}
        v_lshrrev_b32 v{vCs}, 3, v{vLane}
        v_lshlrev_b32 v{vCs}, 16, v{vCs}
        v_and_b32 v100, 7, v{vLane}
        v_lshl_add_u32 v{vCs}, v100, 4, v{vCs}
        s_lshl_b32 s{sT0}, s{sCHH}, 17
        s_lshl_b32 s{sT1}, s{sCT2}, 7
        s_add_u32 s{sT0}, s{sT0}, s{sT1}
        s_add_u32 s{sT0}, s{sT0}, s{sS5l}
        v_add_u32 v{vCs}, s{sT0}, v{vCs}
        v_cmp_gt_u32 vcc, 16, v{vLane}
        v_mov_b32 v100, {OOB}
        v_add_u32 v{vCg}, s{sGR}, v{vCg}
        v_cndmask_b32 v{vCs}, v100, v{vCs}, vcc""")
    if CFG['clr']==0: clears(a)
    a.stamp("setup done","f")

def ssm_loads(a):
    a(f"s_mul_i32 s{sT0}, s{sKH}, {UCH}\ns_lshl_b32 s{sT1}, s{sCHH}, 11\ns_add_u32 s{sT0}, s{sT0}, s{sT1}\ns_add_u32 m0, s{sT0}, {L_U+512}")
    a(f"buffer_load_dwordx4 v{vL}, {srd(SH_)}, s{sT1} offen lds\nbuffer_load_dwordx4 v{vL}, {srd(SH_)}, s{sT1} offen offset:1024 lds","ssm")
    a.lw(2,(L_U+512,L_U+UCH),(L_U+UCH+512,L_U+2*UCH))
    a(f"buffer_load_ushort v{vD}, v{vD}, {srd(SD_)}, 0 offen")

def clears(a,tok=None):
    a("v_mov_b32 v112, -1\nv_mov_b32 v113, -1\nv_mov_b32 v114, -1\nv_mov_b32 v115, -1")
    a(f"""buffer_store_dwordx4 {V(112)}, v{vYo}, {srd(WS)}, 0 offen sc1
        buffer_store_dwordx4 {V(112)}, v{vYo}, {srd(WS)}, s{sMB} offen sc1
        buffer_store_dwordx4 {V(112)}, v{vCg}, {srd(WS)}, 0 offen sc1
        buffer_store_dwordx4 {V(112)}, v{vCs}, {srd(WS)}, 0 offen sc1""",tok)

def w_setup(a):
    lane,j,q=vLane,vJ,vQ
    for b in range(3):
        a(f"v_add_u32 v100, {64*b}, v{lane}\nv_mul_u32_u24 v101, 43691, v100\nv_lshrrev_b32 v101, 19, v101")
        a(f"v_mul_u32_u24 v102, 12, v101\nv_sub_u32 v100, v100, v102\nv_lshlrev_b32 v100, 4, v100")
        a(f"v_mul_u32_u24 v101, 2752, v101\nv_add_u32 v{vW1[b]}, v100, v101")
    a(f"s_mul_i32 s{sT0}, s{sWV}, {16*2752}\ns_mul_i32 s{sT1}, s{sM}, 192\ns_add_u32 s{sT0}, s{sT0}, s{sT1}")
    for b in range(3):
        a(f"v_add_u32 v{vW1[b]}, s{sT0}, v{vW1[b]}")
        if b: a(f"v_subrev_u32 v{vW1[b]}, {1024*b}, v{vW1[b]}")
    a(f"""v_bfe_u32 v100, v{lane}, 2, 2
        v_lshl_add_u32 v100, v{q}, 3, v100
        v_and_b32 v101, 3, v{lane}
        v_mul_u32_u24 v102, 192, v100
        s_mul_i32 s{sT0}, s{sWV}, 48
        v_add_u32 v102, s{sT0}, v102
        v_lshl_add_u32 v{vTa}, v101, 3, v102
        v_and_b32 v103, 1, v101
        v_mul_u32_u24 v103, 12288, v103
        v_add_u32 v102, v102, v103
        v_lshrrev_b32 v103, 1, v101
        v_lshl_add_u32 v102, v103, 3, v102
        v_add_u32 v{vTm}, 32, v102
        v_lshlrev_b32 v102, 7, v100
        v_lshl_add_u32 v102, v101, 4, v102
        s_lshl_b32 s{sT1}, s{sWV}, 12
        s_add_u32 s{sT1}, s{sT1}, {L_PP}
        v_add_u32 v{vT2}, s{sT1}, v102
        s_mul_i32 s{sW1W}, s{sWV}, 3072""")

def c_dma(n, slot):
    if CFG.get('now1'): return []
    L=M(f"s_add_u32 s{sWo}, s{sX}, {n}\ns_and_b32 s{sWo}, s{sWo}, 7\ns_mul_i32 s{sWo}, s{sWo}, {64*2752}") if CFG['rot'] else M(f"s_mov_b32 s{sWo}, {n*64*2752}")
    for mat,S in ((0,SWG),(1,SWU)):
        L+=M(f"s_add_u32 m0, s{sW1W}, {slot+mat*12288}")
        for b in range(3): L+=M(f"buffer_load_dwordx4 v{vW1[b]}, {srd(S)}, s{sWo} offen offset:{1024*b} lds",f"c{n}")
    return LW(L,(slot,slot+WSL))
def c_read(n, slot):
    if CFG.get('now1'): return []
    L=M(f"v_add_u32 v{vWc0}, {slot}, v{vTa}\nv_add_u32 v{vWc1}, {slot}, v{vTm}")
    for sp in range(2):
        s=2*n+sp
        for hh in range(2):
            o=sp*6144+hh*768
            L+=M(f"""ds_read_b64_tr_b16 {W1h(s,0,hh)}, v{vWc0} offset:{o}
                     ds_read_b64_tr_b16 {W1h(s,1,hh)}, v{vWc0} offset:{o+12288}
                     ds_read_b64_tr_b16 {W1h(s,2,hh)}, v{vWc1} offset:{o}""",f"cr{n}")
    return LR(L,(slot,slot+WSL))
def pp_setup():
    return M(f"""s_lshl_b32 s{sT0}, s{sWV}, 8
        s_add_u32 s{sT0}, s{sT0}, s2
        s_mul_i32 s{sT1}, s{sT0}, 1525
        s_lshr_b32 s{sT1}, s{sT1}, 16
        s_mul_i32 s{sT2}, s{sT1}, 43
        s_sub_u32 s{sT2}, s{sT0}, s{sT2}
        s_lshl_b32 s{sPS}, s{sT2}, 15
        s_lshl_b32 s{sT3}, s{sT1}, 7
        s_add_u32 s{sPS}, s{sPS}, s{sT3}
        s_mul_i32 s{sPD}, s{sT1}, 86
        s_add_u32 s{sPD}, s{sPD}, s{sT2}
        s_lshl_b32 s{sPD}, s{sPD}, 11
        s_add_u32 s{sPD}, s{sPD}, {OFF_P2}
        s_lshl_b32 s{sPF}, s{sT0}, 7
        s_add_u32 s{sPF}, s{sPF}, {OFF_P2F}
        s_cmp_lt_u32 s{sT0}, 344
        s_cselect_b32 s{sPS}, s{sPS}, {OOB}
        s_cselect_b32 s{sPD}, s{sPD}, {OOB}
        s_cselect_b32 s{sPF}, s{sPF}, {OOB}
        s_lshl_b32 s{sT0}, s{sCT2}, 1
        s_add_u32 s{sT0}, s{sT0}, s{sCHH}
        s_mul_i32 s{sT0}, s{sT0}, 43
        s_mul_i32 s{sT1}, s{sKH}, 21
        s_add_u32 s{sT0}, s{sT0}, s{sT1}
        s_lshl_b32 s{sT0}, s{sT0}, 11
        s_add_u32 s{sW2B}, s{sT0}, {OFF_P2}
        s_cmp_eq_u32 s{sKH}, 0
        s_cselect_b32 s{sW20}, s{sW2B}, {OOB}""")
def pp_load():
    L=M(f"s_lshl_b32 s{sT3}, s{sWV}, 12")
    for r in range(4):
        L+=M(f"s_add_u32 m0, s{sT3}, {L_PP+1024*r}\ns_add_u32 s{sWo}, s{sPS}, {8192*r}")
        L+=M(f"buffer_load_dwordx4 v{vW2}, {srd(SWD)}, s{sWo} offen lds","pp")
    for x in L: x.priv=1
    return LW(L,(L_PP,L_PP+16384))
def touches():
    return M(f"""buffer_load_dword v{vCg}, v{vCg}, {srd(WS)}, 0 offen sc1
        buffer_load_dword v{vCs}, v{vCs}, {srd(WS)}, 0 offen sc1
        buffer_load_dword v{vFT}, v{vFT}, {srd(WS)}, 0 offen sc1""")
def extras(pos): return (pp_load() if CFG['ppat']==pos else [])+(touches() if CFG['tat']==pos else [])+(h_touch(TCHK()) if CFG['hat']==pos else [])
def pp_pack():
    L=[('WVM','pp')]
    for c in range(2):
        for t in range(2):
            for hh in range(2): L+=LR(M(f"ds_read_b64_tr_b16 {V(W2V+8*c+4*t+2*hh,2)}, v{vT2} offset:{hh*512+64*c+8*t}"),(L_PP,L_PP+16384))
    for x in L[1:]: x.priv=1
    S=[]
    for c in range(2):
        S+=M(f"s_add_u32 s{sT2}, s{sPD}, {c*43*2048}")
        for t in range(2): S+=M(f"buffer_store_dwordx4 {V(W2V+8*c+4*t)}, v{vL}, {srd(WS)}, s{sT2} offen offset:{1024*t} sc1","pps")
    return L,S
def w2_loads():
    L=[]
    for i in range(CFG.get('w2n',22)):
        so=sW20 if i==0 else (sW2B if i==1 else sPS)
        if i>=2 and i%2==0: L+=M(f"s_add_u32 s{sPS}, s{sW2B}, {i*2048}")
        for t in range(2): L+=M(f"buffer_load_dwordx4 {W2(i,t)}, v{vL}, {srd(WS)}, s{so} offen offset:{(i&1)*2048+t*1024} sc1",f"w2_{i}")
    return L
W2Q=[]
def w2_take(n):
    out=[]
    while W2Q and n>0:
        x=W2Q.pop(0); out.append(x)
        if x.kind=='vmem': n-=1
    return out

PLANS={
 0:dict(),
 1:dict(FL="i0", T2="i1", CV=[("a",20,"r0"),("d",40,"i2"),("a",84,"w1 b r1"),("d",100,"i3@0")], YS="i4@5", YA="w3 b r2 r3", GL="i5@1 w4 l b r4", ST="i6@2", PEND=[5,6], REST=["7@0"]),
 3:dict(FL="i0", T2="i1 w0 b r0", CV=[("d",2,"i2"),("d",68,"i3@0")], CE="w2", YS="r1 r2 i4@3", F1="r3", F2="i5@1", FB="r4", XD="", PEND=[5], REST=["6@2","7@0"]),
 6:dict(T2="i0", CV=[("d",40,"i1"),("d",90,"i2")], CE="w1", YS="i3@3 r0 r1", SA="w2", F1="r2 i4@0", F2="", FX="i5@1", SB="w4", FB="r3 r4", XD="", PEND=[5], REST=["6@2","7@0"]),
 8:dict(T0="i0", FL="i1", T2="i2 w1 b r0 r1", CV=[("d",20,"i3@0"),("d",68,"i4@1")], CE="w3", YS="i5@3 r2 r3", F1="r4", F2="i6@2", FX="i7@0", FB="r5", PEND=[6,7]),
 12:dict(T0="i0", FL="i1", T2="i2 w1 b r0 r1", CV=[("d",20,"i3@0"),("d",68,"i4@1")], CE="w3", YS="i5@3 r2 r3", F1="r4", F2="i6@2", FX="i7@0", FB="r5", XD="p6", PEND=[6,7]),
 10:dict(T0="i0", T2="i1 w0 b r0", CV=[("d",20,"i2"),("d",68,"i3@0")], CE="w2", YS="i4@3 r1 r2", F1="r3", F2="i5@1", FX="i6@2", FB="r4", PEND=[5,6], REST=["7@0"]),
 11:dict(T0="i0", T1="i1", T2="i2 w1 b r0 r1", CV=[("d",14,"i3@0"),("d",56,"i4@1"),("a",70,"w2 b r2"),("a",96,"L2 b"),("d",100,"i5@2")], CE="w4", YS="i6@3 r3 r4", SA="w5", F1="r5", F2="i7@0", FB="r6", XD="p4", PEND=[7]),
 7:dict(FL="i0", T2="i1 w0 b r0", CV=[("d",20,"i2"),("d",68,"i3@0")], CE="w2", YS="i4@3 r1 r2", F1="r3", F2="i5@1", FX="i6@2", FB="r4", PEND=[5,6], REST=["7@0"]),
 4:dict(FL="i0", T2="i1 w0 b r0", CV=[("d",2,"i2"),("d",50,"i3@0")], CE="w2", YS="i4@3 r1 r2", F1="r3", F2="i5@1", FX="i6@2", FB="r4", PEND=[5,6], REST=["7@0"]),
 5:dict(T1="i0", FL="", T2="i1 w0 b r0", CV=[("d",2,"i2"),("d",46,"i3@0"),("a",60,"w1 b r1"),("a",84,"L1 b"),("d",92,"i4@1")], CE="w3", YS="i5@3 r2 r3", SA="w4", F1="r4", F2="i6@2", FX="i7@0", FB="r5", PEND=[6,7]),
 2:dict(FL="i0", T2="i1", CV=[("a",20,"r0"),("d",30,"i2"),("a",70,"w1 b r1"),("d",80,"i3@0"),("a",124,"w2 b r2")], YS="i4@5 i5@1", YA="w4 b r3 r4", GL="i6@2 w5 l b r5", ST="i7@0", PEND=[6,7], FA="p4", FB="p4", XD="p4"),
 9:dict(ST="i0 i1 "+" ".join(f"w{n} l b "+(f"i{n+2} " if n+2<8 else "")+f"r{n}" for n in range(8))+" l b"),
}
slot_of={}
def wops(txt):
    L=[]
    for op in txt.split():
        at=None
        if '@' in op: op,at=op.split('@'); at=int(at)
        k=int(op[1:]) if len(op)>1 else None
        if op[0]=='i': slot_of[k]=SLOT[at if at is not None else k%3]; L+=c_dma(k,slot_of[k])
        elif op[0]=='r': L+=c_read(k,slot_of[k])
        elif op[0]=='w': L.append(('WVM',f"c{k}"))
        elif op[0]=='l': L+=M("s_waitcnt lgkmcnt(0)")
        elif op[0]=='L': L.append(('WLG',f"cr{k}"))
        elif op[0]=='b': L+=M("s_barrier")
        elif op[0]=='p': L+=w2_take(k)
    return L
def PL(): return eval(CFG['plan']) if isinstance(CFG['plan'],str) else PLANS[CFG['plan']]
def Wp(a,point): a.flat(wops(PL().get(point,"")))

def toeplitz(a):
    a("s_waitcnt lgkmcnt(0)\ns_barrier")
    a(f"s_mul_i32 s{sT0}, s{sKH}, {UCH}\ns_add_u32 s{sT0}, s{sT0}, {L_U+512}\nv_add_u32 v54, s{sT0}, v52\nv_add_u32 v78, s{sT0}, v53")
    for rho,(va,off) in enumerate(((54,0),(54,1024),(78,0))):
        d=56+8*rho
        a(f"ds_read_b128 {V(d)}, v{va} offset:{off}\nds_read_b64 {V(d+4,2)}, v{va} offset:{off+16}","raw"); a.lr(2,(L_U,L_U+2*UCH))
    a(f"s_mul_i32 s{sT0}, s{sKH}, {TCH}\ns_add_u32 s{sT0}, s{sT0}, {L_TOEP+32}")
    a(f"v_add_u32 v52, s{sT0}, v52\nv_add_u32 v53, s{sT0}, v53")
    for rho,(va,off) in enumerate(((52,0),(52,1024),(53,0))):
        d=56+8*rho; t=100+12*(rho%2)
        a(f"ds_write_b128 v{va}, {V(d)} offset:{off}")
        for i in range(4): a(f"v_alignbit_b32 v{t+i}, v{d+i+1}, v{d+i}, 16")
        a(f"ds_write_b128 v{va}, {V(t)} offset:{off+TCP}")
        for i in range(4): a(f"v_mov_b32 v{t+4+i}, v{d+i+1}")
        a(f"ds_write_b128 v{va}, {V(t+4)} offset:{off+2*TCP}")
        for i in range(4): a(f"v_alignbit_b32 v{t+8+i}, v{d+i+2}, v{d+i+1}, 16")
        a(f"ds_write_b128 v{va}, {V(t+8)} offset:{off+3*TCP}"); a.lw(16,(L_TOEP,L_TOEP+2*TCH))
        if rho==1: a.waitlg("raw"); a("s_barrier")

def p0(a):
    a.waitvm("kv"); a("s_barrier")
    a.stamp("kv landed","f")
    KR=84; VR=94
    for i in range(5):
        R=4+4*i; a(f"ds_read_b64_tr_b16 {V(KR+2*i,2)}, v83 offset:{L_K+(R>>3)*CHP+(R&7)*128}")
    for i in range(4):
        R=4*i; a(f"ds_read_b64_tr_b16 {V(VR+2*i,2)}, v83 offset:{L_V+(R>>3)*CHP+(R&7)*128}")
    a.lr(9,(L_K,L_V+8*CHP))
    Wp(a,'T0')
    a("v_lshlrev_b32 v40, 16, v80\nv_and_b32 v41, 0xffff0000, v80\nv_lshlrev_b32 v42, 16, v81\nv_and_b32 v43, 0xffff0000, v81")
    K=lambda t: 108+t-2
    for i in range(10):
        if i>0: a(f"v_lshlrev_b32 v{102+2*i}, 16, v{KR+i}")
        a(f"v_and_b32 v{103+2*i}, 0xffff0000, v{KR+i}")
    O=16
    for t in range(16):
        a(f"v_mul_f32 v{O+t}, v40, v{K(t)}")
        a(f"v_fmac_f32 v{O+t}, v41, v{K(t-1)}")
        a(f"v_fmac_f32 v{O+t}, v42, v{K(t-2)}")
        a(f"v_fmac_f32 v{O+t}, v43, v{K(t-3)}")
    for i in range(8):
        a(f"v_lshlrev_b32 v102, 16, v{VR+i}\nv_and_b32 v103, 0xffff0000, v{VR+i}")
        a(f"v_mul_f32 v{O+2*i}, v{O+2*i}, v102\nv_mul_f32 v{O+1+2*i}, v{O+1+2*i}, v103")
    for o in range(2):
        for d in range(4): a(f"v_cvt_pk_bf16_f32 v{KR+4*o+d}, v{O+8*o+7-2*d}, v{O+8*o+6-2*d}")
    for d in range(4): a(f"v_mov_b32 v{102+d}, v{KR+4+d}")
    for d in range(4): a(f"v_mov_b32_dpp v{KR+4+d}, v{KR+d} row_ror:8 row_mask:0xf bank_mask:0x3")
    for d in range(4): a(f"v_mov_b32_dpp v{KR+d}, v{102+d} row_ror:8 row_mask:0xf bank_mask:0xc")
    a(f"s_mov_b32 s{sT0}, 32768")
    a(f"buffer_store_dwordx4 {V(KR)}, v55, {srd(WS)}, 0 offen\nbuffer_store_dwordx4 {V(KR+4)}, v55, {srd(WS)}, s{sT0} offen","kvs")
    if CFG['utouch']==1: a(f"buffer_load_dword v{vTch}, v{vTch}, {srd(WS)}, 0 offen sc1")
    a.stamp("p0 computed","f")
    if CFG['clr']==1: clears(a)
    Wp(a,'T1')
    a(f"s_mov_b32 s{sCH}, s{sHELLO}\ns_getreg_b32 s{sHELLO}, hwreg(HW_REG_XCC_ID, 0, 4)")
    a(f"v_readfirstlane_b32 s{sTAG}, v51")
    a(f"s_add_u32 s{sTAG}, s{sTAG}, 0x9E3779B0\ns_and_b32 s{sTAG}, s{sTAG}, 0xFFFFFFF0\ns_and_b32 s{sHELLO}, s{sHELLO}, 15\ns_or_b32 s{sHELLO}, s{sHELLO}, s{sTAG}")
    a(f"v_mov_b32 v{vTAG}, s{sTAG}\nv_mov_b32 v98, s{sHELLO}")
    a.ext(pp_setup())
    a(f"""s_add_u32 s{sFLH}, s{sFLG}, s{sFL}
        s_lshl_b32 s{sC4}, s{sCHH}, 12
        s_mul_i32 s{sC3}, s{sCHH}, 3072
        s_lshl_b32 s{sM4}, s{sKH}, 14
        s_add_u32 s{sM3}, s{sM4}, s{sC3}
        s_add_u32 s{sM4}, s{sM4}, s{sC4}""")
    a(f"s_lshl_b32 s{sT0}, s{sX}, 2\ns_add_u32 s{sT1}, s{sT0}, s{sWV}\ns_lshl_b32 s{sT1}, s{sT1}, 5\ns_add_u32 s{sT1}, s{sT1}, s{sR}\ns_lshl_b32 s{sT1}, s{sT1}, 2\ns_add_u32 s{sT1}, s{sT1}, {OFF_F1L}")
    a(f"s_lshr_b32 s{sCK1}, s{sR}, 3\ns_add_u32 s{sCK1}, s{sCK1}, s{sT0}\ns_lshl_b32 s{sCK1}, s{sCK1}, 7\ns_add_u32 s{sCK1}, s{sCK1}, {OFF_F1L}")
    a(f"v_and_b32 v97, 31, v{vLane}\nv_lshlrev_b32 v97, 2, v97\ns_mov_b32 s{sMODE}, 0")
    a.waitvm("kvs")
    a(f"buffer_store_dword v98, v{vOne}, {srd(WS)}, s{sT1} offen")
    a.stamp("kvT published","f")
    if CFG['clr']==3: clears(a)
    if CFG['qat']==0: a(f"buffer_load_dwordx4 {V(vQT)}, v{vTok}, {srd(SQ_)}, 0 offen\nbuffer_load_dwordx4 {V(vQT+4)}, v{vTok}, {srd(SQ_)}, s{sMB} offen")
    a.flat(extras(0))
    Wp(a,'FL')
    toeplitz(a)
    a(f"""s_lshl_b32 s{sT0}, s{sCH}, 12
        s_lshl_b32 s{sT1}, s{sCHH}, 11
        s_add_u32 s{sT0}, s{sT0}, s{sT1}
        s_add_u32 s{sT0}, s{sT0}, {OFF_KVT}
        s_mul_i32 s{sUO}, s{sKH}, {UCH}
        s_add_u32 s{sT1}, s{sT1}, s{sUO}""")
    a.stamp("toeplitz","f")
    o=Asm(); o.lab("L_f1r"); o(f"s_mov_b32 s{sCNT}, 0")
    if CFG['stamps']: site_names.append("f1"); o(f"s_bitset1_b32 s98, {len(site_names)-1}")
    o.lab("L_f1l")
    o(f"""buffer_load_dword v99, v97, {srd(WS)}, s{sCK1} offen sc1
        s_waitcnt vmcnt(0)
        v_cmp_ne_u32 vcc, s{sHELLO}, v99
        s_cbranch_vccz L_f1b
        s_add_u32 s{sCNT}, s{sCNT}, 1
        s_cmp_lt_u32 s{sCNT}, {CFG['f1max']}
        s_cbranch_scc1 L_f1l""")
    o.lab("L_f1s")
    o(f"""s_mov_b32 s{sMODE}, 1
        s_mov_b32 s{sT2}, 32768
        buffer_store_dwordx4 {V(KR)}, v55, {srd(WS)}, 0 offen sc1
        buffer_store_dwordx4 {V(KR+4)}, v55, {srd(WS)}, s{sT2} offen sc1
        s_lshl_b32 s{sT2}, s{sX}, 2
        s_add_u32 s{sT3}, s{sT2}, s{sWV}
        s_lshl_b32 s{sT3}, s{sT3}, 5
        s_add_u32 s{sT3}, s{sT3}, s{sR}
        s_lshl_b32 s{sT3}, s{sT3}, 7
        s_add_u32 s{sT3}, s{sT3}, {OFF_F1}
        s_lshr_b32 s{sCK1}, s{sR}, 3
        s_add_u32 s{sCK1}, s{sCK1}, s{sT2}
        s_lshl_b32 s{sCK1}, s{sCK1}, 12
        s_add_u32 s{sCK1}, s{sCK1}, {OFF_F1}
        v_lshlrev_b32 v97, 5, v97
        s_waitcnt vmcnt(0)
        buffer_store_dword v{vTAG}, v{vOne}, {srd(WS)}, s{sT3} offen sc1
        s_mov_b32 s{sCNT}, 0""")
    o.lab("L_f1g")
    o(f"""buffer_load_dword v99, v97, {srd(WS)}, s{sCK1} offen sc1
        s_waitcnt vmcnt(0)
        v_cmp_ne_u32 vcc, s{sTAG}, v99
        s_cbranch_vccz L_f1b
        s_add_u32 s{sCNT}, s{sCNT}, 1
        s_cmp_lt_u32 s{sCNT}, {POLLMAX}
        s_cbranch_scc1 L_f1g
        s_branch L_f1b""")
    a.ool.append(o.L)
    ck=M(f"v_cmp_ne_u32 vcc, s{sHELLO}, v99\ns_cbranch_vccnz L_f1r\nL_f1b:") if CFG['slow']!=2 else M("s_waitcnt vmcnt(0)\ns_branch L_f1s\nL_f1b:")
    a(f"buffer_load_dword v99, v97, {srd(WS)}, s{sCK1} offen sc1")
    a(f"""s_lshl_b32 s{sT3}, s{sCHH}, 8
        s_sub_u32 s{sT2}, s{sUO}, s{sT3}
        s_add_u32 s{sT2}, s{sT2}, {L_U+480-192}
        v_lshlrev_b32 v141, 5, v{vJ}
        v_lshl_add_u32 v141, v{vQ}, 4, v141
        v_add_u32 v141, s{sT2}, v141
        v_add_u32 v142, 1, v{vJ}
        v_and_b32 v143, 3, v142
        v_mul_u32_u24 v143, {TCP}, v143
        v_lshrrev_b32 v142, 2, v142
        v_lshl_add_u32 v142, v142, 3, v143
        v_lshlrev_b32 v143, 4, v{vQ}
        v_sub_u32 v142, v142, v143
        s_mul_i32 s{sT2}, s{sKH}, {TCH}
        s_add_u32 s{sT2}, s{sT2}, s{sT3}
        s_add_u32 s{sT2}, s{sT2}, {L_TOEP+48}
        v_add_u32 v142, s{sT2}, v142
        s_add_u32 m0, s{sT1}, {L_U+512}""")
    a.flat(ck)
    a.stamp("f1 seen","f")
    a(f"buffer_load_dwordx4 v{vL}, {srd(WS)}, s{sT0} offen sc1 lds","u")
    a(f"buffer_load_dwordx4 v{vL}, {srd(WS)}, s{sT0} offen offset:1024 sc1 lds","u")
    a.lw(2,(L_U+512,L_U+UCH),(L_U+UCH+512,L_U+2*UCH))
    if CFG['clr']==4: clears(a,"clr")
    if CFG['clr'] in(1,3): a(f"buffer_store_dword v98, v{vOne}, {srd(WS)}, s{sHF} offen sc1")
    a.flat(extras(5))
    Wp(a,'T2')
    a(f"v_lshlrev_b32 v{vD}, 16, v{vD}")
    a.waitvm("u"); a("s_waitcnt lgkmcnt(0)\ns_barrier")
    a.stamp("U landed","f")

def conv_backbone():
    ACC=40; GR=72; Ureg=[16,20,24,28,32,36,104,108]
    seq=[]
    for it in range(4):
        o=4*(it&1)
        for e in range(4):
            for w in range(3-e,-1,-1): seq.append((w+e,o+e,o+w,('G',e,it,1),('U',w,it,1),it==0 and e==0))
    n1=len(seq)
    for it in range(4):
        pairs=[(e,w) for e in range(8) for w in range(7-e,max(0,4-e)-1,-1)]
        if it==0: pairs=[p for p in pairs if p[0]<4 and p[1]<4]+[p for p in pairs if not(p[0]<4 and p[1]<4)]
        seen=set()
        for e,w in pairs:
            seq.append((w+e,e,w,('G',e,it,2),('U',w,it,2),it==0 and (w+e) not in seen)); seen.add(w+e)
    reads={}; lastuse={}
    for n,(c,g,u,gid,uid,f) in enumerate(seq):
        for ph,i in ((('G',g),gid),(('U',u),uid)):
            if i not in reads: reads[i]=dict(ph=ph,need=n,earliest=lastuse.get(ph,-1))
            lastuse[ph]=n
    def emit(i):
        kind,k,it,_=i; ph=reads[i]['ph'][1]
        if kind=='U': return [LR(mk(f"ds_read_b128 {V(Ureg[ph])}, v141 offset:{512*k+192-64*it}"),(L_U,L_U+2*UCH))]
        return LR([mk(f"ds_read_b64 {V(GR+4*ph,2)}, v142 offset:{512*k+64*it}"),mk(f"ds_read_b64 {V(GR+4*ph+2,2)}, v142 offset:{512*k+64*it+8}")],(L_TOEP,L_TOEP+2*TCH))
    todo=[]
    for i in sorted(reads,key=lambda i:reads[i]['need']):
        for x in emit(i): todo.append((reads[i]['earliest'],reads[i]['need'],x))
    bb=[x for e,n,x in todo if n<4]; todo=[t for t in todo if t[1]>=4]
    for n,(c,g,u,gid,uid,f) in enumerate(seq):
        bb.append(mk(f"v_mfma_f32_16x16x32_bf16 {V(ACC+4*c)}, {V(GR+4*g)}, {V(Ureg[u])}, {'0' if f else V(ACC+4*c)}"))
        k=0
        while True:
            cand=[t for t in todo if t[0]<=n]
            if not cand: break
            t=cand[0]
            if k>=1 and not(k<2 and t[1]-n<=CFG['cla']) and not t[1]-n<=2: break
            bb.append(t[2]); todo.remove(t); k+=1
    assert not todo
    return bb,n1

def conv_epi(st):
    ACC=40+16*st; P=vPK+4*st; R=(L_CX,L_CX+16384)
    W=LW([mk(f"ds_write_b128 v{vCXw}, {V(ACC+4*k)} offset:{1024*k}",f"cx{st}") for k in range(4)],R)
    K=LR([mk(f"ds_read_b64 {V(vKD+2*k,2)}, v{vKV} offset:{2048*st+512*k}") for k in range(2)],(L_U,L_U+2*UCH))
    L=[]
    for k in range(2): L+=LR(M(f"ds_read_b128 {V(ACC+4*k)}, v{vCXo} offset:{1024*k}\nds_read_b128 {V(ACC+8+4*k)}, v{vCXp} offset:{1024*k}",f"cy{st}"),R)
    for k in range(2):
        A=ACC+4*k
        L+=M(f"v_and_b32 v{vUP}, 0xffff0000, v{vKD+1+2*k}\nv_lshlrev_b32 v{vUP+1}, 16, v{vKD+1+2*k}\nv_and_b32 v{vUP+2}, 0xffff0000, v{vKD+2*k}\nv_lshlrev_b32 v{vUP+3}, 16, v{vKD+2*k}")
        for r in range(4): L+=M(f"v_fmac_f32 v{A+r}, v{vD}, v{vUP+r}")
        for r in range(4): L+=M(f"v_add_f32 v{A+r}, v{A+r}, v{A+8+r}")
        L+=M(f"v_cvt_pk_bf16_f32 v{P+2*k}, v{A}, v{A+1}\nv_cvt_pk_bf16_f32 v{P+1+2*k}, v{A+2}, v{A+3}")
    L+=M(f"s_nop 0\nv_permlane16_swap_b32 v{P}, v{P+2}\nv_permlane16_swap_b32 v{P+1}, v{P+3}")
    L+=M(f"buffer_store_dwordx4 {V(P)}, v{vYo}, {srd(WS)}, {'0' if st==0 else 's%d'%sMB} offen sc1",f"yt{st}")
    return W+K,L

def y_check(a,mu):
    D=vGD+4*mu
    return a.check([f"buffer_load_dwordx4 {V(D)}, v{vGA}, {srd(WS)}, {'0' if mu==0 else 's%d'%sMB} offen sc1"],
         [f"v_max3_u32 v{vGC}, v{D}, v{D+1}, v{D+2}",f"v_max_u32 v{vGC}, v{vGC}, v{D+3}",f"v_cmp_eq_u32 vcc, -1, v{vGC}"],"yt")
def y_stage(a,mu,mid=[]):
    a(f"ds_write_b128 v{vGW}, {V(vGD+4*mu)} offset:{L_YS+4096*mu}"); a.lw(1,(L_YS+4096*mu,L_YS+4096*mu+4096))
    a.flat(mid)
    a("s_waitcnt lgkmcnt(0)\ns_barrier")
    for hh in range(2):
        a(f"ds_read_b64_tr_b16 {V(vYY[mu]+2*hh,2)}, v{vGT} offset:{L_YS+4096*mu+256*hh}")
        a.lr(1,(L_YS+4096*mu,L_YS+4096*mu+4096))

def conv(a):
    C=CFG
    bb,n1=conv_backbone()
    qld=M(f"""buffer_load_dwordx4 {V(vQT)}, v{vTok}, {srd(SQ_)}, 0 offen
        buffer_load_dwordx4 {V(vQT+4)}, v{vTok}, {srd(SQ_)}, s{sMB} offen
        buffer_load_dword v{vCg}, v{vCg}, {srd(WS)}, 0 offen sc1
        buffer_load_dword v{vCs}, v{vCs}, {srd(WS)}, 0 offen sc1
        buffer_load_dword v{vFT}, v{vFT}, {srd(WS)}, 0 offen sc1""")
    hl,hc=a.check([f"buffer_load_dwordx4 {V(112)}, v{vHa}, {srd(WS)}, 0 offen sc1"],
         [f"v_xor_b32 v113, s{sTAG}, v113",f"v_xor_b32 v114, s{sTAG}, v114",f"v_xor_b32 v115, s{sTAG}, v115",
          "v_or3_b32 v113, v113, v114, v115",f"v_xor_b32 v114, s{sTAG}, v112","v_or_b32 v113, v113, v114","v_cmp_lt_u32 vcc, 15, v113"],"h2")
    pk,ps=pp_pack()
    dmas=paced((qld[:2] if C['qat']==1 else [])+extras(1),3); fill=[]
    for kind,at,ops in PL().get('CV',[]):
        it=wops(ops)
        if kind=='d': dmas+=[('AT',at)]+paced(it,C['cgap'])
        else:
            k=[i for i,x in enumerate(it) if isinstance(x,I) and x.op=='s_barrier']
            if k: it=[it[:k[0]+1]]+it[k[0]+1:]
            fill+=[('AT',at)]+it
    dmas+=[('AT',C['hmid'])]+paced(extras(6),3)
    w0,e0=conv_epi(0)
    gl,a.gcA=y_check(a,0)
    crit=[('AT',n1+2),('DENS',C['cdens'])]+w0+[('GAP',3),[('WLG','cx0'),mk("s_barrier")]]+e0[:-1]+([] if C['clr']==4 else [('AFTER','hl')])+e0[-1:]+[('DENS',0),('SYNC','y0'),('AFTER','hl',C['chc'])]+hc \
        +[[('WLG','cy0'),mk("s_barrier")],('AFTER','y0',C['cack']),('WVM','yt0')]+gl+[('SYNC','g0')]
    ann=[('AT',C['cann']),('WVM','clr')]+M(f"buffer_store_dword v{vTAG}, v{vOne}, {srd(WS)}, s{sHF} offen sc1") if C['clr']==4 else []
    third=ann+[('AT',C['chl'])]+hl+[('SYNC','hl'),('AFTER','g0'),('AFTER','dd')]+paced((qld[:2] if C['qat']==2 else [])+extras(2),2)
    a.weave(bb,crit,dmas+[('SYNC','dd')],fill,third,slots=C['cslots'],name='CV')
    a.stamp("conv mfma done","f")
    w1,e1=conv_epi(1)
    Wp(a,'CE')
    a.flat(w1); a("s_waitcnt lgkmcnt(0)\ns_barrier"); a.flat(e1)
    if CFG.get('trace')=='CV': a("v_mov_b32 v139, v140")
    a.stamp("yT stored","f")
    a.flat(extras(3))
    Wp(a,'YS')
    for mu in range(2):
        for i in range(4):
            a(f"v_lshlrev_b32 v{vXst[mu]+2*i}, 16, v{vQT+4*mu+i}\nv_and_b32 v{vXst[mu]+2*i+1}, 0xffff0000, v{vQT+4*mu+i}")
    for mu in range(2): a.flat(fin1a(mu))
    if C['pkat']==2: a.flat(pk); a.flat(ps)
    Wp(a,'YA')
    a.flat(a.gcA)
    a.pk=(pk,ps)
    a.stamp("yA gathered","f")
    y_stage(a,0,wops(PL().get('SA',"")))
    Wp(a,'ST')
    if CFG['slow']: a(f"s_cmp_lg_u32 s{sMODE}, 0\ns_cbranch_scc1 L_slow")

def unpackY(mu,T):
    L=[]
    for i in range(4): L+=M(f"v_lshlrev_b32 v{T+2*i}, 16, v{vYY[mu]+i}\nv_and_b32 v{T+2*i+1}, 0xffff0000, v{vYY[mu]+i}")
    return L
def treduce(s0,s1,s2,s3,gap=[]):
    return M(f"v_permlane32_swap_b32 v{s0}, v{s2}\nv_permlane32_swap_b32 v{s1}, v{s3}\nv_add_f32 v{s0}, v{s0}, v{s2}\nv_add_f32 v{s1}, v{s1}, v{s3}")+gap+M(f"v_permlane16_swap_b32 v{s0}, v{s1}\nv_add_f32 v{s0}, v{s0}, v{s1}")

SX=[104,106]
def fin1a(mu,S=None):
    X=vXst[mu]; S=SX[mu] if S is None else S
    L=M(f"v_add_f32 v{S}, v{X}, v{X+1}\nv_mul_f32 v{S+1}, v{X}, v{X}")
    for e in range(1,8):
        if e>1: L+=M(f"v_add_f32 v{S}, v{S}, v{X+e}")
        L+=M(f"v_fmac_f32 v{S+1}, v{X+e}, v{X+e}")
    return L
def fin1(a, layer, mu, T, unpacked=False, S=None):
    X=vXst[mu]; L=[] if unpacked else unpackY(mu,T); S=T+8 if S is None else S
    s0=SX[mu] if layer==0 else S
    A=[] if layer==0 else fin1a(mu,S)
    Bq=M(f"v_mul_f32 v{S+2}, v{X}, v{T}\nv_add_f32 v{S+3}, v{T}, v{T+1}")
    for e in range(1,8):
        Bq+=M(f"v_fmac_f32 v{S+2}, v{X+e}, v{T+e}")
        if e>1: Bq+=M(f"v_add_f32 v{S+3}, v{S+3}, v{T+e}")
    while A or Bq:
        if A: L.append(A.pop(0))
        if Bq: L.append(Bq.pop(0))
    L+=treduce(s0,s0+1,S+2,S+3,M(f"s_add_u32 s{sT0}, s{sGR}, {(layer*2+mu)*262144}"))
    L+=M(f"buffer_store_dword v{s0}, v{vGs}, {srd(WS)}, s{sT0} offen{a.sc}")
    return L

def fin2(a, layer, mu, T, Y=None):
    X=vXst[mu]; Gd=T; up=unpackY(mu,T+16) if Y is None else []; Y=T+16 if Y is None else Y
    ld,ck=a.check([f"buffer_load_dwordx4 {V(Gd+4*i)}, v{vGl}, {srd(WS)}, s{sCK2} offen offset:{256*i} sc1" for i in range(4)],
         [f"v_max3_u32 v{PT}, v{Gd}, v{Gd+1}, v{Gd+2}"]+[f"v_max3_u32 v{PT}, v{PT}, v{Gd+3+2*i}, v{Gd+4+2*i}" for i in range(6)]+[f"v_max_u32 v{PT}, v{PT}, v{Gd+15}",f"v_cmp_eq_u32 vcc, -1, v{PT}"],"gr")
    ld=M(f"s_add_u32 s{sCK2}, s{sGRl}, {(layer*2+mu)*262144}")+ld+up
    L=list(ck)
    for k in range(4): L+=M(f"v_add_f32 v{Gd+k}, v{Gd+k}, v{Gd+4+k}\nv_add_f32 v{Gd+8+k}, v{Gd+8+k}, v{Gd+12+k}")
    for k in (0,2,1,3): L+=M(f"v_add_f32 v{Gd+k}, v{Gd+k}, v{Gd+8+k}")
    L+=treduce(Gd,Gd+1,Gd+2,Gd+3)
    A,B,C,D=Gd,Gd+1,Gd+2,Gd+3
    L+=M(f"v_mov_b32 v{B}, v{A}\nv_permlane16_swap_b32 v{A}, v{B}\nv_mov_b32 v{C}, v{A}\nv_mov_b32 v{D}, v{B}\nv_permlane32_swap_b32 v{A}, v{C}\nv_permlane32_swap_b32 v{B}, v{D}")
    inv="0x3b000000"
    L+=M(f"""v_mul_f32 v{A}, {inv}, v{A}
        v_mul_f32 v{B}, {inv}, v{B}
        v_fma_f32 v{B}, -v{A}, v{A}, v{B}
        v_max_f32 v{B}, 0, v{B}
        v_add_f32 v{B}, 0x3727c5ac, v{B}
        v_rsq_f32 v{B}, v{B}
        v_fma_f32 v{C}, -v{A}, v{D}, v{C}
        v_mul_f32 v{C}, {inv}, v{C}
        v_fma_f32 v{C}, v{B}, v{C}, v{A}
        v_mul_f32 v{A}, v{A}, v{B}""")
    for e in range(8): L+=M(f"v_fma_f32 v{Gd+4+e}, v{X+e}, v{B}, -v{A}")
    for e in range(8): L+=M(f"v_fmac_f32 v{X+e}, v{Gd+4+e}, v{Y+e}")
    for e in range(8): L+=M(f"v_sub_f32 v{Y+e}, v{X+e}, v{C}")
    L+=M(f"s_add_u32 s{sT0}, s{sXS}, {mu*65536}")
    for i in range(4): L+=M(f"v_cvt_pk_bf16_f32 v{Gd+4+i}, v{Y+2*i}, v{Y+2*i+1}")
    L+=M(f"buffer_store_dwordx4 {V(Gd+4)}, v{vL}, {srd(WS)}, s{sT0} offen{a.sc or (' nt' if CFG['ntx']>layer else '')}",f"xs{mu}")
    L+=M(f"v_mul_f32 v{A}, v{Y}, v{Y}")
    for e in range(1,8): L+=M(f"v_fmac_f32 v{A}, v{Y+e}, v{Y+e}")
    L+=M(f"""v_mov_b32 v{B}, v{A}
        s_nop 0
        s_add_u32 s{sT1}, s{sS5}, {(layer*2+mu)*65536}
        v_permlane32_swap_b32 v{A}, v{B}
        v_add_f32 v{A}, v{A}, v{B}
        v_mov_b32 v{B}, v{A}
        v_permlane16_swap_b32 v{A}, v{B}
        v_add_f32 v{A}, v{A}, v{B}""")
    L+=M(f"buffer_store_dword v{A}, v{vS5s}, {srd(WS)}, s{sT1} offen{a.sc}")
    tail=M(f"s_add_u32 s22, s{sFLH}, {XF(layer,mu)}")+[('WVM',f"xs{mu}")]+M(f"buffer_store_dword v{vTAG}, v{vOne}, {srd(WS)}, s22 offen{a.sc}")
    return ld,L,tail

def flag_check(a, off, vaddr, name):
    ld,ck=a.check([f"buffer_load_dword v{PT+1}, v{vaddr}, {srd(WS)}, s{sCK1} offen sc1"],[f"v_cmp_ne_u32 vcc, s{sTAG}, v{PT+1}"],name)
    return M(f"s_lshl_b32 s{sCK1}, s{sFL}, 1\ns_add_u32 s{sCK1}, s{sCK1}, {off}")+ld, ck
XF=lambda layer,mu: OFF_XFLAG+layer*16384+mu*256
HF=lambda layer,k: OFF_HFLAG+layer*16384+k*256

def x_dma(mu, pair, stage, q):
    L=M(f"s_add_u32 m0, s{sXW}, {q+stage*8192}\ns_mov_b32 s{sSOFF}, {mu*65536+pair*32768+stage*8192}")
    for i in range(4): L+=M(f"buffer_load_dwordx4 v{vXD}, {srd(WS)}, s{sSOFF} offen offset:{1024*i} sc1 lds",f"x{mu}{pair}{stage}")
    return LW(L,(q+stage*8192,q+stage*8192+8192),(q+16384+stage*8192,q+16384+stage*8192+8192))
def h_dma(mu, t, grp, q):
    n=4 if grp<2 else 3
    L=M(f"s_add_u32 m0, s{sM4 if grp<2 else sM3}, {q+t*8192}\ns_add_u32 s{sSOFF}, s{sC4 if grp<2 else sC3}, {(mu*4+2*t)*HKS*1024+grp*8192}")
    for i in range(n): L+=M(f"buffer_load_dwordx4 v{vHD}, {srd(WS)}, s{sSOFF} offen offset:{1024*i} sc1 lds",f"h{mu}{t}{grp}")
    return LW(L,*[(q+(2*k+t)*8192,q+(2*k+t)*8192+2*n*1024) for k in range(2)])
def h_touch(ks,base=204):
    L=[]
    for k in ks:
        L+=M(f"s_mov_b32 s{sT2}, {2*k*HKS*1024}\nbuffer_load_dword v{base+2*k}, v{vHS1}, {srd(WS)}, s{sT2} offen sc1\nbuffer_load_dword v{base+1+2*k}, v{vHS2}, {srd(WS)}, s{sT2} offen sc1","tch")
    return L
SC1K=lambda: {0:[],2:[0,1,2,3],3:[],4:[0,1],5:[0,1,2],6:[0,1],7:[0]}[CFG['touch']]
TCHK=lambda: {0:[],2:[],3:[0,1,2,3],4:[2,3],5:[],6:[],7:[]}[CFG['touch']]
TINK=lambda: {5:[3],6:[2,3],7:[1,2,3]}.get(CFG['touch'],[])

_uid=[0]
RING6=[FR+4*k for k in range(6)]; RING8=RING6+[ACC0+16,ACC0+20]
def g1_steps(buf, q, bar=None):
    A=(ACC0,ACC1)[buf]; bar=bar or {}; qo=q&65535; out=[]
    for s in range(16):
        pre=(M(f"v_add_u32 v{vA0}, {q&~65535}, v{vL}") if s==0 else [])+bar.get(s,[])
        rd=[lambda F,tok,s=s,t=t: LR(mk(f"ds_read_b128 {V(F)}, v{vA0} offset:{qo+t*16384+s*1024}",tok),(q+t*16384+s*1024,q+t*16384+s*1024+1024)) for t in range(2)]
        mf=lambda F,s=s: [mk(f"v_mfma_f32_16x16x32_bf16 {V(A+12*t+4*w)}, {W1(s,w)}, {V(F[t])}, {'0' if s==0 else V(A+12*t+4*w)}") for t in range(2) for w in range(3)]
        out.append((pre,rd,mf,RING6))
    return out
def g2_steps(qs, bar=None):
    bar=bar or {}; out=[]
    def setq(q): return M(f"s_add_u32 s{sQ}, s{sHK}, {q&~65535}\nv_add_u32 v{vA0}, s{sQ}, v{vL}\ns_add_u32 s{sQ}, s{sHS}, {q&~65535}\nv_add_u32 v{vA1}, s{sQ}, v{vL}")
    for i in range(22):
        q=qs[i>>3]; pre=bar.get(i,[])
        if i%8==0 and (i==0 or (q&~65535)!=(qs[(i>>3)-1]&~65535)): pre=setq(q)+pre
        rd=[lambda F,tok,i=i,q=q,t=t: LR(mk(f"ds_read_b128 {V(F)}, v{(vA0,vA1)[t]} offset:{(q&65535)+(i&7)*1024}",tok),*[(q+w*8192+(i&7)*1024,q+w*8192+(i&7)*1024+1024) for w in range(4)]) for t in (1,0)]
        mf=lambda F,i=i: [mk(f"v_mfma_f32_16x16x32_bf16 {V(ACC0+8*t+4*c)}, {W2(i,c)}, {V(F[1-t])}, {'0' if i==0 else V(ACC0+8*t+4*c)}") for t in (1,0) for c in range(2)]
        out.append((pre,rd,mf,RING8))
    return out
def g2_pass(qs, t, bar=None):
    bar=bar or {}; out=[]
    for i in range(22):
        q=qs[i>>3]; pre=bar.get(i,[])
        if i%8==0 and (i==0 or (q&~65535)!=(qs[(i>>3)-1]&~65535)):
            pre=M(f"s_lshl_b32 s{sQ}, s{sKH}, 14\ns_add_u32 s{sQ}, s{sQ}, {(q&~65535)+t*8192}\nv_add_u32 v{vA0}, s{sQ}, v{vL}")+pre
        rd=[lambda F,tok,i=i,q=q: LR(mk(f"ds_read_b128 {V(F)}, v{vA0} offset:{(q&65535)+(i&7)*1024}",tok),*[(q+(2*k+t)*8192+(i&7)*1024,q+(2*k+t)*8192+(i&7)*1024+1024) for k in range(2)])]
        mf=lambda F,i=i: [mk(f"v_mfma_f32_16x16x32_bf16 {V(ACC1+8*t+4*c)}, {W2(i,c)}, {V(F[0])}, {'0' if i==0 else V(ACC1+8*t+4*c)}") for c in range(2)]
        out.append((pre,rd,mf,RING8))
    return out
def backbone(steps, marks=None):
    marks=marks or {}; LA=CFG['la']
    start=[]; n=0
    for st in steps: start.append(n); n+=len(st[2]([FR]*2))
    start.append(n)
    last={}; F=[]; place={}; pos=-1; toks=[]
    for k,(pre,rd,mf,ring) in enumerate(steps):
        _uid[0]+=1; tok=f"f{_uid[0]}"; toks.append(tok); fs=[]
        for j,r in enumerate(rd):
            u=min([x for x in ring if x not in fs],key=lambda x:last.get(x,-99+ring.index(x)*0.01)); fs.append(u)
            p=max(start[k]-LA+j, last.get(u,-99), pos+1 if pos>=0 else -1)
            p=min(p,start[k]-1) if start[k]>0 else -1
            if p<0: p=-1
            place.setdefault(p,[]).extend((pre if j==0 else [])+[r(u,tok)]); pos=max(pos,p)
        for u in fs: last[u]=start[k+1]-1
        F.append(fs)
    L=list(place.get(-1,[]))+[('WLG',toks[0])]; n=0
    for k,(pre,rd,mf,ring) in enumerate(steps):
        ms=mf(F[k])
        for j,m in enumerate(ms):
            L.append(m); L+=place.get(n,[])
            if j==len(ms)-1 and k+1<len(steps): L.append(('WLG',toks[k+1]))
            n+=1
        L+=marks.get(k,[])
    return L

def g1_epi(a, buf, mu, pair, sc):
    A=(ACC0,ACC1)[buf]; E=EP; L=[]
    n=E; mreg=E+4
    M0=A+8; M1=A+20
    for t in range(2):
        Gt=A+12*t; Ut=Gt+4
        for r in range(4): L+=M(f"v_max_f32 v{Gt+r}, 0, v{Gt+r}")
        for r in range(4): L+=M(f"v_mul_f32 v{Gt+r}, v{Gt+r}, v{Ut+r}")
        L+=M(f"v_cvt_pk_bf16_f32 v{n+2*t}, v{Gt}, v{Gt+1}\nv_cvt_pk_bf16_f32 v{n+2*t+1}, v{Gt+2}, v{Gt+3}")
    for r in range(4): L+=M(f"v_permlane16_swap_b32 v{M0+r}, v{M1+r}")
    L+=M(f"v_permlane16_swap_b32 v{n}, v{n+2}\nv_permlane16_swap_b32 v{n+1}, v{n+3}\ns_mov_b32 s{sT1}, {(mu*4+2*pair)*HKS*1024}")
    L+=M(f"buffer_store_dwordx4 {V(n)}, v{vHS1}, {srd(WS)}, s{sT1} offen{sc}",f"hs{mu}{pair}")
    for r in range(4): L+=M(f"v_max_f32 v{M0+r}, 0, v{M0+r}")
    for r in range(4): L+=M(f"v_mul_f32 v{M0+r}, v{M0+r}, v{M1+r}")
    L+=M(f"v_cvt_pk_bf16_f32 v{mreg}, v{M0}, v{M0+1}\nv_cvt_pk_bf16_f32 v{mreg+1}, v{M0+2}, v{M0+3}")
    L+=M(f"v_mov_b32 v{E+6}, v{E+4}\nv_mov_b32 v{E+7}, v{E+5}\ns_nop 0\nv_permlane32_swap_b32 v{E+4}, v{E+6}\nv_permlane32_swap_b32 v{E+5}, v{E+7}")
    L+=M(f"buffer_store_dwordx4 {V(E+4)}, v{vHS2}, {srd(WS)}, s{sT1} offen{sc}",f"hs{mu}{pair}")
    return L
def h_flag(a, layer, k):
    return M(f"s_add_u32 s22, s{sFLH}, {HF(layer,k)}")+[('WVM',f"hs{k>>1}{k&1}")]+M(f"buffer_store_dword v{vTAG}, v{vOne}, {srd(WS)}, s22 offen{a.sc}")

def s5_get(a, layer, mu):
    T=140
    ld,ck=a.check([f"buffer_load_dwordx4 {V(T)}, v{vS5l}, {srd(WS)}, s{sCK3} offen sc1"],
         [f"v_max3_u32 v{PT+2}, v{T}, v{T+1}, v{T+2}",f"v_max_u32 v{PT+2}, v{PT+2}, v{T+3}",f"v_cmp_eq_u32 vcc, -1, v{PT+2}"],"s5")
    ld=M(f"s_add_u32 s{sCK3}, s{sS5l}, {(layer*2+mu)*65536}")+ld
    L=list(ck)+M(f"""v_add_f32 v{T}, v{T}, v{T+1}
        v_add_f32 v{T+2}, v{T+2}, v{T+3}
        v_add_f32 v{T}, v{T}, v{T+2}
        v_mov_b32 v{T+1}, v{T}
        s_nop 0
        v_permlane32_swap_b32 v{T}, v{T+1}
        v_add_f32 v{T}, v{T}, v{T+1}
        v_mov_b32 v{T+1}, v{T}
        s_nop 0
        v_permlane16_swap_b32 v{T}, v{T+1}
        v_add_f32 v{T}, v{T}, v{T+1}
        v_mul_f32 v{T}, 0x3b000000, v{T}
        v_add_f32 v{T}, 0x3727c5ac, v{T}
        v_rcp_f32 v{vR2}, v{T}""")
    return ld,L
def ex_addr(qspare):
    return M(f"s_add_u32 s{sT0}, s{sHW}, {qspare+6144}\nv_add_u32 v{EP}, s{sT0}, v{vL}\ns_xor_b32 s{sT0}, s{sHW}, 16384\ns_add_u32 s{sT0}, s{sT0}, {qspare+6144}\nv_add_u32 v{EP+1}, s{sT0}, v{vL}")
def g2_tail(mu, qsp, keep, send):
    X=vXst[mu]; R=[(qsp+w*8192+6144,qsp+w*8192+8192) for w in range(4)]
    pre=LW(M(f"ds_write_b128 v{EP}, {V(send)}\nds_write_b128 v{EP}, {V(send+4)} offset:1024",f"ew{mu}"),*R)
    pre+=[mk(f"v_fmac_f32 v{X+e}, v{vR2}, v{keep+e}") for e in range(8)]
    post=LR(M(f"ds_read_b128 {V(send)}, v{EP+1}\nds_read_b128 {V(send+4)}, v{EP+1} offset:1024","ex"),*R)
    post+=[mk(f"v_fmac_f32 v{X+e}, v{vR2}, v{send+e}") for e in range(8)]
    return pre,post
def out_store(a, mu, T):
    X=vXst[mu]
    L=[mk(f"v_cvt_pk_bf16_f32 v{T+i}, v{X+2*i}, v{X+2*i+1}") for i in range(4)]
    return L+M(f"buffer_store_dwordx4 {V(T)}, v{vTok}, {srd(SO_)}, {'0' if mu==0 else 's%d'%sMB} offen{('',' sc1',' nt')[CFG['outsc']]}")

def wbl2(a):
    Lw=a.label("wb"); w=mk("buffer_wbl2 sc1"); w.ghost=1
    return [M(f"s_or_b32 s{sT2}, s{sR}, s{sWV}\ns_cmp_lg_u32 s{sT2}, {CFG['wbid']}\ns_cbranch_scc1 {Lw}")+[w,mk(Lw+":")]]
def finish_kernel(a):
    a(f"s_or_b32 s{sT0}, s2, s{sWV}\ns_cmp_eq_u32 s{sT0}, 0\ns_cselect_b32 s{sT0}, {OFF_NONCE}, {OOB}")
    a(f"buffer_store_dword v{vTAG}, v{vOne}, {srd(WS)}, s{sT0} offen")
    if CFG['stamps'] and a.tag!='S':
        a.stamp("end","*")
        if CFG.get('amp') is not None:
            j=CFG['amp']
            a(f"s_sub_u32 s96, s{STAMP0+j}, s{STAMP0}\ns_mul_i32 s96, s96, {CFG.get('ampk',4)}\ns_add_u32 s96, s96, s{STAMP0+len(stamp_names)-1}")
            a("L_amp:\ns_memrealtime s[100:101]\ns_waitcnt lgkmcnt(0)\ns_sub_u32 s97, s100, s96\ns_cmp_lt_i32 s97, 0\ns_cbranch_scc1 L_amp")
        a("s_memtime s[100:101]\ns_waitcnt lgkmcnt(0)\ns_sub_u32 s99, s100, s99")
        a(f"s_lshl_b32 s{sT0}, s2, 2\ns_add_u32 s{sT0}, s{sT0}, s{sWV}\ns_lshl_b32 s{sT0}, s{sT0}, 8\ns_add_u32 s{sT0}, s{sT0}, {OFF_STAMP}")
        for i in range(len(stamp_names)):
            a(f"v_mov_b32 v40, s{STAMP0+i}")
            a(f"buffer_store_dword v40, v{vOne}, {srd(WS)}, s{sT0} offen offset:{4*i}")
        if CFG.get('trace'): a(f"s_add_u32 s{sT1}, s{sT0}, 0x100000\nbuffer_store_dword v139, v{vFX}, {srd(WS)}, s{sT1} offen")
        a(f"v_mov_b32 v40, s98\nbuffer_store_dword v40, v{vOne}, {srd(WS)}, s{sT0} offen offset:248")
        a(f"v_mov_b32 v40, s99\nbuffer_store_dword v40, v{vOne}, {srd(WS)}, s{sT0} offen offset:252")
    a("s_endpgm")

WV=lambda t:('WVM',t)
WL=lambda t:('WLG',t)
AT=lambda n:('AT',n)

def vm_par(layer):
    C=CFG
    def f(x):
        t=x.tok or ''
        if x.dma:
            if t[0]=='c': return (C['mW'],150,11)
            if t[0]=='h' and layer==0 and 2*int(t[1])+int(t[2]) in SC1K(): return (C['mM'],C['mMs'],8)
            return (C['mL'],C['mLs'],8)
        if t=='tch': return (C['mH'],20,8)
        if t.startswith('w2_'): return (C['mM'],C['mW2'],8)
        if not x.load:
            if x.op.endswith('x4'): return (C['mS1'] if 'sc1' in x.text else C['mS'],70,8)
            return (C['mS1'] if 'sc1' in x.text else 400,10,1)
        if t.endswith(tuple('0123456789')) and '_ppr' in t: return (700,20,22)
        return (C['mL'],25,8) if x.op.endswith('x4') else (C['mL'],10,2)
    return f
def feed(vm,items,t):
    for x in items:
        for y in (x if isinstance(x,list) else [x]):
            if isinstance(y,tuple):
                if y[0]=='WVM': t=max(t,vm.done.get(y[1],t))
            elif y.kind=='vmem': t=vm.issue(y,t)+4
            elif y.kind!='none': t+=4.5
    return t

def body(a):
    P=paced; BY=lambda n:('BY',n); SY=lambda n:('SYNC',n); AF=lambda n,g=0:('AFTER',n,g); GP=lambda n:('GAP',n)
    B=lambda *w:[list(w)+[mk("s_barrier")]]
    C=CFG
    nxs=lambda r,mu: [i for i,x in enumerate(r) if isinstance(x,I) and x.tok==f"xs{mu}"][0]+1
    qs=list(Q)
    a.flat(fin1(a,0,0,ACC0))
    a.stamp("fin1 A","f")
    lA,rA,tA=fin2(a,0,0,ACC0); lB,rB,tB=fin2(a,0,1,232)
    glB,gcB=y_check(a,1)
    pk,ps=pp_pack()
    a.waitvm("yt1")
    if C['pkat']==2:
        a.waitvm("pps"); a(f"buffer_store_dword v{vTAG}, v{vOne}, {srd(WS)}, s{sPF} offen sc1")
    Wp(a,'F1')
    a.flat(lA); a.flat(glB); a.flat(extras(4)); Wp(a,'F2')
    if C['pkat']==0: a.flat(pk); a.flat(ps)
    a.stamp("yB acked","f")
    a.flat(rA[:10]); Wp(a,'FA'); a.flat(rA[10:]); Wp(a,'FX')
    a.stamp("fin2 A","f")
    a.flat(gcB)
    y_stage(a,1,wops(PL().get('SB',"")))
    a.flat(tA)
    ppf=M(f"buffer_store_dword v{vTAG}, v{vOne}, {srd(WS)}, s{sPF} offen sc1")
    if C['pkat']==1: a.flat(pk); a.flat(ps)
    elif C['pkat']==0: a.waitvm("pps"); a.flat(ppf); ppf=[]
    else: ppf=[]
    Wp(a,'FB')
    a.flat(fin1(a,0,1,ACC1))
    a.stamp("fin1 B","f")
    W2Q[:]=w2_loads()
    a(f"s_mul_i32 s{sT0}, s{sCT2}, 43\ns_mul_i32 s{sT1}, s{sKH}, 21\ns_add_u32 s{sT0}, s{sT0}, s{sT1}\ns_lshl_b32 s{sT0}, s{sT0}, 7\ns_add_u32 s{sCK3}, s{sT0}, {OFF_P2F}")
    a(f"v_min_u32 v{PT+3}, 21, v{vLane}\nv_lshlrev_b32 v{PT+3}, 7, v{PT+3}")
    pl_,pc_=a.check([f"buffer_load_dword v{PT+2}, v{PT+3}, {srd(WS)}, s{sCK3} offen sc1"],[f"v_cmp_ne_u32 vcc, s{sTAG}, v{PT+2}"],"pp")
    xl,xc=flag_check(a,XF(0,0),vFX,"xf")
    early='p' in PL().get('XD','')
    Wp(a,'XW'); a.flat(xl)
    if early: a.flat(pl_)
    a.flat(xc)
    if early: a.flat(pc_); pl_=[]; pc_=[]
    a("s_waitcnt lgkmcnt(0)\ns_barrier")
    lead=lB+x_dma(0,0,0,qs[0])+x_dma(0,0,1,qs[0])+rB[:nxs(rB,1)]+wops(PL().get('XD',""))
    a.flat(lead)
    A1,B0,B1,GA,GB,GC=96,192,288,384,472,516
    for layer in range(2):
        g="ab"[layer]
        xa0,xa1,xb0,xb1,e=qs
        hs = lambda k: ' sc1' if (layer==0 and k in SC1K()) else (a.sc or (' nt' if (C['nth'] and layer==1) else ''))
        L0 = layer==0
        a.stamp(f"L{layer} start",g+'m')
        hq=[(xa0,xa1,e),(xb0,xb1,xa0)]
        X=lambda mu,p,q: x_dma(mu,p,0,q)+x_dma(mu,p,1,q)
        H=lambda mu,t,grp: h_dma(mu,t,grp,hq[mu][grp])
        xl,xc=flag_check(a,XF(layer,1),vFX,"xf")
        s7=[]
        def HC(k,after=None,gap=None):
            l,c=flag_check(a,HF(layer,k),vFH,"hf")
            s7.extend([AF('xc'),AF(f"f{k}",after or (C['hca0'] if L0 else C['hca']))]+l+[SY(f"l{k}")]+c+[SY(f"c{k}")])
            return [AF(f"c{k}")]
        sl,sr=s5_get(a,layer,0)
        def SB(n,*w):
            if layer==0: return BAR(*w)
            return a.st(n+" pre","c")+list(w)+a.st(n+" waited","c")+[mk("s_barrier")]+a.st(n+" post","c")
        steps = g1_steps(0,xa0,{0:BAR(WV("x000")),8:BAR(WV("x001"))}) + g1_steps(1,xa1,{0:BAR(WV("x011"))}) \
              + g1_steps(0,xb0,{0:BAR(WV("x101"))}) + g1_steps(1,xb1,{0:BAR(WV("x111"))}) \
              + g2_steps(hq[0],{**({i:[WV(f"w2_{i}")] for i in range(22)} if L0 else {}),0:BAR(WV("h010"),WV("h000"),WV("w2_0")),8:BAR(WV("h011"),WV("h001"),WV("w2_8")),16:BAR(WV("h012"),WV("h002"),WV("w2_16"))}) \
              + g2_pass(hq[1],0,{0:BAR(WV("h101"),WV("h100")),16:BAR(WV("h102"))}) + g2_pass(hq[1],1,{0:BAR(WV("h110")),8:BAR(WV("h111")),16:BAR(WV("h112"))})
        marks={15:a.st(f"L{layer} A0",g),31:a.st(f"L{layer} A1",g),47:a.st(f"L{layer} B0",g),63:a.st(f"L{layer} B1",g),85:a.st(f"L{layer} GA",g)}
        bb=backbone(steps,marks)
        def epi(k):
            E=g1_epi(a,k&1,k>>1,k&1,hs(k))
            if k>0 and L0 and C['hold']:
                n=[i for i,x in enumerate(E) if x.kind=='vmem'][0]; E=E[:n]+[AF(f"l{k-1}")]+E[n:]
            if k<3: return [AT(96*(k+1)+2),('DENS',C['dens0'] if L0 else C['dens1'])]+E+[('DENS',0),SY(f"e{k}"),BY(96*(k+2) if k<2 else GA-30)]
            return [AT(GA+1),('DENS',C['dens'])]+E+[('DENS',0),SY("e3")]+sr
        s3=[]
        for k in range(4): s3+=[AF(f"e{k}")]+h_flag(a,layer,k)+[SY(f"f{k}")]
        YT=ACC1+16
        nq=[xa1,e,xb0,xb1,xa0]
        slB,srB=s5_get(a,layer,1)
        preA,postA=g2_tail(0,e,ACC0,ACC0+8)
        tailA=ex_addr(e)+(unpackY(0,YT) if L0 else [])+slB+[BY(GB),AT(GB+1),('DENS',C['densa'] if L0 else 2)]+preA+[GP(C['exg'])]+B(WL("ew0"))+postA[:2]+[GP(C['exg2'])]+postA[2:]
        if L0:
            lA,rA,tA=fin2(a,1,0,ACC0,YT)
            xlA,xcA=flag_check(a,XF(1,0),vFX,"xf")
            tailA+=fin1(a,1,0,YT,True,ACC0)+[('DENS',0)]+srB+ex_addr(xa0)+[('GAPV',C['gbl'])]+lA+[('DENS',C['dens2'])]+rA[:nxs(rA,0)]+[('DENS',0),SY('r')]+rA[nxs(rA,0):]+unpackY(1,YT)
        else:
            tailA+=out_store(a,0,YT)+[('DENS',0)]+srB+ex_addr(xa0)+([AT(GC+C['wbat'])]+wbl2(a) if C['wbl2'] else [])
        g1=C['g1']
        K=lambda it,c=None,cap=64: bk(it,C['bk'] if c is None else c,cap)
        sA = HC(0)+K(H(0,0,0))+[BY(GA-44),AT(B0-10)]+K(H(0,0,1))+[BY(GA-40)]+K(H(0,0,2))+[BY(GA-38)]
        sB = HC(1)+K(H(0,1,0))+[BY(GA-36)]+K(H(0,1,1))+[BY(GA-4)]+K(H(0,1,2))+[BY(GA+28)]
        sC = HC(2)+K(H(1,0,0))+[BY(GB-34),AT(GA-10)]+K(H(1,0,1))+[BY(GB-30)]
        sD = [AT(GA+54)]+K(H(1,0,2))+[BY(GB)]+HC(3,C['gahl'])+K(H(1,1,0))+[BY(GC-22)]+K(H(1,1,1))+[BY(GC-6)]+K(H(1,1,2))+[BY(GC+10)]
        if L0:
            pl=PL(); pend=pl.get('PEND',[]); rest=pl.get('REST',[])
            s1=[];s2=[]
            for k in rest: s1+=K(wops(f"i{k}"),400)
            rest=[int(str(k).split('@')[0]) for k in rest]
            s1+=[SY('irest')]+K(X(0,1,xa1))+[BY(A1-30)]
            for k in pend: s2+=wops(f"r{k}")+[BY(max(12*k-4,30))]
            last=pend[-1] if pend else None
            if rest:
                s2+=[AF('irest')]+B(WV(f"c{rest[-1]}"))
                for k in rest: s2+=wops(f"r{k}")+[BY(12*k-4)]
                last=rest[-1]
            if last is not None: s2+=[GP(4)]+B(WL(f"cr{last}"))
            s2+=[SY('fr'),AT(C['tin'])]+h_touch(TINK(),127)
            s4=([WV('pps')]+ppf+[GP(40)] if ppf else [])+[AT(C['w2at'])]+pl_+pc_+[AF(C['w2af'])]
            i=(2*CFG.get('w2n',22)-sum(1 for x in W2Q if x.kind=='vmem'))//2
            while W2Q:
                if i==10: s4+=[AF('fB')]
                s4+=K(w2_take(2),C['bkw'],C['capw'])+[BY(GA+4*i-C['w2lead'])]; i+=1
        else:
            s1=[SY('irest'),AF('lB')]+K(X(0,1,xa1))+[BY(A1-30)]; s2=[SY('fr')]; s4=[]
        if L0: s5=[SY('rB')]+rB[nxs(rB,1):]+[SY('fB')]
        else: s5=[AT(C['a0l'])]+lB+[SY('lB'),('DENS',C['densb'])]+rB[:nxs(rB,1)]+[('DENS',0),SY('rB')]+rB[nxs(rB,1):]+[BY(A1)]
        s3=[AF('rB')]+tB+[SY('tB')]+s3
        s1+=[AF('tB',C['a1xl0'] if L0 else C['a1xl'])]+xl+[SY('xl')]+xc+[SY('xc'),AF('fr')]+K(X(1,0,xb0))+[BY(B0-30)]+K(X(1,1,xb1))+[BY(B1-30)]
        s1+=sA+sB+sC+sD
        s6 = ([] if L0 else [AF('xl')])+epi(0)+epi(1)+epi(2)+sl+epi(3)+[BY(GB-12)]+tailA
        vm=VMM(vm_par(layer)); t0=feed(vm,lead,0)
        out,rest=weave(bb,[s3,s7,s1,s4,s2,s5,s6],vm=vm,t0=t0,log=f"L{layer}"+('!' if C.get('v')==2 else '') if (C.get('v') and a.tag=='F') else None)
        a.ext(a.trace(out,CFG.get('tev_',10),f'G{layer}')); a.ext(rest)
        if C.get('v'): print("  leftover after G2(B):",len(rest))
        a.stamp(f"L{layer} GB",g)
        Ls=a.label("sw")
        a(f"s_nop 7\ns_cmp_eq_u32 s{sKH}, 0\ns_cbranch_scc1 {Ls}")
        for k in range(8): a(f"v_swap_b32 v{ACC1+k}, v{ACC1+8+k}")
        a.lab(Ls)
        preB,postB=g2_tail(1,xa0,ACC1,ACC1+8)
        a.flat(preB)
        if L0: a.flat(tA)
        a("s_waitcnt lgkmcnt(0)\ns_barrier")
        a.flat(postB)
        if L0:
            a.flat(fin1(a,1,1,YT,True,ACC1))
            lB,rB,tB=fin2(a,1,1,ACC1,YT)
            a.flat(xlA); a.flat(xcA); lead=X(0,0,nq[0]); a.ext(lead)
        else:
            a.flat(out_store(a,1,YT))
        a.stamp(f"L{layer} tailB",g)
        qs=nq
    finish_kernel(a)

def main():
    a=G('F','')
    entry(a); p0(a); conv(a)
    nfront=len(a.L)
    b=G('S',' sc1'); b.nlab=0
    front=list(a.L)
    body(a)
    rep=[]
    items=finish(a.L,rep)
    print("LDS ordering problems:",lds_check(items))
    for o in a.ool: items+=finish(o)
    items.append(mk("L_fast_end:"))
    if CFG['slow']:
        b.L=front+[mk("L_slow:")]; body(b)
        full=finish(b.L)
        k=[i for i,x in enumerate(full) if x.text=="L_slow:"][0]
        items+=full[k:k+1]+[mk("s_nop 4")]+full[k+1:]
        for o in b.ool: items+=finish(o)
    items.append(mk("L_end:")); items.append(mk("s_endpgm"))
    hdr=open(os.path.join(os.path.dirname(os.path.abspath(__file__)),"header.txt")).read()
    src=kernel_file(NAME,text(items),"; @launch grid=(256,1,1) block=(256,1,1) lds=163840",header=hdr)
    open(sys.argv[1],"w").write(src)
    open("stamp_names.txt","w").write("\n".join(stamp_names)); open("trace_names.txt","w").write("\n".join(trace_names)); open("site_names.txt","w").write(" ".join(site_names))
    n=sum(1 for i in items if i.kind!='none')
    print(f"{n} instructions, {len(src)} bytes of text, {sum(x for x,_ in rep)} nop states padded in fast path")
    if CFG.get('v'):
        for x in rep: print("   pad",x)
main()
```

```python
import sys, os
from asmlib import *
from layout import *

NAME="interleave_layers__ssm_conv_h3__glu_gated_reglu__prompt_kernel"
CFG=dict(z14=1, tpre=1, dot2=1, a1xl0=30, tin=100, mH=1300, hold=1, hca0=24, dens0=5, mW2=75, hat=2, hmid=100, bk=60, bkw=60, capw=64, mL=350, mLs=80, mM=600, mMs=95, mW=850, mS=600, mS1=950, ssmat=0, nth=1, ntx=2, wbat=24, wbid=0, ppat=1, tat=1, pkat=0, fbpre=1, cg0=30, gbt0=28, xg0=16, w2af='irest', densb=4, qat=1, gbs5=8, la=12, clr=1, utouch=0, f1max=2048, cann=56, plan=20, chl=70, cla=9, cdens=3, cslots=2, chc=20, cack=56, rot=1, cm2=70, cm3=120, a0l=1, a0c=24, a1xl=18, dens=5, fl=30, fl0=52, hca=18, hcg=22, g1=4, g2=5, g3=4, dens1=2, gahl=16, gahc=14, hbgap=4, tev=6, tev2=5, dens2=8, densa=5, exg=2, exg2=4, gbl=16, gbc=14, gbt=28, gbxl=20, b0hl=80, w2at=1, w2gap=5, w2lead=32, rrest=56, cgap=5, warm=1, stamps=0, stop=None, slow=1, prefetch=1, touch=2, dgather=1, dstage=1, wbl2=0, outsc=2)
for a_ in sys.argv[2:]:
    k,v=a_.split('='); CFG[k]=int(v) if v.lstrip('-').isdigit() else v

sX,sR,sWV,sG,sM,sRH,sCT2,sKH,sCHH,sTAG,sHELLO=4,5,6,7,8,9,10,11,12,13,14
sT0,sT1,sT2,sT3=3,15,60,61
sCNT=62; sSOFF=63
WS,SK_,SV_,SQ_,SH_,SWG,SWU,SWD,SO_,SSK,SD_=16,20,24,28,32,36,40,44,48,52,56
srd=lambda b:f"s[{b}:{b+3}]"
sXW,sHW,sHK,sHS,sXS,sFL,sGR,sS5,sGRl,sS5l=64,65,66,67,68,69,70,71,72,73
sW1W,sWo,sHF,sW2B=74,75,76,77
sPS,sPD,sPF,sW20=56,57,58,59
sCK1,sCK2,sCK3,sQ=20,21,24,25
sCH,sUO,sMB=26,27,0
sMODE=34; sFLH=23; sC4,sC3,sM4,sM3=52,53,54,55
sFLG=1
STAMP0=78
Q=[0,32768,65536,98304,131072]
TCP=4160; TCH=4*TCP; L_TOEP=0
L_U=2*TCH; UCH=4608
L_K=L_U+2*UCH; CHP=1056; L_V=L_K+9*CHP
L_CX=L_K
L_YS=0
L_WS=65536; WSL=24576
SLOT=[L_WS+k*WSL for k in range(4)]
L_PP=SLOT[3]
SLOT=SLOT[:3]+[8192,36864,L_PP]
vL=1; vOne=2; vTok=3; vGs=4; vGl=5; vS5s=6; vS5l=7; vXD=8; vHD=9; vHS1=10; vHS2=11; vFX=12; vFH=13
vTAG=14; vR2=15
vXst=[16,24]; vYY=[32,36]
ACC0,ACC1,FR,vA0,vA1,EP,PT=40,64,88,112,113,114,122
vW2,vT2,vWc0=126,127,128
vW1=[129,130,131]; vTa,vTm,vWc1=132,133,134
vLane,vJ,vQ,vYo,vD=135,136,137,138,139
vCg,vCs=124,125
vHa=15
vCXw,vCXo,vCXp,vKV,vGA,vGW,vGT,vFT=160,161,162,163,164,165,166,167
vKD,vUP,vPK,vGD,vGC,vQT,vTch=168,172,176,184,192,196,193
W2V=144; W2A=192
def W1(s,t): b=(s*3+t)*4; return f"a[{b}:{b+3}]"
def W1h(s,t,hh): b=(s*3+t)*4+2*hh; return f"a[{b}:{b+1}]"
def W2(i,t):
    k=(i*2+t)*4
    return f"v[{W2V+k}:{W2V+k+3}]" if k<112 else f"a[{W2A+k-112}:{W2A+k-112+3}]"
def W2h(i,t,hh):
    k=(i*2+t)*4+2*hh
    return f"v[{W2V+k}:{W2V+k+1}]" if k<112 else f"a[{W2A+k-112}:{W2A+k-112+1}]"
V=lambda b,n=4: f"v[{b}:{b+n-1}]"
OOB=0x7FFFFF00
vST=lambda: 140 if CFG.get('trace')=='CV' else 139
POLLMAX=1<<16
def M(text,tok=None): return [mk(l.strip(),tok) for l in text.split('\n') if l.strip()]
BAR=lambda *pre: list(pre)+[mk("s_barrier")]

trace_names=[]; stamp_names=[]; site_names=[]
class G(Asm):
    def __init__(s,tag='',sc=''):
        super().__init__(); s.tag=tag; s.sc=sc; s.ool=[]
    def st(s,name,grp='m'):
        if not CFG['stamps'] or s.tag=='S': return []
        if grp!='*' and not any(c in str(CFG['stamps']) for c in grp): return []
        stamp_names.append(name); i=len(stamp_names)-1
        assert i<20, "too many stamps"
        return M(f"{'s_memtime' if CFG.get('clk') else 's_memrealtime'} s[100:101]\ns_waitcnt lgkmcnt(0)\ns_mov_b32 s{STAMP0+i}, s100")
    def trace(s, items, every, name):
        if s.tag=='S' or CFG.get('trace')!=name: return items
        out=[]; n=0
        for it in items:
            out.append(it)
            if isinstance(it,I) and it.kind=='mfma':
                if n%every==0: out+=s.light(f"{name}+{n}")
                n+=1
        return out+s.light(name+" end")+M("s_nop 15\ns_nop 15\ns_nop 15\ns_nop 15")+s.light(None)+s.light(None)
    def light(s,name):
        k=len(trace_names); trace_names.append(name or "")
        L=[]
        if name: x=mk(f"s_memtime s[{90+2*(k%3)}:{91+2*(k%3)}]"); x.light=1; x.defs=set(); L.append(x)
        if k>=2: L+=M(f"v_writelane_b32 v{vST()}, s{90+2*((k-2)%3)}, {k-2}")
        return L
    def stamp(s,name,grp='m'): s.ext(s.st(name,grp))
    def lr(s,n,*r): LR([i for i in s.L[-n:] if isinstance(i,I)],*r)
    def lw(s,n,*r): LW([i for i in s.L[-n:] if isinstance(i,I)],*r)
    def label(s,p): s.nlab+=1; return f"L{s.tag}_{p}_{s.nlab}"
    def check(s, loads, checks, name):
        R=s.label(name+'r'); L=s.label(name+'l'); B=s.label(name+'b')
        o=Asm(); o.lab(R); o(f"s_mov_b32 s{sCNT}, 0")
        if CFG['stamps'] and s.tag!='S':
            n=len(site_names); site_names.append(name); o(f"s_bitset1_b32 s98, {n}")
        o.lab(L)
        for l in loads: o(l)
        o("s_waitcnt vmcnt(0)")
        for c in checks: o(c)
        o(f"s_cbranch_vccz {B}\ns_add_u32 s{sCNT}, s{sCNT}, 1\ns_cmp_lt_u32 s{sCNT}, {POLLMAX}\ns_cbranch_scc1 {L}\ns_branch {B}")
        s.ool.append(o.L)
        ck=[mk(c) for c in checks]
        return [mk(l,R) for l in loads], [('WVM',R)]+ck[:-1]+[[ck[-1],mk(f"s_cbranch_vccnz {R}"),mk(B+":")]]
    def flat(s, items):
        for it in items:
            if isinstance(it,list): s.ext(it)
            elif isinstance(it,tuple) and it[0] in('AT','GAP','GAPV','SYNC','AFTER','BY','DENS','BK'): pass
            else: s.L.append(it)
    def weave(s, bb, *streams, slots=2, name=None):
        out,rest=weave(bb,streams,slots)
        s.ext(s.trace(out,CFG.get('tev_',4),name) if name else out); s.ext(rest)
        if rest and CFG.get('v'): print("  leftover fillers:",len(rest),[getattr(r,'text',r) for r in rest[:2]])

def entry(a):
    a.stamp("entry","*")
    if CFG["stamps"]: a("s_memtime s[100:101]\ns_waitcnt lgkmcnt(0)\ns_mov_b32 s99, s100\ns_mov_b32 s98, 0")
    a("s_cmp_ge_u32 s2, 256\ns_cbranch_scc1 L_end")
    for b,off in ((SK_,8),(SV_,16),(WS,96),(SSK,24),(SH_,32),(SD_,40),(SQ_,0),(SWG,56),(SWU,64),(SWD,72),(SO_,80)):
        a(f"s_load_dwordx2 s[{b}:{b+1}], s[0:1], {off}")
    a(f"v_lshrrev_b32 v40, 6, v0\nv_and_b32 v{vLane}, 63, v0")
    a(f"s_and_b32 s{sX}, s2, 7\ns_lshr_b32 s{sR}, s2, 3")
    a(f"v_readfirstlane_b32 s{sWV}, v40")
    a(f"v_lshlrev_b32 v{vL}, 4, v{vLane}")
    if CFG['prefetch']:
        a(f"s_getpc_b64 s[{sT2}:{sT2+1}]")
        a("L_pc:")
        a(f"s_lshl_b32 s{sT0}, s{sWV}, 5\ns_add_u32 s{sT0}, s{sT0}, s{sR}\ns_lshl_b32 s{sT0}, s{sT0}, 10")
        a(f"v_add_u32 v42, s{sT0}, v{vL}\nv_min_u32 v42, L_fast_end-L_pc-16, v42")
        a(f"v_mov_b32 v43, s{sT2+1}\nv_add_co_u32 v42, vcc, s{sT2}, v42")
        a(f"v_lshrrev_b32 v48, 3, v{vLane}\nv_and_b32 v49, 7, v{vLane}")
        a("v_addc_co_u32 v43, vcc, 0, v43, vcc")
        a("global_load_dwordx4 v[44:47], v[42:43], off")
    else:
        a(f"v_lshrrev_b32 v48, 3, v{vLane}\nv_and_b32 v49, 7, v{vLane}")
    a(f"v_lshlrev_b32 v49, 4, v49\nv_lshl_add_u32 v{vW2}, v48, 10, v49")
    a(f"s_lshl_b32 s{sT0}, s{sR}, 16\ns_lshl_b32 s{sT1}, s{sX}, 7\ns_add_u32 s{sT0}, s{sT0}, s{sT1}")
    a(f"s_sub_u32 s{sT1}, s{sT0}, 8192\nv_add_u32 v49, s{sT1}, v{vW2}")
    a(f"s_lshl_b32 s{sT1}, s{sWV}, 13\ns_add_u32 s{sT0}, s{sT0}, s{sT1}\nv_add_u32 v48, s{sT0}, v{vW2}")
    a(f"s_mul_i32 s{sT1}, s{sWV}, {CHP}\ns_mov_b32 s{sSOFF}, 32768")
    for b,n in ((SK_,2<<20),(SV_,2<<20),(WS,256<<20),(SSK,4096)):
        a(f"s_mov_b32 s{b+2}, {n}\ns_mov_b32 s{b+3}, 0x20000")
    a(f"v_and_b32 v{vJ}, 15, v{vLane}\nv_lshrrev_b32 v{vQ}, 4, v{vLane}")
    a(f"s_lshl_b32 s{sT0}, s{sX}, 6\ns_lshl_b32 s{sT2}, s{sWV}, 4\ns_add_u32 s{sT0}, s{sT0}, s{sT2}\nv_add_u32 v55, s{sT0}, v{vJ}")
    a(f"v_lshlrev_b32 v78, 3, v55\nv_mov_b32 v50, 0")
    a(f"s_add_u32 m0, s{sT1}, {L_K+CHP}\ns_mov_b32 s{sT2}, {L_V+8*CHP}")
    a("s_waitcnt lgkmcnt(0)"); a.stamp("kernarg","f")
    if CFG.get('probe'):
        if CFG['probe']==1: a("s_load_dwordx2 s[96:97], s[0:1], 48\ns_waitcnt lgkmcnt(0)\ns_mov_b32 s98, 0x200000\ns_mov_b32 s99, 0x20000"); S="s[96:99]"; base=0
        else: S=srd(WS); base=CFG['probe']<<24
        a(f"s_lshl_b32 s95, s2, 2\ns_add_u32 s95, s95, s{sWV}\ns_lshl_b32 s95, s95, 11\ns_add_u32 s95, s95, {base}\nv_mov_b32 v60, s95")
        for i in range(16):
            a(f"buffer_load_dword v61, v60, {S}, 0 offen offset:{128*i}\nv_and_b32 v61, 0, v61\nv_add_u32 v60, v60, v61")
    a(f"buffer_load_dwordx4 v48, {srd(SK_)}, 0 offen lds","kv")
    a(f"s_add_u32 m0, s{sT1}, {L_V}");       a(f"buffer_load_dwordx4 v48, {srd(SV_)}, 0 offen lds","kv")
    a(f"s_add_u32 m0, s{sT1}, {L_K+5*CHP}"); a(f"buffer_load_dwordx4 v48, {srd(SK_)}, s{sSOFF} offen lds","kv")
    a(f"s_add_u32 m0, s{sT1}, {L_V+4*CHP}"); a(f"buffer_load_dwordx4 v48, {srd(SV_)}, s{sSOFF} offen lds","kv")
    a(f"s_cmp_eq_u32 s{sWV}, 3\ns_cselect_b32 m0, {L_K}, s{sT2}\ns_cselect_b32 s{sSOFF}, 0, {OOB}")
    a(f"buffer_load_dwordx4 v49, {srd(SK_)}, s{sSOFF} offen lds","kv")
    a.lw(13,(L_K,L_V+8*CHP+1024))
    a(f"buffer_load_dwordx2 {V(80,2)}, v78, {srd(SSK)}, 0 offen")
    a(f"buffer_load_dword v51, v50, {srd(WS)}, 0 offen sc1")
    a.stamp("kv issued","f")
    for b,n in ((SH_,4096),(SD_,1024),(SQ_,2<<20),(SWG,512*1376*2),(SWU,512*1376*2),(SWD,512*1376*2),(SO_,2<<20)):
        a(f"s_mov_b32 s{b+2}, {n}\ns_mov_b32 s{b+3}, 0x20000")
    a(f"""s_lshr_b32 s{sT0}, s{sR}, 4
        s_lshl_b32 s{sG}, s{sX}, 1
        s_add_u32 s{sG}, s{sG}, s{sT0}
        s_and_b32 s{sM}, s{sR}, 15
        s_lshr_b32 s{sRH}, s{sM}, 3
        s_and_b32 s{sCT2}, s{sM}, 7
        s_lshr_b32 s{sKH}, s{sWV}, 1
        s_and_b32 s{sCHH}, s{sWV}, 1
        s_mov_b32 s{sMB}, 0x100000""")
    a(f"s_cmp_eq_u32 s{sM}, 15\ns_cselect_b32 s{SWG+2}, 0, s{SWG+2}\ns_cselect_b32 s{SWU+2}, 0, s{SWU+2}")
    a(f"s_lshl_b32 s{sT0}, s{sX}, 6\ns_lshl_b32 s{sT1}, s{sR}, 1\ns_add_u32 s{sT0}, s{sT0}, s{sT1}\ns_add_u32 s{sT2}, s{sT0}, s{sKH}")
    a(f"s_lshl_b32 s{sT0}, s{sT2}, 12\ns_add_u32 s{SH_}, s{SH_}, s{sT0}\ns_addc_u32 s{SH_+1}, s{SH_+1}, 0")
    a(f"s_lshl_b32 s{sT0}, s{sCHH}, 11\nv_add_u32 v52, s{sT0}, v{vL}")
    a(f"v_min_u32 v53, 1, v{vLane}\nv_lshlrev_b32 v53, 4, v53\nv_subrev_u32 v53, 32, v53")
    a(f"s_lshl_b32 s{sT0}, s{sT2}, 1\nv_mov_b32 v{vD}, s{sT0}")
    if CFG['ssmat']==0: ssm_loads(a)
    a(f"""v_and_b32 v96, 1, v{vQ}
        v_lshlrev_b32 v96, 2, v96
        v_lshrrev_b32 v97, 2, v{vJ}
        v_add_u32 v96, v96, v97
        v_lshlrev_b32 v96, 16, v96
        v_and_b32 v97, 3, v{vJ}
        v_lshl_add_u32 v96, v97, 5, v96
        v_lshrrev_b32 v97, 1, v{vQ}
        v_lshl_add_u32 v96, v97, 4, v96
        s_lshl_b32 s{sT0}, s{sCHH}, 19
        s_lshl_b32 s{sT1}, s{sT2}, 7
        s_add_u32 s{sT0}, s{sT0}, s{sT1}
        s_add_u32 s{sT0}, s{sT0}, {OFF_YT}
        v_add_u32 v{vYo}, s{sT0}, v96
        s_mov_b32 s{sHELLO}, s{sT2}""")
    a(f"v_mov_b32 v{vOne}, {OOB}\nv_cmp_eq_u32 vcc, 0, v{vLane}\nv_cndmask_b32 v{vOne}, v{vOne}, v50, vcc")
    a(f"""s_lshl_b32 s{sT0}, s{sG}, 2
        s_lshl_b32 s{sT1}, s{sRH}, 1
        s_add_u32 s{sT1}, s{sT1}, s{sKH}
        s_add_u32 s{sT0}, s{sT0}, s{sT1}
        s_lshl_b32 s{sT1}, s{sKH}, 1
        s_add_u32 s{sT1}, s{sT1}, s{sRH}""")
    a(f"""s_lshl_b32 s{sGRl}, s{sT0}, 12
        s_add_u32 s{sGRl}, s{sGRl}, {OFF_GRAN}
        s_lshl_b32 s{sS5l}, s{sT0}, 10
        s_add_u32 s{sS5l}, s{sS5l}, {OFF_S5}
        s_lshl_b32 s{sT3}, s{sCT2}, 1
        s_add_u32 s{sT3}, s{sT3}, s{sCHH}""")
    a(f"""s_lshl_b32 s{sGR}, s{sT3}, 8
        s_add_u32 s{sGR}, s{sGR}, s{sGRl}
        s_lshl_b32 s{sS5}, s{sT3}, 2
        s_add_u32 s{sS5}, s{sS5}, s{sS5l}
        s_lshl_b32 s{sXS}, s{sG}, 17
        s_lshl_b32 s{sT1}, s{sT1}, 14
        s_add_u32 s{sXS}, s{sXS}, s{sT1}
        s_lshl_b32 s{sT1}, s{sX}, {1 if CFG['rot'] else 8}
        s_sub_u32 s{sT1}, s{sT3}, s{sT1}
        s_and_b32 s{sT1}, s{sT1}, 15
        s_lshl_b32 s{sT1}, s{sT1}, 10
        s_add_u32 s{sXS}, s{sXS}, s{sT1}
        s_add_u32 s{sXS}, s{sXS}, {OFF_XF}
        s_lshl_b32 s{sT0}, s{sT0}, 14
        s_lshl_b32 s{sT1}, s{sT3}, 6
        s_add_u32 s{sT0}, s{sT0}, s{sT1}""")
    a(f"v_lshlrev_b32 v{vTok}, 10, v{vJ}\nv_lshl_add_u32 v{vTok}, v{vQ}, 4, v{vTok}\nv_add_u32 v{vTok}, s{sT0}, v{vTok}")
    a(f"v_lshlrev_b32 v{vGs}, 4, v{vJ}\nv_lshl_add_u32 v{vGl}, v{vQ}, 10, v{vGs}\nv_lshl_add_u32 v{vGs}, v{vQ}, 2, v{vGs}")
    a(f"v_lshlrev_b32 v{vS5l}, 6, v{vJ}\nv_mov_b32 v{vS5s}, {OOB}\nv_cmp_eq_u32 vcc, 0, v{vQ}\nv_cndmask_b32 v{vS5s}, v{vS5s}, v{vS5l}, vcc")
    a(f"v_lshl_add_u32 v{vS5l}, v{vQ}, 4, v{vS5l}")
    a(f"s_lshl_b32 s{sT0}, s{sX}, 5\ns_add_u32 s{sT0}, s{sT0}, s{sR}\ns_lshl_b32 s{sHF}, s{sT0}, 7\ns_lshl_b32 s{sT0}, s{sWV}, 2\ns_add_u32 s{sHF}, s{sHF}, s{sT0}\ns_add_u32 s{sHF}, s{sHF}, {OFF_HELLO}")
    a(f"""s_lshl_b32 s{sXW}, s{sCHH}, 14
        s_lshl_b32 s{sT0}, s{sKH}, 12
        s_add_u32 s{sXW}, s{sXW}, s{sT0}
        s_lshl_b32 s{sT0}, s{sG}, 17
        s_add_u32 s{sT0}, s{sT0}, s{sXW}
        s_add_u32 s{sT0}, s{sT0}, {OFF_XF}
        v_add_u32 v{vXD}, s{sT0}, v{vL}
        s_lshl_b32 s{sHW}, s{sWV}, 13
        s_mul_i32 s{sHK}, s{sKH}, {3*8192}
        s_lshl_b32 s{sHS}, s{sKH}, 13
        s_add_u32 s{sHS}, s{sHS}, 8192
        s_lshl_b32 s{sT0}, s{sG}, 3
        s_add_u32 s{sT1}, s{sRH}, s{sT0}
        s_mul_i32 s{sT1}, s{sT1}, {HKS}
        s_mul_i32 s{sT3}, s{sKH}, 21
        s_add_u32 s{sT1}, s{sT1}, s{sT3}
        s_lshl_b32 s{sT1}, s{sT1}, 10
        s_add_u32 s{sT1}, s{sT1}, {OFF_H}
        v_add_u32 v{vHD}, s{sT1}, v{vL}""")
    a(f"""s_mul_i32 s{sT0}, s{sT0}, {HKS*1024}
        s_mul_i32 s{sT1}, s{sM}, 12
        s_mul_i32 s{sT3}, s{sWV}, 3
        s_add_u32 s{sT1}, s{sT1}, s{sT3}
        s_lshl_b32 s{sT1}, s{sT1}, 8
        s_add_u32 s{sT0}, s{sT0}, s{sT1}
        s_add_u32 s{sT0}, s{sT0}, {OFF_H}
        s_mov_b32 s{sT1}, {HKS*1024}
        v_lshlrev_b32 v97, 4, v{vJ}
        v_add_u32 v97, s{sT0}, v97
        v_and_b32 v98, 1, v{vQ}
        v_mad_u32_u24 v{vHS1}, v98, s{sT1}, v97
        v_add_u32 v{vHS2}, 512, v{vHS1}
        v_cmp_gt_u32 vcc, 32, v{vLane}
        v_mov_b32 v97, {OOB}
        v_cndmask_b32 v{vHS2}, v97, v{vHS2}, vcc
        v_lshrrev_b32 v98, 1, v{vQ}
        v_lshl_add_u32 v{vHS1}, v98, 8, v{vHS1}
        v_lshlrev_b32 v{vFX}, 2, v{vLane}
        v_min_u32 v{vFH}, 57, v{vLane}
        v_lshlrev_b32 v{vFH}, 2, v{vFH}
        s_lshl_b32 s{sFL}, s{sG}, 9
        s_lshl_b32 s{sFLG}, s{sM}, 2
        s_add_u32 s{sFLG}, s{sFLG}, s{sWV}
        s_lshl_b32 s{sFLG}, s{sFLG}, 2
        s_add_u32 s{sFLG}, s{sFLG}, s{sFL}
        s_nop 0""")
    w_setup(a)
    a(f"""v_mul_u32_u24 v83, {2*CHP}, v{vQ}
        v_bfe_u32 v101, v{vLane}, 2, 2
        v_lshl_add_u32 v83, v101, 7, v83
        v_and_b32 v101, 3, v{vLane}
        v_lshl_add_u32 v83, v101, 3, v83
        s_lshl_b32 s{sT0}, s{sWV}, 5
        v_add_u32 v83, s{sT0}, v83""")
    a(f"v_and_b32 v55, -9, v55\nv_lshlrev_b32 v55, 12, v55\nv_lshl_add_u32 v55, v{vQ}, 5, v55\nv_lshrrev_b32 v101, 3, v{vJ}\nv_lshl_add_u32 v55, v101, 4, v55\ns_lshl_b32 s{sT0}, s{sR}, 7\ns_add_u32 s{sT0}, s{sT0}, {OFF_KVT}\nv_add_u32 v55, s{sT0}, v55")
    a(f"v_lshrrev_b32 v100, 5, v{vLane}\nv_mul_u32_u24 v100, {UCH-512}, v100\nv_add_u32 v100, v100, v{vL}")
    a("v_mov_b32 v104, 0\nv_mov_b32 v105, 0\nv_mov_b32 v106, 0\nv_mov_b32 v107, 0")
    a(f"ds_write_b128 v100, {V(104)} offset:{L_U}"); a.lw(1,(L_U,L_U+512),(L_U+UCH,L_U+UCH+512))
    a(f"""s_lshl_b32 s{sT0}, s{sWV}, 12
        s_add_u32 s{sT1}, s{sT0}, {L_CX}
        v_add_u32 v{vCXw}, s{sT1}, v{vL}
        s_lshl_b32 s{sT2}, s{sCHH}, 11
        v_add_u32 v{vCXo}, s{sT2}, v{vCXw}
        v_xor_b32 v{vCXp}, 4096, v{vL}
        s_xor_b32 s{sT0}, s{sT0}, 4096
        s_add_u32 s{sT0}, s{sT0}, s{sT2}
        s_add_u32 s{sT0}, s{sT0}, {L_CX}
        v_add_u32 v{vCXp}, s{sT0}, v{vL}
        s_lshl_b32 s{sT0}, s{sCHH}, 10
        s_mul_i32 s{sT1}, s{sKH}, {UCH}
        s_add_u32 s{sT0}, s{sT0}, s{sT1}
        s_add_u32 s{sT0}, s{sT0}, {L_U+512+8}
        v_lshlrev_b32 v{vKV}, 5, v{vJ}
        v_lshrrev_b32 v100, 1, v{vQ}
        v_lshl_add_u32 v{vKV}, v100, 4, v{vKV}
        v_and_b32 v100, 1, v{vQ}
        v_lshlrev_b32 v100, 3, v100
        v_sub_u32 v{vKV}, v{vKV}, v100
        v_add_u32 v{vKV}, s{sT0}, v{vKV}
        v_lshrrev_b32 v100, 2, v0
        v_lshlrev_b32 v100, 7, v100
        v_and_b32 v101, 3, v0
        v_lshl_add_u32 v100, v101, 4, v100
        s_lshl_b32 s{sT0}, s{sG}, 16
        s_lshl_b32 s{sT1}, s{sCT2}, 13
        s_add_u32 s{sT0}, s{sT0}, s{sT1}
        s_lshl_b32 s{sT1}, s{sRH}, 6
        s_add_u32 s{sT0}, s{sT0}, s{sT1}
        s_add_u32 s{sT0}, s{sT0}, {OFF_YT}
        v_add_u32 v{vGA}, s{sT0}, v100
        v_lshlrev_b32 v{vGW}, 4, v0
        v_bfe_u32 v100, v{vLane}, 2, 2
        v_lshl_add_u32 v100, v{vQ}, 3, v100
        v_lshlrev_b32 v100, 6, v100
        v_and_b32 v101, 3, v{vLane}
        v_lshl_add_u32 v100, v101, 3, v100
        s_lshl_b32 s{sT0}, s{sCHH}, 11
        s_lshl_b32 s{sT1}, s{sKH}, 5
        s_add_u32 s{sT0}, s{sT0}, s{sT1}
        v_add_u32 v{vGT}, s{sT0}, v100
        v_and_b32 v100, 7, v{vLane}
        v_lshlrev_b32 v100, 7, v100
        v_bfe_u32 v101, v{vLane}, 3, 2
        v_lshl_add_u32 v100, v101, 14, v100
        s_lshl_b32 s{sT0}, s{sFL}, 1
        s_add_u32 s{sT0}, s{sT0}, {OFF_XFLAG}
        v_add_u32 v{vFT}, s{sT0}, v100
        v_and_b32 v100, 31, v{vLane}
        v_lshlrev_b32 v100, 7, v100
        v_cmp_gt_u32 vcc, 32, v{vLane}
        s_lshl_b32 s{sT0}, s{sCT2}, 12
        s_lshl_b32 s{sT1}, s{sX}, 12
        v_mov_b32 v101, s{sT0}
        v_mov_b32 v102, s{sT1}
        v_cndmask_b32 v101, v101, v102, vcc
        v_add_u32 v100, {OFF_HELLO}, v100
        v_add_u32 v{vHa}, v100, v101""")
    a(f"""s_lshl_b32 s{sT0}, s{sHELLO}, 12
        s_lshl_b32 s{sT1}, s{sCHH}, 11
        s_add_u32 s{sT0}, s{sT0}, s{sT1}
        s_add_u32 s{sT0}, s{sT0}, {OFF_KVT}
        v_lshlrev_b32 v100, 7, v{vLane}
        v_add_u32 v100, s{sT0}, v100
        s_lshr_b32 s{sT0}, s{sR}, 3
        s_lshl_b32 s{sT1}, s{sX}, 2
        s_add_u32 s{sT0}, s{sT0}, s{sT1}
        s_lshl_b32 s{sT0}, s{sT0}, 7
        s_add_u32 s{sT0}, s{sT0}, {OFF_F1L}
        v_mov_b32 v101, s{sT0}
        v_cmp_gt_u32 vcc, 16, v{vLane}
        v_cndmask_b32 v{vTch}, v101, v100, vcc""")
    if CFG['utouch']==0: a(f"buffer_load_dword v{vTch}, v{vTch}, {srd(WS)}, 0 offen sc1")
    if CFG['ssmat']==1: ssm_loads(a)
    a(f"""v_lshlrev_b32 v{vCg}, 4, v{vJ}
        v_lshl_add_u32 v{vCg}, v{vQ}, 18, v{vCg}
        v_lshrrev_b32 v{vCs}, 3, v{vLane}
        v_lshlrev_b32 v{vCs}, 16, v{vCs}
        v_and_b32 v100, 7, v{vLane}
        v_lshl_add_u32 v{vCs}, v100, 4, v{vCs}
        s_lshl_b32 s{sT0}, s{sCHH}, 17
        s_lshl_b32 s{sT1}, s{sCT2}, 7
        s_add_u32 s{sT0}, s{sT0}, s{sT1}
        s_add_u32 s{sT0}, s{sT0}, s{sS5l}
        v_add_u32 v{vCs}, s{sT0}, v{vCs}
        v_cmp_gt_u32 vcc, 16, v{vLane}
        v_mov_b32 v100, {OOB}
        v_add_u32 v{vCg}, s{sGR}, v{vCg}
        v_cndmask_b32 v{vCs}, v100, v{vCs}, vcc""")
    if CFG['clr']==0: clears(a)
    a.stamp("setup done","f")

def ssm_loads(a):
    a(f"s_mul_i32 s{sT0}, s{sKH}, {UCH}\ns_lshl_b32 s{sT1}, s{sCHH}, 11\ns_add_u32 s{sT0}, s{sT0}, s{sT1}\ns_add_u32 m0, s{sT0}, {L_U+512}")
    a(f"buffer_load_dwordx4 v{vL}, {srd(SH_)}, s{sT1} offen lds\nbuffer_load_dwordx4 v{vL}, {srd(SH_)}, s{sT1} offen offset:1024 lds","ssm")
    a.lw(2,(L_U+512,L_U+UCH),(L_U+UCH+512,L_U+2*UCH))
    a(f"buffer_load_ushort v{vD}, v{vD}, {srd(SD_)}, 0 offen")

def clears(a,tok=None):
    a("v_mov_b32 v112, -1\nv_mov_b32 v113, -1\nv_mov_b32 v114, -1\nv_mov_b32 v115, -1")
    a(f"""buffer_store_dwordx4 {V(112)}, v{vYo}, {srd(WS)}, 0 offen sc1
        buffer_store_dwordx4 {V(112)}, v{vYo}, {srd(WS)}, s{sMB} offen sc1
        buffer_store_dwordx4 {V(112)}, v{vCg}, {srd(WS)}, 0 offen sc1
        buffer_store_dwordx4 {V(112)}, v{vCs}, {srd(WS)}, 0 offen sc1""",tok)

def w_setup(a):
    lane,j,q=vLane,vJ,vQ
    for b in range(3):
        a(f"v_add_u32 v100, {64*b}, v{lane}\nv_mul_u32_u24 v101, 43691, v100\nv_lshrrev_b32 v101, 19, v101")
        a(f"v_mul_u32_u24 v102, 12, v101\nv_sub_u32 v100, v100, v102\nv_lshlrev_b32 v100, 4, v100")
        a(f"v_mul_u32_u24 v101, 2752, v101\nv_add_u32 v{vW1[b]}, v100, v101")
        if CFG['z14']: a(f"s_cmp_eq_u32 s{sM}, 14\ns_cselect_b32 s{sT0}, 64, 192\nv_cmp_gt_u32 vcc, s{sT0}, v100\nv_mov_b32 v101, 0x40000000\nv_cndmask_b32 v{vW1[b]}, v101, v{vW1[b]}, vcc")
    a(f"s_mul_i32 s{sT0}, s{sWV}, {16*2752}\ns_mul_i32 s{sT1}, s{sM}, 192\ns_add_u32 s{sT0}, s{sT0}, s{sT1}")
    for b in range(3):
        a(f"v_add_u32 v{vW1[b]}, s{sT0}, v{vW1[b]}")
        if b: a(f"v_subrev_u32 v{vW1[b]}, {1024*b}, v{vW1[b]}")
    a(f"""v_bfe_u32 v100, v{lane}, 2, 2
        v_lshl_add_u32 v100, v{q}, 3, v100
        v_and_b32 v101, 3, v{lane}
        v_mul_u32_u24 v102, 192, v100
        s_mul_i32 s{sT0}, s{sWV}, 48
        v_add_u32 v102, s{sT0}, v102
        v_lshl_add_u32 v{vTa}, v101, 3, v102
        v_and_b32 v103, 1, v101
        v_mul_u32_u24 v103, 12288, v103
        v_add_u32 v102, v102, v103
        v_lshrrev_b32 v103, 1, v101
        v_lshl_add_u32 v102, v103, 3, v102
        v_add_u32 v{vTm}, 32, v102
        v_lshlrev_b32 v102, 7, v100
        v_lshl_add_u32 v102, v101, 4, v102
        s_lshl_b32 s{sT1}, s{sWV}, 12
        s_add_u32 s{sT1}, s{sT1}, {L_PP}
        v_add_u32 v{vT2}, s{sT1}, v102
        s_mul_i32 s{sW1W}, s{sWV}, 3072""")

def c_dma(n, slot):
    if CFG.get('now1'): return []
    L=M(f"s_add_u32 s{sWo}, s{sX}, {n}\ns_and_b32 s{sWo}, s{sWo}, 7\ns_mul_i32 s{sWo}, s{sWo}, {64*2752}") if CFG['rot'] else M(f"s_mov_b32 s{sWo}, {n*64*2752}")
    for mat,S in ((0,SWG),(1,SWU)):
        L+=M(f"s_add_u32 m0, s{sW1W}, {slot+mat*12288}")
        for b in range(3): L+=M(f"buffer_load_dwordx4 v{vW1[b]}, {srd(S)}, s{sWo} offen offset:{1024*b} lds",f"c{n}")
    return LW(L,(slot,slot+WSL))
def c_read(n, slot):
    if CFG.get('now1'): return []
    L=M(f"v_add_u32 v{vWc0}, {slot}, v{vTa}\nv_add_u32 v{vWc1}, {slot}, v{vTm}")
    for sp in range(2):
        s=2*n+sp
        for hh in range(2):
            o=sp*6144+hh*768
            L+=M(f"""ds_read_b64_tr_b16 {W1h(s,0,hh)}, v{vWc0} offset:{o}
                     ds_read_b64_tr_b16 {W1h(s,1,hh)}, v{vWc0} offset:{o+12288}
                     ds_read_b64_tr_b16 {W1h(s,2,hh)}, v{vWc1} offset:{o}""",f"cr{n}")
    return LR(L,(slot,slot+WSL))
def pp_setup():
    return M(f"""s_lshl_b32 s{sT0}, s{sWV}, 8
        s_add_u32 s{sT0}, s{sT0}, s2
        s_mul_i32 s{sT1}, s{sT0}, 1525
        s_lshr_b32 s{sT1}, s{sT1}, 16
        s_mul_i32 s{sT2}, s{sT1}, 43
        s_sub_u32 s{sT2}, s{sT0}, s{sT2}
        s_lshl_b32 s{sPS}, s{sT2}, 15
        s_lshl_b32 s{sT3}, s{sT1}, 7
        s_add_u32 s{sPS}, s{sPS}, s{sT3}
        s_mul_i32 s{sPD}, s{sT1}, 86
        s_add_u32 s{sPD}, s{sPD}, s{sT2}
        s_lshl_b32 s{sPD}, s{sPD}, 11
        s_add_u32 s{sPD}, s{sPD}, {OFF_P2}
        s_lshl_b32 s{sPF}, s{sT0}, 7
        s_add_u32 s{sPF}, s{sPF}, {OFF_P2F}
        s_cmp_lt_u32 s{sT0}, 344
        s_cselect_b32 s{sPS}, s{sPS}, {OOB}
        s_cselect_b32 s{sPD}, s{sPD}, {OOB}
        s_cselect_b32 s{sPF}, s{sPF}, {OOB}
        s_lshl_b32 s{sT0}, s{sCT2}, 1
        s_add_u32 s{sT0}, s{sT0}, s{sCHH}
        s_mul_i32 s{sT0}, s{sT0}, 43
        s_mul_i32 s{sT1}, s{sKH}, 21
        s_add_u32 s{sT0}, s{sT0}, s{sT1}
        s_lshl_b32 s{sT0}, s{sT0}, 11
        s_add_u32 s{sW2B}, s{sT0}, {OFF_P2}
        s_cmp_eq_u32 s{sKH}, 0
        s_cselect_b32 s{sW20}, s{sW2B}, {OOB}""")
def pp_load():
    L=M(f"s_lshl_b32 s{sT3}, s{sWV}, 12")
    for r in range(4):
        L+=M(f"s_add_u32 m0, s{sT3}, {L_PP+1024*r}\ns_add_u32 s{sWo}, s{sPS}, {8192*r}")
        L+=M(f"buffer_load_dwordx4 v{vW2}, {srd(SWD)}, s{sWo} offen lds","pp")
    for x in L: x.priv=1
    return LW(L,(L_PP,L_PP+16384))
def touches():
    return M(f"""buffer_load_dword v{vCg}, v{vCg}, {srd(WS)}, 0 offen sc1
        buffer_load_dword v{vCs}, v{vCs}, {srd(WS)}, 0 offen sc1
        buffer_load_dword v{vFT}, v{vFT}, {srd(WS)}, 0 offen sc1""")
def extras(pos): return (pp_load() if CFG['ppat']==pos else [])+(touches() if CFG['tat']==pos else [])+(h_touch(TCHK()) if CFG['hat']==pos else [])
def pp_pack():
    L=[('WVM','pp')]
    for c in range(2):
        for t in range(2):
            for hh in range(2): L+=LR(M(f"ds_read_b64_tr_b16 {V(W2V+8*c+4*t+2*hh,2)}, v{vT2} offset:{hh*512+64*c+8*t}"),(L_PP,L_PP+16384))
    for x in L[1:]: x.priv=1
    S=[]
    for c in range(2):
        S+=M(f"s_add_u32 s{sT2}, s{sPD}, {c*43*2048}")
        for t in range(2): S+=M(f"buffer_store_dwordx4 {V(W2V+8*c+4*t)}, v{vL}, {srd(WS)}, s{sT2} offen offset:{1024*t} sc1","pps")
    return L,S
def w2_loads():
    L=[]
    for i in range(CFG.get('w2n',22)):
        so=sW20 if i==0 else (sW2B if i==1 else sPS)
        if i>=2 and i%2==0: L+=M(f"s_add_u32 s{sPS}, s{sW2B}, {i*2048}")
        for t in range(2): L+=M(f"buffer_load_dwordx4 {W2(i,t)}, v{vL}, {srd(WS)}, s{so} offen offset:{(i&1)*2048+t*1024} sc1",f"w2_{i}")
    return L
W2Q=[]
def w2_take(n):
    out=[]
    while W2Q and n>0:
        x=W2Q.pop(0); out.append(x)
        if x.kind=='vmem': n-=1
    return out

PLANS={
 0:dict(),
 1:dict(FL="i0", T2="i1", CV=[("a",20,"r0"),("d",40,"i2"),("a",84,"w1 b r1"),("d",100,"i3@0")], YS="i4@5", YA="w3 b r2 r3", GL="i5@1 w4 l b r4", ST="i6@2", PEND=[5,6], REST=["7@0"]),
 3:dict(FL="i0", T2="i1 w0 b r0", CV=[("d",2,"i2"),("d",68,"i3@0")], CE="w2", YS="r1 r2 i4@3", F1="r3", F2="i5@1", FB="r4", XD="", PEND=[5], REST=["6@2","7@0"]),
 6:dict(T2="i0", CV=[("d",40,"i1"),("d",90,"i2")], CE="w1", YS="i3@3 r0 r1", SA="w2", F1="r2 i4@0", F2="", FX="i5@1", SB="w4", FB="r3 r4", XD="", PEND=[5], REST=["6@2","7@0"]),
 8:dict(T0="i0", FL="i1", T2="i2 w1 b r0 r1", CV=[("d",20,"i3@0"),("d",68,"i4@1")], CE="w3", YS="i5@3 r2 r3", F1="r4", F2="i6@2", FX="i7@0", FB="r5", PEND=[6,7]),
 12:dict(T0="i0", FL="i1", T2="i2 w1 b r0 r1", CV=[("d",20,"i3@0"),("d",68,"i4@1")], CE="w3", YS="i5@3 r2 r3", F1="r4", F2="i6@2", FX="i7@0", FB="r5", XD="p6", PEND=[6,7]),
 13:dict(T0="i0", FL="i1", T2="i2", CV=[("a",6,"r0 r1"),("a",52,"L1 b"),("d",54,"i3@0"),("d",100,"i4@1")], CE="w3", YS="i5@3 r2 r3", SA="w4", F1="r4", F2="i6@2", FX="i7@0", FB="r5", PEND=[6,7]),
 14:dict(T0="i0", T2="i1", CV=[("a",6,"r0"),("d",24,"i2"),("d",70,"i3@0")], CE="w2", YS="i4@3 r1 r2", F1="r3", F2="i5@1", FX="i6@2", FB="r4", PEND=[5,6], REST=["7@0"]),
 15:dict(FL="i0", T2="i1", CV=[("a",6,"r0"),("d",4,"i2"),("a",40,"w1 L0 b r1"),("d",50,"i3@0"),("a",94,"w2 L1 b r2"),("d",98,"i4@1")], CE="w3", YS="i5@3 r3", SA="w4", F1="r4", F2="i6@2", FX="i7@0", FB="r5", PEND=[6,7]),
 16:dict(T1="i0", T2="i1", CV=[("a",6,"r0"),("d",4,"i2"),("a",40,"w1 L0 b r1"),("d",50,"i3@0"),("a",94,"w2 L1 b r2"),("d",98,"i4@1")], CE="w3", YS="i5@3 r3", SA="w4", F1="r4", F2="i6@2", FX="i7@0", FB="r5", PEND=[6,7]),
 17:dict(T0="i0", FL="i1", T2="i2", CV=[("a",6,"r0 r1"),("a",52,"L1 b"),("d",54,"i3@0"),("d",100,"i4@1")], CE="w3", Y0="i5@3", SA="w4", YS="r2 r3 r4", FX="l b i6@2", FB="i7@0 r5", PEND=[6,7]),
 18:dict(T0="i0", FL="i1", T2="i2", CV=[("a",6,"r0 r1"),("a",52,"L1 b"),("d",54,"i3@0"),("d",100,"i4@1")], CE="w3", SA="w4", YS="i5@3 r2 r3 r4", F2="l b i6@2", FX="i7@0", FB="r5", PEND=[6,7]),
 20:dict(T0="i0", FL="i1", T2="i2", CV=[("a",6,"r0 r1"),("a",52,"L1 b"),("d",54,"i3@0"),("d",100,"i4@1")], CE="w3", SA="w4", YS="i5@3 r2 r3 r4", FA="l b i6@2", FX="i7@0", FB="r5", PEND=[6,7]),
 21:dict(T0="i0", FL="i1", T2="i2", CV=[("a",6,"r0 r1"),("a",52,"L1 b"),("d",54,"i3@0"),("d",100,"i4@1")], CE="w3", Y0="i5@3", SA="w4", YS="r2 r3 r4 l b i6@2", FX="i7@0", FB="r5", PEND=[6,7]),
 19:dict(T0="i0", FL="i1", T2="i2", CV=[("a",6,"r0 r1"),("a",52,"L1 b"),("d",54,"i3@0"),("d",100,"i4@1")], CE="w3", Y0="i5@3", SA="w4", YS="r2 r3 r4", FA="l b i6@2", FX="i7@0", FB="r5", PEND=[6,7]),
 10:dict(T0="i0", T2="i1 w0 b r0", CV=[("d",20,"i2"),("d",68,"i3@0")], CE="w2", YS="i4@3 r1 r2", F1="r3", F2="i5@1", FX="i6@2", FB="r4", PEND=[5,6], REST=["7@0"]),
 11:dict(T0="i0", T1="i1", T2="i2 w1 b r0 r1", CV=[("d",14,"i3@0"),("d",56,"i4@1"),("a",70,"w2 b r2"),("a",96,"L2 b"),("d",100,"i5@2")], CE="w4", YS="i6@3 r3 r4", SA="w5", F1="r5", F2="i7@0", FB="r6", XD="p4", PEND=[7]),
 7:dict(FL="i0", T2="i1 w0 b r0", CV=[("d",20,"i2"),("d",68,"i3@0")], CE="w2", YS="i4@3 r1 r2", F1="r3", F2="i5@1", FX="i6@2", FB="r4", PEND=[5,6], REST=["7@0"]),
 4:dict(FL="i0", T2="i1 w0 b r0", CV=[("d",2,"i2"),("d",50,"i3@0")], CE="w2", YS="i4@3 r1 r2", F1="r3", F2="i5@1", FX="i6@2", FB="r4", PEND=[5,6], REST=["7@0"]),
 5:dict(T1="i0", FL="", T2="i1 w0 b r0", CV=[("d",2,"i2"),("d",46,"i3@0"),("a",60,"w1 b r1"),("a",84,"L1 b"),("d",92,"i4@1")], CE="w3", YS="i5@3 r2 r3", SA="w4", F1="r4", F2="i6@2", FX="i7@0", FB="r5", PEND=[6,7]),
 2:dict(FL="i0", T2="i1", CV=[("a",20,"r0"),("d",30,"i2"),("a",70,"w1 b r1"),("d",80,"i3@0"),("a",124,"w2 b r2")], YS="i4@5 i5@1", YA="w4 b r3 r4", GL="i6@2 w5 l b r5", ST="i7@0", PEND=[6,7], FA="p4", FB="p4", XD="p4"),
 9:dict(ST="i0 i1 "+" ".join(f"w{n} l b "+(f"i{n+2} " if n+2<8 else "")+f"r{n}" for n in range(8))+" l b"),
}
slot_of={}
def wops(txt):
    L=[]
    for op in txt.split():
        at=None
        if '@' in op: op,at=op.split('@'); at=int(at)
        k=int(op[1:]) if len(op)>1 else None
        if op[0]=='i': slot_of[k]=SLOT[at if at is not None else k%3]; L+=c_dma(k,slot_of[k])
        elif op[0]=='r': L+=c_read(k,slot_of[k])
        elif op[0]=='w': L.append(('WVM',f"c{k}"))
        elif op[0]=='l': L+=M("s_waitcnt lgkmcnt(0)")
        elif op[0]=='L': L.append(('WLG',f"cr{k}"))
        elif op[0]=='b': L+=M("s_barrier")
        elif op[0]=='p': L+=w2_take(k)
    return L
def PL(): return eval(CFG['plan']) if isinstance(CFG['plan'],str) else PLANS[CFG['plan']]
def Wp(a,point): a.flat(wops(PL().get(point,"")))

def toeplitz(a):
    a("s_waitcnt lgkmcnt(0)\ns_barrier")
    a(f"s_mul_i32 s{sT0}, s{sKH}, {UCH}\ns_add_u32 s{sT0}, s{sT0}, {L_U+512}\nv_add_u32 v54, s{sT0}, v52\nv_add_u32 v78, s{sT0}, v53")
    for rho,(va,off) in enumerate(((54,0),(54,1024),(78,0))):
        d=56+8*rho
        a(f"ds_read_b128 {V(d)}, v{va} offset:{off}\nds_read_b64 {V(d+4,2)}, v{va} offset:{off+16}","raw"); a.lr(2,(L_U,L_U+2*UCH))
    a(f"s_mul_i32 s{sT0}, s{sKH}, {TCH}\ns_add_u32 s{sT0}, s{sT0}, {L_TOEP+32}")
    a(f"v_add_u32 v52, s{sT0}, v52\nv_add_u32 v53, s{sT0}, v53")
    for rho,(va,off) in enumerate(((52,0),(52,1024),(53,0))):
        d=56+8*rho; t=100+12*(rho%2)
        a(f"ds_write_b128 v{va}, {V(d)} offset:{off}")
        for i in range(4): a(f"v_alignbit_b32 v{t+i}, v{d+i+1}, v{d+i}, 16")
        a(f"ds_write_b128 v{va}, {V(t)} offset:{off+TCP}")
        for i in range(4): a(f"v_mov_b32 v{t+4+i}, v{d+i+1}")
        a(f"ds_write_b128 v{va}, {V(t+4)} offset:{off+2*TCP}")
        for i in range(4): a(f"v_alignbit_b32 v{t+8+i}, v{d+i+2}, v{d+i+1}, 16")
        a(f"ds_write_b128 v{va}, {V(t+8)} offset:{off+3*TCP}"); a.lw(16,(L_TOEP,L_TOEP+2*TCH))
        if rho==1: a.waitlg("raw"); a("s_barrier")

def p0(a):
    a.waitvm("kv"); a("s_barrier")
    a.stamp("kv landed","f")
    KR=84; VR=94
    for i in range(5):
        R=4+4*i; a(f"ds_read_b64_tr_b16 {V(KR+2*i,2)}, v83 offset:{L_K+(R>>3)*CHP+(R&7)*128}")
    for i in range(4):
        R=4*i; a(f"ds_read_b64_tr_b16 {V(VR+2*i,2)}, v83 offset:{L_V+(R>>3)*CHP+(R&7)*128}")
    a.lr(9,(L_K,L_V+8*CHP))
    Wp(a,'T0')
    O=16
    if CFG['dot2']:
        a("""v_alignbit_b32 v40, v80, v80, 16
            v_alignbit_b32 v41, v81, v81, 16
            v_and_b32 v42, 0xffff, v80
            v_and_b32 v43, 0xffff0000, v81
            v_and_b32 v44, 0xffff0000, v80
            v_and_b32 v45, 0xffff, v81
            v_or_b32 v44, v44, v45""")
        for i in range(8):
            P=KR+2+i
            a(f"v_dot2_f32_bf16 v{O+2*i}, v{P}, v42, 0\nv_dot2_f32_bf16 v{O+2*i+1}, v{P}, v40, 0")
        for i in range(8):
            P=KR+2+i
            a(f"v_dot2_f32_bf16 v{O+2*i}, v{P-1}, v44, v{O+2*i}\nv_dot2_f32_bf16 v{O+2*i+1}, v{P-1}, v41, v{O+2*i+1}")
        for i in range(8): a(f"v_dot2_f32_bf16 v{O+2*i}, v{KR+i}, v43, v{O+2*i}")
    else:
        a("v_lshlrev_b32 v40, 16, v80\nv_and_b32 v41, 0xffff0000, v80\nv_lshlrev_b32 v42, 16, v81\nv_and_b32 v43, 0xffff0000, v81")
        K=lambda t: 108+t-2
        for i in range(10):
            if i>0: a(f"v_lshlrev_b32 v{102+2*i}, 16, v{KR+i}")
            a(f"v_and_b32 v{103+2*i}, 0xffff0000, v{KR+i}")
        for t in range(16):
            a(f"v_mul_f32 v{O+t}, v40, v{K(t)}")
            a(f"v_fmac_f32 v{O+t}, v41, v{K(t-1)}")
            a(f"v_fmac_f32 v{O+t}, v42, v{K(t-2)}")
            a(f"v_fmac_f32 v{O+t}, v43, v{K(t-3)}")
    for i in range(8):
        a(f"v_lshlrev_b32 v102, 16, v{VR+i}\nv_and_b32 v103, 0xffff0000, v{VR+i}")
        a(f"v_mul_f32 v{O+2*i}, v{O+2*i}, v102\nv_mul_f32 v{O+1+2*i}, v{O+1+2*i}, v103")
    for o in range(2):
        for d in range(4): a(f"v_cvt_pk_bf16_f32 v{KR+4*o+d}, v{O+8*o+7-2*d}, v{O+8*o+6-2*d}")
    for d in range(4): a(f"v_mov_b32 v{102+d}, v{KR+4+d}")
    for d in range(4): a(f"v_mov_b32_dpp v{KR+4+d}, v{KR+d} row_ror:8 row_mask:0xf bank_mask:0x3")
    for d in range(4): a(f"v_mov_b32_dpp v{KR+d}, v{102+d} row_ror:8 row_mask:0xf bank_mask:0xc")
    a(f"s_mov_b32 s{sT0}, 32768")
    a(f"buffer_store_dwordx4 {V(KR)}, v55, {srd(WS)}, 0 offen\nbuffer_store_dwordx4 {V(KR+4)}, v55, {srd(WS)}, s{sT0} offen","kvs")
    if CFG['utouch']==1: a(f"buffer_load_dword v{vTch}, v{vTch}, {srd(WS)}, 0 offen sc1")
    a.stamp("p0 computed","f")
    if CFG['clr']==1: clears(a)
    Wp(a,'T1')
    a(f"s_mov_b32 s{sCH}, s{sHELLO}\ns_getreg_b32 s{sHELLO}, hwreg(HW_REG_XCC_ID, 0, 4)")
    a(f"v_readfirstlane_b32 s{sTAG}, v51")
    a(f"s_add_u32 s{sTAG}, s{sTAG}, 0x9E3779B0\ns_and_b32 s{sTAG}, s{sTAG}, 0xFFFFFFF0\ns_and_b32 s{sHELLO}, s{sHELLO}, 15\ns_or_b32 s{sHELLO}, s{sHELLO}, s{sTAG}")
    a(f"v_mov_b32 v{vTAG}, s{sTAG}\nv_mov_b32 v98, s{sHELLO}")
    a.ext(pp_setup())
    a(f"""s_add_u32 s{sFLH}, s{sFLG}, s{sFL}
        s_lshl_b32 s{sC4}, s{sCHH}, 12
        s_mul_i32 s{sC3}, s{sCHH}, 3072
        s_lshl_b32 s{sM4}, s{sKH}, 14
        s_add_u32 s{sM3}, s{sM4}, s{sC3}
        s_add_u32 s{sM4}, s{sM4}, s{sC4}""")
    a(f"s_lshl_b32 s{sT0}, s{sX}, 2\ns_add_u32 s{sT1}, s{sT0}, s{sWV}\ns_lshl_b32 s{sT1}, s{sT1}, 5\ns_add_u32 s{sT1}, s{sT1}, s{sR}\ns_lshl_b32 s{sT1}, s{sT1}, 2\ns_add_u32 s{sT1}, s{sT1}, {OFF_F1L}")
    a(f"s_lshr_b32 s{sCK1}, s{sR}, 3\ns_add_u32 s{sCK1}, s{sCK1}, s{sT0}\ns_lshl_b32 s{sCK1}, s{sCK1}, 7\ns_add_u32 s{sCK1}, s{sCK1}, {OFF_F1L}")
    a(f"v_and_b32 v97, 31, v{vLane}\nv_lshlrev_b32 v97, 2, v97\ns_mov_b32 s{sMODE}, 0")
    if CFG['tpre']: a.waitvm("ssm"); toeplitz(a)
    a.waitvm("kvs")
    a(f"buffer_store_dword v98, v{vOne}, {srd(WS)}, s{sT1} offen")
    a.stamp("kvT published","f")
    if CFG['clr']==3: clears(a)
    if CFG['qat']==0: a(f"buffer_load_dwordx4 {V(vQT)}, v{vTok}, {srd(SQ_)}, 0 offen\nbuffer_load_dwordx4 {V(vQT+4)}, v{vTok}, {srd(SQ_)}, s{sMB} offen")
    a.flat(extras(0))
    Wp(a,'FL')
    if not CFG['tpre']: toeplitz(a)
    a(f"""s_lshl_b32 s{sT0}, s{sCH}, 12
        s_lshl_b32 s{sT1}, s{sCHH}, 11
        s_add_u32 s{sT0}, s{sT0}, s{sT1}
        s_add_u32 s{sT0}, s{sT0}, {OFF_KVT}
        s_mul_i32 s{sUO}, s{sKH}, {UCH}
        s_add_u32 s{sT1}, s{sT1}, s{sUO}""")
    a.stamp("toeplitz","f")
    o=Asm(); o.lab("L_f1r"); o(f"s_mov_b32 s{sCNT}, 0")
    if CFG['stamps']: site_names.append("f1"); o(f"s_bitset1_b32 s98, {len(site_names)-1}")
    o.lab("L_f1l")
    o(f"""buffer_load_dword v99, v97, {srd(WS)}, s{sCK1} offen sc1
        s_waitcnt vmcnt(0)
        v_cmp_ne_u32 vcc, s{sHELLO}, v99
        s_cbranch_vccz L_f1b
        s_add_u32 s{sCNT}, s{sCNT}, 1
        s_cmp_lt_u32 s{sCNT}, {CFG['f1max']}
        s_cbranch_scc1 L_f1l""")
    o.lab("L_f1s")
    o(f"""s_mov_b32 s{sMODE}, 1
        s_mov_b32 s{sT2}, 32768
        buffer_store_dwordx4 {V(KR)}, v55, {srd(WS)}, 0 offen sc1
        buffer_store_dwordx4 {V(KR+4)}, v55, {srd(WS)}, s{sT2} offen sc1
        s_lshl_b32 s{sT2}, s{sX}, 2
        s_add_u32 s{sT3}, s{sT2}, s{sWV}
        s_lshl_b32 s{sT3}, s{sT3}, 5
        s_add_u32 s{sT3}, s{sT3}, s{sR}
        s_lshl_b32 s{sT3}, s{sT3}, 7
        s_add_u32 s{sT3}, s{sT3}, {OFF_F1}
        s_lshr_b32 s{sCK1}, s{sR}, 3
        s_add_u32 s{sCK1}, s{sCK1}, s{sT2}
        s_lshl_b32 s{sCK1}, s{sCK1}, 12
        s_add_u32 s{sCK1}, s{sCK1}, {OFF_F1}
        v_lshlrev_b32 v97, 5, v97
        s_waitcnt vmcnt(0)
        buffer_store_dword v{vTAG}, v{vOne}, {srd(WS)}, s{sT3} offen sc1
        s_mov_b32 s{sCNT}, 0""")
    o.lab("L_f1g")
    o(f"""buffer_load_dword v99, v97, {srd(WS)}, s{sCK1} offen sc1
        s_waitcnt vmcnt(0)
        v_cmp_ne_u32 vcc, s{sTAG}, v99
        s_cbranch_vccz L_f1b
        s_add_u32 s{sCNT}, s{sCNT}, 1
        s_cmp_lt_u32 s{sCNT}, {POLLMAX}
        s_cbranch_scc1 L_f1g
        s_branch L_f1b""")
    a.ool.append(o.L)
    ck=M(f"v_cmp_ne_u32 vcc, s{sHELLO}, v99\ns_cbranch_vccnz L_f1r\nL_f1b:") if CFG['slow']!=2 else M("s_waitcnt vmcnt(0)\ns_branch L_f1s\nL_f1b:")
    a(f"buffer_load_dword v99, v97, {srd(WS)}, s{sCK1} offen sc1")
    a(f"""s_lshl_b32 s{sT3}, s{sCHH}, 8
        s_sub_u32 s{sT2}, s{sUO}, s{sT3}
        s_add_u32 s{sT2}, s{sT2}, {L_U+480-192}
        v_lshlrev_b32 v141, 5, v{vJ}
        v_lshl_add_u32 v141, v{vQ}, 4, v141
        v_add_u32 v141, s{sT2}, v141
        v_add_u32 v142, 1, v{vJ}
        v_and_b32 v143, 3, v142
        v_mul_u32_u24 v143, {TCP}, v143
        v_lshrrev_b32 v142, 2, v142
        v_lshl_add_u32 v142, v142, 3, v143
        v_lshlrev_b32 v143, 4, v{vQ}
        v_sub_u32 v142, v142, v143
        s_mul_i32 s{sT2}, s{sKH}, {TCH}
        s_add_u32 s{sT2}, s{sT2}, s{sT3}
        s_add_u32 s{sT2}, s{sT2}, {L_TOEP+48}
        v_add_u32 v142, s{sT2}, v142
        s_add_u32 m0, s{sT1}, {L_U+512}""")
    a.flat(ck)
    a.stamp("f1 seen","f")
    a(f"buffer_load_dwordx4 v{vL}, {srd(WS)}, s{sT0} offen sc1 lds","u")
    a(f"buffer_load_dwordx4 v{vL}, {srd(WS)}, s{sT0} offen offset:1024 sc1 lds","u")
    a.lw(2,(L_U+512,L_U+UCH),(L_U+UCH+512,L_U+2*UCH))
    if CFG['clr']==4: clears(a,"clr")
    if CFG['clr'] in(1,3): a(f"buffer_store_dword v98, v{vOne}, {srd(WS)}, s{sHF} offen sc1")
    a.flat(extras(5))
    Wp(a,'T2')
    a(f"v_lshlrev_b32 v{vD}, 16, v{vD}")
    a.waitvm("u"); a("s_waitcnt lgkmcnt(0)\ns_barrier")
    a.stamp("U landed","f")

def conv_backbone():
    ACC=40; GR=72; Ureg=[16,20,24,28,32,36,104,108]
    seq=[]
    for it in range(4):
        o=4*(it&1)
        for e in range(4):
            for w in range(3-e,-1,-1): seq.append((w+e,o+e,o+w,('G',e,it,1),('U',w,it,1),it==0 and e==0))
    n1=len(seq)
    for it in range(4):
        pairs=[(e,w) for e in range(8) for w in range(7-e,max(0,4-e)-1,-1)]
        if it==0: pairs=[p for p in pairs if p[0]<4 and p[1]<4]+[p for p in pairs if not(p[0]<4 and p[1]<4)]
        seen=set()
        for e,w in pairs:
            seq.append((w+e,e,w,('G',e,it,2),('U',w,it,2),it==0 and (w+e) not in seen)); seen.add(w+e)
    reads={}; lastuse={}
    for n,(c,g,u,gid,uid,f) in enumerate(seq):
        for ph,i in ((('G',g),gid),(('U',u),uid)):
            if i not in reads: reads[i]=dict(ph=ph,need=n,earliest=lastuse.get(ph,-1))
            lastuse[ph]=n
    def emit(i):
        kind,k,it,_=i; ph=reads[i]['ph'][1]
        if kind=='U': return [LR(mk(f"ds_read_b128 {V(Ureg[ph])}, v141 offset:{512*k+192-64*it}"),(L_U,L_U+2*UCH))]
        return LR([mk(f"ds_read_b64 {V(GR+4*ph,2)}, v142 offset:{512*k+64*it}"),mk(f"ds_read_b64 {V(GR+4*ph+2,2)}, v142 offset:{512*k+64*it+8}")],(L_TOEP,L_TOEP+2*TCH))
    todo=[]
    for i in sorted(reads,key=lambda i:reads[i]['need']):
        for x in emit(i): todo.append((reads[i]['earliest'],reads[i]['need'],x))
    bb=[x for e,n,x in todo if n<4]; todo=[t for t in todo if t[1]>=4]
    for n,(c,g,u,gid,uid,f) in enumerate(seq):
        bb.append(mk(f"v_mfma_f32_16x16x32_bf16 {V(ACC+4*c)}, {V(GR+4*g)}, {V(Ureg[u])}, {'0' if f else V(ACC+4*c)}"))
        k=0
        while True:
            cand=[t for t in todo if t[0]<=n]
            if not cand: break
            t=cand[0]
            if k>=1 and not(k<2 and t[1]-n<=CFG['cla']) and not t[1]-n<=2: break
            bb.append(t[2]); todo.remove(t); k+=1
    assert not todo
    return bb,n1

def conv_epi(st):
    ACC=40+16*st; P=vPK+4*st; R=(L_CX,L_CX+16384)
    W=LW([mk(f"ds_write_b128 v{vCXw}, {V(ACC+4*k)} offset:{1024*k}",f"cx{st}") for k in range(4)],R)
    K=LR([mk(f"ds_read_b64 {V(vKD+2*k,2)}, v{vKV} offset:{2048*st+512*k}") for k in range(2)],(L_U,L_U+2*UCH))
    L=[]
    for k in range(2): L+=LR(M(f"ds_read_b128 {V(ACC+4*k)}, v{vCXo} offset:{1024*k}\nds_read_b128 {V(ACC+8+4*k)}, v{vCXp} offset:{1024*k}",f"cy{st}"),R)
    for k in range(2):
        A=ACC+4*k
        L+=M(f"v_and_b32 v{vUP}, 0xffff0000, v{vKD+1+2*k}\nv_lshlrev_b32 v{vUP+1}, 16, v{vKD+1+2*k}\nv_and_b32 v{vUP+2}, 0xffff0000, v{vKD+2*k}\nv_lshlrev_b32 v{vUP+3}, 16, v{vKD+2*k}")
        for r in range(4): L+=M(f"v_fmac_f32 v{A+r}, v{vD}, v{vUP+r}")
        for r in range(4): L+=M(f"v_add_f32 v{A+r}, v{A+r}, v{A+8+r}")
        L+=M(f"v_cvt_pk_bf16_f32 v{P+2*k}, v{A}, v{A+1}\nv_cvt_pk_bf16_f32 v{P+1+2*k}, v{A+2}, v{A+3}")
    L+=M(f"s_nop 0\nv_permlane16_swap_b32 v{P}, v{P+2}\nv_permlane16_swap_b32 v{P+1}, v{P+3}")
    L+=M(f"buffer_store_dwordx4 {V(P)}, v{vYo}, {srd(WS)}, {'0' if st==0 else 's%d'%sMB} offen sc1",f"yt{st}")
    return W+K,L

def y_check(a,mu):
    D=vGD+4*mu
    return a.check([f"buffer_load_dwordx4 {V(D)}, v{vGA}, {srd(WS)}, {'0' if mu==0 else 's%d'%sMB} offen sc1"],
         [f"v_max3_u32 v{vGC}, v{D}, v{D+1}, v{D+2}",f"v_max_u32 v{vGC}, v{vGC}, v{D+3}",f"v_cmp_eq_u32 vcc, -1, v{vGC}"],"yt")
def y_stage(a,mu,mid=[]):
    a(f"ds_write_b128 v{vGW}, {V(vGD+4*mu)} offset:{L_YS+4096*mu}"); a.lw(1,(L_YS+4096*mu,L_YS+4096*mu+4096))
    a.flat(mid)
    a("s_waitcnt lgkmcnt(0)\ns_barrier")
    for hh in range(2):
        a(f"ds_read_b64_tr_b16 {V(vYY[mu]+2*hh,2)}, v{vGT} offset:{L_YS+4096*mu+256*hh}")
        a.lr(1,(L_YS+4096*mu,L_YS+4096*mu+4096))

def x0_state(mu):
    S=SX[mu]; L=M(f"v_mov_b32 v{vGC}, 0x3f803f80")
    for i in range(4): L+=M(f"v_lshlrev_b32 v{vXst[mu]+2*i}, 16, v{vQT+4*mu+i}\nv_and_b32 v{vXst[mu]+2*i+1}, 0xffff0000, v{vQT+4*mu+i}")
    for i in range(4):
        q=vQT+4*mu+i
        L+=M(f"v_dot2_f32_bf16 v{S}, v{q}, v{vGC}, {'0' if i==0 else 'v%d'%S}\nv_dot2_f32_bf16 v{S+1}, v{q}, v{q}, {'0' if i==0 else 'v%d'%(S+1)}")
    return L

def conv(a):
    C=CFG
    bb,n1=conv_backbone()
    qld=M(f"""buffer_load_dwordx4 {V(vQT)}, v{vTok}, {srd(SQ_)}, 0 offen
        buffer_load_dwordx4 {V(vQT+4)}, v{vTok}, {srd(SQ_)}, s{sMB} offen
        buffer_load_dword v{vCg}, v{vCg}, {srd(WS)}, 0 offen sc1
        buffer_load_dword v{vCs}, v{vCs}, {srd(WS)}, 0 offen sc1
        buffer_load_dword v{vFT}, v{vFT}, {srd(WS)}, 0 offen sc1""")
    hl,hc=a.check([f"buffer_load_dwordx4 {V(112)}, v{vHa}, {srd(WS)}, 0 offen sc1"],
         [f"v_xor_b32 v113, s{sTAG}, v113",f"v_xor_b32 v114, s{sTAG}, v114",f"v_xor_b32 v115, s{sTAG}, v115",
          "v_or3_b32 v113, v113, v114, v115",f"v_xor_b32 v114, s{sTAG}, v112","v_or_b32 v113, v113, v114","v_cmp_lt_u32 vcc, 15, v113"],"h2")
    pk,ps=pp_pack()
    dmas=paced((qld[:2] if C['qat']==1 else [])+extras(1),3); fill=[]
    for kind,at,ops in PL().get('CV',[]):
        it=wops(ops)
        if kind=='d': dmas+=[('AT',at)]+paced(it,C['cgap'])
        else:
            k=[i for i,x in enumerate(it) if isinstance(x,I) and x.op=='s_barrier']
            if k: it=[it[:k[0]+1]]+it[k[0]+1:]
            fill+=[('AT',at)]+it
    dmas+=[('AT',C['hmid'])]+paced(extras(6),3)
    w0,e0=conv_epi(0)
    gl,a.gcA=y_check(a,0)
    crit=[('AT',n1+2),('DENS',C['cdens'])]+w0+[('GAP',3),[('WLG','cx0'),mk("s_barrier")]]+e0[:-1]+([] if C['clr']==4 else [('AFTER','hl')])+e0[-1:]+[('DENS',0),('SYNC','y0'),('AFTER','hl',C['chc'])]+hc \
        +[[('WLG','cy0'),mk("s_barrier")],('AFTER','y0',C['cack']),('WVM','yt0')]+gl+[('SYNC','g0')]
    ann=[('AT',C['cann']),('WVM','clr')]+M(f"buffer_store_dword v{vTAG}, v{vOne}, {srd(WS)}, s{sHF} offen sc1") if C['clr']==4 else []
    third=ann+[('AT',C['chl'])]+hl+[('SYNC','hl'),('AFTER','g0'),('AFTER','dd')]+paced((qld[:2] if C['qat']==2 else [])+extras(2),2)
    a.weave(bb,crit,dmas+[('SYNC','dd')],fill,third,slots=C['cslots'],name='CV')
    a.stamp("conv mfma done","f")
    w1,e1=conv_epi(1)
    Wp(a,'CE')
    a.flat(w1); a("s_waitcnt lgkmcnt(0)\ns_barrier"); a.flat(e1)
    if CFG.get('trace')=='CV': a("v_mov_b32 v139, v140")
    a.stamp("yT stored","f")
    Wp(a,'Y0')
    a.flat(x0_state(0))
    a.flat(a.gcA)
    a.stamp("yA gathered","f")
    y_stage(a,0,wops(PL().get('SA',"")))
    Wp(a,'ST')
    if CFG['slow']: a(f"s_cmp_lg_u32 s{sMODE}, 0\ns_cbranch_scc1 L_slow")

def unpackY(mu,T):
    L=[]
    for i in range(4): L+=M(f"v_lshlrev_b32 v{T+2*i}, 16, v{vYY[mu]+i}\nv_and_b32 v{T+2*i+1}, 0xffff0000, v{vYY[mu]+i}")
    return L
def treduce(s0,s1,s2,s3,gap=[]):
    return M(f"v_permlane32_swap_b32 v{s0}, v{s2}\nv_permlane32_swap_b32 v{s1}, v{s3}\nv_add_f32 v{s0}, v{s0}, v{s2}\nv_add_f32 v{s1}, v{s1}, v{s3}")+gap+M(f"v_permlane16_swap_b32 v{s0}, v{s1}\nv_add_f32 v{s0}, v{s0}, v{s1}")

SX=[104,106]
def fin1a(mu,S=None):
    X=vXst[mu]; S=SX[mu] if S is None else S
    L=M(f"v_add_f32 v{S}, v{X}, v{X+1}\nv_mul_f32 v{S+1}, v{X}, v{X}")
    for e in range(1,8):
        if e>1: L+=M(f"v_add_f32 v{S}, v{S}, v{X+e}")
        L+=M(f"v_fmac_f32 v{S+1}, v{X+e}, v{X+e}")
    return L
def fin1(a, layer, mu, T, unpacked=False, S=None):
    X=vXst[mu]; L=[] if unpacked else unpackY(mu,T); S=T+8 if S is None else S
    s0=SX[mu] if layer==0 else S
    A=[] if layer==0 else fin1a(mu,S)
    Bq=M(f"v_mul_f32 v{S+2}, v{X}, v{T}\nv_add_f32 v{S+3}, v{T}, v{T+1}")
    for e in range(1,8):
        Bq+=M(f"v_fmac_f32 v{S+2}, v{X+e}, v{T+e}")
        if e>1: Bq+=M(f"v_add_f32 v{S+3}, v{S+3}, v{T+e}")
    while A or Bq:
        if A: L.append(A.pop(0))
        if Bq: L.append(Bq.pop(0))
    L+=treduce(s0,s0+1,S+2,S+3,M(f"s_add_u32 s{sT0}, s{sGR}, {(layer*2+mu)*262144}"))
    L+=M(f"buffer_store_dword v{s0}, v{vGs}, {srd(WS)}, s{sT0} offen{a.sc}")
    return L

def fin2(a, layer, mu, T, Y=None):
    X=vXst[mu]; Gd=T; up=unpackY(mu,T+16) if Y is None else []; Y=T+16 if Y is None else Y
    ld,ck=a.check([f"buffer_load_dwordx4 {V(Gd+4*i)}, v{vGl}, {srd(WS)}, s{sCK2} offen offset:{256*i} sc1" for i in range(4)],
         [f"v_max3_u32 v{PT}, v{Gd}, v{Gd+1}, v{Gd+2}"]+[f"v_max3_u32 v{PT}, v{PT}, v{Gd+3+2*i}, v{Gd+4+2*i}" for i in range(6)]+[f"v_max_u32 v{PT}, v{PT}, v{Gd+15}",f"v_cmp_eq_u32 vcc, -1, v{PT}"],"gr")
    ld=M(f"s_add_u32 s{sCK2}, s{sGRl}, {(layer*2+mu)*262144}")+ld+up
    L=list(ck)
    for k in range(4): L+=M(f"v_add_f32 v{Gd+k}, v{Gd+k}, v{Gd+4+k}\nv_add_f32 v{Gd+8+k}, v{Gd+8+k}, v{Gd+12+k}")
    for k in (0,2,1,3): L+=M(f"v_add_f32 v{Gd+k}, v{Gd+k}, v{Gd+8+k}")
    L+=treduce(Gd,Gd+1,Gd+2,Gd+3)
    A,B,C,D=Gd,Gd+1,Gd+2,Gd+3
    L+=M(f"v_mov_b32 v{B}, v{A}\nv_permlane16_swap_b32 v{A}, v{B}\nv_mov_b32 v{C}, v{A}\nv_mov_b32 v{D}, v{B}\nv_permlane32_swap_b32 v{A}, v{C}\nv_permlane32_swap_b32 v{B}, v{D}")
    inv="0x3b000000"
    L+=M(f"""v_mul_f32 v{A}, {inv}, v{A}
        v_mul_f32 v{B}, {inv}, v{B}
        v_fma_f32 v{B}, -v{A}, v{A}, v{B}
        v_max_f32 v{B}, 0, v{B}
        v_add_f32 v{B}, 0x3727c5ac, v{B}
        v_rsq_f32 v{B}, v{B}
        v_fma_f32 v{C}, -v{A}, v{D}, v{C}
        v_mul_f32 v{C}, {inv}, v{C}
        v_fma_f32 v{C}, v{B}, v{C}, v{A}
        v_mul_f32 v{A}, v{A}, v{B}""")
    for e in range(8): L+=M(f"v_fma_f32 v{Gd+4+e}, v{X+e}, v{B}, -v{A}")
    for e in range(8): L+=M(f"v_fmac_f32 v{X+e}, v{Gd+4+e}, v{Y+e}")
    for e in range(8): L+=M(f"v_sub_f32 v{Y+e}, v{X+e}, v{C}")
    L+=M(f"s_add_u32 s{sT0}, s{sXS}, {mu*65536}")
    for i in range(4): L+=M(f"v_cvt_pk_bf16_f32 v{Gd+4+i}, v{Y+2*i}, v{Y+2*i+1}")
    L+=M(f"buffer_store_dwordx4 {V(Gd+4)}, v{vL}, {srd(WS)}, s{sT0} offen{a.sc or (' nt' if CFG['ntx']>layer else '')}",f"xs{mu}")
    L+=M(f"v_mul_f32 v{A}, v{Y}, v{Y}")
    for e in range(1,8): L+=M(f"v_fmac_f32 v{A}, v{Y+e}, v{Y+e}")
    L+=M(f"""v_mov_b32 v{B}, v{A}
        s_nop 0
        s_add_u32 s{sT1}, s{sS5}, {(layer*2+mu)*65536}
        v_permlane32_swap_b32 v{A}, v{B}
        v_add_f32 v{A}, v{A}, v{B}
        v_mov_b32 v{B}, v{A}
        v_permlane16_swap_b32 v{A}, v{B}
        v_add_f32 v{A}, v{A}, v{B}""")
    L+=M(f"buffer_store_dword v{A}, v{vS5s}, {srd(WS)}, s{sT1} offen{a.sc}")
    tail=M(f"s_add_u32 s22, s{sFLH}, {XF(layer,mu)}")+[('WVM',f"xs{mu}")]+M(f"buffer_store_dword v{vTAG}, v{vOne}, {srd(WS)}, s22 offen{a.sc}")
    return ld,L,tail

def flag_check(a, off, vaddr, name):
    ld,ck=a.check([f"buffer_load_dword v{PT+1}, v{vaddr}, {srd(WS)}, s{sCK1} offen sc1"],[f"v_cmp_ne_u32 vcc, s{sTAG}, v{PT+1}"],name)
    return M(f"s_lshl_b32 s{sCK1}, s{sFL}, 1\ns_add_u32 s{sCK1}, s{sCK1}, {off}")+ld, ck
XF=lambda layer,mu: OFF_XFLAG+layer*16384+mu*256
HF=lambda layer,k: OFF_HFLAG+layer*16384+k*256

def x_dma(mu, pair, stage, q):
    L=M(f"s_add_u32 m0, s{sXW}, {q+stage*8192}\ns_mov_b32 s{sSOFF}, {mu*65536+pair*32768+stage*8192}")
    for i in range(4): L+=M(f"buffer_load_dwordx4 v{vXD}, {srd(WS)}, s{sSOFF} offen offset:{1024*i} sc1 lds",f"x{mu}{pair}{stage}")
    return LW(L,(q+stage*8192,q+stage*8192+8192),(q+16384+stage*8192,q+16384+stage*8192+8192))
def h_dma(mu, t, grp, q):
    n=4 if grp<2 else 3
    L=M(f"s_add_u32 m0, s{sM4 if grp<2 else sM3}, {q+t*8192}\ns_add_u32 s{sSOFF}, s{sC4 if grp<2 else sC3}, {(mu*4+2*t)*HKS*1024+grp*8192}")
    for i in range(n): L+=M(f"buffer_load_dwordx4 v{vHD}, {srd(WS)}, s{sSOFF} offen offset:{1024*i} sc1 lds",f"h{mu}{t}{grp}")
    return LW(L,*[(q+(2*k+t)*8192,q+(2*k+t)*8192+2*n*1024) for k in range(2)])
def h_touch(ks,base=204):
    L=[]
    for k in ks:
        L+=M(f"s_mov_b32 s{sT2}, {2*k*HKS*1024}\nbuffer_load_dword v{base+2*k}, v{vHS1}, {srd(WS)}, s{sT2} offen sc1\nbuffer_load_dword v{base+1+2*k}, v{vHS2}, {srd(WS)}, s{sT2} offen sc1","tch")
    return L
SC1K=lambda: {0:[],2:[0,1,2,3],3:[],4:[0,1],5:[0,1,2],6:[0,1],7:[0]}[CFG['touch']]
TCHK=lambda: {0:[],2:[],3:[0,1,2,3],4:[2,3],5:[],6:[],7:[]}[CFG['touch']]
TINK=lambda: {5:[3],6:[2,3],7:[1,2,3]}.get(CFG['touch'],[])

_uid=[0]
RING6=[FR+4*k for k in range(6)]; RING8=RING6+[ACC0+16,ACC0+20]
def g1_steps(buf, q, bar=None):
    A=(ACC0,ACC1)[buf]; bar=bar or {}; qo=q&65535; out=[]
    for s in range(16):
        pre=(M(f"v_add_u32 v{vA0}, {q&~65535}, v{vL}") if s==0 else [])+bar.get(s,[])
        rd=[lambda F,tok,s=s,t=t: LR(mk(f"ds_read_b128 {V(F)}, v{vA0} offset:{qo+t*16384+s*1024}",tok),(q+t*16384+s*1024,q+t*16384+s*1024+1024)) for t in range(2)]
        mf=lambda F,s=s: [mk(f"v_mfma_f32_16x16x32_bf16 {V(A+12*t+4*w)}, {W1(s,w)}, {V(F[t])}, {'0' if s==0 else V(A+12*t+4*w)}") for t in range(2) for w in range(3)]
        out.append((pre,rd,mf,RING6))
    return out
def g2_steps(qs, bar=None):
    bar=bar or {}; out=[]
    def setq(q): return M(f"s_add_u32 s{sQ}, s{sHK}, {q&~65535}\nv_add_u32 v{vA0}, s{sQ}, v{vL}\ns_add_u32 s{sQ}, s{sHS}, {q&~65535}\nv_add_u32 v{vA1}, s{sQ}, v{vL}")
    for i in range(22):
        q=qs[i>>3]; pre=bar.get(i,[])
        if i%8==0 and (i==0 or (q&~65535)!=(qs[(i>>3)-1]&~65535)): pre=setq(q)+pre
        rd=[lambda F,tok,i=i,q=q,t=t: LR(mk(f"ds_read_b128 {V(F)}, v{(vA0,vA1)[t]} offset:{(q&65535)+(i&7)*1024}",tok),*[(q+w*8192+(i&7)*1024,q+w*8192+(i&7)*1024+1024) for w in range(4)]) for t in (1,0)]
        mf=lambda F,i=i: [mk(f"v_mfma_f32_16x16x32_bf16 {V(ACC0+8*t+4*c)}, {W2(i,c)}, {V(F[1-t])}, {'0' if i==0 else V(ACC0+8*t+4*c)}") for t in (1,0) for c in range(2)]
        out.append((pre,rd,mf,RING8))
    return out
def g2_pass(qs, t, bar=None):
    bar=bar or {}; out=[]
    for i in range(22):
        q=qs[i>>3]; pre=bar.get(i,[])
        if i%8==0 and (i==0 or (q&~65535)!=(qs[(i>>3)-1]&~65535)):
            pre=M(f"s_lshl_b32 s{sQ}, s{sKH}, 14\ns_add_u32 s{sQ}, s{sQ}, {(q&~65535)+t*8192}\nv_add_u32 v{vA0}, s{sQ}, v{vL}")+pre
        rd=[lambda F,tok,i=i,q=q: LR(mk(f"ds_read_b128 {V(F)}, v{vA0} offset:{(q&65535)+(i&7)*1024}",tok),*[(q+(2*k+t)*8192+(i&7)*1024,q+(2*k+t)*8192+(i&7)*1024+1024) for k in range(2)])]
        mf=lambda F,i=i: [mk(f"v_mfma_f32_16x16x32_bf16 {V(ACC1+8*t+4*c)}, {W2(i,c)}, {V(F[0])}, {'0' if i==0 else V(ACC1+8*t+4*c)}") for c in range(2)]
        out.append((pre,rd,mf,RING8))
    return out
def backbone(steps, marks=None):
    marks=marks or {}; LA=CFG['la']
    start=[]; n=0
    for st in steps: start.append(n); n+=len(st[2]([FR]*2))
    start.append(n)
    last={}; F=[]; place={}; pos=-1; toks=[]
    for k,(pre,rd,mf,ring) in enumerate(steps):
        _uid[0]+=1; tok=f"f{_uid[0]}"; toks.append(tok); fs=[]
        for j,r in enumerate(rd):
            u=min([x for x in ring if x not in fs],key=lambda x:last.get(x,-99+ring.index(x)*0.01)); fs.append(u)
            p=max(start[k]-LA+j, last.get(u,-99), pos+1 if pos>=0 else -1)
            p=min(p,start[k]-1) if start[k]>0 else -1
            if p<0: p=-1
            place.setdefault(p,[]).extend((pre if j==0 else [])+[r(u,tok)]); pos=max(pos,p)
        for u in fs: last[u]=start[k+1]-1
        F.append(fs)
    L=list(place.get(-1,[]))+[('WLG',toks[0])]; n=0
    for k,(pre,rd,mf,ring) in enumerate(steps):
        ms=mf(F[k])
        for j,m in enumerate(ms):
            L.append(m); L+=place.get(n,[])
            if j==len(ms)-1 and k+1<len(steps): L.append(('WLG',toks[k+1]))
            n+=1
        L+=marks.get(k,[])
    return L

def g1_epi(a, buf, mu, pair, sc):
    A=(ACC0,ACC1)[buf]; E=EP; L=[]
    n=E; mreg=E+4
    M0=A+8; M1=A+20
    for t in range(2):
        Gt=A+12*t; Ut=Gt+4
        for r in range(4): L+=M(f"v_max_f32 v{Gt+r}, 0, v{Gt+r}")
        for r in range(4): L+=M(f"v_mul_f32 v{Gt+r}, v{Gt+r}, v{Ut+r}")
        L+=M(f"v_cvt_pk_bf16_f32 v{n+2*t}, v{Gt}, v{Gt+1}\nv_cvt_pk_bf16_f32 v{n+2*t+1}, v{Gt+2}, v{Gt+3}")
    for r in range(4): L+=M(f"v_permlane16_swap_b32 v{M0+r}, v{M1+r}")
    L+=M(f"v_permlane16_swap_b32 v{n}, v{n+2}\nv_permlane16_swap_b32 v{n+1}, v{n+3}\ns_mov_b32 s{sT1}, {(mu*4+2*pair)*HKS*1024}")
    L+=M(f"buffer_store_dwordx4 {V(n)}, v{vHS1}, {srd(WS)}, s{sT1} offen{sc}",f"hs{mu}{pair}")
    for r in range(4): L+=M(f"v_max_f32 v{M0+r}, 0, v{M0+r}")
    for r in range(4): L+=M(f"v_mul_f32 v{M0+r}, v{M0+r}, v{M1+r}")
    L+=M(f"v_cvt_pk_bf16_f32 v{mreg}, v{M0}, v{M0+1}\nv_cvt_pk_bf16_f32 v{mreg+1}, v{M0+2}, v{M0+3}")
    L+=M(f"v_mov_b32 v{E+6}, v{E+4}\nv_mov_b32 v{E+7}, v{E+5}\ns_nop 0\nv_permlane32_swap_b32 v{E+4}, v{E+6}\nv_permlane32_swap_b32 v{E+5}, v{E+7}")
    L+=M(f"buffer_store_dwordx4 {V(E+4)}, v{vHS2}, {srd(WS)}, s{sT1} offen{sc}",f"hs{mu}{pair}")
    return L
def h_flag(a, layer, k):
    return M(f"s_add_u32 s22, s{sFLH}, {HF(layer,k)}")+[('WVM',f"hs{k>>1}{k&1}")]+M(f"buffer_store_dword v{vTAG}, v{vOne}, {srd(WS)}, s22 offen{a.sc}")

def s5_get(a, layer, mu):
    T=140
    ld,ck=a.check([f"buffer_load_dwordx4 {V(T)}, v{vS5l}, {srd(WS)}, s{sCK3} offen sc1"],
         [f"v_max3_u32 v{PT+2}, v{T}, v{T+1}, v{T+2}",f"v_max_u32 v{PT+2}, v{PT+2}, v{T+3}",f"v_cmp_eq_u32 vcc, -1, v{PT+2}"],"s5")
    ld=M(f"s_add_u32 s{sCK3}, s{sS5l}, {(layer*2+mu)*65536}")+ld
    L=list(ck)+M(f"""v_add_f32 v{T}, v{T}, v{T+1}
        v_add_f32 v{T+2}, v{T+2}, v{T+3}
        v_add_f32 v{T}, v{T}, v{T+2}
        v_mov_b32 v{T+1}, v{T}
        s_nop 0
        v_permlane32_swap_b32 v{T}, v{T+1}
        v_add_f32 v{T}, v{T}, v{T+1}
        v_mov_b32 v{T+1}, v{T}
        s_nop 0
        v_permlane16_swap_b32 v{T}, v{T+1}
        v_add_f32 v{T}, v{T}, v{T+1}
        v_mul_f32 v{T}, 0x3b000000, v{T}
        v_add_f32 v{T}, 0x3727c5ac, v{T}
        v_rcp_f32 v{vR2}, v{T}""")
    return ld,L
def ex_addr(qspare):
    return M(f"s_add_u32 s{sT0}, s{sHW}, {qspare+6144}\nv_add_u32 v{EP}, s{sT0}, v{vL}\ns_xor_b32 s{sT0}, s{sHW}, 16384\ns_add_u32 s{sT0}, s{sT0}, {qspare+6144}\nv_add_u32 v{EP+1}, s{sT0}, v{vL}")
def g2_tail(mu, qsp, keep, send):
    X=vXst[mu]; R=[(qsp+w*8192+6144,qsp+w*8192+8192) for w in range(4)]
    pre=LW(M(f"ds_write_b128 v{EP}, {V(send)}\nds_write_b128 v{EP}, {V(send+4)} offset:1024",f"ew{mu}"),*R)
    pre+=[mk(f"v_fmac_f32 v{X+e}, v{vR2}, v{keep+e}") for e in range(8)]
    post=LR(M(f"ds_read_b128 {V(send)}, v{EP+1}\nds_read_b128 {V(send+4)}, v{EP+1} offset:1024","ex"),*R)
    post+=[mk(f"v_fmac_f32 v{X+e}, v{vR2}, v{send+e}") for e in range(8)]
    return pre,post
def out_store(a, mu, T):
    X=vXst[mu]
    L=[mk(f"v_cvt_pk_bf16_f32 v{T+i}, v{X+2*i}, v{X+2*i+1}") for i in range(4)]
    return L+M(f"buffer_store_dwordx4 {V(T)}, v{vTok}, {srd(SO_)}, {'0' if mu==0 else 's%d'%sMB} offen{('',' sc1',' nt')[CFG['outsc']]}")

def wbl2(a):
    Lw=a.label("wb"); w=mk("buffer_wbl2 sc1"); w.ghost=1
    return [M(f"s_or_b32 s{sT2}, s{sR}, s{sWV}\ns_cmp_lg_u32 s{sT2}, {CFG['wbid']}\ns_cbranch_scc1 {Lw}")+[w,mk(Lw+":")]]
def finish_kernel(a):
    a(f"s_or_b32 s{sT0}, s2, s{sWV}\ns_cmp_eq_u32 s{sT0}, 0\ns_cselect_b32 s{sT0}, {OFF_NONCE}, {OOB}")
    a(f"buffer_store_dword v{vTAG}, v{vOne}, {srd(WS)}, s{sT0} offen")
    if CFG['stamps'] and a.tag!='S':
        a.stamp("end","*")
        if CFG.get('amp') is not None:
            j=CFG['amp']
            a(f"s_sub_u32 s96, s{STAMP0+j}, s{STAMP0}\ns_mul_i32 s96, s96, {CFG.get('ampk',4)}\ns_add_u32 s96, s96, s{STAMP0+len(stamp_names)-1}")
            a("L_amp:\ns_memrealtime s[100:101]\ns_waitcnt lgkmcnt(0)\ns_sub_u32 s97, s100, s96\ns_cmp_lt_i32 s97, 0\ns_cbranch_scc1 L_amp")
        a("s_memtime s[100:101]\ns_waitcnt lgkmcnt(0)\ns_sub_u32 s99, s100, s99")
        a(f"s_lshl_b32 s{sT0}, s2, 2\ns_add_u32 s{sT0}, s{sT0}, s{sWV}\ns_lshl_b32 s{sT0}, s{sT0}, 8\ns_add_u32 s{sT0}, s{sT0}, {OFF_STAMP}")
        for i in range(len(stamp_names)):
            a(f"v_mov_b32 v40, s{STAMP0+i}")
            a(f"buffer_store_dword v40, v{vOne}, {srd(WS)}, s{sT0} offen offset:{4*i}")
        if CFG.get('trace'): a(f"s_add_u32 s{sT1}, s{sT0}, 0x100000\nbuffer_store_dword v139, v{vFX}, {srd(WS)}, s{sT1} offen")
        a(f"v_mov_b32 v40, s98\nbuffer_store_dword v40, v{vOne}, {srd(WS)}, s{sT0} offen offset:248")
        a(f"v_mov_b32 v40, s99\nbuffer_store_dword v40, v{vOne}, {srd(WS)}, s{sT0} offen offset:252")
    a("s_endpgm")

WV=lambda t:('WVM',t)
WL=lambda t:('WLG',t)
AT=lambda n:('AT',n)

def vm_par(layer):
    C=CFG
    def f(x):
        t=x.tok or ''
        if x.dma:
            if t[0]=='c': return (C['mW'],150,11)
            if t[0]=='h' and layer==0 and 2*int(t[1])+int(t[2]) in SC1K(): return (C['mM'],C['mMs'],8)
            return (C['mL'],C['mLs'],8)
        if t=='tch': return (C['mH'],20,8)
        if t.startswith('w2_'): return (C['mM'],C['mW2'],8)
        if not x.load:
            if x.op.endswith('x4'): return (C['mS1'] if 'sc1' in x.text else C['mS'],70,8)
            return (C['mS1'] if 'sc1' in x.text else 400,10,1)
        if t.endswith(tuple('0123456789')) and '_ppr' in t: return (700,20,22)
        return (C['mL'],25,8) if x.op.endswith('x4') else (C['mL'],10,2)
    return f
def feed(vm,items,t):
    for x in items:
        for y in (x if isinstance(x,list) else [x]):
            if isinstance(y,tuple):
                if y[0]=='WVM': t=max(t,vm.done.get(y[1],t))
            elif y.kind=='vmem': t=vm.issue(y,t)+4
            elif y.kind!='none': t+=4.5
    return t

def body(a):
    P=paced; BY=lambda n:('BY',n); SY=lambda n:('SYNC',n); AF=lambda n,g=0:('AFTER',n,g); GP=lambda n:('GAP',n)
    B=lambda *w:[list(w)+[mk("s_barrier")]]
    C=CFG
    nxs=lambda r,mu: [i for i,x in enumerate(r) if isinstance(x,I) and x.tok==f"xs{mu}"][0]+1
    qs=list(Q)
    a.flat(fin1(a,0,0,ACC0))
    a.stamp("fin1 A","f")
    lA,rA,tA=fin2(a,0,0,ACC0); lB,rB,tB=fin2(a,0,1,232)
    glB,gcB=y_check(a,1)
    pk,ps=pp_pack()
    a.flat(extras(3)); Wp(a,'YS')
    if C['pkat']==2: a.flat(pk); a.flat(ps)
    a.flat(x0_state(1))
    a.waitvm("yt1")
    Wp(a,'F1')
    a.flat(lA); a.flat(glB); a.flat(extras(4)); Wp(a,'F2')
    if C['pkat']==0: a.flat(pk); a.flat(ps)
    a.stamp("yB acked","f")
    a.flat(rA[:10]); Wp(a,'FA'); a.flat(rA[10:]); Wp(a,'FX')
    a.stamp("fin2 A","f")
    a.flat(gcB)
    y_stage(a,1,wops(PL().get('SB',"")))
    a.flat(tA)
    ppf=M(f"buffer_store_dword v{vTAG}, v{vOne}, {srd(WS)}, s{sPF} offen sc1")
    if C['pkat']==1: a.flat(pk); a.flat(ps)
    else: a.waitvm("pps"); a.flat(ppf); ppf=[]
    Wp(a,'FB')
    a.flat(fin1(a,0,1,ACC1))
    a.stamp("fin1 B","f")
    W2Q[:]=w2_loads()
    a(f"s_mul_i32 s{sT0}, s{sCT2}, 43\ns_mul_i32 s{sT1}, s{sKH}, 21\ns_add_u32 s{sT0}, s{sT0}, s{sT1}\ns_lshl_b32 s{sT0}, s{sT0}, 7\ns_add_u32 s{sCK3}, s{sT0}, {OFF_P2F}")
    a(f"v_min_u32 v{PT+3}, 21, v{vLane}\nv_lshlrev_b32 v{PT+3}, 7, v{PT+3}")
    pl_,pc_=a.check([f"buffer_load_dword v{PT+2}, v{PT+3}, {srd(WS)}, s{sCK3} offen sc1"],[f"v_cmp_ne_u32 vcc, s{sTAG}, v{PT+2}"],"pp")
    xl,xc=flag_check(a,XF(0,0),vFX,"xf")
    early='p' in PL().get('XD','')
    Wp(a,'XW'); a.flat(xl)
    if early: a.flat(pl_)
    a.flat(xc)
    if early: a.flat(pc_); pl_=[]; pc_=[]
    a("s_waitcnt lgkmcnt(0)\ns_barrier")
    lead=lB+x_dma(0,0,0,qs[0])+x_dma(0,0,1,qs[0])+rB[:nxs(rB,1)]+wops(PL().get('XD',""))
    a.flat(lead)
    A1,B0,B1,GA,GB,GC=96,192,288,384,472,516
    for layer in range(2):
        g="ab"[layer]
        xa0,xa1,xb0,xb1,e=qs
        hs = lambda k: ' sc1' if (layer==0 and k in SC1K()) else (a.sc or (' nt' if (C['nth'] and layer==1) else ''))
        L0 = layer==0
        a.stamp(f"L{layer} start",g+'m')
        hq=[(xa0,xa1,e),(xb0,xb1,xa0)]
        X=lambda mu,p,q: x_dma(mu,p,0,q)+x_dma(mu,p,1,q)
        H=lambda mu,t,grp: h_dma(mu,t,grp,hq[mu][grp])
        xl,xc=flag_check(a,XF(layer,1),vFX,"xf")
        s7=[]
        def HC(k,after=None,gap=None):
            l,c=flag_check(a,HF(layer,k),vFH,"hf")
            s7.extend([AF('xc'),AF(f"f{k}",after or (C['hca0'] if L0 else C['hca']))]+l+[SY(f"l{k}")]+c+[SY(f"c{k}")])
            return [AF(f"c{k}")]
        sl,sr=s5_get(a,layer,0)
        def SB(n,*w):
            if layer==0: return BAR(*w)
            return a.st(n+" pre","c")+list(w)+a.st(n+" waited","c")+[mk("s_barrier")]+a.st(n+" post","c")
        steps = g1_steps(0,xa0,{0:BAR(WV("x000")),8:BAR(WV("x001"))}) + g1_steps(1,xa1,{0:BAR(WV("x011"))}) \
              + g1_steps(0,xb0,{0:BAR(WV("x101"))}) + g1_steps(1,xb1,{0:BAR(WV("x111"))}) \
              + g2_steps(hq[0],{**({i:[WV(f"w2_{i}")] for i in range(22)} if L0 else {}),0:BAR(WV("h010"),WV("h000"),WV("w2_0")),8:BAR(WV("h011"),WV("h001"),WV("w2_8")),16:BAR(WV("h012"),WV("h002"),WV("w2_16"))}) \
              + g2_pass(hq[1],0,{0:BAR(WV("h101"),WV("h100")),16:BAR(WV("h102"))}) + g2_pass(hq[1],1,{0:BAR(WV("h110")),8:BAR(WV("h111")),16:BAR(WV("h112"))})
        marks={15:a.st(f"L{layer} A0",g),31:a.st(f"L{layer} A1",g),47:a.st(f"L{layer} B0",g),63:a.st(f"L{layer} B1",g),85:a.st(f"L{layer} GA",g)}
        bb=backbone(steps,marks)
        def epi(k):
            E=g1_epi(a,k&1,k>>1,k&1,hs(k))
            if k>0 and L0 and C['hold']:
                n=[i for i,x in enumerate(E) if x.kind=='vmem'][0]; E=E[:n]+[AF(f"l{k-1}")]+E[n:]
            if k<3: return [AT(96*(k+1)+2),('DENS',C['dens0'] if L0 else C['dens1'])]+E+[('DENS',0),SY(f"e{k}"),BY(96*(k+2) if k<2 else GA-30)]
            return [AT(GA+1),('DENS',C['dens'])]+E+[('DENS',0),SY("e3")]+sr
        s3=[]
        for k in range(4): s3+=[AF(f"e{k}")]+h_flag(a,layer,k)+[SY(f"f{k}")]
        YT=ACC1+16
        nq=[xa1,e,xb0,xb1,xa0]
        slB,srB=s5_get(a,layer,1)
        preA,postA=g2_tail(0,e,ACC0,ACC0+8)
        tailA=ex_addr(e)+(unpackY(0,YT) if L0 else [])+slB+[BY(GB),AT(GB+1),('DENS',C['densa'] if L0 else 2)]+preA+[GP(C['exg'])]+B(WL("ew0"))+postA[:2]+[GP(C['exg2'])]+postA[2:]
        if L0:
            lA,rA,tA=fin2(a,1,0,ACC0,YT)
            xlA,xcA=flag_check(a,XF(1,0),vFX,"xf")
            tailA+=fin1(a,1,0,YT,True,ACC0)+[('DENS',0)]+srB+ex_addr(xa0)+[('GAPV',C['gbl'])]+lA+[('DENS',C['dens2'])]+rA[:nxs(rA,0)]+[('DENS',0),SY('r')]+rA[nxs(rA,0):]+unpackY(1,YT)
        else:
            tailA+=out_store(a,0,YT)+[('DENS',0)]+srB+ex_addr(xa0)+([AT(GC+C['wbat'])]+wbl2(a) if C['wbl2'] else [])
        g1=C['g1']
        K=lambda it,c=None,cap=64: bk(it,C['bk'] if c is None else c,cap)
        sA = HC(0)+K(H(0,0,0))+[BY(GA-44),AT(B0-10)]+K(H(0,0,1))+[BY(GA-40)]+K(H(0,0,2))+[BY(GA-38)]
        sB = HC(1)+K(H(0,1,0))+[BY(GA-36)]+K(H(0,1,1))+[BY(GA-4)]+K(H(0,1,2))+[BY(GA+28)]
        sC = HC(2)+K(H(1,0,0))+[BY(GB-34),AT(GA-10)]+K(H(1,0,1))+[BY(GB-30)]
        sD = [AT(GA+54)]+K(H(1,0,2))+[BY(GB)]+HC(3,C['gahl'])+K(H(1,1,0))+[BY(GC-22)]+K(H(1,1,1))+[BY(GC-6)]+K(H(1,1,2))+[BY(GC+10)]
        if L0:
            pl=PL(); pend=pl.get('PEND',[]); rest=pl.get('REST',[])
            s1=[];s2=[]
            for k in rest: s1+=K(wops(f"i{k}"),400)
            rest=[int(str(k).split('@')[0]) for k in rest]
            s1+=[SY('irest')]+K(X(0,1,xa1))+[BY(A1-30)]
            for k in pend: s2+=wops(f"r{k}")+[BY(max(12*k-4,30))]
            last=pend[-1] if pend else None
            if rest:
                s2+=[AF('irest')]+B(WV(f"c{rest[-1]}"))
                for k in rest: s2+=wops(f"r{k}")+[BY(12*k-4)]
                last=rest[-1]
            if last is not None: s2+=[GP(4)]+B(WL(f"cr{last}"))
            s2+=[SY('fr'),AT(C['tin'])]+h_touch(TINK(),127)
            s4=([WV('pps')]+ppf+[GP(40)] if ppf else [])+[AT(C['w2at'])]+pl_+pc_+[AF(C['w2af'])]
            i=(2*CFG.get('w2n',22)-sum(1 for x in W2Q if x.kind=='vmem'))//2
            while W2Q:
                if i==10: s4+=[AF('fB')]
                s4+=K(w2_take(2),C['bkw'],C['capw'])+[BY(GA+4*i-C['w2lead'])]; i+=1
        else:
            s1=[SY('irest'),AF('lB')]+K(X(0,1,xa1))+[BY(A1-30)]; s2=[SY('fr')]; s4=[]
        if L0: s5=[SY('rB')]+rB[nxs(rB,1):]+[SY('fB')]
        else: s5=[AT(C['a0l'])]+lB+[SY('lB'),('DENS',C['densb'])]+rB[:nxs(rB,1)]+[('DENS',0),SY('rB')]+rB[nxs(rB,1):]+[BY(A1)]
        s3=[AF('rB')]+tB+[SY('tB')]+s3
        s1+=[AF('tB',C['a1xl0'] if L0 else C['a1xl'])]+xl+[SY('xl')]+xc+[SY('xc'),AF('fr')]+K(X(1,0,xb0))+[BY(B0-30)]+K(X(1,1,xb1))+[BY(B1-30)]
        s1+=sA+sB+sC+sD
        s6 = ([] if L0 else [AF('xl')])+epi(0)+epi(1)+epi(2)+sl+epi(3)+[BY(GB-12)]+tailA
        vm=VMM(vm_par(layer)); t0=feed(vm,lead,0)
        out,rest=weave(bb,[s3,s7,s1,s4,s2,s5,s6],vm=vm,t0=t0,log=f"L{layer}"+('!' if C.get('v')==2 else '') if (C.get('v') and a.tag=='F') else None)
        a.ext(a.trace(out,CFG.get('tev_',10),f'G{layer}')); a.ext(rest)
        if C.get('v'): print("  leftover after G2(B):",len(rest))
        a.stamp(f"L{layer} GB",g)
        Ls=a.label("sw")
        a(f"s_nop 7\ns_cmp_eq_u32 s{sKH}, 0\ns_cbranch_scc1 {Ls}")
        for k in range(8): a(f"v_swap_b32 v{ACC1+k}, v{ACC1+8+k}")
        a.lab(Ls)
        preB,postB=g2_tail(1,xa0,ACC1,ACC1+8)
        a.flat(preB)
        if L0: a.flat(tA)
        a("s_waitcnt lgkmcnt(0)\ns_barrier")
        a.flat(postB)
        if L0:
            a.flat(fin1(a,1,1,YT,True,ACC1))
            lB,rB,tB=fin2(a,1,1,ACC1,YT)
            a.flat(xlA); a.flat(xcA); lead=X(0,0,nq[0]); a.ext(lead)
        else:
            a.flat(out_store(a,1,YT))
        a.stamp(f"L{layer} tailB",g)
        qs=nq
    finish_kernel(a)

def main():
    a=G('F','')
    entry(a); p0(a); conv(a)
    nfront=len(a.L)
    b=G('S',' sc1'); b.nlab=0
    front=list(a.L)
    body(a)
    rep=[]
    items=finish(a.L,rep)
    print("LDS ordering problems:",lds_check(items))
    for o in a.ool: items+=finish(o)
    items.append(mk("L_fast_end:"))
    if CFG['slow']:
        b.L=front+[mk("L_slow:")]; body(b)
        full=finish(b.L)
        k=[i for i,x in enumerate(full) if x.text=="L_slow:"][0]
        items+=full[k:k+1]+[mk("s_nop 4")]+full[k+1:]
        for o in b.ool: items+=finish(o)
    items.append(mk("L_end:")); items.append(mk("s_endpgm"))
    hdr=open(os.path.join(os.path.dirname(os.path.abspath(__file__)),"header.txt")).read()
    src=kernel_file(NAME,text(items),"; @launch grid=(256,1,1) block=(256,1,1) lds=163840",header=hdr)
    open(sys.argv[1],"w").write(src)
    open("stamp_names.txt","w").write("\n".join(stamp_names)); open("trace_names.txt","w").write("\n".join(trace_names)); open("site_names.txt","w").write(" ".join(site_names))
    n=sum(1 for i in items if i.kind!='none')
    print(f"{n} instructions, {len(src)} bytes of text, {sum(x for x,_ in rep)} nop states padded in fast path")
    if CFG.get('v'):
        for x in rep: print("   pad",x)
main()
```

```python
import sys, os
from asmlib import *
from layout import *

NAME="interleave_layers__ssm_conv_h3__glu_gated_reglu__prompt_kernel"
CFG=dict(alias=1, o1=0, o2=0, swz=1, z14=1, tpre=1, dot2=1, a1xl0=30, tin=100, mH=1300, hold=0, hca0=24, dens0=8, mW2=62, hat=2, hmid=100, bk=60, bkw=60, capw=64, mL=350, mLs=80, mM=600, mMs=95, mW=850, mS=600, mS1=950, ssmat=0, nth=1, ntx=2, wbat=24, wbid=0, ppat=1, tat=1, pkat=2, fbpre=1, cg0=30, gbt0=28, xg0=16, w2af='irest', densb=4, qat=1, gbs5=8, la=12, clr=1, utouch=0, f1max=2048, cann=56, plan=18, chl=70, cla=9, cdens=3, cslots=2, chc=20, cack=56, rot=1, cm2=70, cm3=120, a0l=1, a0c=24, a1xl=18, dens=5, fl=30, fl0=52, hca=18, hcg=22, g1=4, g2=5, g3=4, dens1=2, gahl=16, gahc=14, hbgap=4, tev=6, tev2=5, dens2=8, densa=5, exg=2, exg2=4, gbl=16, gbc=14, gbt=28, gbxl=20, b0hl=80, w2at=1, w2gap=5, w2lead=40, rrest=56, cgap=5, warm=1, stamps=0, stop=None, slow=1, prefetch=1, touch=2, dgather=1, dstage=1, wbl2=0, outsc=2)
for a_ in sys.argv[2:]:
    k,v=a_.split('='); CFG[k]=int(v) if v.lstrip('-').isdigit() else v

sX,sR,sWV,sG,sM,sRH,sCT2,sKH,sCHH,sTAG,sHELLO=4,5,6,7,8,9,10,11,12,13,14
sT0,sT1,sT2,sT3=3,15,60,61
sCNT=62; sSOFF=63
WS,SK_,SV_,SQ_,SH_,SWG,SWU,SWD,SO_,SSK,SD_=16,20,24,28,32,36,40,44,48,52,56
srd=lambda b:f"s[{b}:{b+3}]"
sXW,sHW,sHK,sHS,sXS,sFL,sGR,sS5,sGRl,sS5l=64,65,66,67,68,69,70,71,72,73
sW1W,sWo,sHF,sW2B=74,75,76,77
sPS,sPD,sPF,sW20=56,57,58,59
sCK1,sCK2,sCK3,sQ=20,21,24,25
sCH,sUO,sMB=26,27,0
sMODE=34; sFLH=23; sC4,sC3,sM4,sM3=52,53,54,55
sFLG=1
STAMP0=78
Q=[0,32768,65536,98304,131072]
TCP=4160; TCH=4*TCP; L_TOEP=0
L_U=2*TCH; UCH=4608
L_K=L_U+2*UCH; CHP=1056; L_V=L_K+9*CHP
L_CX=L_K
L_YS=0
L_WS=65536; WSL=24576
SLOT=[L_WS+k*WSL for k in range(4)]
L_PP=SLOT[3]
SLOT=SLOT[:3]+[8192,36864,L_PP]
vL=1; vOne=2; vTok=3; vGs=4; vGl=5; vS5s=6; vS5l=7; vXD=8; vHD=9; vHS1=10; vHS2=11; vFX=12; vFH=13
vTAG=14; vR2=15
vXst=[16,24]; vYY=[32,36]
ACC0,ACC1,FR,vA0,vA1,EP,PT=40,64,88,112,113,114,122
vW2,vT2,vWc0=126,127,128
vW1=[129,130,131]; vTa,vTm,vWc1=132,133,134
vLane,vJ,vQ,vYo,vD=135,136,137,138,139
vCg,vCs=124,125
vHa=15
vCXw,vCXo,vCXp,vKV,vGA,vGW,vGT,vFT=160,161,162,163,164,165,166,167
vKD,vUP,vPK,vGD,vGC,vQT,vTch=168,172,176,184,192,196,193
W2V=144; W2A=192
def W1(s,t): b=(s*3+t)*4; return f"a[{b}:{b+3}]"
def W1h(s,t,hh): b=(s*3+t)*4+2*hh; return f"a[{b}:{b+1}]"
def W2(i,t):
    k=(i*2+t)*4
    return f"v[{W2V+k}:{W2V+k+3}]" if k<112 else f"a[{W2A+k-112}:{W2A+k-112+3}]"
def W2h(i,t,hh):
    k=(i*2+t)*4+2*hh
    return f"v[{W2V+k}:{W2V+k+1}]" if k<112 else f"a[{W2A+k-112}:{W2A+k-112+1}]"
V=lambda b,n=4: f"v[{b}:{b+n-1}]"
OOB=0x7FFFFF00
vST=lambda: 140 if CFG.get('trace')=='CV' else 139
POLLMAX=1<<16
def M(text,tok=None): return [mk(l.strip(),tok) for l in text.split('\n') if l.strip()]
BAR=lambda *pre: list(pre)+[mk("s_barrier")]

trace_names=[]; stamp_names=[]; site_names=[]
class G(Asm):
    def __init__(s,tag='',sc=''):
        super().__init__(); s.tag=tag; s.sc=sc; s.ool=[]
    def st(s,name,grp='m'):
        if not CFG['stamps'] or s.tag=='S': return []
        if grp!='*' and not any(c in str(CFG['stamps']) for c in grp): return []
        stamp_names.append(name); i=len(stamp_names)-1
        assert i<20, "too many stamps"
        return M(f"{'s_memtime' if CFG.get('clk') else 's_memrealtime'} s[100:101]\ns_waitcnt lgkmcnt(0)\ns_mov_b32 s{STAMP0+i}, s100")
    def trace(s, items, every, name):
        if s.tag=='S' or CFG.get('trace')!=name: return items
        out=[]; n=0
        for it in items:
            out.append(it)
            if isinstance(it,I) and it.kind=='mfma':
                if n%every==0 and CFG.get('tr0',0)<=n<CFG.get('tr0',0)+58*every: out+=s.light(f"{name}+{n}")
                n+=1
        return out+s.light(name+" end")+M("s_nop 15\ns_nop 15\ns_nop 15\ns_nop 15")+s.light(None)+s.light(None)
    def light(s,name):
        k=len(trace_names); trace_names.append(name or "")
        L=[]
        if name: x=mk(f"s_memtime s[{90+2*(k%3)}:{91+2*(k%3)}]"); x.light=1; x.defs=set(); L.append(x)
        if k>=2: L+=M(f"v_writelane_b32 v{vST()}, s{90+2*((k-2)%3)}, {k-2}")
        return L
    def stamp(s,name,grp='m'): s.ext(s.st(name,grp))
    def lr(s,n,*r): LR([i for i in s.L[-n:] if isinstance(i,I)],*r)
    def lw(s,n,*r): LW([i for i in s.L[-n:] if isinstance(i,I)],*r)
    def label(s,p): s.nlab+=1; return f"L{s.tag}_{p}_{s.nlab}"
    def check(s, loads, checks, name):
        R=s.label(name+'r'); L=s.label(name+'l'); B=s.label(name+'b')
        o=Asm(); o.lab(R); o(f"s_mov_b32 s{sCNT}, 0")
        if CFG['stamps'] and s.tag!='S':
            n=len(site_names); site_names.append(name); o(f"s_bitset1_b32 s98, {n}")
        o.lab(L)
        for l in loads: o(l)
        o("s_waitcnt vmcnt(0)")
        for c in checks: o(c)
        o(f"s_cbranch_vccz {B}\ns_add_u32 s{sCNT}, s{sCNT}, 1\ns_cmp_lt_u32 s{sCNT}, {POLLMAX}\ns_cbranch_scc1 {L}\ns_branch {B}")
        s.ool.append(o.L)
        ck=[mk(c) for c in checks]
        return [mk(l,R) for l in loads], [('WVM',R)]+ck[:-1]+[[ck[-1],mk(f"s_cbranch_vccnz {R}"),mk(B+":")]]
    def flat(s, items):
        for it in items:
            if isinstance(it,list): s.ext(it)
            elif isinstance(it,tuple) and it[0] in('AT','GAP','GAPV','SYNC','AFTER','BY','DENS','BK'): pass
            else: s.L.append(it)
    def weave(s, bb, *streams, slots=2, name=None):
        out,rest=weave(bb,streams,slots)
        s.ext(s.trace(out,CFG.get('tev_',4),name) if name else out); s.ext(rest)
        if rest and CFG.get('v'): print("  leftover fillers:",len(rest),[getattr(r,'text',r) for r in rest[:2]])

def entry(a):
    a.stamp("entry","*")
    if CFG["stamps"]: a("s_memtime s[100:101]\ns_waitcnt lgkmcnt(0)\ns_mov_b32 s99, s100\ns_mov_b32 s98, 0")
    a("s_cmp_ge_u32 s2, 256\ns_cbranch_scc1 L_end")
    for b,off in ((SK_,8),(SV_,16),(WS,96),(SSK,24),(SH_,32),(SD_,40),(SQ_,0),(SWG,56),(SWU,64),(SWD,72),(SO_,80)):
        a(f"s_load_dwordx2 s[{b}:{b+1}], s[0:1], {off}")
    a(f"v_lshrrev_b32 v40, 6, v0\nv_and_b32 v{vLane}, 63, v0")
    a(f"s_and_b32 s{sX}, s2, 7\ns_lshr_b32 s{sR}, s2, 3")
    a(f"v_readfirstlane_b32 s{sWV}, v40")
    a(f"v_lshlrev_b32 v{vL}, 4, v{vLane}")
    if CFG['prefetch']:
        a(f"s_getpc_b64 s[{sT2}:{sT2+1}]")
        a("L_pc:")
        a(f"s_lshl_b32 s{sT0}, s{sWV}, 5\ns_add_u32 s{sT0}, s{sT0}, s{sR}\ns_lshl_b32 s{sT0}, s{sT0}, 10")
        a(f"v_add_u32 v42, s{sT0}, v{vL}\nv_min_u32 v42, L_fast_end-L_pc-16, v42")
        a(f"v_mov_b32 v43, s{sT2+1}\nv_add_co_u32 v42, vcc, s{sT2}, v42")
        a(f"v_lshrrev_b32 v48, 3, v{vLane}\nv_and_b32 v49, 7, v{vLane}")
        a("v_addc_co_u32 v43, vcc, 0, v43, vcc")
        a("global_load_dwordx4 v[44:47], v[42:43], off")
    else:
        a(f"v_lshrrev_b32 v48, 3, v{vLane}\nv_and_b32 v49, 7, v{vLane}")
    a(f"v_lshlrev_b32 v49, 4, v49\nv_lshl_add_u32 v{vW2}, v48, 10, v49")
    a(f"s_lshl_b32 s{sT0}, s{sR}, 16\ns_lshl_b32 s{sT1}, s{sX}, 7\ns_add_u32 s{sT0}, s{sT0}, s{sT1}")
    a(f"s_sub_u32 s{sT1}, s{sT0}, 8192\nv_add_u32 v49, s{sT1}, v{vW2}")
    a(f"s_lshl_b32 s{sT1}, s{sWV}, 13\ns_add_u32 s{sT0}, s{sT0}, s{sT1}\nv_add_u32 v48, s{sT0}, v{vW2}")
    a(f"s_mul_i32 s{sT1}, s{sWV}, {CHP}\ns_mov_b32 s{sSOFF}, 32768")
    for b,n in ((SK_,2<<20),(SV_,2<<20),(WS,256<<20),(SSK,4096)):
        a(f"s_mov_b32 s{b+2}, {n}\ns_mov_b32 s{b+3}, 0x20000")
    a(f"v_and_b32 v{vJ}, 15, v{vLane}\nv_lshrrev_b32 v{vQ}, 4, v{vLane}")
    a(f"s_lshl_b32 s{sT0}, s{sX}, 6\ns_lshl_b32 s{sT2}, s{sWV}, 4\ns_add_u32 s{sT0}, s{sT0}, s{sT2}\nv_add_u32 v55, s{sT0}, v{vJ}")
    a(f"v_lshlrev_b32 v78, 3, v55\nv_mov_b32 v50, 0")
    a(f"s_add_u32 m0, s{sT1}, {L_K+CHP}\ns_mov_b32 s{sT2}, {L_V+8*CHP}")
    a("s_waitcnt lgkmcnt(0)"); a.stamp("kernarg","f")
    if CFG.get('probe'):
        if CFG['probe']==1: a("s_load_dwordx2 s[96:97], s[0:1], 48\ns_waitcnt lgkmcnt(0)\ns_mov_b32 s98, 0x200000\ns_mov_b32 s99, 0x20000"); S="s[96:99]"; base=0
        else: S=srd(WS); base=CFG['probe']<<24
        a(f"s_lshl_b32 s95, s2, 2\ns_add_u32 s95, s95, s{sWV}\ns_lshl_b32 s95, s95, 11\ns_add_u32 s95, s95, {base}\nv_mov_b32 v60, s95")
        for i in range(16):
            a(f"buffer_load_dword v61, v60, {S}, 0 offen offset:{128*i}\nv_and_b32 v61, 0, v61\nv_add_u32 v60, v60, v61")
    a(f"buffer_load_dwordx4 v48, {srd(SK_)}, 0 offen lds","kv")
    a(f"s_add_u32 m0, s{sT1}, {L_V}");       a(f"buffer_load_dwordx4 v48, {srd(SV_)}, 0 offen lds","kv")
    a(f"s_add_u32 m0, s{sT1}, {L_K+5*CHP}"); a(f"buffer_load_dwordx4 v48, {srd(SK_)}, s{sSOFF} offen lds","kv")
    a(f"s_add_u32 m0, s{sT1}, {L_V+4*CHP}"); a(f"buffer_load_dwordx4 v48, {srd(SV_)}, s{sSOFF} offen lds","kv")
    a(f"s_cmp_eq_u32 s{sWV}, 3\ns_cselect_b32 m0, {L_K}, s{sT2}\ns_cselect_b32 s{sSOFF}, 0, {OOB}")
    a(f"buffer_load_dwordx4 v49, {srd(SK_)}, s{sSOFF} offen lds","kv")
    a.lw(13,(L_K,L_V+8*CHP+1024))
    a(f"buffer_load_dwordx2 {V(80,2)}, v78, {srd(SSK)}, 0 offen")
    a(f"buffer_load_dword v51, v50, {srd(WS)}, 0 offen sc1")
    a.stamp("kv issued","f")
    for b,n in ((SH_,4096),(SD_,1024),(SQ_,2<<20),(SWG,512*1376*2),(SWU,512*1376*2),(SWD,512*1376*2),(SO_,2<<20)):
        a(f"s_mov_b32 s{b+2}, {n}\ns_mov_b32 s{b+3}, 0x20000")
    a(f"""s_lshr_b32 s{sT0}, s{sR}, 4
        s_lshl_b32 s{sG}, s{sX}, 1
        s_add_u32 s{sG}, s{sG}, s{sT0}
        s_and_b32 s{sM}, s{sR}, 15
        s_lshr_b32 s{sRH}, s{sM}, 3
        s_and_b32 s{sCT2}, s{sM}, 7
        s_lshr_b32 s{sKH}, s{sWV}, 1
        s_and_b32 s{sCHH}, s{sWV}, 1
        s_mov_b32 s{sMB}, 0x100000""")
    a(f"s_cmp_eq_u32 s{sM}, 15\ns_cselect_b32 s{SWG+2}, 0, s{SWG+2}\ns_cselect_b32 s{SWU+2}, 0, s{SWU+2}")
    a(f"s_lshl_b32 s{sT0}, s{sX}, 6\ns_lshl_b32 s{sT1}, s{sR}, 1\ns_add_u32 s{sT0}, s{sT0}, s{sT1}\ns_add_u32 s{sT2}, s{sT0}, s{sKH}")
    a(f"s_lshl_b32 s{sT0}, s{sT2}, 12\ns_add_u32 s{SH_}, s{SH_}, s{sT0}\ns_addc_u32 s{SH_+1}, s{SH_+1}, 0")
    a(f"s_lshl_b32 s{sT0}, s{sCHH}, 11\nv_add_u32 v52, s{sT0}, v{vL}")
    a(f"v_min_u32 v53, 1, v{vLane}\nv_lshlrev_b32 v53, 4, v53\nv_subrev_u32 v53, 32, v53")
    a(f"s_lshl_b32 s{sT0}, s{sT2}, 1\nv_mov_b32 v{vD}, s{sT0}")
    if CFG['ssmat']==0: ssm_loads(a)
    a(f"""v_and_b32 v96, 1, v{vQ}
        v_lshlrev_b32 v96, 2, v96
        v_lshrrev_b32 v97, 2, v{vJ}
        v_add_u32 v96, v96, v97
        v_lshlrev_b32 v96, 16, v96
        v_and_b32 v97, 3, v{vJ}
        v_lshl_add_u32 v96, v97, 5, v96
        v_lshrrev_b32 v97, 1, v{vQ}
        v_lshl_add_u32 v96, v97, 4, v96
        s_lshl_b32 s{sT0}, s{sCHH}, 19
        s_lshl_b32 s{sT1}, s{sT2}, 7
        s_add_u32 s{sT0}, s{sT0}, s{sT1}
        s_add_u32 s{sT0}, s{sT0}, {OFF_YT}
        v_add_u32 v{vYo}, s{sT0}, v96
        s_mov_b32 s{sHELLO}, s{sT2}""")
    a(f"v_mov_b32 v{vOne}, {OOB}\nv_cmp_eq_u32 vcc, 0, v{vLane}\nv_cndmask_b32 v{vOne}, v{vOne}, v50, vcc")
    a(f"""s_lshl_b32 s{sT0}, s{sG}, 2
        s_lshl_b32 s{sT1}, s{sRH}, 1
        s_add_u32 s{sT1}, s{sT1}, s{sKH}
        s_add_u32 s{sT0}, s{sT0}, s{sT1}
        s_lshl_b32 s{sT1}, s{sKH}, 1
        s_add_u32 s{sT1}, s{sT1}, s{sRH}""")
    a(f"""s_lshl_b32 s{sGRl}, s{sT0}, 12
        s_add_u32 s{sGRl}, s{sGRl}, {OFF_GRAN}
        s_lshl_b32 s{sS5l}, s{sT0}, 10
        s_add_u32 s{sS5l}, s{sS5l}, {OFF_S5}
        s_lshl_b32 s{sT3}, s{sCT2}, 1
        s_add_u32 s{sT3}, s{sT3}, s{sCHH}""")
    a(f"""s_lshl_b32 s{sGR}, s{sT3}, 8
        s_add_u32 s{sGR}, s{sGR}, s{sGRl}
        s_lshl_b32 s{sS5}, s{sT3}, 2
        s_add_u32 s{sS5}, s{sS5}, s{sS5l}
        s_lshl_b32 s{sXS}, s{sG}, 17
        s_lshl_b32 s{sT1}, s{sT1}, 14
        s_add_u32 s{sXS}, s{sXS}, s{sT1}
        s_lshl_b32 s{sT1}, s{sX}, {1 if CFG['rot'] else 8}
        s_sub_u32 s{sT1}, s{sT3}, s{sT1}
        s_and_b32 s{sT1}, s{sT1}, 15
        s_lshl_b32 s{sT1}, s{sT1}, 10
        s_add_u32 s{sXS}, s{sXS}, s{sT1}
        s_add_u32 s{sXS}, s{sXS}, {OFF_XF}
        s_lshl_b32 s{sT0}, s{sT0}, 14
        s_lshl_b32 s{sT1}, s{sT3}, 6
        s_add_u32 s{sT0}, s{sT0}, s{sT1}""")
    a(f"v_lshlrev_b32 v{vTok}, 10, v{vJ}\nv_lshl_add_u32 v{vTok}, v{vQ}, 4, v{vTok}\nv_add_u32 v{vTok}, s{sT0}, v{vTok}")
    a(f"v_lshlrev_b32 v{vGs}, 4, v{vJ}\nv_lshl_add_u32 v{vGl}, v{vQ}, 10, v{vGs}\nv_lshl_add_u32 v{vGs}, v{vQ}, 2, v{vGs}")
    a(f"v_lshlrev_b32 v{vS5l}, 6, v{vJ}\nv_mov_b32 v{vS5s}, {OOB}\nv_cmp_eq_u32 vcc, 0, v{vQ}\nv_cndmask_b32 v{vS5s}, v{vS5s}, v{vS5l}, vcc")
    a(f"v_lshl_add_u32 v{vS5l}, v{vQ}, 4, v{vS5l}")
    a(f"s_lshl_b32 s{sT0}, s{sX}, 5\ns_add_u32 s{sT0}, s{sT0}, s{sR}\ns_lshl_b32 s{sHF}, s{sT0}, 7\ns_lshl_b32 s{sT0}, s{sWV}, 2\ns_add_u32 s{sHF}, s{sHF}, s{sT0}\ns_add_u32 s{sHF}, s{sHF}, {OFF_HELLO}")
    a(f"""s_lshl_b32 s{sXW}, s{sCHH}, 14
        s_lshl_b32 s{sT0}, s{sKH}, 12
        s_add_u32 s{sXW}, s{sXW}, s{sT0}
        s_lshl_b32 s{sT0}, s{sG}, 17
        s_add_u32 s{sT0}, s{sT0}, s{sXW}
        s_add_u32 s{sT0}, s{sT0}, {OFF_XF}
        v_add_u32 v{vXD}, s{sT0}, v{vL}
        s_lshl_b32 s{sHW}, s{sWV}, 13
        s_mul_i32 s{sHK}, s{sKH}, {3*8192}
        s_lshl_b32 s{sHS}, s{sKH}, 13
        s_add_u32 s{sHS}, s{sHS}, 8192
        s_lshl_b32 s{sT0}, s{sG}, 3
        s_add_u32 s{sT1}, s{sRH}, s{sT0}
        s_mul_i32 s{sT1}, s{sT1}, {HKS}
        s_mul_i32 s{sT3}, s{sKH}, 21
        s_add_u32 s{sT1}, s{sT1}, s{sT3}
        s_lshl_b32 s{sT1}, s{sT1}, 10
        s_add_u32 s{sT1}, s{sT1}, {OFF_H}
        v_add_u32 v{vHD}, s{sT1}, v{vL}""")
    a(f"""s_mul_i32 s{sT0}, s{sT0}, {HKS*1024}
        s_mul_i32 s{sT1}, s{sM}, 12
        s_mul_i32 s{sT3}, s{sWV}, 3
        s_add_u32 s{sT1}, s{sT1}, s{sT3}
        s_lshl_b32 s{sT1}, s{sT1}, 8
        s_add_u32 s{sT0}, s{sT0}, s{sT1}
        s_add_u32 s{sT0}, s{sT0}, {OFF_H}
        s_mov_b32 s{sT1}, {HKS*1024}
        v_lshlrev_b32 v97, 4, v{vJ}
        v_add_u32 v97, s{sT0}, v97
        v_and_b32 v98, 1, v{vQ}
        v_mad_u32_u24 v{vHS1}, v98, s{sT1}, v97
        v_add_u32 v{vHS2}, 512, v{vHS1}
        v_cmp_gt_u32 vcc, 32, v{vLane}
        v_mov_b32 v97, {OOB}
        v_cndmask_b32 v{vHS2}, v97, v{vHS2}, vcc
        v_lshrrev_b32 v98, 1, v{vQ}
        v_lshl_add_u32 v{vHS1}, v98, 8, v{vHS1}
        v_lshlrev_b32 v{vFX}, 2, v{vLane}
        v_min_u32 v{vFH}, 57, v{vLane}
        v_lshlrev_b32 v{vFH}, 2, v{vFH}
        s_lshl_b32 s{sFL}, s{sG}, 9
        s_lshl_b32 s{sFLG}, s{sM}, 2
        s_add_u32 s{sFLG}, s{sFLG}, s{sWV}
        s_lshl_b32 s{sFLG}, s{sFLG}, 2
        s_add_u32 s{sFLG}, s{sFLG}, s{sFL}
        s_nop 0""")
    w_setup(a)
    a(f"""v_mul_u32_u24 v83, {2*CHP}, v{vQ}
        v_bfe_u32 v101, v{vLane}, 2, 2
        v_lshl_add_u32 v83, v101, 7, v83
        v_and_b32 v101, 3, v{vLane}
        v_lshl_add_u32 v83, v101, 3, v83
        s_lshl_b32 s{sT0}, s{sWV}, 5
        v_add_u32 v83, s{sT0}, v83""")
    a(f"v_and_b32 v55, -9, v55\nv_lshlrev_b32 v55, 12, v55\nv_lshl_add_u32 v55, v{vQ}, 5, v55\nv_lshrrev_b32 v101, 3, v{vJ}\nv_lshl_add_u32 v55, v101, 4, v55\ns_lshl_b32 s{sT0}, s{sR}, 7\ns_add_u32 s{sT0}, s{sT0}, {OFF_KVT}\nv_add_u32 v55, s{sT0}, v55")
    a(f"v_lshrrev_b32 v100, 5, v{vLane}\nv_mul_u32_u24 v100, {UCH-512}, v100\nv_add_u32 v100, v100, v{vL}")
    a("v_mov_b32 v104, 0\nv_mov_b32 v105, 0\nv_mov_b32 v106, 0\nv_mov_b32 v107, 0")
    a(f"ds_write_b128 v100, {V(104)} offset:{L_U}"); a.lw(1,(L_U,L_U+512),(L_U+UCH,L_U+UCH+512))
    a(f"""s_lshl_b32 s{sT0}, s{sWV}, 12
        s_add_u32 s{sT1}, s{sT0}, {L_CX}
        v_add_u32 v{vCXw}, s{sT1}, v{vL}
        s_lshl_b32 s{sT2}, s{sCHH}, 11
        v_add_u32 v{vCXo}, s{sT2}, v{vCXw}
        v_xor_b32 v{vCXp}, 4096, v{vL}
        s_xor_b32 s{sT0}, s{sT0}, 4096
        s_add_u32 s{sT0}, s{sT0}, s{sT2}
        s_add_u32 s{sT0}, s{sT0}, {L_CX}
        v_add_u32 v{vCXp}, s{sT0}, v{vL}
        s_lshl_b32 s{sT0}, s{sCHH}, 10
        s_mul_i32 s{sT1}, s{sKH}, {UCH}
        s_add_u32 s{sT0}, s{sT0}, s{sT1}
        s_add_u32 s{sT0}, s{sT0}, {L_U+512+8}
        v_lshlrev_b32 v{vKV}, 5, v{vJ}
        v_lshrrev_b32 v100, 1, v{vQ}
        v_lshl_add_u32 v{vKV}, v100, 4, v{vKV}
        v_and_b32 v100, 1, v{vQ}
        v_lshlrev_b32 v100, 3, v100
        v_sub_u32 v{vKV}, v{vKV}, v100
        v_add_u32 v{vKV}, s{sT0}, v{vKV}
        v_lshrrev_b32 v100, 2, v0
        v_lshlrev_b32 v100, 7, v100
        v_and_b32 v101, 3, v0
        v_lshl_add_u32 v100, v101, 4, v100
        s_lshl_b32 s{sT0}, s{sG}, 16
        s_lshl_b32 s{sT1}, s{sCT2}, 13
        s_add_u32 s{sT0}, s{sT0}, s{sT1}
        s_lshl_b32 s{sT1}, s{sRH}, 6
        s_add_u32 s{sT0}, s{sT0}, s{sT1}
        s_add_u32 s{sT0}, s{sT0}, {OFF_YT}
        v_add_u32 v{vGA}, s{sT0}, v100
        v_lshlrev_b32 v{vGW}, 4, v0
        v_bfe_u32 v100, v{vLane}, 2, 2
        v_lshl_add_u32 v100, v{vQ}, 3, v100
        v_lshlrev_b32 v100, 6, v100
        v_and_b32 v101, 3, v{vLane}
        v_lshl_add_u32 v100, v101, 3, v100
        s_lshl_b32 s{sT0}, s{sCHH}, 11
        s_lshl_b32 s{sT1}, s{sKH}, 5
        s_add_u32 s{sT0}, s{sT0}, s{sT1}
        v_add_u32 v{vGT}, s{sT0}, v100
        v_and_b32 v100, 7, v{vLane}
        v_lshlrev_b32 v100, 7, v100
        v_bfe_u32 v101, v{vLane}, 3, 2
        v_lshl_add_u32 v100, v101, 14, v100
        s_lshl_b32 s{sT0}, s{sFL}, 1
        s_add_u32 s{sT0}, s{sT0}, {OFF_XFLAG}
        v_add_u32 v{vFT}, s{sT0}, v100
        v_and_b32 v100, 31, v{vLane}
        v_lshlrev_b32 v100, 7, v100
        v_cmp_gt_u32 vcc, 32, v{vLane}
        s_lshl_b32 s{sT0}, s{sCT2}, 12
        s_lshl_b32 s{sT1}, s{sX}, 12
        v_mov_b32 v101, s{sT0}
        v_mov_b32 v102, s{sT1}
        v_cndmask_b32 v101, v101, v102, vcc
        v_add_u32 v100, {OFF_HELLO}, v100
        v_add_u32 v{vHa}, v100, v101""")
    a(f"""s_lshl_b32 s{sT0}, s{sHELLO}, 12
        s_lshl_b32 s{sT1}, s{sCHH}, 11
        s_add_u32 s{sT0}, s{sT0}, s{sT1}
        s_add_u32 s{sT0}, s{sT0}, {OFF_KVT}
        v_lshlrev_b32 v100, 7, v{vLane}
        v_add_u32 v100, s{sT0}, v100
        s_lshr_b32 s{sT0}, s{sR}, 3
        s_lshl_b32 s{sT1}, s{sX}, 2
        s_add_u32 s{sT0}, s{sT0}, s{sT1}
        s_lshl_b32 s{sT0}, s{sT0}, 7
        s_add_u32 s{sT0}, s{sT0}, {OFF_F1L}
        v_mov_b32 v101, s{sT0}
        v_cmp_gt_u32 vcc, 16, v{vLane}
        v_cndmask_b32 v{vTch}, v101, v100, vcc""")
    if CFG['utouch']==0: a(f"buffer_load_dword v{vTch}, v{vTch}, {srd(WS)}, 0 offen sc1")
    if CFG['ssmat']==1: ssm_loads(a)
    a(f"""v_lshlrev_b32 v{vCg}, 4, v{vJ}
        v_lshl_add_u32 v{vCg}, v{vQ}, 18, v{vCg}
        v_lshrrev_b32 v{vCs}, 3, v{vLane}
        v_lshlrev_b32 v{vCs}, 16, v{vCs}
        v_and_b32 v100, 7, v{vLane}
        v_lshl_add_u32 v{vCs}, v100, 4, v{vCs}
        s_lshl_b32 s{sT0}, s{sCHH}, 17
        s_lshl_b32 s{sT1}, s{sCT2}, 7
        s_add_u32 s{sT0}, s{sT0}, s{sT1}
        s_add_u32 s{sT0}, s{sT0}, s{sS5l}
        v_add_u32 v{vCs}, s{sT0}, v{vCs}
        v_cmp_gt_u32 vcc, 16, v{vLane}
        v_mov_b32 v100, {OOB}
        v_add_u32 v{vCg}, s{sGR}, v{vCg}
        v_cndmask_b32 v{vCs}, v100, v{vCs}, vcc""")
    if CFG['clr']==0: clears(a)
    a.stamp("setup done","f")

def ssm_loads(a):
    a(f"s_mul_i32 s{sT0}, s{sKH}, {UCH}\ns_lshl_b32 s{sT1}, s{sCHH}, 11\ns_add_u32 s{sT0}, s{sT0}, s{sT1}\ns_add_u32 m0, s{sT0}, {L_U+512}")
    a(f"buffer_load_dwordx4 v{vL}, {srd(SH_)}, s{sT1} offen lds\nbuffer_load_dwordx4 v{vL}, {srd(SH_)}, s{sT1} offen offset:1024 lds","ssm")
    a.lw(2,(L_U+512,L_U+UCH),(L_U+UCH+512,L_U+2*UCH))
    a(f"buffer_load_ushort v{vD}, v{vD}, {srd(SD_)}, 0 offen")

def clears(a,tok=None):
    a("v_mov_b32 v112, -1\nv_mov_b32 v113, -1\nv_mov_b32 v114, -1\nv_mov_b32 v115, -1")
    a(f"""buffer_store_dwordx4 {V(112)}, v{vYo}, {srd(WS)}, 0 offen sc1
        buffer_store_dwordx4 {V(112)}, v{vYo}, {srd(WS)}, s{sMB} offen sc1
        buffer_store_dwordx4 {V(112)}, v{vCg}, {srd(WS)}, 0 offen sc1
        buffer_store_dwordx4 {V(112)}, v{vCs}, {srd(WS)}, 0 offen sc1""",tok)

def w_setup(a):
    lane,j,q=vLane,vJ,vQ
    for b in range(3):
        a(f"v_add_u32 v100, {64*b}, v{lane}\nv_mul_u32_u24 v101, 43691, v100\nv_lshrrev_b32 v101, 19, v101")
        a(f"v_mul_u32_u24 v102, 12, v101\nv_sub_u32 v100, v100, v102\nv_lshlrev_b32 v100, 4, v100")
        if CFG['swz']:
            a("v_lshrrev_b32 v102, 3, v101\nv_lshlrev_b32 v102, 5, v102\nv_sub_u32 v100, v100, v102\nv_add_u32 v102, 192, v100\nv_min_u32 v100, v100, v102")
        a(f"v_mul_u32_u24 v101, 2752, v101\nv_add_u32 v{vW1[b]}, v100, v101")
        if CFG['z14']: a(f"s_cmp_eq_u32 s{sM}, 14\ns_cselect_b32 s{sT0}, 64, 192\nv_cmp_gt_u32 vcc, s{sT0}, v100\nv_mov_b32 v101, 0x40000000\nv_cndmask_b32 v{vW1[b]}, v101, v{vW1[b]}, vcc")
    a(f"s_mul_i32 s{sT0}, s{sWV}, {16*2752}\ns_mul_i32 s{sT1}, s{sM}, 192\ns_add_u32 s{sT0}, s{sT0}, s{sT1}")
    for b in range(3):
        a(f"v_add_u32 v{vW1[b]}, s{sT0}, v{vW1[b]}")
        if b: a(f"v_subrev_u32 v{vW1[b]}, {1024*b}, v{vW1[b]}")
    a(f"""v_bfe_u32 v100, v{lane}, 2, 2
        v_lshl_add_u32 v100, v{q}, 3, v100
        v_and_b32 v101, 3, v{lane}
        v_mul_u32_u24 v102, 192, v100
        s_mul_i32 s{sT0}, s{sWV}, 48
        v_and_b32 v104, {1 if CFG['swz'] else 0}, v{q}
        v_lshlrev_b32 v104, 5, v104
        v_add_u32 v104, s{sT0}, v104
        v_lshl_add_u32 v103, v101, 3, v104
        v_subrev_u32 v105, 192, v103
        v_min_u32 v103, v103, v105
        v_add_u32 v{vTa}, v102, v103
        v_lshrrev_b32 v103, 1, v101
        v_lshl_add_u32 v103, v103, 3, v104
        v_add_u32 v103, 32, v103
        v_subrev_u32 v105, 192, v103
        v_min_u32 v103, v103, v105
        v_add_u32 v102, v102, v103
        v_and_b32 v103, 1, v101
        v_mul_u32_u24 v103, 12288, v103
        v_add_u32 v{vTm}, v102, v103
        v_lshlrev_b32 v102, 7, v100
        v_lshl_add_u32 v102, v101, 4, v102
        s_lshl_b32 s{sT1}, s{sWV}, 12
        s_add_u32 s{sT1}, s{sT1}, {L_PP}
        v_add_u32 v{vT2}, s{sT1}, v102
        s_mul_i32 s{sW1W}, s{sWV}, 3072""")

def c_dma(n, slot):
    if CFG.get('now1'): return []
    L=M(f"s_add_u32 s{sWo}, s{sX}, {n}\ns_and_b32 s{sWo}, s{sWo}, 7\ns_mul_i32 s{sWo}, s{sWo}, {64*2752}") if CFG['rot'] else M(f"s_mov_b32 s{sWo}, {n*64*2752}")
    for mat,S in ((0,SWG),(1,SWU)):
        L+=M(f"s_add_u32 m0, s{sW1W}, {slot+mat*12288}")
        for b in range(3): L+=M(f"buffer_load_dwordx4 v{vW1[b]}, {srd(S)}, s{sWo} offen offset:{1024*b} lds",f"c{n}")
    return LW(L,(slot,slot+WSL))
def c_read(n, slot):
    if CFG.get('now1'): return []
    L=M(f"v_add_u32 v{vWc0}, {slot}, v{vTa}\nv_add_u32 v{vWc1}, {slot}, v{vTm}")
    for sp in range(2):
        s=2*n+sp
        for hh in range(2):
            o=sp*6144+hh*768
            L+=M(f"""ds_read_b64_tr_b16 {W1h(s,0,hh)}, v{vWc0} offset:{o}
                     ds_read_b64_tr_b16 {W1h(s,1,hh)}, v{vWc0} offset:{o+12288}
                     ds_read_b64_tr_b16 {W1h(s,2,hh)}, v{vWc1} offset:{o}""",f"cr{n}")
    return LR(L,(slot,slot+WSL))
def pp_setup():
    return M(f"""s_lshl_b32 s{sT0}, s{sWV}, 8
        s_add_u32 s{sT0}, s{sT0}, s2
        s_mul_i32 s{sT1}, s{sT0}, 1525
        s_lshr_b32 s{sT1}, s{sT1}, 16
        s_mul_i32 s{sT2}, s{sT1}, 43
        s_sub_u32 s{sT2}, s{sT0}, s{sT2}
        s_lshl_b32 s{sPS}, s{sT2}, 15
        s_lshl_b32 s{sT3}, s{sT1}, 7
        s_add_u32 s{sPS}, s{sPS}, s{sT3}
        s_mul_i32 s{sPD}, s{sT1}, 86
        s_add_u32 s{sPD}, s{sPD}, s{sT2}
        s_lshl_b32 s{sPD}, s{sPD}, 11
        s_add_u32 s{sPD}, s{sPD}, {OFF_P2}
        s_lshl_b32 s{sPF}, s{sT0}, 7
        s_add_u32 s{sPF}, s{sPF}, {OFF_P2F}
        s_cmp_lt_u32 s{sT0}, 344
        s_cselect_b32 s{sPS}, s{sPS}, {OOB}
        s_cselect_b32 s{sPD}, s{sPD}, {OOB}
        s_cselect_b32 s{sPF}, s{sPF}, {OOB}
        s_lshl_b32 s{sT0}, s{sCT2}, 1
        s_add_u32 s{sT0}, s{sT0}, s{sCHH}
        s_mul_i32 s{sT0}, s{sT0}, 43
        s_mul_i32 s{sT1}, s{sKH}, 21
        s_add_u32 s{sT0}, s{sT0}, s{sT1}
        s_lshl_b32 s{sT0}, s{sT0}, 11
        s_add_u32 s{sW2B}, s{sT0}, {OFF_P2}
        s_cmp_eq_u32 s{sKH}, 0
        s_cselect_b32 s{sW20}, s{sW2B}, {OOB}""")
def pp_load():
    L=M(f"s_lshl_b32 s{sT3}, s{sWV}, 12")
    for r in range(4):
        L+=M(f"s_add_u32 m0, s{sT3}, {L_PP+1024*r}\ns_add_u32 s{sWo}, s{sPS}, {8192*r}")
        L+=M(f"buffer_load_dwordx4 v{vW2}, {srd(SWD)}, s{sWo} offen lds","pp")
    for x in L: x.priv=1
    return LW(L,(L_PP,L_PP+16384))
def touches():
    return M(f"""buffer_load_dword v{vCg}, v{vCg}, {srd(WS)}, 0 offen sc1
        buffer_load_dword v{vCs}, v{vCs}, {srd(WS)}, 0 offen sc1
        buffer_load_dword v{vFT}, v{vFT}, {srd(WS)}, 0 offen sc1""")
def extras(pos): return (pp_load() if CFG['ppat']==pos else [])+(touches() if CFG['tat']==pos else [])+(h_touch(TCHK()) if CFG['hat']==pos else [])
def pp_pack():
    L=[('WVM','pp')]
    for c in range(2):
        for t in range(2):
            for hh in range(2): L+=LR(M(f"ds_read_b64_tr_b16 {V(W2V+8*c+4*t+2*hh,2)}, v{vT2} offset:{hh*512+64*c+8*t}"),(L_PP,L_PP+16384))
    for x in L[1:]: x.priv=1
    S=[]
    for c in range(2):
        S+=M(f"s_add_u32 s{sT2}, s{sPD}, {c*43*2048}")
        for t in range(2): S+=M(f"buffer_store_dwordx4 {V(W2V+8*c+4*t)}, v{vL}, {srd(WS)}, s{sT2} offen offset:{1024*t} sc1","pps")
    return L,S
def w2_loads():
    L=[]
    for i in range(CFG.get('w2n',22)):
        so=sW20 if i==0 else (sW2B if i==1 else sPS)
        if i>=2 and i%2==0: L+=M(f"s_add_u32 s{sPS}, s{sW2B}, {i*2048}")
        for t in range(2): L+=M(f"buffer_load_dwordx4 {W2(i,t)}, v{vL}, {srd(WS)}, s{so} offen offset:{(i&1)*2048+t*1024} sc1",f"w2_{i}")
    return L
W2Q=[]
def w2_take(n):
    out=[]
    while W2Q and n>0:
        x=W2Q.pop(0); out.append(x)
        if x.kind=='vmem': n-=1
    return out

PLANS={
 0:dict(),
 1:dict(FL="i0", T2="i1", CV=[("a",20,"r0"),("d",40,"i2"),("a",84,"w1 b r1"),("d",100,"i3@0")], YS="i4@5", YA="w3 b r2 r3", GL="i5@1 w4 l b r4", ST="i6@2", PEND=[5,6], REST=["7@0"]),
 3:dict(FL="i0", T2="i1 w0 b r0", CV=[("d",2,"i2"),("d",68,"i3@0")], CE="w2", YS="r1 r2 i4@3", F1="r3", F2="i5@1", FB="r4", XD="", PEND=[5], REST=["6@2","7@0"]),
 6:dict(T2="i0", CV=[("d",40,"i1"),("d",90,"i2")], CE="w1", YS="i3@3 r0 r1", SA="w2", F1="r2 i4@0", F2="", FX="i5@1", SB="w4", FB="r3 r4", XD="", PEND=[5], REST=["6@2","7@0"]),
 8:dict(T0="i0", FL="i1", T2="i2 w1 b r0 r1", CV=[("d",20,"i3@0"),("d",68,"i4@1")], CE="w3", YS="i5@3 r2 r3", F1="r4", F2="i6@2", FX="i7@0", FB="r5", PEND=[6,7]),
 12:dict(T0="i0", FL="i1", T2="i2 w1 b r0 r1", CV=[("d",20,"i3@0"),("d",68,"i4@1")], CE="w3", YS="i5@3 r2 r3", F1="r4", F2="i6@2", FX="i7@0", FB="r5", XD="p6", PEND=[6,7]),
 13:dict(T0="i0", FL="i1", T2="i2", CV=[("a",6,"r0 r1"),("a",52,"L1 b"),("d",54,"i3@0"),("d",100,"i4@1")], CE="w3", YS="i5@3 r2 r3", SA="w4", F1="r4", F2="i6@2", FX="i7@0", FB="r5", PEND=[6,7]),
 14:dict(T0="i0", T2="i1", CV=[("a",6,"r0"),("d",24,"i2"),("d",70,"i3@0")], CE="w2", YS="i4@3 r1 r2", F1="r3", F2="i5@1", FX="i6@2", FB="r4", PEND=[5,6], REST=["7@0"]),
 15:dict(FL="i0", T2="i1", CV=[("a",6,"r0"),("d",4,"i2"),("a",40,"w1 L0 b r1"),("d",50,"i3@0"),("a",94,"w2 L1 b r2"),("d",98,"i4@1")], CE="w3", YS="i5@3 r3", SA="w4", F1="r4", F2="i6@2", FX="i7@0", FB="r5", PEND=[6,7]),
 16:dict(T1="i0", T2="i1", CV=[("a",6,"r0"),("d",4,"i2"),("a",40,"w1 L0 b r1"),("d",50,"i3@0"),("a",94,"w2 L1 b r2"),("d",98,"i4@1")], CE="w3", YS="i5@3 r3", SA="w4", F1="r4", F2="i6@2", FX="i7@0", FB="r5", PEND=[6,7]),
 17:dict(T0="i0", FL="i1", T2="i2", CV=[("a",6,"r0 r1"),("a",52,"L1 b"),("d",54,"i3@0"),("d",100,"i4@1")], CE="w3", Y0="i5@3", SA="w4", YS="r2 r3 r4", FX="l b i6@2", FB="i7@0 r5", PEND=[6,7]),
 18:dict(T0="i0", FL="i1", T2="i2", CV=[("a",6,"r0 r1"),("a",52,"L1 b"),("d",54,"i3@0"),("d",100,"i4@1")], CE="w3", SA="w4", YS="i5@3 r2 r3 r4", F2="l b i6@2", FX="i7@0", FB="r5", PEND=[6,7]),
 20:dict(T0="i0", FL="i1", T2="i2", CV=[("a",6,"r0 r1"),("a",52,"L1 b"),("d",54,"i3@0"),("d",100,"i4@1")], CE="w3", SA="w4", YS="i5@3 r2 r3 r4", FA="l b i6@2", FX="i7@0", FB="r5", PEND=[6,7]),
 21:dict(T0="i0", FL="i1", T2="i2", CV=[("a",6,"r0 r1"),("a",52,"L1 b"),("d",54,"i3@0"),("d",100,"i4@1")], CE="w3", Y0="i5@3", SA="w4", YS="r2 r3 r4 l b i6@2", FX="i7@0", FB="r5", PEND=[6,7]),
 19:dict(T0="i0", FL="i1", T2="i2", CV=[("a",6,"r0 r1"),("a",52,"L1 b"),("d",54,"i3@0"),("d",100,"i4@1")], CE="w3", Y0="i5@3", SA="w4", YS="r2 r3 r4", FA="l b i6@2", FX="i7@0", FB="r5", PEND=[6,7]),
 10:dict(T0="i0", T2="i1 w0 b r0", CV=[("d",20,"i2"),("d",68,"i3@0")], CE="w2", YS="i4@3 r1 r2", F1="r3", F2="i5@1", FX="i6@2", FB="r4", PEND=[5,6], REST=["7@0"]),
 11:dict(T0="i0", T1="i1", T2="i2 w1 b r0 r1", CV=[("d",14,"i3@0"),("d",56,"i4@1"),("a",70,"w2 b r2"),("a",96,"L2 b"),("d",100,"i5@2")], CE="w4", YS="i6@3 r3 r4", SA="w5", F1="r5", F2="i7@0", FB="r6", XD="p4", PEND=[7]),
 7:dict(FL="i0", T2="i1 w0 b r0", CV=[("d",20,"i2"),("d",68,"i3@0")], CE="w2", YS="i4@3 r1 r2", F1="r3", F2="i5@1", FX="i6@2", FB="r4", PEND=[5,6], REST=["7@0"]),
 4:dict(FL="i0", T2="i1 w0 b r0", CV=[("d",2,"i2"),("d",50,"i3@0")], CE="w2", YS="i4@3 r1 r2", F1="r3", F2="i5@1", FX="i6@2", FB="r4", PEND=[5,6], REST=["7@0"]),
 5:dict(T1="i0", FL="", T2="i1 w0 b r0", CV=[("d",2,"i2"),("d",46,"i3@0"),("a",60,"w1 b r1"),("a",84,"L1 b"),("d",92,"i4@1")], CE="w3", YS="i5@3 r2 r3", SA="w4", F1="r4", F2="i6@2", FX="i7@0", FB="r5", PEND=[6,7]),
 2:dict(FL="i0", T2="i1", CV=[("a",20,"r0"),("d",30,"i2"),("a",70,"w1 b r1"),("d",80,"i3@0"),("a",124,"w2 b r2")], YS="i4@5 i5@1", YA="w4 b r3 r4", GL="i6@2 w5 l b r5", ST="i7@0", PEND=[6,7], FA="p4", FB="p4", XD="p4"),
 9:dict(ST="i0 i1 "+" ".join(f"w{n} l b "+(f"i{n+2} " if n+2<8 else "")+f"r{n}" for n in range(8))+" l b"),
}
slot_of={}
def wops(txt):
    L=[]
    for op in txt.split():
        at=None
        if '@' in op: op,at=op.split('@'); at=int(at)
        k=int(op[1:]) if len(op)>1 else None
        if op[0]=='i': slot_of[k]=SLOT[at if at is not None else k%3]; L+=c_dma(k,slot_of[k])
        elif op[0]=='r': L+=c_read(k,slot_of[k])
        elif op[0]=='w': L.append(('WVM',f"c{k}"))
        elif op[0]=='l': L+=M("s_waitcnt lgkmcnt(0)")
        elif op[0]=='L': L.append(('WLG',f"cr{k}"))
        elif op[0]=='b': L+=M("s_barrier")
        elif op[0]=='p': L+=w2_take(k)
    return L
def PL(): return eval(CFG['plan']) if isinstance(CFG['plan'],str) else PLANS[CFG['plan']]
def Wp(a,point): a.flat(wops(PL().get(point,"")))

def toeplitz(a):
    a("s_waitcnt lgkmcnt(0)\ns_barrier")
    a(f"s_mul_i32 s{sT0}, s{sKH}, {UCH}\ns_add_u32 s{sT0}, s{sT0}, {L_U+512}\nv_add_u32 v54, s{sT0}, v52\nv_add_u32 v78, s{sT0}, v53")
    for rho,(va,off) in enumerate(((54,0),(54,1024),(78,0))):
        d=56+8*rho
        a(f"ds_read_b128 {V(d)}, v{va} offset:{off}\nds_read_b64 {V(d+4,2)}, v{va} offset:{off+16}","raw"); a.lr(2,(L_U,L_U+2*UCH))
    a(f"s_mul_i32 s{sT0}, s{sKH}, {TCH}\ns_add_u32 s{sT0}, s{sT0}, {L_TOEP+32}")
    a(f"v_add_u32 v52, s{sT0}, v52\nv_add_u32 v53, s{sT0}, v53")
    for rho,(va,off) in enumerate(((52,0),(52,1024),(53,0))):
        d=56+8*rho; t=100+12*(rho%2)
        a(f"ds_write_b128 v{va}, {V(d)} offset:{off}")
        for i in range(4): a(f"v_alignbit_b32 v{t+i}, v{d+i+1}, v{d+i}, 16")
        a(f"ds_write_b128 v{va}, {V(t)} offset:{off+TCP}")
        for i in range(4): a(f"v_mov_b32 v{t+4+i}, v{d+i+1}")
        a(f"ds_write_b128 v{va}, {V(t+4)} offset:{off+2*TCP}")
        for i in range(4): a(f"v_alignbit_b32 v{t+8+i}, v{d+i+2}, v{d+i+1}, 16")
        a(f"ds_write_b128 v{va}, {V(t+8)} offset:{off+3*TCP}"); a.lw(16,(L_TOEP,L_TOEP+2*TCH))
        if rho==1: a.waitlg("raw"); a("s_barrier")

def p0(a):
    a.waitvm("kv"); a("s_barrier")
    a.stamp("kv landed","f")
    KR=84; VR=94
    for i in range(5):
        R=4+4*i; a(f"ds_read_b64_tr_b16 {V(KR+2*i,2)}, v83 offset:{L_K+(R>>3)*CHP+(R&7)*128}")
    for i in range(4):
        R=4*i; a(f"ds_read_b64_tr_b16 {V(VR+2*i,2)}, v83 offset:{L_V+(R>>3)*CHP+(R&7)*128}")
    a.lr(9,(L_K,L_V+8*CHP))
    Wp(a,'T0')
    O=16
    if CFG['dot2']:
        a("""v_alignbit_b32 v40, v80, v80, 16
            v_alignbit_b32 v41, v81, v81, 16
            v_and_b32 v42, 0xffff, v80
            v_and_b32 v43, 0xffff0000, v81
            v_and_b32 v44, 0xffff0000, v80
            v_and_b32 v45, 0xffff, v81
            v_or_b32 v44, v44, v45""")
        for i in range(8):
            P=KR+2+i
            a(f"v_dot2_f32_bf16 v{O+2*i}, v{P}, v42, 0\nv_dot2_f32_bf16 v{O+2*i+1}, v{P}, v40, 0")
        for i in range(8):
            P=KR+2+i
            a(f"v_dot2_f32_bf16 v{O+2*i}, v{P-1}, v44, v{O+2*i}\nv_dot2_f32_bf16 v{O+2*i+1}, v{P-1}, v41, v{O+2*i+1}")
        for i in range(8): a(f"v_dot2_f32_bf16 v{O+2*i}, v{KR+i}, v43, v{O+2*i}")
    else:
        a("v_lshlrev_b32 v40, 16, v80\nv_and_b32 v41, 0xffff0000, v80\nv_lshlrev_b32 v42, 16, v81\nv_and_b32 v43, 0xffff0000, v81")
        K=lambda t: 108+t-2
        for i in range(10):
            if i>0: a(f"v_lshlrev_b32 v{102+2*i}, 16, v{KR+i}")
            a(f"v_and_b32 v{103+2*i}, 0xffff0000, v{KR+i}")
        for t in range(16):
            a(f"v_mul_f32 v{O+t}, v40, v{K(t)}")
            a(f"v_fmac_f32 v{O+t}, v41, v{K(t-1)}")
            a(f"v_fmac_f32 v{O+t}, v42, v{K(t-2)}")
            a(f"v_fmac_f32 v{O+t}, v43, v{K(t-3)}")
    for i in range(8):
        a(f"v_lshlrev_b32 v102, 16, v{VR+i}\nv_and_b32 v103, 0xffff0000, v{VR+i}")
        a(f"v_mul_f32 v{O+2*i}, v{O+2*i}, v102\nv_mul_f32 v{O+1+2*i}, v{O+1+2*i}, v103")
    for o in range(2):
        for d in range(4): a(f"v_cvt_pk_bf16_f32 v{KR+4*o+d}, v{O+8*o+7-2*d}, v{O+8*o+6-2*d}")
    for d in range(4): a(f"v_mov_b32 v{102+d}, v{KR+4+d}")
    for d in range(4): a(f"v_mov_b32_dpp v{KR+4+d}, v{KR+d} row_ror:8 row_mask:0xf bank_mask:0x3")
    for d in range(4): a(f"v_mov_b32_dpp v{KR+d}, v{102+d} row_ror:8 row_mask:0xf bank_mask:0xc")
    a(f"s_mov_b32 s{sT0}, 32768")
    a(f"buffer_store_dwordx4 {V(KR)}, v55, {srd(WS)}, 0 offen\nbuffer_store_dwordx4 {V(KR+4)}, v55, {srd(WS)}, s{sT0} offen","kvs")
    if CFG['utouch']==1: a(f"buffer_load_dword v{vTch}, v{vTch}, {srd(WS)}, 0 offen sc1")
    a.stamp("p0 computed","f")
    if CFG['clr']==1: clears(a)
    Wp(a,'T1')
    a(f"s_mov_b32 s{sCH}, s{sHELLO}\ns_getreg_b32 s{sHELLO}, hwreg(HW_REG_XCC_ID, 0, 4)")
    a(f"v_readfirstlane_b32 s{sTAG}, v51")
    a(f"s_add_u32 s{sTAG}, s{sTAG}, 0x9E3779B0\ns_and_b32 s{sTAG}, s{sTAG}, 0xFFFFFFF0\ns_and_b32 s{sHELLO}, s{sHELLO}, 15\ns_or_b32 s{sHELLO}, s{sHELLO}, s{sTAG}")
    a(f"v_mov_b32 v{vTAG}, s{sTAG}\nv_mov_b32 v98, s{sHELLO}")
    a.ext(pp_setup())
    a(f"""s_add_u32 s{sFLH}, s{sFLG}, s{sFL}
        s_lshl_b32 s{sC4}, s{sCHH}, 12
        s_mul_i32 s{sC3}, s{sCHH}, 3072
        s_lshl_b32 s{sM4}, s{sKH}, 14
        s_add_u32 s{sM3}, s{sM4}, s{sC3}
        s_add_u32 s{sM4}, s{sM4}, s{sC4}""")
    a(f"s_lshl_b32 s{sT0}, s{sX}, 2\ns_add_u32 s{sT1}, s{sT0}, s{sWV}\ns_lshl_b32 s{sT1}, s{sT1}, 5\ns_add_u32 s{sT1}, s{sT1}, s{sR}\ns_lshl_b32 s{sT1}, s{sT1}, 2\ns_add_u32 s{sT1}, s{sT1}, {OFF_F1L}")
    a(f"s_lshr_b32 s{sCK1}, s{sR}, 3\ns_add_u32 s{sCK1}, s{sCK1}, s{sT0}\ns_lshl_b32 s{sCK1}, s{sCK1}, 7\ns_add_u32 s{sCK1}, s{sCK1}, {OFF_F1L}")
    a(f"v_and_b32 v97, 31, v{vLane}\nv_lshlrev_b32 v97, 2, v97\ns_mov_b32 s{sMODE}, 0")
    if CFG['tpre']: a.waitvm("ssm"); toeplitz(a)
    a.waitvm("kvs")
    a(f"buffer_store_dword v98, v{vOne}, {srd(WS)}, s{sT1} offen")
    a.stamp("kvT published","f")
    if CFG['clr']==3: clears(a)
    if CFG['qat']==0: a(f"buffer_load_dwordx4 {V(vQT)}, v{vTok}, {srd(SQ_)}, 0 offen\nbuffer_load_dwordx4 {V(vQT+4)}, v{vTok}, {srd(SQ_)}, s{sMB} offen")
    a.flat(extras(0))
    Wp(a,'FL')
    if not CFG['tpre']: toeplitz(a)
    a(f"""s_lshl_b32 s{sT0}, s{sCH}, 12
        s_lshl_b32 s{sT1}, s{sCHH}, 11
        s_add_u32 s{sT0}, s{sT0}, s{sT1}
        s_add_u32 s{sT0}, s{sT0}, {OFF_KVT}
        s_mul_i32 s{sUO}, s{sKH}, {UCH}
        s_add_u32 s{sT1}, s{sT1}, s{sUO}""")
    a.stamp("toeplitz","f")
    o=Asm(); o.lab("L_f1r"); o(f"s_mov_b32 s{sCNT}, 0")
    if CFG['stamps']: site_names.append("f1"); o(f"s_bitset1_b32 s98, {len(site_names)-1}")
    o.lab("L_f1l")
    o(f"""buffer_load_dword v99, v97, {srd(WS)}, s{sCK1} offen sc1
        s_waitcnt vmcnt(0)
        v_cmp_ne_u32 vcc, s{sHELLO}, v99
        s_cbranch_vccz L_f1b
        s_add_u32 s{sCNT}, s{sCNT}, 1
        s_cmp_lt_u32 s{sCNT}, {CFG['f1max']}
        s_cbranch_scc1 L_f1l""")
    o.lab("L_f1s")
    o(f"""s_mov_b32 s{sMODE}, 1
        s_mov_b32 s{sT2}, 32768
        buffer_store_dwordx4 {V(KR)}, v55, {srd(WS)}, 0 offen sc1
        buffer_store_dwordx4 {V(KR+4)}, v55, {srd(WS)}, s{sT2} offen sc1
        s_lshl_b32 s{sT2}, s{sX}, 2
        s_add_u32 s{sT3}, s{sT2}, s{sWV}
        s_lshl_b32 s{sT3}, s{sT3}, 5
        s_add_u32 s{sT3}, s{sT3}, s{sR}
        s_lshl_b32 s{sT3}, s{sT3}, 7
        s_add_u32 s{sT3}, s{sT3}, {OFF_F1}
        s_lshr_b32 s{sCK1}, s{sR}, 3
        s_add_u32 s{sCK1}, s{sCK1}, s{sT2}
        s_lshl_b32 s{sCK1}, s{sCK1}, 12
        s_add_u32 s{sCK1}, s{sCK1}, {OFF_F1}
        v_lshlrev_b32 v97, 5, v97
        s_waitcnt vmcnt(0)
        buffer_store_dword v{vTAG}, v{vOne}, {srd(WS)}, s{sT3} offen sc1
        s_mov_b32 s{sCNT}, 0""")
    o.lab("L_f1g")
    o(f"""buffer_load_dword v99, v97, {srd(WS)}, s{sCK1} offen sc1
        s_waitcnt vmcnt(0)
        v_cmp_ne_u32 vcc, s{sTAG}, v99
        s_cbranch_vccz L_f1b
        s_add_u32 s{sCNT}, s{sCNT}, 1
        s_cmp_lt_u32 s{sCNT}, {POLLMAX}
        s_cbranch_scc1 L_f1g
        s_branch L_f1b""")
    a.ool.append(o.L)
    ck=M(f"v_cmp_ne_u32 vcc, s{sHELLO}, v99\ns_cbranch_vccnz L_f1r\nL_f1b:") if CFG['slow']!=2 else M("s_waitcnt vmcnt(0)\ns_branch L_f1s\nL_f1b:")
    a(f"buffer_load_dword v99, v97, {srd(WS)}, s{sCK1} offen sc1")
    a(f"""s_lshl_b32 s{sT3}, s{sCHH}, 8
        s_sub_u32 s{sT2}, s{sUO}, s{sT3}
        s_add_u32 s{sT2}, s{sT2}, {L_U+480-192}
        v_lshlrev_b32 v141, 5, v{vJ}
        v_lshl_add_u32 v141, v{vQ}, 4, v141
        v_add_u32 v141, s{sT2}, v141
        v_add_u32 v142, 1, v{vJ}
        v_and_b32 v143, 3, v142
        v_mul_u32_u24 v143, {TCP}, v143
        v_lshrrev_b32 v142, 2, v142
        v_lshl_add_u32 v142, v142, 3, v143
        v_lshlrev_b32 v143, 4, v{vQ}
        v_sub_u32 v142, v142, v143
        s_mul_i32 s{sT2}, s{sKH}, {TCH}
        s_add_u32 s{sT2}, s{sT2}, s{sT3}
        s_add_u32 s{sT2}, s{sT2}, {L_TOEP+48}
        v_add_u32 v142, s{sT2}, v142
        s_add_u32 m0, s{sT1}, {L_U+512}""")
    a.flat(ck)
    a.stamp("f1 seen","f")
    a(f"buffer_load_dwordx4 v{vL}, {srd(WS)}, s{sT0} offen sc1 lds","u")
    a(f"buffer_load_dwordx4 v{vL}, {srd(WS)}, s{sT0} offen offset:1024 sc1 lds","u")
    a.lw(2,(L_U+512,L_U+UCH),(L_U+UCH+512,L_U+2*UCH))
    if CFG['clr']==4: clears(a,"clr")
    if CFG['clr'] in(1,3): a(f"buffer_store_dword v98, v{vOne}, {srd(WS)}, s{sHF} offen sc1")
    a.flat(extras(5))
    Wp(a,'T2')
    a(f"v_lshlrev_b32 v{vD}, 16, v{vD}")
    a.waitvm("u"); a("s_waitcnt lgkmcnt(0)\ns_barrier")
    a.stamp("U landed","f")

def conv_backbone():
    ACC=40; GR=72; Ureg=[16,20,24,28,32,36,104,108]
    seq=[]
    for it in range(4):
        o=4*(it&1)
        for e in range(4):
            for w in range(3-e,-1,-1): seq.append((w+e,o+e,o+w,('G',e,it,1),('U',w,it,1),it==0 and e==0))
    n1=len(seq)
    for it in range(4):
        pairs=[(e,w) for e in range(8) for w in range(7-e,max(0,4-e)-1,-1)]
        if it==0: pairs=[p for p in pairs if p[0]<4 and p[1]<4]+[p for p in pairs if not(p[0]<4 and p[1]<4)]
        seen=set()
        for e,w in pairs:
            seq.append((w+e,e,w,('G',e,it,2),('U',w,it,2),it==0 and (w+e) not in seen)); seen.add(w+e)
    reads={}; lastuse={}
    for n,(c,g,u,gid,uid,f) in enumerate(seq):
        for ph,i in ((('G',g),gid),(('U',u),uid)):
            if i not in reads: reads[i]=dict(ph=ph,need=n,earliest=lastuse.get(ph,-1))
            lastuse[ph]=n
    def emit(i):
        kind,k,it,_=i; ph=reads[i]['ph'][1]
        if kind=='U': return [LR(mk(f"ds_read_b128 {V(Ureg[ph])}, v141 offset:{512*k+192-64*it}"),(L_U,L_U+2*UCH))]
        return LR([mk(f"ds_read_b64 {V(GR+4*ph,2)}, v142 offset:{512*k+64*it}"),mk(f"ds_read_b64 {V(GR+4*ph+2,2)}, v142 offset:{512*k+64*it+8}")],(L_TOEP,L_TOEP+2*TCH))
    todo=[]
    for i in sorted(reads,key=lambda i:reads[i]['need']):
        for x in emit(i): todo.append((reads[i]['earliest'],reads[i]['need'],x))
    bb=[x for e,n,x in todo if n<4]; todo=[t for t in todo if t[1]>=4]
    for n,(c,g,u,gid,uid,f) in enumerate(seq):
        bb.append(mk(f"v_mfma_f32_16x16x32_bf16 {V(ACC+4*c)}, {V(GR+4*g)}, {V(Ureg[u])}, {'0' if f else V(ACC+4*c)}"))
        k=0
        while True:
            cand=[t for t in todo if t[0]<=n]
            if not cand: break
            t=cand[0]
            if k>=1 and not(k<2 and t[1]-n<=CFG['cla']) and not t[1]-n<=2: break
            bb.append(t[2]); todo.remove(t); k+=1
    assert not todo
    return bb,n1

def conv_epi(st):
    ACC=40+16*st; P=vPK+4*st; R=(L_CX,L_CX+16384)
    W=LW([mk(f"ds_write_b128 v{vCXw}, {V(ACC+4*k)} offset:{1024*k}",f"cx{st}") for k in range(4)],R)
    K=LR([mk(f"ds_read_b64 {V(vKD+2*k,2)}, v{vKV} offset:{2048*st+512*k}") for k in range(2)],(L_U,L_U+2*UCH))
    L=[]
    for k in range(2): L+=LR(M(f"ds_read_b128 {V(ACC+4*k)}, v{vCXo} offset:{1024*k}\nds_read_b128 {V(ACC+8+4*k)}, v{vCXp} offset:{1024*k}",f"cy{st}"),R)
    for k in range(2):
        A=ACC+4*k
        L+=M(f"v_and_b32 v{vUP}, 0xffff0000, v{vKD+1+2*k}\nv_lshlrev_b32 v{vUP+1}, 16, v{vKD+1+2*k}\nv_and_b32 v{vUP+2}, 0xffff0000, v{vKD+2*k}\nv_lshlrev_b32 v{vUP+3}, 16, v{vKD+2*k}")
        for r in range(4): L+=M(f"v_fmac_f32 v{A+r}, v{vD}, v{vUP+r}")
        for r in range(4): L+=M(f"v_add_f32 v{A+r}, v{A+r}, v{A+8+r}")
        L+=M(f"v_cvt_pk_bf16_f32 v{P+2*k}, v{A}, v{A+1}\nv_cvt_pk_bf16_f32 v{P+1+2*k}, v{A+2}, v{A+3}")
    L+=M(f"s_nop 0\nv_permlane16_swap_b32 v{P}, v{P+2}\nv_permlane16_swap_b32 v{P+1}, v{P+3}")
    L+=M(f"buffer_store_dwordx4 {V(P)}, v{vYo}, {srd(WS)}, {'0' if st==0 else 's%d'%sMB} offen sc1",f"yt{st}")
    return W+K,L

def y_check(a,mu):
    D=vGD+4*mu
    return a.check([f"buffer_load_dwordx4 {V(D)}, v{vGA}, {srd(WS)}, {'0' if mu==0 else 's%d'%sMB} offen sc1"],
         [f"v_max3_u32 v{vGC}, v{D}, v{D+1}, v{D+2}",f"v_max_u32 v{vGC}, v{vGC}, v{D+3}",f"v_cmp_eq_u32 vcc, -1, v{vGC}"],"yt")
def y_stage(a,mu,mid=[]):
    a(f"ds_write_b128 v{vGW}, {V(vGD+4*mu)} offset:{L_YS+4096*mu}"); a.lw(1,(L_YS+4096*mu,L_YS+4096*mu+4096))
    a.flat(mid)
    a("s_waitcnt lgkmcnt(0)\ns_barrier")
    for hh in range(2):
        a(f"ds_read_b64_tr_b16 {V(vYY[mu]+2*hh,2)}, v{vGT} offset:{L_YS+4096*mu+256*hh}")
        a.lr(1,(L_YS+4096*mu,L_YS+4096*mu+4096))

def x0_state(mu):
    S=SX[mu]; L=M(f"v_mov_b32 v{vGC}, 0x3f803f80")
    for i in range(4): L+=M(f"v_lshlrev_b32 v{vXst[mu]+2*i}, 16, v{vQT+4*mu+i}\nv_and_b32 v{vXst[mu]+2*i+1}, 0xffff0000, v{vQT+4*mu+i}")
    for i in range(4):
        q=vQT+4*mu+i
        L+=M(f"v_dot2_f32_bf16 v{S}, v{q}, v{vGC}, {'0' if i==0 else 'v%d'%S}\nv_dot2_f32_bf16 v{S+1}, v{q}, v{q}, {'0' if i==0 else 'v%d'%(S+1)}")
    return L

def conv(a):
    C=CFG
    bb,n1=conv_backbone()
    qld=M(f"""buffer_load_dwordx4 {V(vQT)}, v{vTok}, {srd(SQ_)}, 0 offen
        buffer_load_dwordx4 {V(vQT+4)}, v{vTok}, {srd(SQ_)}, s{sMB} offen
        buffer_load_dword v{vCg}, v{vCg}, {srd(WS)}, 0 offen sc1
        buffer_load_dword v{vCs}, v{vCs}, {srd(WS)}, 0 offen sc1
        buffer_load_dword v{vFT}, v{vFT}, {srd(WS)}, 0 offen sc1""")
    hl,hc=a.check([f"buffer_load_dwordx4 {V(112)}, v{vHa}, {srd(WS)}, 0 offen sc1"],
         [f"v_xor_b32 v113, s{sTAG}, v113",f"v_xor_b32 v114, s{sTAG}, v114",f"v_xor_b32 v115, s{sTAG}, v115",
          "v_or3_b32 v113, v113, v114, v115",f"v_xor_b32 v114, s{sTAG}, v112","v_or_b32 v113, v113, v114","v_cmp_lt_u32 vcc, 15, v113"],"h2")
    pk,ps=pp_pack()
    dmas=paced((qld[:2] if C['qat']==1 else [])+extras(1),3); fill=[]
    for kind,at,ops in PL().get('CV',[]):
        it=wops(ops)
        if kind=='d': dmas+=[('AT',at)]+paced(it,C['cgap'])
        else:
            k=[i for i,x in enumerate(it) if isinstance(x,I) and x.op=='s_barrier']
            if k: it=[it[:k[0]+1]]+it[k[0]+1:]
            fill+=[('AT',at)]+it
    dmas+=[('AT',C['hmid'])]+paced(extras(6),3)
    w0,e0=conv_epi(0)
    gl,a.gcA=y_check(a,0)
    crit=[('AT',n1+2),('DENS',C['cdens'])]+w0+[('GAP',3),[('WLG','cx0'),mk("s_barrier")]]+e0[:-1]+([] if C['clr']==4 else [('AFTER','hl')])+e0[-1:]+[('DENS',0),('SYNC','y0'),('AFTER','hl',C['chc'])]+hc \
        +[[('WLG','cy0'),mk("s_barrier")],('AFTER','y0',C['cack']),('WVM','yt0')]+gl+[('SYNC','g0')]
    ann=[('AT',C['cann']),('WVM','clr')]+M(f"buffer_store_dword v{vTAG}, v{vOne}, {srd(WS)}, s{sHF} offen sc1") if C['clr']==4 else []
    third=ann+[('AT',C['chl'])]+hl+[('SYNC','hl'),('AFTER','g0'),('AFTER','dd')]+paced((qld[:2] if C['qat']==2 else [])+extras(2),2)
    a.weave(bb,crit,dmas+[('SYNC','dd')],fill,third,slots=C['cslots'],name='CV')
    a.stamp("conv mfma done","f")
    w1,e1=conv_epi(1)
    Wp(a,'CE')
    a.flat(w1); a("s_waitcnt lgkmcnt(0)\ns_barrier"); a.flat(e1)
    if CFG.get('trace')=='CV': a("v_mov_b32 v139, v140")
    a.stamp("yT stored","f")
    Wp(a,'Y0')
    a.flat(x0_state(0))
    a.flat(a.gcA)
    a.stamp("yA gathered","f")
    y_stage(a,0,wops(PL().get('SA',"")))
    Wp(a,'ST')
    if CFG['slow']: a(f"s_cmp_lg_u32 s{sMODE}, 0\ns_cbranch_scc1 L_slow")

def unpackY(mu,T):
    L=[]
    for i in range(4): L+=M(f"v_lshlrev_b32 v{T+2*i}, 16, v{vYY[mu]+i}\nv_and_b32 v{T+2*i+1}, 0xffff0000, v{vYY[mu]+i}")
    return L
def treduce(s0,s1,s2,s3,gap=[]):
    return M(f"v_permlane32_swap_b32 v{s0}, v{s2}\nv_permlane32_swap_b32 v{s1}, v{s3}\nv_add_f32 v{s0}, v{s0}, v{s2}\nv_add_f32 v{s1}, v{s1}, v{s3}")+gap+M(f"v_permlane16_swap_b32 v{s0}, v{s1}\nv_add_f32 v{s0}, v{s0}, v{s1}")

SX=[104,106]
def fin1a(mu,S=None):
    X=vXst[mu]; S=SX[mu] if S is None else S
    L=M(f"v_add_f32 v{S}, v{X}, v{X+1}\nv_mul_f32 v{S+1}, v{X}, v{X}")
    for e in range(1,8):
        if e>1: L+=M(f"v_add_f32 v{S}, v{S}, v{X+e}")
        L+=M(f"v_fmac_f32 v{S+1}, v{X+e}, v{X+e}")
    return L
def fin1(a, layer, mu, T, unpacked=False, S=None):
    X=vXst[mu]; L=[] if unpacked else unpackY(mu,T); S=T+8 if S is None else S
    s0=SX[mu] if layer==0 else S
    A=[] if layer==0 else fin1a(mu,S)
    Bq=M(f"v_mul_f32 v{S+2}, v{X}, v{T}\nv_add_f32 v{S+3}, v{T}, v{T+1}")
    for e in range(1,8):
        Bq+=M(f"v_fmac_f32 v{S+2}, v{X+e}, v{T+e}")
        if e>1: Bq+=M(f"v_add_f32 v{S+3}, v{S+3}, v{T+e}")
    while A or Bq:
        if A: L.append(A.pop(0))
        if Bq: L.append(Bq.pop(0))
    L+=treduce(s0,s0+1,S+2,S+3,M(f"s_add_u32 s{sT0}, s{sGR}, {(layer*2+mu)*262144}"))
    L+=M(f"buffer_store_dword v{s0}, v{vGs}, {srd(WS)}, s{sT0} offen{a.sc}")
    return L

def fin2(a, layer, mu, T, Y=None):
    X=vXst[mu]; Gd=T; up=unpackY(mu,T+16) if Y is None else []; Y=T+16 if Y is None else Y
    ld,ck=a.check([f"buffer_load_dwordx4 {V(Gd+4*i)}, v{vGl}, {srd(WS)}, s{sCK2} offen offset:{256*i} sc1" for i in range(4)],
         ([f"v_max3_u32 v{PT}, v{Gd}, v{Gd+1}, v{Gd+2}"]+[f"v_max3_u32 v{PT}, v{PT}, v{Gd+3+2*i}, v{Gd+4+2*i}" for i in range(6)]+[f"v_max_u32 v{PT}, v{PT}, v{Gd+15}"])+[f"v_cmp_eq_u32 vcc, -1, v{PT}"],"gr")
    ld=M(f"s_add_u32 s{sCK2}, s{sGRl}, {(layer*2+mu)*262144}")+ld+up
    L=list(ck)
    for k in range(4): L+=M(f"v_add_f32 v{Gd+k}, v{Gd+k}, v{Gd+4+k}\nv_add_f32 v{Gd+8+k}, v{Gd+8+k}, v{Gd+12+k}")
    for k in (0,2,1,3): L+=M(f"v_add_f32 v{Gd+k}, v{Gd+k}, v{Gd+8+k}")
    L+=treduce(Gd,Gd+1,Gd+2,Gd+3)
    A,B,C,D=Gd,Gd+1,Gd+2,Gd+3
    L+=M(f"v_mov_b32 v{B}, v{A}\nv_permlane16_swap_b32 v{A}, v{B}\nv_mov_b32 v{C}, v{A}\nv_mov_b32 v{D}, v{B}\nv_permlane32_swap_b32 v{A}, v{C}\nv_permlane32_swap_b32 v{B}, v{D}")
    inv="0x3b000000"
    L+=M(f"""v_mul_f32 v{A}, {inv}, v{A}
        v_mul_f32 v{B}, {inv}, v{B}
        v_fma_f32 v{B}, -v{A}, v{A}, v{B}
        v_max_f32 v{B}, 0, v{B}
        v_add_f32 v{B}, 0x3727c5ac, v{B}
        v_rsq_f32 v{B}, v{B}
        v_fma_f32 v{C}, -v{A}, v{D}, v{C}
        v_mul_f32 v{C}, {inv}, v{C}
        v_fma_f32 v{C}, v{B}, v{C}, v{A}
        v_mul_f32 v{A}, v{A}, v{B}""")
    for e in range(8): L+=M(f"v_fma_f32 v{Gd+4+e}, v{X+e}, v{B}, -v{A}")
    for e in range(8): L+=M(f"v_fmac_f32 v{X+e}, v{Gd+4+e}, v{Y+e}")
    for e in range(8): L+=M(f"v_sub_f32 v{Y+e}, v{X+e}, v{C}")
    L+=M(f"s_add_u32 s{sT0}, s{sXS}, {mu*65536}")
    for i in range(4): L+=M(f"v_cvt_pk_bf16_f32 v{Gd+4+i}, v{Y+2*i}, v{Y+2*i+1}")
    L+=M(f"buffer_store_dwordx4 {V(Gd+4)}, v{vL}, {srd(WS)}, s{sT0} offen{a.sc or (' nt' if CFG['ntx']>layer else '')}",f"xs{mu}")
    L+=M(f"v_mul_f32 v{A}, v{Y}, v{Y}")
    for e in range(1,8): L+=M(f"v_fmac_f32 v{A}, v{Y+e}, v{Y+e}")
    L+=M(f"""v_mov_b32 v{B}, v{A}
        s_nop 0
        s_add_u32 s{sT1}, s{sS5}, {(layer*2+mu)*65536}
        v_permlane32_swap_b32 v{A}, v{B}
        v_add_f32 v{A}, v{A}, v{B}
        v_mov_b32 v{B}, v{A}
        v_permlane16_swap_b32 v{A}, v{B}
        v_add_f32 v{A}, v{A}, v{B}""")
    L+=M(f"buffer_store_dword v{A}, v{vS5s}, {srd(WS)}, s{sT1} offen{a.sc}")
    tail=M(f"s_add_u32 s22, s{sFLH}, {XF(layer,mu)}")+[('WVM',f"xs{mu}")]+M(f"buffer_store_dword v{vTAG}, v{vOne}, {srd(WS)}, s22 offen{a.sc}")
    return ld,L,tail

def flag_check(a, off, vaddr, name):
    ld,ck=a.check([f"buffer_load_dword v{PT+1}, v{vaddr}, {srd(WS)}, s{sCK1} offen sc1"],[f"v_cmp_ne_u32 vcc, s{sTAG}, v{PT+1}"],name)
    return M(f"s_lshl_b32 s{sCK1}, s{sFL}, 1\ns_add_u32 s{sCK1}, s{sCK1}, {off}")+ld, ck
XF=lambda layer,mu: OFF_XFLAG+layer*16384+mu*256
HF=lambda layer,k: OFF_HFLAG+layer*16384+k*256

def x_dma(mu, pair, stage, q):
    L=M(f"s_add_u32 m0, s{sXW}, {q+stage*8192}\ns_mov_b32 s{sSOFF}, {mu*65536+pair*32768+stage*8192}")
    for i in range(4): L+=M(f"buffer_load_dwordx4 v{vXD}, {srd(WS)}, s{sSOFF} offen offset:{1024*i} sc1 lds",f"x{mu}{pair}{stage}")
    return LW(L,(q+stage*8192,q+stage*8192+8192),(q+16384+stage*8192,q+16384+stage*8192+8192))
vAS1,vAS2,vAD=136,138,135
def alias_setup():
    return M(f"""s_mul_i32 s{sT0}, s{sG}, {65536-8*HKS*1024}
        s_add_u32 s{sT0}, s{sT0}, {OFF_YT-OFF_H}
        v_and_b32 v{vAS1}, 1, v{vQ}
        v_mul_u32_u24 v{vAS1}, {0x100000-HKS*1024}, v{vAS1}
        s_mul_i32 s{sT1}, s{sRH}, {0x100000-HKS*1024}
        v_add_u32 v{vAS1}, s{sT0}, v{vAS1}
        s_add_u32 s{sT0}, s{sT0}, s{sT1}
        v_add_u32 v{vAS2}, v{vHS2}, v{vAS1}
        v_add_u32 v{vAS1}, v{vHS1}, v{vAS1}
        v_add_u32 v{vAD}, s{sT0}, v{vHD}""")
AL=lambda mu,t: CFG['alias'] and (mu,t)==(1,1)
def h_dma(mu, t, grp, q):
    n=4 if grp<2 else 3
    L=M(f"s_add_u32 m0, s{sM4 if grp<2 else sM3}, {q+t*8192}\ns_add_u32 s{sSOFF}, s{sC4 if grp<2 else sC3}, {(0 if AL(mu,t) else (mu*4+2*t)*HKS*1024)+grp*8192}")
    for i in range(n): L+=M(f"buffer_load_dwordx4 v{vAD if AL(mu,t) else vHD}, {srd(WS)}, s{sSOFF} offen offset:{1024*i} sc1 lds",f"h{mu}{t}{grp}")
    return LW(L,*[(q+(2*k+t)*8192,q+(2*k+t)*8192+2*n*1024) for k in range(2)])
def h_touch(ks,base=204):
    L=[]
    for k in ks:
        L+=M(f"s_mov_b32 s{sT2}, {2*k*HKS*1024}\nbuffer_load_dword v{base+2*k}, v{vHS1}, {srd(WS)}, s{sT2} offen sc1\nbuffer_load_dword v{base+1+2*k}, v{vHS2}, {srd(WS)}, s{sT2} offen sc1","tch")
    return L
SC1K=lambda: {0:[],2:[0,1,2]+([] if CFG['alias'] else [3]),8:[0,1],3:[],4:[0,1],5:[0,1,2],6:[0,1],7:[0]}[CFG['touch']]
TCHK=lambda: {0:[],2:[],8:[],3:[0,1,2,3],4:[2,3],5:[],6:[],7:[]}[CFG['touch']]
TINK=lambda: {8:[2],5:[3],6:[2,3],7:[1,2,3]}.get(CFG['touch'],[])

_uid=[0]
RING6=[FR+4*k for k in range(6)]; RING8=RING6+[ACC0+16,ACC0+20]
def g1_steps(buf, q, bar=None):
    A=(ACC0,ACC1)[buf]; bar=bar or {}; qo=q&65535; out=[]
    for s in range(16):
        pre=(M(f"v_add_u32 v{vA0}, {q&~65535}, v{vL}") if s==0 else [])+bar.get(s,[])
        rd=[lambda F,tok,s=s,t=t: LR(mk(f"ds_read_b128 {V(F)}, v{vA0} offset:{qo+t*16384+s*1024}",tok),(q+t*16384+s*1024,q+t*16384+s*1024+1024)) for t in range(2)]
        mf=lambda F,s=s: [mk(f"v_mfma_f32_16x16x32_bf16 {V(A+12*t+4*w)}, {W1(s,w)}, {V(F[t])}, {'0' if s==0 else V(A+12*t+4*w)}") for t,w in ([(t,w) for t in range(2) for w in range(3)],[(t,w) for w in range(3) for t in range(2)],[(0,0),(0,1),(0,2),(1,2),(1,1),(1,0)],[(0,0),(1,0),(1,1),(0,1),(0,2),(1,2)])[CFG['o1']]]
        out.append((pre,rd,mf,RING6))
    return out
def g2_steps(qs, bar=None):
    bar=bar or {}; out=[]
    def setq(q): return M(f"s_add_u32 s{sQ}, s{sHK}, {q&~65535}\nv_add_u32 v{vA0}, s{sQ}, v{vL}\ns_add_u32 s{sQ}, s{sHS}, {q&~65535}\nv_add_u32 v{vA1}, s{sQ}, v{vL}")
    for i in range(22):
        q=qs[i>>3]; pre=bar.get(i,[])
        if i%8==0 and (i==0 or (q&~65535)!=(qs[(i>>3)-1]&~65535)): pre=setq(q)+pre
        rd=[lambda F,tok,i=i,q=q,t=t: LR(mk(f"ds_read_b128 {V(F)}, v{(vA0,vA1)[t]} offset:{(q&65535)+(i&7)*1024}",tok),*[(q+w*8192+(i&7)*1024,q+w*8192+(i&7)*1024+1024) for w in range(4)]) for t in (1,0)]
        mf=lambda F,i=i: [mk(f"v_mfma_f32_16x16x32_bf16 {V(ACC0+8*t+4*c)}, {W2(i,c)}, {V(F[1-t])}, {'0' if i==0 else V(ACC0+8*t+4*c)}") for t,c in ([(1,0),(1,1),(0,0),(0,1)],[(1,0),(0,0),(1,1),(0,1)],[(1,0),(1,1),(0,1),(0,0)])[CFG['o2']]]
        out.append((pre,rd,mf,RING8))
    return out
def g2_pass(qs, t, bar=None):
    bar=bar or {}; out=[]
    for i in range(22):
        q=qs[i>>3]; pre=bar.get(i,[])
        if i%8==0 and (i==0 or (q&~65535)!=(qs[(i>>3)-1]&~65535)):
            pre=M(f"s_lshl_b32 s{sQ}, s{sKH}, 14\ns_add_u32 s{sQ}, s{sQ}, {(q&~65535)+t*8192}\nv_add_u32 v{vA0}, s{sQ}, v{vL}")+pre
        rd=[lambda F,tok,i=i,q=q: LR(mk(f"ds_read_b128 {V(F)}, v{vA0} offset:{(q&65535)+(i&7)*1024}",tok),*[(q+(2*k+t)*8192+(i&7)*1024,q+(2*k+t)*8192+(i&7)*1024+1024) for k in range(2)])]
        mf=lambda F,i=i: [mk(f"v_mfma_f32_16x16x32_bf16 {V(ACC1+8*t+4*c)}, {W2(i,c)}, {V(F[0])}, {'0' if i==0 else V(ACC1+8*t+4*c)}") for c in range(2)]
        out.append((pre,rd,mf,RING8))
    return out
def backbone(steps, marks=None):
    marks=marks or {}; LA=CFG['la']
    start=[]; n=0
    for st in steps: start.append(n); n+=len(st[2]([FR]*2))
    start.append(n)
    last={}; F=[]; place={}; pos=-1; toks=[]
    for k,(pre,rd,mf,ring) in enumerate(steps):
        _uid[0]+=1; tok=f"f{_uid[0]}"; toks.append(tok); fs=[]
        for j,r in enumerate(rd):
            u=min([x for x in ring if x not in fs],key=lambda x:last.get(x,-99+ring.index(x)*0.01)); fs.append(u)
            p=max(start[k]-LA+j, last.get(u,-99), pos+1 if pos>=0 else -1)
            p=min(p,start[k]-1) if start[k]>0 else -1
            if p<0: p=-1
            place.setdefault(p,[]).extend((pre if j==0 else [])+[r(u,tok)]); pos=max(pos,p)
        for u in fs: last[u]=start[k+1]-1
        F.append(fs)
    L=list(place.get(-1,[]))+[('WLG',toks[0])]; n=0
    for k,(pre,rd,mf,ring) in enumerate(steps):
        ms=mf(F[k])
        for j,m in enumerate(ms):
            L.append(m); L+=place.get(n,[])
            if j==len(ms)-1 and k+1<len(steps): L.append(('WLG',toks[k+1]))
            n+=1
        L+=marks.get(k,[])
    return L

def g1_epi(a, buf, mu, pair, sc):
    A=(ACC0,ACC1)[buf]; E=EP; L=[]
    n=E; mreg=E+4
    M0=A+8; M1=A+20
    for t in range(2):
        Gt=A+12*t; Ut=Gt+4
        for r in range(4): L+=M(f"v_max_f32 v{Gt+r}, 0, v{Gt+r}")
        for r in range(4): L+=M(f"v_mul_f32 v{Gt+r}, v{Gt+r}, v{Ut+r}")
        L+=M(f"v_cvt_pk_bf16_f32 v{n+2*t}, v{Gt}, v{Gt+1}\nv_cvt_pk_bf16_f32 v{n+2*t+1}, v{Gt+2}, v{Gt+3}")
    for r in range(4): L+=M(f"v_permlane16_swap_b32 v{M0+r}, v{M1+r}")
    L+=M(f"v_permlane16_swap_b32 v{n}, v{n+2}\nv_permlane16_swap_b32 v{n+1}, v{n+3}\ns_mov_b32 s{sT1}, {0 if AL(mu,pair) else (mu*4+2*pair)*HKS*1024}")
    L+=M(f"buffer_store_dwordx4 {V(n)}, v{vAS1 if AL(mu,pair) else vHS1}, {srd(WS)}, s{sT1} offen{sc}",f"hs{mu}{pair}")
    for r in range(4): L+=M(f"v_max_f32 v{M0+r}, 0, v{M0+r}")
    for r in range(4): L+=M(f"v_mul_f32 v{M0+r}, v{M0+r}, v{M1+r}")
    L+=M(f"v_cvt_pk_bf16_f32 v{mreg}, v{M0}, v{M0+1}\nv_cvt_pk_bf16_f32 v{mreg+1}, v{M0+2}, v{M0+3}")
    L+=M(f"v_mov_b32 v{E+6}, v{E+4}\nv_mov_b32 v{E+7}, v{E+5}\ns_nop 0\nv_permlane32_swap_b32 v{E+4}, v{E+6}\nv_permlane32_swap_b32 v{E+5}, v{E+7}")
    L+=M(f"buffer_store_dwordx4 {V(E+4)}, v{vAS2 if AL(mu,pair) else vHS2}, {srd(WS)}, s{sT1} offen{sc}",f"hs{mu}{pair}")
    return L
def h_flag(a, layer, k):
    return M(f"s_add_u32 s22, s{sFLH}, {HF(layer,k)}")+[('WVM',f"hs{k>>1}{k&1}")]+M(f"buffer_store_dword v{vTAG}, v{vOne}, {srd(WS)}, s22 offen{a.sc}")

def s5_get(a, layer, mu):
    T=140
    ld,ck=a.check([f"buffer_load_dwordx4 {V(T)}, v{vS5l}, {srd(WS)}, s{sCK3} offen sc1"],
         [f"v_max3_u32 v{PT+2}, v{T}, v{T+1}, v{T+2}",f"v_max_u32 v{PT+2}, v{PT+2}, v{T+3}",f"v_cmp_eq_u32 vcc, -1, v{PT+2}"],"s5")
    ld=M(f"s_add_u32 s{sCK3}, s{sS5l}, {(layer*2+mu)*65536}")+ld
    L=list(ck)+M(f"""v_add_f32 v{T}, v{T}, v{T+1}
        v_add_f32 v{T+2}, v{T+2}, v{T+3}
        v_add_f32 v{T}, v{T}, v{T+2}
        v_mov_b32 v{T+1}, v{T}
        s_nop 0
        v_permlane32_swap_b32 v{T}, v{T+1}
        v_add_f32 v{T}, v{T}, v{T+1}
        v_mov_b32 v{T+1}, v{T}
        s_nop 0
        v_permlane16_swap_b32 v{T}, v{T+1}
        v_add_f32 v{T}, v{T}, v{T+1}
        v_mul_f32 v{T}, 0x3b000000, v{T}
        v_add_f32 v{T}, 0x3727c5ac, v{T}
        v_rcp_f32 v{vR2}, v{T}""")
    return ld,L
def ex_addr(qspare):
    return M(f"s_add_u32 s{sT0}, s{sHW}, {qspare+6144}\nv_add_u32 v{EP}, s{sT0}, v{vL}\ns_xor_b32 s{sT0}, s{sHW}, 16384\ns_add_u32 s{sT0}, s{sT0}, {qspare+6144}\nv_add_u32 v{EP+1}, s{sT0}, v{vL}")
def g2_tail(mu, qsp, keep, send):
    X=vXst[mu]; R=[(qsp+w*8192+6144,qsp+w*8192+8192) for w in range(4)]
    pre=LW(M(f"ds_write_b128 v{EP}, {V(send)}\nds_write_b128 v{EP}, {V(send+4)} offset:1024",f"ew{mu}"),*R)
    pre+=[mk(f"v_fmac_f32 v{X+e}, v{vR2}, v{keep+e}") for e in range(8)]
    post=LR(M(f"ds_read_b128 {V(send)}, v{EP+1}\nds_read_b128 {V(send+4)}, v{EP+1} offset:1024","ex"),*R)
    post+=[mk(f"v_fmac_f32 v{X+e}, v{vR2}, v{send+e}") for e in range(8)]
    return pre,post
def out_store(a, mu, T):
    X=vXst[mu]
    L=[mk(f"v_cvt_pk_bf16_f32 v{T+i}, v{X+2*i}, v{X+2*i+1}") for i in range(4)]
    return L+M(f"buffer_store_dwordx4 {V(T)}, v{vTok}, {srd(SO_)}, {'0' if mu==0 else 's%d'%sMB} offen{('',' sc1',' nt')[CFG['outsc']]}")

def wbl2(a):
    Lw=a.label("wb"); w=mk("buffer_wbl2 sc1"); w.ghost=1
    return [M(f"s_or_b32 s{sT2}, s{sR}, s{sWV}\ns_cmp_lg_u32 s{sT2}, {CFG['wbid']}\ns_cbranch_scc1 {Lw}")+[w,mk(Lw+":")]]
def finish_kernel(a):
    a(f"s_or_b32 s{sT0}, s2, s{sWV}\ns_cmp_eq_u32 s{sT0}, 0\ns_cselect_b32 s{sT0}, {OFF_NONCE}, {OOB}")
    a(f"buffer_store_dword v{vTAG}, v{vOne}, {srd(WS)}, s{sT0} offen sc1")
    if CFG['stamps'] and a.tag!='S':
        a.stamp("end","*")
        if CFG.get('amp') is not None:
            j=CFG['amp']
            a(f"s_sub_u32 s96, s{STAMP0+j}, s{STAMP0}\ns_mul_i32 s96, s96, {CFG.get('ampk',4)}\ns_add_u32 s96, s96, s{STAMP0+len(stamp_names)-1}")
            a("L_amp:\ns_memrealtime s[100:101]\ns_waitcnt lgkmcnt(0)\ns_sub_u32 s97, s100, s96\ns_cmp_lt_i32 s97, 0\ns_cbranch_scc1 L_amp")
        a("s_memtime s[100:101]\ns_waitcnt lgkmcnt(0)\ns_sub_u32 s99, s100, s99")
        a(f"s_lshl_b32 s{sT0}, s2, 2\ns_add_u32 s{sT0}, s{sT0}, s{sWV}\ns_lshl_b32 s{sT0}, s{sT0}, 8\ns_add_u32 s{sT0}, s{sT0}, {OFF_STAMP}")
        for i in range(len(stamp_names)):
            a(f"v_mov_b32 v40, s{STAMP0+i}")
            a(f"buffer_store_dword v40, v{vOne}, {srd(WS)}, s{sT0} offen offset:{4*i}")
        if CFG.get('trace'): a(f"s_add_u32 s{sT1}, s{sT0}, 0x100000\nbuffer_store_dword v139, v{vFX}, {srd(WS)}, s{sT1} offen")
        a(f"v_mov_b32 v40, s98\nbuffer_store_dword v40, v{vOne}, {srd(WS)}, s{sT0} offen offset:248")
        a(f"v_mov_b32 v40, s99\nbuffer_store_dword v40, v{vOne}, {srd(WS)}, s{sT0} offen offset:252")
    a("s_endpgm")

WV=lambda t:('WVM',t)
WL=lambda t:('WLG',t)
AT=lambda n:('AT',n)

def vm_par(layer):
    C=CFG
    def f(x):
        t=x.tok or ''
        if x.dma:
            if t[0]=='c': return (C['mW'],150,11)
            if t[0]=='h' and layer==0 and 2*int(t[1])+int(t[2]) in SC1K(): return (C['mM'],C['mMs'],8)
            return (C['mL'],C['mLs'],8)
        if t=='tch': return (C['mH'],20,8)
        if t.startswith('w2_'): return (C['mM'],C['mW2'],8)
        if not x.load:
            if x.op.endswith('x4'): return (C['mS1'] if 'sc1' in x.text else C['mS'],70,8)
            return (C['mS1'] if 'sc1' in x.text else 400,10,1)
        if t.endswith(tuple('0123456789')) and '_ppr' in t: return (700,20,22)
        return (C['mL'],25,8) if x.op.endswith('x4') else (C['mL'],10,2)
    return f
def feed(vm,items,t):
    for x in items:
        for y in (x if isinstance(x,list) else [x]):
            if isinstance(y,tuple):
                if y[0]=='WVM': t=max(t,vm.done.get(y[1],t))
            elif y.kind=='vmem': t=vm.issue(y,t)+4
            elif y.kind!='none': t+=4.5
    return t

def body(a):
    P=paced; BY=lambda n:('BY',n); SY=lambda n:('SYNC',n); AF=lambda n,g=0:('AFTER',n,g); GP=lambda n:('GAP',n)
    B=lambda *w:[list(w)+[mk("s_barrier")]]
    C=CFG
    nxs=lambda r,mu: [i for i,x in enumerate(r) if isinstance(x,I) and x.tok==f"xs{mu}"][0]+1
    qs=list(Q)
    a.flat(fin1(a,0,0,ACC0))
    a.stamp("fin1 A","f")
    lA,rA,tA=fin2(a,0,0,ACC0); lB,rB,tB=fin2(a,0,1,232)
    glB,gcB=y_check(a,1)
    pk,ps=pp_pack()
    a.flat(extras(3)); Wp(a,'YS')
    if C['pkat']==2: a.flat(pk); a.flat(ps)
    a.flat(x0_state(1))
    a.waitvm("yt1")
    Wp(a,'F1')
    a.flat(lA); a.flat(glB); a.flat(extras(4)); Wp(a,'F2')
    if C['pkat']==0: a.flat(pk); a.flat(ps)
    a.stamp("yB acked","f")
    a.flat(rA[:10]); Wp(a,'FA'); a.flat(rA[10:]); Wp(a,'FX')
    a.stamp("fin2 A","f")
    a.flat(gcB)
    y_stage(a,1,wops(PL().get('SB',"")))
    a.flat(tA)
    ppf=M(f"buffer_store_dword v{vTAG}, v{vOne}, {srd(WS)}, s{sPF} offen sc1")
    if C['pkat']==1: a.flat(pk); a.flat(ps)
    else: a.waitvm("pps"); a.flat(ppf); ppf=[]
    Wp(a,'FB')
    a.flat(fin1(a,0,1,ACC1))
    a.stamp("fin1 B","f")
    W2Q[:]=w2_loads()
    a(f"s_mul_i32 s{sT0}, s{sCT2}, 43\ns_mul_i32 s{sT1}, s{sKH}, 21\ns_add_u32 s{sT0}, s{sT0}, s{sT1}\ns_lshl_b32 s{sT0}, s{sT0}, 7\ns_add_u32 s{sCK3}, s{sT0}, {OFF_P2F}")
    a(f"v_min_u32 v{PT+3}, 21, v{vLane}\nv_lshlrev_b32 v{PT+3}, 7, v{PT+3}")
    pl_,pc_=a.check([f"buffer_load_dword v{PT+2}, v{PT+3}, {srd(WS)}, s{sCK3} offen sc1"],[f"v_cmp_ne_u32 vcc, s{sTAG}, v{PT+2}"],"pp")
    xl,xc=flag_check(a,XF(0,0),vFX,"xf")
    early='p' in PL().get('XD','')
    Wp(a,'XW'); a.flat(xl)
    if early: a.flat(pl_)
    a.flat(xc)
    if early: a.flat(pc_); pl_=[]; pc_=[]
    a("s_waitcnt lgkmcnt(0)\ns_barrier")
    lead=lB+x_dma(0,0,0,qs[0])+x_dma(0,0,1,qs[0])+(alias_setup() if C['alias'] else [])+rB[:nxs(rB,1)]+wops(PL().get('XD',""))
    a.flat(lead)
    A1,B0,B1,GA,GB,GC=96,192,288,384,472,516
    for layer in range(2):
        g="ab"[layer]
        xa0,xa1,xb0,xb1,e=qs
        hs = lambda k: ' sc1' if (layer==0 and k in SC1K()) else (a.sc or (' nt' if (C['nth'] and layer==1) else ''))
        L0 = layer==0
        a.stamp(f"L{layer} start",g+'m')
        hq=[(xa0,xa1,e),(xb0,xb1,xa0)]
        X=lambda mu,p,q: x_dma(mu,p,0,q)+x_dma(mu,p,1,q)
        H=lambda mu,t,grp: h_dma(mu,t,grp,hq[mu][grp])
        xl,xc=flag_check(a,XF(layer,1),vFX,"xf")
        s7=[]
        def HC(k,after=None,gap=None):
            l,c=flag_check(a,HF(layer,k),vFH,"hf")
            s7.extend([AF('xc'),AF(f"f{k}",after or (C['hca0'] if L0 else C['hca']))]+l+[SY(f"l{k}")]+c+[SY(f"c{k}")])
            return [AF(f"c{k}")]
        sl,sr=s5_get(a,layer,0)
        def SB(n,*w):
            if layer==0: return BAR(*w)
            return a.st(n+" pre","c")+list(w)+a.st(n+" waited","c")+[mk("s_barrier")]+a.st(n+" post","c")
        steps = g1_steps(0,xa0,{0:BAR(WV("x000")),8:BAR(WV("x001"))}) + g1_steps(1,xa1,{0:BAR(WV("x011"))}) \
              + g1_steps(0,xb0,{0:BAR(WV("x101"))}) + g1_steps(1,xb1,{0:BAR(WV("x111"))}) \
              + g2_steps(hq[0],{**({i:[WV(f"w2_{i}")] for i in range(22)} if L0 else {}),0:BAR(WV("h010"),WV("h000"),WV("w2_0")),8:BAR(WV("h011"),WV("h001"),WV("w2_8")),16:BAR(WV("h012"),WV("h002"),WV("w2_16"))}) \
              + g2_pass(hq[1],0,{0:BAR(WV("h101"),WV("h100")),16:BAR(WV("h102"))}) + g2_pass(hq[1],1,{0:BAR(WV("h110")),8:BAR(WV("h111")),16:BAR(WV("h112"))})
        marks={15:a.st(f"L{layer} A0",g),31:a.st(f"L{layer} A1",g),47:a.st(f"L{layer} B0",g),63:a.st(f"L{layer} B1",g),85:a.st(f"L{layer} GA",g)}
        bb=backbone(steps,marks)
        def epi(k):
            E=g1_epi(a,k&1,k>>1,k&1,hs(k))
            if k>0 and L0 and C['hold']:
                n=[i for i,x in enumerate(E) if x.kind=='vmem'][0]; E=E[:n]+[AF(f"l{k-1}")]+E[n:]
            if k<3: return [AT(96*(k+1)+2),('DENS',C['dens0'] if L0 else C['dens1'])]+E+[('DENS',0),SY(f"e{k}"),BY(96*(k+2) if k<2 else GA-30)]
            return [AT(GA+1),('DENS',C['dens'])]+E+[('DENS',0),SY("e3")]+sr
        s3=[]
        for k in range(4): s3+=[AF(f"e{k}")]+h_flag(a,layer,k)+[SY(f"f{k}")]
        YT=ACC1+16
        nq=[xa1,e,xb0,xb1,xa0]
        slB,srB=s5_get(a,layer,1)
        preA,postA=g2_tail(0,e,ACC0,ACC0+8)
        tailA=ex_addr(e)+(unpackY(0,YT) if L0 else [])+slB+[BY(GB),AT(GB+1),('DENS',C['densa'] if L0 else 2)]+preA+[GP(C['exg'])]+B(WL("ew0"))+postA[:2]+[GP(C['exg2'])]+postA[2:]
        if L0:
            lA,rA,tA=fin2(a,1,0,ACC0,YT)
            xlA,xcA=flag_check(a,XF(1,0),vFX,"xf")
            tailA+=fin1(a,1,0,YT,True,ACC0)+[('DENS',0)]+srB+ex_addr(xa0)+[('GAPV',C['gbl'])]+lA+[('DENS',C['dens2'])]+rA[:nxs(rA,0)]+[('DENS',0),SY('r')]+rA[nxs(rA,0):]+unpackY(1,YT)
        else:
            tailA+=out_store(a,0,YT)+[('DENS',0)]+srB+ex_addr(xa0)+([AT(GC+C['wbat'])]+wbl2(a) if C['wbl2'] else [])
        g1=C['g1']
        K=lambda it,c=None,cap=64: bk(it,C['bk'] if c is None else c,cap)
        sA = HC(0)+K(H(0,0,0))+[BY(GA-44),AT(B0-10)]+K(H(0,0,1))+[BY(GA-40)]+K(H(0,0,2))+[BY(GA-38)]
        sB = HC(1)+K(H(0,1,0))+[BY(GA-36)]+K(H(0,1,1))+[BY(GA-4)]+K(H(0,1,2))+[BY(GA+28)]
        sC = HC(2)+K(H(1,0,0))+[BY(GB-34),AT(GA-10)]+K(H(1,0,1))+[BY(GB-30)]
        sD = [AT(GA+54)]+K(H(1,0,2))+[BY(GB)]+HC(3,C['gahl'])+K(H(1,1,0))+[BY(GC-22)]+K(H(1,1,1))+[BY(GC-6)]+K(H(1,1,2))+[BY(GC+10)]
        if L0:
            pl=PL(); pend=pl.get('PEND',[]); rest=pl.get('REST',[])
            s1=[];s2=[]
            for k in rest: s1+=K(wops(f"i{k}"),400)
            rest=[int(str(k).split('@')[0]) for k in rest]
            s1+=[SY('irest')]+K(X(0,1,xa1))+[BY(A1-30)]
            for k in pend: s2+=wops(f"r{k}")+[BY(max(12*k-4,30))]
            last=pend[-1] if pend else None
            if rest:
                s2+=[AF('irest')]+B(WV(f"c{rest[-1]}"))
                for k in rest: s2+=wops(f"r{k}")+[BY(12*k-4)]
                last=rest[-1]
            if last is not None: s2+=[GP(4)]+B(WL(f"cr{last}"))
            s2+=[SY('fr'),AT(C['tin'])]+h_touch(TINK(),127)
            s4=([WV('pps')]+ppf+[GP(40)] if ppf else [])+[AT(C['w2at'])]+pl_+pc_+[AF(C['w2af'])]
            i=(2*CFG.get('w2n',22)-sum(1 for x in W2Q if x.kind=='vmem'))//2
            while W2Q:
                if i==10: s4+=[AF('fB')]
                s4+=K(w2_take(2),C['bkw'],C['capw'])+[BY(GA+4*i-C['w2lead'])]; i+=1
        else:
            s1=[SY('irest'),AF('lB')]+K(X(0,1,xa1))+[BY(A1-30)]; s2=[SY('fr')]; s4=[]
        if L0: s5=[SY('rB')]+rB[nxs(rB,1):]+[SY('fB')]
        else: s5=[AT(C['a0l'])]+lB+[SY('lB'),('DENS',C['densb'])]+rB[:nxs(rB,1)]+[('DENS',0),SY('rB')]+rB[nxs(rB,1):]+[BY(A1)]
        s3=[AF('rB')]+tB+[SY('tB')]+s3
        s1+=[AF('tB',C['a1xl0'] if L0 else C['a1xl'])]+xl+[SY('xl')]+xc+[SY('xc'),AF('fr')]+K(X(1,0,xb0))+[BY(B0-30)]+K(X(1,1,xb1))+[BY(B1-30)]
        s1+=sA+sB+sC+sD
        s6 = ([] if L0 else [AF('xl')])+epi(0)+epi(1)+epi(2)+sl+epi(3)+[BY(GB-12)]+tailA
        vm=VMM(vm_par(layer)); t0=feed(vm,lead,0)
        out,rest=weave(bb,[s3,s7,s1,s4,s2,s5,s6],vm=vm,t0=t0,log=f"L{layer}"+('!' if C.get('v')==2 else '') if (C.get('v') and a.tag=='F') else None)
        a.ext(a.trace(out,CFG.get('tev_',10),f'G{layer}')); a.ext(rest)
        if C.get('v'): print("  leftover after G2(B):",len(rest))
        a.stamp(f"L{layer} GB",g)
        Ls=a.label("sw")
        a(f"s_nop 7\ns_cmp_eq_u32 s{sKH}, 0\ns_cbranch_scc1 {Ls}")
        for k in range(8): a(f"v_swap_b32 v{ACC1+k}, v{ACC1+8+k}")
        a.lab(Ls)
        preB,postB=g2_tail(1,xa0,ACC1,ACC1+8)
        a.flat(preB)
        if L0: a.flat(tA)
        a("s_waitcnt lgkmcnt(0)\ns_barrier")
        a.flat(postB)
        if L0:
            a.flat(fin1(a,1,1,YT,True,ACC1))
            lB,rB,tB=fin2(a,1,1,ACC1,YT)
            a.flat(xlA); a.flat(xcA); lead=X(0,0,nq[0]); a.ext(lead)
        else:
            a.flat(out_store(a,1,YT))
        a.stamp(f"L{layer} tailB",g)
        qs=nq
    finish_kernel(a)

def main():
    a=G('F','')
    entry(a); p0(a); conv(a)
    nfront=len(a.L)
    b=G('S',' sc1'); b.nlab=0
    front=list(a.L)
    body(a)
    rep=[]
    items=finish(a.L,rep)
    print("LDS ordering problems:",lds_check(items))
    for o in a.ool: items+=finish(o)
    items.append(mk("L_fast_end:"))
    if CFG['slow']:
        b.L=front+[mk("L_slow:")]; body(b)
        full=finish(b.L)
        k=[i for i,x in enumerate(full) if x.text=="L_slow:"][0]
        items+=full[k:k+1]+[mk("s_nop 4")]+full[k+1:]
        for o in b.ool: items+=finish(o)
    items.append(mk("L_end:")); items.append(mk("s_endpgm"))
    hdr=open(os.path.join(os.path.dirname(os.path.abspath(__file__)),"header.txt")).read()
    src=kernel_file(NAME,text(items),"; @launch grid=(256,1,1) block=(256,1,1) lds=163840",header=hdr)
    open(sys.argv[1],"w").write(src)
    open("stamp_names.txt","w").write("\n".join(stamp_names)); open("trace_names.txt","w").write("\n".join(trace_names)); open("site_names.txt","w").write(" ".join(site_names))
    n=sum(1 for i in items if i.kind!='none')
    print(f"{n} instructions, {len(src)} bytes of text, {sum(x for x,_ in rep)} nop states padded in fast path")
    if CFG.get('v'):
        for x in rep: print("   pad",x)
main()
```

```python
import sys, os
from asmlib import *
from layout import *

NAME="interleave_layers__ssm_conv_h3__glu_gated_reglu__prompt_kernel"
CFG=dict(alias=1, o1=0, o2=0, swz=1, z14=1, tpre=1, dot2=1, a1xl0=30, tin=100, mH=1300, hold=0, hca0=24, dens0=8, mW2=62, hat=2, hmid=100, bk=60, bkw=60, capw=64, mL=350, mLs=80, mM=600, mMs=95, mW=850, mS=600, mS1=950, ssmat=0, nth=1, ntx=2, wbat=24, wbid=0, ppat=1, tat=1, pkat=2, fbpre=1, cg0=30, gbt0=28, xg0=16, w2af='irest', densb=4, qat=1, gbs5=8, la=12, clr=1, utouch=0, f1max=2048, cann=56, plan=18, chl=70, cla=9, cdens=3, cslots=2, chc=20, cack=56, rot=1, cm2=70, cm3=120, a0l=1, a0c=24, a1xl=18, dens=5, fl=30, fl0=52, hca=18, hcg=22, g1=4, g2=5, g3=4, dens1=2, gahl=16, gahc=14, hbgap=4, tev=6, tev2=5, dens2=8, densa=5, exg=2, exg2=4, gbl=16, gbc=14, gbt=28, gbxl=20, b0hl=80, w2at=1, w2gap=5, w2lead=40, rrest=56, cgap=5, warm=1, stamps=0, stop=None, slow=1, prefetch=1, touch=2, dgather=1, dstage=1, wbl2=0, outsc=2)
for a_ in sys.argv[2:]:
    k,v=a_.split('='); CFG[k]=int(v) if v.lstrip('-').isdigit() else v

sX,sR,sWV,sG,sM,sRH,sCT2,sKH,sCHH,sTAG,sHELLO=4,5,6,7,8,9,10,11,12,13,14
sT0,sT1,sT2,sT3=3,15,60,61
sCNT=62; sSOFF=63
WS,SK_,SV_,SQ_,SH_,SWG,SWU,SWD,SO_,SSK,SD_=16,20,24,28,32,36,40,44,48,52,56
srd=lambda b:f"s[{b}:{b+3}]"
sXW,sHW,sHK,sHS,sXS,sFL,sGR,sS5,sGRl,sS5l=64,65,66,67,68,69,70,71,72,73
sW1W,sWo,sHF,sW2B=74,75,76,77
sPS,sPD,sPF,sW20=56,57,58,59
sCK1,sCK2,sCK3,sQ=20,21,24,25
sCH,sUO,sMB=26,27,0
sMODE=34; sFLH=23; sC4,sC3,sM4,sM3=52,53,54,55
sFLG=1
STAMP0=78
Q=[0,32768,65536,98304,131072]
TCP=4160; TCH=4*TCP; L_TOEP=0
L_U=2*TCH; UCH=4608
L_K=L_U+2*UCH; CHP=1056; L_V=L_K+9*CHP
L_CX=L_K
L_YS=0
L_WS=65536; WSL=24576
SLOT=[L_WS+k*WSL for k in range(4)]
L_PP=SLOT[3]
SLOT=SLOT[:3]+[8192,36864,L_PP]
vL=1; vOne=2; vTok=3; vGs=4; vGl=5; vS5s=6; vS5l=7; vXD=8; vHD=9; vHS1=10; vHS2=11; vFX=12; vFH=13
vTAG=14; vR2=15
vXst=[16,24]; vYY=[32,36]
ACC0,ACC1,FR,vA0,vA1,EP,PT=40,64,88,112,113,114,122
vW2,vT2,vWc0=126,127,128
vW1=[129,130,131]; vTa,vTm,vWc1=132,133,134
vLane,vJ,vQ,vYo,vD=135,136,137,138,139
vCg,vCs=124,125
vHa=15
vCXw,vCXo,vCXp,vKV,vGA,vGW,vGT,vFT=160,161,162,163,164,165,166,167
vKD,vUP,vPK,vGD,vGC,vQT,vTch=168,172,176,184,192,196,193
W2V=144; W2A=192
def W1(s,t): b=(s*3+t)*4; return f"a[{b}:{b+3}]"
def W1h(s,t,hh): b=(s*3+t)*4+2*hh; return f"a[{b}:{b+1}]"
def W2(i,t):
    k=(i*2+t)*4
    return f"v[{W2V+k}:{W2V+k+3}]" if k<112 else f"a[{W2A+k-112}:{W2A+k-112+3}]"
def W2h(i,t,hh):
    k=(i*2+t)*4+2*hh
    return f"v[{W2V+k}:{W2V+k+1}]" if k<112 else f"a[{W2A+k-112}:{W2A+k-112+1}]"
V=lambda b,n=4: f"v[{b}:{b+n-1}]"
OOB=0x7FFFFF00
vST=lambda: 140 if CFG.get('trace')=='CV' else 139
POLLMAX=1<<16
def M(text,tok=None): return [mk(l.strip(),tok) for l in text.split('\n') if l.strip()]
BAR=lambda *pre: list(pre)+[mk("s_barrier")]

trace_names=[]; stamp_names=[]; site_names=[]
class G(Asm):
    def __init__(s,tag='',sc=''):
        super().__init__(); s.tag=tag; s.sc=sc; s.ool=[]
    def st(s,name,grp='m'):
        if not CFG['stamps'] or s.tag=='S': return []
        if grp!='*' and not any(c in str(CFG['stamps']) for c in grp): return []
        stamp_names.append(name); i=len(stamp_names)-1
        assert i<20, "too many stamps"
        return M(f"{'s_memtime' if CFG.get('clk') else 's_memrealtime'} s[100:101]\ns_waitcnt lgkmcnt(0)\ns_mov_b32 s{STAMP0+i}, s100")
    def trace(s, items, every, name):
        if s.tag=='S' or CFG.get('trace')!=name: return items
        out=[]; n=0
        for it in items:
            out.append(it)
            if isinstance(it,I) and it.kind=='mfma':
                if n%every==0 and CFG.get('tr0',0)<=n<CFG.get('tr0',0)+58*every: out+=s.light(f"{name}+{n}")
                n+=1
        return out+s.light(name+" end")+M("s_nop 15\ns_nop 15\ns_nop 15\ns_nop 15")+s.light(None)+s.light(None)
    def light(s,name):
        k=len(trace_names); trace_names.append(name or "")
        L=[]
        if name: x=mk(f"s_memtime s[{90+2*(k%3)}:{91+2*(k%3)}]"); x.light=1; x.defs=set(); L.append(x)
        if k>=2: L+=M(f"v_writelane_b32 v{vST()}, s{90+2*((k-2)%3)}, {k-2}")
        return L
    def stamp(s,name,grp='m'): s.ext(s.st(name,grp))
    def lr(s,n,*r): LR([i for i in s.L[-n:] if isinstance(i,I)],*r)
    def lw(s,n,*r): LW([i for i in s.L[-n:] if isinstance(i,I)],*r)
    def label(s,p): s.nlab+=1; return f"L{s.tag}_{p}_{s.nlab}"
    def check(s, loads, checks, name):
        R=s.label(name+'r'); L=s.label(name+'l'); B=s.label(name+'b')
        o=Asm(); o.lab(R); o(f"s_mov_b32 s{sCNT}, 0")
        if CFG['stamps'] and s.tag!='S':
            n=len(site_names); site_names.append(name); o(f"s_bitset1_b32 s98, {n}")
        o.lab(L)
        for l in loads: o(l)
        o("s_waitcnt vmcnt(0)")
        for c in checks: o(c)
        o(f"s_cbranch_vccz {B}\ns_add_u32 s{sCNT}, s{sCNT}, 1\ns_cmp_lt_u32 s{sCNT}, {POLLMAX}\ns_cbranch_scc1 {L}\ns_branch {B}")
        s.ool.append(o.L)
        ck=[mk(c) for c in checks]
        return [mk(l,R) for l in loads], [('WVM',R)]+ck[:-1]+[[ck[-1],mk(f"s_cbranch_vccnz {R}"),mk(B+":")]]
    def flat(s, items):
        for it in items:
            if isinstance(it,list): s.ext(it)
            elif isinstance(it,tuple) and it[0] in('AT','GAP','GAPV','SYNC','AFTER','BY','DENS','BK'): pass
            else: s.L.append(it)
    def weave(s, bb, *streams, slots=2, name=None):
        out,rest=weave(bb,streams,slots)
        s.ext(s.trace(out,CFG.get('tev_',4),name) if name else out); s.ext(rest)
        if rest and CFG.get('v'): print("  leftover fillers:",len(rest),[getattr(r,'text',r) for r in rest[:2]])

def entry(a):
    a.stamp("entry","*")
    if CFG["stamps"]: a("s_memtime s[100:101]\ns_waitcnt lgkmcnt(0)\ns_mov_b32 s99, s100\ns_mov_b32 s98, 0")
    a("s_cmp_ge_u32 s2, 256\ns_cbranch_scc1 L_end")
    for b,off in ((SK_,8),(SV_,16),(WS,96),(SSK,24),(SH_,32),(SD_,40),(SQ_,0),(SWG,56),(SWU,64),(SWD,72),(SO_,80)):
        a(f"s_load_dwordx2 s[{b}:{b+1}], s[0:1], {off}")
    a(f"v_lshrrev_b32 v40, 6, v0\nv_and_b32 v{vLane}, 63, v0")
    a(f"s_and_b32 s{sX}, s2, 7\ns_lshr_b32 s{sR}, s2, 3")
    a(f"v_readfirstlane_b32 s{sWV}, v40")
    a(f"v_lshlrev_b32 v{vL}, 4, v{vLane}")
    if CFG['prefetch']:
        a(f"s_getpc_b64 s[{sT2}:{sT2+1}]")
        a("L_pc:")
        a(f"s_lshl_b32 s{sT0}, s{sWV}, 5\ns_add_u32 s{sT0}, s{sT0}, s{sR}\ns_lshl_b32 s{sT0}, s{sT0}, 10")
        a(f"v_add_u32 v42, s{sT0}, v{vL}\nv_min_u32 v42, L_fast_end-L_pc-16, v42")
        a(f"v_mov_b32 v43, s{sT2+1}\nv_add_co_u32 v42, vcc, s{sT2}, v42")
        a(f"v_lshrrev_b32 v48, 3, v{vLane}\nv_and_b32 v49, 7, v{vLane}")
        a("v_addc_co_u32 v43, vcc, 0, v43, vcc")
        a("global_load_dwordx4 v[44:47], v[42:43], off")
    else:
        a(f"v_lshrrev_b32 v48, 3, v{vLane}\nv_and_b32 v49, 7, v{vLane}")
    a(f"v_lshlrev_b32 v49, 4, v49\nv_lshl_add_u32 v{vW2}, v48, 10, v49")
    a(f"s_lshl_b32 s{sT0}, s{sR}, 16\ns_lshl_b32 s{sT1}, s{sX}, 7\ns_add_u32 s{sT0}, s{sT0}, s{sT1}")
    a(f"s_sub_u32 s{sT1}, s{sT0}, 8192\nv_add_u32 v49, s{sT1}, v{vW2}")
    a(f"s_lshl_b32 s{sT1}, s{sWV}, 13\ns_add_u32 s{sT0}, s{sT0}, s{sT1}\nv_add_u32 v48, s{sT0}, v{vW2}")
    a(f"s_mul_i32 s{sT1}, s{sWV}, {CHP}\ns_mov_b32 s{sSOFF}, 32768")
    for b,n in ((SK_,2<<20),(SV_,2<<20),(WS,256<<20),(SSK,4096)):
        a(f"s_mov_b32 s{b+2}, {n}\ns_mov_b32 s{b+3}, 0x20000")
    a(f"v_and_b32 v{vJ}, 15, v{vLane}\nv_lshrrev_b32 v{vQ}, 4, v{vLane}")
    a(f"s_lshl_b32 s{sT0}, s{sX}, 6\ns_lshl_b32 s{sT2}, s{sWV}, 4\ns_add_u32 s{sT0}, s{sT0}, s{sT2}\nv_add_u32 v55, s{sT0}, v{vJ}")
    a(f"v_lshlrev_b32 v78, 3, v55\nv_mov_b32 v50, 0")
    a(f"s_add_u32 m0, s{sT1}, {L_K+CHP}\ns_mov_b32 s{sT2}, {L_V+8*CHP}")
    a("s_waitcnt lgkmcnt(0)"); a.stamp("kernarg","f")
    if CFG.get('probe'):
        if CFG['probe']==1: a("s_load_dwordx2 s[96:97], s[0:1], 48\ns_waitcnt lgkmcnt(0)\ns_mov_b32 s98, 0x200000\ns_mov_b32 s99, 0x20000"); S="s[96:99]"; base=0
        else: S=srd(WS); base=CFG['probe']<<24
        a(f"s_lshl_b32 s95, s2, 2\ns_add_u32 s95, s95, s{sWV}\ns_lshl_b32 s95, s95, 11\ns_add_u32 s95, s95, {base}\nv_mov_b32 v60, s95")
        for i in range(16):
            a(f"buffer_load_dword v61, v60, {S}, 0 offen offset:{128*i}\nv_and_b32 v61, 0, v61\nv_add_u32 v60, v60, v61")
    a(f"buffer_load_dwordx4 v48, {srd(SK_)}, 0 offen lds","kv")
    a(f"s_add_u32 m0, s{sT1}, {L_V}");       a(f"buffer_load_dwordx4 v48, {srd(SV_)}, 0 offen lds","kv")
    a(f"s_add_u32 m0, s{sT1}, {L_K+5*CHP}"); a(f"buffer_load_dwordx4 v48, {srd(SK_)}, s{sSOFF} offen lds","kv")
    a(f"s_add_u32 m0, s{sT1}, {L_V+4*CHP}"); a(f"buffer_load_dwordx4 v48, {srd(SV_)}, s{sSOFF} offen lds","kv")
    a(f"s_cmp_eq_u32 s{sWV}, 3\ns_cselect_b32 m0, {L_K}, s{sT2}\ns_cselect_b32 s{sSOFF}, 0, {OOB}")
    a(f"buffer_load_dwordx4 v49, {srd(SK_)}, s{sSOFF} offen lds","kv")
    a.lw(13,(L_K,L_V+8*CHP+1024))
    a(f"buffer_load_dwordx2 {V(80,2)}, v78, {srd(SSK)}, 0 offen")
    a(f"buffer_load_dword v51, v50, {srd(WS)}, 0 offen sc1")
    a.stamp("kv issued","f")
    for b,n in ((SH_,4096),(SD_,1024),(SQ_,2<<20),(SWG,512*1376*2),(SWU,512*1376*2),(SWD,512*1376*2),(SO_,2<<20)):
        a(f"s_mov_b32 s{b+2}, {n}\ns_mov_b32 s{b+3}, 0x20000")
    a(f"""s_lshr_b32 s{sT0}, s{sR}, 4
        s_lshl_b32 s{sG}, s{sX}, 1
        s_add_u32 s{sG}, s{sG}, s{sT0}
        s_and_b32 s{sM}, s{sR}, 15
        s_lshr_b32 s{sRH}, s{sM}, 3
        s_and_b32 s{sCT2}, s{sM}, 7
        s_lshr_b32 s{sKH}, s{sWV}, 1
        s_and_b32 s{sCHH}, s{sWV}, 1
        s_mov_b32 s{sMB}, 0x100000""")
    a(f"s_cmp_eq_u32 s{sM}, 15\ns_cselect_b32 s{SWG+2}, 0, s{SWG+2}\ns_cselect_b32 s{SWU+2}, 0, s{SWU+2}")
    a(f"s_lshl_b32 s{sT0}, s{sX}, 6\ns_lshl_b32 s{sT1}, s{sR}, 1\ns_add_u32 s{sT0}, s{sT0}, s{sT1}\ns_add_u32 s{sT2}, s{sT0}, s{sKH}")
    a(f"s_lshl_b32 s{sT0}, s{sT2}, 12\ns_add_u32 s{SH_}, s{SH_}, s{sT0}\ns_addc_u32 s{SH_+1}, s{SH_+1}, 0")
    a(f"s_lshl_b32 s{sT0}, s{sCHH}, 11\nv_add_u32 v52, s{sT0}, v{vL}")
    a(f"v_min_u32 v53, 1, v{vLane}\nv_lshlrev_b32 v53, 4, v53\nv_subrev_u32 v53, 32, v53")
    a(f"s_lshl_b32 s{sT0}, s{sT2}, 1\nv_mov_b32 v{vD}, s{sT0}")
    if CFG['ssmat']==0: ssm_loads(a)
    a(f"""v_and_b32 v96, 1, v{vQ}
        v_lshlrev_b32 v96, 2, v96
        v_lshrrev_b32 v97, 2, v{vJ}
        v_add_u32 v96, v96, v97
        v_lshlrev_b32 v96, 16, v96
        v_and_b32 v97, 3, v{vJ}
        v_lshl_add_u32 v96, v97, 5, v96
        v_lshrrev_b32 v97, 1, v{vQ}
        v_lshl_add_u32 v96, v97, 4, v96
        s_lshl_b32 s{sT0}, s{sCHH}, 19
        s_lshl_b32 s{sT1}, s{sT2}, 7
        s_add_u32 s{sT0}, s{sT0}, s{sT1}
        s_add_u32 s{sT0}, s{sT0}, {OFF_YT}
        v_add_u32 v{vYo}, s{sT0}, v96
        s_mov_b32 s{sHELLO}, s{sT2}""")
    a(f"v_mov_b32 v{vOne}, {OOB}\nv_cmp_eq_u32 vcc, 0, v{vLane}\nv_cndmask_b32 v{vOne}, v{vOne}, v50, vcc")
    a(f"""s_lshl_b32 s{sT0}, s{sG}, 2
        s_lshl_b32 s{sT1}, s{sRH}, 1
        s_add_u32 s{sT1}, s{sT1}, s{sKH}
        s_add_u32 s{sT0}, s{sT0}, s{sT1}
        s_lshl_b32 s{sT1}, s{sKH}, 1
        s_add_u32 s{sT1}, s{sT1}, s{sRH}""")
    a(f"""s_lshl_b32 s{sGRl}, s{sT0}, 12
        s_add_u32 s{sGRl}, s{sGRl}, {OFF_GRAN}
        s_lshl_b32 s{sS5l}, s{sT0}, 10
        s_add_u32 s{sS5l}, s{sS5l}, {OFF_S5}
        s_lshl_b32 s{sT3}, s{sCT2}, 1
        s_add_u32 s{sT3}, s{sT3}, s{sCHH}""")
    a(f"""s_lshl_b32 s{sGR}, s{sT3}, 8
        s_add_u32 s{sGR}, s{sGR}, s{sGRl}
        s_lshl_b32 s{sS5}, s{sT3}, 2
        s_add_u32 s{sS5}, s{sS5}, s{sS5l}
        s_lshl_b32 s{sXS}, s{sG}, 17
        s_lshl_b32 s{sT1}, s{sT1}, 14
        s_add_u32 s{sXS}, s{sXS}, s{sT1}
        s_lshl_b32 s{sT1}, s{sX}, {1 if CFG['rot'] else 8}
        s_sub_u32 s{sT1}, s{sT3}, s{sT1}
        s_and_b32 s{sT1}, s{sT1}, 15
        s_lshl_b32 s{sT1}, s{sT1}, 10
        s_add_u32 s{sXS}, s{sXS}, s{sT1}
        s_add_u32 s{sXS}, s{sXS}, {OFF_XF}
        s_lshl_b32 s{sT0}, s{sT0}, 14
        s_lshl_b32 s{sT1}, s{sT3}, 6
        s_add_u32 s{sT0}, s{sT0}, s{sT1}""")
    a(f"v_lshlrev_b32 v{vTok}, 10, v{vJ}\nv_lshl_add_u32 v{vTok}, v{vQ}, 4, v{vTok}\nv_add_u32 v{vTok}, s{sT0}, v{vTok}")
    a(f"v_lshlrev_b32 v{vGs}, 4, v{vJ}\nv_lshl_add_u32 v{vGl}, v{vQ}, 10, v{vGs}\nv_lshl_add_u32 v{vGs}, v{vQ}, 2, v{vGs}")
    a(f"v_lshlrev_b32 v{vS5l}, 6, v{vJ}\nv_mov_b32 v{vS5s}, {OOB}\nv_cmp_eq_u32 vcc, 0, v{vQ}\nv_cndmask_b32 v{vS5s}, v{vS5s}, v{vS5l}, vcc")
    a(f"v_lshl_add_u32 v{vS5l}, v{vQ}, 4, v{vS5l}")
    a(f"s_lshl_b32 s{sT0}, s{sX}, 5\ns_add_u32 s{sT0}, s{sT0}, s{sR}\ns_lshl_b32 s{sHF}, s{sT0}, 7\ns_lshl_b32 s{sT0}, s{sWV}, 2\ns_add_u32 s{sHF}, s{sHF}, s{sT0}\ns_add_u32 s{sHF}, s{sHF}, {OFF_HELLO}")
    a(f"""s_lshl_b32 s{sXW}, s{sCHH}, 14
        s_lshl_b32 s{sT0}, s{sKH}, 12
        s_add_u32 s{sXW}, s{sXW}, s{sT0}
        s_lshl_b32 s{sT0}, s{sG}, 17
        s_add_u32 s{sT0}, s{sT0}, s{sXW}
        s_add_u32 s{sT0}, s{sT0}, {OFF_XF}
        v_add_u32 v{vXD}, s{sT0}, v{vL}
        s_lshl_b32 s{sHW}, s{sWV}, 13
        s_mul_i32 s{sHK}, s{sKH}, {3*8192}
        s_lshl_b32 s{sHS}, s{sKH}, 13
        s_add_u32 s{sHS}, s{sHS}, 8192
        s_lshl_b32 s{sT0}, s{sG}, 3
        s_add_u32 s{sT1}, s{sRH}, s{sT0}
        s_mul_i32 s{sT1}, s{sT1}, {HKS}
        s_mul_i32 s{sT3}, s{sKH}, 21
        s_add_u32 s{sT1}, s{sT1}, s{sT3}
        s_lshl_b32 s{sT1}, s{sT1}, 10
        s_add_u32 s{sT1}, s{sT1}, {OFF_H}
        v_add_u32 v{vHD}, s{sT1}, v{vL}""")
    a(f"""s_mul_i32 s{sT0}, s{sT0}, {HKS*1024}
        s_mul_i32 s{sT1}, s{sM}, 12
        s_mul_i32 s{sT3}, s{sWV}, 3
        s_add_u32 s{sT1}, s{sT1}, s{sT3}
        s_lshl_b32 s{sT1}, s{sT1}, 8
        s_add_u32 s{sT0}, s{sT0}, s{sT1}
        s_add_u32 s{sT0}, s{sT0}, {OFF_H}
        s_mov_b32 s{sT1}, {HKS*1024}
        v_lshlrev_b32 v97, 4, v{vJ}
        v_add_u32 v97, s{sT0}, v97
        v_and_b32 v98, 1, v{vQ}
        v_mad_u32_u24 v{vHS1}, v98, s{sT1}, v97
        v_add_u32 v{vHS2}, 512, v{vHS1}
        v_cmp_gt_u32 vcc, 32, v{vLane}
        v_mov_b32 v97, {OOB}
        v_cndmask_b32 v{vHS2}, v97, v{vHS2}, vcc
        v_lshrrev_b32 v98, 1, v{vQ}
        v_lshl_add_u32 v{vHS1}, v98, 8, v{vHS1}
        v_lshlrev_b32 v{vFX}, 2, v{vLane}
        v_min_u32 v{vFH}, 57, v{vLane}
        v_lshlrev_b32 v{vFH}, 2, v{vFH}
        s_lshl_b32 s{sFL}, s{sG}, 9
        s_lshl_b32 s{sFLG}, s{sM}, 2
        s_add_u32 s{sFLG}, s{sFLG}, s{sWV}
        s_lshl_b32 s{sFLG}, s{sFLG}, 2
        s_add_u32 s{sFLG}, s{sFLG}, s{sFL}
        s_nop 0""")
    w_setup(a)
    a(f"""v_mul_u32_u24 v83, {2*CHP}, v{vQ}
        v_bfe_u32 v101, v{vLane}, 2, 2
        v_lshl_add_u32 v83, v101, 7, v83
        v_and_b32 v101, 3, v{vLane}
        v_lshl_add_u32 v83, v101, 3, v83
        s_lshl_b32 s{sT0}, s{sWV}, 5
        v_add_u32 v83, s{sT0}, v83""")
    a(f"v_and_b32 v55, -9, v55\nv_lshlrev_b32 v55, 12, v55\nv_lshl_add_u32 v55, v{vQ}, 5, v55\nv_lshrrev_b32 v101, 3, v{vJ}\nv_lshl_add_u32 v55, v101, 4, v55\ns_lshl_b32 s{sT0}, s{sR}, 7\ns_add_u32 s{sT0}, s{sT0}, {OFF_KVT}\nv_add_u32 v55, s{sT0}, v55")
    a(f"v_lshrrev_b32 v100, 5, v{vLane}\nv_mul_u32_u24 v100, {UCH-512}, v100\nv_add_u32 v100, v100, v{vL}")
    a("v_mov_b32 v104, 0\nv_mov_b32 v105, 0\nv_mov_b32 v106, 0\nv_mov_b32 v107, 0")
    a(f"ds_write_b128 v100, {V(104)} offset:{L_U}"); a.lw(1,(L_U,L_U+512),(L_U+UCH,L_U+UCH+512))
    a(f"""s_lshl_b32 s{sT0}, s{sWV}, 12
        s_add_u32 s{sT1}, s{sT0}, {L_CX}
        v_add_u32 v{vCXw}, s{sT1}, v{vL}
        s_lshl_b32 s{sT2}, s{sCHH}, 11
        v_add_u32 v{vCXo}, s{sT2}, v{vCXw}
        v_xor_b32 v{vCXp}, 4096, v{vL}
        s_xor_b32 s{sT0}, s{sT0}, 4096
        s_add_u32 s{sT0}, s{sT0}, s{sT2}
        s_add_u32 s{sT0}, s{sT0}, {L_CX}
        v_add_u32 v{vCXp}, s{sT0}, v{vL}
        s_lshl_b32 s{sT0}, s{sCHH}, 10
        s_mul_i32 s{sT1}, s{sKH}, {UCH}
        s_add_u32 s{sT0}, s{sT0}, s{sT1}
        s_add_u32 s{sT0}, s{sT0}, {L_U+512+8}
        v_lshlrev_b32 v{vKV}, 5, v{vJ}
        v_lshrrev_b32 v100, 1, v{vQ}
        v_lshl_add_u32 v{vKV}, v100, 4, v{vKV}
        v_and_b32 v100, 1, v{vQ}
        v_lshlrev_b32 v100, 3, v100
        v_sub_u32 v{vKV}, v{vKV}, v100
        v_add_u32 v{vKV}, s{sT0}, v{vKV}
        v_lshrrev_b32 v100, 2, v0
        v_lshlrev_b32 v100, 7, v100
        v_and_b32 v101, 3, v0
        v_lshl_add_u32 v100, v101, 4, v100
        s_lshl_b32 s{sT0}, s{sG}, 16
        s_lshl_b32 s{sT1}, s{sCT2}, 13
        s_add_u32 s{sT0}, s{sT0}, s{sT1}
        s_lshl_b32 s{sT1}, s{sRH}, 6
        s_add_u32 s{sT0}, s{sT0}, s{sT1}
        s_add_u32 s{sT0}, s{sT0}, {OFF_YT}
        v_add_u32 v{vGA}, s{sT0}, v100
        v_lshlrev_b32 v{vGW}, 4, v0
        v_bfe_u32 v100, v{vLane}, 2, 2
        v_lshl_add_u32 v100, v{vQ}, 3, v100
        v_lshlrev_b32 v100, 6, v100
        v_and_b32 v101, 3, v{vLane}
        v_lshl_add_u32 v100, v101, 3, v100
        s_lshl_b32 s{sT0}, s{sCHH}, 11
        s_lshl_b32 s{sT1}, s{sKH}, 5
        s_add_u32 s{sT0}, s{sT0}, s{sT1}
        v_add_u32 v{vGT}, s{sT0}, v100
        v_and_b32 v100, 7, v{vLane}
        v_lshlrev_b32 v100, 7, v100
        v_bfe_u32 v101, v{vLane}, 3, 2
        v_lshl_add_u32 v100, v101, 14, v100
        s_lshl_b32 s{sT0}, s{sFL}, 1
        s_add_u32 s{sT0}, s{sT0}, {OFF_XFLAG}
        v_add_u32 v{vFT}, s{sT0}, v100
        v_and_b32 v100, 31, v{vLane}
        v_lshlrev_b32 v100, 7, v100
        v_cmp_gt_u32 vcc, 32, v{vLane}
        s_lshl_b32 s{sT0}, s{sCT2}, 12
        s_lshl_b32 s{sT1}, s{sX}, 12
        v_mov_b32 v101, s{sT0}
        v_mov_b32 v102, s{sT1}
        v_cndmask_b32 v101, v101, v102, vcc
        v_add_u32 v100, {OFF_HELLO}, v100
        v_add_u32 v{vHa}, v100, v101""")
    a(f"""s_lshl_b32 s{sT0}, s{sHELLO}, 12
        s_lshl_b32 s{sT1}, s{sCHH}, 11
        s_add_u32 s{sT0}, s{sT0}, s{sT1}
        s_add_u32 s{sT0}, s{sT0}, {OFF_KVT}
        v_lshlrev_b32 v100, 7, v{vLane}
        v_add_u32 v100, s{sT0}, v100
        s_lshr_b32 s{sT0}, s{sR}, 3
        s_lshl_b32 s{sT1}, s{sX}, 2
        s_add_u32 s{sT0}, s{sT0}, s{sT1}
        s_lshl_b32 s{sT0}, s{sT0}, 7
        s_add_u32 s{sT0}, s{sT0}, {OFF_F1L}
        v_mov_b32 v101, s{sT0}
        v_cmp_gt_u32 vcc, 16, v{vLane}
        v_cndmask_b32 v{vTch}, v101, v100, vcc""")
    if CFG['utouch']==0: a(f"buffer_load_dword v{vTch}, v{vTch}, {srd(WS)}, 0 offen sc1")
    if CFG['ssmat']==1: ssm_loads(a)
    a(f"""v_lshlrev_b32 v{vCg}, 4, v{vJ}
        v_lshl_add_u32 v{vCg}, v{vQ}, 18, v{vCg}
        v_lshrrev_b32 v{vCs}, 3, v{vLane}
        v_lshlrev_b32 v{vCs}, 16, v{vCs}
        v_and_b32 v100, 7, v{vLane}
        v_lshl_add_u32 v{vCs}, v100, 4, v{vCs}
        s_lshl_b32 s{sT0}, s{sCHH}, 17
        s_lshl_b32 s{sT1}, s{sCT2}, 7
        s_add_u32 s{sT0}, s{sT0}, s{sT1}
        s_add_u32 s{sT0}, s{sT0}, s{sS5l}
        v_add_u32 v{vCs}, s{sT0}, v{vCs}
        v_cmp_gt_u32 vcc, 16, v{vLane}
        v_mov_b32 v100, {OOB}
        v_add_u32 v{vCg}, s{sGR}, v{vCg}
        v_cndmask_b32 v{vCs}, v100, v{vCs}, vcc""")
    if CFG['clr']==0: clears(a)
    a.stamp("setup done","f")

def ssm_loads(a):
    a(f"s_mul_i32 s{sT0}, s{sKH}, {UCH}\ns_lshl_b32 s{sT1}, s{sCHH}, 11\ns_add_u32 s{sT0}, s{sT0}, s{sT1}\ns_add_u32 m0, s{sT0}, {L_U+512}")
    a(f"buffer_load_dwordx4 v{vL}, {srd(SH_)}, s{sT1} offen lds\nbuffer_load_dwordx4 v{vL}, {srd(SH_)}, s{sT1} offen offset:1024 lds","ssm")
    a.lw(2,(L_U+512,L_U+UCH),(L_U+UCH+512,L_U+2*UCH))
    a(f"buffer_load_ushort v{vD}, v{vD}, {srd(SD_)}, 0 offen")

def clears(a,tok=None):
    a("v_mov_b32 v112, -1\nv_mov_b32 v113, -1\nv_mov_b32 v114, -1\nv_mov_b32 v115, -1")
    a(f"""buffer_store_dwordx4 {V(112)}, v{vYo}, {srd(WS)}, 0 offen sc1
        buffer_store_dwordx4 {V(112)}, v{vYo}, {srd(WS)}, s{sMB} offen sc1
        buffer_store_dwordx4 {V(112)}, v{vCg}, {srd(WS)}, 0 offen sc1
        buffer_store_dwordx4 {V(112)}, v{vCs}, {srd(WS)}, 0 offen sc1""",tok)

def w_setup(a):
    lane,j,q=vLane,vJ,vQ
    for b in range(3):
        a(f"v_add_u32 v100, {64*b}, v{lane}\nv_mul_u32_u24 v101, 43691, v100\nv_lshrrev_b32 v101, 19, v101")
        a(f"v_mul_u32_u24 v102, 12, v101\nv_sub_u32 v100, v100, v102\nv_lshlrev_b32 v100, 4, v100")
        if CFG['swz']:
            a("v_lshrrev_b32 v102, 3, v101\nv_lshlrev_b32 v102, 5, v102\nv_sub_u32 v100, v100, v102\nv_add_u32 v102, 192, v100\nv_min_u32 v100, v100, v102")
        a(f"v_mul_u32_u24 v101, 2752, v101\nv_add_u32 v{vW1[b]}, v100, v101")
        if CFG['z14']: a(f"s_cmp_eq_u32 s{sM}, 14\ns_cselect_b32 s{sT0}, 64, 192\nv_cmp_gt_u32 vcc, s{sT0}, v100\nv_mov_b32 v101, 0x40000000\nv_cndmask_b32 v{vW1[b]}, v101, v{vW1[b]}, vcc")
    a(f"s_mul_i32 s{sT0}, s{sWV}, {16*2752}\ns_mul_i32 s{sT1}, s{sM}, 192\ns_add_u32 s{sT0}, s{sT0}, s{sT1}")
    for b in range(3):
        a(f"v_add_u32 v{vW1[b]}, s{sT0}, v{vW1[b]}")
        if b: a(f"v_subrev_u32 v{vW1[b]}, {1024*b}, v{vW1[b]}")
    a(f"""v_bfe_u32 v100, v{lane}, 2, 2
        v_lshl_add_u32 v100, v{q}, 3, v100
        v_and_b32 v101, 3, v{lane}
        v_mul_u32_u24 v102, 192, v100
        s_mul_i32 s{sT0}, s{sWV}, 48
        v_and_b32 v104, {1 if CFG['swz'] else 0}, v{q}
        v_lshlrev_b32 v104, 5, v104
        v_add_u32 v104, s{sT0}, v104
        v_lshl_add_u32 v103, v101, 3, v104
        v_subrev_u32 v105, 192, v103
        v_min_u32 v103, v103, v105
        v_add_u32 v{vTa}, v102, v103
        v_lshrrev_b32 v103, 1, v101
        v_lshl_add_u32 v103, v103, 3, v104
        v_add_u32 v103, 32, v103
        v_subrev_u32 v105, 192, v103
        v_min_u32 v103, v103, v105
        v_add_u32 v102, v102, v103
        v_and_b32 v103, 1, v101
        v_mul_u32_u24 v103, 12288, v103
        v_add_u32 v{vTm}, v102, v103
        v_lshlrev_b32 v102, 7, v100
        v_lshl_add_u32 v102, v101, 4, v102
        s_lshl_b32 s{sT1}, s{sWV}, 12
        s_add_u32 s{sT1}, s{sT1}, {L_PP}
        v_add_u32 v{vT2}, s{sT1}, v102
        s_mul_i32 s{sW1W}, s{sWV}, 3072""")

def c_dma(n, slot):
    if CFG.get('now1'): return []
    L=M(f"s_add_u32 s{sWo}, s{sX}, {n}\ns_and_b32 s{sWo}, s{sWo}, 7\ns_mul_i32 s{sWo}, s{sWo}, {64*2752}") if CFG['rot'] else M(f"s_mov_b32 s{sWo}, {n*64*2752}")
    for mat,S in ((0,SWG),(1,SWU)):
        L+=M(f"s_add_u32 m0, s{sW1W}, {slot+mat*12288}")
        for b in range(3): L+=M(f"buffer_load_dwordx4 v{vW1[b]}, {srd(S)}, s{sWo} offen offset:{1024*b} lds",f"c{n}")
    return LW(L,(slot,slot+WSL))
def c_read(n, slot):
    if CFG.get('now1'): return []
    L=M(f"v_add_u32 v{vWc0}, {slot}, v{vTa}\nv_add_u32 v{vWc1}, {slot}, v{vTm}")
    for sp in range(2):
        s=2*n+sp
        for hh in range(2):
            o=sp*6144+hh*768
            L+=M(f"""ds_read_b64_tr_b16 {W1h(s,0,hh)}, v{vWc0} offset:{o}
                     ds_read_b64_tr_b16 {W1h(s,1,hh)}, v{vWc0} offset:{o+12288}
                     ds_read_b64_tr_b16 {W1h(s,2,hh)}, v{vWc1} offset:{o}""",f"cr{n}")
    return LR(L,(slot,slot+WSL))
def pp_setup():
    return M(f"""s_lshl_b32 s{sT0}, s{sWV}, 8
        s_add_u32 s{sT0}, s{sT0}, s2
        s_mul_i32 s{sT1}, s{sT0}, 1525
        s_lshr_b32 s{sT1}, s{sT1}, 16
        s_mul_i32 s{sT2}, s{sT1}, 43
        s_sub_u32 s{sT2}, s{sT0}, s{sT2}
        s_lshl_b32 s{sPS}, s{sT2}, 15
        s_lshl_b32 s{sT3}, s{sT1}, 7
        s_add_u32 s{sPS}, s{sPS}, s{sT3}
        s_mul_i32 s{sPD}, s{sT1}, 86
        s_add_u32 s{sPD}, s{sPD}, s{sT2}
        s_lshl_b32 s{sPD}, s{sPD}, 11
        s_add_u32 s{sPD}, s{sPD}, {OFF_P2}
        s_lshl_b32 s{sPF}, s{sT0}, 7
        s_add_u32 s{sPF}, s{sPF}, {OFF_P2F}
        s_cmp_lt_u32 s{sT0}, 344
        s_cselect_b32 s{sPS}, s{sPS}, {OOB}
        s_cselect_b32 s{sPD}, s{sPD}, {OOB}
        s_cselect_b32 s{sPF}, s{sPF}, {OOB}
        s_lshl_b32 s{sT0}, s{sCT2}, 1
        s_add_u32 s{sT0}, s{sT0}, s{sCHH}
        s_mul_i32 s{sT0}, s{sT0}, 43
        s_mul_i32 s{sT1}, s{sKH}, 21
        s_add_u32 s{sT0}, s{sT0}, s{sT1}
        s_lshl_b32 s{sT0}, s{sT0}, 11
        s_add_u32 s{sW2B}, s{sT0}, {OFF_P2}
        s_cmp_eq_u32 s{sKH}, 0
        s_cselect_b32 s{sW20}, s{sW2B}, {OOB}""")
def pp_load():
    L=M(f"s_lshl_b32 s{sT3}, s{sWV}, 12")
    for r in range(4):
        L+=M(f"s_add_u32 m0, s{sT3}, {L_PP+1024*r}\ns_add_u32 s{sWo}, s{sPS}, {8192*r}")
        L+=M(f"buffer_load_dwordx4 v{vW2}, {srd(SWD)}, s{sWo} offen lds","pp")
    for x in L: x.priv=1
    return LW(L,(L_PP,L_PP+16384))
def touches():
    return M(f"""buffer_load_dword v{vCg}, v{vCg}, {srd(WS)}, 0 offen sc1
        buffer_load_dword v{vCs}, v{vCs}, {srd(WS)}, 0 offen sc1
        buffer_load_dword v{vFT}, v{vFT}, {srd(WS)}, 0 offen sc1""")
def extras(pos): return (pp_load() if CFG['ppat']==pos else [])+(touches() if CFG['tat']==pos else [])+(h_touch(TCHK()) if CFG['hat']==pos else [])
def pp_pack():
    L=[('WVM','pp')]
    for c in range(2):
        for t in range(2):
            for hh in range(2): L+=LR(M(f"ds_read_b64_tr_b16 {V(W2V+8*c+4*t+2*hh,2)}, v{vT2} offset:{hh*512+64*c+8*t}"),(L_PP,L_PP+16384))
    for x in L[1:]: x.priv=1
    S=[]
    for c in range(2):
        S+=M(f"s_add_u32 s{sT2}, s{sPD}, {c*43*2048}")
        for t in range(2): S+=M(f"buffer_store_dwordx4 {V(W2V+8*c+4*t)}, v{vL}, {srd(WS)}, s{sT2} offen offset:{1024*t} sc1","pps")
    return L,S
def w2_loads():
    L=[]
    for i in range(CFG.get('w2n',22)):
        so=sW20 if i==0 else (sW2B if i==1 else sPS)
        if i>=2 and i%2==0: L+=M(f"s_add_u32 s{sPS}, s{sW2B}, {i*2048}")
        for t in range(2): L+=M(f"buffer_load_dwordx4 {W2(i,t)}, v{vL}, {srd(WS)}, s{so} offen offset:{(i&1)*2048+t*1024} sc1",f"w2_{i}")
    return L
W2Q=[]
def w2_take(n):
    out=[]
    while W2Q and n>0:
        x=W2Q.pop(0); out.append(x)
        if x.kind=='vmem': n-=1
    return out

PLANS={
 0:dict(),
 1:dict(FL="i0", T2="i1", CV=[("a",20,"r0"),("d",40,"i2"),("a",84,"w1 b r1"),("d",100,"i3@0")], YS="i4@5", YA="w3 b r2 r3", GL="i5@1 w4 l b r4", ST="i6@2", PEND=[5,6], REST=["7@0"]),
 3:dict(FL="i0", T2="i1 w0 b r0", CV=[("d",2,"i2"),("d",68,"i3@0")], CE="w2", YS="r1 r2 i4@3", F1="r3", F2="i5@1", FB="r4", XD="", PEND=[5], REST=["6@2","7@0"]),
 6:dict(T2="i0", CV=[("d",40,"i1"),("d",90,"i2")], CE="w1", YS="i3@3 r0 r1", SA="w2", F1="r2 i4@0", F2="", FX="i5@1", SB="w4", FB="r3 r4", XD="", PEND=[5], REST=["6@2","7@0"]),
 8:dict(T0="i0", FL="i1", T2="i2 w1 b r0 r1", CV=[("d",20,"i3@0"),("d",68,"i4@1")], CE="w3", YS="i5@3 r2 r3", F1="r4", F2="i6@2", FX="i7@0", FB="r5", PEND=[6,7]),
 12:dict(T0="i0", FL="i1", T2="i2 w1 b r0 r1", CV=[("d",20,"i3@0"),("d",68,"i4@1")], CE="w3", YS="i5@3 r2 r3", F1="r4", F2="i6@2", FX="i7@0", FB="r5", XD="p6", PEND=[6,7]),
 13:dict(T0="i0", FL="i1", T2="i2", CV=[("a",6,"r0 r1"),("a",52,"L1 b"),("d",54,"i3@0"),("d",100,"i4@1")], CE="w3", YS="i5@3 r2 r3", SA="w4", F1="r4", F2="i6@2", FX="i7@0", FB="r5", PEND=[6,7]),
 14:dict(T0="i0", T2="i1", CV=[("a",6,"r0"),("d",24,"i2"),("d",70,"i3@0")], CE="w2", YS="i4@3 r1 r2", F1="r3", F2="i5@1", FX="i6@2", FB="r4", PEND=[5,6], REST=["7@0"]),
 15:dict(FL="i0", T2="i1", CV=[("a",6,"r0"),("d",4,"i2"),("a",40,"w1 L0 b r1"),("d",50,"i3@0"),("a",94,"w2 L1 b r2"),("d",98,"i4@1")], CE="w3", YS="i5@3 r3", SA="w4", F1="r4", F2="i6@2", FX="i7@0", FB="r5", PEND=[6,7]),
 16:dict(T1="i0", T2="i1", CV=[("a",6,"r0"),("d",4,"i2"),("a",40,"w1 L0 b r1"),("d",50,"i3@0"),("a",94,"w2 L1 b r2"),("d",98,"i4@1")], CE="w3", YS="i5@3 r3", SA="w4", F1="r4", F2="i6@2", FX="i7@0", FB="r5", PEND=[6,7]),
 17:dict(T0="i0", FL="i1", T2="i2", CV=[("a",6,"r0 r1"),("a",52,"L1 b"),("d",54,"i3@0"),("d",100,"i4@1")], CE="w3", Y0="i5@3", SA="w4", YS="r2 r3 r4", FX="l b i6@2", FB="i7@0 r5", PEND=[6,7]),
 18:dict(T0="i0", FL="i1", T2="i2", CV=[("a",6,"r0 r1"),("a",52,"L1 b"),("d",54,"i3@0"),("d",100,"i4@1")], CE="w3", SA="w4", YS="i5@3 r2 r3 r4", F2="l b i6@2", FX="i7@0", FB="r5", PEND=[6,7]),
 20:dict(T0="i0", FL="i1", T2="i2", CV=[("a",6,"r0 r1"),("a",52,"L1 b"),("d",54,"i3@0"),("d",100,"i4@1")], CE="w3", SA="w4", YS="i5@3 r2 r3 r4", FA="l b i6@2", FX="i7@0", FB="r5", PEND=[6,7]),
 21:dict(T0="i0", FL="i1", T2="i2", CV=[("a",6,"r0 r1"),("a",52,"L1 b"),("d",54,"i3@0"),("d",100,"i4@1")], CE="w3", Y0="i5@3", SA="w4", YS="r2 r3 r4 l b i6@2", FX="i7@0", FB="r5", PEND=[6,7]),
 19:dict(T0="i0", FL="i1", T2="i2", CV=[("a",6,"r0 r1"),("a",52,"L1 b"),("d",54,"i3@0"),("d",100,"i4@1")], CE="w3", Y0="i5@3", SA="w4", YS="r2 r3 r4", FA="l b i6@2", FX="i7@0", FB="r5", PEND=[6,7]),
 10:dict(T0="i0", T2="i1 w0 b r0", CV=[("d",20,"i2"),("d",68,"i3@0")], CE="w2", YS="i4@3 r1 r2", F1="r3", F2="i5@1", FX="i6@2", FB="r4", PEND=[5,6], REST=["7@0"]),
 11:dict(T0="i0", T1="i1", T2="i2 w1 b r0 r1", CV=[("d",14,"i3@0"),("d",56,"i4@1"),("a",70,"w2 b r2"),("a",96,"L2 b"),("d",100,"i5@2")], CE="w4", YS="i6@3 r3 r4", SA="w5", F1="r5", F2="i7@0", FB="r6", XD="p4", PEND=[7]),
 7:dict(FL="i0", T2="i1 w0 b r0", CV=[("d",20,"i2"),("d",68,"i3@0")], CE="w2", YS="i4@3 r1 r2", F1="r3", F2="i5@1", FX="i6@2", FB="r4", PEND=[5,6], REST=["7@0"]),
 4:dict(FL="i0", T2="i1 w0 b r0", CV=[("d",2,"i2"),("d",50,"i3@0")], CE="w2", YS="i4@3 r1 r2", F1="r3", F2="i5@1", FX="i6@2", FB="r4", PEND=[5,6], REST=["7@0"]),
 5:dict(T1="i0", FL="", T2="i1 w0 b r0", CV=[("d",2,"i2"),("d",46,"i3@0"),("a",60,"w1 b r1"),("a",84,"L1 b"),("d",92,"i4@1")], CE="w3", YS="i5@3 r2 r3", SA="w4", F1="r4", F2="i6@2", FX="i7@0", FB="r5", PEND=[6,7]),
 2:dict(FL="i0", T2="i1", CV=[("a",20,"r0"),("d",30,"i2"),("a",70,"w1 b r1"),("d",80,"i3@0"),("a",124,"w2 b r2")], YS="i4@5 i5@1", YA="w4 b r3 r4", GL="i6@2 w5 l b r5", ST="i7@0", PEND=[6,7], FA="p4", FB="p4", XD="p4"),
 9:dict(ST="i0 i1 "+" ".join(f"w{n} l b "+(f"i{n+2} " if n+2<8 else "")+f"r{n}" for n in range(8))+" l b"),
}
slot_of={}
def wops(txt):
    L=[]
    for op in txt.split():
        at=None
        if '@' in op: op,at=op.split('@'); at=int(at)
        k=int(op[1:]) if len(op)>1 else None
        if op[0]=='i': slot_of[k]=SLOT[at if at is not None else k%3]; L+=c_dma(k,slot_of[k])
        elif op[0]=='r': L+=c_read(k,slot_of[k])
        elif op[0]=='w': L.append(('WVM',f"c{k}"))
        elif op[0]=='l': L+=M("s_waitcnt lgkmcnt(0)")
        elif op[0]=='L': L.append(('WLG',f"cr{k}"))
        elif op[0]=='b': L+=M("s_barrier")
        elif op[0]=='p': L+=w2_take(k)
    return L
def PL(): return eval(CFG['plan']) if isinstance(CFG['plan'],str) else PLANS[CFG['plan']]
def Wp(a,point): a.flat(wops(PL().get(point,"")))

def toeplitz(a):
    a("s_waitcnt lgkmcnt(0)\ns_barrier")
    a(f"s_mul_i32 s{sT0}, s{sKH}, {UCH}\ns_add_u32 s{sT0}, s{sT0}, {L_U+512}\nv_add_u32 v54, s{sT0}, v52\nv_add_u32 v78, s{sT0}, v53")
    for rho,(va,off) in enumerate(((54,0),(54,1024),(78,0))):
        d=56+8*rho
        a(f"ds_read_b128 {V(d)}, v{va} offset:{off}\nds_read_b64 {V(d+4,2)}, v{va} offset:{off+16}","raw"); a.lr(2,(L_U,L_U+2*UCH))
    a(f"s_mul_i32 s{sT0}, s{sKH}, {TCH}\ns_add_u32 s{sT0}, s{sT0}, {L_TOEP+32}")
    a(f"v_add_u32 v52, s{sT0}, v52\nv_add_u32 v53, s{sT0}, v53")
    for rho,(va,off) in enumerate(((52,0),(52,1024),(53,0))):
        d=56+8*rho; t=100+12*(rho%2)
        a(f"ds_write_b128 v{va}, {V(d)} offset:{off}")
        for i in range(4): a(f"v_alignbit_b32 v{t+i}, v{d+i+1}, v{d+i}, 16")
        a(f"ds_write_b128 v{va}, {V(t)} offset:{off+TCP}")
        for i in range(4): a(f"v_mov_b32 v{t+4+i}, v{d+i+1}")
        a(f"ds_write_b128 v{va}, {V(t+4)} offset:{off+2*TCP}")
        for i in range(4): a(f"v_alignbit_b32 v{t+8+i}, v{d+i+2}, v{d+i+1}, 16")
        a(f"ds_write_b128 v{va}, {V(t+8)} offset:{off+3*TCP}"); a.lw(16,(L_TOEP,L_TOEP+2*TCH))
        if rho==1: a.waitlg("raw"); a("s_barrier")

def p0(a):
    a.waitvm("kv"); a("s_barrier")
    a.stamp("kv landed","f")
    KR=84; VR=94
    for i in range(5):
        R=4+4*i; a(f"ds_read_b64_tr_b16 {V(KR+2*i,2)}, v83 offset:{L_K+(R>>3)*CHP+(R&7)*128}")
    for i in range(4):
        R=4*i; a(f"ds_read_b64_tr_b16 {V(VR+2*i,2)}, v83 offset:{L_V+(R>>3)*CHP+(R&7)*128}")
    a.lr(9,(L_K,L_V+8*CHP))
    Wp(a,'T0')
    O=16
    if CFG['dot2']:
        a("""v_alignbit_b32 v40, v80, v80, 16
            v_alignbit_b32 v41, v81, v81, 16
            v_and_b32 v42, 0xffff, v80
            v_and_b32 v43, 0xffff0000, v81
            v_and_b32 v44, 0xffff0000, v80
            v_and_b32 v45, 0xffff, v81
            v_or_b32 v44, v44, v45""")
        for i in range(8):
            P=KR+2+i
            a(f"v_dot2_f32_bf16 v{O+2*i}, v{P}, v42, 0\nv_dot2_f32_bf16 v{O+2*i+1}, v{P}, v40, 0")
        for i in range(8):
            P=KR+2+i
            a(f"v_dot2_f32_bf16 v{O+2*i}, v{P-1}, v44, v{O+2*i}\nv_dot2_f32_bf16 v{O+2*i+1}, v{P-1}, v41, v{O+2*i+1}")
        for i in range(8): a(f"v_dot2_f32_bf16 v{O+2*i}, v{KR+i}, v43, v{O+2*i}")
    else:
        a("v_lshlrev_b32 v40, 16, v80\nv_and_b32 v41, 0xffff0000, v80\nv_lshlrev_b32 v42, 16, v81\nv_and_b32 v43, 0xffff0000, v81")
        K=lambda t: 108+t-2
        for i in range(10):
            if i>0: a(f"v_lshlrev_b32 v{102+2*i}, 16, v{KR+i}")
            a(f"v_and_b32 v{103+2*i}, 0xffff0000, v{KR+i}")
        for t in range(16):
            a(f"v_mul_f32 v{O+t}, v40, v{K(t)}")
            a(f"v_fmac_f32 v{O+t}, v41, v{K(t-1)}")
            a(f"v_fmac_f32 v{O+t}, v42, v{K(t-2)}")
            a(f"v_fmac_f32 v{O+t}, v43, v{K(t-3)}")
    for i in range(8):
        a(f"v_lshlrev_b32 v102, 16, v{VR+i}\nv_and_b32 v103, 0xffff0000, v{VR+i}")
        a(f"v_mul_f32 v{O+2*i}, v{O+2*i}, v102\nv_mul_f32 v{O+1+2*i}, v{O+1+2*i}, v103")
    for o in range(2):
        for d in range(4): a(f"v_cvt_pk_bf16_f32 v{KR+4*o+d}, v{O+8*o+7-2*d}, v{O+8*o+6-2*d}")
    for d in range(4): a(f"v_mov_b32 v{102+d}, v{KR+4+d}")
    for d in range(4): a(f"v_mov_b32_dpp v{KR+4+d}, v{KR+d} row_ror:8 row_mask:0xf bank_mask:0x3")
    for d in range(4): a(f"v_mov_b32_dpp v{KR+d}, v{102+d} row_ror:8 row_mask:0xf bank_mask:0xc")
    a(f"s_mov_b32 s{sT0}, 32768")
    a(f"buffer_store_dwordx4 {V(KR)}, v55, {srd(WS)}, 0 offen\nbuffer_store_dwordx4 {V(KR+4)}, v55, {srd(WS)}, s{sT0} offen","kvs")
    if CFG['utouch']==1: a(f"buffer_load_dword v{vTch}, v{vTch}, {srd(WS)}, 0 offen sc1")
    a.stamp("p0 computed","f")
    if CFG['clr']==1: clears(a)
    Wp(a,'T1')
    a(f"s_mov_b32 s{sCH}, s{sHELLO}\ns_getreg_b32 s{sHELLO}, hwreg(HW_REG_XCC_ID, 0, 4)")
    a(f"v_readfirstlane_b32 s{sTAG}, v51")
    a(f"s_add_u32 s{sTAG}, s{sTAG}, 0x9E3779B0\ns_and_b32 s{sTAG}, s{sTAG}, 0xFFFFFFF0\ns_and_b32 s{sHELLO}, s{sHELLO}, 15\ns_or_b32 s{sHELLO}, s{sHELLO}, s{sTAG}")
    a(f"v_mov_b32 v{vTAG}, s{sTAG}\nv_mov_b32 v98, s{sHELLO}")
    a.ext(pp_setup())
    a(f"""s_add_u32 s{sFLH}, s{sFLG}, s{sFL}
        s_lshl_b32 s{sC4}, s{sCHH}, 12
        s_mul_i32 s{sC3}, s{sCHH}, 3072
        s_lshl_b32 s{sM4}, s{sKH}, 14
        s_add_u32 s{sM3}, s{sM4}, s{sC3}
        s_add_u32 s{sM4}, s{sM4}, s{sC4}""")
    a(f"s_lshl_b32 s{sT0}, s{sX}, 2\ns_add_u32 s{sT1}, s{sT0}, s{sWV}\ns_lshl_b32 s{sT1}, s{sT1}, 5\ns_add_u32 s{sT1}, s{sT1}, s{sR}\ns_lshl_b32 s{sT1}, s{sT1}, 2\ns_add_u32 s{sT1}, s{sT1}, {OFF_F1L}")
    a(f"s_lshr_b32 s{sCK1}, s{sR}, 3\ns_add_u32 s{sCK1}, s{sCK1}, s{sT0}\ns_lshl_b32 s{sCK1}, s{sCK1}, 7\ns_add_u32 s{sCK1}, s{sCK1}, {OFF_F1L}")
    a(f"v_and_b32 v97, 31, v{vLane}\nv_lshlrev_b32 v97, 2, v97\ns_mov_b32 s{sMODE}, 0")
    if CFG['tpre']: a.waitvm("ssm"); toeplitz(a)
    a.waitvm("kvs")
    a(f"buffer_store_dword v98, v{vOne}, {srd(WS)}, s{sT1} offen")
    a.stamp("kvT published","f")
    if CFG['clr']==3: clears(a)
    if CFG['qat']==0: a(f"buffer_load_dwordx4 {V(vQT)}, v{vTok}, {srd(SQ_)}, 0 offen\nbuffer_load_dwordx4 {V(vQT+4)}, v{vTok}, {srd(SQ_)}, s{sMB} offen")
    a.flat(extras(0))
    Wp(a,'FL')
    if not CFG['tpre']: toeplitz(a)
    a(f"""s_lshl_b32 s{sT0}, s{sCH}, 12
        s_lshl_b32 s{sT1}, s{sCHH}, 11
        s_add_u32 s{sT0}, s{sT0}, s{sT1}
        s_add_u32 s{sT0}, s{sT0}, {OFF_KVT}
        s_mul_i32 s{sUO}, s{sKH}, {UCH}
        s_add_u32 s{sT1}, s{sT1}, s{sUO}""")
    a.stamp("toeplitz","f")
    o=Asm(); o.lab("L_f1r"); o(f"s_mov_b32 s{sCNT}, 0")
    if CFG['stamps']: site_names.append("f1"); o(f"s_bitset1_b32 s98, {len(site_names)-1}")
    o.lab("L_f1l")
    o(f"""buffer_load_dword v99, v97, {srd(WS)}, s{sCK1} offen sc1
        s_waitcnt vmcnt(0)
        v_cmp_ne_u32 vcc, s{sHELLO}, v99
        s_cbranch_vccz L_f1b
        s_add_u32 s{sCNT}, s{sCNT}, 1
        s_cmp_lt_u32 s{sCNT}, {CFG['f1max']}
        s_cbranch_scc1 L_f1l""")
    o.lab("L_f1s")
    o(f"""s_mov_b32 s{sMODE}, 1
        s_mov_b32 s{sT2}, 32768
        buffer_store_dwordx4 {V(KR)}, v55, {srd(WS)}, 0 offen sc1
        buffer_store_dwordx4 {V(KR+4)}, v55, {srd(WS)}, s{sT2} offen sc1
        s_lshl_b32 s{sT2}, s{sX}, 2
        s_add_u32 s{sT3}, s{sT2}, s{sWV}
        s_lshl_b32 s{sT3}, s{sT3}, 5
        s_add_u32 s{sT3}, s{sT3}, s{sR}
        s_lshl_b32 s{sT3}, s{sT3}, 7
        s_add_u32 s{sT3}, s{sT3}, {OFF_F1}
        s_lshr_b32 s{sCK1}, s{sR}, 3
        s_add_u32 s{sCK1}, s{sCK1}, s{sT2}
        s_lshl_b32 s{sCK1}, s{sCK1}, 12
        s_add_u32 s{sCK1}, s{sCK1}, {OFF_F1}
        v_lshlrev_b32 v97, 5, v97
        s_waitcnt vmcnt(0)
        buffer_store_dword v{vTAG}, v{vOne}, {srd(WS)}, s{sT3} offen sc1
        s_mov_b32 s{sCNT}, 0""")
    o.lab("L_f1g")
    o(f"""buffer_load_dword v99, v97, {srd(WS)}, s{sCK1} offen sc1
        s_waitcnt vmcnt(0)
        v_cmp_ne_u32 vcc, s{sTAG}, v99
        s_cbranch_vccz L_f1b
        s_add_u32 s{sCNT}, s{sCNT}, 1
        s_cmp_lt_u32 s{sCNT}, {POLLMAX}
        s_cbranch_scc1 L_f1g
        s_branch L_f1b""")
    a.ool.append(o.L)
    ck=M(f"v_cmp_ne_u32 vcc, s{sHELLO}, v99\ns_cbranch_vccnz L_f1r\nL_f1b:") if CFG['slow']!=2 else M("s_waitcnt vmcnt(0)\ns_branch L_f1s\nL_f1b:")
    a(f"buffer_load_dword v99, v97, {srd(WS)}, s{sCK1} offen sc1")
    a(f"""s_lshl_b32 s{sT3}, s{sCHH}, 8
        s_sub_u32 s{sT2}, s{sUO}, s{sT3}
        s_add_u32 s{sT2}, s{sT2}, {L_U+480-192}
        v_lshlrev_b32 v141, 5, v{vJ}
        v_lshl_add_u32 v141, v{vQ}, 4, v141
        v_add_u32 v141, s{sT2}, v141
        v_add_u32 v142, 1, v{vJ}
        v_and_b32 v143, 3, v142
        v_mul_u32_u24 v143, {TCP}, v143
        v_lshrrev_b32 v142, 2, v142
        v_lshl_add_u32 v142, v142, 3, v143
        v_lshlrev_b32 v143, 4, v{vQ}
        v_sub_u32 v142, v142, v143
        s_mul_i32 s{sT2}, s{sKH}, {TCH}
        s_add_u32 s{sT2}, s{sT2}, s{sT3}
        s_add_u32 s{sT2}, s{sT2}, {L_TOEP+48}
        v_add_u32 v142, s{sT2}, v142
        s_add_u32 m0, s{sT1}, {L_U+512}""")
    a.flat(ck)
    a.stamp("f1 seen","f")
    a(f"buffer_load_dwordx4 v{vL}, {srd(WS)}, s{sT0} offen sc1 lds","u")
    a(f"buffer_load_dwordx4 v{vL}, {srd(WS)}, s{sT0} offen offset:1024 sc1 lds","u")
    a.lw(2,(L_U+512,L_U+UCH),(L_U+UCH+512,L_U+2*UCH))
    if CFG['clr']==4: clears(a,"clr")
    if CFG['clr'] in(1,3): a(f"buffer_store_dword v98, v{vOne}, {srd(WS)}, s{sHF} offen sc1")
    a.flat(extras(5))
    Wp(a,'T2')
    a(f"v_lshlrev_b32 v{vD}, 16, v{vD}")
    a.waitvm("u"); a("s_waitcnt lgkmcnt(0)\ns_barrier")
    a.stamp("U landed","f")

def conv_backbone():
    ACC=40; GR=72; Ureg=[16,20,24,28,32,36,104,108]
    seq=[]
    for it in range(4):
        o=4*(it&1)
        for e in range(4):
            for w in range(3-e,-1,-1): seq.append((w+e,o+e,o+w,('G',e,it,1),('U',w,it,1),it==0 and e==0))
    n1=len(seq)
    for it in range(4):
        pairs=[(e,w) for e in range(8) for w in range(7-e,max(0,4-e)-1,-1)]
        if it==0: pairs=[p for p in pairs if p[0]<4 and p[1]<4]+[p for p in pairs if not(p[0]<4 and p[1]<4)]
        seen=set()
        for e,w in pairs:
            seq.append((w+e,e,w,('G',e,it,2),('U',w,it,2),it==0 and (w+e) not in seen)); seen.add(w+e)
    reads={}; lastuse={}
    for n,(c,g,u,gid,uid,f) in enumerate(seq):
        for ph,i in ((('G',g),gid),(('U',u),uid)):
            if i not in reads: reads[i]=dict(ph=ph,need=n,earliest=lastuse.get(ph,-1))
            lastuse[ph]=n
    def emit(i):
        kind,k,it,_=i; ph=reads[i]['ph'][1]
        if kind=='U': return [LR(mk(f"ds_read_b128 {V(Ureg[ph])}, v141 offset:{512*k+192-64*it}"),(L_U,L_U+2*UCH))]
        return LR([mk(f"ds_read_b64 {V(GR+4*ph,2)}, v142 offset:{512*k+64*it}"),mk(f"ds_read_b64 {V(GR+4*ph+2,2)}, v142 offset:{512*k+64*it+8}")],(L_TOEP,L_TOEP+2*TCH))
    todo=[]
    for i in sorted(reads,key=lambda i:reads[i]['need']):
        for x in emit(i): todo.append((reads[i]['earliest'],reads[i]['need'],x))
    bb=[x for e,n,x in todo if n<4]; todo=[t for t in todo if t[1]>=4]
    for n,(c,g,u,gid,uid,f) in enumerate(seq):
        bb.append(mk(f"v_mfma_f32_16x16x32_bf16 {V(ACC+4*c)}, {V(GR+4*g)}, {V(Ureg[u])}, {'0' if f else V(ACC+4*c)}"))
        k=0
        while True:
            cand=[t for t in todo if t[0]<=n]
            if not cand: break
            t=cand[0]
            if k>=1 and not(k<2 and t[1]-n<=CFG['cla']) and not t[1]-n<=2: break
            bb.append(t[2]); todo.remove(t); k+=1
    assert not todo
    return bb,n1

def conv_epi(st):
    ACC=40+16*st; P=vPK+4*st; R=(L_CX,L_CX+16384)
    W=LW([mk(f"ds_write_b128 v{vCXw}, {V(ACC+4*k)} offset:{1024*k}",f"cx{st}") for k in range(4)],R)
    K=LR([mk(f"ds_read_b64 {V(vKD+2*k,2)}, v{vKV} offset:{2048*st+512*k}") for k in range(2)],(L_U,L_U+2*UCH))
    L=[]
    for k in range(2): L+=LR(M(f"ds_read_b128 {V(ACC+4*k)}, v{vCXo} offset:{1024*k}\nds_read_b128 {V(ACC+8+4*k)}, v{vCXp} offset:{1024*k}",f"cy{st}"),R)
    for k in range(2):
        A=ACC+4*k
        L+=M(f"v_and_b32 v{vUP}, 0xffff0000, v{vKD+1+2*k}\nv_lshlrev_b32 v{vUP+1}, 16, v{vKD+1+2*k}\nv_and_b32 v{vUP+2}, 0xffff0000, v{vKD+2*k}\nv_lshlrev_b32 v{vUP+3}, 16, v{vKD+2*k}")
        for r in range(4): L+=M(f"v_fmac_f32 v{A+r}, v{vD}, v{vUP+r}")
        for r in range(4): L+=M(f"v_add_f32 v{A+r}, v{A+r}, v{A+8+r}")
        L+=M(f"v_cvt_pk_bf16_f32 v{P+2*k}, v{A}, v{A+1}\nv_cvt_pk_bf16_f32 v{P+1+2*k}, v{A+2}, v{A+3}")
    L+=M(f"s_nop 0\nv_permlane16_swap_b32 v{P}, v{P+2}\nv_permlane16_swap_b32 v{P+1}, v{P+3}")
    L+=M(f"buffer_store_dwordx4 {V(P)}, v{vYo}, {srd(WS)}, {'0' if st==0 else 's%d'%sMB} offen sc1",f"yt{st}")
    return W+K,L

def y_check(a,mu):
    D=vGD+4*mu
    return a.check([f"buffer_load_dwordx4 {V(D)}, v{vGA}, {srd(WS)}, {'0' if mu==0 else 's%d'%sMB} offen sc1"],
         [f"v_max3_u32 v{vGC}, v{D}, v{D+1}, v{D+2}",f"v_max_u32 v{vGC}, v{vGC}, v{D+3}",f"v_cmp_eq_u32 vcc, -1, v{vGC}"],"yt")
def y_stage(a,mu,mid=[]):
    a(f"ds_write_b128 v{vGW}, {V(vGD+4*mu)} offset:{L_YS+4096*mu}"); a.lw(1,(L_YS+4096*mu,L_YS+4096*mu+4096))
    a.flat(mid)
    a("s_waitcnt lgkmcnt(0)\ns_barrier")
    for hh in range(2):
        a(f"ds_read_b64_tr_b16 {V(vYY[mu]+2*hh,2)}, v{vGT} offset:{L_YS+4096*mu+256*hh}")
        a.lr(1,(L_YS+4096*mu,L_YS+4096*mu+4096))

def x0_state(mu):
    S=SX[mu]; L=M(f"v_mov_b32 v{vGC}, 0x3f803f80")
    for i in range(4): L+=M(f"v_lshlrev_b32 v{vXst[mu]+2*i}, 16, v{vQT+4*mu+i}\nv_and_b32 v{vXst[mu]+2*i+1}, 0xffff0000, v{vQT+4*mu+i}")
    for i in range(4):
        q=vQT+4*mu+i
        L+=M(f"v_dot2_f32_bf16 v{S}, v{q}, v{vGC}, {'0' if i==0 else 'v%d'%S}\nv_dot2_f32_bf16 v{S+1}, v{q}, v{q}, {'0' if i==0 else 'v%d'%(S+1)}")
    return L

def conv(a):
    C=CFG
    bb,n1=conv_backbone()
    qld=M(f"""buffer_load_dwordx4 {V(vQT)}, v{vTok}, {srd(SQ_)}, 0 offen
        buffer_load_dwordx4 {V(vQT+4)}, v{vTok}, {srd(SQ_)}, s{sMB} offen
        buffer_load_dword v{vCg}, v{vCg}, {srd(WS)}, 0 offen sc1
        buffer_load_dword v{vCs}, v{vCs}, {srd(WS)}, 0 offen sc1
        buffer_load_dword v{vFT}, v{vFT}, {srd(WS)}, 0 offen sc1""")
    hl,hc=a.check([f"buffer_load_dwordx4 {V(112)}, v{vHa}, {srd(WS)}, 0 offen sc1"],
         [f"v_xor_b32 v113, s{sTAG}, v113",f"v_xor_b32 v114, s{sTAG}, v114",f"v_xor_b32 v115, s{sTAG}, v115",
          "v_or3_b32 v113, v113, v114, v115",f"v_xor_b32 v114, s{sTAG}, v112","v_or_b32 v113, v113, v114","v_cmp_lt_u32 vcc, 15, v113"],"h2")
    pk,ps=pp_pack()
    dmas=paced((qld[:2] if C['qat']==1 else [])+extras(1),3); fill=[]
    for kind,at,ops in PL().get('CV',[]):
        it=wops(ops)
        if kind=='d': dmas+=[('AT',at)]+paced(it,C['cgap'])
        else:
            k=[i for i,x in enumerate(it) if isinstance(x,I) and x.op=='s_barrier']
            if k: it=[it[:k[0]+1]]+it[k[0]+1:]
            fill+=[('AT',at)]+it
    dmas+=[('AT',C['hmid'])]+paced(extras(6),3)
    w0,e0=conv_epi(0)
    gl,a.gcA=y_check(a,0)
    crit=[('AT',n1+2),('DENS',C['cdens'])]+w0+[('GAP',3),[('WLG','cx0'),mk("s_barrier")]]+e0[:-1]+([] if C['clr']==4 else [('AFTER','hl')])+e0[-1:]+[('DENS',0),('SYNC','y0'),('AFTER','hl',C['chc'])]+hc \
        +[[('WLG','cy0'),mk("s_barrier")],('AFTER','y0',C['cack']),('WVM','yt0')]+gl+[('SYNC','g0')]
    ann=[('AT',C['cann']),('WVM','clr')]+M(f"buffer_store_dword v{vTAG}, v{vOne}, {srd(WS)}, s{sHF} offen sc1") if C['clr']==4 else []
    third=ann+[('AT',C['chl'])]+hl+[('SYNC','hl'),('AFTER','g0'),('AFTER','dd')]+paced((qld[:2] if C['qat']==2 else [])+extras(2),2)
    a.weave(bb,crit,dmas+[('SYNC','dd')],fill,third,slots=C['cslots'],name='CV')
    a.stamp("conv mfma done","f")
    w1,e1=conv_epi(1)
    Wp(a,'CE')
    a.flat(w1); a("s_waitcnt lgkmcnt(0)\ns_barrier"); a.flat(e1)
    if CFG.get('trace')=='CV': a("v_mov_b32 v139, v140")
    a.stamp("yT stored","f")
    Wp(a,'Y0')
    a.flat(x0_state(0))
    a.flat(a.gcA)
    a.stamp("yA gathered","f")
    y_stage(a,0,wops(PL().get('SA',"")))
    Wp(a,'ST')
    if CFG['slow']: a(f"s_cmp_lg_u32 s{sMODE}, 0\ns_cbranch_scc1 L_slow")

def unpackY(mu,T):
    L=[]
    for i in range(4): L+=M(f"v_lshlrev_b32 v{T+2*i}, 16, v{vYY[mu]+i}\nv_and_b32 v{T+2*i+1}, 0xffff0000, v{vYY[mu]+i}")
    return L
def treduce(s0,s1,s2,s3,gap=[]):
    return M(f"v_permlane32_swap_b32 v{s0}, v{s2}\nv_permlane32_swap_b32 v{s1}, v{s3}\nv_add_f32 v{s0}, v{s0}, v{s2}\nv_add_f32 v{s1}, v{s1}, v{s3}")+gap+M(f"v_permlane16_swap_b32 v{s0}, v{s1}\nv_add_f32 v{s0}, v{s0}, v{s1}")

SX=[104,106]
def fin1a(mu,S=None):
    X=vXst[mu]; S=SX[mu] if S is None else S
    L=M(f"v_add_f32 v{S}, v{X}, v{X+1}\nv_mul_f32 v{S+1}, v{X}, v{X}")
    for e in range(1,8):
        if e>1: L+=M(f"v_add_f32 v{S}, v{S}, v{X+e}")
        L+=M(f"v_fmac_f32 v{S+1}, v{X+e}, v{X+e}")
    return L
def fin1(a, layer, mu, T, unpacked=False, S=None):
    X=vXst[mu]; L=[] if unpacked else unpackY(mu,T); S=T+8 if S is None else S
    s0=SX[mu] if layer==0 else S
    A=[] if layer==0 else fin1a(mu,S)
    Bq=M(f"v_mul_f32 v{S+2}, v{X}, v{T}\nv_add_f32 v{S+3}, v{T}, v{T+1}")
    for e in range(1,8):
        Bq+=M(f"v_fmac_f32 v{S+2}, v{X+e}, v{T+e}")
        if e>1: Bq+=M(f"v_add_f32 v{S+3}, v{S+3}, v{T+e}")
    while A or Bq:
        if A: L.append(A.pop(0))
        if Bq: L.append(Bq.pop(0))
    L+=treduce(s0,s0+1,S+2,S+3,M(f"s_add_u32 s{sT0}, s{sGR}, {(layer*2+mu)*262144}"))
    L+=M(f"buffer_store_dword v{s0}, v{vGs}, {srd(WS)}, s{sT0} offen{a.sc}")
    return L

def fin2(a, layer, mu, T, Y=None):
    X=vXst[mu]; Gd=T; up=unpackY(mu,T+16) if Y is None else []; Y=T+16 if Y is None else Y
    ld,ck=a.check([f"buffer_load_dwordx4 {V(Gd+4*i)}, v{vGl}, {srd(WS)}, s{sCK2} offen offset:{256*i} sc1" for i in range(4)],
         ([f"v_max3_u32 v{PT}, v{Gd}, v{Gd+1}, v{Gd+2}"]+[f"v_max3_u32 v{PT}, v{PT}, v{Gd+3+2*i}, v{Gd+4+2*i}" for i in range(6)]+[f"v_max_u32 v{PT}, v{PT}, v{Gd+15}"])+[f"v_cmp_eq_u32 vcc, -1, v{PT}"],"gr")
    ld=M(f"s_add_u32 s{sCK2}, s{sGRl}, {(layer*2+mu)*262144}")+ld+up
    L=list(ck)
    for k in range(4): L+=M(f"v_add_f32 v{Gd+k}, v{Gd+k}, v{Gd+4+k}\nv_add_f32 v{Gd+8+k}, v{Gd+8+k}, v{Gd+12+k}")
    for k in (0,2,1,3): L+=M(f"v_add_f32 v{Gd+k}, v{Gd+k}, v{Gd+8+k}")
    L+=treduce(Gd,Gd+1,Gd+2,Gd+3)
    A,B,C,D=Gd,Gd+1,Gd+2,Gd+3
    L+=M(f"v_mov_b32 v{B}, v{A}\nv_permlane16_swap_b32 v{A}, v{B}\nv_mov_b32 v{C}, v{A}\nv_mov_b32 v{D}, v{B}\nv_permlane32_swap_b32 v{A}, v{C}\nv_permlane32_swap_b32 v{B}, v{D}")
    inv="0x3b000000"
    L+=M(f"""v_mul_f32 v{A}, {inv}, v{A}
        v_mul_f32 v{B}, {inv}, v{B}
        v_fma_f32 v{B}, -v{A}, v{A}, v{B}
        v_max_f32 v{B}, 0, v{B}
        v_add_f32 v{B}, 0x3727c5ac, v{B}
        v_rsq_f32 v{B}, v{B}
        v_fma_f32 v{C}, -v{A}, v{D}, v{C}
        v_mul_f32 v{C}, {inv}, v{C}
        v_fma_f32 v{C}, v{B}, v{C}, v{A}
        v_mul_f32 v{A}, v{A}, v{B}""")
    for e in range(8): L+=M(f"v_fma_f32 v{Gd+4+e}, v{X+e}, v{B}, -v{A}")
    for e in range(8): L+=M(f"v_fmac_f32 v{X+e}, v{Gd+4+e}, v{Y+e}")
    for e in range(8): L+=M(f"v_sub_f32 v{Y+e}, v{X+e}, v{C}")
    L+=M(f"s_add_u32 s{sT0}, s{sXS}, {mu*65536}")
    for i in range(4): L+=M(f"v_cvt_pk_bf16_f32 v{Gd+4+i}, v{Y+2*i}, v{Y+2*i+1}")
    L+=M(f"buffer_store_dwordx4 {V(Gd+4)}, v{vL}, {srd(WS)}, s{sT0} offen{a.sc or (' nt' if CFG['ntx']>layer else '')}",f"xs{mu}")
    L+=M(f"v_mul_f32 v{A}, v{Y}, v{Y}")
    for e in range(1,8): L+=M(f"v_fmac_f32 v{A}, v{Y+e}, v{Y+e}")
    L+=M(f"""v_mov_b32 v{B}, v{A}
        s_nop 0
        s_add_u32 s{sT1}, s{sS5}, {(layer*2+mu)*65536}
        v_permlane32_swap_b32 v{A}, v{B}
        v_add_f32 v{A}, v{A}, v{B}
        v_mov_b32 v{B}, v{A}
        v_permlane16_swap_b32 v{A}, v{B}
        v_add_f32 v{A}, v{A}, v{B}""")
    L+=M(f"buffer_store_dword v{A}, v{vS5s}, {srd(WS)}, s{sT1} offen{a.sc}")
    tail=M(f"s_add_u32 s22, s{sFLH}, {XF(layer,mu)}")+[('WVM',f"xs{mu}")]+M(f"buffer_store_dword v{vTAG}, v{vOne}, {srd(WS)}, s22 offen{a.sc}")
    return ld,L,tail

def flag_check(a, off, vaddr, name):
    ld,ck=a.check([f"buffer_load_dword v{PT+1}, v{vaddr}, {srd(WS)}, s{sCK1} offen sc1"],[f"v_cmp_ne_u32 vcc, s{sTAG}, v{PT+1}"],name)
    return M(f"s_lshl_b32 s{sCK1}, s{sFL}, 1\ns_add_u32 s{sCK1}, s{sCK1}, {off}")+ld, ck
XF=lambda layer,mu: OFF_XFLAG+layer*16384+mu*256
HF=lambda layer,k: OFF_HFLAG+layer*16384+k*256

def x_dma(mu, pair, stage, q):
    L=M(f"s_add_u32 m0, s{sXW}, {q+stage*8192}\ns_mov_b32 s{sSOFF}, {mu*65536+pair*32768+stage*8192}")
    for i in range(4): L+=M(f"buffer_load_dwordx4 v{vXD}, {srd(WS)}, s{sSOFF} offen offset:{1024*i} sc1 lds",f"x{mu}{pair}{stage}")
    return LW(L,(q+stage*8192,q+stage*8192+8192),(q+16384+stage*8192,q+16384+stage*8192+8192))
vAS1,vAS2,vAD=136,138,135
def alias_setup():
    return M(f"""s_mul_i32 s{sT0}, s{sG}, {65536-8*HKS*1024}
        s_add_u32 s{sT0}, s{sT0}, {OFF_YT-OFF_H}
        v_and_b32 v{vAS1}, 1, v{vQ}
        v_mul_u32_u24 v{vAS1}, {0x100000-HKS*1024}, v{vAS1}
        s_mul_i32 s{sT1}, s{sRH}, {0x100000-HKS*1024}
        v_add_u32 v{vAS1}, s{sT0}, v{vAS1}
        s_add_u32 s{sT0}, s{sT0}, s{sT1}
        v_add_u32 v{vAS2}, v{vHS2}, v{vAS1}
        v_add_u32 v{vAS1}, v{vHS1}, v{vAS1}
        v_add_u32 v{vAD}, s{sT0}, v{vHD}""")
AL=lambda mu,t: (CFG['alias']>=1 and (mu,t)==(1,1)) or (CFG['alias']>=2 and (mu,t)==(0,0))
def h_dma(mu, t, grp, q):
    n=4 if grp<2 else 3
    L=M(f"s_add_u32 m0, s{sM4 if grp<2 else sM3}, {q+t*8192}\ns_add_u32 s{sSOFF}, s{sC4 if grp<2 else sC3}, {(0 if AL(mu,t) else (mu*4+2*t)*HKS*1024)+grp*8192}")
    for i in range(n): L+=M(f"buffer_load_dwordx4 v{vAD if AL(mu,t) else vHD}, {srd(WS)}, s{sSOFF} offen offset:{1024*i} sc1 lds",f"h{mu}{t}{grp}")
    return LW(L,*[(q+(2*k+t)*8192,q+(2*k+t)*8192+2*n*1024) for k in range(2)])
def h_touch(ks,base=204):
    L=[]
    for k in ks:
        L+=M(f"s_mov_b32 s{sT2}, {2*k*HKS*1024}\nbuffer_load_dword v{base+2*k}, v{vHS1}, {srd(WS)}, s{sT2} offen sc1\nbuffer_load_dword v{base+1+2*k}, v{vHS2}, {srd(WS)}, s{sT2} offen sc1","tch")
    return L
SC1K=lambda: {0:[],2:[k for k in range(4) if not AL(k>>1,k&1)],8:[0,1],3:[],4:[0,1],5:[0,1,2],6:[0,1],7:[0]}[CFG['touch']]
TCHK=lambda: {0:[],2:[],8:[],3:[0,1,2,3],4:[2,3],5:[],6:[],7:[]}[CFG['touch']]
TINK=lambda: {8:[2],5:[3],6:[2,3],7:[1,2,3]}.get(CFG['touch'],[])

_uid=[0]
RING6=[FR+4*k for k in range(6)]; RING8=RING6+[ACC0+16,ACC0+20]
def g1_steps(buf, q, bar=None):
    A=(ACC0,ACC1)[buf]; bar=bar or {}; qo=q&65535; out=[]
    for s in range(16):
        pre=(M(f"v_add_u32 v{vA0}, {q&~65535}, v{vL}") if s==0 else [])+bar.get(s,[])
        rd=[lambda F,tok,s=s,t=t: LR(mk(f"ds_read_b128 {V(F)}, v{vA0} offset:{qo+t*16384+s*1024}",tok),(q+t*16384+s*1024,q+t*16384+s*1024+1024)) for t in range(2)]
        mf=lambda F,s=s: [mk(f"v_mfma_f32_16x16x32_bf16 {V(A+12*t+4*w)}, {W1(s,w)}, {V(F[t])}, {'0' if s==0 else V(A+12*t+4*w)}") for t,w in ([(t,w) for t in range(2) for w in range(3)],[(t,w) for w in range(3) for t in range(2)],[(0,0),(0,1),(0,2),(1,2),(1,1),(1,0)],[(0,0),(1,0),(1,1),(0,1),(0,2),(1,2)])[CFG['o1']]]
        out.append((pre,rd,mf,RING6))
    return out
def g2_steps(qs, bar=None):
    bar=bar or {}; out=[]
    def setq(q): return M(f"s_add_u32 s{sQ}, s{sHK}, {q&~65535}\nv_add_u32 v{vA0}, s{sQ}, v{vL}\ns_add_u32 s{sQ}, s{sHS}, {q&~65535}\nv_add_u32 v{vA1}, s{sQ}, v{vL}")
    for i in range(22):
        q=qs[i>>3]; pre=bar.get(i,[])
        if i%8==0 and (i==0 or (q&~65535)!=(qs[(i>>3)-1]&~65535)): pre=setq(q)+pre
        rd=[lambda F,tok,i=i,q=q,t=t: LR(mk(f"ds_read_b128 {V(F)}, v{(vA0,vA1)[t]} offset:{(q&65535)+(i&7)*1024}",tok),*[(q+w*8192+(i&7)*1024,q+w*8192+(i&7)*1024+1024) for w in range(4)]) for t in (1,0)]
        mf=lambda F,i=i: [mk(f"v_mfma_f32_16x16x32_bf16 {V(ACC0+8*t+4*c)}, {W2(i,c)}, {V(F[1-t])}, {'0' if i==0 else V(ACC0+8*t+4*c)}") for t,c in ([(1,0),(1,1),(0,0),(0,1)],[(1,0),(0,0),(1,1),(0,1)],[(1,0),(1,1),(0,1),(0,0)])[CFG['o2']]]
        out.append((pre,rd,mf,RING8))
    return out
def g2_pass(qs, t, bar=None):
    bar=bar or {}; out=[]
    for i in range(22):
        q=qs[i>>3]; pre=bar.get(i,[])
        if i%8==0 and (i==0 or (q&~65535)!=(qs[(i>>3)-1]&~65535)):
            pre=M(f"s_lshl_b32 s{sQ}, s{sKH}, 14\ns_add_u32 s{sQ}, s{sQ}, {(q&~65535)+t*8192}\nv_add_u32 v{vA0}, s{sQ}, v{vL}")+pre
        rd=[lambda F,tok,i=i,q=q: LR(mk(f"ds_read_b128 {V(F)}, v{vA0} offset:{(q&65535)+(i&7)*1024}",tok),*[(q+(2*k+t)*8192+(i&7)*1024,q+(2*k+t)*8192+(i&7)*1024+1024) for k in range(2)])]
        mf=lambda F,i=i: [mk(f"v_mfma_f32_16x16x32_bf16 {V(ACC1+8*t+4*c)}, {W2(i,c)}, {V(F[0])}, {'0' if i==0 else V(ACC1+8*t+4*c)}") for c in range(2)]
        out.append((pre,rd,mf,RING8))
    return out
def backbone(steps, marks=None):
    marks=marks or {}; LA=CFG['la']
    start=[]; n=0
    for st in steps: start.append(n); n+=len(st[2]([FR]*2))
    start.append(n)
    last={}; F=[]; place={}; pos=-1; toks=[]
    for k,(pre,rd,mf,ring) in enumerate(steps):
        _uid[0]+=1; tok=f"f{_uid[0]}"; toks.append(tok); fs=[]
        for j,r in enumerate(rd):
            u=min([x for x in ring if x not in fs],key=lambda x:last.get(x,-99+ring.index(x)*0.01)); fs.append(u)
            p=max(start[k]-LA+j, last.get(u,-99), pos+1 if pos>=0 else -1)
            p=min(p,start[k]-1) if start[k]>0 else -1
            if p<0: p=-1
            place.setdefault(p,[]).extend((pre if j==0 else [])+[r(u,tok)]); pos=max(pos,p)
        for u in fs: last[u]=start[k+1]-1
        F.append(fs)
    L=list(place.get(-1,[]))+[('WLG',toks[0])]; n=0
    for k,(pre,rd,mf,ring) in enumerate(steps):
        ms=mf(F[k])
        for j,m in enumerate(ms):
            L.append(m); L+=place.get(n,[])
            if j==len(ms)-1 and k+1<len(steps): L.append(('WLG',toks[k+1]))
            n+=1
        L+=marks.get(k,[])
    return L

def g1_epi(a, buf, mu, pair, sc):
    A=(ACC0,ACC1)[buf]; E=EP; L=[]
    n=E; mreg=E+4
    M0=A+8; M1=A+20
    for t in range(2):
        Gt=A+12*t; Ut=Gt+4
        for r in range(4): L+=M(f"v_max_f32 v{Gt+r}, 0, v{Gt+r}")
        for r in range(4): L+=M(f"v_mul_f32 v{Gt+r}, v{Gt+r}, v{Ut+r}")
        L+=M(f"v_cvt_pk_bf16_f32 v{n+2*t}, v{Gt}, v{Gt+1}\nv_cvt_pk_bf16_f32 v{n+2*t+1}, v{Gt+2}, v{Gt+3}")
    for r in range(4): L+=M(f"v_permlane16_swap_b32 v{M0+r}, v{M1+r}")
    L+=M(f"v_permlane16_swap_b32 v{n}, v{n+2}\nv_permlane16_swap_b32 v{n+1}, v{n+3}\ns_mov_b32 s{sT1}, {0 if AL(mu,pair) else (mu*4+2*pair)*HKS*1024}")
    L+=M(f"buffer_store_dwordx4 {V(n)}, v{vAS1 if AL(mu,pair) else vHS1}, {srd(WS)}, s{sT1} offen{sc}",f"hs{mu}{pair}")
    for r in range(4): L+=M(f"v_max_f32 v{M0+r}, 0, v{M0+r}")
    for r in range(4): L+=M(f"v_mul_f32 v{M0+r}, v{M0+r}, v{M1+r}")
    L+=M(f"v_cvt_pk_bf16_f32 v{mreg}, v{M0}, v{M0+1}\nv_cvt_pk_bf16_f32 v{mreg+1}, v{M0+2}, v{M0+3}")
    L+=M(f"v_mov_b32 v{E+6}, v{E+4}\nv_mov_b32 v{E+7}, v{E+5}\ns_nop 0\nv_permlane32_swap_b32 v{E+4}, v{E+6}\nv_permlane32_swap_b32 v{E+5}, v{E+7}")
    L+=M(f"buffer_store_dwordx4 {V(E+4)}, v{vAS2 if AL(mu,pair) else vHS2}, {srd(WS)}, s{sT1} offen{sc}",f"hs{mu}{pair}")
    return L
def h_flag(a, layer, k):
    return M(f"s_add_u32 s22, s{sFLH}, {HF(layer,k)}")+[('WVM',f"hs{k>>1}{k&1}")]+M(f"buffer_store_dword v{vTAG}, v{vOne}, {srd(WS)}, s22 offen{a.sc}")

def s5_get(a, layer, mu):
    T=140
    ld,ck=a.check([f"buffer_load_dwordx4 {V(T)}, v{vS5l}, {srd(WS)}, s{sCK3} offen sc1"],
         [f"v_max3_u32 v{PT+2}, v{T}, v{T+1}, v{T+2}",f"v_max_u32 v{PT+2}, v{PT+2}, v{T+3}",f"v_cmp_eq_u32 vcc, -1, v{PT+2}"],"s5")
    ld=M(f"s_add_u32 s{sCK3}, s{sS5l}, {(layer*2+mu)*65536}")+ld
    L=list(ck)+M(f"""v_add_f32 v{T}, v{T}, v{T+1}
        v_add_f32 v{T+2}, v{T+2}, v{T+3}
        v_add_f32 v{T}, v{T}, v{T+2}
        v_mov_b32 v{T+1}, v{T}
        s_nop 0
        v_permlane32_swap_b32 v{T}, v{T+1}
        v_add_f32 v{T}, v{T}, v{T+1}
        v_mov_b32 v{T+1}, v{T}
        s_nop 0
        v_permlane16_swap_b32 v{T}, v{T+1}
        v_add_f32 v{T}, v{T}, v{T+1}
        v_mul_f32 v{T}, 0x3b000000, v{T}
        v_add_f32 v{T}, 0x3727c5ac, v{T}
        v_rcp_f32 v{vR2}, v{T}""")
    return ld,L
def ex_addr(qspare):
    return M(f"s_add_u32 s{sT0}, s{sHW}, {qspare+6144}\nv_add_u32 v{EP}, s{sT0}, v{vL}\ns_xor_b32 s{sT0}, s{sHW}, 16384\ns_add_u32 s{sT0}, s{sT0}, {qspare+6144}\nv_add_u32 v{EP+1}, s{sT0}, v{vL}")
def g2_tail(mu, qsp, keep, send):
    X=vXst[mu]; R=[(qsp+w*8192+6144,qsp+w*8192+8192) for w in range(4)]
    pre=LW(M(f"ds_write_b128 v{EP}, {V(send)}\nds_write_b128 v{EP}, {V(send+4)} offset:1024",f"ew{mu}"),*R)
    pre+=[mk(f"v_fmac_f32 v{X+e}, v{vR2}, v{keep+e}") for e in range(8)]
    post=LR(M(f"ds_read_b128 {V(send)}, v{EP+1}\nds_read_b128 {V(send+4)}, v{EP+1} offset:1024","ex"),*R)
    post+=[mk(f"v_fmac_f32 v{X+e}, v{vR2}, v{send+e}") for e in range(8)]
    return pre,post
def out_store(a, mu, T):
    X=vXst[mu]
    L=[mk(f"v_cvt_pk_bf16_f32 v{T+i}, v{X+2*i}, v{X+2*i+1}") for i in range(4)]
    return L+M(f"buffer_store_dwordx4 {V(T)}, v{vTok}, {srd(SO_)}, {'0' if mu==0 else 's%d'%sMB} offen{('',' sc1',' nt')[CFG['outsc']]}")

def wbl2(a):
    Lw=a.label("wb"); w=mk("buffer_wbl2 sc1"); w.ghost=1
    return [M(f"s_or_b32 s{sT2}, s{sR}, s{sWV}\ns_cmp_lg_u32 s{sT2}, {CFG['wbid']}\ns_cbranch_scc1 {Lw}")+[w,mk(Lw+":")]]
def finish_kernel(a):
    a(f"s_or_b32 s{sT0}, s2, s{sWV}\ns_cmp_eq_u32 s{sT0}, 0\ns_cselect_b32 s{sT0}, {OFF_NONCE}, {OOB}")
    a(f"buffer_store_dword v{vTAG}, v{vOne}, {srd(WS)}, s{sT0} offen sc1")
    if CFG['stamps'] and a.tag!='S':
        a.stamp("end","*")
        if CFG.get('amp') is not None:
            j=CFG['amp']
            a(f"s_sub_u32 s96, s{STAMP0+j}, s{STAMP0}\ns_mul_i32 s96, s96, {CFG.get('ampk',4)}\ns_add_u32 s96, s96, s{STAMP0+len(stamp_names)-1}")
            a("L_amp:\ns_memrealtime s[100:101]\ns_waitcnt lgkmcnt(0)\ns_sub_u32 s97, s100, s96\ns_cmp_lt_i32 s97, 0\ns_cbranch_scc1 L_amp")
        a("s_memtime s[100:101]\ns_waitcnt lgkmcnt(0)\ns_sub_u32 s99, s100, s99")
        a(f"s_lshl_b32 s{sT0}, s2, 2\ns_add_u32 s{sT0}, s{sT0}, s{sWV}\ns_lshl_b32 s{sT0}, s{sT0}, 8\ns_add_u32 s{sT0}, s{sT0}, {OFF_STAMP}")
        for i in range(len(stamp_names)):
            a(f"v_mov_b32 v40, s{STAMP0+i}")
            a(f"buffer_store_dword v40, v{vOne}, {srd(WS)}, s{sT0} offen offset:{4*i}")
        if CFG.get('trace'): a(f"s_add_u32 s{sT1}, s{sT0}, 0x100000\nbuffer_store_dword v139, v{vFX}, {srd(WS)}, s{sT1} offen")
        a(f"v_mov_b32 v40, s98\nbuffer_store_dword v40, v{vOne}, {srd(WS)}, s{sT0} offen offset:248")
        a(f"v_mov_b32 v40, s99\nbuffer_store_dword v40, v{vOne}, {srd(WS)}, s{sT0} offen offset:252")
    a("s_endpgm")

WV=lambda t:('WVM',t)
WL=lambda t:('WLG',t)
AT=lambda n:('AT',n)

def vm_par(layer):
    C=CFG
    def f(x):
        t=x.tok or ''
        if x.dma:
            if t[0]=='c': return (C['mW'],150,11)
            if t[0]=='h' and layer==0 and 2*int(t[1])+int(t[2]) in SC1K(): return (C['mM'],C['mMs'],8)
            return (C['mL'],C['mLs'],8)
        if t=='tch': return (C['mH'],20,8)
        if t.startswith('w2_'): return (C['mM'],C['mW2'],8)
        if not x.load:
            if x.op.endswith('x4'): return (C['mS1'] if 'sc1' in x.text else C['mS'],70,8)
            return (C['mS1'] if 'sc1' in x.text else 400,10,1)
        if t.endswith(tuple('0123456789')) and '_ppr' in t: return (700,20,22)
        return (C['mL'],25,8) if x.op.endswith('x4') else (C['mL'],10,2)
    return f
def feed(vm,items,t):
    for x in items:
        for y in (x if isinstance(x,list) else [x]):
            if isinstance(y,tuple):
                if y[0]=='WVM': t=max(t,vm.done.get(y[1],t))
            elif y.kind=='vmem': t=vm.issue(y,t)+4
            elif y.kind!='none': t+=4.5
    return t

def body(a):
    P=paced; BY=lambda n:('BY',n); SY=lambda n:('SYNC',n); AF=lambda n,g=0:('AFTER',n,g); GP=lambda n:('GAP',n)
    B=lambda *w:[list(w)+[mk("s_barrier")]]
    C=CFG
    nxs=lambda r,mu: [i for i,x in enumerate(r) if isinstance(x,I) and x.tok==f"xs{mu}"][0]+1
    qs=list(Q)
    a.flat(fin1(a,0,0,ACC0))
    a.stamp("fin1 A","f")
    lA,rA,tA=fin2(a,0,0,ACC0); lB,rB,tB=fin2(a,0,1,232)
    glB,gcB=y_check(a,1)
    pk,ps=pp_pack()
    a.flat(extras(3)); Wp(a,'YS')
    if C['pkat']==2: a.flat(pk); a.flat(ps)
    a.flat(x0_state(1))
    a.waitvm("yt1")
    Wp(a,'F1')
    a.flat(lA); a.flat(glB); a.flat(extras(4)); Wp(a,'F2')
    if C['pkat']==0: a.flat(pk); a.flat(ps)
    a.stamp("yB acked","f")
    a.flat(rA[:10]); Wp(a,'FA'); a.flat(rA[10:]); Wp(a,'FX')
    a.stamp("fin2 A","f")
    a.flat(gcB)
    y_stage(a,1,wops(PL().get('SB',"")))
    a.flat(tA)
    ppf=M(f"buffer_store_dword v{vTAG}, v{vOne}, {srd(WS)}, s{sPF} offen sc1")
    if C['pkat']==1: a.flat(pk); a.flat(ps)
    else: a.waitvm("pps"); a.flat(ppf); ppf=[]
    Wp(a,'FB')
    a.flat(fin1(a,0,1,ACC1))
    a.stamp("fin1 B","f")
    W2Q[:]=w2_loads()
    a(f"s_mul_i32 s{sT0}, s{sCT2}, 43\ns_mul_i32 s{sT1}, s{sKH}, 21\ns_add_u32 s{sT0}, s{sT0}, s{sT1}\ns_lshl_b32 s{sT0}, s{sT0}, 7\ns_add_u32 s{sCK3}, s{sT0}, {OFF_P2F}")
    a(f"v_min_u32 v{PT+3}, 21, v{vLane}\nv_lshlrev_b32 v{PT+3}, 7, v{PT+3}")
    pl_,pc_=a.check([f"buffer_load_dword v{PT+2}, v{PT+3}, {srd(WS)}, s{sCK3} offen sc1"],[f"v_cmp_ne_u32 vcc, s{sTAG}, v{PT+2}"],"pp")
    xl,xc=flag_check(a,XF(0,0),vFX,"xf")
    early='p' in PL().get('XD','')
    Wp(a,'XW'); a.flat(xl)
    if early: a.flat(pl_)
    a.flat(xc)
    if early: a.flat(pc_); pl_=[]; pc_=[]
    a("s_waitcnt lgkmcnt(0)\ns_barrier")
    lead=lB+x_dma(0,0,0,qs[0])+x_dma(0,0,1,qs[0])+(alias_setup() if C['alias'] else [])+rB[:nxs(rB,1)]+wops(PL().get('XD',""))
    a.flat(lead)
    A1,B0,B1,GA,GB,GC=96,192,288,384,472,516
    for layer in range(2):
        g="ab"[layer]
        xa0,xa1,xb0,xb1,e=qs
        hs = lambda k: ' sc1' if (layer==0 and k in SC1K()) else (a.sc or (' nt' if (C['nth'] and layer==1) else ''))
        L0 = layer==0
        a.stamp(f"L{layer} start",g+'m')
        hq=[(xa0,xa1,e),(xb0,xb1,xa0)]
        X=lambda mu,p,q: x_dma(mu,p,0,q)+x_dma(mu,p,1,q)
        H=lambda mu,t,grp: h_dma(mu,t,grp,hq[mu][grp])
        xl,xc=flag_check(a,XF(layer,1),vFX,"xf")
        s7=[]
        def HC(k,after=None,gap=None):
            l,c=flag_check(a,HF(layer,k),vFX if (k==1 and C['alias']>=2) else vFH,"hf")
            s7.extend([AF('xc'),AF(f"f{k}",after or (C['hca0'] if L0 else C['hca']))]+l+[SY(f"l{k}")]+c+[SY(f"c{k}")])
            return [AF(f"c{k}")]
        sl,sr=s5_get(a,layer,0)
        def SB(n,*w):
            if layer==0: return BAR(*w)
            return a.st(n+" pre","c")+list(w)+a.st(n+" waited","c")+[mk("s_barrier")]+a.st(n+" post","c")
        steps = g1_steps(0,xa0,{0:BAR(WV("x000")),8:BAR(WV("x001"))}) + g1_steps(1,xa1,{0:BAR(WV("x011"))}) \
              + g1_steps(0,xb0,{0:BAR(WV("x101"))}) + g1_steps(1,xb1,{0:BAR(WV("x111"))}) \
              + g2_steps(hq[0],{**({i:[WV(f"w2_{i}")] for i in range(22)} if L0 else {}),0:BAR(WV("h010"),WV("h000"),WV("w2_0")),8:BAR(WV("h011"),WV("h001"),WV("w2_8")),16:BAR(WV("h012"),WV("h002"),WV("w2_16"))}) \
              + g2_pass(hq[1],0,{0:BAR(WV("h101"),WV("h100")),16:BAR(WV("h102"))}) + g2_pass(hq[1],1,{0:BAR(WV("h110")),8:BAR(WV("h111")),16:BAR(WV("h112"))})
        marks={15:a.st(f"L{layer} A0",g),31:a.st(f"L{layer} A1",g),47:a.st(f"L{layer} B0",g),63:a.st(f"L{layer} B1",g),85:a.st(f"L{layer} GA",g)}
        bb=backbone(steps,marks)
        def epi(k):
            E=g1_epi(a,k&1,k>>1,k&1,hs(k))
            if k>0 and L0 and C['hold']:
                n=[i for i,x in enumerate(E) if x.kind=='vmem'][0]; E=E[:n]+[AF(f"l{k-1}")]+E[n:]
            if C['alias']>=2 and k in(0,3):
                n=[i for i,x in enumerate(E) if isinstance(x,I) and x.kind=='vmem'][0]; E=E[:n]+[AF('xc' if k==0 else 'c1')]+E[n:]
            if k<3: return [AT(96*(k+1)+2),('DENS',C['dens0'] if L0 else C['dens1'])]+E+[('DENS',0),SY(f"e{k}"),BY(96*(k+2) if k<2 else GA-30)]
            return [AT(GA+1),('DENS',C['dens'])]+E+[('DENS',0),SY("e3")]+sr
        s3=[]
        for k in range(4): s3+=[AF(f"e{k}")]+([AF('h00'),WV('h002'),WV('h001'),WV('h000')] if (k==1 and C['alias']>=2) else [])+h_flag(a,layer,k)+[SY(f"f{k}")]
        YT=ACC1+16
        nq=[xa1,e,xb0,xb1,xa0]
        slB,srB=s5_get(a,layer,1)
        preA,postA=g2_tail(0,e,ACC0,ACC0+8)
        tailA=ex_addr(e)+(unpackY(0,YT) if L0 else [])+slB+[BY(GB),AT(GB+1),('DENS',C['densa'] if L0 else 2)]+preA+[GP(C['exg'])]+B(WL("ew0"))+postA[:2]+[GP(C['exg2'])]+postA[2:]
        if L0:
            lA,rA,tA=fin2(a,1,0,ACC0,YT)
            xlA,xcA=flag_check(a,XF(1,0),vFX,"xf")
            tailA+=fin1(a,1,0,YT,True,ACC0)+[('DENS',0)]+srB+ex_addr(xa0)+[('GAPV',C['gbl'])]+lA+[('DENS',C['dens2'])]+rA[:nxs(rA,0)]+[('DENS',0),SY('r')]+rA[nxs(rA,0):]+unpackY(1,YT)
        else:
            tailA+=out_store(a,0,YT)+[('DENS',0)]+srB+ex_addr(xa0)+([AT(GC+C['wbat'])]+wbl2(a) if C['wbl2'] else [])
        g1=C['g1']
        K=lambda it,c=None,cap=64: bk(it,C['bk'] if c is None else c,cap)
        dl0=(B1-34 if C['alias']>=2 else GA-44)
        sA = HC(0)+K(H(0,0,0))+[BY(dl0),AT(B0-10)]+K(H(0,0,1))+[BY(dl0+4)]+K(H(0,0,2))+[SY('h00'),BY(dl0+6)]
        sB = HC(1)+K(H(0,1,0))+[BY(GA-36)]+K(H(0,1,1))+[BY(GA-4)]+K(H(0,1,2))+[BY(GA+28)]
        sC = HC(2)+K(H(1,0,0))+[BY(GB-34),AT(GA-10)]+K(H(1,0,1))+[BY(GB-30)]
        sD = [AT(GA+54)]+K(H(1,0,2))+[BY(GB)]+HC(3,C['gahl'])+K(H(1,1,0))+[BY(GC-22)]+K(H(1,1,1))+[BY(GC-6)]+K(H(1,1,2))+[BY(GC+10)]
        if L0:
            pl=PL(); pend=pl.get('PEND',[]); rest=pl.get('REST',[])
            s1=[];s2=[]
            for k in rest: s1+=K(wops(f"i{k}"),400)
            rest=[int(str(k).split('@')[0]) for k in rest]
            s1+=[SY('irest')]+K(X(0,1,xa1))+[BY(A1-30)]
            for k in pend: s2+=wops(f"r{k}")+[BY(max(12*k-4,30))]
            last=pend[-1] if pend else None
            if rest:
                s2+=[AF('irest')]+B(WV(f"c{rest[-1]}"))
                for k in rest: s2+=wops(f"r{k}")+[BY(12*k-4)]
                last=rest[-1]
            if last is not None: s2+=[GP(4)]+B(WL(f"cr{last}"))
            s2+=[SY('fr'),AT(C['tin'])]+h_touch(TINK(),127)
            s4=([WV('pps')]+ppf+[GP(40)] if ppf else [])+[AT(C['w2at'])]+pl_+pc_+[AF(C['w2af'])]
            i=(2*CFG.get('w2n',22)-sum(1 for x in W2Q if x.kind=='vmem'))//2
            while W2Q:
                if i==10: s4+=[AF('fB')]
                s4+=K(w2_take(2),C['bkw'],C['capw'])+[BY(GA+4*i-C['w2lead'])]; i+=1
        else:
            s1=[SY('irest'),AF('lB')]+K(X(0,1,xa1))+[BY(A1-30)]; s2=[SY('fr')]; s4=[]
        if L0: s5=[SY('rB')]+rB[nxs(rB,1):]+[SY('fB')]
        else: s5=[AT(C['a0l'])]+lB+[SY('lB'),('DENS',C['densb'])]+rB[:nxs(rB,1)]+[('DENS',0),SY('rB')]+rB[nxs(rB,1):]+[BY(A1)]
        s3=[AF('rB')]+tB+[SY('tB')]+s3
        s1+=[AF('tB',C['a1xl0'] if L0 else C['a1xl'])]+xl+[SY('xl')]+xc+[SY('xc'),AF('fr')]+K(X(1,0,xb0))+[BY(B0-30)]+K(X(1,1,xb1))+[BY(B1-30)]
        s1+=sA+sB+sC+sD
        s6 = ([] if L0 else [AF('xl')])+epi(0)+epi(1)+epi(2)+sl+epi(3)+[BY(GB-12)]+tailA
        vm=VMM(vm_par(layer)); t0=feed(vm,lead,0)
        out,rest=weave(bb,[s3,s7,s1,s4,s2,s5,s6],vm=vm,t0=t0,log=f"L{layer}"+('!' if C.get('v')==2 else '') if (C.get('v') and a.tag=='F') else None)
        a.ext(a.trace(out,CFG.get('tev_',10),f'G{layer}')); a.ext(rest)
        if C.get('v'): print("  leftover after G2(B):",len(rest))
        a.stamp(f"L{layer} GB",g)
        Ls=a.label("sw")
        a(f"s_nop 7\ns_cmp_eq_u32 s{sKH}, 0\ns_cbranch_scc1 {Ls}")
        for k in range(8): a(f"v_swap_b32 v{ACC1+k}, v{ACC1+8+k}")
        a.lab(Ls)
        preB,postB=g2_tail(1,xa0,ACC1,ACC1+8)
        a.flat(preB)
        if L0: a.flat(tA)
        a("s_waitcnt lgkmcnt(0)\ns_barrier")
        a.flat(postB)
        if L0:
            a.flat(fin1(a,1,1,YT,True,ACC1))
            lB,rB,tB=fin2(a,1,1,ACC1,YT)
            a.flat(xlA); a.flat(xcA); lead=X(0,0,nq[0]); a.ext(lead)
        else:
            a.flat(out_store(a,1,YT))
        a.stamp(f"L{layer} tailB",g)
        qs=nq
    finish_kernel(a)

def main():
    a=G('F','')
    entry(a); p0(a); conv(a)
    nfront=len(a.L)
    b=G('S',' sc1'); b.nlab=0
    front=list(a.L)
    body(a)
    rep=[]
    items=finish(a.L,rep)
    print("LDS ordering problems:",lds_check(items))
    for o in a.ool: items+=finish(o)
    items.append(mk("L_fast_end:"))
    if CFG['slow']:
        b.L=front+[mk("L_slow:")]; body(b)
        full=finish(b.L)
        k=[i for i,x in enumerate(full) if x.text=="L_slow:"][0]
        items+=full[k:k+1]+[mk("s_nop 4")]+full[k+1:]
        for o in b.ool: items+=finish(o)
    items.append(mk("L_end:")); items.append(mk("s_endpgm"))
    hdr=open(os.path.join(os.path.dirname(os.path.abspath(__file__)),"header.txt")).read()
    src=kernel_file(NAME,text(items),"; @launch grid=(256,1,1) block=(256,1,1) lds=163840",header=hdr)
    open(sys.argv[1],"w").write(src)
    open("stamp_names.txt","w").write("\n".join(stamp_names)); open("trace_names.txt","w").write("\n".join(trace_names)); open("site_names.txt","w").write(" ".join(site_names))
    n=sum(1 for i in items if i.kind!='none')
    print(f"{n} instructions, {len(src)} bytes of text, {sum(x for x,_ in rep)} nop states padded in fast path")
    if CFG.get('v'):
        for x in rep: print("   pad",x)
main()
```

```python
import sys, os
from asmlib import *
from layout import *

NAME="interleave_layers__ssm_conv_h3__glu_gated_reglu__prompt_kernel"
CFG=dict(afirst=0, idle=1, alias=1, o1=0, o2=0, swz=1, z14=1, tpre=1, dot2=1, a1xl0=30, tin=100, mH=1300, hold=0, hca0=24, dens0=8, mW2=62, hat=2, hmid=100, bk=60, bkw=60, capw=64, mL=350, mLs=80, mM=600, mMs=95, mW=850, mS=600, mS1=950, ssmat=0, nth=1, ntx=2, wbat=24, wbid=0, ppat=1, tat=1, pkat=2, fbpre=1, cg0=30, gbt0=28, xg0=16, w2af='irest', densb=4, qat=1, gbs5=8, la=12, clr=1, utouch=0, f1max=2048, cann=56, plan=18, chl=70, cla=9, cdens=3, cslots=2, chc=20, cack=56, rot=1, cm2=70, cm3=120, a0l=1, a0c=24, a1xl=18, dens=5, fl=30, fl0=52, hca=18, hcg=22, g1=4, g2=5, g3=4, dens1=2, gahl=16, gahc=14, hbgap=4, tev=6, tev2=5, dens2=8, densa=5, exg=2, exg2=4, gbl=16, gbc=14, gbt=28, gbxl=20, b0hl=80, w2at=1, w2gap=5, w2lead=40, rrest=56, cgap=5, warm=1, stamps=0, stop=None, slow=1, prefetch=1, touch=2, dgather=1, dstage=1, wbl2=0, outsc=2)
for a_ in sys.argv[2:]:
    k,v=a_.split('='); CFG[k]=int(v) if v.lstrip('-').isdigit() else v

sX,sR,sWV,sG,sM,sRH,sCT2,sKH,sCHH,sTAG,sHELLO=4,5,6,7,8,9,10,11,12,13,14
sT0,sT1,sT2,sT3=3,15,60,61
sCNT=62; sSOFF=63
WS,SK_,SV_,SQ_,SH_,SWG,SWU,SWD,SO_,SSK,SD_=16,20,24,28,32,36,40,44,48,52,56
srd=lambda b:f"s[{b}:{b+3}]"
sXW,sHW,sHK,sHS,sXS,sFL,sGR,sS5,sGRl,sS5l=64,65,66,67,68,69,70,71,72,73
sW1W,sWo,sHF,sW2B=74,75,76,77
sPS,sPD,sPF,sW20=56,57,58,59
sCK1,sCK2,sCK3,sQ=20,21,24,25
sCH,sUO,sMB=26,27,0
sMODE=34; sFLH=23; sC4,sC3,sM4,sM3=52,53,54,55
sFLG=1
STAMP0=78
Q=[0,32768,65536,98304,131072]
TCP=4160; TCH=4*TCP; L_TOEP=0
L_U=2*TCH; UCH=4608
L_K=L_U+2*UCH; CHP=1056; L_V=L_K+9*CHP
L_CX=L_K
L_YS=0
L_WS=65536; WSL=24576
SLOT=[L_WS+k*WSL for k in range(4)]
L_YS=SLOT[3]+16384
L_PP=SLOT[3]
SLOT=SLOT[:3]+[8192,36864,L_PP]
vL=1; vOne=2; vTok=3; vGs=4; vGl=5; vS5s=6; vS5l=7; vXD=8; vHD=9; vHS1=10; vHS2=11; vFX=12; vFH=13
vTAG=14; vR2=15
vXst=[16,24]; vYY=[32,36]
ACC0,ACC1,FR,vA0,vA1,EP,PT=40,64,88,112,113,114,122
vW2,vT2,vWc0=126,127,128
vW1=[129,130,131]; vTa,vTm,vWc1=132,133,134
vLane,vJ,vQ,vYo,vD=135,136,137,138,139
vCg,vCs=124,125
vHa=15
vCXw,vCXo,vCXp,vKV,vGA,vGW,vGT,vFT=160,161,162,163,164,165,166,167
vKD,vUP,vPK,vGD,vGC,vQT,vTch=168,172,176,184,192,196,193
W2V=144; W2A=192
def W1(s,t): b=(s*3+t)*4; return f"a[{b}:{b+3}]"
def W1h(s,t,hh): b=(s*3+t)*4+2*hh; return f"a[{b}:{b+1}]"
def W2(i,t):
    k=(i*2+t)*4
    return f"v[{W2V+k}:{W2V+k+3}]" if k<112 else f"a[{W2A+k-112}:{W2A+k-112+3}]"
def W2h(i,t,hh):
    k=(i*2+t)*4+2*hh
    return f"v[{W2V+k}:{W2V+k+1}]" if k<112 else f"a[{W2A+k-112}:{W2A+k-112+1}]"
V=lambda b,n=4: f"v[{b}:{b+n-1}]"
OOB=0x7FFFFF00
vST=lambda: 140 if CFG.get('trace')=='CV' else 139
POLLMAX=1<<16
def M(text,tok=None): return [mk(l.strip(),tok) for l in text.split('\n') if l.strip()]
BAR=lambda *pre: list(pre)+[mk("s_barrier")]

trace_names=[]; stamp_names=[]; site_names=[]
class G(Asm):
    def __init__(s,tag='',sc=''):
        super().__init__(); s.tag=tag; s.sc=sc; s.ool=[]
    def st(s,name,grp='m'):
        if not CFG['stamps'] or s.tag=='S': return []
        if grp!='*' and not any(c in str(CFG['stamps']) for c in grp): return []
        stamp_names.append(name); i=len(stamp_names)-1
        assert i<20, "too many stamps"
        return M(f"{'s_memtime' if CFG.get('clk') else 's_memrealtime'} s[100:101]\ns_waitcnt lgkmcnt(0)\ns_mov_b32 s{STAMP0+i}, s100")
    def trace(s, items, every, name):
        if s.tag=='S' or CFG.get('trace')!=name: return items
        out=[]; n=0
        for it in items:
            out.append(it)
            if isinstance(it,I) and it.kind=='mfma':
                if n%every==0 and CFG.get('tr0',0)<=n<CFG.get('tr0',0)+58*every: out+=s.light(f"{name}+{n}")
                n+=1
        return out+s.light(name+" end")+M("s_nop 15\ns_nop 15\ns_nop 15\ns_nop 15")+s.light(None)+s.light(None)
    def light(s,name):
        k=len(trace_names); trace_names.append(name or "")
        L=[]
        if name: x=mk(f"s_memtime s[{90+2*(k%3)}:{91+2*(k%3)}]"); x.light=1; x.defs=set(); L.append(x)
        if k>=2: L+=M(f"v_writelane_b32 v{vST()}, s{90+2*((k-2)%3)}, {k-2}")
        return L
    def stamp(s,name,grp='m'): s.ext(s.st(name,grp))
    def lr(s,n,*r): LR([i for i in s.L[-n:] if isinstance(i,I)],*r)
    def lw(s,n,*r): LW([i for i in s.L[-n:] if isinstance(i,I)],*r)
    def label(s,p): s.nlab+=1; return f"L{s.tag}_{p}_{s.nlab}"
    def check(s, loads, checks, name):
        R=s.label(name+'r'); L=s.label(name+'l'); B=s.label(name+'b')
        o=Asm(); o.lab(R); o(f"s_mov_b32 s{sCNT}, 0")
        if CFG['stamps'] and s.tag!='S':
            n=len(site_names); site_names.append(name); o(f"s_bitset1_b32 s98, {n}")
        o.lab(L)
        for l in loads: o(l)
        o("s_waitcnt vmcnt(0)")
        for c in checks: o(c)
        o(f"s_cbranch_vccz {B}\ns_add_u32 s{sCNT}, s{sCNT}, 1\ns_cmp_lt_u32 s{sCNT}, {POLLMAX}\ns_cbranch_scc1 {L}\ns_branch {B}")
        s.ool.append(o.L)
        ck=[mk(c) for c in checks]
        return [mk(l,R) for l in loads], [('WVM',R)]+ck[:-1]+[[ck[-1],mk(f"s_cbranch_vccnz {R}"),mk(B+":")]]
    def flat(s, items):
        for it in items:
            if isinstance(it,list): s.ext(it)
            elif isinstance(it,tuple) and it[0] in('AT','GAP','GAPV','SYNC','AFTER','BY','DENS','BK'): pass
            else: s.L.append(it)
    def weave(s, bb, *streams, slots=2, name=None):
        out,rest=weave(bb,streams,slots)
        s.ext(s.trace(out,CFG.get('tev_',4),name) if name else out); s.ext(rest)
        if rest and CFG.get('v'): print("  leftover fillers:",len(rest),[getattr(r,'text',r) for r in rest[:2]])

def entry(a):
    a.stamp("entry","*")
    if CFG["stamps"]: a("s_memtime s[100:101]\ns_waitcnt lgkmcnt(0)\ns_mov_b32 s99, s100\ns_mov_b32 s98, 0")
    a("s_cmp_ge_u32 s2, 256\ns_cbranch_scc1 L_end")
    for b,off in ((SK_,8),(SV_,16),(WS,96),(SSK,24),(SH_,32),(SD_,40),(SQ_,0),(SWG,56),(SWU,64),(SWD,72),(SO_,80)):
        a(f"s_load_dwordx2 s[{b}:{b+1}], s[0:1], {off}")
    a(f"v_lshrrev_b32 v40, 6, v0\nv_and_b32 v{vLane}, 63, v0")
    a(f"s_and_b32 s{sX}, s2, 7\ns_lshr_b32 s{sR}, s2, 3")
    a(f"v_readfirstlane_b32 s{sWV}, v40")
    a(f"v_lshlrev_b32 v{vL}, 4, v{vLane}")
    if CFG['prefetch']:
        a(f"s_getpc_b64 s[{sT2}:{sT2+1}]")
        a("L_pc:")
        a(f"s_lshl_b32 s{sT0}, s{sWV}, 5\ns_add_u32 s{sT0}, s{sT0}, s{sR}\ns_lshl_b32 s{sT0}, s{sT0}, 10")
        a(f"v_add_u32 v42, s{sT0}, v{vL}\nv_min_u32 v42, L_fast_end-L_pc-16, v42")
        a(f"v_mov_b32 v43, s{sT2+1}\nv_add_co_u32 v42, vcc, s{sT2}, v42")
        a(f"v_lshrrev_b32 v48, 3, v{vLane}\nv_and_b32 v49, 7, v{vLane}")
        a("v_addc_co_u32 v43, vcc, 0, v43, vcc")
        a("global_load_dwordx4 v[44:47], v[42:43], off")
    else:
        a(f"v_lshrrev_b32 v48, 3, v{vLane}\nv_and_b32 v49, 7, v{vLane}")
    a(f"v_lshlrev_b32 v49, 4, v49\nv_lshl_add_u32 v{vW2}, v48, 10, v49")
    a(f"s_lshl_b32 s{sT0}, s{sR}, 16\ns_lshl_b32 s{sT1}, s{sX}, 7\ns_add_u32 s{sT0}, s{sT0}, s{sT1}")
    a(f"s_sub_u32 s{sT1}, s{sT0}, 8192\nv_add_u32 v49, s{sT1}, v{vW2}")
    a(f"s_lshl_b32 s{sT1}, s{sWV}, 13\ns_add_u32 s{sT0}, s{sT0}, s{sT1}\nv_add_u32 v48, s{sT0}, v{vW2}")
    a(f"s_mul_i32 s{sT1}, s{sWV}, {CHP}\ns_mov_b32 s{sSOFF}, 32768")
    for b,n in ((SK_,2<<20),(SV_,2<<20),(WS,256<<20),(SSK,4096)):
        a(f"s_mov_b32 s{b+2}, {n}\ns_mov_b32 s{b+3}, 0x20000")
    a(f"v_and_b32 v{vJ}, 15, v{vLane}\nv_lshrrev_b32 v{vQ}, 4, v{vLane}")
    a(f"s_lshl_b32 s{sT0}, s{sX}, 6\ns_lshl_b32 s{sT2}, s{sWV}, 4\ns_add_u32 s{sT0}, s{sT0}, s{sT2}\nv_add_u32 v55, s{sT0}, v{vJ}")
    a(f"v_lshlrev_b32 v78, 3, v55\nv_mov_b32 v50, 0")
    a(f"s_add_u32 m0, s{sT1}, {L_K+CHP}\ns_mov_b32 s{sT2}, {L_V+8*CHP}")
    a("s_waitcnt lgkmcnt(0)"); a.stamp("kernarg","f")
    if CFG.get('probe'):
        if CFG['probe']==1: a("s_load_dwordx2 s[96:97], s[0:1], 48\ns_waitcnt lgkmcnt(0)\ns_mov_b32 s98, 0x200000\ns_mov_b32 s99, 0x20000"); S="s[96:99]"; base=0
        else: S=srd(WS); base=CFG['probe']<<24
        a(f"s_lshl_b32 s95, s2, 2\ns_add_u32 s95, s95, s{sWV}\ns_lshl_b32 s95, s95, 11\ns_add_u32 s95, s95, {base}\nv_mov_b32 v60, s95")
        for i in range(16):
            a(f"buffer_load_dword v61, v60, {S}, 0 offen offset:{128*i}\nv_and_b32 v61, 0, v61\nv_add_u32 v60, v60, v61")
    a(f"buffer_load_dwordx4 v48, {srd(SK_)}, 0 offen lds","kv")
    a(f"s_add_u32 m0, s{sT1}, {L_V}");       a(f"buffer_load_dwordx4 v48, {srd(SV_)}, 0 offen lds","kv")
    a(f"s_add_u32 m0, s{sT1}, {L_K+5*CHP}"); a(f"buffer_load_dwordx4 v48, {srd(SK_)}, s{sSOFF} offen lds","kv")
    a(f"s_add_u32 m0, s{sT1}, {L_V+4*CHP}"); a(f"buffer_load_dwordx4 v48, {srd(SV_)}, s{sSOFF} offen lds","kv")
    a(f"s_cmp_eq_u32 s{sWV}, 3\ns_cselect_b32 m0, {L_K}, s{sT2}\ns_cselect_b32 s{sSOFF}, 0, {OOB}")
    a(f"buffer_load_dwordx4 v49, {srd(SK_)}, s{sSOFF} offen lds","kv")
    a.lw(13,(L_K,L_V+8*CHP+1024))
    a(f"buffer_load_dwordx2 {V(80,2)}, v78, {srd(SSK)}, 0 offen")
    a(f"buffer_load_dword v51, v50, {srd(WS)}, 0 offen sc1")
    a.stamp("kv issued","f")
    for b,n in ((SH_,4096),(SD_,1024),(SQ_,2<<20),(SWG,512*1376*2),(SWU,512*1376*2),(SWD,512*1376*2),(SO_,2<<20)):
        a(f"s_mov_b32 s{b+2}, {n}\ns_mov_b32 s{b+3}, 0x20000")
    a(f"""s_lshr_b32 s{sT0}, s{sR}, 4
        s_lshl_b32 s{sG}, s{sX}, 1
        s_add_u32 s{sG}, s{sG}, s{sT0}
        s_and_b32 s{sM}, s{sR}, 15
        s_lshr_b32 s{sRH}, s{sM}, 3
        s_and_b32 s{sCT2}, s{sM}, 7
        s_lshr_b32 s{sKH}, s{sWV}, 1
        s_and_b32 s{sCHH}, s{sWV}, 1
        s_mov_b32 s{sMB}, 0x100000""")
    a(f"s_cmp_eq_u32 s{sM}, 15\ns_cselect_b32 s{SWG+2}, 0, s{SWG+2}\ns_cselect_b32 s{SWU+2}, 0, s{SWU+2}")
    a(f"s_lshl_b32 s{sT0}, s{sX}, 6\ns_lshl_b32 s{sT1}, s{sR}, 1\ns_add_u32 s{sT0}, s{sT0}, s{sT1}\ns_add_u32 s{sT2}, s{sT0}, s{sKH}")
    a(f"s_lshl_b32 s{sT0}, s{sT2}, 12\ns_add_u32 s{SH_}, s{SH_}, s{sT0}\ns_addc_u32 s{SH_+1}, s{SH_+1}, 0")
    a(f"s_lshl_b32 s{sT0}, s{sCHH}, 11\nv_add_u32 v52, s{sT0}, v{vL}")
    a(f"v_min_u32 v53, 1, v{vLane}\nv_lshlrev_b32 v53, 4, v53\nv_subrev_u32 v53, 32, v53")
    a(f"s_lshl_b32 s{sT0}, s{sT2}, 1\nv_mov_b32 v{vD}, s{sT0}")
    if CFG['ssmat']==0: ssm_loads(a)
    a(f"""v_and_b32 v96, 1, v{vQ}
        v_lshlrev_b32 v96, 2, v96
        v_lshrrev_b32 v97, 2, v{vJ}
        v_add_u32 v96, v96, v97
        v_lshlrev_b32 v96, 16, v96
        v_and_b32 v97, 3, v{vJ}
        v_lshl_add_u32 v96, v97, 5, v96
        v_lshrrev_b32 v97, 1, v{vQ}
        v_lshl_add_u32 v96, v97, 4, v96
        s_lshl_b32 s{sT0}, s{sCHH}, 19
        s_lshl_b32 s{sT1}, s{sT2}, 7
        s_add_u32 s{sT0}, s{sT0}, s{sT1}
        s_add_u32 s{sT0}, s{sT0}, {OFF_YT}
        v_add_u32 v{vYo}, s{sT0}, v96
        s_mov_b32 s{sHELLO}, s{sT2}""")
    a(f"v_mov_b32 v{vOne}, {OOB}\nv_cmp_eq_u32 vcc, 0, v{vLane}\nv_cndmask_b32 v{vOne}, v{vOne}, v50, vcc")
    a(f"""s_lshl_b32 s{sT0}, s{sG}, 2
        s_lshl_b32 s{sT1}, s{sRH}, 1
        s_add_u32 s{sT1}, s{sT1}, s{sKH}
        s_add_u32 s{sT0}, s{sT0}, s{sT1}
        s_lshl_b32 s{sT1}, s{sKH}, 1
        s_add_u32 s{sT1}, s{sT1}, s{sRH}""")
    a(f"""s_lshl_b32 s{sGRl}, s{sT0}, 12
        s_add_u32 s{sGRl}, s{sGRl}, {OFF_GRAN}
        s_lshl_b32 s{sS5l}, s{sT0}, 10
        s_add_u32 s{sS5l}, s{sS5l}, {OFF_S5}
        s_lshl_b32 s{sT3}, s{sCT2}, 1
        s_add_u32 s{sT3}, s{sT3}, s{sCHH}""")
    a(f"""s_lshl_b32 s{sGR}, s{sT3}, 8
        s_add_u32 s{sGR}, s{sGR}, s{sGRl}
        s_lshl_b32 s{sS5}, s{sT3}, 2
        s_add_u32 s{sS5}, s{sS5}, s{sS5l}
        s_lshl_b32 s{sXS}, s{sG}, 17
        s_lshl_b32 s{sT1}, s{sT1}, 14
        s_add_u32 s{sXS}, s{sXS}, s{sT1}
        s_lshl_b32 s{sT1}, s{sX}, {1 if CFG['rot'] else 8}
        s_sub_u32 s{sT1}, s{sT3}, s{sT1}
        s_and_b32 s{sT1}, s{sT1}, 15
        s_lshl_b32 s{sT1}, s{sT1}, 10
        s_add_u32 s{sXS}, s{sXS}, s{sT1}
        s_add_u32 s{sXS}, s{sXS}, {OFF_XF}
        s_lshl_b32 s{sT0}, s{sT0}, 14
        s_lshl_b32 s{sT1}, s{sT3}, 6
        s_add_u32 s{sT0}, s{sT0}, s{sT1}""")
    a(f"v_lshlrev_b32 v{vTok}, 10, v{vJ}\nv_lshl_add_u32 v{vTok}, v{vQ}, 4, v{vTok}\nv_add_u32 v{vTok}, s{sT0}, v{vTok}")
    a(f"v_lshlrev_b32 v{vGs}, 4, v{vJ}\nv_lshl_add_u32 v{vGl}, v{vQ}, 10, v{vGs}\nv_lshl_add_u32 v{vGs}, v{vQ}, 2, v{vGs}")
    a(f"v_lshlrev_b32 v{vS5l}, 6, v{vJ}\nv_mov_b32 v{vS5s}, {OOB}\nv_cmp_eq_u32 vcc, 0, v{vQ}\nv_cndmask_b32 v{vS5s}, v{vS5s}, v{vS5l}, vcc")
    a(f"v_lshl_add_u32 v{vS5l}, v{vQ}, 4, v{vS5l}")
    a(f"s_lshl_b32 s{sT0}, s{sX}, 5\ns_add_u32 s{sT0}, s{sT0}, s{sR}\ns_lshl_b32 s{sHF}, s{sT0}, 7\ns_lshl_b32 s{sT0}, s{sWV}, 2\ns_add_u32 s{sHF}, s{sHF}, s{sT0}\ns_add_u32 s{sHF}, s{sHF}, {OFF_HELLO}")
    a(f"""s_lshl_b32 s{sXW}, s{sCHH}, 14
        s_lshl_b32 s{sT0}, s{sKH}, 12
        s_add_u32 s{sXW}, s{sXW}, s{sT0}
        s_lshl_b32 s{sT0}, s{sG}, 17
        s_add_u32 s{sT0}, s{sT0}, s{sXW}
        s_add_u32 s{sT0}, s{sT0}, {OFF_XF}
        v_add_u32 v{vXD}, s{sT0}, v{vL}
        s_lshl_b32 s{sHW}, s{sWV}, 13
        s_mul_i32 s{sHK}, s{sKH}, {3*8192}
        s_lshl_b32 s{sHS}, s{sKH}, 13
        s_add_u32 s{sHS}, s{sHS}, 8192
        s_lshl_b32 s{sT0}, s{sG}, 3
        s_add_u32 s{sT1}, s{sRH}, s{sT0}
        s_mul_i32 s{sT1}, s{sT1}, {HKS}
        s_mul_i32 s{sT3}, s{sKH}, 21
        s_add_u32 s{sT1}, s{sT1}, s{sT3}
        s_lshl_b32 s{sT1}, s{sT1}, 10
        s_add_u32 s{sT1}, s{sT1}, {OFF_H}
        v_add_u32 v{vHD}, s{sT1}, v{vL}""")
    a(f"""s_mul_i32 s{sT0}, s{sT0}, {HKS*1024}
        s_mul_i32 s{sT1}, s{sM}, 12
        s_mul_i32 s{sT3}, s{sWV}, 3
        s_add_u32 s{sT1}, s{sT1}, s{sT3}
        s_lshl_b32 s{sT1}, s{sT1}, 8
        s_add_u32 s{sT0}, s{sT0}, s{sT1}
        s_add_u32 s{sT0}, s{sT0}, {OFF_H}
        s_mov_b32 s{sT1}, {HKS*1024}
        v_lshlrev_b32 v97, 4, v{vJ}
        v_add_u32 v97, s{sT0}, v97
        v_and_b32 v98, 1, v{vQ}
        v_mad_u32_u24 v{vHS1}, v98, s{sT1}, v97
        v_add_u32 v{vHS2}, 512, v{vHS1}
        v_cmp_gt_u32 vcc, 32, v{vLane}
        v_mov_b32 v97, {OOB}
        v_cndmask_b32 v{vHS2}, v97, v{vHS2}, vcc
        v_lshrrev_b32 v98, 1, v{vQ}
        v_lshl_add_u32 v{vHS1}, v98, 8, v{vHS1}
        v_lshlrev_b32 v{vFX}, 2, v{vLane}
        v_min_u32 v{vFH}, 57, v{vLane}
        v_lshlrev_b32 v{vFH}, 2, v{vFH}
        s_lshl_b32 s{sFL}, s{sG}, 9
        s_lshl_b32 s{sFLG}, s{sM}, 2
        s_add_u32 s{sFLG}, s{sFLG}, s{sWV}
        s_lshl_b32 s{sFLG}, s{sFLG}, 2
        s_add_u32 s{sFLG}, s{sFLG}, s{sFL}
        s_nop 0""")
    if CFG['idle']:
        a(f"""s_lshl_b32 s{sT0}, s{sM}, 2
            s_add_u32 s{sT0}, s{sT0}, s{sWV}
            s_cmp_ge_u32 s{sT0}, 58
            s_cselect_b32 s{sT0}, 0x40000000, 0
            v_or_b32 v{vHS1}, s{sT0}, v{vHS1}
            v_or_b32 v{vHS2}, s{sT0}, v{vHS2}
            s_cmp_eq_u32 s{sM}, 15
            s_cselect_b32 s{sT0}, 0x40000000, 0
            v_or_b32 v{vXD}, s{sT0}, v{vXD}""")
    w_setup(a)
    a(f"""v_mul_u32_u24 v83, {2*CHP}, v{vQ}
        v_bfe_u32 v101, v{vLane}, 2, 2
        v_lshl_add_u32 v83, v101, 7, v83
        v_and_b32 v101, 3, v{vLane}
        v_lshl_add_u32 v83, v101, 3, v83
        s_lshl_b32 s{sT0}, s{sWV}, 5
        v_add_u32 v83, s{sT0}, v83""")
    a(f"v_and_b32 v55, -9, v55\nv_lshlrev_b32 v55, 12, v55\nv_lshl_add_u32 v55, v{vQ}, 5, v55\nv_lshrrev_b32 v101, 3, v{vJ}\nv_lshl_add_u32 v55, v101, 4, v55\ns_lshl_b32 s{sT0}, s{sR}, 7\ns_add_u32 s{sT0}, s{sT0}, {OFF_KVT}\nv_add_u32 v55, s{sT0}, v55")
    a(f"v_lshrrev_b32 v100, 5, v{vLane}\nv_mul_u32_u24 v100, {UCH-512}, v100\nv_add_u32 v100, v100, v{vL}")
    a("v_mov_b32 v104, 0\nv_mov_b32 v105, 0\nv_mov_b32 v106, 0\nv_mov_b32 v107, 0")
    a(f"ds_write_b128 v100, {V(104)} offset:{L_U}"); a.lw(1,(L_U,L_U+512),(L_U+UCH,L_U+UCH+512))
    a(f"""s_lshl_b32 s{sT0}, s{sWV}, 12
        s_add_u32 s{sT1}, s{sT0}, {L_CX}
        v_add_u32 v{vCXw}, s{sT1}, v{vL}
        s_lshl_b32 s{sT2}, s{sCHH}, 11
        v_add_u32 v{vCXo}, s{sT2}, v{vCXw}
        v_xor_b32 v{vCXp}, 4096, v{vL}
        s_xor_b32 s{sT0}, s{sT0}, 4096
        s_add_u32 s{sT0}, s{sT0}, s{sT2}
        s_add_u32 s{sT0}, s{sT0}, {L_CX}
        v_add_u32 v{vCXp}, s{sT0}, v{vL}
        s_lshl_b32 s{sT0}, s{sCHH}, 10
        s_mul_i32 s{sT1}, s{sKH}, {UCH}
        s_add_u32 s{sT0}, s{sT0}, s{sT1}
        s_add_u32 s{sT0}, s{sT0}, {L_U+512+8}
        v_lshlrev_b32 v{vKV}, 5, v{vJ}
        v_lshrrev_b32 v100, 1, v{vQ}
        v_lshl_add_u32 v{vKV}, v100, 4, v{vKV}
        v_and_b32 v100, 1, v{vQ}
        v_lshlrev_b32 v100, 3, v100
        v_sub_u32 v{vKV}, v{vKV}, v100
        v_add_u32 v{vKV}, s{sT0}, v{vKV}
        v_lshrrev_b32 v100, 2, v0
        v_lshlrev_b32 v100, 7, v100
        v_and_b32 v101, 3, v0
        v_lshl_add_u32 v100, v101, 4, v100
        s_lshl_b32 s{sT0}, s{sG}, 16
        s_lshl_b32 s{sT1}, s{sCT2}, 13
        s_add_u32 s{sT0}, s{sT0}, s{sT1}
        s_lshl_b32 s{sT1}, s{sRH}, 6
        s_add_u32 s{sT0}, s{sT0}, s{sT1}
        s_add_u32 s{sT0}, s{sT0}, {OFF_YT}
        v_add_u32 v{vGA}, s{sT0}, v100
        v_lshlrev_b32 v{vGW}, 4, v0
        v_add_u32 v{vGW}, {L_YS}, v{vGW}
        v_bfe_u32 v100, v{vLane}, 2, 2
        v_lshl_add_u32 v100, v{vQ}, 3, v100
        v_lshlrev_b32 v100, 6, v100
        v_and_b32 v101, 3, v{vLane}
        v_lshl_add_u32 v100, v101, 3, v100
        s_lshl_b32 s{sT0}, s{sCHH}, 11
        s_lshl_b32 s{sT1}, s{sKH}, 5
        s_add_u32 s{sT0}, s{sT0}, s{sT1}
        s_add_u32 s{sT0}, s{sT0}, {L_YS}
        v_add_u32 v{vGT}, s{sT0}, v100
        v_and_b32 v100, 7, v{vLane}
        v_lshlrev_b32 v100, 7, v100
        v_bfe_u32 v101, v{vLane}, 3, 2
        v_lshl_add_u32 v100, v101, 14, v100
        s_lshl_b32 s{sT0}, s{sFL}, 1
        s_add_u32 s{sT0}, s{sT0}, {OFF_XFLAG}
        v_add_u32 v{vFT}, s{sT0}, v100
        v_and_b32 v100, 31, v{vLane}
        v_lshlrev_b32 v100, 7, v100
        v_cmp_gt_u32 vcc, 32, v{vLane}
        s_lshl_b32 s{sT0}, s{sCT2}, 12
        s_lshl_b32 s{sT1}, s{sX}, 12
        v_mov_b32 v101, s{sT0}
        v_mov_b32 v102, s{sT1}
        v_cndmask_b32 v101, v101, v102, vcc
        v_add_u32 v100, {OFF_HELLO}, v100
        v_add_u32 v{vHa}, v100, v101""")
    a(f"""s_lshl_b32 s{sT0}, s{sHELLO}, 12
        s_lshl_b32 s{sT1}, s{sCHH}, 11
        s_add_u32 s{sT0}, s{sT0}, s{sT1}
        s_add_u32 s{sT0}, s{sT0}, {OFF_KVT}
        v_lshlrev_b32 v100, 7, v{vLane}
        v_add_u32 v100, s{sT0}, v100
        s_lshr_b32 s{sT0}, s{sR}, 3
        s_lshl_b32 s{sT1}, s{sX}, 2
        s_add_u32 s{sT0}, s{sT0}, s{sT1}
        s_lshl_b32 s{sT0}, s{sT0}, 7
        s_add_u32 s{sT0}, s{sT0}, {OFF_F1L}
        v_mov_b32 v101, s{sT0}
        v_cmp_gt_u32 vcc, 16, v{vLane}
        v_cndmask_b32 v{vTch}, v101, v100, vcc""")
    if CFG['utouch']==0: a(f"buffer_load_dword v{vTch}, v{vTch}, {srd(WS)}, 0 offen sc1")
    if CFG['ssmat']==1: ssm_loads(a)
    a(f"""v_lshlrev_b32 v{vCg}, 4, v{vJ}
        v_lshl_add_u32 v{vCg}, v{vQ}, 18, v{vCg}
        v_lshrrev_b32 v{vCs}, 3, v{vLane}
        v_lshlrev_b32 v{vCs}, 16, v{vCs}
        v_and_b32 v100, 7, v{vLane}
        v_lshl_add_u32 v{vCs}, v100, 4, v{vCs}
        s_lshl_b32 s{sT0}, s{sCHH}, 17
        s_lshl_b32 s{sT1}, s{sCT2}, 7
        s_add_u32 s{sT0}, s{sT0}, s{sT1}
        s_add_u32 s{sT0}, s{sT0}, s{sS5l}
        v_add_u32 v{vCs}, s{sT0}, v{vCs}
        v_cmp_gt_u32 vcc, 16, v{vLane}
        v_mov_b32 v100, {OOB}
        v_add_u32 v{vCg}, s{sGR}, v{vCg}
        v_cndmask_b32 v{vCs}, v100, v{vCs}, vcc""")
    if CFG['clr']==0: clears(a)
    a.stamp("setup done","f")

def ssm_loads(a):
    a(f"s_mul_i32 s{sT0}, s{sKH}, {UCH}\ns_lshl_b32 s{sT1}, s{sCHH}, 11\ns_add_u32 s{sT0}, s{sT0}, s{sT1}\ns_add_u32 m0, s{sT0}, {L_U+512}")
    a(f"buffer_load_dwordx4 v{vL}, {srd(SH_)}, s{sT1} offen lds\nbuffer_load_dwordx4 v{vL}, {srd(SH_)}, s{sT1} offen offset:1024 lds","ssm")
    a.lw(2,(L_U+512,L_U+UCH),(L_U+UCH+512,L_U+2*UCH))
    a(f"buffer_load_ushort v{vD}, v{vD}, {srd(SD_)}, 0 offen")

def clears(a,tok=None):
    a("v_mov_b32 v112, -1\nv_mov_b32 v113, -1\nv_mov_b32 v114, -1\nv_mov_b32 v115, -1")
    a(f"""buffer_store_dwordx4 {V(112)}, v{vYo}, {srd(WS)}, 0 offen sc1
        buffer_store_dwordx4 {V(112)}, v{vYo}, {srd(WS)}, s{sMB} offen sc1
        buffer_store_dwordx4 {V(112)}, v{vCg}, {srd(WS)}, 0 offen sc1
        buffer_store_dwordx4 {V(112)}, v{vCs}, {srd(WS)}, 0 offen sc1""",tok)

def w_setup(a):
    lane,j,q=vLane,vJ,vQ
    for b in range(3):
        a(f"v_add_u32 v100, {64*b}, v{lane}\nv_mul_u32_u24 v101, 43691, v100\nv_lshrrev_b32 v101, 19, v101")
        a(f"v_mul_u32_u24 v102, 12, v101\nv_sub_u32 v100, v100, v102\nv_lshlrev_b32 v100, 4, v100")
        if CFG['swz']:
            a("v_lshrrev_b32 v102, 3, v101\nv_lshlrev_b32 v102, 5, v102\nv_sub_u32 v100, v100, v102\nv_add_u32 v102, 192, v100\nv_min_u32 v100, v100, v102")
        a(f"v_mul_u32_u24 v101, 2752, v101\nv_add_u32 v{vW1[b]}, v100, v101")
        if CFG['z14']: a(f"s_cmp_eq_u32 s{sM}, 14\ns_cselect_b32 s{sT0}, 64, 192\nv_cmp_gt_u32 vcc, s{sT0}, v100\nv_mov_b32 v101, 0x40000000\nv_cndmask_b32 v{vW1[b]}, v101, v{vW1[b]}, vcc")
    a(f"s_mul_i32 s{sT0}, s{sWV}, {16*2752}\ns_mul_i32 s{sT1}, s{sM}, 192\ns_add_u32 s{sT0}, s{sT0}, s{sT1}")
    for b in range(3):
        a(f"v_add_u32 v{vW1[b]}, s{sT0}, v{vW1[b]}")
        if b: a(f"v_subrev_u32 v{vW1[b]}, {1024*b}, v{vW1[b]}")
    a(f"""v_bfe_u32 v100, v{lane}, 2, 2
        v_lshl_add_u32 v100, v{q}, 3, v100
        v_and_b32 v101, 3, v{lane}
        v_mul_u32_u24 v102, 192, v100
        s_mul_i32 s{sT0}, s{sWV}, 48
        v_and_b32 v104, {1 if CFG['swz'] else 0}, v{q}
        v_lshlrev_b32 v104, 5, v104
        v_add_u32 v104, s{sT0}, v104
        v_lshl_add_u32 v103, v101, 3, v104
        v_subrev_u32 v105, 192, v103
        v_min_u32 v103, v103, v105
        v_add_u32 v{vTa}, v102, v103
        v_lshrrev_b32 v103, 1, v101
        v_lshl_add_u32 v103, v103, 3, v104
        v_add_u32 v103, 32, v103
        v_subrev_u32 v105, 192, v103
        v_min_u32 v103, v103, v105
        v_add_u32 v102, v102, v103
        v_and_b32 v103, 1, v101
        v_mul_u32_u24 v103, 12288, v103
        v_add_u32 v{vTm}, v102, v103
        v_lshlrev_b32 v102, 7, v100
        v_lshl_add_u32 v102, v101, 4, v102
        s_lshl_b32 s{sT1}, s{sWV}, 12
        s_add_u32 s{sT1}, s{sT1}, {L_PP}
        v_add_u32 v{vT2}, s{sT1}, v102
        s_mul_i32 s{sW1W}, s{sWV}, 3072""")

def c_dma(n, slot):
    if CFG.get('now1'): return []
    L=M(f"s_add_u32 s{sWo}, s{sX}, {n}\ns_and_b32 s{sWo}, s{sWo}, 7\ns_mul_i32 s{sWo}, s{sWo}, {64*2752}") if CFG['rot'] else M(f"s_mov_b32 s{sWo}, {n*64*2752}")
    for mat,S in ((0,SWG),(1,SWU)):
        L+=M(f"s_add_u32 m0, s{sW1W}, {slot+mat*12288}")
        for b in range(3): L+=M(f"buffer_load_dwordx4 v{vW1[b]}, {srd(S)}, s{sWo} offen offset:{1024*b} lds",f"c{n}")
    return LW(L,(slot,slot+WSL))
def c_read(n, slot):
    if CFG.get('now1'): return []
    L=M(f"v_add_u32 v{vWc0}, {slot}, v{vTa}\nv_add_u32 v{vWc1}, {slot}, v{vTm}")
    for sp in range(2):
        s=2*n+sp
        for hh in range(2):
            o=sp*6144+hh*768
            L+=M(f"""ds_read_b64_tr_b16 {W1h(s,0,hh)}, v{vWc0} offset:{o}
                     ds_read_b64_tr_b16 {W1h(s,1,hh)}, v{vWc0} offset:{o+12288}
                     ds_read_b64_tr_b16 {W1h(s,2,hh)}, v{vWc1} offset:{o}""",f"cr{n}")
    return LR(L,(slot,slot+WSL))
def pp_setup():
    return M(f"""s_lshl_b32 s{sT0}, s{sWV}, 8
        s_add_u32 s{sT0}, s{sT0}, s2
        s_mul_i32 s{sT1}, s{sT0}, 1525
        s_lshr_b32 s{sT1}, s{sT1}, 16
        s_mul_i32 s{sT2}, s{sT1}, 43
        s_sub_u32 s{sT2}, s{sT0}, s{sT2}
        s_lshl_b32 s{sPS}, s{sT2}, 15
        s_lshl_b32 s{sT3}, s{sT1}, 7
        s_add_u32 s{sPS}, s{sPS}, s{sT3}
        s_mul_i32 s{sPD}, s{sT1}, 86
        s_add_u32 s{sPD}, s{sPD}, s{sT2}
        s_lshl_b32 s{sPD}, s{sPD}, 11
        s_add_u32 s{sPD}, s{sPD}, {OFF_P2}
        s_lshl_b32 s{sPF}, s{sT0}, 7
        s_add_u32 s{sPF}, s{sPF}, {OFF_P2F}
        s_cmp_lt_u32 s{sT0}, 344
        s_cselect_b32 s{sPS}, s{sPS}, {OOB}
        s_cselect_b32 s{sPD}, s{sPD}, {OOB}
        s_cselect_b32 s{sPF}, s{sPF}, {OOB}
        s_lshl_b32 s{sT0}, s{sCT2}, 1
        s_add_u32 s{sT0}, s{sT0}, s{sCHH}
        s_mul_i32 s{sT0}, s{sT0}, 43
        s_mul_i32 s{sT1}, s{sKH}, 21
        s_add_u32 s{sT0}, s{sT0}, s{sT1}
        s_lshl_b32 s{sT0}, s{sT0}, 11
        s_add_u32 s{sW2B}, s{sT0}, {OFF_P2}
        s_cmp_eq_u32 s{sKH}, 0
        s_cselect_b32 s{sW20}, s{sW2B}, {OOB}""")
def pp_load():
    L=M(f"s_lshl_b32 s{sT3}, s{sWV}, 12")
    for r in range(4):
        L+=M(f"s_add_u32 m0, s{sT3}, {L_PP+1024*r}\ns_add_u32 s{sWo}, s{sPS}, {8192*r}")
        L+=M(f"buffer_load_dwordx4 v{vW2}, {srd(SWD)}, s{sWo} offen lds","pp")
    for x in L: x.priv=1
    return LW(L,(L_PP,L_PP+16384))
def touches():
    return M(f"""buffer_load_dword v{vCg}, v{vCg}, {srd(WS)}, 0 offen sc1
        buffer_load_dword v{vCs}, v{vCs}, {srd(WS)}, 0 offen sc1
        buffer_load_dword v{vFT}, v{vFT}, {srd(WS)}, 0 offen sc1""")
def extras(pos): return (pp_load() if CFG['ppat']==pos else [])+(touches() if CFG['tat']==pos else [])+(h_touch(TCHK()) if CFG['hat']==pos else [])
def pp_pack():
    L=[('WVM','pp')]
    for c in range(2):
        for t in range(2):
            for hh in range(2): L+=LR(M(f"ds_read_b64_tr_b16 {V(W2V+8*c+4*t+2*hh,2)}, v{vT2} offset:{hh*512+64*c+8*t}"),(L_PP,L_PP+16384))
    for x in L[1:]: x.priv=1
    S=[]
    for c in range(2):
        S+=M(f"s_add_u32 s{sT2}, s{sPD}, {c*43*2048}")
        for t in range(2): S+=M(f"buffer_store_dwordx4 {V(W2V+8*c+4*t)}, v{vL}, {srd(WS)}, s{sT2} offen offset:{1024*t} sc1","pps")
    return L,S
def w2_loads():
    L=[]
    for i in range(CFG.get('w2n',22)):
        so=sW20 if i==0 else (sW2B if i==1 else sPS)
        if i>=2 and i%2==0: L+=M(f"s_add_u32 s{sPS}, s{sW2B}, {i*2048}")
        for t in range(2): L+=M(f"buffer_load_dwordx4 {W2(i,t)}, v{vL}, {srd(WS)}, s{so} offen offset:{(i&1)*2048+t*1024} sc1",f"w2_{i}")
    return L
W2Q=[]
def w2_take(n):
    out=[]
    while W2Q and n>0:
        x=W2Q.pop(0); out.append(x)
        if x.kind=='vmem': n-=1
    return out

PLANS={
 0:dict(),
 1:dict(FL="i0", T2="i1", CV=[("a",20,"r0"),("d",40,"i2"),("a",84,"w1 b r1"),("d",100,"i3@0")], YS="i4@5", YA="w3 b r2 r3", GL="i5@1 w4 l b r4", ST="i6@2", PEND=[5,6], REST=["7@0"]),
 3:dict(FL="i0", T2="i1 w0 b r0", CV=[("d",2,"i2"),("d",68,"i3@0")], CE="w2", YS="r1 r2 i4@3", F1="r3", F2="i5@1", FB="r4", XD="", PEND=[5], REST=["6@2","7@0"]),
 6:dict(T2="i0", CV=[("d",40,"i1"),("d",90,"i2")], CE="w1", YS="i3@3 r0 r1", SA="w2", F1="r2 i4@0", F2="", FX="i5@1", SB="w4", FB="r3 r4", XD="", PEND=[5], REST=["6@2","7@0"]),
 8:dict(T0="i0", FL="i1", T2="i2 w1 b r0 r1", CV=[("d",20,"i3@0"),("d",68,"i4@1")], CE="w3", YS="i5@3 r2 r3", F1="r4", F2="i6@2", FX="i7@0", FB="r5", PEND=[6,7]),
 12:dict(T0="i0", FL="i1", T2="i2 w1 b r0 r1", CV=[("d",20,"i3@0"),("d",68,"i4@1")], CE="w3", YS="i5@3 r2 r3", F1="r4", F2="i6@2", FX="i7@0", FB="r5", XD="p6", PEND=[6,7]),
 13:dict(T0="i0", FL="i1", T2="i2", CV=[("a",6,"r0 r1"),("a",52,"L1 b"),("d",54,"i3@0"),("d",100,"i4@1")], CE="w3", YS="i5@3 r2 r3", SA="w4", F1="r4", F2="i6@2", FX="i7@0", FB="r5", PEND=[6,7]),
 14:dict(T0="i0", T2="i1", CV=[("a",6,"r0"),("d",24,"i2"),("d",70,"i3@0")], CE="w2", YS="i4@3 r1 r2", F1="r3", F2="i5@1", FX="i6@2", FB="r4", PEND=[5,6], REST=["7@0"]),
 15:dict(FL="i0", T2="i1", CV=[("a",6,"r0"),("d",4,"i2"),("a",40,"w1 L0 b r1"),("d",50,"i3@0"),("a",94,"w2 L1 b r2"),("d",98,"i4@1")], CE="w3", YS="i5@3 r3", SA="w4", F1="r4", F2="i6@2", FX="i7@0", FB="r5", PEND=[6,7]),
 16:dict(T1="i0", T2="i1", CV=[("a",6,"r0"),("d",4,"i2"),("a",40,"w1 L0 b r1"),("d",50,"i3@0"),("a",94,"w2 L1 b r2"),("d",98,"i4@1")], CE="w3", YS="i5@3 r3", SA="w4", F1="r4", F2="i6@2", FX="i7@0", FB="r5", PEND=[6,7]),
 22:dict(T0="i0", FL="i1", T2="i2", CV=[("a",6,"r0 r1"),("a",52,"L1 b"),("d",54,"i3@0"),("d",100,"i4@1")], CE="w3", YS="i5@3 r2 r3 w4 l b r4", F2="i6@2", FX="l b i7@1", FB="r5", XB="l b", PEND=[6,7]),
 23:dict(T0="i0", FL="i1", T2="i2", CV=[("a",6,"r0 r1"),("a",52,"L1 b"),("d",54,"i3@0"),("d",100,"i4@1")], CE="w3", YS="i5@3 r2 r3", F2="w4 l b i6@2 r4", FX="i7@0", FB="r5", XB="l b", PEND=[6,7]),
 17:dict(T0="i0", FL="i1", T2="i2", CV=[("a",6,"r0 r1"),("a",52,"L1 b"),("d",54,"i3@0"),("d",100,"i4@1")], CE="w3", Y0="i5@3", SA="w4", YS="r2 r3 r4", FX="l b i6@2", FB="i7@0 r5", PEND=[6,7]),
 18:dict(T0="i0", FL="i1", T2="i2", CV=[("a",6,"r0 r1"),("a",52,"L1 b"),("d",54,"i3@0"),("d",100,"i4@1")], CE="w3", SA="w4", YS="i5@3 r2 r3 r4", F2="l b i6@2", FX="i7@0", FB="r5", XB="l b", PEND=[6,7]),
 20:dict(T0="i0", FL="i1", T2="i2", CV=[("a",6,"r0 r1"),("a",52,"L1 b"),("d",54,"i3@0"),("d",100,"i4@1")], CE="w3", SA="w4", YS="i5@3 r2 r3 r4", FA="l b i6@2", FX="i7@0", FB="r5", PEND=[6,7]),
 21:dict(T0="i0", FL="i1", T2="i2", CV=[("a",6,"r0 r1"),("a",52,"L1 b"),("d",54,"i3@0"),("d",100,"i4@1")], CE="w3", Y0="i5@3", SA="w4", YS="r2 r3 r4 l b i6@2", FX="i7@0", FB="r5", PEND=[6,7]),
 19:dict(T0="i0", FL="i1", T2="i2", CV=[("a",6,"r0 r1"),("a",52,"L1 b"),("d",54,"i3@0"),("d",100,"i4@1")], CE="w3", Y0="i5@3", SA="w4", YS="r2 r3 r4", FA="l b i6@2", FX="i7@0", FB="r5", PEND=[6,7]),
 10:dict(T0="i0", T2="i1 w0 b r0", CV=[("d",20,"i2"),("d",68,"i3@0")], CE="w2", YS="i4@3 r1 r2", F1="r3", F2="i5@1", FX="i6@2", FB="r4", PEND=[5,6], REST=["7@0"]),
 11:dict(T0="i0", T1="i1", T2="i2 w1 b r0 r1", CV=[("d",14,"i3@0"),("d",56,"i4@1"),("a",70,"w2 b r2"),("a",96,"L2 b"),("d",100,"i5@2")], CE="w4", YS="i6@3 r3 r4", SA="w5", F1="r5", F2="i7@0", FB="r6", XD="p4", PEND=[7]),
 7:dict(FL="i0", T2="i1 w0 b r0", CV=[("d",20,"i2"),("d",68,"i3@0")], CE="w2", YS="i4@3 r1 r2", F1="r3", F2="i5@1", FX="i6@2", FB="r4", PEND=[5,6], REST=["7@0"]),
 4:dict(FL="i0", T2="i1 w0 b r0", CV=[("d",2,"i2"),("d",50,"i3@0")], CE="w2", YS="i4@3 r1 r2", F1="r3", F2="i5@1", FX="i6@2", FB="r4", PEND=[5,6], REST=["7@0"]),
 5:dict(T1="i0", FL="", T2="i1 w0 b r0", CV=[("d",2,"i2"),("d",46,"i3@0"),("a",60,"w1 b r1"),("a",84,"L1 b"),("d",92,"i4@1")], CE="w3", YS="i5@3 r2 r3", SA="w4", F1="r4", F2="i6@2", FX="i7@0", FB="r5", PEND=[6,7]),
 2:dict(FL="i0", T2="i1", CV=[("a",20,"r0"),("d",30,"i2"),("a",70,"w1 b r1"),("d",80,"i3@0"),("a",124,"w2 b r2")], YS="i4@5 i5@1", YA="w4 b r3 r4", GL="i6@2 w5 l b r5", ST="i7@0", PEND=[6,7], FA="p4", FB="p4", XD="p4"),
 9:dict(ST="i0 i1 "+" ".join(f"w{n} l b "+(f"i{n+2} " if n+2<8 else "")+f"r{n}" for n in range(8))+" l b"),
}
slot_of={}
def wops(txt):
    L=[]
    for op in txt.split():
        at=None
        if '@' in op: op,at=op.split('@'); at=int(at)
        k=int(op[1:]) if len(op)>1 else None
        if op[0]=='i': slot_of[k]=SLOT[at if at is not None else k%3]; L+=c_dma(k,slot_of[k])
        elif op[0]=='r': L+=c_read(k,slot_of[k])
        elif op[0]=='w': L.append(('WVM',f"c{k}"))
        elif op[0]=='l': L+=M("s_waitcnt lgkmcnt(0)")
        elif op[0]=='L': L.append(('WLG',f"cr{k}"))
        elif op[0]=='b': L+=M("s_barrier")
        elif op[0]=='p': L+=w2_take(k)
    return L
def PL(): return eval(CFG['plan']) if isinstance(CFG['plan'],str) else PLANS[CFG['plan']]
def Wp(a,point): a.flat(wops(PL().get(point,"")))

def toeplitz(a):
    a("s_waitcnt lgkmcnt(0)\ns_barrier")
    a(f"s_mul_i32 s{sT0}, s{sKH}, {UCH}\ns_add_u32 s{sT0}, s{sT0}, {L_U+512}\nv_add_u32 v54, s{sT0}, v52\nv_add_u32 v78, s{sT0}, v53")
    for rho,(va,off) in enumerate(((54,0),(54,1024),(78,0))):
        d=56+8*rho
        a(f"ds_read_b128 {V(d)}, v{va} offset:{off}\nds_read_b64 {V(d+4,2)}, v{va} offset:{off+16}","raw"); a.lr(2,(L_U,L_U+2*UCH))
    a(f"s_mul_i32 s{sT0}, s{sKH}, {TCH}\ns_add_u32 s{sT0}, s{sT0}, {L_TOEP+32}")
    a(f"v_add_u32 v52, s{sT0}, v52\nv_add_u32 v53, s{sT0}, v53")
    for rho,(va,off) in enumerate(((52,0),(52,1024),(53,0))):
        d=56+8*rho; t=100+12*(rho%2)
        a(f"ds_write_b128 v{va}, {V(d)} offset:{off}")
        for i in range(4): a(f"v_alignbit_b32 v{t+i}, v{d+i+1}, v{d+i}, 16")
        a(f"ds_write_b128 v{va}, {V(t)} offset:{off+TCP}")
        for i in range(4): a(f"v_mov_b32 v{t+4+i}, v{d+i+1}")
        a(f"ds_write_b128 v{va}, {V(t+4)} offset:{off+2*TCP}")
        for i in range(4): a(f"v_alignbit_b32 v{t+8+i}, v{d+i+2}, v{d+i+1}, 16")
        a(f"ds_write_b128 v{va}, {V(t+8)} offset:{off+3*TCP}"); a.lw(16,(L_TOEP,L_TOEP+2*TCH))
        if rho==1: a.waitlg("raw"); a("s_barrier")

def p0(a):
    a.waitvm("kv"); a("s_barrier")
    a.stamp("kv landed","f")
    KR=84; VR=94
    for i in range(5):
        R=4+4*i; a(f"ds_read_b64_tr_b16 {V(KR+2*i,2)}, v83 offset:{L_K+(R>>3)*CHP+(R&7)*128}")
    for i in range(4):
        R=4*i; a(f"ds_read_b64_tr_b16 {V(VR+2*i,2)}, v83 offset:{L_V+(R>>3)*CHP+(R&7)*128}")
    a.lr(9,(L_K,L_V+8*CHP))
    Wp(a,'T0')
    O=16
    if CFG['dot2']:
        a("""v_alignbit_b32 v40, v80, v80, 16
            v_alignbit_b32 v41, v81, v81, 16
            v_and_b32 v42, 0xffff, v80
            v_and_b32 v43, 0xffff0000, v81
            v_and_b32 v44, 0xffff0000, v80
            v_and_b32 v45, 0xffff, v81
            v_or_b32 v44, v44, v45""")
        for i in range(8):
            P=KR+2+i
            a(f"v_dot2_f32_bf16 v{O+2*i}, v{P}, v42, 0\nv_dot2_f32_bf16 v{O+2*i+1}, v{P}, v40, 0")
        for i in range(8):
            P=KR+2+i
            a(f"v_dot2_f32_bf16 v{O+2*i}, v{P-1}, v44, v{O+2*i}\nv_dot2_f32_bf16 v{O+2*i+1}, v{P-1}, v41, v{O+2*i+1}")
        for i in range(8): a(f"v_dot2_f32_bf16 v{O+2*i}, v{KR+i}, v43, v{O+2*i}")
    else:
        a("v_lshlrev_b32 v40, 16, v80\nv_and_b32 v41, 0xffff0000, v80\nv_lshlrev_b32 v42, 16, v81\nv_and_b32 v43, 0xffff0000, v81")
        K=lambda t: 108+t-2
        for i in range(10):
            if i>0: a(f"v_lshlrev_b32 v{102+2*i}, 16, v{KR+i}")
            a(f"v_and_b32 v{103+2*i}, 0xffff0000, v{KR+i}")
        for t in range(16):
            a(f"v_mul_f32 v{O+t}, v40, v{K(t)}")
            a(f"v_fmac_f32 v{O+t}, v41, v{K(t-1)}")
            a(f"v_fmac_f32 v{O+t}, v42, v{K(t-2)}")
            a(f"v_fmac_f32 v{O+t}, v43, v{K(t-3)}")
    for i in range(8):
        a(f"v_lshlrev_b32 v102, 16, v{VR+i}\nv_and_b32 v103, 0xffff0000, v{VR+i}")
        a(f"v_mul_f32 v{O+2*i}, v{O+2*i}, v102\nv_mul_f32 v{O+1+2*i}, v{O+1+2*i}, v103")
    for o in range(2):
        for d in range(4): a(f"v_cvt_pk_bf16_f32 v{KR+4*o+d}, v{O+8*o+7-2*d}, v{O+8*o+6-2*d}")
    for d in range(4): a(f"v_mov_b32 v{102+d}, v{KR+4+d}")
    for d in range(4): a(f"v_mov_b32_dpp v{KR+4+d}, v{KR+d} row_ror:8 row_mask:0xf bank_mask:0x3")
    for d in range(4): a(f"v_mov_b32_dpp v{KR+d}, v{102+d} row_ror:8 row_mask:0xf bank_mask:0xc")
    a(f"s_mov_b32 s{sT0}, 32768")
    a(f"buffer_store_dwordx4 {V(KR)}, v55, {srd(WS)}, 0 offen\nbuffer_store_dwordx4 {V(KR+4)}, v55, {srd(WS)}, s{sT0} offen","kvs")
    if CFG['utouch']==1: a(f"buffer_load_dword v{vTch}, v{vTch}, {srd(WS)}, 0 offen sc1")
    a.stamp("p0 computed","f")
    if CFG['clr']==1: clears(a)
    Wp(a,'T1')
    a(f"s_mov_b32 s{sCH}, s{sHELLO}\ns_getreg_b32 s{sHELLO}, hwreg(HW_REG_XCC_ID, 0, 4)")
    a(f"v_readfirstlane_b32 s{sTAG}, v51")
    a(f"s_add_u32 s{sTAG}, s{sTAG}, 0x9E3779B0\ns_and_b32 s{sTAG}, s{sTAG}, 0xFFFFFFF0\ns_and_b32 s{sHELLO}, s{sHELLO}, 15\ns_or_b32 s{sHELLO}, s{sHELLO}, s{sTAG}")
    a(f"v_mov_b32 v{vTAG}, s{sTAG}\nv_mov_b32 v98, s{sHELLO}")
    a.ext(pp_setup())
    a(f"""s_add_u32 s{sFLH}, s{sFLG}, s{sFL}
        s_lshl_b32 s{sC4}, s{sCHH}, 12
        s_mul_i32 s{sC3}, s{sCHH}, 3072
        s_lshl_b32 s{sM4}, s{sKH}, 14
        s_add_u32 s{sM3}, s{sM4}, s{sC3}
        s_add_u32 s{sM4}, s{sM4}, s{sC4}""")
    a(f"s_lshl_b32 s{sT0}, s{sX}, 2\ns_add_u32 s{sT1}, s{sT0}, s{sWV}\ns_lshl_b32 s{sT1}, s{sT1}, 5\ns_add_u32 s{sT1}, s{sT1}, s{sR}\ns_lshl_b32 s{sT1}, s{sT1}, 2\ns_add_u32 s{sT1}, s{sT1}, {OFF_F1L}")
    a(f"s_lshr_b32 s{sCK1}, s{sR}, 3\ns_add_u32 s{sCK1}, s{sCK1}, s{sT0}\ns_lshl_b32 s{sCK1}, s{sCK1}, 7\ns_add_u32 s{sCK1}, s{sCK1}, {OFF_F1L}")
    a(f"v_and_b32 v97, 31, v{vLane}\nv_lshlrev_b32 v97, 2, v97\ns_mov_b32 s{sMODE}, 0")
    if CFG['tpre']: a.waitvm("ssm"); toeplitz(a)
    a.waitvm("kvs")
    a(f"buffer_store_dword v98, v{vOne}, {srd(WS)}, s{sT1} offen")
    a.stamp("kvT published","f")
    if CFG['clr']==3: clears(a)
    if CFG['qat']==0: a(f"buffer_load_dwordx4 {V(vQT)}, v{vTok}, {srd(SQ_)}, 0 offen\nbuffer_load_dwordx4 {V(vQT+4)}, v{vTok}, {srd(SQ_)}, s{sMB} offen")
    a.flat(extras(0))
    Wp(a,'FL')
    if not CFG['tpre']: toeplitz(a)
    a(f"""s_lshl_b32 s{sT0}, s{sCH}, 12
        s_lshl_b32 s{sT1}, s{sCHH}, 11
        s_add_u32 s{sT0}, s{sT0}, s{sT1}
        s_add_u32 s{sT0}, s{sT0}, {OFF_KVT}
        s_mul_i32 s{sUO}, s{sKH}, {UCH}
        s_add_u32 s{sT1}, s{sT1}, s{sUO}""")
    a.stamp("toeplitz","f")
    o=Asm(); o.lab("L_f1r"); o(f"s_mov_b32 s{sCNT}, 0")
    if CFG['stamps']: site_names.append("f1"); o(f"s_bitset1_b32 s98, {len(site_names)-1}")
    o.lab("L_f1l")
    o(f"""buffer_load_dword v99, v97, {srd(WS)}, s{sCK1} offen sc1
        s_waitcnt vmcnt(0)
        v_cmp_ne_u32 vcc, s{sHELLO}, v99
        s_cbranch_vccz L_f1b
        s_add_u32 s{sCNT}, s{sCNT}, 1
        s_cmp_lt_u32 s{sCNT}, {CFG['f1max']}
        s_cbranch_scc1 L_f1l""")
    o.lab("L_f1s")
    o(f"""s_mov_b32 s{sMODE}, 1
        s_mov_b32 s{sT2}, 32768
        buffer_store_dwordx4 {V(KR)}, v55, {srd(WS)}, 0 offen sc1
        buffer_store_dwordx4 {V(KR+4)}, v55, {srd(WS)}, s{sT2} offen sc1
        s_lshl_b32 s{sT2}, s{sX}, 2
        s_add_u32 s{sT3}, s{sT2}, s{sWV}
        s_lshl_b32 s{sT3}, s{sT3}, 5
        s_add_u32 s{sT3}, s{sT3}, s{sR}
        s_lshl_b32 s{sT3}, s{sT3}, 7
        s_add_u32 s{sT3}, s{sT3}, {OFF_F1}
        s_lshr_b32 s{sCK1}, s{sR}, 3
        s_add_u32 s{sCK1}, s{sCK1}, s{sT2}
        s_lshl_b32 s{sCK1}, s{sCK1}, 12
        s_add_u32 s{sCK1}, s{sCK1}, {OFF_F1}
        v_lshlrev_b32 v97, 5, v97
        s_waitcnt vmcnt(0)
        buffer_store_dword v{vTAG}, v{vOne}, {srd(WS)}, s{sT3} offen sc1
        s_mov_b32 s{sCNT}, 0""")
    o.lab("L_f1g")
    o(f"""buffer_load_dword v99, v97, {srd(WS)}, s{sCK1} offen sc1
        s_waitcnt vmcnt(0)
        v_cmp_ne_u32 vcc, s{sTAG}, v99
        s_cbranch_vccz L_f1b
        s_add_u32 s{sCNT}, s{sCNT}, 1
        s_cmp_lt_u32 s{sCNT}, {POLLMAX}
        s_cbranch_scc1 L_f1g
        s_branch L_f1b""")
    a.ool.append(o.L)
    ck=M(f"v_cmp_ne_u32 vcc, s{sHELLO}, v99\ns_cbranch_vccnz L_f1r\nL_f1b:") if CFG['slow']!=2 else M("s_waitcnt vmcnt(0)\ns_branch L_f1s\nL_f1b:")
    a(f"buffer_load_dword v99, v97, {srd(WS)}, s{sCK1} offen sc1")
    a(f"""s_lshl_b32 s{sT3}, s{sCHH}, 8
        s_sub_u32 s{sT2}, s{sUO}, s{sT3}
        s_add_u32 s{sT2}, s{sT2}, {L_U+480-192}
        v_lshlrev_b32 v141, 5, v{vJ}
        v_lshl_add_u32 v141, v{vQ}, 4, v141
        v_add_u32 v141, s{sT2}, v141
        v_add_u32 v142, 1, v{vJ}
        v_and_b32 v143, 3, v142
        v_mul_u32_u24 v143, {TCP}, v143
        v_lshrrev_b32 v142, 2, v142
        v_lshl_add_u32 v142, v142, 3, v143
        v_lshlrev_b32 v143, 4, v{vQ}
        v_sub_u32 v142, v142, v143
        s_mul_i32 s{sT2}, s{sKH}, {TCH}
        s_add_u32 s{sT2}, s{sT2}, s{sT3}
        s_add_u32 s{sT2}, s{sT2}, {L_TOEP+48}
        v_add_u32 v142, s{sT2}, v142
        s_add_u32 m0, s{sT1}, {L_U+512}""")
    a.flat(ck)
    a.stamp("f1 seen","f")
    a(f"buffer_load_dwordx4 v{vL}, {srd(WS)}, s{sT0} offen sc1 lds","u")
    a(f"buffer_load_dwordx4 v{vL}, {srd(WS)}, s{sT0} offen offset:1024 sc1 lds","u")
    a.lw(2,(L_U+512,L_U+UCH),(L_U+UCH+512,L_U+2*UCH))
    if CFG['clr']==4: clears(a,"clr")
    if CFG['clr'] in(1,3): a(f"buffer_store_dword v98, v{vOne}, {srd(WS)}, s{sHF} offen sc1")
    a.flat(extras(5))
    Wp(a,'T2')
    a(f"v_lshlrev_b32 v{vD}, 16, v{vD}")
    a.waitvm("u"); a("s_waitcnt lgkmcnt(0)\ns_barrier")
    a.stamp("U landed","f")

def conv_backbone():
    ACC=40; GR=72; Ureg=[16,20,24,28,32,36,104,108]
    seq=[]
    for it in range(4):
        o=4*(it&1)
        for e in range(4):
            for w in range(3-e,-1,-1): seq.append((w+e,o+e,o+w,('G',e,it,1),('U',w,it,1),it==0 and e==0))
    n1=len(seq)
    for it in range(4):
        pairs=[(e,w) for e in range(8) for w in range(7-e,max(0,4-e)-1,-1)]
        if it==0: pairs=[p for p in pairs if p[0]<4 and p[1]<4]+[p for p in pairs if not(p[0]<4 and p[1]<4)]
        seen=set()
        for e,w in pairs:
            seq.append((w+e,e,w,('G',e,it,2),('U',w,it,2),it==0 and (w+e) not in seen)); seen.add(w+e)
    reads={}; lastuse={}
    for n,(c,g,u,gid,uid,f) in enumerate(seq):
        for ph,i in ((('G',g),gid),(('U',u),uid)):
            if i not in reads: reads[i]=dict(ph=ph,need=n,earliest=lastuse.get(ph,-1))
            lastuse[ph]=n
    def emit(i):
        kind,k,it,_=i; ph=reads[i]['ph'][1]
        if kind=='U': return [LR(mk(f"ds_read_b128 {V(Ureg[ph])}, v141 offset:{512*k+192-64*it}"),(L_U,L_U+2*UCH))]
        return LR([mk(f"ds_read_b64 {V(GR+4*ph,2)}, v142 offset:{512*k+64*it}"),mk(f"ds_read_b64 {V(GR+4*ph+2,2)}, v142 offset:{512*k+64*it+8}")],(L_TOEP,L_TOEP+2*TCH))
    todo=[]
    for i in sorted(reads,key=lambda i:reads[i]['need']):
        for x in emit(i): todo.append((reads[i]['earliest'],reads[i]['need'],x))
    bb=[x for e,n,x in todo if n<4]; todo=[t for t in todo if t[1]>=4]
    for n,(c,g,u,gid,uid,f) in enumerate(seq):
        bb.append(mk(f"v_mfma_f32_16x16x32_bf16 {V(ACC+4*c)}, {V(GR+4*g)}, {V(Ureg[u])}, {'0' if f else V(ACC+4*c)}"))
        k=0
        while True:
            cand=[t for t in todo if t[0]<=n]
            if not cand: break
            t=cand[0]
            if k>=1 and not(k<2 and t[1]-n<=CFG['cla']) and not t[1]-n<=2: break
            bb.append(t[2]); todo.remove(t); k+=1
    assert not todo
    return bb,n1

def conv_epi(st):
    ACC=40+16*st; P=vPK+4*st; R=(L_CX,L_CX+16384)
    W=LW([mk(f"ds_write_b128 v{vCXw}, {V(ACC+4*k)} offset:{1024*k}",f"cx{st}") for k in range(4)],R)
    K=LR([mk(f"ds_read_b64 {V(vKD+2*k,2)}, v{vKV} offset:{2048*st+512*k}") for k in range(2)],(L_U,L_U+2*UCH))
    L=[]
    for k in range(2): L+=LR(M(f"ds_read_b128 {V(ACC+4*k)}, v{vCXo} offset:{1024*k}\nds_read_b128 {V(ACC+8+4*k)}, v{vCXp} offset:{1024*k}",f"cy{st}"),R)
    for k in range(2):
        A=ACC+4*k
        L+=M(f"v_and_b32 v{vUP}, 0xffff0000, v{vKD+1+2*k}\nv_lshlrev_b32 v{vUP+1}, 16, v{vKD+1+2*k}\nv_and_b32 v{vUP+2}, 0xffff0000, v{vKD+2*k}\nv_lshlrev_b32 v{vUP+3}, 16, v{vKD+2*k}")
        for r in range(4): L+=M(f"v_fmac_f32 v{A+r}, v{vD}, v{vUP+r}")
        for r in range(4): L+=M(f"v_add_f32 v{A+r}, v{A+r}, v{A+8+r}")
        L+=M(f"v_cvt_pk_bf16_f32 v{P+2*k}, v{A}, v{A+1}\nv_cvt_pk_bf16_f32 v{P+1+2*k}, v{A+2}, v{A+3}")
    L+=M(f"s_nop 0\nv_permlane16_swap_b32 v{P}, v{P+2}\nv_permlane16_swap_b32 v{P+1}, v{P+3}")
    L+=M(f"buffer_store_dwordx4 {V(P)}, v{vYo}, {srd(WS)}, {'0' if st==0 else 's%d'%sMB} offen sc1",f"yt{st}")
    return W+K,L

def y_check(a,mu):
    D=vGD+4*mu
    return a.check([f"buffer_load_dwordx4 {V(D)}, v{vGA}, {srd(WS)}, {'0' if mu==0 else 's%d'%sMB} offen sc1"],
         [f"v_max3_u32 v{vGC}, v{D}, v{D+1}, v{D+2}",f"v_max_u32 v{vGC}, v{vGC}, v{D+3}",f"v_cmp_eq_u32 vcc, -1, v{vGC}"],"yt")
def y_stage(a,mu,mid=[]):
    a(f"ds_write_b128 v{vGW}, {V(vGD+4*mu)} offset:{4096*mu}"); a.lw(1,(L_YS+4096*mu,L_YS+4096*mu+4096))
    a.flat(mid)
    a("s_waitcnt lgkmcnt(0)\ns_barrier")
    for hh in range(2):
        a(f"ds_read_b64_tr_b16 {V(vYY[mu]+2*hh,2)}, v{vGT} offset:{4096*mu+256*hh}")
        a.lr(1,(L_YS+4096*mu,L_YS+4096*mu+4096))

def x0_state(mu):
    S=SX[mu]; L=M(f"v_mov_b32 v{vGC}, 0x3f803f80")
    for i in range(4): L+=M(f"v_lshlrev_b32 v{vXst[mu]+2*i}, 16, v{vQT+4*mu+i}\nv_and_b32 v{vXst[mu]+2*i+1}, 0xffff0000, v{vQT+4*mu+i}")
    for i in range(4):
        q=vQT+4*mu+i
        L+=M(f"v_dot2_f32_bf16 v{S}, v{q}, v{vGC}, {'0' if i==0 else 'v%d'%S}\nv_dot2_f32_bf16 v{S+1}, v{q}, v{q}, {'0' if i==0 else 'v%d'%(S+1)}")
    return L

def conv(a):
    C=CFG
    bb,n1=conv_backbone()
    qld=M(f"""buffer_load_dwordx4 {V(vQT)}, v{vTok}, {srd(SQ_)}, 0 offen
        buffer_load_dwordx4 {V(vQT+4)}, v{vTok}, {srd(SQ_)}, s{sMB} offen
        buffer_load_dword v{vCg}, v{vCg}, {srd(WS)}, 0 offen sc1
        buffer_load_dword v{vCs}, v{vCs}, {srd(WS)}, 0 offen sc1
        buffer_load_dword v{vFT}, v{vFT}, {srd(WS)}, 0 offen sc1""")
    hl,hc=a.check([f"buffer_load_dwordx4 {V(112)}, v{vHa}, {srd(WS)}, 0 offen sc1"],
         [f"v_xor_b32 v113, s{sTAG}, v113",f"v_xor_b32 v114, s{sTAG}, v114",f"v_xor_b32 v115, s{sTAG}, v115",
          "v_or3_b32 v113, v113, v114, v115",f"v_xor_b32 v114, s{sTAG}, v112","v_or_b32 v113, v113, v114","v_cmp_lt_u32 vcc, 15, v113"],"h2")
    pk,ps=pp_pack()
    dmas=paced((qld[:2] if C['qat']==1 else [])+extras(1),3); fill=[]
    for kind,at,ops in PL().get('CV',[]):
        it=wops(ops)
        if kind=='d': dmas+=[('AT',at)]+paced(it,C['cgap'])
        else:
            k=[i for i,x in enumerate(it) if isinstance(x,I) and x.op=='s_barrier']
            if k: it=[it[:k[0]+1]]+it[k[0]+1:]
            fill+=[('AT',at)]+it
    dmas+=[('AT',C['hmid'])]+paced(extras(6),3)
    w0,e0=conv_epi(0)
    gl,a.gcA=y_check(a,0)
    crit=[('AT',n1+2),('DENS',C['cdens'])]+w0+[('GAP',3),[('WLG','cx0'),mk("s_barrier")]]+e0[:-1]+([] if C['clr']==4 else [('AFTER','hl')])+e0[-1:]+[('DENS',0),('SYNC','y0'),('AFTER','hl',C['chc'])]+hc \
        +[[('WLG','cy0'),mk("s_barrier")],('AFTER','y0',C['cack']),('WVM','yt0')]+gl+[('SYNC','g0')]
    ann=[('AT',C['cann']),('WVM','clr')]+M(f"buffer_store_dword v{vTAG}, v{vOne}, {srd(WS)}, s{sHF} offen sc1") if C['clr']==4 else []
    third=ann+[('AT',C['chl'])]+hl+[('SYNC','hl'),('AFTER','g0'),('AFTER','dd')]+paced((qld[:2] if C['qat']==2 else [])+extras(2),2)
    a.weave(bb,crit,dmas+[('SYNC','dd')],fill,third,slots=C['cslots'],name='CV')
    a.stamp("conv mfma done","f")
    w1,e1=conv_epi(1)
    if CFG.get('trace')=='CV': a("v_mov_b32 v194, v140")
    if C['afirst']:
        a.flat(w1); a.flat(x0_state(0)); a.flat(a.gcA)
        a.stamp("yT stored","f"); a.stamp("yA gathered","f")
        y_stage(a,0,wops(PL().get('CE',"")))
    else:
        Wp(a,'CE')
        a.flat(w1); a("s_waitcnt lgkmcnt(0)\ns_barrier"); a.flat(e1)
        a.stamp("yT stored","f")
        Wp(a,'Y0')
        a.flat(x0_state(0))
        a.flat(a.gcA)
        a.stamp("yA gathered","f")
        y_stage(a,0,wops(PL().get('SA',"")))
    Wp(a,'ST')
    if CFG['slow']: a(f"s_cmp_lg_u32 s{sMODE}, 0\ns_cbranch_scc1 L_slow")

def unpackY(mu,T):
    L=[]
    for i in range(4): L+=M(f"v_lshlrev_b32 v{T+2*i}, 16, v{vYY[mu]+i}\nv_and_b32 v{T+2*i+1}, 0xffff0000, v{vYY[mu]+i}")
    return L
def treduce(s0,s1,s2,s3,gap=[]):
    return M(f"v_permlane32_swap_b32 v{s0}, v{s2}\nv_permlane32_swap_b32 v{s1}, v{s3}\nv_add_f32 v{s0}, v{s0}, v{s2}\nv_add_f32 v{s1}, v{s1}, v{s3}")+gap+M(f"v_permlane16_swap_b32 v{s0}, v{s1}\nv_add_f32 v{s0}, v{s0}, v{s1}")

SX=[104,106]
def fin1a(mu,S=None):
    X=vXst[mu]; S=SX[mu] if S is None else S
    L=M(f"v_add_f32 v{S}, v{X}, v{X+1}\nv_mul_f32 v{S+1}, v{X}, v{X}")
    for e in range(1,8):
        if e>1: L+=M(f"v_add_f32 v{S}, v{S}, v{X+e}")
        L+=M(f"v_fmac_f32 v{S+1}, v{X+e}, v{X+e}")
    return L
def fin1(a, layer, mu, T, unpacked=False, S=None):
    X=vXst[mu]; L=[] if unpacked else unpackY(mu,T); S=T+8 if S is None else S
    s0=SX[mu] if layer==0 else S
    A=[] if layer==0 else fin1a(mu,S)
    Bq=M(f"v_mul_f32 v{S+2}, v{X}, v{T}\nv_add_f32 v{S+3}, v{T}, v{T+1}")
    for e in range(1,8):
        Bq+=M(f"v_fmac_f32 v{S+2}, v{X+e}, v{T+e}")
        if e>1: Bq+=M(f"v_add_f32 v{S+3}, v{S+3}, v{T+e}")
    while A or Bq:
        if A: L.append(A.pop(0))
        if Bq: L.append(Bq.pop(0))
    L+=treduce(s0,s0+1,S+2,S+3,M(f"s_add_u32 s{sT0}, s{sGR}, {(layer*2+mu)*262144}"))
    L+=M(f"buffer_store_dword v{s0}, v{vGs}, {srd(WS)}, s{sT0} offen{a.sc}")
    return L

def fin2(a, layer, mu, T, Y=None):
    X=vXst[mu]; Gd=T; up=unpackY(mu,T+16) if Y is None else []; Y=T+16 if Y is None else Y
    ld,ck=a.check([f"buffer_load_dwordx4 {V(Gd+4*i)}, v{vGl}, {srd(WS)}, s{sCK2} offen offset:{256*i} sc1" for i in range(4)],
         ([f"v_max3_u32 v{PT}, v{Gd}, v{Gd+1}, v{Gd+2}"]+[f"v_max3_u32 v{PT}, v{PT}, v{Gd+3+2*i}, v{Gd+4+2*i}" for i in range(6)]+[f"v_max_u32 v{PT}, v{PT}, v{Gd+15}"])+[f"v_cmp_eq_u32 vcc, -1, v{PT}"],"gr")
    ld=M(f"s_add_u32 s{sCK2}, s{sGRl}, {(layer*2+mu)*262144}")+ld+up
    L=list(ck)
    for k in range(4): L+=M(f"v_add_f32 v{Gd+k}, v{Gd+k}, v{Gd+4+k}\nv_add_f32 v{Gd+8+k}, v{Gd+8+k}, v{Gd+12+k}")
    for k in (0,2,1,3): L+=M(f"v_add_f32 v{Gd+k}, v{Gd+k}, v{Gd+8+k}")
    L+=treduce(Gd,Gd+1,Gd+2,Gd+3)
    A,B,C,D=Gd,Gd+1,Gd+2,Gd+3
    L+=M(f"v_mov_b32 v{B}, v{A}\nv_permlane16_swap_b32 v{A}, v{B}\nv_mov_b32 v{C}, v{A}\nv_mov_b32 v{D}, v{B}\nv_permlane32_swap_b32 v{A}, v{C}\nv_permlane32_swap_b32 v{B}, v{D}")
    inv="0x3b000000"
    L+=M(f"""v_mul_f32 v{A}, {inv}, v{A}
        v_mul_f32 v{B}, {inv}, v{B}
        v_fma_f32 v{B}, -v{A}, v{A}, v{B}
        v_max_f32 v{B}, 0, v{B}
        v_add_f32 v{B}, 0x3727c5ac, v{B}
        v_rsq_f32 v{B}, v{B}
        v_fma_f32 v{C}, -v{A}, v{D}, v{C}
        v_mul_f32 v{C}, {inv}, v{C}
        v_fma_f32 v{C}, v{B}, v{C}, v{A}
        v_mul_f32 v{A}, v{A}, v{B}""")
    for e in range(8): L+=M(f"v_fma_f32 v{Gd+4+e}, v{X+e}, v{B}, -v{A}")
    for e in range(8): L+=M(f"v_fmac_f32 v{X+e}, v{Gd+4+e}, v{Y+e}")
    for e in range(8): L+=M(f"v_sub_f32 v{Y+e}, v{X+e}, v{C}")
    L+=M(f"s_add_u32 s{sT0}, s{sXS}, {mu*65536}")
    for i in range(4): L+=M(f"v_cvt_pk_bf16_f32 v{Gd+4+i}, v{Y+2*i}, v{Y+2*i+1}")
    L+=M(f"buffer_store_dwordx4 {V(Gd+4)}, v{vL}, {srd(WS)}, s{sT0} offen{a.sc or (' nt' if CFG['ntx']>layer else '')}",f"xs{mu}")
    L+=M(f"v_mul_f32 v{A}, v{Y}, v{Y}")
    for e in range(1,8): L+=M(f"v_fmac_f32 v{A}, v{Y+e}, v{Y+e}")
    L+=M(f"""v_mov_b32 v{B}, v{A}
        s_nop 0
        s_add_u32 s{sT1}, s{sS5}, {(layer*2+mu)*65536}
        v_permlane32_swap_b32 v{A}, v{B}
        v_add_f32 v{A}, v{A}, v{B}
        v_mov_b32 v{B}, v{A}
        v_permlane16_swap_b32 v{A}, v{B}
        v_add_f32 v{A}, v{A}, v{B}""")
    L+=M(f"buffer_store_dword v{A}, v{vS5s}, {srd(WS)}, s{sT1} offen{a.sc}")
    tail=M(f"s_add_u32 s22, s{sFLH}, {XF(layer,mu)}")+[('WVM',f"xs{mu}")]+M(f"buffer_store_dword v{vTAG}, v{vOne}, {srd(WS)}, s22 offen{a.sc}")
    return ld,L,tail

def flag_check(a, off, vaddr, name):
    ld,ck=a.check([f"buffer_load_dword v{PT+1}, v{vaddr}, {srd(WS)}, s{sCK1} offen sc1"],[f"v_cmp_ne_u32 vcc, s{sTAG}, v{PT+1}"],name)
    return M(f"s_lshl_b32 s{sCK1}, s{sFL}, 1\ns_add_u32 s{sCK1}, s{sCK1}, {off}")+ld, ck
XF=lambda layer,mu: OFF_XFLAG+layer*16384+mu*256
HF=lambda layer,k: OFF_HFLAG+layer*16384+k*256

def x_dma(mu, pair, stage, q):
    L=M(f"s_add_u32 m0, s{sXW}, {q+stage*8192}\ns_mov_b32 s{sSOFF}, {mu*65536+pair*32768+stage*8192}")
    for i in range(4): L+=M(f"buffer_load_dwordx4 v{vXD}, {srd(WS)}, s{sSOFF} offen offset:{1024*i} sc1 lds",f"x{mu}{pair}{stage}")
    return LW(L,(q+stage*8192,q+stage*8192+8192),(q+16384+stage*8192,q+16384+stage*8192+8192))
vAS1,vAS2,vAD=136,138,135
def alias_setup():
    return M(f"""s_mul_i32 s{sT0}, s{sG}, {65536-8*HKS*1024}
        s_add_u32 s{sT0}, s{sT0}, {OFF_YT-OFF_H}
        v_and_b32 v{vAS1}, 1, v{vQ}
        v_mul_u32_u24 v{vAS1}, {0x100000-HKS*1024}, v{vAS1}
        s_mul_i32 s{sT1}, s{sRH}, {0x100000-HKS*1024}
        v_add_u32 v{vAS1}, s{sT0}, v{vAS1}
        s_add_u32 s{sT0}, s{sT0}, s{sT1}
        v_add_u32 v{vAS2}, v{vHS2}, v{vAS1}
        v_add_u32 v{vAS1}, v{vHS1}, v{vAS1}
        v_add_u32 v{vAD}, s{sT0}, v{vHD}""")
AL=lambda mu,t: (CFG['alias']>=1 and (mu,t)==(1,1)) or (CFG['alias']>=2 and (mu,t)==(0,0))
def h_dma(mu, t, grp, q):
    n=4 if grp<2 else 3
    L=M(f"s_add_u32 m0, s{sM4 if grp<2 else sM3}, {q+t*8192}\ns_add_u32 s{sSOFF}, s{sC4 if grp<2 else sC3}, {(0 if AL(mu,t) else (mu*4+2*t)*HKS*1024)+grp*8192}")
    for i in range(n): L+=M(f"buffer_load_dwordx4 v{vAD if AL(mu,t) else vHD}, {srd(WS)}, s{sSOFF} offen offset:{1024*i} sc1 lds",f"h{mu}{t}{grp}")
    return LW(L,*[(q+(2*k+t)*8192,q+(2*k+t)*8192+2*n*1024) for k in range(2)])
def h_touch(ks,base=204):
    L=[]
    for k in ks:
        L+=M(f"s_mov_b32 s{sT2}, {2*k*HKS*1024}\nbuffer_load_dword v{base+2*k}, v{vHS1}, {srd(WS)}, s{sT2} offen sc1\nbuffer_load_dword v{base+1+2*k}, v{vHS2}, {srd(WS)}, s{sT2} offen sc1","tch")
    return L
SC1K=lambda: {0:[],2:[k for k in range(4) if not AL(k>>1,k&1)],8:[0,1],3:[],4:[0,1],5:[0,1,2],6:[0,1],7:[0]}[CFG['touch']]
TCHK=lambda: {0:[],2:[],8:[],3:[0,1,2,3],4:[2,3],5:[],6:[],7:[]}[CFG['touch']]
TINK=lambda: {8:[2],5:[3],6:[2,3],7:[1,2,3]}.get(CFG['touch'],[])

_uid=[0]
RING6=[FR+4*k for k in range(6)]; RING8=RING6+[ACC0+16,ACC0+20]
def g1_steps(buf, q, bar=None):
    A=(ACC0,ACC1)[buf]; bar=bar or {}; qo=q&65535; out=[]
    for s in range(16):
        pre=(M(f"v_add_u32 v{vA0}, {q&~65535}, v{vL}") if s==0 else [])+bar.get(s,[])
        rd=[lambda F,tok,s=s,t=t: LR(mk(f"ds_read_b128 {V(F)}, v{vA0} offset:{qo+t*16384+s*1024}",tok),(q+t*16384+s*1024,q+t*16384+s*1024+1024)) for t in range(2)]
        mf=lambda F,s=s: [mk(f"v_mfma_f32_16x16x32_bf16 {V(A+12*t+4*w)}, {W1(s,w)}, {V(F[t])}, {'0' if s==0 else V(A+12*t+4*w)}") for t,w in ([(t,w) for t in range(2) for w in range(3)],[(t,w) for w in range(3) for t in range(2)],[(0,0),(0,1),(0,2),(1,2),(1,1),(1,0)],[(0,0),(1,0),(1,1),(0,1),(0,2),(1,2)])[CFG['o1']]]
        out.append((pre,rd,mf,RING6))
    return out
def g2_steps(qs, bar=None):
    bar=bar or {}; out=[]
    def setq(q): return M(f"s_add_u32 s{sQ}, s{sHK}, {q&~65535}\nv_add_u32 v{vA0}, s{sQ}, v{vL}\ns_add_u32 s{sQ}, s{sHS}, {q&~65535}\nv_add_u32 v{vA1}, s{sQ}, v{vL}")
    for i in range(22):
        q=qs[i>>3]; pre=bar.get(i,[])
        if i%8==0 and (i==0 or (q&~65535)!=(qs[(i>>3)-1]&~65535)): pre=setq(q)+pre
        rd=[lambda F,tok,i=i,q=q,t=t: LR(mk(f"ds_read_b128 {V(F)}, v{(vA0,vA1)[t]} offset:{(q&65535)+(i&7)*1024}",tok),*[(q+w*8192+(i&7)*1024,q+w*8192+(i&7)*1024+1024) for w in range(4)]) for t in (1,0)]
        mf=lambda F,i=i: [mk(f"v_mfma_f32_16x16x32_bf16 {V(ACC0+8*t+4*c)}, {W2(i,c)}, {V(F[1-t])}, {'0' if i==0 else V(ACC0+8*t+4*c)}") for t,c in ([(1,0),(1,1),(0,0),(0,1)],[(1,0),(0,0),(1,1),(0,1)],[(1,0),(1,1),(0,1),(0,0)])[CFG['o2']]]
        out.append((pre,rd,mf,RING8))
    return out
def g2_pass(qs, t, bar=None):
    bar=bar or {}; out=[]
    for i in range(22):
        q=qs[i>>3]; pre=bar.get(i,[])
        if i%8==0 and (i==0 or (q&~65535)!=(qs[(i>>3)-1]&~65535)):
            pre=M(f"s_lshl_b32 s{sQ}, s{sKH}, 14\ns_add_u32 s{sQ}, s{sQ}, {(q&~65535)+t*8192}\nv_add_u32 v{vA0}, s{sQ}, v{vL}")+pre
        rd=[lambda F,tok,i=i,q=q: LR(mk(f"ds_read_b128 {V(F)}, v{vA0} offset:{(q&65535)+(i&7)*1024}",tok),*[(q+(2*k+t)*8192+(i&7)*1024,q+(2*k+t)*8192+(i&7)*1024+1024) for k in range(2)])]
        mf=lambda F,i=i: [mk(f"v_mfma_f32_16x16x32_bf16 {V(ACC1+8*t+4*c)}, {W2(i,c)}, {V(F[0])}, {'0' if i==0 else V(ACC1+8*t+4*c)}") for c in range(2)]
        out.append((pre,rd,mf,RING8))
    return out
def backbone(steps, marks=None):
    marks=marks or {}; LA=CFG['la']
    start=[]; n=0
    for st in steps: start.append(n); n+=len(st[2]([FR]*2))
    start.append(n)
    last={}; F=[]; place={}; pos=-1; toks=[]
    for k,(pre,rd,mf,ring) in enumerate(steps):
        _uid[0]+=1; tok=f"f{_uid[0]}"; toks.append(tok); fs=[]
        for j,r in enumerate(rd):
            u=min([x for x in ring if x not in fs],key=lambda x:last.get(x,-99+ring.index(x)*0.01)); fs.append(u)
            p=max(start[k]-LA+j, last.get(u,-99), pos+1 if pos>=0 else -1)
            p=min(p,start[k]-1) if start[k]>0 else -1
            if p<0: p=-1
            place.setdefault(p,[]).extend((pre if j==0 else [])+[r(u,tok)]); pos=max(pos,p)
        for u in fs: last[u]=start[k+1]-1
        F.append(fs)
    L=list(place.get(-1,[]))+[('WLG',toks[0])]; n=0
    for k,(pre,rd,mf,ring) in enumerate(steps):
        ms=mf(F[k])
        for j,m in enumerate(ms):
            L.append(m); L+=place.get(n,[])
            if j==len(ms)-1 and k+1<len(steps): L.append(('WLG',toks[k+1]))
            n+=1
        L+=marks.get(k,[])
    return L

def g1_epi(a, buf, mu, pair, sc):
    A=(ACC0,ACC1)[buf]; E=EP; L=[]
    n=E; mreg=E+4
    M0=A+8; M1=A+20
    for t in range(2):
        Gt=A+12*t; Ut=Gt+4
        for r in range(4): L+=M(f"v_max_f32 v{Gt+r}, 0, v{Gt+r}")
        for r in range(4): L+=M(f"v_mul_f32 v{Gt+r}, v{Gt+r}, v{Ut+r}")
        L+=M(f"v_cvt_pk_bf16_f32 v{n+2*t}, v{Gt}, v{Gt+1}\nv_cvt_pk_bf16_f32 v{n+2*t+1}, v{Gt+2}, v{Gt+3}")
    for r in range(4): L+=M(f"v_permlane16_swap_b32 v{M0+r}, v{M1+r}")
    L+=M(f"v_permlane16_swap_b32 v{n}, v{n+2}\nv_permlane16_swap_b32 v{n+1}, v{n+3}\ns_mov_b32 s{sT1}, {0 if AL(mu,pair) else (mu*4+2*pair)*HKS*1024}")
    L+=M(f"buffer_store_dwordx4 {V(n)}, v{vAS1 if AL(mu,pair) else vHS1}, {srd(WS)}, s{sT1} offen{sc}",f"hs{mu}{pair}")
    for r in range(4): L+=M(f"v_max_f32 v{M0+r}, 0, v{M0+r}")
    for r in range(4): L+=M(f"v_mul_f32 v{M0+r}, v{M0+r}, v{M1+r}")
    L+=M(f"v_cvt_pk_bf16_f32 v{mreg}, v{M0}, v{M0+1}\nv_cvt_pk_bf16_f32 v{mreg+1}, v{M0+2}, v{M0+3}")
    L+=M(f"v_mov_b32 v{E+6}, v{E+4}\nv_mov_b32 v{E+7}, v{E+5}\ns_nop 0\nv_permlane32_swap_b32 v{E+4}, v{E+6}\nv_permlane32_swap_b32 v{E+5}, v{E+7}")
    L+=M(f"buffer_store_dwordx4 {V(E+4)}, v{vAS2 if AL(mu,pair) else vHS2}, {srd(WS)}, s{sT1} offen{sc}",f"hs{mu}{pair}")
    return L
def h_flag(a, layer, k):
    return M(f"s_add_u32 s22, s{sFLH}, {HF(layer,k)}")+[('WVM',f"hs{k>>1}{k&1}")]+M(f"buffer_store_dword v{vTAG}, v{vOne}, {srd(WS)}, s22 offen{a.sc}")

def s5_get(a, layer, mu):
    T=140
    ld,ck=a.check([f"buffer_load_dwordx4 {V(T)}, v{vS5l}, {srd(WS)}, s{sCK3} offen sc1"],
         [f"v_max3_u32 v{PT+2}, v{T}, v{T+1}, v{T+2}",f"v_max_u32 v{PT+2}, v{PT+2}, v{T+3}",f"v_cmp_eq_u32 vcc, -1, v{PT+2}"],"s5")
    ld=M(f"s_add_u32 s{sCK3}, s{sS5l}, {(layer*2+mu)*65536}")+ld
    L=list(ck)+M(f"""v_add_f32 v{T}, v{T}, v{T+1}
        v_add_f32 v{T+2}, v{T+2}, v{T+3}
        v_add_f32 v{T}, v{T}, v{T+2}
        v_mov_b32 v{T+1}, v{T}
        s_nop 0
        v_permlane32_swap_b32 v{T}, v{T+1}
        v_add_f32 v{T}, v{T}, v{T+1}
        v_mov_b32 v{T+1}, v{T}
        s_nop 0
        v_permlane16_swap_b32 v{T}, v{T+1}
        v_add_f32 v{T}, v{T}, v{T+1}
        v_mul_f32 v{T}, 0x3b000000, v{T}
        v_add_f32 v{T}, 0x3727c5ac, v{T}
        v_rcp_f32 v{vR2}, v{T}""")
    return ld,L
def ex_addr(qspare):
    return M(f"s_add_u32 s{sT0}, s{sHW}, {qspare+6144}\nv_add_u32 v{EP}, s{sT0}, v{vL}\ns_xor_b32 s{sT0}, s{sHW}, 16384\ns_add_u32 s{sT0}, s{sT0}, {qspare+6144}\nv_add_u32 v{EP+1}, s{sT0}, v{vL}")
def g2_tail(mu, qsp, keep, send):
    X=vXst[mu]; R=[(qsp+w*8192+6144,qsp+w*8192+8192) for w in range(4)]
    pre=LW(M(f"ds_write_b128 v{EP}, {V(send)}\nds_write_b128 v{EP}, {V(send+4)} offset:1024",f"ew{mu}"),*R)
    pre+=[mk(f"v_fmac_f32 v{X+e}, v{vR2}, v{keep+e}") for e in range(8)]
    post=LR(M(f"ds_read_b128 {V(send)}, v{EP+1}\nds_read_b128 {V(send+4)}, v{EP+1} offset:1024","ex"),*R)
    post+=[mk(f"v_fmac_f32 v{X+e}, v{vR2}, v{send+e}") for e in range(8)]
    return pre,post
def out_store(a, mu, T):
    X=vXst[mu]
    L=[mk(f"v_cvt_pk_bf16_f32 v{T+i}, v{X+2*i}, v{X+2*i+1}") for i in range(4)]
    return L+M(f"buffer_store_dwordx4 {V(T)}, v{vTok}, {srd(SO_)}, {'0' if mu==0 else 's%d'%sMB} offen{('',' sc1',' nt')[CFG['outsc']]}")

def wbl2(a):
    Lw=a.label("wb"); w=mk("buffer_wbl2 sc1"); w.ghost=1
    return [M(f"s_or_b32 s{sT2}, s{sR}, s{sWV}\ns_cmp_lg_u32 s{sT2}, {CFG['wbid']}\ns_cbranch_scc1 {Lw}")+[w,mk(Lw+":")]]
def finish_kernel(a):
    a(f"s_or_b32 s{sT0}, s2, s{sWV}\ns_cmp_eq_u32 s{sT0}, 0\ns_cselect_b32 s{sT0}, {OFF_NONCE}, {OOB}")
    a(f"buffer_store_dword v{vTAG}, v{vOne}, {srd(WS)}, s{sT0} offen sc1")
    if CFG['stamps'] and a.tag!='S':
        a.stamp("end","*")
        if CFG.get('amp') is not None:
            j=CFG['amp']
            a(f"s_sub_u32 s96, s{STAMP0+j}, s{STAMP0}\ns_mul_i32 s96, s96, {CFG.get('ampk',4)}\ns_add_u32 s96, s96, s{STAMP0+len(stamp_names)-1}")
            a("L_amp:\ns_memrealtime s[100:101]\ns_waitcnt lgkmcnt(0)\ns_sub_u32 s97, s100, s96\ns_cmp_lt_i32 s97, 0\ns_cbranch_scc1 L_amp")
        a("s_memtime s[100:101]\ns_waitcnt lgkmcnt(0)\ns_sub_u32 s99, s100, s99")
        a(f"s_lshl_b32 s{sT0}, s2, 2\ns_add_u32 s{sT0}, s{sT0}, s{sWV}\ns_lshl_b32 s{sT0}, s{sT0}, 8\ns_add_u32 s{sT0}, s{sT0}, {OFF_STAMP}")
        for i in range(len(stamp_names)):
            a(f"v_mov_b32 v40, s{STAMP0+i}")
            a(f"buffer_store_dword v40, v{vOne}, {srd(WS)}, s{sT0} offen offset:{4*i}")
        if CFG.get('trace'): a(f"s_add_u32 s{sT1}, s{sT0}, 0x100000\nbuffer_store_dword v139, v{vFX}, {srd(WS)}, s{sT1} offen")
        a(f"v_mov_b32 v40, s98\nbuffer_store_dword v40, v{vOne}, {srd(WS)}, s{sT0} offen offset:248")
        a(f"v_mov_b32 v40, s99\nbuffer_store_dword v40, v{vOne}, {srd(WS)}, s{sT0} offen offset:252")
    a("s_endpgm")

WV=lambda t:('WVM',t)
WL=lambda t:('WLG',t)
AT=lambda n:('AT',n)

def vm_par(layer):
    C=CFG
    def f(x):
        t=x.tok or ''
        if x.dma:
            if t[0]=='c': return (C['mW'],150,11)
            if t[0]=='h' and layer==0 and 2*int(t[1])+int(t[2]) in SC1K(): return (C['mM'],C['mMs'],8)
            return (C['mL'],C['mLs'],8)
        if t=='tch': return (C['mH'],20,8)
        if t.startswith('w2_'): return (C['mM'],C['mW2'],8)
        if not x.load:
            if x.op.endswith('x4'): return (C['mS1'] if 'sc1' in x.text else C['mS'],70,8)
            return (C['mS1'] if 'sc1' in x.text else 400,10,1)
        if t.endswith(tuple('0123456789')) and '_ppr' in t: return (700,20,22)
        return (C['mL'],25,8) if x.op.endswith('x4') else (C['mL'],10,2)
    return f
def feed(vm,items,t):
    for x in items:
        for y in (x if isinstance(x,list) else [x]):
            if isinstance(y,tuple):
                if y[0]=='WVM': t=max(t,vm.done.get(y[1],t))
            elif y.kind=='vmem': t=vm.issue(y,t)+4
            elif y.kind!='none': t+=4.5
    return t

def body(a):
    P=paced; BY=lambda n:('BY',n); SY=lambda n:('SYNC',n); AF=lambda n,g=0:('AFTER',n,g); GP=lambda n:('GAP',n)
    B=lambda *w:[list(w)+[mk("s_barrier")]]
    C=CFG
    nxs=lambda r,mu: [i for i,x in enumerate(r) if isinstance(x,I) and x.tok==f"xs{mu}"][0]+1
    qs=list(Q)
    if C['afirst']:
        a.flat(fin1(a,0,0,72)); a.flat(conv_epi(1)[1])
    else: a.flat(fin1(a,0,0,ACC0))
    if CFG.get('trace')=='CV': a("v_mov_b32 v139, v194")
    a.stamp("fin1 A","f")
    lA,rA,tA=fin2(a,0,0,ACC0); lB,rB,tB=fin2(a,0,1,232)
    glB,gcB=y_check(a,1)
    pk,ps=pp_pack()
    a.flat(extras(3)); Wp(a,'YS')
    if C['pkat']==2: a.flat(pk); a.flat(ps)
    a.flat(x0_state(1))
    a.waitvm("yt1")
    Wp(a,'F1')
    a.flat(lA); a.flat(glB); a.flat(extras(4)); Wp(a,'F2')
    if C['pkat']==0: a.flat(pk); a.flat(ps)
    a.stamp("yB acked","f")
    a.flat(rA[:10]); Wp(a,'FA'); a.flat(rA[10:]); Wp(a,'FX')
    a.stamp("fin2 A","f")
    a.flat(gcB)
    y_stage(a,1,wops(PL().get('SB',"")))
    a.flat(tA)
    ppf=M(f"buffer_store_dword v{vTAG}, v{vOne}, {srd(WS)}, s{sPF} offen sc1")
    if C['pkat']==1: a.flat(pk); a.flat(ps)
    else: a.waitvm("pps"); a.flat(ppf); ppf=[]
    Wp(a,'FB')
    a.flat(fin1(a,0,1,ACC1))
    a.stamp("fin1 B","f")
    W2Q[:]=w2_loads()
    a(f"s_mul_i32 s{sT0}, s{sCT2}, 43\ns_mul_i32 s{sT1}, s{sKH}, 21\ns_add_u32 s{sT0}, s{sT0}, s{sT1}\ns_lshl_b32 s{sT0}, s{sT0}, 7\ns_add_u32 s{sCK3}, s{sT0}, {OFF_P2F}")
    a(f"v_min_u32 v{PT+3}, 21, v{vLane}\nv_lshlrev_b32 v{PT+3}, 7, v{PT+3}")
    pl_,pc_=a.check([f"buffer_load_dword v{PT+2}, v{PT+3}, {srd(WS)}, s{sCK3} offen sc1"],[f"v_cmp_ne_u32 vcc, s{sTAG}, v{PT+2}"],"pp")
    xl,xc=flag_check(a,XF(0,0),vFX,"xf")
    early='p' in PL().get('XD','')
    Wp(a,'XW'); a.flat(xl)
    if early: a.flat(pl_)
    a.flat(xc)
    if early: a.flat(pc_); pl_=[]; pc_=[]
    Wp(a,'XB')
    lead=lB+x_dma(0,0,0,qs[0])+x_dma(0,0,1,qs[0])+(alias_setup() if C['alias'] else [])+rB[:nxs(rB,1)]+wops(PL().get('XD',""))
    a.flat(lead)
    A1,B0,B1,GA,GB,GC=96,192,288,384,472,516
    for layer in range(2):
        g="ab"[layer]
        xa0,xa1,xb0,xb1,e=qs
        hs = lambda k: ' sc1' if (layer==0 and k in SC1K()) else (a.sc or (' nt' if (C['nth'] and layer==1) else ''))
        L0 = layer==0
        a.stamp(f"L{layer} start",g+'m')
        hq=[(xa0,xa1,e),(xb0,xb1,xa0)]
        X=lambda mu,p,q: x_dma(mu,p,0,q)+x_dma(mu,p,1,q)
        H=lambda mu,t,grp: h_dma(mu,t,grp,hq[mu][grp])
        xl,xc=flag_check(a,XF(layer,1),vFX,"xf")
        s7=[]
        def HC(k,after=None,gap=None):
            l,c=flag_check(a,HF(layer,k),vFX if (k==1 and C['alias']>=2) else vFH,"hf")
            s7.extend([AF('xc'),AF(f"f{k}",after or (C['hca0'] if L0 else C['hca']))]+l+[SY(f"l{k}")]+c+[SY(f"c{k}")])
            return [AF(f"c{k}")]
        sl,sr=s5_get(a,layer,0)
        def SB(n,*w):
            if layer==0: return BAR(*w)
            return a.st(n+" pre","c")+list(w)+a.st(n+" waited","c")+[mk("s_barrier")]+a.st(n+" post","c")
        steps = g1_steps(0,xa0,{0:BAR(WV("x000")),8:BAR(WV("x001"))}) + g1_steps(1,xa1,{0:BAR(WV("x011"))}) \
              + g1_steps(0,xb0,{0:BAR(WV("x101"))}) + g1_steps(1,xb1,{0:BAR(WV("x111"))}) \
              + g2_steps(hq[0],{**({i:[WV(f"w2_{i}")] for i in range(22)} if L0 else {}),0:BAR(WV("h010"),WV("h000"),WV("w2_0")),8:BAR(WV("h011"),WV("h001"),WV("w2_8")),16:BAR(WV("h012"),WV("h002"),WV("w2_16"))}) \
              + g2_pass(hq[1],0,{0:BAR(WV("h101"),WV("h100")),16:BAR(WV("h102"))}) + g2_pass(hq[1],1,{0:BAR(WV("h110")),8:BAR(WV("h111")),16:BAR(WV("h112"))})
        marks={15:a.st(f"L{layer} A0",g),31:a.st(f"L{layer} A1",g),47:a.st(f"L{layer} B0",g),63:a.st(f"L{layer} B1",g),85:a.st(f"L{layer} GA",g)}
        bb=backbone(steps,marks)
        def epi(k):
            E=g1_epi(a,k&1,k>>1,k&1,hs(k))
            if k>0 and L0 and C['hold']:
                n=[i for i,x in enumerate(E) if x.kind=='vmem'][0]; E=E[:n]+[AF(f"l{k-1}")]+E[n:]
            if C['alias']>=2 and k in(0,3):
                n=[i for i,x in enumerate(E) if isinstance(x,I) and x.kind=='vmem'][0]; E=E[:n]+[AF('xc' if k==0 else 'c1')]+E[n:]
            if k<3: return [AT(96*(k+1)+2),('DENS',C['dens0'] if L0 else C['dens1'])]+E+[('DENS',0),SY(f"e{k}"),BY(96*(k+2) if k<2 else GA-30)]
            return [AT(GA+1),('DENS',C['dens'])]+E+[('DENS',0),SY("e3")]+sr
        s3=[]
        for k in range(4): s3+=[AF(f"e{k}")]+([AF('h00'),WV('h002'),WV('h001'),WV('h000')] if (k==1 and C['alias']>=2) else [])+h_flag(a,layer,k)+[SY(f"f{k}")]
        YT=ACC1+16
        nq=[xa1,e,xb0,xb1,xa0]
        slB,srB=s5_get(a,layer,1)
        preA,postA=g2_tail(0,e,ACC0,ACC0+8)
        tailA=ex_addr(e)+(unpackY(0,YT) if L0 else [])+slB+[BY(GB),AT(GB+1),('DENS',C['densa'] if L0 else 2)]+preA+[GP(C['exg'])]+B(WL("ew0"))+postA[:2]+[GP(C['exg2'])]+postA[2:]
        if L0:
            lA,rA,tA=fin2(a,1,0,ACC0,YT)
            xlA,xcA=flag_check(a,XF(1,0),vFX,"xf")
            tailA+=fin1(a,1,0,YT,True,ACC0)+[('DENS',0)]+srB+ex_addr(xa0)+[('GAPV',C['gbl'])]+lA+[('DENS',C['dens2'])]+rA[:nxs(rA,0)]+[('DENS',0),SY('r')]+rA[nxs(rA,0):]+unpackY(1,YT)
        else:
            tailA+=out_store(a,0,YT)+[('DENS',0)]+srB+ex_addr(xa0)+([AT(GC+C['wbat'])]+wbl2(a) if C['wbl2'] else [])
        g1=C['g1']
        K=lambda it,c=None,cap=64: bk(it,C['bk'] if c is None else c,cap)
        dl0=(B1-34 if C['alias']>=2 else GA-44)
        sA = HC(0)+K(H(0,0,0))+[BY(dl0),AT(B0-10)]+K(H(0,0,1))+[BY(dl0+4)]+K(H(0,0,2))+[SY('h00'),BY(dl0+6)]
        sB = HC(1)+K(H(0,1,0))+[BY(GA-36)]+K(H(0,1,1))+[BY(GA-4)]+K(H(0,1,2))+[BY(GA+28)]
        sC = HC(2)+K(H(1,0,0))+[BY(GB-34),AT(GA-10)]+K(H(1,0,1))+[BY(GB-30)]
        sD = [AT(GA+54)]+K(H(1,0,2))+[BY(GB)]+HC(3,C['gahl'])+K(H(1,1,0))+[BY(GC-22)]+K(H(1,1,1))+[BY(GC-6)]+K(H(1,1,2))+[BY(GC+10)]
        if L0:
            pl=PL(); pend=pl.get('PEND',[]); rest=pl.get('REST',[])
            s1=[];s2=[]
            for k in rest: s1+=K(wops(f"i{k}"),400)
            rest=[int(str(k).split('@')[0]) for k in rest]
            s1+=[SY('irest')]+K(X(0,1,xa1))+[BY(A1-30)]
            for k in pend: s2+=wops(f"r{k}")+[BY(max(12*k-4,30))]
            last=pend[-1] if pend else None
            if rest:
                s2+=[AF('irest')]+B(WV(f"c{rest[-1]}"))
                for k in rest: s2+=wops(f"r{k}")+[BY(12*k-4)]
                last=rest[-1]
            if last is not None: s2+=[GP(4)]+B(WL(f"cr{last}"))
            s2+=[SY('fr'),AT(C['tin'])]+h_touch(TINK(),127)
            s4=([WV('pps')]+ppf+[GP(40)] if ppf else [])+[AT(C['w2at'])]+pl_+pc_+[AF(C['w2af'])]
            i=(2*CFG.get('w2n',22)-sum(1 for x in W2Q if x.kind=='vmem'))//2
            while W2Q:
                if i==10: s4+=[AF('fB')]
                s4+=K(w2_take(2),C['bkw'],C['capw'])+[BY(GA+4*i-C['w2lead'])]; i+=1
        else:
            s1=[SY('irest'),AF('lB')]+K(X(0,1,xa1))+[BY(A1-30)]; s2=[SY('fr')]; s4=[]
        if L0: s5=[SY('rB')]+rB[nxs(rB,1):]+[SY('fB')]
        else: s5=[AT(C['a0l'])]+lB+[SY('lB'),('DENS',C['densb'])]+rB[:nxs(rB,1)]+[('DENS',0),SY('rB')]+rB[nxs(rB,1):]+[BY(A1)]
        s3=[AF('rB')]+tB+[SY('tB')]+s3
        s1+=[AF('tB',C['a1xl0'] if L0 else C['a1xl'])]+xl+[SY('xl')]+xc+[SY('xc'),AF('fr')]+K(X(1,0,xb0))+[BY(B0-30)]+K(X(1,1,xb1))+[BY(B1-30)]
        s1+=sA+sB+sC+sD
        s6 = ([] if L0 else [AF('xl')])+epi(0)+epi(1)+epi(2)+sl+epi(3)+[BY(GB-12)]+tailA
        vm=VMM(vm_par(layer)); t0=feed(vm,lead,0)
        out,rest=weave(bb,[s3,s7,s1,s4,s2,s5,s6],vm=vm,t0=t0,log=f"L{layer}"+('!' if C.get('v')==2 else '') if (C.get('v') and a.tag=='F') else None)
        a.ext(a.trace(out,CFG.get('tev_',10),f'G{layer}')); a.ext(rest)
        if C.get('v'): print("  leftover after G2(B):",len(rest))
        a.stamp(f"L{layer} GB",g)
        Ls=a.label("sw")
        a(f"s_nop 7\ns_cmp_eq_u32 s{sKH}, 0\ns_cbranch_scc1 {Ls}")
        for k in range(8): a(f"v_swap_b32 v{ACC1+k}, v{ACC1+8+k}")
        a.lab(Ls)
        preB,postB=g2_tail(1,xa0,ACC1,ACC1+8)
        a.flat(preB)
        if L0: a.flat(tA)
        a("s_waitcnt lgkmcnt(0)\ns_barrier")
        a.flat(postB)
        if L0:
            a.flat(fin1(a,1,1,YT,True,ACC1))
            lB,rB,tB=fin2(a,1,1,ACC1,YT)
            a.flat(xlA); a.flat(xcA); lead=X(0,0,nq[0]); a.ext(lead)
        else:
            a.flat(out_store(a,1,YT))
        a.stamp(f"L{layer} tailB",g)
        qs=nq
    finish_kernel(a)

def main():
    a=G('F','')
    entry(a); p0(a); conv(a)
    nfront=len(a.L)
    b=G('S',' sc1'); b.nlab=0
    front=list(a.L)
    body(a)
    rep=[]
    items=finish(a.L,rep)
    print("LDS ordering problems:",lds_check(items))
    for o in a.ool: items+=finish(o)
    items.append(mk("L_fast_end:"))
    if CFG['slow']:
        b.L=front+[mk("L_slow:")]; body(b)
        full=finish(b.L)
        k=[i for i,x in enumerate(full) if x.text=="L_slow:"][0]
        items+=full[k:k+1]+[mk("s_nop 4")]+full[k+1:]
        for o in b.ool: items+=finish(o)
    items.append(mk("L_end:")); items.append(mk("s_endpgm"))
    hdr=open(os.path.join(os.path.dirname(os.path.abspath(__file__)),"header.txt")).read()
    src=kernel_file(NAME,text(items),"; @launch grid=(256,1,1) block=(256,1,1) lds=163840",header=hdr)
    open(sys.argv[1],"w").write(src)
    open("stamp_names.txt","w").write("\n".join(stamp_names)); open("trace_names.txt","w").write("\n".join(trace_names)); open("site_names.txt","w").write(" ".join(site_names))
    n=sum(1 for i in items if i.kind!='none')
    print(f"{n} instructions, {len(src)} bytes of text, {sum(x for x,_ in rep)} nop states padded in fast path")
    if CFG.get('v'):
        for x in rep: print("   pad",x)
main()
```

```python
import sys, os
from asmlib import *
from layout import *

NAME="interleave_layers__ssm_conv_h3__glu_gated_reglu__prompt_kernel"
CFG=dict(hpri=1, hsplit=1, ft1=1, kl=5, afirst=0, idle=1, alias=1, o1=0, o2=0, swz=1, z14=1, tpre=1, dot2=1, a1xl0=30, tin=100, mH=1300, hold=0, hca0=24, dens0=8, mW2=62, hat=2, hmid=100, bk=60, bkw=60, capw=64, mL=350, mLs=80, mM=600, mMs=95, mW=850, mS=600, mS1=950, ssmat=0, nth=1, ntx=2, wbat=24, wbid=0, ppat=1, tat=2, pkat=2, fbpre=1, cg0=30, gbt0=28, xg0=16, w2af='irest', densb=4, qat=1, gbs5=8, la=12, clr=1, utouch=0, f1max=2048, cann=56, plan=30, chl=40, cla=9, cdens=4, cslots=2, chc=40, cack=54, rot=1, cm2=70, cm3=120, a0l=1, a0c=24, a1xl=18, dens=5, fl=30, fl0=52, hca=18, hcg=22, g1=4, g2=5, g3=4, dens1=2, gahl=16, gahc=14, hbgap=4, tev=6, tev2=5, dens2=8, densa=5, exg=2, exg2=4, gbl=16, gbc=14, gbt=28, gbxl=20, b0hl=80, w2at=1, w2gap=5, w2lead=40, rrest=56, cgap=3, warm=1, stamps=0, stop=None, slow=1, prefetch=1, touch=2, dgather=1, dstage=1, wbl2=0, outsc=2)
for a_ in sys.argv[2:]:
    k,v=a_.split('='); CFG[k]=int(v) if v.lstrip('-').isdigit() else v

sX,sR,sWV,sG,sM,sRH,sCT2,sKH,sCHH,sTAG,sHELLO=4,5,6,7,8,9,10,11,12,13,14
sT0,sT1,sT2,sT3=3,15,60,61
sCNT=62; sSOFF=63
WS,SK_,SV_,SQ_,SH_,SWG,SWU,SWD,SO_,SSK,SD_=16,20,24,28,32,36,40,44,48,52,56
srd=lambda b:f"s[{b}:{b+3}]"
sXW,sHW,sHK,sHS,sXS,sFL,sGR,sS5,sGRl,sS5l=64,65,66,67,68,69,70,71,72,73
sW1W,sWo,sHF,sW2B=74,75,76,77
sPS,sPD,sPF,sW20=56,57,58,59
sCK1,sCK2,sCK3,sQ=20,21,24,25
sCH,sUO,sMB=26,27,0
sMODE=34; sFLH=23; sC4,sC3,sM4,sM3=52,53,54,55
sFLG=1
STAMP0=78
Q=[0,32768,65536,98304,131072]
TCP=4160; TCH=4*TCP; L_TOEP=0
L_U=2*TCH; UCH=4608
L_K=L_U+2*UCH; CHP=1056; L_V=L_K+9*CHP
L_CX=L_K
L_YS=0
L_WS=65536; WSL=24576
SLOT=[L_WS+k*WSL for k in range(4)]
L_YS=SLOT[3]+16384
L_PP=SLOT[3]
SLOT=SLOT[:3]+[8192,36864,L_PP]
vL=1; vOne=2; vTok=3; vGs=4; vGl=5; vS5s=6; vS5l=7; vXD=8; vHD=9; vHS1=10; vHS2=11; vFX=12; vFH=13
vTAG=14; vR2=15
vXst=[16,24]; vYY=[32,36]
ACC0,ACC1,FR,vA0,vA1,EP,PT=40,64,88,112,113,114,122
vW2,vT2,vWc0=126,127,128
vW1=[129,130,131]; vTa,vTm,vWc1=132,133,134
vLane,vJ,vQ,vYo,vD=135,136,137,138,139
vCg,vCs=124,125
vHa=15
vCXw,vCXo,vCXp,vKV,vGA,vGW,vGT,vFT=160,161,162,163,164,165,166,167
vKD,vUP,vPK,vGD,vGC,vQT,vTch=168,172,176,184,192,196,193
W2V=144; W2A=192
def W1(s,t): b=(s*3+t)*4; return f"a[{b}:{b+3}]"
def W1h(s,t,hh): b=(s*3+t)*4+2*hh; return f"a[{b}:{b+1}]"
def W2(i,t):
    k=(i*2+t)*4
    return f"v[{W2V+k}:{W2V+k+3}]" if k<112 else f"a[{W2A+k-112}:{W2A+k-112+3}]"
def W2h(i,t,hh):
    k=(i*2+t)*4+2*hh
    return f"v[{W2V+k}:{W2V+k+1}]" if k<112 else f"a[{W2A+k-112}:{W2A+k-112+1}]"
V=lambda b,n=4: f"v[{b}:{b+n-1}]"
OOB=0x7FFFFF00
vST=lambda: 140 if CFG.get('trace')=='CV' else 139
POLLMAX=1<<16
def M(text,tok=None): return [mk(l.strip(),tok) for l in text.split('\n') if l.strip()]
BAR=lambda *pre: list(pre)+[mk("s_barrier")]

trace_names=[]; stamp_names=[]; site_names=[]
class G(Asm):
    def __init__(s,tag='',sc=''):
        super().__init__(); s.tag=tag; s.sc=sc; s.ool=[]
    def st(s,name,grp='m'):
        if not CFG['stamps'] or s.tag=='S': return []
        if grp!='*' and not any(c in str(CFG['stamps']) for c in grp): return []
        stamp_names.append(name); i=len(stamp_names)-1
        assert i<20, "too many stamps"
        return M(f"{'s_memtime' if CFG.get('clk') else 's_memrealtime'} s[100:101]\ns_waitcnt lgkmcnt(0)\ns_mov_b32 s{STAMP0+i if (i or CFG['kl']!=5) else 97}, s100")
    def trace(s, items, every, name):
        if s.tag=='S' or CFG.get('trace')!=name: return items
        out=[]; n=0
        for it in items:
            out.append(it)
            if isinstance(it,I) and it.kind=='mfma':
                if n%every==0 and CFG.get('tr0',0)<=n<CFG.get('tr0',0)+58*every: out+=s.light(f"{name}+{n}")
                n+=1
        return out+s.light(name+" end")+M("s_nop 15\ns_nop 15\ns_nop 15\ns_nop 15")+s.light(None)+s.light(None)
    def light(s,name):
        k=len(trace_names); trace_names.append(name or "")
        L=[]
        if name: x=mk(f"s_memtime s[{90+2*(k%3)}:{91+2*(k%3)}]"); x.light=1; x.defs=set(); L.append(x)
        if k>=2: L+=M(f"v_writelane_b32 v{vST()}, s{90+2*((k-2)%3)}, {k-2}")
        return L
    def stamp(s,name,grp='m'): s.ext(s.st(name,grp))
    def lr(s,n,*r): LR([i for i in s.L[-n:] if isinstance(i,I)],*r)
    def lw(s,n,*r): LW([i for i in s.L[-n:] if isinstance(i,I)],*r)
    def label(s,p): s.nlab+=1; return f"L{s.tag}_{p}_{s.nlab}"
    def check(s, loads, checks, name):
        R=s.label(name+'r'); L=s.label(name+'l'); B=s.label(name+'b')
        o=Asm(); o.lab(R); o(f"s_mov_b32 s{sCNT}, 0")
        if CFG['stamps'] and s.tag!='S':
            n=len(site_names); site_names.append(name); o(f"s_bitset1_b32 s98, {n}")
        o.lab(L)
        for l in loads: o(l)
        o("s_waitcnt vmcnt(0)")
        for c in checks: o(c)
        o(f"s_cbranch_vccz {B}\ns_add_u32 s{sCNT}, s{sCNT}, 1\ns_cmp_lt_u32 s{sCNT}, {POLLMAX}\ns_cbranch_scc1 {L}\ns_branch {B}")
        s.ool.append(o.L)
        ck=[mk(c) for c in checks]
        return [mk(l,R) for l in loads], [('WVM',R)]+ck[:-1]+[[ck[-1],mk(f"s_cbranch_vccnz {R}"),mk(B+":")]]
    def flat(s, items):
        for it in items:
            if isinstance(it,list): s.ext(it)
            elif isinstance(it,tuple) and it[0] in('AT','GAP','GAPV','SYNC','AFTER','BY','DENS','BK'): pass
            else: s.L.append(it)
    def weave(s, bb, *streams, slots=2, name=None):
        out,rest=weave(bb,streams,slots)
        s.ext(s.trace(out,CFG.get('tev_',4),name) if name else out); s.ext(rest)
        if rest and CFG.get('v'): print("  leftover fillers:",len(rest),[getattr(r,'text',r) for r in rest[:2]])

def entry(a):
    a.stamp("entry","*")
    if CFG["stamps"]: a("s_memtime s[100:101]\ns_waitcnt lgkmcnt(0)\ns_mov_b32 s99, s100\ns_mov_b32 s98, 0")
    a("s_cmp_ge_u32 s2, 256\ns_cbranch_scc1 L_end")
    first=((SK_,8),(SV_,16),(SSK,24),(WS,96)); later=((SH_,32),(SD_,40),(SQ_,0),(SWG,56),(SWU,64),(SWD,72),(SO_,80))
    if CFG['kl']==2: a("s_load_dwordx4 s[64:67], s[0:1], 8"); later=((SSK,24),(WS,96))+later; first=()
    if CFG['kl']==4: a("s_load_dwordx8 s[64:71], s[0:1], 8"); first=((WS,96),); later=later[1:]
    if CFG['kl']==5: a("s_load_dwordx16 s[64:79], s[0:1], 0\ns_load_dwordx8 s[80:87], s[0:1], 64"); first=((WS,96),); later=()
    if CFG['kl']==3: first=first[:2]; later=((SSK,24),(WS,96))+later
    for b,off in first+(() if CFG['kl'] else later):
        a(f"s_load_dwordx2 s[{b}:{b+1}], s[0:1], {off}")
    a(f"v_lshrrev_b32 v40, 6, v0\nv_and_b32 v{vLane}, 63, v0")
    a(f"s_and_b32 s{sX}, s2, 7\ns_lshr_b32 s{sR}, s2, 3")
    a(f"v_readfirstlane_b32 s{sWV}, v40")
    a(f"v_lshlrev_b32 v{vL}, 4, v{vLane}")
    if CFG['prefetch']:
        a(f"s_getpc_b64 s[{sT2}:{sT2+1}]")
        a("L_pc:")
        a(f"s_lshl_b32 s{sT0}, s{sWV}, 5\ns_add_u32 s{sT0}, s{sT0}, s{sR}\ns_lshl_b32 s{sT0}, s{sT0}, 10")
        a(f"v_add_u32 v42, s{sT0}, v{vL}\nv_min_u32 v42, L_fast_end-L_pc-16, v42")
        a(f"v_mov_b32 v43, s{sT2+1}\nv_add_co_u32 v42, vcc, s{sT2}, v42")
        a(f"v_lshrrev_b32 v48, 3, v{vLane}\nv_and_b32 v49, 7, v{vLane}")
        a("v_addc_co_u32 v43, vcc, 0, v43, vcc")
        a("global_load_dwordx4 v[44:47], v[42:43], off")
    else:
        a(f"v_lshrrev_b32 v48, 3, v{vLane}\nv_and_b32 v49, 7, v{vLane}")
    a(f"v_lshlrev_b32 v49, 4, v49\nv_lshl_add_u32 v{vW2}, v48, 10, v49")
    a(f"s_lshl_b32 s{sT0}, s{sR}, 16\ns_lshl_b32 s{sT1}, s{sX}, 7\ns_add_u32 s{sT0}, s{sT0}, s{sT1}")
    a(f"s_sub_u32 s{sT1}, s{sT0}, 8192\nv_add_u32 v49, s{sT1}, v{vW2}")
    a(f"s_lshl_b32 s{sT1}, s{sWV}, 13\ns_add_u32 s{sT0}, s{sT0}, s{sT1}\nv_add_u32 v48, s{sT0}, v{vW2}")
    a(f"s_mul_i32 s{sT1}, s{sWV}, {CHP}\ns_mov_b32 s{sSOFF}, 32768")
    for b,n in ((SK_,2<<20),(SV_,2<<20),(WS,256<<20),(SSK,4096)):
        a(f"s_mov_b32 s{b+2}, {n}\ns_mov_b32 s{b+3}, 0x20000")
    a(f"v_and_b32 v{vJ}, 15, v{vLane}\nv_lshrrev_b32 v{vQ}, 4, v{vLane}")
    a(f"s_lshl_b32 s{sT0}, s{sX}, 6\ns_lshl_b32 s{sT2}, s{sWV}, 4\ns_add_u32 s{sT0}, s{sT0}, s{sT2}\nv_add_u32 v55, s{sT0}, v{vJ}")
    a(f"v_lshlrev_b32 v78, 3, v55\nv_mov_b32 v50, 0")
    a(f"s_add_u32 m0, s{sT1}, {L_K+CHP}\ns_mov_b32 s{sT2}, {L_V+8*CHP}")
    a("s_waitcnt lgkmcnt(0)")
    if CFG['kl']!=5: a.stamp("kernarg","f")
    if CFG['kl']==5: a(f"s_mov_b64 s[{SK_}:{SK_+1}], s[66:67]\ns_mov_b64 s[{SV_}:{SV_+1}], s[68:69]")
    if CFG['kl'] in(2,4): a(f"s_mov_b64 s[{SK_}:{SK_+1}], s[64:65]\ns_mov_b64 s[{SV_}:{SV_+1}], s[66:67]")
    if CFG.get('probe'):
        if CFG['probe']==1: a("s_load_dwordx2 s[96:97], s[0:1], 48\ns_waitcnt lgkmcnt(0)\ns_mov_b32 s98, 0x200000\ns_mov_b32 s99, 0x20000"); S="s[96:99]"; base=0
        else: S=srd(WS); base=CFG['probe']<<24
        a(f"s_lshl_b32 s95, s2, 2\ns_add_u32 s95, s95, s{sWV}\ns_lshl_b32 s95, s95, 11\ns_add_u32 s95, s95, {base}\nv_mov_b32 v60, s95")
        for i in range(16):
            a(f"buffer_load_dword v61, v60, {S}, 0 offen offset:{128*i}\nv_and_b32 v61, 0, v61\nv_add_u32 v60, v60, v61")
    a(f"buffer_load_dwordx4 v48, {srd(SK_)}, 0 offen lds","kv")
    a(f"s_add_u32 m0, s{sT1}, {L_V}");       a(f"buffer_load_dwordx4 v48, {srd(SV_)}, 0 offen lds","kv")
    a(f"s_add_u32 m0, s{sT1}, {L_K+5*CHP}"); a(f"buffer_load_dwordx4 v48, {srd(SK_)}, s{sSOFF} offen lds","kv")
    a(f"s_add_u32 m0, s{sT1}, {L_V+4*CHP}"); a(f"buffer_load_dwordx4 v48, {srd(SV_)}, s{sSOFF} offen lds","kv")
    a(f"s_cmp_eq_u32 s{sWV}, 3\ns_cselect_b32 m0, {L_K}, s{sT2}\ns_cselect_b32 s{sSOFF}, 0, {OOB}")
    a(f"buffer_load_dwordx4 v49, {srd(SK_)}, s{sSOFF} offen lds","kv")
    a.lw(13,(L_K,L_V+8*CHP+1024))
    if CFG['kl']==4: a(f"s_mov_b64 s[{SSK}:{SSK+1}], s[68:69]\ns_mov_b64 s[{SH_}:{SH_+1}], s[70:71]")
    if CFG['kl']==5:
        for b,r in ((SSK,70),(SH_,72),(SD_,74),(SQ_,64),(SWG,78),(SWU,80),(SWD,82),(SO_,84)): a(f"s_mov_b64 s[{b}:{b+1}], s[{r}:{r+1}]")
    if CFG['kl'] in(2,3):
        for b,off in later: a(f"s_load_dwordx2 s[{b}:{b+1}], s[0:1], {off}")
        later=()
    a(f"buffer_load_dwordx2 {V(80,2)}, v78, {srd(SSK)}, 0 offen")
    a(f"buffer_load_dword v51, v50, {srd(WS)}, 0 offen sc1")
    if CFG['kl']:
        for b,off in later: a(f"s_load_dwordx2 s[{b}:{b+1}], s[0:1], {off}")
    if CFG['kl']==5 and CFG['stamps']: a(f"s_mov_b32 s{STAMP0}, s97")
    a.stamp("kv issued","f")
    for b,n in ((SH_,4096),(SD_,1024),(SQ_,2<<20),(SWG,512*1376*2),(SWU,512*1376*2),(SWD,512*1376*2),(SO_,2<<20)):
        a(f"s_mov_b32 s{b+2}, {n}\ns_mov_b32 s{b+3}, 0x20000")
    a(f"""s_lshr_b32 s{sT0}, s{sR}, 4
        s_lshl_b32 s{sG}, s{sX}, 1
        s_add_u32 s{sG}, s{sG}, s{sT0}
        s_and_b32 s{sM}, s{sR}, 15
        s_lshr_b32 s{sRH}, s{sM}, 3
        s_and_b32 s{sCT2}, s{sM}, 7
        s_lshr_b32 s{sKH}, s{sWV}, 1
        s_and_b32 s{sCHH}, s{sWV}, 1
        s_waitcnt lgkmcnt(0)
        s_mov_b32 s{sMB}, 0x100000""")
    a(f"s_cmp_eq_u32 s{sM}, 15\ns_cselect_b32 s{SWG+2}, 0, s{SWG+2}\ns_cselect_b32 s{SWU+2}, 0, s{SWU+2}")
    a(f"s_lshl_b32 s{sT0}, s{sX}, 6\ns_lshl_b32 s{sT1}, s{sR}, 1\ns_add_u32 s{sT0}, s{sT0}, s{sT1}\ns_add_u32 s{sT2}, s{sT0}, s{sKH}")
    a(f"s_lshl_b32 s{sT0}, s{sT2}, 12\ns_add_u32 s{SH_}, s{SH_}, s{sT0}\ns_addc_u32 s{SH_+1}, s{SH_+1}, 0")
    a(f"s_lshl_b32 s{sT0}, s{sCHH}, 11\nv_add_u32 v52, s{sT0}, v{vL}")
    a(f"v_min_u32 v53, 1, v{vLane}\nv_lshlrev_b32 v53, 4, v53\nv_subrev_u32 v53, 32, v53")
    a(f"s_lshl_b32 s{sT0}, s{sT2}, 1\nv_mov_b32 v{vD}, s{sT0}")
    if CFG['ssmat']==0: ssm_loads(a)
    a(f"""v_and_b32 v96, 1, v{vQ}
        v_lshlrev_b32 v96, 2, v96
        v_lshrrev_b32 v97, 2, v{vJ}
        v_add_u32 v96, v96, v97
        v_lshlrev_b32 v96, 16, v96
        v_and_b32 v97, 3, v{vJ}
        v_lshl_add_u32 v96, v97, 5, v96
        v_lshrrev_b32 v97, 1, v{vQ}
        v_lshl_add_u32 v96, v97, 4, v96
        s_lshl_b32 s{sT0}, s{sCHH}, 19
        s_lshl_b32 s{sT1}, s{sT2}, 7
        s_add_u32 s{sT0}, s{sT0}, s{sT1}
        s_add_u32 s{sT0}, s{sT0}, {OFF_YT}
        v_add_u32 v{vYo}, s{sT0}, v96
        s_mov_b32 s{sHELLO}, s{sT2}""")
    a(f"v_mov_b32 v{vOne}, {OOB}\nv_cmp_eq_u32 vcc, 0, v{vLane}\nv_cndmask_b32 v{vOne}, v{vOne}, v50, vcc")
    a(f"""s_lshl_b32 s{sT0}, s{sG}, 2
        s_lshl_b32 s{sT1}, s{sRH}, 1
        s_add_u32 s{sT1}, s{sT1}, s{sKH}
        s_add_u32 s{sT0}, s{sT0}, s{sT1}
        s_lshl_b32 s{sT1}, s{sKH}, 1
        s_add_u32 s{sT1}, s{sT1}, s{sRH}""")
    a(f"""s_lshl_b32 s{sGRl}, s{sT0}, 12
        s_add_u32 s{sGRl}, s{sGRl}, {OFF_GRAN}
        s_lshl_b32 s{sS5l}, s{sT0}, 10
        s_add_u32 s{sS5l}, s{sS5l}, {OFF_S5}
        s_lshl_b32 s{sT3}, s{sCT2}, 1
        s_add_u32 s{sT3}, s{sT3}, s{sCHH}""")
    a(f"""s_lshl_b32 s{sGR}, s{sT3}, 8
        s_add_u32 s{sGR}, s{sGR}, s{sGRl}
        s_lshl_b32 s{sS5}, s{sT3}, 2
        s_add_u32 s{sS5}, s{sS5}, s{sS5l}
        s_lshl_b32 s{sXS}, s{sG}, 17
        s_lshl_b32 s{sT1}, s{sT1}, 14
        s_add_u32 s{sXS}, s{sXS}, s{sT1}
        s_lshl_b32 s{sT1}, s{sX}, {1 if CFG['rot'] else 8}
        s_sub_u32 s{sT1}, s{sT3}, s{sT1}
        s_and_b32 s{sT1}, s{sT1}, 15
        s_lshl_b32 s{sT1}, s{sT1}, 10
        s_add_u32 s{sXS}, s{sXS}, s{sT1}
        s_add_u32 s{sXS}, s{sXS}, {OFF_XF}
        s_lshl_b32 s{sT0}, s{sT0}, 14
        s_lshl_b32 s{sT1}, s{sT3}, 6
        s_add_u32 s{sT0}, s{sT0}, s{sT1}""")
    a(f"v_lshlrev_b32 v{vTok}, 10, v{vJ}\nv_lshl_add_u32 v{vTok}, v{vQ}, 4, v{vTok}\nv_add_u32 v{vTok}, s{sT0}, v{vTok}")
    a(f"v_lshlrev_b32 v{vGs}, 4, v{vJ}\nv_lshl_add_u32 v{vGl}, v{vQ}, 10, v{vGs}\nv_lshl_add_u32 v{vGs}, v{vQ}, 2, v{vGs}")
    a(f"v_lshlrev_b32 v{vS5l}, 6, v{vJ}\nv_mov_b32 v{vS5s}, {OOB}\nv_cmp_eq_u32 vcc, 0, v{vQ}\nv_cndmask_b32 v{vS5s}, v{vS5s}, v{vS5l}, vcc")
    a(f"v_lshl_add_u32 v{vS5l}, v{vQ}, 4, v{vS5l}")
    a(f"s_lshl_b32 s{sT0}, s{sX}, 5\ns_add_u32 s{sT0}, s{sT0}, s{sR}\ns_lshl_b32 s{sHF}, s{sT0}, 7\ns_lshl_b32 s{sT0}, s{sWV}, 2\ns_add_u32 s{sHF}, s{sHF}, s{sT0}\ns_add_u32 s{sHF}, s{sHF}, {OFF_HELLO}")
    a(f"""s_lshl_b32 s{sXW}, s{sCHH}, 14
        s_lshl_b32 s{sT0}, s{sKH}, 12
        s_add_u32 s{sXW}, s{sXW}, s{sT0}
        s_lshl_b32 s{sT0}, s{sG}, 17
        s_add_u32 s{sT0}, s{sT0}, s{sXW}
        s_add_u32 s{sT0}, s{sT0}, {OFF_XF}
        v_add_u32 v{vXD}, s{sT0}, v{vL}
        s_lshl_b32 s{sHW}, s{sWV}, 13
        s_mul_i32 s{sHK}, s{sKH}, {3*8192}
        s_lshl_b32 s{sHS}, s{sKH}, 13
        s_add_u32 s{sHS}, s{sHS}, 8192
        s_lshl_b32 s{sT0}, s{sG}, 3
        s_add_u32 s{sT1}, s{sRH}, s{sT0}
        s_mul_i32 s{sT1}, s{sT1}, {HKS}
        s_mul_i32 s{sT3}, s{sKH}, 21
        s_add_u32 s{sT1}, s{sT1}, s{sT3}
        s_lshl_b32 s{sT1}, s{sT1}, 10
        s_add_u32 s{sT1}, s{sT1}, {OFF_H}
        v_add_u32 v{vHD}, s{sT1}, v{vL}""")
    a(f"""s_mul_i32 s{sT0}, s{sT0}, {HKS*1024}
        s_mul_i32 s{sT1}, s{sM}, 12
        s_mul_i32 s{sT3}, s{sWV}, 3
        s_add_u32 s{sT1}, s{sT1}, s{sT3}
        s_lshl_b32 s{sT1}, s{sT1}, 8
        s_add_u32 s{sT0}, s{sT0}, s{sT1}
        s_add_u32 s{sT0}, s{sT0}, {OFF_H}
        s_mov_b32 s{sT1}, {HKS*1024}
        v_lshlrev_b32 v97, 4, v{vJ}
        v_add_u32 v97, s{sT0}, v97
        v_and_b32 v98, 1, v{vQ}
        v_mad_u32_u24 v{vHS1}, v98, s{sT1}, v97
        v_add_u32 v{vHS2}, 512, v{vHS1}
        v_cmp_gt_u32 vcc, 32, v{vLane}
        v_mov_b32 v97, {OOB}
        v_cndmask_b32 v{vHS2}, v97, v{vHS2}, vcc
        v_lshrrev_b32 v98, 1, v{vQ}
        v_lshl_add_u32 v{vHS1}, v98, 8, v{vHS1}
        v_lshlrev_b32 v{vFX}, 2, v{vLane}
        v_min_u32 v{vFH}, 57, v{vLane}
        v_lshlrev_b32 v{vFH}, 2, v{vFH}
        s_lshl_b32 s{sFL}, s{sG}, 9
        s_lshl_b32 s{sFLG}, s{sM}, 2
        s_add_u32 s{sFLG}, s{sFLG}, s{sWV}
        s_lshl_b32 s{sFLG}, s{sFLG}, 2
        s_add_u32 s{sFLG}, s{sFLG}, s{sFL}
        s_nop 0""")
    if CFG['idle']:
        a(f"""s_lshl_b32 s{sT0}, s{sM}, 2
            s_add_u32 s{sT0}, s{sT0}, s{sWV}
            s_cmp_ge_u32 s{sT0}, 58
            s_cselect_b32 s{sT0}, 0x40000000, 0
            v_or_b32 v{vHS1}, s{sT0}, v{vHS1}
            v_or_b32 v{vHS2}, s{sT0}, v{vHS2}
            s_cmp_eq_u32 s{sM}, 15
            s_cselect_b32 s{sT0}, 0x40000000, 0
            v_or_b32 v{vXD}, s{sT0}, v{vXD}""")
    w_setup(a)
    a(f"""v_mul_u32_u24 v83, {2*CHP}, v{vQ}
        v_bfe_u32 v101, v{vLane}, 2, 2
        v_lshl_add_u32 v83, v101, 7, v83
        v_and_b32 v101, 3, v{vLane}
        v_lshl_add_u32 v83, v101, 3, v83
        s_lshl_b32 s{sT0}, s{sWV}, 5
        v_add_u32 v83, s{sT0}, v83""")
    a(f"v_and_b32 v55, -9, v55\nv_lshlrev_b32 v55, 12, v55\nv_lshl_add_u32 v55, v{vQ}, 5, v55\nv_lshrrev_b32 v101, 3, v{vJ}\nv_lshl_add_u32 v55, v101, 4, v55\ns_lshl_b32 s{sT0}, s{sR}, 7\ns_add_u32 s{sT0}, s{sT0}, {OFF_KVT}\nv_add_u32 v55, s{sT0}, v55")
    a(f"v_lshrrev_b32 v100, 5, v{vLane}\nv_mul_u32_u24 v100, {UCH-512}, v100\nv_add_u32 v100, v100, v{vL}")
    a("v_mov_b32 v104, 0\nv_mov_b32 v105, 0\nv_mov_b32 v106, 0\nv_mov_b32 v107, 0")
    a(f"ds_write_b128 v100, {V(104)} offset:{L_U}"); a.lw(1,(L_U,L_U+512),(L_U+UCH,L_U+UCH+512))
    a(f"""s_lshl_b32 s{sT0}, s{sWV}, 12
        s_add_u32 s{sT1}, s{sT0}, {L_CX}
        v_add_u32 v{vCXw}, s{sT1}, v{vL}
        s_lshl_b32 s{sT2}, s{sCHH}, 11
        v_add_u32 v{vCXo}, s{sT2}, v{vCXw}
        v_xor_b32 v{vCXp}, 4096, v{vL}
        s_xor_b32 s{sT0}, s{sT0}, 4096
        s_add_u32 s{sT0}, s{sT0}, s{sT2}
        s_add_u32 s{sT0}, s{sT0}, {L_CX}
        v_add_u32 v{vCXp}, s{sT0}, v{vL}
        s_lshl_b32 s{sT0}, s{sCHH}, 10
        s_mul_i32 s{sT1}, s{sKH}, {UCH}
        s_add_u32 s{sT0}, s{sT0}, s{sT1}
        s_add_u32 s{sT0}, s{sT0}, {L_U+512+8}
        v_lshlrev_b32 v{vKV}, 5, v{vJ}
        v_lshrrev_b32 v100, 1, v{vQ}
        v_lshl_add_u32 v{vKV}, v100, 4, v{vKV}
        v_and_b32 v100, 1, v{vQ}
        v_lshlrev_b32 v100, 3, v100
        v_sub_u32 v{vKV}, v{vKV}, v100
        v_add_u32 v{vKV}, s{sT0}, v{vKV}
        v_lshrrev_b32 v100, 2, v0
        v_lshlrev_b32 v100, 7, v100
        v_and_b32 v101, 3, v0
        v_lshl_add_u32 v100, v101, 4, v100
        s_lshl_b32 s{sT0}, s{sG}, 16
        s_lshl_b32 s{sT1}, s{sCT2}, 13
        s_add_u32 s{sT0}, s{sT0}, s{sT1}
        s_lshl_b32 s{sT1}, s{sRH}, 6
        s_add_u32 s{sT0}, s{sT0}, s{sT1}
        s_add_u32 s{sT0}, s{sT0}, {OFF_YT}
        v_add_u32 v{vGA}, s{sT0}, v100
        v_lshlrev_b32 v{vGW}, 4, v0
        v_add_u32 v{vGW}, {L_YS}, v{vGW}
        v_bfe_u32 v100, v{vLane}, 2, 2
        v_lshl_add_u32 v100, v{vQ}, 3, v100
        v_lshlrev_b32 v100, 6, v100
        v_and_b32 v101, 3, v{vLane}
        v_lshl_add_u32 v100, v101, 3, v100
        s_lshl_b32 s{sT0}, s{sCHH}, 11
        s_lshl_b32 s{sT1}, s{sKH}, 5
        s_add_u32 s{sT0}, s{sT0}, s{sT1}
        s_add_u32 s{sT0}, s{sT0}, {L_YS}
        v_add_u32 v{vGT}, s{sT0}, v100
        v_and_b32 v100, 7, v{vLane}
        v_lshlrev_b32 v100, 7, v100
        v_bfe_u32 v101, v{vLane}, 3, 2
        v_lshl_add_u32 v100, v101, 14, v100
        s_lshl_b32 s{sT0}, s{sFL}, 1
        s_add_u32 s{sT0}, s{sT0}, {OFF_XFLAG}
        v_add_u32 v{vFT}, s{sT0}, v100
        v_and_b32 v100, 31, v{vLane}
        v_lshlrev_b32 v100, 7, v100
        v_cmp_gt_u32 vcc, 32, v{vLane}
        s_lshl_b32 s{sT0}, s{sCT2}, 12
        s_lshl_b32 s{sT1}, s{sX}, 12
        v_mov_b32 v101, s{sT0}
        v_mov_b32 v102, s{sT1}
        v_cndmask_b32 v101, v101, v102, vcc
        v_add_u32 v100, {OFF_HELLO}, v100
        v_add_u32 v{vHa}, v100, v101""")
    if CFG['hsplit']:
        a(f"""s_and_b32 s{sT2}, s{sWV}, 1
            s_lshl_b32 s{sT2}, s{sT2}, 11
            s_cmp_lt_u32 s{sWV}, 2
            s_cselect_b32 s{sT0}, s{sT1}, s{sT0}
            s_add_u32 s{sT0}, s{sT0}, s{sT2}
            s_add_u32 s{sT0}, s{sT0}, {OFF_HELLO}
            v_lshlrev_b32 v100, 7, v{vJ}
            v_add_u32 v{vHa}, s{sT0}, v100""")
    a(f"""s_lshl_b32 s{sT0}, s{sHELLO}, 12
        s_lshl_b32 s{sT1}, s{sCHH}, 11
        s_add_u32 s{sT0}, s{sT0}, s{sT1}
        s_add_u32 s{sT0}, s{sT0}, {OFF_KVT}
        v_lshlrev_b32 v100, 7, v{vLane}
        v_add_u32 v100, s{sT0}, v100
        s_lshr_b32 s{sT0}, s{sR}, 3
        s_lshl_b32 s{sT1}, s{sX}, 2
        s_add_u32 s{sT0}, s{sT0}, s{sT1}
        s_lshl_b32 s{sT0}, s{sT0}, 7
        s_add_u32 s{sT0}, s{sT0}, {OFF_F1L}
        v_mov_b32 v101, s{sT0}
        v_cmp_gt_u32 vcc, 16, v{vLane}
        v_cndmask_b32 v{vTch}, v101, v100, vcc""")
    if CFG['ft1']:
        a(f"s_lshl_b32 s{sT0}, s{sM}, 2\ns_add_u32 s{sT0}, s{sT0}, s{sWV}\ns_and_b32 s{sT0}, s{sT0}, 31\ns_nop 1\nv_readlane_b32 s{sT0}, v{vFT}, s{sT0}\nv_writelane_b32 v{vTch}, s{sT0}, 17")
    if CFG['utouch']==0: a(f"buffer_load_dword v{vTch}, v{vTch}, {srd(WS)}, 0 offen sc1")
    if CFG['ssmat']==1: ssm_loads(a)
    a(f"""v_lshlrev_b32 v{vCg}, 4, v{vJ}
        v_lshl_add_u32 v{vCg}, v{vQ}, 18, v{vCg}
        v_lshrrev_b32 v{vCs}, 3, v{vLane}
        v_lshlrev_b32 v{vCs}, 16, v{vCs}
        v_and_b32 v100, 7, v{vLane}
        v_lshl_add_u32 v{vCs}, v100, 4, v{vCs}
        s_lshl_b32 s{sT0}, s{sCHH}, 17
        s_lshl_b32 s{sT1}, s{sCT2}, 7
        s_add_u32 s{sT0}, s{sT0}, s{sT1}
        s_add_u32 s{sT0}, s{sT0}, s{sS5l}
        v_add_u32 v{vCs}, s{sT0}, v{vCs}
        v_cmp_gt_u32 vcc, 16, v{vLane}
        v_mov_b32 v100, {OOB}
        v_add_u32 v{vCg}, s{sGR}, v{vCg}
        v_cndmask_b32 v{vCs}, v100, v{vCs}, vcc""")
    if CFG['clr']==0: clears(a)
    a.stamp("setup done","f")

def ssm_loads(a):
    a(f"s_mul_i32 s{sT0}, s{sKH}, {UCH}\ns_lshl_b32 s{sT1}, s{sCHH}, 11\ns_add_u32 s{sT0}, s{sT0}, s{sT1}\ns_add_u32 m0, s{sT0}, {L_U+512}")
    a(f"buffer_load_dwordx4 v{vL}, {srd(SH_)}, s{sT1} offen lds\nbuffer_load_dwordx4 v{vL}, {srd(SH_)}, s{sT1} offen offset:1024 lds","ssm")
    a.lw(2,(L_U+512,L_U+UCH),(L_U+UCH+512,L_U+2*UCH))
    a(f"buffer_load_ushort v{vD}, v{vD}, {srd(SD_)}, 0 offen")

def clears(a,tok=None):
    a("v_mov_b32 v112, -1\nv_mov_b32 v113, -1\nv_mov_b32 v114, -1\nv_mov_b32 v115, -1")
    a(f"""buffer_store_dwordx4 {V(112)}, v{vYo}, {srd(WS)}, 0 offen sc1
        buffer_store_dwordx4 {V(112)}, v{vYo}, {srd(WS)}, s{sMB} offen sc1
        buffer_store_dwordx4 {V(112)}, v{vCg}, {srd(WS)}, 0 offen sc1
        buffer_store_dwordx4 {V(112)}, v{vCs}, {srd(WS)}, 0 offen sc1""",tok)

def w_setup(a):
    lane,j,q=vLane,vJ,vQ
    for b in range(3):
        a(f"v_add_u32 v100, {64*b}, v{lane}\nv_mul_u32_u24 v101, 43691, v100\nv_lshrrev_b32 v101, 19, v101")
        a(f"v_mul_u32_u24 v102, 12, v101\nv_sub_u32 v100, v100, v102\nv_lshlrev_b32 v100, 4, v100")
        if CFG['swz']:
            a("v_lshrrev_b32 v102, 3, v101\nv_lshlrev_b32 v102, 5, v102\nv_sub_u32 v100, v100, v102\nv_add_u32 v102, 192, v100\nv_min_u32 v100, v100, v102")
        a(f"v_mul_u32_u24 v101, 2752, v101\nv_add_u32 v{vW1[b]}, v100, v101")
        if CFG['z14']: a(f"s_cmp_eq_u32 s{sM}, 14\ns_cselect_b32 s{sT0}, 64, 192\nv_cmp_gt_u32 vcc, s{sT0}, v100\nv_mov_b32 v101, 0x40000000\nv_cndmask_b32 v{vW1[b]}, v101, v{vW1[b]}, vcc")
    a(f"s_mul_i32 s{sT0}, s{sWV}, {16*2752}\ns_mul_i32 s{sT1}, s{sM}, 192\ns_add_u32 s{sT0}, s{sT0}, s{sT1}")
    for b in range(3):
        a(f"v_add_u32 v{vW1[b]}, s{sT0}, v{vW1[b]}")
        if b: a(f"v_subrev_u32 v{vW1[b]}, {1024*b}, v{vW1[b]}")
    a(f"""v_bfe_u32 v100, v{lane}, 2, 2
        v_lshl_add_u32 v100, v{q}, 3, v100
        v_and_b32 v101, 3, v{lane}
        v_mul_u32_u24 v102, 192, v100
        s_mul_i32 s{sT0}, s{sWV}, 48
        v_and_b32 v104, {1 if CFG['swz'] else 0}, v{q}
        v_lshlrev_b32 v104, 5, v104
        v_add_u32 v104, s{sT0}, v104
        v_lshl_add_u32 v103, v101, 3, v104
        v_subrev_u32 v105, 192, v103
        v_min_u32 v103, v103, v105
        v_add_u32 v{vTa}, v102, v103
        v_lshrrev_b32 v103, 1, v101
        v_lshl_add_u32 v103, v103, 3, v104
        v_add_u32 v103, 32, v103
        v_subrev_u32 v105, 192, v103
        v_min_u32 v103, v103, v105
        v_add_u32 v102, v102, v103
        v_and_b32 v103, 1, v101
        v_mul_u32_u24 v103, 12288, v103
        v_add_u32 v{vTm}, v102, v103
        v_lshlrev_b32 v102, 7, v100
        v_lshl_add_u32 v102, v101, 4, v102
        s_lshl_b32 s{sT1}, s{sWV}, 12
        s_add_u32 s{sT1}, s{sT1}, {L_PP}
        v_add_u32 v{vT2}, s{sT1}, v102
        s_mul_i32 s{sW1W}, s{sWV}, 3072""")

def c_dma(n, slot):
    if CFG.get('now1'): return []
    L=M(f"s_add_u32 s{sWo}, s{sX}, {n}\ns_and_b32 s{sWo}, s{sWo}, 7\ns_mul_i32 s{sWo}, s{sWo}, {64*2752}") if CFG['rot'] else M(f"s_mov_b32 s{sWo}, {n*64*2752}")
    for mat,S in ((0,SWG),(1,SWU)):
        L+=M(f"s_add_u32 m0, s{sW1W}, {slot+mat*12288}")
        for b in range(3): L+=M(f"buffer_load_dwordx4 v{vW1[b]}, {srd(S)}, s{sWo} offen offset:{1024*b} lds",f"c{n}")
    return LW(L,(slot,slot+WSL))
def c_read(n, slot):
    if CFG.get('now1'): return []
    L=M(f"v_add_u32 v{vWc0}, {slot}, v{vTa}\nv_add_u32 v{vWc1}, {slot}, v{vTm}")
    for sp in range(2):
        s=2*n+sp
        for hh in range(2):
            o=sp*6144+hh*768
            L+=M(f"""ds_read_b64_tr_b16 {W1h(s,0,hh)}, v{vWc0} offset:{o}
                     ds_read_b64_tr_b16 {W1h(s,1,hh)}, v{vWc0} offset:{o+12288}
                     ds_read_b64_tr_b16 {W1h(s,2,hh)}, v{vWc1} offset:{o}""",f"cr{n}")
    return LR(L,(slot,slot+WSL))
def pp_setup():
    return M(f"""s_lshl_b32 s{sT0}, s{sWV}, 8
        s_add_u32 s{sT0}, s{sT0}, s2
        s_mul_i32 s{sT1}, s{sT0}, 1525
        s_lshr_b32 s{sT1}, s{sT1}, 16
        s_mul_i32 s{sT2}, s{sT1}, 43
        s_sub_u32 s{sT2}, s{sT0}, s{sT2}
        s_lshl_b32 s{sPS}, s{sT2}, 15
        s_lshl_b32 s{sT3}, s{sT1}, 7
        s_add_u32 s{sPS}, s{sPS}, s{sT3}
        s_mul_i32 s{sPD}, s{sT1}, 86
        s_add_u32 s{sPD}, s{sPD}, s{sT2}
        s_lshl_b32 s{sPD}, s{sPD}, 11
        s_add_u32 s{sPD}, s{sPD}, {OFF_P2}
        s_lshl_b32 s{sPF}, s{sT0}, 7
        s_add_u32 s{sPF}, s{sPF}, {OFF_P2F}
        s_cmp_lt_u32 s{sT0}, 344
        s_cselect_b32 s{sPS}, s{sPS}, {OOB}
        s_cselect_b32 s{sPD}, s{sPD}, {OOB}
        s_cselect_b32 s{sPF}, s{sPF}, {OOB}
        s_lshl_b32 s{sT0}, s{sCT2}, 1
        s_add_u32 s{sT0}, s{sT0}, s{sCHH}
        s_mul_i32 s{sT0}, s{sT0}, 43
        s_mul_i32 s{sT1}, s{sKH}, 21
        s_add_u32 s{sT0}, s{sT0}, s{sT1}
        s_lshl_b32 s{sT0}, s{sT0}, 11
        s_add_u32 s{sW2B}, s{sT0}, {OFF_P2}
        s_cmp_eq_u32 s{sKH}, 0
        s_cselect_b32 s{sW20}, s{sW2B}, {OOB}""")
def pp_load():
    L=M(f"s_lshl_b32 s{sT3}, s{sWV}, 12")
    for r in range(4):
        L+=M(f"s_add_u32 m0, s{sT3}, {L_PP+1024*r}\ns_add_u32 s{sWo}, s{sPS}, {8192*r}")
        L+=M(f"buffer_load_dwordx4 v{vW2}, {srd(SWD)}, s{sWo} offen lds","pp")
    for x in L: x.priv=1
    return LW(L,(L_PP,L_PP+16384))
def touches():
    return M(f"""buffer_load_dword v{vCg}, v{vCg}, {srd(WS)}, 0 offen sc1
        buffer_load_dword v{vCs}, v{vCs}, {srd(WS)}, 0 offen sc1
        buffer_load_dword v{vFT}, v{vFT}, {srd(WS)}, 0 offen sc1""")[:2 if CFG['ft1'] else 3]
def extras(pos): return (pp_load() if CFG['ppat']==pos else [])+(touches() if CFG['tat']==pos else [])+(h_touch(TCHK()) if CFG['hat']==pos else [])
def pp_pack():
    L=[('WVM','pp')]
    for c in range(2):
        for t in range(2):
            for hh in range(2): L+=LR(M(f"ds_read_b64_tr_b16 {V(W2V+8*c+4*t+2*hh,2)}, v{vT2} offset:{hh*512+64*c+8*t}"),(L_PP,L_PP+16384))
    for x in L[1:]: x.priv=1
    S=[]
    for c in range(2):
        S+=M(f"s_add_u32 s{sT2}, s{sPD}, {c*43*2048}")
        for t in range(2): S+=M(f"buffer_store_dwordx4 {V(W2V+8*c+4*t)}, v{vL}, {srd(WS)}, s{sT2} offen offset:{1024*t} sc1","pps")
    return L,S
def w2_loads():
    L=[]
    for i in range(CFG.get('w2n',22)):
        so=sW20 if i==0 else (sW2B if i==1 else sPS)
        if i>=2 and i%2==0: L+=M(f"s_add_u32 s{sPS}, s{sW2B}, {i*2048}")
        for t in range(2): L+=M(f"buffer_load_dwordx4 {W2(i,t)}, v{vL}, {srd(WS)}, s{so} offen offset:{(i&1)*2048+t*1024} sc1",f"w2_{i}")
    return L
W2Q=[]
def w2_take(n):
    out=[]
    while W2Q and n>0:
        x=W2Q.pop(0); out.append(x)
        if x.kind=='vmem': n-=1
    return out

PLANS={
 0:dict(),
 1:dict(FL="i0", T2="i1", CV=[("a",20,"r0"),("d",40,"i2"),("a",84,"w1 b r1"),("d",100,"i3@0")], YS="i4@5", YA="w3 b r2 r3", GL="i5@1 w4 l b r4", ST="i6@2", PEND=[5,6], REST=["7@0"]),
 3:dict(FL="i0", T2="i1 w0 b r0", CV=[("d",2,"i2"),("d",68,"i3@0")], CE="w2", YS="r1 r2 i4@3", F1="r3", F2="i5@1", FB="r4", XD="", PEND=[5], REST=["6@2","7@0"]),
 6:dict(T2="i0", CV=[("d",40,"i1"),("d",90,"i2")], CE="w1", YS="i3@3 r0 r1", SA="w2", F1="r2 i4@0", F2="", FX="i5@1", SB="w4", FB="r3 r4", XD="", PEND=[5], REST=["6@2","7@0"]),
 8:dict(T0="i0", FL="i1", T2="i2 w1 b r0 r1", CV=[("d",20,"i3@0"),("d",68,"i4@1")], CE="w3", YS="i5@3 r2 r3", F1="r4", F2="i6@2", FX="i7@0", FB="r5", PEND=[6,7]),
 12:dict(T0="i0", FL="i1", T2="i2 w1 b r0 r1", CV=[("d",20,"i3@0"),("d",68,"i4@1")], CE="w3", YS="i5@3 r2 r3", F1="r4", F2="i6@2", FX="i7@0", FB="r5", XD="p6", PEND=[6,7]),
 13:dict(T0="i0", FL="i1", T2="i2", CV=[("a",6,"r0 r1"),("a",52,"L1 b"),("d",54,"i3@0"),("d",100,"i4@1")], CE="w3", YS="i5@3 r2 r3", SA="w4", F1="r4", F2="i6@2", FX="i7@0", FB="r5", PEND=[6,7]),
 14:dict(T0="i0", T2="i1", CV=[("a",6,"r0"),("d",24,"i2"),("d",70,"i3@0")], CE="w2", YS="i4@3 r1 r2", F1="r3", F2="i5@1", FX="i6@2", FB="r4", PEND=[5,6], REST=["7@0"]),
 15:dict(FL="i0", T2="i1", CV=[("a",6,"r0"),("d",4,"i2"),("a",40,"w1 L0 b r1"),("d",50,"i3@0"),("a",94,"w2 L1 b r2"),("d",98,"i4@1")], CE="w3", YS="i5@3 r3", SA="w4", F1="r4", F2="i6@2", FX="i7@0", FB="r5", PEND=[6,7]),
 16:dict(T1="i0", T2="i1", CV=[("a",6,"r0"),("d",4,"i2"),("a",40,"w1 L0 b r1"),("d",50,"i3@0"),("a",94,"w2 L1 b r2"),("d",98,"i4@1")], CE="w3", YS="i5@3 r3", SA="w4", F1="r4", F2="i6@2", FX="i7@0", FB="r5", PEND=[6,7]),
 22:dict(T0="i0", FL="i1", T2="i2", CV=[("a",6,"r0 r1"),("a",52,"L1 b"),("d",54,"i3@0"),("d",100,"i4@1")], CE="w3", YS="i5@3 r2 r3 w4 l b r4", F2="i6@2", FX="l b i7@1", FB="r5", XB="l b", PEND=[6,7]),
 23:dict(T0="i0", FL="i1", T2="i2", CV=[("a",6,"r0 r1"),("a",52,"L1 b"),("d",54,"i3@0"),("d",100,"i4@1")], CE="w3", YS="i5@3 r2 r3", F2="w4 l b i6@2 r4", FX="i7@0", FB="r5", XB="l b", PEND=[6,7]),
 24:dict(T0="i0", FL="i1", T2="i2", CV=[("a",6,"r0 r1"),("a",52,"L1 b"),("d",54,"i3@0"),("g",0,"i4@1")], CE="w3", SA="w4", YS="i5@3 r2 r3 r4", F2="l b i6@2", FX="i7@0", FB="r5", XB="l b", PEND=[6,7]),
 25:dict(T0="i0", FL="i1", T2="i2", CV=[("a",6,"r0 r1"),("a",44,"L1 b"),("d",46,"i3@0"),("d",72,"i4@1")], CE="w3", SA="w4", YS="i5@3 r2 r3 r4", F2="l b i6@2", FX="i7@0", FB="r5", XB="l b", PEND=[6,7]),
 26:dict(T0="i0", T1="i1", T2="i2", CV=[("a",6,"r0 r1"),("a",52,"L1 b"),("d",54,"i3@0"),("d",100,"i4@1")], CE="w3", SA="w4", YS="i5@3 r2 r3 r4", F2="l b i6@2", FX="i7@0", FB="r5", XB="l b", PEND=[6,7]),
 27:dict(T1="i0", FL="i1", T2="i2", CV=[("a",6,"r0 r1"),("a",52,"L1 b"),("d",54,"i3@0"),("d",100,"i4@1")], CE="w3", SA="w4", YS="i5@3 r2 r3 r4", F2="l b i6@2", FX="i7@0", FB="r5", XB="l b", PEND=[6,7]),
 28:dict(T0="i0", T1="i1", FL="i2", CV=[("a",6,"r0 r1"),("a",52,"L1 b"),("d",54,"i3@0"),("d",100,"i4@1")], CE="w3", SA="w4", YS="i5@3 r2 r3 r4", F2="l b i6@2", FX="i7@0", FB="r5", XB="l b", PEND=[6,7]),
 29:dict(T0="i0 i1", T2="i2", CV=[("a",6,"r0 r1"),("a",52,"L1 b"),("d",54,"i3@0"),("d",100,"i4@1")], CE="w3", SA="w4", YS="i5@3 r2 r3 r4", F2="l b i6@2", FX="i7@0", FB="r5", XB="l b", PEND=[6,7]),
 30:dict(T1="i0", FL="i1", T2="i2", CV=[("a",6,"r0 r1"),("a",44,"L1 w2 b r2"),("d",46,"i3@0"),("d",76,"i4@1"),("a",90,"L2 b"),("d",108,"i5@2")], CE="w3", SA="w4", YS="i6@3 r3 r4", F2="w5 l b i7@0 r5", FB="r6", XB="l b", PEND=[7]),
 31:dict(T1="i0", FL="i1", T2="i2", CV=[("a",6,"r0 r1"),("a",52,"L1 b"),("d",54,"i3@0"),("d",100,"i4@1")], CE="w3", SA="w4", YS="i5@3 r2 r3 r4", F2="l b i6@2", FB="r5", XB="l b", PEND=[6], REST=["7@0"]),
 33:dict(T1="i0", FL="i1", T2="i2", CV=[("a",6,"r0 r1"),("a",52,"L1 b"),("d",54,"i3@0"),("d",100,"i4@1")], CE="w3", SA="w4", YS="i5@3 r2 r3 r4", F2="l b i6@2", FB="i7@0 r5", XB="l b", PEND=[6,7]),
 34:dict(T1="i0", FL="i1", T2="i2", CV=[("a",6,"r0 r1"),("a",52,"L1 b"),("d",54,"i3@0"),("d",100,"i4@1")], CE="w3", SA="w4", YS="i5@3 r2 r3 r4", F2="l b i6@2 i7@0", FB="r5", XB="l b", PEND=[6,7]),
 35:dict(T1="i0", FL="i1", T2="i2", CV=[("a",6,"r0 r1"),("a",52,"L1 b"),("d",54,"i3@0"),("d",100,"i4@1")], CE="w3", SA="w4", YS="i5@3 i6@4 r2 r3 r4", FX="l b i7@0", SB="w6", FB="r5 r6", XB="l b", PEND=[7]),
 36:dict(T1="i0", FL="i1", T2="i2", CV=[("a",6,"r0 r1"),("a",52,"L1 b"),("d",54,"i3@0"),("d",100,"i4@1")], CE="w3", SA="w4", YS="i5@3 r2 r3 r4", F2="l b i6@2", FX="i7@0", FB="r5", XB="l b", XD="p4", PEND=[6,7]),
 37:dict(T1="i0", FL="i1", T2="i2", CV=[("a",6,"r0 r1"),("a",44,"L1 w2 b r2"),("d",46,"i3@0"),("d",66,"i4@1"),("a",80,"L2 b"),("d",88,"i5@2"),("a",100,"w3 b r3"),("a",120,"L3 b"),("d",126,"i6@0")], CE="w4", SA="w5", YS="i7@3 r4 r5", SB="w7", FB="r6 r7", XB="l b"),
 38:dict(T1="i0", FL="i1", T2="i2", CV=[("a",6,"r0 r1"),("a",44,"L1 w2 b r2"),("d",46,"i3@0"),("d",66,"i4@1"),("a",80,"L2 b"),("d",88,"i5@2")], CE="w4", SA="w5", YS="i6@3 r3 r4 r5", F2="l b i7@0", FB="r6", XB="l b", PEND=[7]),
 39:dict(T1="i0", FL="i1", T2="i2", CV=[("a",6,"r0 r1"),("a",44,"L1 w2 b r2"),("d",46,"i3@0"),("d",66,"i4@1"),("a",80,"L2 b"),("d",88,"i5@2")], CE="w4", Y0="i6@3", SA="w5", YS="i7@4 r3 r4 r5", SB="w7", FB="r6 r7", XB="l b"),
 17:dict(T0="i0", FL="i1", T2="i2", CV=[("a",6,"r0 r1"),("a",52,"L1 b"),("d",54,"i3@0"),("d",100,"i4@1")], CE="w3", Y0="i5@3", SA="w4", YS="r2 r3 r4", FX="l b i6@2", FB="i7@0 r5", PEND=[6,7]),
 18:dict(T0="i0", FL="i1", T2="i2", CV=[("a",6,"r0 r1"),("a",52,"L1 b"),("d",54,"i3@0"),("d",100,"i4@1")], CE="w3", SA="w4", YS="i5@3 r2 r3 r4", F2="l b i6@2", FX="i7@0", FB="r5", XB="l b", PEND=[6,7]),
 20:dict(T0="i0", FL="i1", T2="i2", CV=[("a",6,"r0 r1"),("a",52,"L1 b"),("d",54,"i3@0"),("d",100,"i4@1")], CE="w3", SA="w4", YS="i5@3 r2 r3 r4", FA="l b i6@2", FX="i7@0", FB="r5", PEND=[6,7]),
 21:dict(T0="i0", FL="i1", T2="i2", CV=[("a",6,"r0 r1"),("a",52,"L1 b"),("d",54,"i3@0"),("d",100,"i4@1")], CE="w3", Y0="i5@3", SA="w4", YS="r2 r3 r4 l b i6@2", FX="i7@0", FB="r5", PEND=[6,7]),
 19:dict(T0="i0", FL="i1", T2="i2", CV=[("a",6,"r0 r1"),("a",52,"L1 b"),("d",54,"i3@0"),("d",100,"i4@1")], CE="w3", Y0="i5@3", SA="w4", YS="r2 r3 r4", FA="l b i6@2", FX="i7@0", FB="r5", PEND=[6,7]),
 10:dict(T0="i0", T2="i1 w0 b r0", CV=[("d",20,"i2"),("d",68,"i3@0")], CE="w2", YS="i4@3 r1 r2", F1="r3", F2="i5@1", FX="i6@2", FB="r4", PEND=[5,6], REST=["7@0"]),
 11:dict(T0="i0", T1="i1", T2="i2 w1 b r0 r1", CV=[("d",14,"i3@0"),("d",56,"i4@1"),("a",70,"w2 b r2"),("a",96,"L2 b"),("d",100,"i5@2")], CE="w4", YS="i6@3 r3 r4", SA="w5", F1="r5", F2="i7@0", FB="r6", XD="p4", PEND=[7]),
 7:dict(FL="i0", T2="i1 w0 b r0", CV=[("d",20,"i2"),("d",68,"i3@0")], CE="w2", YS="i4@3 r1 r2", F1="r3", F2="i5@1", FX="i6@2", FB="r4", PEND=[5,6], REST=["7@0"]),
 4:dict(FL="i0", T2="i1 w0 b r0", CV=[("d",2,"i2"),("d",50,"i3@0")], CE="w2", YS="i4@3 r1 r2", F1="r3", F2="i5@1", FX="i6@2", FB="r4", PEND=[5,6], REST=["7@0"]),
 5:dict(T1="i0", FL="", T2="i1 w0 b r0", CV=[("d",2,"i2"),("d",46,"i3@0"),("a",60,"w1 b r1"),("a",84,"L1 b"),("d",92,"i4@1")], CE="w3", YS="i5@3 r2 r3", SA="w4", F1="r4", F2="i6@2", FX="i7@0", FB="r5", PEND=[6,7]),
 2:dict(FL="i0", T2="i1", CV=[("a",20,"r0"),("d",30,"i2"),("a",70,"w1 b r1"),("d",80,"i3@0"),("a",124,"w2 b r2")], YS="i4@5 i5@1", YA="w4 b r3 r4", GL="i6@2 w5 l b r5", ST="i7@0", PEND=[6,7], FA="p4", FB="p4", XD="p4"),
 9:dict(ST="i0 i1 "+" ".join(f"w{n} l b "+(f"i{n+2} " if n+2<8 else "")+f"r{n}" for n in range(8))+" l b"),
}
slot_of={}
def wops(txt):
    L=[]
    for op in txt.split():
        at=None
        if '@' in op: op,at=op.split('@'); at=int(at)
        k=int(op[1:]) if len(op)>1 else None
        if op[0]=='i': slot_of[k]=SLOT[at if at is not None else k%3]; L+=c_dma(k,slot_of[k])
        elif op[0]=='r': L+=c_read(k,slot_of[k])
        elif op[0]=='w': L.append(('WVM',f"c{k}"))
        elif op[0]=='l': L+=M("s_waitcnt lgkmcnt(0)")
        elif op[0]=='L': L.append(('WLG',f"cr{k}"))
        elif op[0]=='b': L+=M("s_barrier")
        elif op[0]=='p': L+=w2_take(k)
    return L
def PL(): return eval(CFG['plan']) if isinstance(CFG['plan'],str) else PLANS[CFG['plan']]
def Wp(a,point): a.flat(wops(PL().get(point,"")))

def toeplitz(a):
    a("s_waitcnt lgkmcnt(0)\ns_barrier")
    a(f"s_mul_i32 s{sT0}, s{sKH}, {UCH}\ns_add_u32 s{sT0}, s{sT0}, {L_U+512}\nv_add_u32 v54, s{sT0}, v52\nv_add_u32 v78, s{sT0}, v53")
    for rho,(va,off) in enumerate(((54,0),(54,1024),(78,0))):
        d=56+8*rho
        a(f"ds_read_b128 {V(d)}, v{va} offset:{off}\nds_read_b64 {V(d+4,2)}, v{va} offset:{off+16}","raw"); a.lr(2,(L_U,L_U+2*UCH))
    a(f"s_mul_i32 s{sT0}, s{sKH}, {TCH}\ns_add_u32 s{sT0}, s{sT0}, {L_TOEP+32}")
    a(f"v_add_u32 v52, s{sT0}, v52\nv_add_u32 v53, s{sT0}, v53")
    for rho,(va,off) in enumerate(((52,0),(52,1024),(53,0))):
        d=56+8*rho; t=100+12*(rho%2)
        a(f"ds_write_b128 v{va}, {V(d)} offset:{off}")
        for i in range(4): a(f"v_alignbit_b32 v{t+i}, v{d+i+1}, v{d+i}, 16")
        a(f"ds_write_b128 v{va}, {V(t)} offset:{off+TCP}")
        for i in range(4): a(f"v_mov_b32 v{t+4+i}, v{d+i+1}")
        a(f"ds_write_b128 v{va}, {V(t+4)} offset:{off+2*TCP}")
        for i in range(4): a(f"v_alignbit_b32 v{t+8+i}, v{d+i+2}, v{d+i+1}, 16")
        a(f"ds_write_b128 v{va}, {V(t+8)} offset:{off+3*TCP}"); a.lw(16,(L_TOEP,L_TOEP+2*TCH))
        if rho==1: a.waitlg("raw"); a("s_barrier")

def p0(a):
    a.waitvm("kv"); a("s_barrier")
    a.stamp("kv landed","f")
    KR=84; VR=94
    for i in range(5):
        R=4+4*i; a(f"ds_read_b64_tr_b16 {V(KR+2*i,2)}, v83 offset:{L_K+(R>>3)*CHP+(R&7)*128}")
    for i in range(4):
        R=4*i; a(f"ds_read_b64_tr_b16 {V(VR+2*i,2)}, v83 offset:{L_V+(R>>3)*CHP+(R&7)*128}")
    a.lr(9,(L_K,L_V+8*CHP))
    Wp(a,'T0')
    O=16
    if CFG['dot2']:
        a("""v_alignbit_b32 v40, v80, v80, 16
            v_alignbit_b32 v41, v81, v81, 16
            v_and_b32 v42, 0xffff, v80
            v_and_b32 v43, 0xffff0000, v81
            v_and_b32 v44, 0xffff0000, v80
            v_and_b32 v45, 0xffff, v81
            v_or_b32 v44, v44, v45""")
        for i in range(8):
            P=KR+2+i
            a(f"v_dot2_f32_bf16 v{O+2*i}, v{P}, v42, 0\nv_dot2_f32_bf16 v{O+2*i+1}, v{P}, v40, 0")
        for i in range(8):
            P=KR+2+i
            a(f"v_dot2_f32_bf16 v{O+2*i}, v{P-1}, v44, v{O+2*i}\nv_dot2_f32_bf16 v{O+2*i+1}, v{P-1}, v41, v{O+2*i+1}")
        for i in range(8): a(f"v_dot2_f32_bf16 v{O+2*i}, v{KR+i}, v43, v{O+2*i}")
    else:
        a("v_lshlrev_b32 v40, 16, v80\nv_and_b32 v41, 0xffff0000, v80\nv_lshlrev_b32 v42, 16, v81\nv_and_b32 v43, 0xffff0000, v81")
        K=lambda t: 108+t-2
        for i in range(10):
            if i>0: a(f"v_lshlrev_b32 v{102+2*i}, 16, v{KR+i}")
            a(f"v_and_b32 v{103+2*i}, 0xffff0000, v{KR+i}")
        for t in range(16):
            a(f"v_mul_f32 v{O+t}, v40, v{K(t)}")
            a(f"v_fmac_f32 v{O+t}, v41, v{K(t-1)}")
            a(f"v_fmac_f32 v{O+t}, v42, v{K(t-2)}")
            a(f"v_fmac_f32 v{O+t}, v43, v{K(t-3)}")
    for i in range(8):
        a(f"v_lshlrev_b32 v102, 16, v{VR+i}\nv_and_b32 v103, 0xffff0000, v{VR+i}")
        a(f"v_mul_f32 v{O+2*i}, v{O+2*i}, v102\nv_mul_f32 v{O+1+2*i}, v{O+1+2*i}, v103")
    for o in range(2):
        for d in range(4): a(f"v_cvt_pk_bf16_f32 v{KR+4*o+d}, v{O+8*o+7-2*d}, v{O+8*o+6-2*d}")
    for d in range(4): a(f"v_mov_b32 v{102+d}, v{KR+4+d}")
    for d in range(4): a(f"v_mov_b32_dpp v{KR+4+d}, v{KR+d} row_ror:8 row_mask:0xf bank_mask:0x3")
    for d in range(4): a(f"v_mov_b32_dpp v{KR+d}, v{102+d} row_ror:8 row_mask:0xf bank_mask:0xc")
    a(f"s_mov_b32 s{sT0}, 32768")
    a(f"buffer_store_dwordx4 {V(KR)}, v55, {srd(WS)}, 0 offen\nbuffer_store_dwordx4 {V(KR+4)}, v55, {srd(WS)}, s{sT0} offen","kvs")
    if CFG['utouch']==1: a(f"buffer_load_dword v{vTch}, v{vTch}, {srd(WS)}, 0 offen sc1")
    a.stamp("p0 computed","f")
    if CFG['clr']==1: clears(a)
    Wp(a,'T1')
    a(f"s_mov_b32 s{sCH}, s{sHELLO}\ns_getreg_b32 s{sHELLO}, hwreg(HW_REG_XCC_ID, 0, 4)")
    a(f"v_readfirstlane_b32 s{sTAG}, v51")
    a(f"s_add_u32 s{sTAG}, s{sTAG}, 0x9E3779B0\ns_and_b32 s{sTAG}, s{sTAG}, 0xFFFFFFF0\ns_and_b32 s{sHELLO}, s{sHELLO}, 15\ns_or_b32 s{sHELLO}, s{sHELLO}, s{sTAG}")
    a(f"v_mov_b32 v{vTAG}, s{sTAG}\nv_mov_b32 v98, s{sHELLO}")
    a.ext(pp_setup())
    a(f"""s_add_u32 s{sFLH}, s{sFLG}, s{sFL}
        s_lshl_b32 s{sC4}, s{sCHH}, 12
        s_mul_i32 s{sC3}, s{sCHH}, 3072
        s_lshl_b32 s{sM4}, s{sKH}, 14
        s_add_u32 s{sM3}, s{sM4}, s{sC3}
        s_add_u32 s{sM4}, s{sM4}, s{sC4}""")
    a(f"s_lshl_b32 s{sT0}, s{sX}, 2\ns_add_u32 s{sT1}, s{sT0}, s{sWV}\ns_lshl_b32 s{sT1}, s{sT1}, 5\ns_add_u32 s{sT1}, s{sT1}, s{sR}\ns_lshl_b32 s{sT1}, s{sT1}, 2\ns_add_u32 s{sT1}, s{sT1}, {OFF_F1L}")
    a(f"s_lshr_b32 s{sCK1}, s{sR}, 3\ns_add_u32 s{sCK1}, s{sCK1}, s{sT0}\ns_lshl_b32 s{sCK1}, s{sCK1}, 7\ns_add_u32 s{sCK1}, s{sCK1}, {OFF_F1L}")
    a(f"v_and_b32 v97, 31, v{vLane}\nv_lshlrev_b32 v97, 2, v97\ns_mov_b32 s{sMODE}, 0")
    if CFG['tpre']: a.waitvm("ssm"); toeplitz(a)
    a.waitvm("kvs")
    a(f"buffer_store_dword v98, v{vOne}, {srd(WS)}, s{sT1} offen")
    a.stamp("kvT published","f")
    if CFG['clr']==3: clears(a)
    if CFG['qat']==0: a(f"buffer_load_dwordx4 {V(vQT)}, v{vTok}, {srd(SQ_)}, 0 offen\nbuffer_load_dwordx4 {V(vQT+4)}, v{vTok}, {srd(SQ_)}, s{sMB} offen")
    a.flat(extras(0))
    Wp(a,'FL')
    if not CFG['tpre']: toeplitz(a)
    a(f"""s_lshl_b32 s{sT0}, s{sCH}, 12
        s_lshl_b32 s{sT1}, s{sCHH}, 11
        s_add_u32 s{sT0}, s{sT0}, s{sT1}
        s_add_u32 s{sT0}, s{sT0}, {OFF_KVT}
        s_mul_i32 s{sUO}, s{sKH}, {UCH}
        s_add_u32 s{sT1}, s{sT1}, s{sUO}""")
    a.stamp("toeplitz","f")
    o=Asm(); o.lab("L_f1r"); o(f"s_mov_b32 s{sCNT}, 0")
    if CFG['stamps']: site_names.append("f1"); o(f"s_bitset1_b32 s98, {len(site_names)-1}")
    o.lab("L_f1l")
    o(f"""buffer_load_dword v99, v97, {srd(WS)}, s{sCK1} offen sc1
        s_waitcnt vmcnt(0)
        v_cmp_ne_u32 vcc, s{sHELLO}, v99
        s_cbranch_vccz L_f1b
        s_add_u32 s{sCNT}, s{sCNT}, 1
        s_cmp_lt_u32 s{sCNT}, {CFG['f1max']}
        s_cbranch_scc1 L_f1l""")
    o.lab("L_f1s")
    o(f"""s_mov_b32 s{sMODE}, 1
        s_mov_b32 s{sT2}, 32768
        buffer_store_dwordx4 {V(KR)}, v55, {srd(WS)}, 0 offen sc1
        buffer_store_dwordx4 {V(KR+4)}, v55, {srd(WS)}, s{sT2} offen sc1
        s_lshl_b32 s{sT2}, s{sX}, 2
        s_add_u32 s{sT3}, s{sT2}, s{sWV}
        s_lshl_b32 s{sT3}, s{sT3}, 5
        s_add_u32 s{sT3}, s{sT3}, s{sR}
        s_lshl_b32 s{sT3}, s{sT3}, 7
        s_add_u32 s{sT3}, s{sT3}, {OFF_F1}
        s_lshr_b32 s{sCK1}, s{sR}, 3
        s_add_u32 s{sCK1}, s{sCK1}, s{sT2}
        s_lshl_b32 s{sCK1}, s{sCK1}, 12
        s_add_u32 s{sCK1}, s{sCK1}, {OFF_F1}
        v_lshlrev_b32 v97, 5, v97
        s_waitcnt vmcnt(0)
        buffer_store_dword v{vTAG}, v{vOne}, {srd(WS)}, s{sT3} offen sc1
        s_mov_b32 s{sCNT}, 0""")
    o.lab("L_f1g")
    o(f"""buffer_load_dword v99, v97, {srd(WS)}, s{sCK1} offen sc1
        s_waitcnt vmcnt(0)
        v_cmp_ne_u32 vcc, s{sTAG}, v99
        s_cbranch_vccz L_f1b
        s_add_u32 s{sCNT}, s{sCNT}, 1
        s_cmp_lt_u32 s{sCNT}, {POLLMAX}
        s_cbranch_scc1 L_f1g
        s_branch L_f1b""")
    a.ool.append(o.L)
    ck=M(f"v_cmp_ne_u32 vcc, s{sHELLO}, v99\ns_cbranch_vccnz L_f1r\nL_f1b:") if CFG['slow']!=2 else M("s_waitcnt vmcnt(0)\ns_branch L_f1s\nL_f1b:")
    a(f"buffer_load_dword v99, v97, {srd(WS)}, s{sCK1} offen sc1")
    a(f"""s_lshl_b32 s{sT3}, s{sCHH}, 8
        s_sub_u32 s{sT2}, s{sUO}, s{sT3}
        s_add_u32 s{sT2}, s{sT2}, {L_U+480-192}
        v_lshlrev_b32 v141, 5, v{vJ}
        v_lshl_add_u32 v141, v{vQ}, 4, v141
        v_add_u32 v141, s{sT2}, v141
        v_add_u32 v142, 1, v{vJ}
        v_and_b32 v143, 3, v142
        v_mul_u32_u24 v143, {TCP}, v143
        v_lshrrev_b32 v142, 2, v142
        v_lshl_add_u32 v142, v142, 3, v143
        v_lshlrev_b32 v143, 4, v{vQ}
        v_sub_u32 v142, v142, v143
        s_mul_i32 s{sT2}, s{sKH}, {TCH}
        s_add_u32 s{sT2}, s{sT2}, s{sT3}
        s_add_u32 s{sT2}, s{sT2}, {L_TOEP+48}
        v_add_u32 v142, s{sT2}, v142
        s_add_u32 m0, s{sT1}, {L_U+512}""")
    a.flat(ck)
    a.stamp("f1 seen","f")
    a(f"buffer_load_dwordx4 v{vL}, {srd(WS)}, s{sT0} offen sc1 lds","u")
    a(f"buffer_load_dwordx4 v{vL}, {srd(WS)}, s{sT0} offen offset:1024 sc1 lds","u")
    a.lw(2,(L_U+512,L_U+UCH),(L_U+UCH+512,L_U+2*UCH))
    if CFG['clr']==4: clears(a,"clr")
    if CFG['clr'] in(1,3): a(f"buffer_store_dword v98, v{vOne}, {srd(WS)}, s{sHF} offen sc1")
    a.flat(extras(5))
    Wp(a,'T2')
    a(f"v_lshlrev_b32 v{vD}, 16, v{vD}")
    a.waitvm("u"); a("s_waitcnt lgkmcnt(0)\ns_barrier")
    a.stamp("U landed","f")

def conv_backbone():
    ACC=40; GR=72; Ureg=[16,20,24,28,32,36,104,108]
    seq=[]
    for it in range(4):
        o=4*(it&1)
        for e in range(4):
            for w in range(3-e,-1,-1): seq.append((w+e,o+e,o+w,('G',e,it,1),('U',w,it,1),it==0 and e==0))
    n1=len(seq)
    for it in range(4):
        pairs=[(e,w) for e in range(8) for w in range(7-e,max(0,4-e)-1,-1)]
        if it==0: pairs=[p for p in pairs if p[0]<4 and p[1]<4]+[p for p in pairs if not(p[0]<4 and p[1]<4)]
        seen=set()
        for e,w in pairs:
            seq.append((w+e,e,w,('G',e,it,2),('U',w,it,2),it==0 and (w+e) not in seen)); seen.add(w+e)
    reads={}; lastuse={}
    for n,(c,g,u,gid,uid,f) in enumerate(seq):
        for ph,i in ((('G',g),gid),(('U',u),uid)):
            if i not in reads: reads[i]=dict(ph=ph,need=n,earliest=lastuse.get(ph,-1))
            lastuse[ph]=n
    def emit(i):
        kind,k,it,_=i; ph=reads[i]['ph'][1]
        if kind=='U': return [LR(mk(f"ds_read_b128 {V(Ureg[ph])}, v141 offset:{512*k+192-64*it}"),(L_U,L_U+2*UCH))]
        return LR([mk(f"ds_read_b64 {V(GR+4*ph,2)}, v142 offset:{512*k+64*it}"),mk(f"ds_read_b64 {V(GR+4*ph+2,2)}, v142 offset:{512*k+64*it+8}")],(L_TOEP,L_TOEP+2*TCH))
    todo=[]
    for i in sorted(reads,key=lambda i:reads[i]['need']):
        for x in emit(i): todo.append((reads[i]['earliest'],reads[i]['need'],x))
    bb=[x for e,n,x in todo if n<4]; todo=[t for t in todo if t[1]>=4]
    for n,(c,g,u,gid,uid,f) in enumerate(seq):
        bb.append(mk(f"v_mfma_f32_16x16x32_bf16 {V(ACC+4*c)}, {V(GR+4*g)}, {V(Ureg[u])}, {'0' if f else V(ACC+4*c)}"))
        k=0
        while True:
            cand=[t for t in todo if t[0]<=n]
            if not cand: break
            t=cand[0]
            if k>=1 and not(k<2 and t[1]-n<=CFG['cla']) and not t[1]-n<=2: break
            bb.append(t[2]); todo.remove(t); k+=1
    assert not todo
    return bb,n1

def conv_epi(st):
    ACC=40+16*st; P=vPK+4*st; R=(L_CX,L_CX+16384)
    W=LW([mk(f"ds_write_b128 v{vCXw}, {V(ACC+4*k)} offset:{1024*k}",f"cx{st}") for k in range(4)],R)
    K=LR([mk(f"ds_read_b64 {V(vKD+2*k,2)}, v{vKV} offset:{2048*st+512*k}") for k in range(2)],(L_U,L_U+2*UCH))
    L=[]
    for k in range(2): L+=LR(M(f"ds_read_b128 {V(ACC+4*k)}, v{vCXo} offset:{1024*k}\nds_read_b128 {V(ACC+8+4*k)}, v{vCXp} offset:{1024*k}",f"cy{st}"),R)
    for k in range(2):
        A=ACC+4*k
        L+=M(f"v_and_b32 v{vUP}, 0xffff0000, v{vKD+1+2*k}\nv_lshlrev_b32 v{vUP+1}, 16, v{vKD+1+2*k}\nv_and_b32 v{vUP+2}, 0xffff0000, v{vKD+2*k}\nv_lshlrev_b32 v{vUP+3}, 16, v{vKD+2*k}")
        for r in range(4): L+=M(f"v_fmac_f32 v{A+r}, v{vD}, v{vUP+r}")
        for r in range(4): L+=M(f"v_add_f32 v{A+r}, v{A+r}, v{A+8+r}")
        L+=M(f"v_cvt_pk_bf16_f32 v{P+2*k}, v{A}, v{A+1}\nv_cvt_pk_bf16_f32 v{P+1+2*k}, v{A+2}, v{A+3}")
    L+=M(f"s_nop 0\nv_permlane16_swap_b32 v{P}, v{P+2}\nv_permlane16_swap_b32 v{P+1}, v{P+3}")
    L+=M(f"buffer_store_dwordx4 {V(P)}, v{vYo}, {srd(WS)}, {'0' if st==0 else 's%d'%sMB} offen sc1",f"yt{st}")
    return W+K,L

def y_check(a,mu):
    D=vGD+4*mu
    return a.check([f"buffer_load_dwordx4 {V(D)}, v{vGA}, {srd(WS)}, {'0' if mu==0 else 's%d'%sMB} offen sc1"],
         [f"v_max3_u32 v{vGC}, v{D}, v{D+1}, v{D+2}",f"v_max_u32 v{vGC}, v{vGC}, v{D+3}",f"v_cmp_eq_u32 vcc, -1, v{vGC}"],"yt")
def y_stage(a,mu,mid=[]):
    a(f"ds_write_b128 v{vGW}, {V(vGD+4*mu)} offset:{4096*mu}"); a.lw(1,(L_YS+4096*mu,L_YS+4096*mu+4096))
    a.flat(mid)
    a("s_waitcnt lgkmcnt(0)\ns_barrier")
    for hh in range(2):
        a(f"ds_read_b64_tr_b16 {V(vYY[mu]+2*hh,2)}, v{vGT} offset:{4096*mu+256*hh}")
        a.lr(1,(L_YS+4096*mu,L_YS+4096*mu+4096))

def x0_state(mu):
    S=SX[mu]; L=M(f"v_mov_b32 v{vGC}, 0x3f803f80")
    for i in range(4): L+=M(f"v_lshlrev_b32 v{vXst[mu]+2*i}, 16, v{vQT+4*mu+i}\nv_and_b32 v{vXst[mu]+2*i+1}, 0xffff0000, v{vQT+4*mu+i}")
    for i in range(4):
        q=vQT+4*mu+i
        L+=M(f"v_dot2_f32_bf16 v{S}, v{q}, v{vGC}, {'0' if i==0 else 'v%d'%S}\nv_dot2_f32_bf16 v{S+1}, v{q}, v{q}, {'0' if i==0 else 'v%d'%(S+1)}")
    return L

def conv(a):
    C=CFG
    bb,n1=conv_backbone()
    qld=M(f"""buffer_load_dwordx4 {V(vQT)}, v{vTok}, {srd(SQ_)}, 0 offen
        buffer_load_dwordx4 {V(vQT+4)}, v{vTok}, {srd(SQ_)}, s{sMB} offen
        buffer_load_dword v{vCg}, v{vCg}, {srd(WS)}, 0 offen sc1
        buffer_load_dword v{vCs}, v{vCs}, {srd(WS)}, 0 offen sc1
        buffer_load_dword v{vFT}, v{vFT}, {srd(WS)}, 0 offen sc1""")
    hl,hc=a.check([f"buffer_load_dwordx4 {V(112)}, v{vHa}, {srd(WS)}, 0 offen sc1"],
         [f"v_xor_b32 v113, s{sTAG}, v113",f"v_xor_b32 v114, s{sTAG}, v114",f"v_xor_b32 v115, s{sTAG}, v115",
          "v_or3_b32 v113, v113, v114, v115",f"v_xor_b32 v114, s{sTAG}, v112","v_or_b32 v113, v113, v114","v_cmp_lt_u32 vcc, 15, v113"],"h2")
    pk,ps=pp_pack()
    dmas=paced((qld[:2] if C['qat']==1 else [])+extras(1),3); fill=[]
    for kind,at,ops in PL().get('CV',[]):
        it=wops(ops)
        if kind=='d': dmas+=[('AT',at)]+paced(it,C['cgap'])
        elif kind=='g': dmas+=[('AFTER','g0')]+paced(it,3)
        else:
            k=[i for i,x in enumerate(it) if isinstance(x,I) and x.op=='s_barrier']
            if k: it=[it[:k[0]+1]]+it[k[0]+1:]
            fill+=[('AT',at)]+it
    dmas+=[('AT',C['hmid'])]+paced(extras(6),3)
    w0,e0=conv_epi(0)
    gl,a.gcA=y_check(a,0)
    crit=([('AT',C['chl'])]+hl+[('SYNC','hl')] if C['hpri'] else [])+[('AT',n1+2),('DENS',C['cdens'])]+w0+[('GAP',3),[('WLG','cx0'),mk("s_barrier")]]+e0[:-1]+([] if C['clr']==4 else [('AFTER','hl')])+e0[-1:]+[('DENS',0),('SYNC','y0'),('AFTER','hl',C['chc'])]+hc \
        +[[('WLG','cy0'),mk("s_barrier")],('AFTER','y0',C['cack']),('WVM','yt0')]+gl+[('SYNC','g0')]
    ann=[('AT',C['cann']),('WVM','clr')]+M(f"buffer_store_dword v{vTAG}, v{vOne}, {srd(WS)}, s{sHF} offen sc1") if C['clr']==4 else []
    third=ann+([] if C['hpri'] else [('AT',C['chl'])]+hl+[('SYNC','hl')])+[('AFTER','g0'),('AFTER','dd')]+paced((qld[:2] if C['qat']==2 else [])+extras(2),2)
    a.weave(bb,crit,dmas+[('SYNC','dd')],fill,third,slots=C['cslots'],name='CV')
    a.stamp("conv mfma done","f")
    w1,e1=conv_epi(1)
    if CFG.get('trace')=='CV': a("v_mov_b32 v194, v140")
    if C['afirst']:
        a.flat(w1); a.flat(x0_state(0)); a.flat(a.gcA)
        a.stamp("yT stored","f"); a.stamp("yA gathered","f")
        y_stage(a,0,wops(PL().get('CE',"")))
    else:
        Wp(a,'CE')
        a.flat(w1); a("s_waitcnt lgkmcnt(0)\ns_barrier"); a.flat(e1)
        a.stamp("yT stored","f")
        Wp(a,'Y0')
        a.flat(x0_state(0))
        a.flat(a.gcA)
        a.stamp("yA gathered","f")
        y_stage(a,0,wops(PL().get('SA',"")))
    Wp(a,'ST')
    if CFG['slow']: a(f"s_cmp_lg_u32 s{sMODE}, 0\ns_cbranch_scc1 L_slow")

def unpackY(mu,T):
    L=[]
    for i in range(4): L+=M(f"v_lshlrev_b32 v{T+2*i}, 16, v{vYY[mu]+i}\nv_and_b32 v{T+2*i+1}, 0xffff0000, v{vYY[mu]+i}")
    return L
def treduce(s0,s1,s2,s3,gap=[]):
    return M(f"v_permlane32_swap_b32 v{s0}, v{s2}\nv_permlane32_swap_b32 v{s1}, v{s3}\nv_add_f32 v{s0}, v{s0}, v{s2}\nv_add_f32 v{s1}, v{s1}, v{s3}")+gap+M(f"v_permlane16_swap_b32 v{s0}, v{s1}\nv_add_f32 v{s0}, v{s0}, v{s1}")

SX=[104,106]
def fin1a(mu,S=None):
    X=vXst[mu]; S=SX[mu] if S is None else S
    L=M(f"v_add_f32 v{S}, v{X}, v{X+1}\nv_mul_f32 v{S+1}, v{X}, v{X}")
    for e in range(1,8):
        if e>1: L+=M(f"v_add_f32 v{S}, v{S}, v{X+e}")
        L+=M(f"v_fmac_f32 v{S+1}, v{X+e}, v{X+e}")
    return L
def fin1(a, layer, mu, T, unpacked=False, S=None):
    X=vXst[mu]; L=[] if unpacked else unpackY(mu,T); S=T+8 if S is None else S
    s0=SX[mu] if layer==0 else S
    A=[] if layer==0 else fin1a(mu,S)
    Bq=M(f"v_mul_f32 v{S+2}, v{X}, v{T}\nv_add_f32 v{S+3}, v{T}, v{T+1}")
    for e in range(1,8):
        Bq+=M(f"v_fmac_f32 v{S+2}, v{X+e}, v{T+e}")
        if e>1: Bq+=M(f"v_add_f32 v{S+3}, v{S+3}, v{T+e}")
    while A or Bq:
        if A: L.append(A.pop(0))
        if Bq: L.append(Bq.pop(0))
    L+=treduce(s0,s0+1,S+2,S+3,M(f"s_add_u32 s{sT0}, s{sGR}, {(layer*2+mu)*262144}"))
    L+=M(f"buffer_store_dword v{s0}, v{vGs}, {srd(WS)}, s{sT0} offen{a.sc}")
    return L

def fin2(a, layer, mu, T, Y=None):
    X=vXst[mu]; Gd=T; up=unpackY(mu,T+16) if Y is None else []; Y=T+16 if Y is None else Y
    ld,ck=a.check([f"buffer_load_dwordx4 {V(Gd+4*i)}, v{vGl}, {srd(WS)}, s{sCK2} offen offset:{256*i} sc1" for i in range(4)],
         ([f"v_max3_u32 v{PT}, v{Gd}, v{Gd+1}, v{Gd+2}"]+[f"v_max3_u32 v{PT}, v{PT}, v{Gd+3+2*i}, v{Gd+4+2*i}" for i in range(6)]+[f"v_max_u32 v{PT}, v{PT}, v{Gd+15}"])+[f"v_cmp_eq_u32 vcc, -1, v{PT}"],"gr")
    ld=M(f"s_add_u32 s{sCK2}, s{sGRl}, {(layer*2+mu)*262144}")+ld+up
    L=list(ck)
    for k in range(4): L+=M(f"v_add_f32 v{Gd+k}, v{Gd+k}, v{Gd+4+k}\nv_add_f32 v{Gd+8+k}, v{Gd+8+k}, v{Gd+12+k}")
    for k in (0,2,1,3): L+=M(f"v_add_f32 v{Gd+k}, v{Gd+k}, v{Gd+8+k}")
    L+=treduce(Gd,Gd+1,Gd+2,Gd+3)
    A,B,C,D=Gd,Gd+1,Gd+2,Gd+3
    L+=M(f"v_mov_b32 v{B}, v{A}\nv_permlane16_swap_b32 v{A}, v{B}\nv_mov_b32 v{C}, v{A}\nv_mov_b32 v{D}, v{B}\nv_permlane32_swap_b32 v{A}, v{C}\nv_permlane32_swap_b32 v{B}, v{D}")
    inv="0x3b000000"
    L+=M(f"""v_mul_f32 v{A}, {inv}, v{A}
        v_mul_f32 v{B}, {inv}, v{B}
        v_fma_f32 v{B}, -v{A}, v{A}, v{B}
        v_max_f32 v{B}, 0, v{B}
        v_add_f32 v{B}, 0x3727c5ac, v{B}
        v_rsq_f32 v{B}, v{B}
        v_fma_f32 v{C}, -v{A}, v{D}, v{C}
        v_mul_f32 v{C}, {inv}, v{C}
        v_fma_f32 v{C}, v{B}, v{C}, v{A}
        v_mul_f32 v{A}, v{A}, v{B}""")
    for e in range(8): L+=M(f"v_fma_f32 v{Gd+4+e}, v{X+e}, v{B}, -v{A}")
    for e in range(8): L+=M(f"v_fmac_f32 v{X+e}, v{Gd+4+e}, v{Y+e}")
    for e in range(8): L+=M(f"v_sub_f32 v{Y+e}, v{X+e}, v{C}")
    L+=M(f"s_add_u32 s{sT0}, s{sXS}, {mu*65536}")
    for i in range(4): L+=M(f"v_cvt_pk_bf16_f32 v{Gd+4+i}, v{Y+2*i}, v{Y+2*i+1}")
    L+=M(f"buffer_store_dwordx4 {V(Gd+4)}, v{vL}, {srd(WS)}, s{sT0} offen{a.sc or (' nt' if CFG['ntx']>layer else '')}",f"xs{mu}")
    L+=M(f"v_mul_f32 v{A}, v{Y}, v{Y}")
    for e in range(1,8): L+=M(f"v_fmac_f32 v{A}, v{Y+e}, v{Y+e}")
    L+=M(f"""v_mov_b32 v{B}, v{A}
        s_nop 0
        s_add_u32 s{sT1}, s{sS5}, {(layer*2+mu)*65536}
        v_permlane32_swap_b32 v{A}, v{B}
        v_add_f32 v{A}, v{A}, v{B}
        v_mov_b32 v{B}, v{A}
        v_permlane16_swap_b32 v{A}, v{B}
        v_add_f32 v{A}, v{A}, v{B}""")
    L+=M(f"buffer_store_dword v{A}, v{vS5s}, {srd(WS)}, s{sT1} offen{a.sc}")
    tail=M(f"s_add_u32 s22, s{sFLH}, {XF(layer,mu)}")+[('WVM',f"xs{mu}")]+M(f"buffer_store_dword v{vTAG}, v{vOne}, {srd(WS)}, s22 offen{a.sc}")
    return ld,L,tail

def flag_check(a, off, vaddr, name):
    ld,ck=a.check([f"buffer_load_dword v{PT+1}, v{vaddr}, {srd(WS)}, s{sCK1} offen sc1"],[f"v_cmp_ne_u32 vcc, s{sTAG}, v{PT+1}"],name)
    return M(f"s_lshl_b32 s{sCK1}, s{sFL}, 1\ns_add_u32 s{sCK1}, s{sCK1}, {off}")+ld, ck
XF=lambda layer,mu: OFF_XFLAG+layer*16384+mu*256
HF=lambda layer,k: OFF_HFLAG+layer*16384+k*256

def x_dma(mu, pair, stage, q):
    L=M(f"s_add_u32 m0, s{sXW}, {q+stage*8192}\ns_mov_b32 s{sSOFF}, {mu*65536+pair*32768+stage*8192}")
    for i in range(4): L+=M(f"buffer_load_dwordx4 v{vXD}, {srd(WS)}, s{sSOFF} offen offset:{1024*i} sc1 lds",f"x{mu}{pair}{stage}")
    return LW(L,(q+stage*8192,q+stage*8192+8192),(q+16384+stage*8192,q+16384+stage*8192+8192))
vAS1,vAS2,vAD=136,138,135
def alias_setup():
    return M(f"""s_mul_i32 s{sT0}, s{sG}, {65536-8*HKS*1024}
        s_add_u32 s{sT0}, s{sT0}, {OFF_YT-OFF_H}
        v_and_b32 v{vAS1}, 1, v{vQ}
        v_mul_u32_u24 v{vAS1}, {0x100000-HKS*1024}, v{vAS1}
        s_mul_i32 s{sT1}, s{sRH}, {0x100000-HKS*1024}
        v_add_u32 v{vAS1}, s{sT0}, v{vAS1}
        s_add_u32 s{sT0}, s{sT0}, s{sT1}
        v_add_u32 v{vAS2}, v{vHS2}, v{vAS1}
        v_add_u32 v{vAS1}, v{vHS1}, v{vAS1}
        v_add_u32 v{vAD}, s{sT0}, v{vHD}""")
AL=lambda mu,t: (CFG['alias']>=1 and (mu,t)==(1,1)) or (CFG['alias']>=2 and (mu,t)==(0,0))
def h_dma(mu, t, grp, q):
    n=4 if grp<2 else 3
    L=M(f"s_add_u32 m0, s{sM4 if grp<2 else sM3}, {q+t*8192}\ns_add_u32 s{sSOFF}, s{sC4 if grp<2 else sC3}, {(0 if AL(mu,t) else (mu*4+2*t)*HKS*1024)+grp*8192}")
    for i in range(n): L+=M(f"buffer_load_dwordx4 v{vAD if AL(mu,t) else vHD}, {srd(WS)}, s{sSOFF} offen offset:{1024*i} sc1 lds",f"h{mu}{t}{grp}")
    return LW(L,*[(q+(2*k+t)*8192,q+(2*k+t)*8192+2*n*1024) for k in range(2)])
def h_touch(ks,base=204):
    L=[]
    for k in ks:
        L+=M(f"s_mov_b32 s{sT2}, {2*k*HKS*1024}\nbuffer_load_dword v{base+2*k}, v{vHS1}, {srd(WS)}, s{sT2} offen sc1\nbuffer_load_dword v{base+1+2*k}, v{vHS2}, {srd(WS)}, s{sT2} offen sc1","tch")
    return L
SC1K=lambda: {0:[],2:[k for k in range(4) if not AL(k>>1,k&1)],8:[0,1],3:[],4:[0,1],5:[0,1,2],6:[0,1],7:[0]}[CFG['touch']]
TCHK=lambda: {0:[],2:[],8:[],3:[0,1,2,3],4:[2,3],5:[],6:[],7:[]}[CFG['touch']]
TINK=lambda: {8:[2],5:[3],6:[2,3],7:[1,2,3]}.get(CFG['touch'],[])

_uid=[0]
RING6=[FR+4*k for k in range(6)]; RING8=RING6+[ACC0+16,ACC0+20]
def g1_steps(buf, q, bar=None):
    A=(ACC0,ACC1)[buf]; bar=bar or {}; qo=q&65535; out=[]
    for s in range(16):
        pre=(M(f"v_add_u32 v{vA0}, {q&~65535}, v{vL}") if s==0 else [])+bar.get(s,[])
        rd=[lambda F,tok,s=s,t=t: LR(mk(f"ds_read_b128 {V(F)}, v{vA0} offset:{qo+t*16384+s*1024}",tok),(q+t*16384+s*1024,q+t*16384+s*1024+1024)) for t in range(2)]
        mf=lambda F,s=s: [mk(f"v_mfma_f32_16x16x32_bf16 {V(A+12*t+4*w)}, {W1(s,w)}, {V(F[t])}, {'0' if s==0 else V(A+12*t+4*w)}") for t,w in ([(t,w) for t in range(2) for w in range(3)],[(t,w) for w in range(3) for t in range(2)],[(0,0),(0,1),(0,2),(1,2),(1,1),(1,0)],[(0,0),(1,0),(1,1),(0,1),(0,2),(1,2)])[CFG['o1']]]
        out.append((pre,rd,mf,RING6))
    return out
def g2_steps(qs, bar=None):
    bar=bar or {}; out=[]
    def setq(q): return M(f"s_add_u32 s{sQ}, s{sHK}, {q&~65535}\nv_add_u32 v{vA0}, s{sQ}, v{vL}\ns_add_u32 s{sQ}, s{sHS}, {q&~65535}\nv_add_u32 v{vA1}, s{sQ}, v{vL}")
    for i in range(22):
        q=qs[i>>3]; pre=bar.get(i,[])
        if i%8==0 and (i==0 or (q&~65535)!=(qs[(i>>3)-1]&~65535)): pre=setq(q)+pre
        rd=[lambda F,tok,i=i,q=q,t=t: LR(mk(f"ds_read_b128 {V(F)}, v{(vA0,vA1)[t]} offset:{(q&65535)+(i&7)*1024}",tok),*[(q+w*8192+(i&7)*1024,q+w*8192+(i&7)*1024+1024) for w in range(4)]) for t in (1,0)]
        mf=lambda F,i=i: [mk(f"v_mfma_f32_16x16x32_bf16 {V(ACC0+8*t+4*c)}, {W2(i,c)}, {V(F[1-t])}, {'0' if i==0 else V(ACC0+8*t+4*c)}") for t,c in ([(1,0),(1,1),(0,0),(0,1)],[(1,0),(0,0),(1,1),(0,1)],[(1,0),(1,1),(0,1),(0,0)])[CFG['o2']]]
        out.append((pre,rd,mf,RING8))
    return out
def g2_pass(qs, t, bar=None):
    bar=bar or {}; out=[]
    for i in range(22):
        q=qs[i>>3]; pre=bar.get(i,[])
        if i%8==0 and (i==0 or (q&~65535)!=(qs[(i>>3)-1]&~65535)):
            pre=M(f"s_lshl_b32 s{sQ}, s{sKH}, 14\ns_add_u32 s{sQ}, s{sQ}, {(q&~65535)+t*8192}\nv_add_u32 v{vA0}, s{sQ}, v{vL}")+pre
        rd=[lambda F,tok,i=i,q=q: LR(mk(f"ds_read_b128 {V(F)}, v{vA0} offset:{(q&65535)+(i&7)*1024}",tok),*[(q+(2*k+t)*8192+(i&7)*1024,q+(2*k+t)*8192+(i&7)*1024+1024) for k in range(2)])]
        mf=lambda F,i=i: [mk(f"v_mfma_f32_16x16x32_bf16 {V(ACC1+8*t+4*c)}, {W2(i,c)}, {V(F[0])}, {'0' if i==0 else V(ACC1+8*t+4*c)}") for c in range(2)]
        out.append((pre,rd,mf,RING8))
    return out
def backbone(steps, marks=None):
    marks=marks or {}; LA=CFG['la']
    start=[]; n=0
    for st in steps: start.append(n); n+=len(st[2]([FR]*2))
    start.append(n)
    last={}; F=[]; place={}; pos=-1; toks=[]
    for k,(pre,rd,mf,ring) in enumerate(steps):
        _uid[0]+=1; tok=f"f{_uid[0]}"; toks.append(tok); fs=[]
        for j,r in enumerate(rd):
            u=min([x for x in ring if x not in fs],key=lambda x:last.get(x,-99+ring.index(x)*0.01)); fs.append(u)
            p=max(start[k]-LA+j, last.get(u,-99), pos+1 if pos>=0 else -1)
            p=min(p,start[k]-1) if start[k]>0 else -1
            if p<0: p=-1
            place.setdefault(p,[]).extend((pre if j==0 else [])+[r(u,tok)]); pos=max(pos,p)
        for u in fs: last[u]=start[k+1]-1
        F.append(fs)
    L=list(place.get(-1,[]))+[('WLG',toks[0])]; n=0
    for k,(pre,rd,mf,ring) in enumerate(steps):
        ms=mf(F[k])
        for j,m in enumerate(ms):
            L.append(m); L+=place.get(n,[])
            if j==len(ms)-1 and k+1<len(steps): L.append(('WLG',toks[k+1]))
            n+=1
        L+=marks.get(k,[])
    return L

def g1_epi(a, buf, mu, pair, sc):
    A=(ACC0,ACC1)[buf]; E=EP; L=[]
    n=E; mreg=E+4
    M0=A+8; M1=A+20
    for t in range(2):
        Gt=A+12*t; Ut=Gt+4
        for r in range(4): L+=M(f"v_max_f32 v{Gt+r}, 0, v{Gt+r}")
        for r in range(4): L+=M(f"v_mul_f32 v{Gt+r}, v{Gt+r}, v{Ut+r}")
        L+=M(f"v_cvt_pk_bf16_f32 v{n+2*t}, v{Gt}, v{Gt+1}\nv_cvt_pk_bf16_f32 v{n+2*t+1}, v{Gt+2}, v{Gt+3}")
    for r in range(4): L+=M(f"v_permlane16_swap_b32 v{M0+r}, v{M1+r}")
    L+=M(f"v_permlane16_swap_b32 v{n}, v{n+2}\nv_permlane16_swap_b32 v{n+1}, v{n+3}\ns_mov_b32 s{sT1}, {0 if AL(mu,pair) else (mu*4+2*pair)*HKS*1024}")
    L+=M(f"buffer_store_dwordx4 {V(n)}, v{vAS1 if AL(mu,pair) else vHS1}, {srd(WS)}, s{sT1} offen{sc}",f"hs{mu}{pair}")
    for r in range(4): L+=M(f"v_max_f32 v{M0+r}, 0, v{M0+r}")
    for r in range(4): L+=M(f"v_mul_f32 v{M0+r}, v{M0+r}, v{M1+r}")
    L+=M(f"v_cvt_pk_bf16_f32 v{mreg}, v{M0}, v{M0+1}\nv_cvt_pk_bf16_f32 v{mreg+1}, v{M0+2}, v{M0+3}")
    L+=M(f"v_mov_b32 v{E+6}, v{E+4}\nv_mov_b32 v{E+7}, v{E+5}\ns_nop 0\nv_permlane32_swap_b32 v{E+4}, v{E+6}\nv_permlane32_swap_b32 v{E+5}, v{E+7}")
    L+=M(f"buffer_store_dwordx4 {V(E+4)}, v{vAS2 if AL(mu,pair) else vHS2}, {srd(WS)}, s{sT1} offen{sc}",f"hs{mu}{pair}")
    return L
def h_flag(a, layer, k):
    return M(f"s_add_u32 s22, s{sFLH}, {HF(layer,k)}")+[('WVM',f"hs{k>>1}{k&1}")]+M(f"buffer_store_dword v{vTAG}, v{vOne}, {srd(WS)}, s22 offen{a.sc}")

def s5_get(a, layer, mu):
    T=140
    ld,ck=a.check([f"buffer_load_dwordx4 {V(T)}, v{vS5l}, {srd(WS)}, s{sCK3} offen sc1"],
         [f"v_max3_u32 v{PT+2}, v{T}, v{T+1}, v{T+2}",f"v_max_u32 v{PT+2}, v{PT+2}, v{T+3}",f"v_cmp_eq_u32 vcc, -1, v{PT+2}"],"s5")
    ld=M(f"s_add_u32 s{sCK3}, s{sS5l}, {(layer*2+mu)*65536}")+ld
    L=list(ck)+M(f"""v_add_f32 v{T}, v{T}, v{T+1}
        v_add_f32 v{T+2}, v{T+2}, v{T+3}
        v_add_f32 v{T}, v{T}, v{T+2}
        v_mov_b32 v{T+1}, v{T}
        s_nop 0
        v_permlane32_swap_b32 v{T}, v{T+1}
        v_add_f32 v{T}, v{T}, v{T+1}
        v_mov_b32 v{T+1}, v{T}
        s_nop 0
        v_permlane16_swap_b32 v{T}, v{T+1}
        v_add_f32 v{T}, v{T}, v{T+1}
        v_mul_f32 v{T}, 0x3b000000, v{T}
        v_add_f32 v{T}, 0x3727c5ac, v{T}
        v_rcp_f32 v{vR2}, v{T}""")
    return ld,L
def ex_addr(qspare):
    return M(f"s_add_u32 s{sT0}, s{sHW}, {qspare+6144}\nv_add_u32 v{EP}, s{sT0}, v{vL}\ns_xor_b32 s{sT0}, s{sHW}, 16384\ns_add_u32 s{sT0}, s{sT0}, {qspare+6144}\nv_add_u32 v{EP+1}, s{sT0}, v{vL}")
def g2_tail(mu, qsp, keep, send):
    X=vXst[mu]; R=[(qsp+w*8192+6144,qsp+w*8192+8192) for w in range(4)]
    pre=LW(M(f"ds_write_b128 v{EP}, {V(send)}\nds_write_b128 v{EP}, {V(send+4)} offset:1024",f"ew{mu}"),*R)
    pre+=[mk(f"v_fmac_f32 v{X+e}, v{vR2}, v{keep+e}") for e in range(8)]
    post=LR(M(f"ds_read_b128 {V(send)}, v{EP+1}\nds_read_b128 {V(send+4)}, v{EP+1} offset:1024","ex"),*R)
    post+=[mk(f"v_fmac_f32 v{X+e}, v{vR2}, v{send+e}") for e in range(8)]
    return pre,post
def out_store(a, mu, T):
    X=vXst[mu]
    L=[mk(f"v_cvt_pk_bf16_f32 v{T+i}, v{X+2*i}, v{X+2*i+1}") for i in range(4)]
    return L+M(f"buffer_store_dwordx4 {V(T)}, v{vTok}, {srd(SO_)}, {'0' if mu==0 else 's%d'%sMB} offen{('',' sc1',' nt')[CFG['outsc']]}")

def wbl2(a):
    Lw=a.label("wb"); w=mk("buffer_wbl2 sc1"); w.ghost=1
    return [M(f"s_or_b32 s{sT2}, s{sR}, s{sWV}\ns_cmp_lg_u32 s{sT2}, {CFG['wbid']}\ns_cbranch_scc1 {Lw}")+[w,mk(Lw+":")]]
def finish_kernel(a):
    a(f"s_or_b32 s{sT0}, s2, s{sWV}\ns_cmp_eq_u32 s{sT0}, 0\ns_cselect_b32 s{sT0}, {OFF_NONCE}, {OOB}")
    a(f"buffer_store_dword v{vTAG}, v{vOne}, {srd(WS)}, s{sT0} offen sc1")
    if CFG['stamps'] and a.tag!='S':
        a.stamp("end","*")
        if CFG.get('amp') is not None:
            j=CFG['amp']
            a(f"s_sub_u32 s96, s{STAMP0+j}, s{STAMP0}\ns_mul_i32 s96, s96, {CFG.get('ampk',4)}\ns_add_u32 s96, s96, s{STAMP0+len(stamp_names)-1}")
            a("L_amp:\ns_memrealtime s[100:101]\ns_waitcnt lgkmcnt(0)\ns_sub_u32 s97, s100, s96\ns_cmp_lt_i32 s97, 0\ns_cbranch_scc1 L_amp")
        a("s_memtime s[100:101]\ns_waitcnt lgkmcnt(0)\ns_sub_u32 s99, s100, s99")
        a(f"s_lshl_b32 s{sT0}, s2, 2\ns_add_u32 s{sT0}, s{sT0}, s{sWV}\ns_lshl_b32 s{sT0}, s{sT0}, 8\ns_add_u32 s{sT0}, s{sT0}, {OFF_STAMP}")
        for i in range(len(stamp_names)):
            a(f"v_mov_b32 v40, s{STAMP0+i}")
            a(f"buffer_store_dword v40, v{vOne}, {srd(WS)}, s{sT0} offen offset:{4*i}")
        if CFG.get('trace'): a(f"s_add_u32 s{sT1}, s{sT0}, 0x100000\nbuffer_store_dword v139, v{vFX}, {srd(WS)}, s{sT1} offen")
        a(f"v_mov_b32 v40, s98\nbuffer_store_dword v40, v{vOne}, {srd(WS)}, s{sT0} offen offset:248")
        a(f"v_mov_b32 v40, s99\nbuffer_store_dword v40, v{vOne}, {srd(WS)}, s{sT0} offen offset:252")
    a("s_endpgm")

WV=lambda t:('WVM',t)
WL=lambda t:('WLG',t)
AT=lambda n:('AT',n)

def vm_par(layer):
    C=CFG
    def f(x):
        t=x.tok or ''
        if x.dma:
            if t[0]=='c': return (C['mW'],150,11)
            if t[0]=='h' and layer==0 and 2*int(t[1])+int(t[2]) in SC1K(): return (C['mM'],C['mMs'],8)
            return (C['mL'],C['mLs'],8)
        if t=='tch': return (C['mH'],20,8)
        if t.startswith('w2_'): return (C['mM'],C['mW2'],8)
        if not x.load:
            if x.op.endswith('x4'): return (C['mS1'] if 'sc1' in x.text else C['mS'],70,8)
            return (C['mS1'] if 'sc1' in x.text else 400,10,1)
        if t.endswith(tuple('0123456789')) and '_ppr' in t: return (700,20,22)
        return (C['mL'],25,8) if x.op.endswith('x4') else (C['mL'],10,2)
    return f
def feed(vm,items,t):
    for x in items:
        for y in (x if isinstance(x,list) else [x]):
            if isinstance(y,tuple):
                if y[0]=='WVM': t=max(t,vm.done.get(y[1],t))
            elif y.kind=='vmem': t=vm.issue(y,t)+4
            elif y.kind!='none': t+=4.5
    return t

def body(a):
    P=paced; BY=lambda n:('BY',n); SY=lambda n:('SYNC',n); AF=lambda n,g=0:('AFTER',n,g); GP=lambda n:('GAP',n)
    B=lambda *w:[list(w)+[mk("s_barrier")]]
    C=CFG
    nxs=lambda r,mu: [i for i,x in enumerate(r) if isinstance(x,I) and x.tok==f"xs{mu}"][0]+1
    qs=list(Q)
    if C['afirst']:
        a.flat(fin1(a,0,0,72)); a.flat(conv_epi(1)[1])
    else: a.flat(fin1(a,0,0,ACC0))
    if CFG.get('trace')=='CV': a("v_mov_b32 v139, v194")
    a.stamp("fin1 A","f")
    lA,rA,tA=fin2(a,0,0,ACC0); lB,rB,tB=fin2(a,0,1,232)
    glB,gcB=y_check(a,1)
    pk,ps=pp_pack()
    a.flat(extras(3)); Wp(a,'YS')
    if C['pkat']==2: a.flat(pk); a.flat(ps)
    a.flat(x0_state(1))
    a.waitvm("yt1")
    Wp(a,'F1')
    a.flat(lA); a.flat(glB); a.flat(extras(4)); Wp(a,'F2')
    if C['pkat']==0: a.flat(pk); a.flat(ps)
    a.stamp("yB acked","f")
    a.flat(rA[:10]); Wp(a,'FA'); a.flat(rA[10:]); Wp(a,'FX')
    a.stamp("fin2 A","f")
    a.flat(gcB)
    y_stage(a,1,wops(PL().get('SB',"")))
    a.flat(tA)
    ppf=M(f"buffer_store_dword v{vTAG}, v{vOne}, {srd(WS)}, s{sPF} offen sc1")
    if C['pkat']==1: a.flat(pk); a.flat(ps)
    else: a.waitvm("pps"); a.flat(ppf); ppf=[]
    Wp(a,'FB')
    a.flat(fin1(a,0,1,ACC1))
    a.stamp("fin1 B","f")
    W2Q[:]=w2_loads()
    a(f"s_mul_i32 s{sT0}, s{sCT2}, 43\ns_mul_i32 s{sT1}, s{sKH}, 21\ns_add_u32 s{sT0}, s{sT0}, s{sT1}\ns_lshl_b32 s{sT0}, s{sT0}, 7\ns_add_u32 s{sCK3}, s{sT0}, {OFF_P2F}")
    a(f"v_min_u32 v{PT+3}, 21, v{vLane}\nv_lshlrev_b32 v{PT+3}, 7, v{PT+3}")
    pl_,pc_=a.check([f"buffer_load_dword v{PT+2}, v{PT+3}, {srd(WS)}, s{sCK3} offen sc1"],[f"v_cmp_ne_u32 vcc, s{sTAG}, v{PT+2}"],"pp")
    xl,xc=flag_check(a,XF(0,0),vFX,"xf")
    early='p' in PL().get('XD','')
    Wp(a,'XW'); a.flat(xl)
    if early: a.flat(pl_)
    a.flat(xc)
    if early: a.flat(pc_); pl_=[]; pc_=[]
    Wp(a,'XB')
    lead=lB+x_dma(0,0,0,qs[0])+x_dma(0,0,1,qs[0])+(alias_setup() if C['alias'] else [])+rB[:nxs(rB,1)]+wops(PL().get('XD',""))
    a.flat(lead)
    A1,B0,B1,GA,GB,GC=96,192,288,384,472,516
    for layer in range(2):
        g="ab"[layer]
        xa0,xa1,xb0,xb1,e=qs
        hs = lambda k: ' sc1' if (layer==0 and k in SC1K()) else (a.sc or (' nt' if (C['nth'] and layer==1) else ''))
        L0 = layer==0
        a.stamp(f"L{layer} start",g+'m')
        hq=[(xa0,xa1,e),(xb0,xb1,xa0)]
        X=lambda mu,p,q: x_dma(mu,p,0,q)+x_dma(mu,p,1,q)
        H=lambda mu,t,grp: h_dma(mu,t,grp,hq[mu][grp])
        xl,xc=flag_check(a,XF(layer,1),vFX,"xf")
        s7=[]
        def HC(k,after=None,gap=None):
            l,c=flag_check(a,HF(layer,k),vFX if (k==1 and C['alias']>=2) else vFH,"hf")
            s7.extend([AF('xc'),AF(f"f{k}",after or (C['hca0'] if L0 else C['hca']))]+l+[SY(f"l{k}")]+c+[SY(f"c{k}")])
            return [AF(f"c{k}")]
        sl,sr=s5_get(a,layer,0)
        def SB(n,*w):
            if layer==0: return BAR(*w)
            return a.st(n+" pre","c")+list(w)+a.st(n+" waited","c")+[mk("s_barrier")]+a.st(n+" post","c")
        steps = g1_steps(0,xa0,{0:BAR(WV("x000")),8:BAR(WV("x001"))}) + g1_steps(1,xa1,{0:BAR(WV("x011"))}) \
              + g1_steps(0,xb0,{0:BAR(WV("x101"))}) + g1_steps(1,xb1,{0:BAR(WV("x111"))}) \
              + g2_steps(hq[0],{**({i:[WV(f"w2_{i}")] for i in range(22)} if L0 else {}),0:BAR(WV("h010"),WV("h000"),WV("w2_0")),8:BAR(WV("h011"),WV("h001"),WV("w2_8")),16:BAR(WV("h012"),WV("h002"),WV("w2_16"))}) \
              + g2_pass(hq[1],0,{0:BAR(WV("h101"),WV("h100")),16:BAR(WV("h102"))}) + g2_pass(hq[1],1,{0:BAR(WV("h110")),8:BAR(WV("h111")),16:BAR(WV("h112"))})
        marks={15:a.st(f"L{layer} A0",g),31:a.st(f"L{layer} A1",g),47:a.st(f"L{layer} B0",g),63:a.st(f"L{layer} B1",g),85:a.st(f"L{layer} GA",g)}
        bb=backbone(steps,marks)
        def epi(k):
            E=g1_epi(a,k&1,k>>1,k&1,hs(k))
            if k>0 and L0 and C['hold']:
                n=[i for i,x in enumerate(E) if x.kind=='vmem'][0]; E=E[:n]+[AF(f"l{k-1}")]+E[n:]
            if C['alias']>=2 and k in(0,3):
                n=[i for i,x in enumerate(E) if isinstance(x,I) and x.kind=='vmem'][0]; E=E[:n]+[AF('xc' if k==0 else 'c1')]+E[n:]
            if k<3: return [AT(96*(k+1)+2),('DENS',C['dens0'] if L0 else C['dens1'])]+E+[('DENS',0),SY(f"e{k}"),BY(96*(k+2) if k<2 else GA-30)]
            return [AT(GA+1),('DENS',C['dens'])]+E+[('DENS',0),SY("e3")]+sr
        s3=[]
        for k in range(4): s3+=[AF(f"e{k}")]+([AF('h00'),WV('h002'),WV('h001'),WV('h000')] if (k==1 and C['alias']>=2) else [])+h_flag(a,layer,k)+[SY(f"f{k}")]
        YT=ACC1+16
        nq=[xa1,e,xb0,xb1,xa0]
        slB,srB=s5_get(a,layer,1)
        preA,postA=g2_tail(0,e,ACC0,ACC0+8)
        tailA=ex_addr(e)+(unpackY(0,YT) if L0 else [])+slB+[BY(GB),AT(GB+1),('DENS',C['densa'] if L0 else 2)]+preA+[GP(C['exg'])]+B(WL("ew0"))+postA[:2]+[GP(C['exg2'])]+postA[2:]
        if L0:
            lA,rA,tA=fin2(a,1,0,ACC0,YT)
            xlA,xcA=flag_check(a,XF(1,0),vFX,"xf")
            tailA+=fin1(a,1,0,YT,True,ACC0)+[('DENS',0)]+srB+ex_addr(xa0)+[('GAPV',C['gbl'])]+lA+[('DENS',C['dens2'])]+rA[:nxs(rA,0)]+[('DENS',0),SY('r')]+rA[nxs(rA,0):]+unpackY(1,YT)
        else:
            tailA+=out_store(a,0,YT)+[('DENS',0)]+srB+ex_addr(xa0)+([AT(GC+C['wbat'])]+wbl2(a) if C['wbl2'] else [])
        g1=C['g1']
        K=lambda it,c=None,cap=64: bk(it,C['bk'] if c is None else c,cap)
        dl0=(B1-34 if C['alias']>=2 else GA-44)
        sA = HC(0)+K(H(0,0,0))+[BY(dl0),AT(B0-10)]+K(H(0,0,1))+[BY(dl0+4)]+K(H(0,0,2))+[SY('h00'),BY(dl0+6)]
        sB = HC(1)+K(H(0,1,0))+[BY(GA-36)]+K(H(0,1,1))+[BY(GA-4)]+K(H(0,1,2))+[BY(GA+28)]
        sC = HC(2)+K(H(1,0,0))+[BY(GB-34),AT(GA-10)]+K(H(1,0,1))+[BY(GB-30)]
        sD = [AT(GA+54)]+K(H(1,0,2))+[BY(GB)]+HC(3,C['gahl'])+K(H(1,1,0))+[BY(GC-22)]+K(H(1,1,1))+[BY(GC-6)]+K(H(1,1,2))+[BY(GC+10)]
        if L0:
            pl=PL(); pend=pl.get('PEND',[]); rest=pl.get('REST',[])
            s1=[];s2=[]
            for k in rest: s1+=K(wops(f"i{k}"),400)
            rest=[int(str(k).split('@')[0]) for k in rest]
            s1+=[SY('irest')]+K(X(0,1,xa1))+[BY(A1-30)]
            for k in pend: s2+=wops(f"r{k}")+[BY(max(12*k-4,30))]
            last=pend[-1] if pend else None
            if rest:
                s2+=[AF('irest')]+B(WV(f"c{rest[-1]}"))
                for k in rest: s2+=wops(f"r{k}")+[BY(12*k-4)]
                last=rest[-1]
            if last is not None: s2+=[GP(4)]+B(WL(f"cr{last}"))
            s2+=[SY('fr'),AT(C['tin'])]+h_touch(TINK(),127)
            s4=([WV('pps')]+ppf+[GP(40)] if ppf else [])+[AT(C['w2at'])]+pl_+pc_+[AF(C['w2af'])]
            i=(2*CFG.get('w2n',22)-sum(1 for x in W2Q if x.kind=='vmem'))//2
            while W2Q:
                if i==10: s4+=[AF('fB')]
                s4+=K(w2_take(2),C['bkw'],C['capw'])+[BY(GA+4*i-C['w2lead'])]; i+=1
        else:
            s1=[SY('irest'),AF('lB')]+K(X(0,1,xa1))+[BY(A1-30)]; s2=[SY('fr')]; s4=[]
        if L0: s5=[SY('rB')]+rB[nxs(rB,1):]+[SY('fB')]
        else: s5=[AT(C['a0l'])]+lB+[SY('lB'),('DENS',C['densb'])]+rB[:nxs(rB,1)]+[('DENS',0),SY('rB')]+rB[nxs(rB,1):]+[BY(A1)]
        s3=[AF('rB')]+tB+[SY('tB')]+s3
        s1+=[AF('tB',C['a1xl0'] if L0 else C['a1xl'])]+xl+[SY('xl')]+xc+[SY('xc'),AF('fr')]+K(X(1,0,xb0))+[BY(B0-30)]+K(X(1,1,xb1))+[BY(B1-30)]
        s1+=sA+sB+sC+sD
        s6 = ([] if L0 else [AF('xl')])+epi(0)+epi(1)+epi(2)+sl+epi(3)+[BY(GB-12)]+tailA
        vm=VMM(vm_par(layer)); t0=feed(vm,lead,0)
        out,rest=weave(bb,[s3,s7,s1,s4,s2,s5,s6],vm=vm,t0=t0,log=f"L{layer}"+('!' if C.get('v')==2 else '') if (C.get('v') and a.tag=='F') else None)
        a.ext(a.trace(out,CFG.get('tev_',10),f'G{layer}')); a.ext(rest)
        if C.get('v'): print("  leftover after G2(B):",len(rest))
        a.stamp(f"L{layer} GB",g)
        Ls=a.label("sw")
        a(f"s_nop 7\ns_cmp_eq_u32 s{sKH}, 0\ns_cbranch_scc1 {Ls}")
        for k in range(8): a(f"v_swap_b32 v{ACC1+k}, v{ACC1+8+k}")
        a.lab(Ls)
        preB,postB=g2_tail(1,xa0,ACC1,ACC1+8)
        a.flat(preB)
        if L0: a.flat(tA)
        a("s_waitcnt lgkmcnt(0)\ns_barrier")
        a.flat(postB)
        if L0:
            a.flat(fin1(a,1,1,YT,True,ACC1))
            lB,rB,tB=fin2(a,1,1,ACC1,YT)
            a.flat(xlA); a.flat(xcA); lead=X(0,0,nq[0]); a.ext(lead)
        else:
            a.flat(out_store(a,1,YT))
        a.stamp(f"L{layer} tailB",g)
        qs=nq
    finish_kernel(a)

def main():
    a=G('F','')
    entry(a); p0(a); conv(a)
    nfront=len(a.L)
    b=G('S',' sc1'); b.nlab=0
    front=list(a.L)
    body(a)
    rep=[]
    items=finish(a.L,rep)
    print("LDS ordering problems:",lds_check(items))
    for o in a.ool: items+=finish(o)
    items.append(mk("L_fast_end:"))
    if CFG['slow']:
        b.L=front+[mk("L_slow:")]; body(b)
        full=finish(b.L)
        k=[i for i,x in enumerate(full) if x.text=="L_slow:"][0]
        items+=full[k:k+1]+[mk("s_nop 4")]+full[k+1:]
        for o in b.ool: items+=finish(o)
    items.append(mk("L_end:")); items.append(mk("s_endpgm"))
    hdr=open(os.path.join(os.path.dirname(os.path.abspath(__file__)),"header.txt")).read()
    src=kernel_file(NAME,text(items),"; @launch grid=(256,1,1) block=(256,1,1) lds=163840",header=hdr)
    open(sys.argv[1],"w").write(src)
    open("stamp_names.txt","w").write("\n".join(stamp_names)); open("trace_names.txt","w").write("\n".join(trace_names)); open("site_names.txt","w").write(" ".join(site_names))
    n=sum(1 for i in items if i.kind!='none')
    print(f"{n} instructions, {len(src)} bytes of text, {sum(x for x,_ in rep)} nop states padded in fast path")
    if CFG.get('v'):
        for x in rep: print("   pad",x)
main()
```

```python
import sys, os
from asmlib import *
from layout import *

NAME="interleave_layers__ssm_conv_h3__glu_gated_reglu__prompt_kernel"
CFG=dict(pk=1, hpri=1, hsplit=1, ft1=1, kl=5, afirst=0, idle=1, alias=1, o1=0, o2=0, swz=1, z14=1, tpre=1, dot2=1, a1xl0=30, tin=100, mH=1300, hold=0, hca0=24, dens0=8, mW2=62, hat=2, hmid=100, bk=60, bkw=60, capw=64, mL=350, mLs=80, mM=600, mMs=95, mW=850, mS=600, mS1=950, ssmat=0, nth=1, ntx=2, wbat=24, wbid=0, ppat=1, tat=2, pkat=2, fbpre=1, cg0=30, gbt0=28, xg0=16, w2af='irest', densb=4, qat=1, gbs5=8, la=12, clr=1, utouch=0, f1max=2048, cann=56, plan=38, chl=40, cla=9, cdens=4, cslots=2, chc=40, cack=54, rot=1, cm2=70, cm3=120, a0l=1, a0c=24, a1xl=18, dens=5, fl=30, fl0=52, hca=18, hcg=22, g1=4, g2=5, g3=4, dens1=2, gahl=16, gahc=14, hbgap=4, tev=6, tev2=5, dens2=8, densa=5, exg=2, exg2=4, gbl=16, gbc=14, gbt=28, gbxl=20, b0hl=80, w2at=1, w2gap=5, w2lead=40, rrest=56, cgap=3, warm=1, stamps=0, stop=None, slow=1, prefetch=1, touch=2, dgather=1, dstage=1, wbl2=0, outsc=2)
for a_ in sys.argv[2:]:
    k,v=a_.split('='); CFG[k]=int(v) if v.lstrip('-').isdigit() else v

sX,sR,sWV,sG,sM,sRH,sCT2,sKH,sCHH,sTAG,sHELLO=4,5,6,7,8,9,10,11,12,13,14
sT0,sT1,sT2,sT3=3,15,60,61
sCNT=62; sSOFF=63
WS,SK_,SV_,SQ_,SH_,SWG,SWU,SWD,SO_,SSK,SD_=16,20,24,28,32,36,40,44,48,52,56
srd=lambda b:f"s[{b}:{b+3}]"
sXW,sHW,sHK,sHS,sXS,sFL,sGR,sS5,sGRl,sS5l=64,65,66,67,68,69,70,71,72,73
sW1W,sWo,sHF,sW2B=74,75,76,77
sPS,sPD,sPF,sW20=56,57,58,59
sCK1,sCK2,sCK3,sQ=20,21,24,25
sCH,sUO,sMB=26,27,0
sMODE=34; sFLH=23; sC4,sC3,sM4,sM3=52,53,54,55
sFLG=1
STAMP0=78
Q=[0,32768,65536,98304,131072]
TCP=4160; TCH=4*TCP; L_TOEP=0
L_U=2*TCH; UCH=4608
L_K=L_U+2*UCH; CHP=1056; L_V=L_K+9*CHP
L_CX=L_K
L_YS=0
L_WS=65536; WSL=24576
SLOT=[L_WS+k*WSL for k in range(4)]
L_YS=SLOT[3]+16384
L_PP=SLOT[3]
SLOT=SLOT[:3]+[8192,36864,L_PP]
vL=1; vOne=2; vTok=3; vGs=4; vGl=5; vS5s=6; vS5l=7; vXD=8; vHD=9; vHS1=10; vHS2=11; vFX=12; vFH=13
vTAG=14; vR2=15
vXst=[16,24]; vYY=[32,36]
ACC0,ACC1,FR,vA0,vA1,EP,PT=40,64,88,112,113,114,122
vW2,vT2,vWc0=126,127,128
vW1=[129,130,131]; vTa,vTm,vWc1=132,133,134
vLane,vJ,vQ,vYo,vD=135,136,137,138,139
vCg,vCs=124,125
vHa=15
vCXw,vCXo,vCXp,vKV,vGA,vGW,vGT,vFT=160,161,162,163,164,165,166,167
vKD,vUP,vPK,vGD,vGC,vQT,vTch=168,172,176,184,192,196,193
W2V=144; W2A=192
def W1(s,t): b=(s*3+t)*4; return f"a[{b}:{b+3}]"
def W1h(s,t,hh): b=(s*3+t)*4+2*hh; return f"a[{b}:{b+1}]"
def W2(i,t):
    k=(i*2+t)*4
    return f"v[{W2V+k}:{W2V+k+3}]" if k<112 else f"a[{W2A+k-112}:{W2A+k-112+3}]"
def W2h(i,t,hh):
    k=(i*2+t)*4+2*hh
    return f"v[{W2V+k}:{W2V+k+1}]" if k<112 else f"a[{W2A+k-112}:{W2A+k-112+1}]"
V=lambda b,n=4: f"v[{b}:{b+n-1}]"
OOB=0x7FFFFF00
vST=lambda: 140 if CFG.get('trace')=='CV' else 139
POLLMAX=1<<16
def M(text,tok=None): return [mk(l.strip(),tok) for l in text.split('\n') if l.strip()]
BAR=lambda *pre: list(pre)+[mk("s_barrier")]

trace_names=[]; stamp_names=[]; site_names=[]
class G(Asm):
    def __init__(s,tag='',sc=''):
        super().__init__(); s.tag=tag; s.sc=sc; s.ool=[]
    def st(s,name,grp='m'):
        if not CFG['stamps'] or s.tag=='S': return []
        if grp!='*' and not any(c in str(CFG['stamps']) for c in grp): return []
        stamp_names.append(name); i=len(stamp_names)-1
        assert i<20, "too many stamps"
        return M(f"{'s_memtime' if CFG.get('clk') else 's_memrealtime'} s[100:101]\ns_waitcnt lgkmcnt(0)\ns_mov_b32 s{STAMP0+i if (i or CFG['kl']!=5) else 97}, s100")
    def trace(s, items, every, name):
        if s.tag=='S' or CFG.get('trace')!=name: return items
        out=[]; n=0
        for it in items:
            out.append(it)
            if isinstance(it,I) and it.kind=='mfma':
                if n%every==0 and CFG.get('tr0',0)<=n<CFG.get('tr0',0)+58*every: out+=s.light(f"{name}+{n}")
                n+=1
        return out+s.light(name+" end")+M("s_nop 15\ns_nop 15\ns_nop 15\ns_nop 15")+s.light(None)+s.light(None)
    def light(s,name):
        k=len(trace_names); trace_names.append(name or "")
        L=[]
        if name: x=mk(f"s_memtime s[{90+2*(k%3)}:{91+2*(k%3)}]"); x.light=1; x.defs=set(); L.append(x)
        if k>=2: L+=M(f"v_writelane_b32 v{vST()}, s{90+2*((k-2)%3)}, {k-2}")
        return L
    def stamp(s,name,grp='m'): s.ext(s.st(name,grp))
    def lr(s,n,*r): LR([i for i in s.L[-n:] if isinstance(i,I)],*r)
    def lw(s,n,*r): LW([i for i in s.L[-n:] if isinstance(i,I)],*r)
    def label(s,p): s.nlab+=1; return f"L{s.tag}_{p}_{s.nlab}"
    def check(s, loads, checks, name):
        R=s.label(name+'r'); L=s.label(name+'l'); B=s.label(name+'b')
        o=Asm(); o.lab(R); o(f"s_mov_b32 s{sCNT}, 0")
        if CFG['stamps'] and s.tag!='S':
            n=len(site_names); site_names.append(name); o(f"s_bitset1_b32 s98, {n}")
        o.lab(L)
        for l in loads: o(l)
        o("s_waitcnt vmcnt(0)")
        for c in checks: o(c)
        o(f"s_cbranch_vccz {B}\ns_add_u32 s{sCNT}, s{sCNT}, 1\ns_cmp_lt_u32 s{sCNT}, {POLLMAX}\ns_cbranch_scc1 {L}\ns_branch {B}")
        s.ool.append(o.L)
        ck=[mk(c) for c in checks]
        return [mk(l,R) for l in loads], [('WVM',R)]+ck[:-1]+[[ck[-1],mk(f"s_cbranch_vccnz {R}"),mk(B+":")]]
    def flat(s, items):
        for it in items:
            if isinstance(it,list): s.ext(it)
            elif isinstance(it,tuple) and it[0] in('AT','GAP','GAPV','SYNC','AFTER','BY','DENS','BK'): pass
            else: s.L.append(it)
    def weave(s, bb, *streams, slots=2, name=None):
        out,rest=weave(bb,streams,slots)
        s.ext(s.trace(out,CFG.get('tev_',4),name) if name else out); s.ext(rest)
        if rest and CFG.get('v'): print("  leftover fillers:",len(rest),[getattr(r,'text',r) for r in rest[:2]])

def entry(a):
    a.stamp("entry","*")
    if CFG["stamps"]: a("s_memtime s[100:101]\ns_waitcnt lgkmcnt(0)\ns_mov_b32 s99, s100\ns_mov_b32 s98, 0")
    a("s_cmp_ge_u32 s2, 256\ns_cbranch_scc1 L_end")
    first=((SK_,8),(SV_,16),(SSK,24),(WS,96)); later=((SH_,32),(SD_,40),(SQ_,0),(SWG,56),(SWU,64),(SWD,72),(SO_,80))
    if CFG['kl']==2: a("s_load_dwordx4 s[64:67], s[0:1], 8"); later=((SSK,24),(WS,96))+later; first=()
    if CFG['kl']==4: a("s_load_dwordx8 s[64:71], s[0:1], 8"); first=((WS,96),); later=later[1:]
    if CFG['kl']==5: a("s_load_dwordx16 s[64:79], s[0:1], 0\ns_load_dwordx8 s[80:87], s[0:1], 64"); first=((WS,96),); later=()
    if CFG['kl']==3: first=first[:2]; later=((SSK,24),(WS,96))+later
    for b,off in first+(() if CFG['kl'] else later):
        a(f"s_load_dwordx2 s[{b}:{b+1}], s[0:1], {off}")
    a(f"v_lshrrev_b32 v40, 6, v0\nv_and_b32 v{vLane}, 63, v0")
    a(f"s_and_b32 s{sX}, s2, 7\ns_lshr_b32 s{sR}, s2, 3")
    a(f"v_readfirstlane_b32 s{sWV}, v40")
    a(f"v_lshlrev_b32 v{vL}, 4, v{vLane}")
    if CFG['prefetch']:
        a(f"s_getpc_b64 s[{sT2}:{sT2+1}]")
        a("L_pc:")
        a(f"s_lshl_b32 s{sT0}, s{sWV}, 5\ns_add_u32 s{sT0}, s{sT0}, s{sR}\ns_lshl_b32 s{sT0}, s{sT0}, 10")
        a(f"v_add_u32 v42, s{sT0}, v{vL}\nv_min_u32 v42, L_fast_end-L_pc-16, v42")
        a(f"v_mov_b32 v43, s{sT2+1}\nv_add_co_u32 v42, vcc, s{sT2}, v42")
        a(f"v_lshrrev_b32 v48, 3, v{vLane}\nv_and_b32 v49, 7, v{vLane}")
        a("v_addc_co_u32 v43, vcc, 0, v43, vcc")
        a("global_load_dwordx4 v[44:47], v[42:43], off")
    else:
        a(f"v_lshrrev_b32 v48, 3, v{vLane}\nv_and_b32 v49, 7, v{vLane}")
    a(f"v_lshlrev_b32 v49, 4, v49\nv_lshl_add_u32 v{vW2}, v48, 10, v49")
    a(f"s_lshl_b32 s{sT0}, s{sR}, 16\ns_lshl_b32 s{sT1}, s{sX}, 7\ns_add_u32 s{sT0}, s{sT0}, s{sT1}")
    a(f"s_sub_u32 s{sT1}, s{sT0}, 8192\nv_add_u32 v49, s{sT1}, v{vW2}")
    a(f"s_lshl_b32 s{sT1}, s{sWV}, 13\ns_add_u32 s{sT0}, s{sT0}, s{sT1}\nv_add_u32 v48, s{sT0}, v{vW2}")
    a(f"s_mul_i32 s{sT1}, s{sWV}, {CHP}\ns_mov_b32 s{sSOFF}, 32768")
    for b,n in ((SK_,2<<20),(SV_,2<<20),(WS,256<<20),(SSK,4096)):
        a(f"s_mov_b32 s{b+2}, {n}\ns_mov_b32 s{b+3}, 0x20000")
    a(f"v_and_b32 v{vJ}, 15, v{vLane}\nv_lshrrev_b32 v{vQ}, 4, v{vLane}")
    a(f"s_lshl_b32 s{sT0}, s{sX}, 6\ns_lshl_b32 s{sT2}, s{sWV}, 4\ns_add_u32 s{sT0}, s{sT0}, s{sT2}\nv_add_u32 v55, s{sT0}, v{vJ}")
    a(f"v_lshlrev_b32 v78, 3, v55\nv_mov_b32 v50, 0")
    a(f"s_add_u32 m0, s{sT1}, {L_K+CHP}\ns_mov_b32 s{sT2}, {L_V+8*CHP}")
    a("s_waitcnt lgkmcnt(0)")
    if CFG['kl']!=5: a.stamp("kernarg","f")
    if CFG['kl']==5: a(f"s_mov_b64 s[{SK_}:{SK_+1}], s[66:67]\ns_mov_b64 s[{SV_}:{SV_+1}], s[68:69]")
    if CFG['kl'] in(2,4): a(f"s_mov_b64 s[{SK_}:{SK_+1}], s[64:65]\ns_mov_b64 s[{SV_}:{SV_+1}], s[66:67]")
    if CFG.get('probe'):
        if CFG['probe']==1: a("s_load_dwordx2 s[96:97], s[0:1], 48\ns_waitcnt lgkmcnt(0)\ns_mov_b32 s98, 0x200000\ns_mov_b32 s99, 0x20000"); S="s[96:99]"; base=0
        else: S=srd(WS); base=CFG['probe']<<24
        a(f"s_lshl_b32 s95, s2, 2\ns_add_u32 s95, s95, s{sWV}\ns_lshl_b32 s95, s95, 11\ns_add_u32 s95, s95, {base}\nv_mov_b32 v60, s95")
        for i in range(16):
            a(f"buffer_load_dword v61, v60, {S}, 0 offen offset:{128*i}\nv_and_b32 v61, 0, v61\nv_add_u32 v60, v60, v61")
    a(f"buffer_load_dwordx4 v48, {srd(SK_)}, 0 offen lds","kv")
    a(f"s_add_u32 m0, s{sT1}, {L_V}");       a(f"buffer_load_dwordx4 v48, {srd(SV_)}, 0 offen lds","kv")
    a(f"s_add_u32 m0, s{sT1}, {L_K+5*CHP}"); a(f"buffer_load_dwordx4 v48, {srd(SK_)}, s{sSOFF} offen lds","kv")
    a(f"s_add_u32 m0, s{sT1}, {L_V+4*CHP}"); a(f"buffer_load_dwordx4 v48, {srd(SV_)}, s{sSOFF} offen lds","kv")
    a(f"s_cmp_eq_u32 s{sWV}, 3\ns_cselect_b32 m0, {L_K}, s{sT2}\ns_cselect_b32 s{sSOFF}, 0, {OOB}")
    a(f"buffer_load_dwordx4 v49, {srd(SK_)}, s{sSOFF} offen lds","kv")
    a.lw(13,(L_K,L_V+8*CHP+1024))
    if CFG['kl']==4: a(f"s_mov_b64 s[{SSK}:{SSK+1}], s[68:69]\ns_mov_b64 s[{SH_}:{SH_+1}], s[70:71]")
    if CFG['kl']==5:
        for b,r in ((SSK,70),(SH_,72),(SD_,74),(SQ_,64),(SWG,78),(SWU,80),(SWD,82),(SO_,84)): a(f"s_mov_b64 s[{b}:{b+1}], s[{r}:{r+1}]")
    if CFG['kl'] in(2,3):
        for b,off in later: a(f"s_load_dwordx2 s[{b}:{b+1}], s[0:1], {off}")
        later=()
    a(f"buffer_load_dwordx2 {V(80,2)}, v78, {srd(SSK)}, 0 offen")
    a(f"buffer_load_dword v51, v50, {srd(WS)}, 0 offen sc1")
    if CFG['kl']:
        for b,off in later: a(f"s_load_dwordx2 s[{b}:{b+1}], s[0:1], {off}")
    if CFG['kl']==5 and CFG['stamps']: a(f"s_mov_b32 s{STAMP0}, s97")
    a.stamp("kv issued","f")
    for b,n in ((SH_,4096),(SD_,1024),(SQ_,2<<20),(SWG,512*1376*2),(SWU,512*1376*2),(SWD,512*1376*2),(SO_,2<<20)):
        a(f"s_mov_b32 s{b+2}, {n}\ns_mov_b32 s{b+3}, 0x20000")
    a(f"""s_lshr_b32 s{sT0}, s{sR}, 4
        s_lshl_b32 s{sG}, s{sX}, 1
        s_add_u32 s{sG}, s{sG}, s{sT0}
        s_and_b32 s{sM}, s{sR}, 15
        s_lshr_b32 s{sRH}, s{sM}, 3
        s_and_b32 s{sCT2}, s{sM}, 7
        s_lshr_b32 s{sKH}, s{sWV}, 1
        s_and_b32 s{sCHH}, s{sWV}, 1
        s_waitcnt lgkmcnt(0)
        s_mov_b32 s{sMB}, 0x100000""")
    a(f"s_cmp_eq_u32 s{sM}, 15\ns_cselect_b32 s{SWG+2}, 0, s{SWG+2}\ns_cselect_b32 s{SWU+2}, 0, s{SWU+2}")
    a(f"s_lshl_b32 s{sT0}, s{sX}, 6\ns_lshl_b32 s{sT1}, s{sR}, 1\ns_add_u32 s{sT0}, s{sT0}, s{sT1}\ns_add_u32 s{sT2}, s{sT0}, s{sKH}")
    a(f"s_lshl_b32 s{sT0}, s{sT2}, 12\ns_add_u32 s{SH_}, s{SH_}, s{sT0}\ns_addc_u32 s{SH_+1}, s{SH_+1}, 0")
    a(f"s_lshl_b32 s{sT0}, s{sCHH}, 11\nv_add_u32 v52, s{sT0}, v{vL}")
    a(f"v_min_u32 v53, 1, v{vLane}\nv_lshlrev_b32 v53, 4, v53\nv_subrev_u32 v53, 32, v53")
    a(f"s_lshl_b32 s{sT0}, s{sT2}, 1\nv_mov_b32 v{vD}, s{sT0}")
    if CFG['ssmat']==0: ssm_loads(a)
    a(f"""v_and_b32 v96, 1, v{vQ}
        v_lshlrev_b32 v96, 2, v96
        v_lshrrev_b32 v97, 2, v{vJ}
        v_add_u32 v96, v96, v97
        v_lshlrev_b32 v96, 16, v96
        v_and_b32 v97, 3, v{vJ}
        v_lshl_add_u32 v96, v97, 5, v96
        v_lshrrev_b32 v97, 1, v{vQ}
        v_lshl_add_u32 v96, v97, 4, v96
        s_lshl_b32 s{sT0}, s{sCHH}, 19
        s_lshl_b32 s{sT1}, s{sT2}, 7
        s_add_u32 s{sT0}, s{sT0}, s{sT1}
        s_add_u32 s{sT0}, s{sT0}, {OFF_YT}
        v_add_u32 v{vYo}, s{sT0}, v96
        s_mov_b32 s{sHELLO}, s{sT2}""")
    a(f"v_mov_b32 v{vOne}, {OOB}\nv_cmp_eq_u32 vcc, 0, v{vLane}\nv_cndmask_b32 v{vOne}, v{vOne}, v50, vcc")
    a(f"""s_lshl_b32 s{sT0}, s{sG}, 2
        s_lshl_b32 s{sT1}, s{sRH}, 1
        s_add_u32 s{sT1}, s{sT1}, s{sKH}
        s_add_u32 s{sT0}, s{sT0}, s{sT1}
        s_lshl_b32 s{sT1}, s{sKH}, 1
        s_add_u32 s{sT1}, s{sT1}, s{sRH}""")
    a(f"""s_lshl_b32 s{sGRl}, s{sT0}, 12
        s_add_u32 s{sGRl}, s{sGRl}, {OFF_GRAN}
        s_lshl_b32 s{sS5l}, s{sT0}, 10
        s_add_u32 s{sS5l}, s{sS5l}, {OFF_S5}
        s_lshl_b32 s{sT3}, s{sCT2}, 1
        s_add_u32 s{sT3}, s{sT3}, s{sCHH}""")
    a(f"""s_lshl_b32 s{sGR}, s{sT3}, 8
        s_add_u32 s{sGR}, s{sGR}, s{sGRl}
        s_lshl_b32 s{sS5}, s{sT3}, 2
        s_add_u32 s{sS5}, s{sS5}, s{sS5l}
        s_lshl_b32 s{sXS}, s{sG}, 17
        s_lshl_b32 s{sT1}, s{sT1}, 14
        s_add_u32 s{sXS}, s{sXS}, s{sT1}
        s_lshl_b32 s{sT1}, s{sX}, {1 if CFG['rot'] else 8}
        s_sub_u32 s{sT1}, s{sT3}, s{sT1}
        s_and_b32 s{sT1}, s{sT1}, 15
        s_lshl_b32 s{sT1}, s{sT1}, 10
        s_add_u32 s{sXS}, s{sXS}, s{sT1}
        s_add_u32 s{sXS}, s{sXS}, {OFF_XF}
        s_lshl_b32 s{sT0}, s{sT0}, 14
        s_lshl_b32 s{sT1}, s{sT3}, 6
        s_add_u32 s{sT0}, s{sT0}, s{sT1}""")
    a(f"v_lshlrev_b32 v{vTok}, 10, v{vJ}\nv_lshl_add_u32 v{vTok}, v{vQ}, 4, v{vTok}\nv_add_u32 v{vTok}, s{sT0}, v{vTok}")
    a(f"v_lshlrev_b32 v{vGs}, 4, v{vJ}\nv_lshl_add_u32 v{vGl}, v{vQ}, 10, v{vGs}\nv_lshl_add_u32 v{vGs}, v{vQ}, 2, v{vGs}")
    a(f"v_lshlrev_b32 v{vS5l}, 6, v{vJ}\nv_mov_b32 v{vS5s}, {OOB}\nv_cmp_eq_u32 vcc, 0, v{vQ}\nv_cndmask_b32 v{vS5s}, v{vS5s}, v{vS5l}, vcc")
    a(f"v_lshl_add_u32 v{vS5l}, v{vQ}, 4, v{vS5l}")
    a(f"s_lshl_b32 s{sT0}, s{sX}, 5\ns_add_u32 s{sT0}, s{sT0}, s{sR}\ns_lshl_b32 s{sHF}, s{sT0}, 7\ns_lshl_b32 s{sT0}, s{sWV}, 2\ns_add_u32 s{sHF}, s{sHF}, s{sT0}\ns_add_u32 s{sHF}, s{sHF}, {OFF_HELLO}")
    a(f"""s_lshl_b32 s{sXW}, s{sCHH}, 14
        s_lshl_b32 s{sT0}, s{sKH}, 12
        s_add_u32 s{sXW}, s{sXW}, s{sT0}
        s_lshl_b32 s{sT0}, s{sG}, 17
        s_add_u32 s{sT0}, s{sT0}, s{sXW}
        s_add_u32 s{sT0}, s{sT0}, {OFF_XF}
        v_add_u32 v{vXD}, s{sT0}, v{vL}
        s_lshl_b32 s{sHW}, s{sWV}, 13
        s_mul_i32 s{sHK}, s{sKH}, {3*8192}
        s_lshl_b32 s{sHS}, s{sKH}, 13
        s_add_u32 s{sHS}, s{sHS}, 8192
        s_lshl_b32 s{sT0}, s{sG}, 3
        s_add_u32 s{sT1}, s{sRH}, s{sT0}
        s_mul_i32 s{sT1}, s{sT1}, {HKS}
        s_mul_i32 s{sT3}, s{sKH}, 21
        s_add_u32 s{sT1}, s{sT1}, s{sT3}
        s_lshl_b32 s{sT1}, s{sT1}, 10
        s_add_u32 s{sT1}, s{sT1}, {OFF_H}
        v_add_u32 v{vHD}, s{sT1}, v{vL}""")
    a(f"""s_mul_i32 s{sT0}, s{sT0}, {HKS*1024}
        s_mul_i32 s{sT1}, s{sM}, 12
        s_mul_i32 s{sT3}, s{sWV}, 3
        s_add_u32 s{sT1}, s{sT1}, s{sT3}
        s_lshl_b32 s{sT1}, s{sT1}, 8
        s_add_u32 s{sT0}, s{sT0}, s{sT1}
        s_add_u32 s{sT0}, s{sT0}, {OFF_H}
        s_mov_b32 s{sT1}, {HKS*1024}
        v_lshlrev_b32 v97, 4, v{vJ}
        v_add_u32 v97, s{sT0}, v97
        v_and_b32 v98, 1, v{vQ}
        v_mad_u32_u24 v{vHS1}, v98, s{sT1}, v97
        v_add_u32 v{vHS2}, 512, v{vHS1}
        v_cmp_gt_u32 vcc, 32, v{vLane}
        v_mov_b32 v97, {OOB}
        v_cndmask_b32 v{vHS2}, v97, v{vHS2}, vcc
        v_lshrrev_b32 v98, 1, v{vQ}
        v_lshl_add_u32 v{vHS1}, v98, 8, v{vHS1}
        v_lshlrev_b32 v{vFX}, 2, v{vLane}
        v_min_u32 v{vFH}, 57, v{vLane}
        v_lshlrev_b32 v{vFH}, 2, v{vFH}
        s_lshl_b32 s{sFL}, s{sG}, 9
        s_lshl_b32 s{sFLG}, s{sM}, 2
        s_add_u32 s{sFLG}, s{sFLG}, s{sWV}
        s_lshl_b32 s{sFLG}, s{sFLG}, 2
        s_add_u32 s{sFLG}, s{sFLG}, s{sFL}
        s_nop 0""")
    if CFG['idle']:
        a(f"""s_lshl_b32 s{sT0}, s{sM}, 2
            s_add_u32 s{sT0}, s{sT0}, s{sWV}
            s_cmp_ge_u32 s{sT0}, 58
            s_cselect_b32 s{sT0}, 0x40000000, 0
            v_or_b32 v{vHS1}, s{sT0}, v{vHS1}
            v_or_b32 v{vHS2}, s{sT0}, v{vHS2}
            s_cmp_eq_u32 s{sM}, 15
            s_cselect_b32 s{sT0}, 0x40000000, 0
            v_or_b32 v{vXD}, s{sT0}, v{vXD}""")
    w_setup(a)
    a(f"""v_mul_u32_u24 v83, {2*CHP}, v{vQ}
        v_bfe_u32 v101, v{vLane}, 2, 2
        v_lshl_add_u32 v83, v101, 7, v83
        v_and_b32 v101, 3, v{vLane}
        v_lshl_add_u32 v83, v101, 3, v83
        s_lshl_b32 s{sT0}, s{sWV}, 5
        v_add_u32 v83, s{sT0}, v83""")
    a(f"v_and_b32 v55, -9, v55\nv_lshlrev_b32 v55, 12, v55\nv_lshl_add_u32 v55, v{vQ}, 5, v55\nv_lshrrev_b32 v101, 3, v{vJ}\nv_lshl_add_u32 v55, v101, 4, v55\ns_lshl_b32 s{sT0}, s{sR}, 7\ns_add_u32 s{sT0}, s{sT0}, {OFF_KVT}\nv_add_u32 v55, s{sT0}, v55")
    a(f"v_lshrrev_b32 v100, 5, v{vLane}\nv_mul_u32_u24 v100, {UCH-512}, v100\nv_add_u32 v100, v100, v{vL}")
    a("v_mov_b32 v104, 0\nv_mov_b32 v105, 0\nv_mov_b32 v106, 0\nv_mov_b32 v107, 0")
    a(f"ds_write_b128 v100, {V(104)} offset:{L_U}"); a.lw(1,(L_U,L_U+512),(L_U+UCH,L_U+UCH+512))
    a(f"""s_lshl_b32 s{sT0}, s{sWV}, 12
        s_add_u32 s{sT1}, s{sT0}, {L_CX}
        v_add_u32 v{vCXw}, s{sT1}, v{vL}
        s_lshl_b32 s{sT2}, s{sCHH}, 11
        v_add_u32 v{vCXo}, s{sT2}, v{vCXw}
        v_xor_b32 v{vCXp}, 4096, v{vL}
        s_xor_b32 s{sT0}, s{sT0}, 4096
        s_add_u32 s{sT0}, s{sT0}, s{sT2}
        s_add_u32 s{sT0}, s{sT0}, {L_CX}
        v_add_u32 v{vCXp}, s{sT0}, v{vL}
        s_lshl_b32 s{sT0}, s{sCHH}, 10
        s_mul_i32 s{sT1}, s{sKH}, {UCH}
        s_add_u32 s{sT0}, s{sT0}, s{sT1}
        s_add_u32 s{sT0}, s{sT0}, {L_U+512+8}
        v_lshlrev_b32 v{vKV}, 5, v{vJ}
        v_lshrrev_b32 v100, 1, v{vQ}
        v_lshl_add_u32 v{vKV}, v100, 4, v{vKV}
        v_and_b32 v100, 1, v{vQ}
        v_lshlrev_b32 v100, 3, v100
        v_sub_u32 v{vKV}, v{vKV}, v100
        v_add_u32 v{vKV}, s{sT0}, v{vKV}
        v_lshrrev_b32 v100, 2, v0
        v_lshlrev_b32 v100, 7, v100
        v_and_b32 v101, 3, v0
        v_lshl_add_u32 v100, v101, 4, v100
        s_lshl_b32 s{sT0}, s{sG}, 16
        s_lshl_b32 s{sT1}, s{sCT2}, 13
        s_add_u32 s{sT0}, s{sT0}, s{sT1}
        s_lshl_b32 s{sT1}, s{sRH}, 6
        s_add_u32 s{sT0}, s{sT0}, s{sT1}
        s_add_u32 s{sT0}, s{sT0}, {OFF_YT}
        v_add_u32 v{vGA}, s{sT0}, v100
        v_lshlrev_b32 v{vGW}, 4, v0
        v_add_u32 v{vGW}, {L_YS}, v{vGW}
        v_bfe_u32 v100, v{vLane}, 2, 2
        v_lshl_add_u32 v100, v{vQ}, 3, v100
        v_lshlrev_b32 v100, 6, v100
        v_and_b32 v101, 3, v{vLane}
        v_lshl_add_u32 v100, v101, 3, v100
        s_lshl_b32 s{sT0}, s{sCHH}, 11
        s_lshl_b32 s{sT1}, s{sKH}, 5
        s_add_u32 s{sT0}, s{sT0}, s{sT1}
        s_add_u32 s{sT0}, s{sT0}, {L_YS}
        v_add_u32 v{vGT}, s{sT0}, v100
        v_and_b32 v100, 7, v{vLane}
        v_lshlrev_b32 v100, 7, v100
        v_bfe_u32 v101, v{vLane}, 3, 2
        v_lshl_add_u32 v100, v101, 14, v100
        s_lshl_b32 s{sT0}, s{sFL}, 1
        s_add_u32 s{sT0}, s{sT0}, {OFF_XFLAG}
        v_add_u32 v{vFT}, s{sT0}, v100
        v_and_b32 v100, 31, v{vLane}
        v_lshlrev_b32 v100, 7, v100
        v_cmp_gt_u32 vcc, 32, v{vLane}
        s_lshl_b32 s{sT0}, s{sCT2}, 12
        s_lshl_b32 s{sT1}, s{sX}, 12
        v_mov_b32 v101, s{sT0}
        v_mov_b32 v102, s{sT1}
        v_cndmask_b32 v101, v101, v102, vcc
        v_add_u32 v100, {OFF_HELLO}, v100
        v_add_u32 v{vHa}, v100, v101""")
    if CFG['hsplit']:
        a(f"""s_and_b32 s{sT2}, s{sWV}, 1
            s_lshl_b32 s{sT2}, s{sT2}, 11
            s_cmp_lt_u32 s{sWV}, 2
            s_cselect_b32 s{sT0}, s{sT1}, s{sT0}
            s_add_u32 s{sT0}, s{sT0}, s{sT2}
            s_add_u32 s{sT0}, s{sT0}, {OFF_HELLO}
            v_lshlrev_b32 v100, 7, v{vJ}
            v_add_u32 v{vHa}, s{sT0}, v100""")
    a(f"""s_lshl_b32 s{sT0}, s{sHELLO}, 12
        s_lshl_b32 s{sT1}, s{sCHH}, 11
        s_add_u32 s{sT0}, s{sT0}, s{sT1}
        s_add_u32 s{sT0}, s{sT0}, {OFF_KVT}
        v_lshlrev_b32 v100, 7, v{vLane}
        v_add_u32 v100, s{sT0}, v100
        s_lshr_b32 s{sT0}, s{sR}, 3
        s_lshl_b32 s{sT1}, s{sX}, 2
        s_add_u32 s{sT0}, s{sT0}, s{sT1}
        s_lshl_b32 s{sT0}, s{sT0}, 7
        s_add_u32 s{sT0}, s{sT0}, {OFF_F1L}
        v_mov_b32 v101, s{sT0}
        v_cmp_gt_u32 vcc, 16, v{vLane}
        v_cndmask_b32 v{vTch}, v101, v100, vcc""")
    if CFG['ft1']:
        a(f"s_lshl_b32 s{sT0}, s{sM}, 2\ns_add_u32 s{sT0}, s{sT0}, s{sWV}\ns_and_b32 s{sT0}, s{sT0}, 31\ns_nop 1\nv_readlane_b32 s{sT0}, v{vFT}, s{sT0}\nv_writelane_b32 v{vTch}, s{sT0}, 17")
    if CFG['utouch']==0: a(f"buffer_load_dword v{vTch}, v{vTch}, {srd(WS)}, 0 offen sc1")
    if CFG['ssmat']==1: ssm_loads(a)
    a(f"""v_lshlrev_b32 v{vCg}, 4, v{vJ}
        v_lshl_add_u32 v{vCg}, v{vQ}, 18, v{vCg}
        v_lshrrev_b32 v{vCs}, 3, v{vLane}
        v_lshlrev_b32 v{vCs}, 16, v{vCs}
        v_and_b32 v100, 7, v{vLane}
        v_lshl_add_u32 v{vCs}, v100, 4, v{vCs}
        s_lshl_b32 s{sT0}, s{sCHH}, 17
        s_lshl_b32 s{sT1}, s{sCT2}, 7
        s_add_u32 s{sT0}, s{sT0}, s{sT1}
        s_add_u32 s{sT0}, s{sT0}, s{sS5l}
        v_add_u32 v{vCs}, s{sT0}, v{vCs}
        v_cmp_gt_u32 vcc, 16, v{vLane}
        v_mov_b32 v100, {OOB}
        v_add_u32 v{vCg}, s{sGR}, v{vCg}
        v_cndmask_b32 v{vCs}, v100, v{vCs}, vcc""")
    if CFG['clr']==0: clears(a)
    a.stamp("setup done","f")

def ssm_loads(a):
    a(f"s_mul_i32 s{sT0}, s{sKH}, {UCH}\ns_lshl_b32 s{sT1}, s{sCHH}, 11\ns_add_u32 s{sT0}, s{sT0}, s{sT1}\ns_add_u32 m0, s{sT0}, {L_U+512}")
    a(f"buffer_load_dwordx4 v{vL}, {srd(SH_)}, s{sT1} offen lds\nbuffer_load_dwordx4 v{vL}, {srd(SH_)}, s{sT1} offen offset:1024 lds","ssm")
    a.lw(2,(L_U+512,L_U+UCH),(L_U+UCH+512,L_U+2*UCH))
    a(f"buffer_load_ushort v{vD}, v{vD}, {srd(SD_)}, 0 offen")

def clears(a,tok=None):
    a("v_mov_b32 v112, -1\nv_mov_b32 v113, -1\nv_mov_b32 v114, -1\nv_mov_b32 v115, -1")
    a(f"""buffer_store_dwordx4 {V(112)}, v{vYo}, {srd(WS)}, 0 offen sc1
        buffer_store_dwordx4 {V(112)}, v{vYo}, {srd(WS)}, s{sMB} offen sc1
        buffer_store_dwordx4 {V(112)}, v{vCg}, {srd(WS)}, 0 offen sc1
        buffer_store_dwordx4 {V(112)}, v{vCs}, {srd(WS)}, 0 offen sc1""",tok)

def w_setup(a):
    lane,j,q=vLane,vJ,vQ
    for b in range(3):
        a(f"v_add_u32 v100, {64*b}, v{lane}\nv_mul_u32_u24 v101, 43691, v100\nv_lshrrev_b32 v101, 19, v101")
        a(f"v_mul_u32_u24 v102, 12, v101\nv_sub_u32 v100, v100, v102\nv_lshlrev_b32 v100, 4, v100")
        if CFG['swz']:
            a("v_lshrrev_b32 v102, 3, v101\nv_lshlrev_b32 v102, 5, v102\nv_sub_u32 v100, v100, v102\nv_add_u32 v102, 192, v100\nv_min_u32 v100, v100, v102")
        a(f"v_mul_u32_u24 v101, 2752, v101\nv_add_u32 v{vW1[b]}, v100, v101")
        if CFG['z14']: a(f"s_cmp_eq_u32 s{sM}, 14\ns_cselect_b32 s{sT0}, 64, 192\nv_cmp_gt_u32 vcc, s{sT0}, v100\nv_mov_b32 v101, 0x40000000\nv_cndmask_b32 v{vW1[b]}, v101, v{vW1[b]}, vcc")
    a(f"s_mul_i32 s{sT0}, s{sWV}, {16*2752}\ns_mul_i32 s{sT1}, s{sM}, 192\ns_add_u32 s{sT0}, s{sT0}, s{sT1}")
    for b in range(3):
        a(f"v_add_u32 v{vW1[b]}, s{sT0}, v{vW1[b]}")
        if b: a(f"v_subrev_u32 v{vW1[b]}, {1024*b}, v{vW1[b]}")
    a(f"""v_bfe_u32 v100, v{lane}, 2, 2
        v_lshl_add_u32 v100, v{q}, 3, v100
        v_and_b32 v101, 3, v{lane}
        v_mul_u32_u24 v102, 192, v100
        s_mul_i32 s{sT0}, s{sWV}, 48
        v_and_b32 v104, {1 if CFG['swz'] else 0}, v{q}
        v_lshlrev_b32 v104, 5, v104
        v_add_u32 v104, s{sT0}, v104
        v_lshl_add_u32 v103, v101, 3, v104
        v_subrev_u32 v105, 192, v103
        v_min_u32 v103, v103, v105
        v_add_u32 v{vTa}, v102, v103
        v_lshrrev_b32 v103, 1, v101
        v_lshl_add_u32 v103, v103, 3, v104
        v_add_u32 v103, 32, v103
        v_subrev_u32 v105, 192, v103
        v_min_u32 v103, v103, v105
        v_add_u32 v102, v102, v103
        v_and_b32 v103, 1, v101
        v_mul_u32_u24 v103, 12288, v103
        v_add_u32 v{vTm}, v102, v103
        v_lshlrev_b32 v102, 7, v100
        v_lshl_add_u32 v102, v101, 4, v102
        s_lshl_b32 s{sT1}, s{sWV}, 12
        s_add_u32 s{sT1}, s{sT1}, {L_PP}
        v_add_u32 v{vT2}, s{sT1}, v102
        s_mul_i32 s{sW1W}, s{sWV}, 3072""")

def c_dma(n, slot):
    if CFG.get('now1'): return []
    L=M(f"s_add_u32 s{sWo}, s{sX}, {n}\ns_and_b32 s{sWo}, s{sWo}, 7\ns_mul_i32 s{sWo}, s{sWo}, {64*2752}") if CFG['rot'] else M(f"s_mov_b32 s{sWo}, {n*64*2752}")
    for mat,S in ((0,SWG),(1,SWU)):
        L+=M(f"s_add_u32 m0, s{sW1W}, {slot+mat*12288}")
        for b in range(3): L+=M(f"buffer_load_dwordx4 v{vW1[b]}, {srd(S)}, s{sWo} offen offset:{1024*b} lds",f"c{n}")
    return LW(L,(slot,slot+WSL))
def c_read(n, slot):
    if CFG.get('now1'): return []
    L=M(f"v_add_u32 v{vWc0}, {slot}, v{vTa}\nv_add_u32 v{vWc1}, {slot}, v{vTm}")
    for sp in range(2):
        s=2*n+sp
        for hh in range(2):
            o=sp*6144+hh*768
            L+=M(f"""ds_read_b64_tr_b16 {W1h(s,0,hh)}, v{vWc0} offset:{o}
                     ds_read_b64_tr_b16 {W1h(s,1,hh)}, v{vWc0} offset:{o+12288}
                     ds_read_b64_tr_b16 {W1h(s,2,hh)}, v{vWc1} offset:{o}""",f"cr{n}")
    return LR(L,(slot,slot+WSL))
def pp_setup():
    return M(f"""s_lshl_b32 s{sT0}, s{sWV}, 8
        s_add_u32 s{sT0}, s{sT0}, s2
        s_mul_i32 s{sT1}, s{sT0}, 1525
        s_lshr_b32 s{sT1}, s{sT1}, 16
        s_mul_i32 s{sT2}, s{sT1}, 43
        s_sub_u32 s{sT2}, s{sT0}, s{sT2}
        s_lshl_b32 s{sPS}, s{sT2}, 15
        s_lshl_b32 s{sT3}, s{sT1}, 7
        s_add_u32 s{sPS}, s{sPS}, s{sT3}
        s_mul_i32 s{sPD}, s{sT1}, 86
        s_add_u32 s{sPD}, s{sPD}, s{sT2}
        s_lshl_b32 s{sPD}, s{sPD}, 11
        s_add_u32 s{sPD}, s{sPD}, {OFF_P2}
        s_lshl_b32 s{sPF}, s{sT0}, 7
        s_add_u32 s{sPF}, s{sPF}, {OFF_P2F}
        s_cmp_lt_u32 s{sT0}, 344
        s_cselect_b32 s{sPS}, s{sPS}, {OOB}
        s_cselect_b32 s{sPD}, s{sPD}, {OOB}
        s_cselect_b32 s{sPF}, s{sPF}, {OOB}
        s_lshl_b32 s{sT0}, s{sCT2}, 1
        s_add_u32 s{sT0}, s{sT0}, s{sCHH}
        s_mul_i32 s{sT0}, s{sT0}, 43
        s_mul_i32 s{sT1}, s{sKH}, 21
        s_add_u32 s{sT0}, s{sT0}, s{sT1}
        s_lshl_b32 s{sT0}, s{sT0}, 11
        s_add_u32 s{sW2B}, s{sT0}, {OFF_P2}
        s_cmp_eq_u32 s{sKH}, 0
        s_cselect_b32 s{sW20}, s{sW2B}, {OOB}""")
def pp_load():
    L=M(f"s_lshl_b32 s{sT3}, s{sWV}, 12")
    for r in range(4):
        L+=M(f"s_add_u32 m0, s{sT3}, {L_PP+1024*r}\ns_add_u32 s{sWo}, s{sPS}, {8192*r}")
        L+=M(f"buffer_load_dwordx4 v{vW2}, {srd(SWD)}, s{sWo} offen lds","pp")
    for x in L: x.priv=1
    return LW(L,(L_PP,L_PP+16384))
def touches():
    return M(f"""buffer_load_dword v{vCg}, v{vCg}, {srd(WS)}, 0 offen sc1
        buffer_load_dword v{vCs}, v{vCs}, {srd(WS)}, 0 offen sc1
        buffer_load_dword v{vFT}, v{vFT}, {srd(WS)}, 0 offen sc1""")[:2 if CFG['ft1'] else 3]
def extras(pos): return (pp_load() if CFG['ppat']==pos else [])+(touches() if CFG['tat']==pos else [])+(h_touch(TCHK()) if CFG['hat']==pos else [])
def pp_pack():
    L=[('WVM','pp')]
    for c in range(2):
        for t in range(2):
            for hh in range(2): L+=LR(M(f"ds_read_b64_tr_b16 {V(W2V+8*c+4*t+2*hh,2)}, v{vT2} offset:{hh*512+64*c+8*t}"),(L_PP,L_PP+16384))
    for x in L[1:]: x.priv=1
    S=[]
    for c in range(2):
        S+=M(f"s_add_u32 s{sT2}, s{sPD}, {c*43*2048}")
        for t in range(2): S+=M(f"buffer_store_dwordx4 {V(W2V+8*c+4*t)}, v{vL}, {srd(WS)}, s{sT2} offen offset:{1024*t} sc1","pps")
    return L,S
def W2E():
    n=sum(int(o[1:]) for v in PL().values() if isinstance(v,str) for o in v.split() if o[0]=='p')
    assert n%4==0 and n<=16
    return n//2
def w2_loads():
    L=[]
    ne=W2E()
    for i in list(range(22-ne,22))+list(range(22-ne)):
        so=sW20 if i==0 else (sW2B if i==1 else sPS)
        if i>=2 and i%2==0: L+=M(f"s_add_u32 s{sPS}, s{sW2B}, {i*2048}")
        for t in range(2): L+=M(f"buffer_load_dwordx4 {W2(i,t)}, v{vL}, {srd(WS)}, s{so} offen offset:{(i&1)*2048+t*1024} sc1",f"w2_{i}")
    return L
W2Q=[]
def w2_take(n):
    out=[]
    while W2Q and n>0:
        x=W2Q.pop(0); out.append(x)
        if x.kind=='vmem': n-=1
    return out

PLANS={
 0:dict(),
 1:dict(FL="i0", T2="i1", CV=[("a",20,"r0"),("d",40,"i2"),("a",84,"w1 b r1"),("d",100,"i3@0")], YS="i4@5", YA="w3 b r2 r3", GL="i5@1 w4 l b r4", ST="i6@2", PEND=[5,6], REST=["7@0"]),
 3:dict(FL="i0", T2="i1 w0 b r0", CV=[("d",2,"i2"),("d",68,"i3@0")], CE="w2", YS="r1 r2 i4@3", F1="r3", F2="i5@1", FB="r4", XD="", PEND=[5], REST=["6@2","7@0"]),
 6:dict(T2="i0", CV=[("d",40,"i1"),("d",90,"i2")], CE="w1", YS="i3@3 r0 r1", SA="w2", F1="r2 i4@0", F2="", FX="i5@1", SB="w4", FB="r3 r4", XD="", PEND=[5], REST=["6@2","7@0"]),
 8:dict(T0="i0", FL="i1", T2="i2 w1 b r0 r1", CV=[("d",20,"i3@0"),("d",68,"i4@1")], CE="w3", YS="i5@3 r2 r3", F1="r4", F2="i6@2", FX="i7@0", FB="r5", PEND=[6,7]),
 12:dict(T0="i0", FL="i1", T2="i2 w1 b r0 r1", CV=[("d",20,"i3@0"),("d",68,"i4@1")], CE="w3", YS="i5@3 r2 r3", F1="r4", F2="i6@2", FX="i7@0", FB="r5", XD="p6", PEND=[6,7]),
 13:dict(T0="i0", FL="i1", T2="i2", CV=[("a",6,"r0 r1"),("a",52,"L1 b"),("d",54,"i3@0"),("d",100,"i4@1")], CE="w3", YS="i5@3 r2 r3", SA="w4", F1="r4", F2="i6@2", FX="i7@0", FB="r5", PEND=[6,7]),
 14:dict(T0="i0", T2="i1", CV=[("a",6,"r0"),("d",24,"i2"),("d",70,"i3@0")], CE="w2", YS="i4@3 r1 r2", F1="r3", F2="i5@1", FX="i6@2", FB="r4", PEND=[5,6], REST=["7@0"]),
 15:dict(FL="i0", T2="i1", CV=[("a",6,"r0"),("d",4,"i2"),("a",40,"w1 L0 b r1"),("d",50,"i3@0"),("a",94,"w2 L1 b r2"),("d",98,"i4@1")], CE="w3", YS="i5@3 r3", SA="w4", F1="r4", F2="i6@2", FX="i7@0", FB="r5", PEND=[6,7]),
 16:dict(T1="i0", T2="i1", CV=[("a",6,"r0"),("d",4,"i2"),("a",40,"w1 L0 b r1"),("d",50,"i3@0"),("a",94,"w2 L1 b r2"),("d",98,"i4@1")], CE="w3", YS="i5@3 r3", SA="w4", F1="r4", F2="i6@2", FX="i7@0", FB="r5", PEND=[6,7]),
 22:dict(T0="i0", FL="i1", T2="i2", CV=[("a",6,"r0 r1"),("a",52,"L1 b"),("d",54,"i3@0"),("d",100,"i4@1")], CE="w3", YS="i5@3 r2 r3 w4 l b r4", F2="i6@2", FX="l b i7@1", FB="r5", XB="l b", PEND=[6,7]),
 23:dict(T0="i0", FL="i1", T2="i2", CV=[("a",6,"r0 r1"),("a",52,"L1 b"),("d",54,"i3@0"),("d",100,"i4@1")], CE="w3", YS="i5@3 r2 r3", F2="w4 l b i6@2 r4", FX="i7@0", FB="r5", XB="l b", PEND=[6,7]),
 24:dict(T0="i0", FL="i1", T2="i2", CV=[("a",6,"r0 r1"),("a",52,"L1 b"),("d",54,"i3@0"),("g",0,"i4@1")], CE="w3", SA="w4", YS="i5@3 r2 r3 r4", F2="l b i6@2", FX="i7@0", FB="r5", XB="l b", PEND=[6,7]),
 25:dict(T0="i0", FL="i1", T2="i2", CV=[("a",6,"r0 r1"),("a",44,"L1 b"),("d",46,"i3@0"),("d",72,"i4@1")], CE="w3", SA="w4", YS="i5@3 r2 r3 r4", F2="l b i6@2", FX="i7@0", FB="r5", XB="l b", PEND=[6,7]),
 26:dict(T0="i0", T1="i1", T2="i2", CV=[("a",6,"r0 r1"),("a",52,"L1 b"),("d",54,"i3@0"),("d",100,"i4@1")], CE="w3", SA="w4", YS="i5@3 r2 r3 r4", F2="l b i6@2", FX="i7@0", FB="r5", XB="l b", PEND=[6,7]),
 27:dict(T1="i0", FL="i1", T2="i2", CV=[("a",6,"r0 r1"),("a",52,"L1 b"),("d",54,"i3@0"),("d",100,"i4@1")], CE="w3", SA="w4", YS="i5@3 r2 r3 r4", F2="l b i6@2", FX="i7@0", FB="r5", XB="l b", PEND=[6,7]),
 28:dict(T0="i0", T1="i1", FL="i2", CV=[("a",6,"r0 r1"),("a",52,"L1 b"),("d",54,"i3@0"),("d",100,"i4@1")], CE="w3", SA="w4", YS="i5@3 r2 r3 r4", F2="l b i6@2", FX="i7@0", FB="r5", XB="l b", PEND=[6,7]),
 29:dict(T0="i0 i1", T2="i2", CV=[("a",6,"r0 r1"),("a",52,"L1 b"),("d",54,"i3@0"),("d",100,"i4@1")], CE="w3", SA="w4", YS="i5@3 r2 r3 r4", F2="l b i6@2", FX="i7@0", FB="r5", XB="l b", PEND=[6,7]),
 30:dict(T1="i0", FL="i1", T2="i2", CV=[("a",6,"r0 r1"),("a",44,"L1 w2 b r2"),("d",46,"i3@0"),("d",76,"i4@1"),("a",90,"L2 b"),("d",108,"i5@2")], CE="w3", SA="w4", YS="i6@3 r3 r4", F2="w5 l b i7@0 r5", FB="r6", XB="l b", PEND=[7]),
 31:dict(T1="i0", FL="i1", T2="i2", CV=[("a",6,"r0 r1"),("a",52,"L1 b"),("d",54,"i3@0"),("d",100,"i4@1")], CE="w3", SA="w4", YS="i5@3 r2 r3 r4", F2="l b i6@2", FB="r5", XB="l b", PEND=[6], REST=["7@0"]),
 33:dict(T1="i0", FL="i1", T2="i2", CV=[("a",6,"r0 r1"),("a",52,"L1 b"),("d",54,"i3@0"),("d",100,"i4@1")], CE="w3", SA="w4", YS="i5@3 r2 r3 r4", F2="l b i6@2", FB="i7@0 r5", XB="l b", PEND=[6,7]),
 34:dict(T1="i0", FL="i1", T2="i2", CV=[("a",6,"r0 r1"),("a",52,"L1 b"),("d",54,"i3@0"),("d",100,"i4@1")], CE="w3", SA="w4", YS="i5@3 r2 r3 r4", F2="l b i6@2 i7@0", FB="r5", XB="l b", PEND=[6,7]),
 35:dict(T1="i0", FL="i1", T2="i2", CV=[("a",6,"r0 r1"),("a",52,"L1 b"),("d",54,"i3@0"),("d",100,"i4@1")], CE="w3", SA="w4", YS="i5@3 i6@4 r2 r3 r4", FX="l b i7@0", SB="w6", FB="r5 r6", XB="l b", PEND=[7]),
 36:dict(T1="i0", FL="i1", T2="i2", CV=[("a",6,"r0 r1"),("a",52,"L1 b"),("d",54,"i3@0"),("d",100,"i4@1")], CE="w3", SA="w4", YS="i5@3 r2 r3 r4", F2="l b i6@2", FX="i7@0", FB="r5", XB="l b", XD="p4", PEND=[6,7]),
 37:dict(T1="i0", FL="i1", T2="i2", CV=[("a",6,"r0 r1"),("a",44,"L1 w2 b r2"),("d",46,"i3@0"),("d",66,"i4@1"),("a",80,"L2 b"),("d",88,"i5@2"),("a",100,"w3 b r3"),("a",120,"L3 b"),("d",126,"i6@0")], CE="w4", SA="w5", YS="i7@3 r4 r5", SB="w7", FB="r6 r7", XB="l b"),
 38:dict(T1="i0", FL="i1", T2="i2", CV=[("a",6,"r0 r1"),("a",44,"L1 w2 b r2"),("d",46,"i3@0"),("d",66,"i4@1"),("a",80,"L2 b"),("d",88,"i5@2")], CE="w4", SA="w5", YS="i6@3 r3 r4 r5", F2="l b i7@0", FB="r6", XB="l b", PEND=[7]),
 39:dict(T1="i0", FL="i1", T2="i2", CV=[("a",6,"r0 r1"),("a",44,"L1 w2 b r2"),("d",46,"i3@0"),("d",66,"i4@1"),("a",80,"L2 b"),("d",88,"i5@2")], CE="w4", Y0="i6@3", SA="w5", YS="i7@4 r3 r4 r5", SB="w7", FB="r6 r7", XB="l b"),
 40:dict(T1="i0", T2="i1", CV=[("d",24,"i2"),("a",6,"r0"),("a",44,"w1 L0 b r1"),("d","b44","i3@0"),("a",70,"L1 w2 b r2"),("d","b70","i4@1"),("a",96,"L2 w3 b"),("d","b96","i5@2")], CE="w4", SA="w5", YS="i6@3 r3 r4 r5", F2="l b i7@0", FB="r6", XB="l b", PEND=[7]),
 41:dict(FL="i0", T2="i1", CV=[("d",24,"i2"),("a",6,"r0"),("a",44,"w1 L0 b r1"),("d","b44","i3@0"),("a",70,"L1 w2 b r2"),("d","b70","i4@1"),("a",96,"L2 w3 b"),("d","b96","i5@2")], CE="w4", SA="w5", YS="i6@3 r3 r4 r5", F2="l b i7@0", FB="r6", XB="l b", PEND=[7]),
 42:dict(T0="i0", T2="i1", CV=[("d",24,"i2"),("a",6,"r0"),("a",44,"w1 L0 b r1"),("d","b44","i3@0"),("a",70,"L1 w2 b r2"),("d","b70","i4@1"),("a",96,"L2 w3 b"),("d","b96","i5@2")], CE="w4", SA="w5", YS="i6@3 r3 r4 r5", F2="l b i7@0", FB="r6", XB="l b", PEND=[7]),
 43:dict(T1="i0", FL="i1", T2="i2", CV=[("a",6,"r0 r1"),("a",44,"L1 w2 b r2"),("d",46,"i3@0"),("d",66,"i4@1"),("a",80,"L2 b"),("d",88,"i5@2")], CE="w4", SA="w5", YS="i6@4 r3 r4 r5", F2="l b i7@0", PEND=[6,7]),
 44:dict(T1="i0", FL="i1", T2="i2", CV=[("a",6,"r0 r1"),("a",44,"L1 w2 b r2"),("d",46,"i3@0"),("d",66,"i4@1"),("a",80,"L2 b"),("d",88,"i5@2")], CE="w4", SA="w5", YS="i6@4 r3 r4 r5", FX="l b i7@0", PEND=[6,7]),
 45:dict(T1="i0", FL="i1", T2="i2", CV=[("a",6,"r0 r1"),("a",44,"L1 w2 b r2"),("d",46,"i3@0"),("d",66,"i4@1"),("a",80,"L2 b"),("d",88,"i5@2")], CE="w4", SA="w5", YS="i6@4 r3 r4 r5", FB="i7@0", PEND=[6,7]),
 46:dict(T1="i0", FL="i1", T2="i2", CV=[("a",6,"r0 r1"),("a",44,"L1 w2 b r2"),("d",46,"i3@0"),("d",66,"i4@1"),("a",80,"L2 b"),("d",88,"i5@2")], CE="w4", SA="w5", YS="i6@3 r3 r4 r5", F2="l b x7@0", FB="r6", XB="l b", XD="y7", LATE=[7]),
 47:dict(T1="i0", FL="i1", T2="i2", CV=[("a",6,"r0 r1"),("a",44,"L1 w2 b r2"),("d",46,"i3@0"),("d",66,"i4@1"),("a",80,"L2 b"),("d",88,"i5@2")], CE="w4", SA="w5", YS="i6@3 r3 r4 r5", F2="l b x7@0", FX="y7", FB="r6", XB="l b", PEND=[7]),
 48:dict(T1="i0", FL="i1", T2="i2", CV=[("a",6,"r0 r1"),("a",44,"L1 w2 b r2"),("d",46,"i3@0"),("d",66,"i4@1"),("a",80,"L2 b"),("d",88,"i5@2")], CE="w4", SA="w5", YS="i6@3 r3 r4 r5", FB="r6", XB="l b", XD="i7@0", LATE=[7]),
 49:dict(T1="i0", FL="i1", T2="i2", CV=[("a",6,"r0 r1"),("a",44,"L1 w2 b r2"),("d",46,"i3@0"),("d",66,"i4@1"),("a",80,"L2 b"),("d",88,"i5@2")], CE="w4", SA="w5", Y0="x6@3", YS="y6 r3 r4 r5", F2="l b x7@0", FB="r6", XB="l b", XD="y7", LATE=[7]),
 50:dict(T1="i0", FL="i1", T2="i2", CV=[("a",6,"r0 r1"),("a",44,"L1 w2 b r2"),("d",46,"i3@0"),("d",66,"i4@1"),("a",80,"L2 b"),("d",88,"i5@2")], CE="w4", SA="w5", YS="i6@3 r3 r4 r5", F2="l b i7@0", FX="p2", FB="r6 p2", XB="l b", XD="p4", PEND=[7]),
 51:dict(T1="i0", FL="i1", T2="i2", CV=[("a",6,"r0 r1"),("a",44,"L1 w2 b r2"),("d",46,"i3@0"),("d",66,"i4@1"),("a",80,"L2 b"),("d",88,"i5@2")], CE="w4", SA="w5", YS="i6@3 r3 r4 r5", F2="l b i7@0", FX="p3", FB="r6 p3", XB="l b", XD="p6", PEND=[7]),
 52:dict(T1="i0", FL="i1", T2="i2", CV=[("a",6,"r0 r1"),("a",44,"L1 w2 b r2"),("d",46,"i3@0"),("d",66,"i4@1"),("a",80,"L2 b"),("d",88,"i5@2")], CE="w4", SA="w5", YS="i6@3 r3 r4 r5", F2="l b i7@0", FB="r6", XB="l b", XD="p8", PEND=[7]),
 53:dict(T1="i0", FL="i1", T2="i2", CV=[("a",6,"r0 r1"),("a",44,"L1 w2 b r2"),("d",46,"i3@0"),("d",66,"i4@1"),("a",80,"L2 b"),("d",88,"i5@2")], CE="w4", SA="w5", YS="i6@3 r3 r4 r5", F2="l b i7@0", FX="p4", FB="r6", XB="l b", XD="p4", PEND=[7]),
 54:dict(T1="i0", FL="i1", T2="i2", CV=[("a",6,"r0 r1"),("a",44,"L1 w2 b r2"),("d",46,"i3@0"),("d",66,"i4@1"),("a",80,"L2 b"),("d",88,"i5@2")], CE="w4", SA="w5", YS="i6@3 r3 r4 r5", F2="l b i7@0", FA="p4", FX="p4", FB="r6 p4", XB="l b", XD="p4", PEND=[7]),
 17:dict(T0="i0", FL="i1", T2="i2", CV=[("a",6,"r0 r1"),("a",52,"L1 b"),("d",54,"i3@0"),("d",100,"i4@1")], CE="w3", Y0="i5@3", SA="w4", YS="r2 r3 r4", FX="l b i6@2", FB="i7@0 r5", PEND=[6,7]),
 18:dict(T0="i0", FL="i1", T2="i2", CV=[("a",6,"r0 r1"),("a",52,"L1 b"),("d",54,"i3@0"),("d",100,"i4@1")], CE="w3", SA="w4", YS="i5@3 r2 r3 r4", F2="l b i6@2", FX="i7@0", FB="r5", XB="l b", PEND=[6,7]),
 20:dict(T0="i0", FL="i1", T2="i2", CV=[("a",6,"r0 r1"),("a",52,"L1 b"),("d",54,"i3@0"),("d",100,"i4@1")], CE="w3", SA="w4", YS="i5@3 r2 r3 r4", FA="l b i6@2", FX="i7@0", FB="r5", PEND=[6,7]),
 21:dict(T0="i0", FL="i1", T2="i2", CV=[("a",6,"r0 r1"),("a",52,"L1 b"),("d",54,"i3@0"),("d",100,"i4@1")], CE="w3", Y0="i5@3", SA="w4", YS="r2 r3 r4 l b i6@2", FX="i7@0", FB="r5", PEND=[6,7]),
 19:dict(T0="i0", FL="i1", T2="i2", CV=[("a",6,"r0 r1"),("a",52,"L1 b"),("d",54,"i3@0"),("d",100,"i4@1")], CE="w3", Y0="i5@3", SA="w4", YS="r2 r3 r4", FA="l b i6@2", FX="i7@0", FB="r5", PEND=[6,7]),
 10:dict(T0="i0", T2="i1 w0 b r0", CV=[("d",20,"i2"),("d",68,"i3@0")], CE="w2", YS="i4@3 r1 r2", F1="r3", F2="i5@1", FX="i6@2", FB="r4", PEND=[5,6], REST=["7@0"]),
 11:dict(T0="i0", T1="i1", T2="i2 w1 b r0 r1", CV=[("d",14,"i3@0"),("d",56,"i4@1"),("a",70,"w2 b r2"),("a",96,"L2 b"),("d",100,"i5@2")], CE="w4", YS="i6@3 r3 r4", SA="w5", F1="r5", F2="i7@0", FB="r6", XD="p4", PEND=[7]),
 7:dict(FL="i0", T2="i1 w0 b r0", CV=[("d",20,"i2"),("d",68,"i3@0")], CE="w2", YS="i4@3 r1 r2", F1="r3", F2="i5@1", FX="i6@2", FB="r4", PEND=[5,6], REST=["7@0"]),
 4:dict(FL="i0", T2="i1 w0 b r0", CV=[("d",2,"i2"),("d",50,"i3@0")], CE="w2", YS="i4@3 r1 r2", F1="r3", F2="i5@1", FX="i6@2", FB="r4", PEND=[5,6], REST=["7@0"]),
 5:dict(T1="i0", FL="", T2="i1 w0 b r0", CV=[("d",2,"i2"),("d",46,"i3@0"),("a",60,"w1 b r1"),("a",84,"L1 b"),("d",92,"i4@1")], CE="w3", YS="i5@3 r2 r3", SA="w4", F1="r4", F2="i6@2", FX="i7@0", FB="r5", PEND=[6,7]),
 2:dict(FL="i0", T2="i1", CV=[("a",20,"r0"),("d",30,"i2"),("a",70,"w1 b r1"),("d",80,"i3@0"),("a",124,"w2 b r2")], YS="i4@5 i5@1", YA="w4 b r3 r4", GL="i6@2 w5 l b r5", ST="i7@0", PEND=[6,7], FA="p4", FB="p4", XD="p4"),
 9:dict(ST="i0 i1 "+" ".join(f"w{n} l b "+(f"i{n+2} " if n+2<8 else "")+f"r{n}" for n in range(8))+" l b"),
}
slot_of={}
def wops(txt):
    L=[]
    for op in txt.split():
        at=None
        if '@' in op: op,at=op.split('@'); at=int(at)
        k=int(op[1:]) if len(op)>1 else None
        if op[0]=='i': slot_of[k]=SLOT[at if at is not None else k%3]; L+=c_dma(k,slot_of[k])
        elif op[0]=='x': slot_of[k]=SLOT[at if at is not None else k%3]; L+=c_dma(k,slot_of[k])[:-4]
        elif op[0]=='y': d=c_dma(k,slot_of[k]); L+=d[:-8]+d[-4:]
        elif op[0]=='r': L+=c_read(k,slot_of[k])
        elif op[0]=='w': L.append(('WVM',f"c{k}"))
        elif op[0]=='l': L+=M("s_waitcnt lgkmcnt(0)")
        elif op[0]=='L': L.append(('WLG',f"cr{k}"))
        elif op[0]=='b': L+=M("s_barrier")
        elif op[0]=='p': L+=w2_take(k)
    return L
def PL(): return eval(CFG['plan']) if isinstance(CFG['plan'],str) else PLANS[CFG['plan']]
def Wp(a,point): a.flat(wops(PL().get(point,"")))

def toeplitz(a):
    a("s_waitcnt lgkmcnt(0)\ns_barrier")
    a(f"s_mul_i32 s{sT0}, s{sKH}, {UCH}\ns_add_u32 s{sT0}, s{sT0}, {L_U+512}\nv_add_u32 v54, s{sT0}, v52\nv_add_u32 v78, s{sT0}, v53")
    for rho,(va,off) in enumerate(((54,0),(54,1024),(78,0))):
        d=56+8*rho
        a(f"ds_read_b128 {V(d)}, v{va} offset:{off}\nds_read_b64 {V(d+4,2)}, v{va} offset:{off+16}","raw"); a.lr(2,(L_U,L_U+2*UCH))
    a(f"s_mul_i32 s{sT0}, s{sKH}, {TCH}\ns_add_u32 s{sT0}, s{sT0}, {L_TOEP+32}")
    a(f"v_add_u32 v52, s{sT0}, v52\nv_add_u32 v53, s{sT0}, v53")
    for rho,(va,off) in enumerate(((52,0),(52,1024),(53,0))):
        d=56+8*rho; t=100+12*(rho%2)
        a(f"ds_write_b128 v{va}, {V(d)} offset:{off}")
        for i in range(4): a(f"v_alignbit_b32 v{t+i}, v{d+i+1}, v{d+i}, 16")
        a(f"ds_write_b128 v{va}, {V(t)} offset:{off+TCP}")
        for i in range(4): a(f"v_mov_b32 v{t+4+i}, v{d+i+1}")
        a(f"ds_write_b128 v{va}, {V(t+4)} offset:{off+2*TCP}")
        for i in range(4): a(f"v_alignbit_b32 v{t+8+i}, v{d+i+2}, v{d+i+1}, 16")
        a(f"ds_write_b128 v{va}, {V(t+8)} offset:{off+3*TCP}"); a.lw(16,(L_TOEP,L_TOEP+2*TCH))
        if rho==1: a.waitlg("raw"); a("s_barrier")

def p0(a):
    a.waitvm("kv"); a("s_barrier")
    a.stamp("kv landed","f")
    KR=84; VR=94
    for i in range(5):
        R=4+4*i; a(f"ds_read_b64_tr_b16 {V(KR+2*i,2)}, v83 offset:{L_K+(R>>3)*CHP+(R&7)*128}")
    for i in range(4):
        R=4*i; a(f"ds_read_b64_tr_b16 {V(VR+2*i,2)}, v83 offset:{L_V+(R>>3)*CHP+(R&7)*128}")
    a.lr(9,(L_K,L_V+8*CHP))
    Wp(a,'T0')
    O=16
    if CFG['dot2']:
        a("""v_alignbit_b32 v40, v80, v80, 16
            v_alignbit_b32 v41, v81, v81, 16
            v_and_b32 v42, 0xffff, v80
            v_and_b32 v43, 0xffff0000, v81
            v_and_b32 v44, 0xffff0000, v80
            v_and_b32 v45, 0xffff, v81
            v_or_b32 v44, v44, v45""")
        for i in range(8):
            P=KR+2+i
            a(f"v_dot2_f32_bf16 v{O+2*i}, v{P}, v42, 0\nv_dot2_f32_bf16 v{O+2*i+1}, v{P}, v40, 0")
        for i in range(8):
            P=KR+2+i
            a(f"v_dot2_f32_bf16 v{O+2*i}, v{P-1}, v44, v{O+2*i}\nv_dot2_f32_bf16 v{O+2*i+1}, v{P-1}, v41, v{O+2*i+1}")
        for i in range(8): a(f"v_dot2_f32_bf16 v{O+2*i}, v{KR+i}, v43, v{O+2*i}")
    else:
        a("v_lshlrev_b32 v40, 16, v80\nv_and_b32 v41, 0xffff0000, v80\nv_lshlrev_b32 v42, 16, v81\nv_and_b32 v43, 0xffff0000, v81")
        K=lambda t: 108+t-2
        for i in range(10):
            if i>0: a(f"v_lshlrev_b32 v{102+2*i}, 16, v{KR+i}")
            a(f"v_and_b32 v{103+2*i}, 0xffff0000, v{KR+i}")
        for t in range(16):
            a(f"v_mul_f32 v{O+t}, v40, v{K(t)}")
            a(f"v_fmac_f32 v{O+t}, v41, v{K(t-1)}")
            a(f"v_fmac_f32 v{O+t}, v42, v{K(t-2)}")
            a(f"v_fmac_f32 v{O+t}, v43, v{K(t-3)}")
    for i in range(8):
        a(f"v_lshlrev_b32 v102, 16, v{VR+i}\nv_and_b32 v103, 0xffff0000, v{VR+i}")
        if CFG['pk']: a(f"v_pk_mul_f32 {V(O+2*i,2)}, {V(O+2*i,2)}, v[102:103]")
        else: a(f"v_mul_f32 v{O+2*i}, v{O+2*i}, v102\nv_mul_f32 v{O+1+2*i}, v{O+1+2*i}, v103")
    for o in range(2):
        for d in range(4): a(f"v_cvt_pk_bf16_f32 v{KR+4*o+d}, v{O+8*o+7-2*d}, v{O+8*o+6-2*d}")
    for d in range(4): a(f"v_mov_b32 v{102+d}, v{KR+4+d}")
    for d in range(4): a(f"v_mov_b32_dpp v{KR+4+d}, v{KR+d} row_ror:8 row_mask:0xf bank_mask:0x3")
    for d in range(4): a(f"v_mov_b32_dpp v{KR+d}, v{102+d} row_ror:8 row_mask:0xf bank_mask:0xc")
    a(f"s_mov_b32 s{sT0}, 32768")
    a(f"buffer_store_dwordx4 {V(KR)}, v55, {srd(WS)}, 0 offen\nbuffer_store_dwordx4 {V(KR+4)}, v55, {srd(WS)}, s{sT0} offen","kvs")
    if CFG['utouch']==1: a(f"buffer_load_dword v{vTch}, v{vTch}, {srd(WS)}, 0 offen sc1")
    a.stamp("p0 computed","f")
    if CFG['clr']==1: clears(a)
    Wp(a,'T1')
    a(f"s_mov_b32 s{sCH}, s{sHELLO}\ns_getreg_b32 s{sHELLO}, hwreg(HW_REG_XCC_ID, 0, 4)")
    a(f"v_readfirstlane_b32 s{sTAG}, v51")
    a(f"s_add_u32 s{sTAG}, s{sTAG}, 0x9E3779B0\ns_and_b32 s{sTAG}, s{sTAG}, 0xFFFFFFF0\ns_and_b32 s{sHELLO}, s{sHELLO}, 15\ns_or_b32 s{sHELLO}, s{sHELLO}, s{sTAG}")
    a(f"v_mov_b32 v{vTAG}, s{sTAG}\nv_mov_b32 v98, s{sHELLO}")
    a.ext(pp_setup())
    a(f"""s_add_u32 s{sFLH}, s{sFLG}, s{sFL}
        s_lshl_b32 s{sC4}, s{sCHH}, 12
        s_mul_i32 s{sC3}, s{sCHH}, 3072
        s_lshl_b32 s{sM4}, s{sKH}, 14
        s_add_u32 s{sM3}, s{sM4}, s{sC3}
        s_add_u32 s{sM4}, s{sM4}, s{sC4}""")
    a(f"s_lshl_b32 s{sT0}, s{sX}, 2\ns_add_u32 s{sT1}, s{sT0}, s{sWV}\ns_lshl_b32 s{sT1}, s{sT1}, 5\ns_add_u32 s{sT1}, s{sT1}, s{sR}\ns_lshl_b32 s{sT1}, s{sT1}, 2\ns_add_u32 s{sT1}, s{sT1}, {OFF_F1L}")
    a(f"s_lshr_b32 s{sCK1}, s{sR}, 3\ns_add_u32 s{sCK1}, s{sCK1}, s{sT0}\ns_lshl_b32 s{sCK1}, s{sCK1}, 7\ns_add_u32 s{sCK1}, s{sCK1}, {OFF_F1L}")
    a(f"v_and_b32 v97, 31, v{vLane}\nv_lshlrev_b32 v97, 2, v97\ns_mov_b32 s{sMODE}, 0")
    if CFG['tpre']: a.waitvm("ssm"); toeplitz(a)
    a.waitvm("kvs")
    a(f"buffer_store_dword v98, v{vOne}, {srd(WS)}, s{sT1} offen")
    a.stamp("kvT published","f")
    if CFG['clr']==3: clears(a)
    if CFG['qat']==0: a(f"buffer_load_dwordx4 {V(vQT)}, v{vTok}, {srd(SQ_)}, 0 offen\nbuffer_load_dwordx4 {V(vQT+4)}, v{vTok}, {srd(SQ_)}, s{sMB} offen")
    a.flat(extras(0))
    Wp(a,'FL')
    if not CFG['tpre']: toeplitz(a)
    a(f"""s_lshl_b32 s{sT0}, s{sCH}, 12
        s_lshl_b32 s{sT1}, s{sCHH}, 11
        s_add_u32 s{sT0}, s{sT0}, s{sT1}
        s_add_u32 s{sT0}, s{sT0}, {OFF_KVT}
        s_mul_i32 s{sUO}, s{sKH}, {UCH}
        s_add_u32 s{sT1}, s{sT1}, s{sUO}""")
    a.stamp("toeplitz","f")
    o=Asm(); o.lab("L_f1r"); o(f"s_mov_b32 s{sCNT}, 0")
    if CFG['stamps']: site_names.append("f1"); o(f"s_bitset1_b32 s98, {len(site_names)-1}")
    o.lab("L_f1l")
    o(f"""buffer_load_dword v99, v97, {srd(WS)}, s{sCK1} offen sc1
        s_waitcnt vmcnt(0)
        v_cmp_ne_u32 vcc, s{sHELLO}, v99
        s_cbranch_vccz L_f1b
        s_add_u32 s{sCNT}, s{sCNT}, 1
        s_cmp_lt_u32 s{sCNT}, {CFG['f1max']}
        s_cbranch_scc1 L_f1l""")
    o.lab("L_f1s")
    o(f"""s_mov_b32 s{sMODE}, 1
        s_mov_b32 s{sT2}, 32768
        buffer_store_dwordx4 {V(KR)}, v55, {srd(WS)}, 0 offen sc1
        buffer_store_dwordx4 {V(KR+4)}, v55, {srd(WS)}, s{sT2} offen sc1
        s_lshl_b32 s{sT2}, s{sX}, 2
        s_add_u32 s{sT3}, s{sT2}, s{sWV}
        s_lshl_b32 s{sT3}, s{sT3}, 5
        s_add_u32 s{sT3}, s{sT3}, s{sR}
        s_lshl_b32 s{sT3}, s{sT3}, 7
        s_add_u32 s{sT3}, s{sT3}, {OFF_F1}
        s_lshr_b32 s{sCK1}, s{sR}, 3
        s_add_u32 s{sCK1}, s{sCK1}, s{sT2}
        s_lshl_b32 s{sCK1}, s{sCK1}, 12
        s_add_u32 s{sCK1}, s{sCK1}, {OFF_F1}
        v_lshlrev_b32 v97, 5, v97
        s_waitcnt vmcnt(0)
        buffer_store_dword v{vTAG}, v{vOne}, {srd(WS)}, s{sT3} offen sc1
        s_mov_b32 s{sCNT}, 0""")
    o.lab("L_f1g")
    o(f"""buffer_load_dword v99, v97, {srd(WS)}, s{sCK1} offen sc1
        s_waitcnt vmcnt(0)
        v_cmp_ne_u32 vcc, s{sTAG}, v99
        s_cbranch_vccz L_f1b
        s_add_u32 s{sCNT}, s{sCNT}, 1
        s_cmp_lt_u32 s{sCNT}, {POLLMAX}
        s_cbranch_scc1 L_f1g
        s_branch L_f1b""")
    a.ool.append(o.L)
    ck=M(f"v_cmp_ne_u32 vcc, s{sHELLO}, v99\ns_cbranch_vccnz L_f1r\nL_f1b:") if CFG['slow']!=2 else M("s_waitcnt vmcnt(0)\ns_branch L_f1s\nL_f1b:")
    a(f"buffer_load_dword v99, v97, {srd(WS)}, s{sCK1} offen sc1")
    a(f"""s_lshl_b32 s{sT3}, s{sCHH}, 8
        s_sub_u32 s{sT2}, s{sUO}, s{sT3}
        s_add_u32 s{sT2}, s{sT2}, {L_U+480-192}
        v_lshlrev_b32 v141, 5, v{vJ}
        v_lshl_add_u32 v141, v{vQ}, 4, v141
        v_add_u32 v141, s{sT2}, v141
        v_add_u32 v142, 1, v{vJ}
        v_and_b32 v143, 3, v142
        v_mul_u32_u24 v143, {TCP}, v143
        v_lshrrev_b32 v142, 2, v142
        v_lshl_add_u32 v142, v142, 3, v143
        v_lshlrev_b32 v143, 4, v{vQ}
        v_sub_u32 v142, v142, v143
        s_mul_i32 s{sT2}, s{sKH}, {TCH}
        s_add_u32 s{sT2}, s{sT2}, s{sT3}
        s_add_u32 s{sT2}, s{sT2}, {L_TOEP+48}
        v_add_u32 v142, s{sT2}, v142
        s_add_u32 m0, s{sT1}, {L_U+512}""")
    a.flat(ck)
    a.stamp("f1 seen","f")
    a(f"buffer_load_dwordx4 v{vL}, {srd(WS)}, s{sT0} offen sc1 lds","u")
    a(f"buffer_load_dwordx4 v{vL}, {srd(WS)}, s{sT0} offen offset:1024 sc1 lds","u")
    a.lw(2,(L_U+512,L_U+UCH),(L_U+UCH+512,L_U+2*UCH))
    if CFG['clr']==4: clears(a,"clr")
    if CFG['clr'] in(1,3): a(f"buffer_store_dword v98, v{vOne}, {srd(WS)}, s{sHF} offen sc1")
    a.flat(extras(5))
    Wp(a,'T2')
    a(f"v_lshlrev_b32 v{vD}, 16, v{vD}")
    a.waitvm("u"); a("s_waitcnt lgkmcnt(0)\ns_barrier")
    a.stamp("U landed","f")

def conv_backbone():
    ACC=40; GR=72; Ureg=[16,20,24,28,32,36,104,108]
    seq=[]
    for it in range(4):
        o=4*(it&1)
        for e in range(4):
            for w in range(3-e,-1,-1): seq.append((w+e,o+e,o+w,('G',e,it,1),('U',w,it,1),it==0 and e==0))
    n1=len(seq)
    for it in range(4):
        pairs=[(e,w) for e in range(8) for w in range(7-e,max(0,4-e)-1,-1)]
        if it==0: pairs=[p for p in pairs if p[0]<4 and p[1]<4]+[p for p in pairs if not(p[0]<4 and p[1]<4)]
        seen=set()
        for e,w in pairs:
            seq.append((w+e,e,w,('G',e,it,2),('U',w,it,2),it==0 and (w+e) not in seen)); seen.add(w+e)
    reads={}; lastuse={}
    for n,(c,g,u,gid,uid,f) in enumerate(seq):
        for ph,i in ((('G',g),gid),(('U',u),uid)):
            if i not in reads: reads[i]=dict(ph=ph,need=n,earliest=lastuse.get(ph,-1))
            lastuse[ph]=n
    def emit(i):
        kind,k,it,_=i; ph=reads[i]['ph'][1]
        if kind=='U': return [LR(mk(f"ds_read_b128 {V(Ureg[ph])}, v141 offset:{512*k+192-64*it}"),(L_U,L_U+2*UCH))]
        return LR([mk(f"ds_read_b64 {V(GR+4*ph,2)}, v142 offset:{512*k+64*it}"),mk(f"ds_read_b64 {V(GR+4*ph+2,2)}, v142 offset:{512*k+64*it+8}")],(L_TOEP,L_TOEP+2*TCH))
    todo=[]
    for i in sorted(reads,key=lambda i:reads[i]['need']):
        for x in emit(i): todo.append((reads[i]['earliest'],reads[i]['need'],x))
    bb=[x for e,n,x in todo if n<4]; todo=[t for t in todo if t[1]>=4]
    for n,(c,g,u,gid,uid,f) in enumerate(seq):
        bb.append(mk(f"v_mfma_f32_16x16x32_bf16 {V(ACC+4*c)}, {V(GR+4*g)}, {V(Ureg[u])}, {'0' if f else V(ACC+4*c)}"))
        k=0
        while True:
            cand=[t for t in todo if t[0]<=n]
            if not cand: break
            t=cand[0]
            if k>=1 and not(k<2 and t[1]-n<=CFG['cla']) and not t[1]-n<=2: break
            bb.append(t[2]); todo.remove(t); k+=1
    assert not todo
    return bb,n1

def conv_epi(st):
    ACC=40+16*st; P=vPK+4*st; R=(L_CX,L_CX+16384)
    W=LW([mk(f"ds_write_b128 v{vCXw}, {V(ACC+4*k)} offset:{1024*k}",f"cx{st}") for k in range(4)],R)
    K=LR([mk(f"ds_read_b64 {V(vKD+2*k,2)}, v{vKV} offset:{2048*st+512*k}") for k in range(2)],(L_U,L_U+2*UCH))
    L=[]
    for k in range(2): L+=LR(M(f"ds_read_b128 {V(ACC+4*k)}, v{vCXo} offset:{1024*k}\nds_read_b128 {V(ACC+8+4*k)}, v{vCXp} offset:{1024*k}",f"cy{st}"),R)
    for k in range(2):
        A=ACC+4*k
        L+=M(f"v_and_b32 v{vUP}, 0xffff0000, v{vKD+1+2*k}\nv_lshlrev_b32 v{vUP+1}, 16, v{vKD+1+2*k}\nv_and_b32 v{vUP+2}, 0xffff0000, v{vKD+2*k}\nv_lshlrev_b32 v{vUP+3}, 16, v{vKD+2*k}")
        for r in range(4): L+=M(f"v_fmac_f32 v{A+r}, v{vD}, v{vUP+r}")
        if st==1 and CFG['pk']:
            for r in (0,2): L+=M(f"v_pk_add_f32 {V(A+r,2)}, {V(A+r,2)}, {V(A+8+r,2)}")
        else:
            for r in range(4): L+=M(f"v_add_f32 v{A+r}, v{A+r}, v{A+8+r}")
        L+=M(f"v_cvt_pk_bf16_f32 v{P+2*k}, v{A}, v{A+1}\nv_cvt_pk_bf16_f32 v{P+1+2*k}, v{A+2}, v{A+3}")
    L+=M(f"s_nop 0\nv_permlane16_swap_b32 v{P}, v{P+2}\nv_permlane16_swap_b32 v{P+1}, v{P+3}")
    L+=M(f"buffer_store_dwordx4 {V(P)}, v{vYo}, {srd(WS)}, {'0' if st==0 else 's%d'%sMB} offen sc1",f"yt{st}")
    return W+K,L

def y_check(a,mu):
    D=vGD+4*mu
    return a.check([f"buffer_load_dwordx4 {V(D)}, v{vGA}, {srd(WS)}, {'0' if mu==0 else 's%d'%sMB} offen sc1"],
         [f"v_max3_u32 v{vGC}, v{D}, v{D+1}, v{D+2}",f"v_max_u32 v{vGC}, v{vGC}, v{D+3}",f"v_cmp_eq_u32 vcc, -1, v{vGC}"],"yt")
def y_stage(a,mu,mid=[]):
    a(f"ds_write_b128 v{vGW}, {V(vGD+4*mu)} offset:{4096*mu}"); a.lw(1,(L_YS+4096*mu,L_YS+4096*mu+4096))
    a.flat(mid)
    a("s_waitcnt lgkmcnt(0)\ns_barrier")
    for hh in range(2):
        a(f"ds_read_b64_tr_b16 {V(vYY[mu]+2*hh,2)}, v{vGT} offset:{4096*mu+256*hh}")
        a.lr(1,(L_YS+4096*mu,L_YS+4096*mu+4096))

def x0_state(mu):
    S=SX[mu]; L=M(f"v_mov_b32 v{vGC}, 0x3f803f80")
    for i in range(4): L+=M(f"v_lshlrev_b32 v{vXst[mu]+2*i}, 16, v{vQT+4*mu+i}\nv_and_b32 v{vXst[mu]+2*i+1}, 0xffff0000, v{vQT+4*mu+i}")
    for i in range(4):
        q=vQT+4*mu+i
        L+=M(f"v_dot2_f32_bf16 v{S}, v{q}, v{vGC}, {'0' if i==0 else 'v%d'%S}\nv_dot2_f32_bf16 v{S+1}, v{q}, v{q}, {'0' if i==0 else 'v%d'%(S+1)}")
    return L

def conv(a):
    C=CFG
    bb,n1=conv_backbone()
    qld=M(f"""buffer_load_dwordx4 {V(vQT)}, v{vTok}, {srd(SQ_)}, 0 offen
        buffer_load_dwordx4 {V(vQT+4)}, v{vTok}, {srd(SQ_)}, s{sMB} offen
        buffer_load_dword v{vCg}, v{vCg}, {srd(WS)}, 0 offen sc1
        buffer_load_dword v{vCs}, v{vCs}, {srd(WS)}, 0 offen sc1
        buffer_load_dword v{vFT}, v{vFT}, {srd(WS)}, 0 offen sc1""")
    hl,hc=a.check([f"buffer_load_dwordx4 {V(112)}, v{vHa}, {srd(WS)}, 0 offen sc1"],
         [f"v_xor_b32 v113, s{sTAG}, v113",f"v_xor_b32 v114, s{sTAG}, v114",f"v_xor_b32 v115, s{sTAG}, v115",
          "v_or3_b32 v113, v113, v114, v115",f"v_xor_b32 v114, s{sTAG}, v112","v_or_b32 v113, v113, v114","v_cmp_lt_u32 vcc, 15, v113"],"h2")
    pk,ps=pp_pack()
    dmas=paced((qld[:2] if C['qat']==1 else [])+extras(1),3); fill=[]
    for kind,at,ops in PL().get('CV',[]):
        it=wops(ops)
        if kind=='d': dmas+=[('AT',at) if isinstance(at,int) else ('AFTER',at)]+paced(it,C['cgap'])
        elif kind=='g': dmas+=[('AFTER','g0')]+paced(it,3)
        else:
            k=[i for i,x in enumerate(it) if isinstance(x,I) and x.op=='s_barrier']
            if k: it=[it[:k[0]+1],('SYNC',f'b{at}')]+it[k[0]+1:]
            fill+=[('AT',at)]+it
    dmas+=[('AT',C['hmid'])]+paced(extras(6),3)
    w0,e0=conv_epi(0)
    gl,a.gcA=y_check(a,0)
    crit=([('AT',C['chl'])]+hl+[('SYNC','hl')] if C['hpri'] else [])+[('AT',n1+2),('DENS',C['cdens'])]+w0+[('GAP',3),[('WLG','cx0'),mk("s_barrier")]]+e0[:-1]+([] if C['clr']==4 else [('AFTER','hl')])+e0[-1:]+[('DENS',0),('SYNC','y0'),('AFTER','hl',C['chc'])]+hc \
        +[[('WLG','cy0'),mk("s_barrier")],('AFTER','y0',C['cack']),('WVM','yt0')]+gl+[('SYNC','g0')]
    ann=[('AT',C['cann']),('WVM','clr')]+M(f"buffer_store_dword v{vTAG}, v{vOne}, {srd(WS)}, s{sHF} offen sc1") if C['clr']==4 else []
    third=ann+([] if C['hpri'] else [('AT',C['chl'])]+hl+[('SYNC','hl')])+[('AFTER','g0'),('AFTER','dd')]+paced((qld[:2] if C['qat']==2 else [])+extras(2),2)
    fourth=[('AFTER','g0')]+pk+[('GAP',4)]+paced(ps,3) if C['pkat']==3 else []
    a.weave(bb,crit,dmas+[('SYNC','dd')],fill,third,fourth,slots=C['cslots'],name='CV')
    a.stamp("conv mfma done","f")
    w1,e1=conv_epi(1)
    if CFG.get('trace')=='CV': a("v_mov_b32 v194, v140")
    if C['afirst']:
        a.flat(w1); a.flat(x0_state(0)); a.flat(a.gcA)
        a.stamp("yT stored","f"); a.stamp("yA gathered","f")
        y_stage(a,0,wops(PL().get('CE',"")))
    else:
        Wp(a,'CE')
        a.flat(w1); a("s_waitcnt lgkmcnt(0)\ns_barrier"); a.flat(e1)
        a.stamp("yT stored","f")
        Wp(a,'Y0')
        a.flat(x0_state(0))
        a.flat(a.gcA)
        a.stamp("yA gathered","f")
        y_stage(a,0,wops(PL().get('SA',"")))
    Wp(a,'ST')
    if CFG['slow']: a(f"s_cmp_lg_u32 s{sMODE}, 0\ns_cbranch_scc1 L_slow")

def unpackY(mu,T):
    L=[]
    for i in range(4): L+=M(f"v_lshlrev_b32 v{T+2*i}, 16, v{vYY[mu]+i}\nv_and_b32 v{T+2*i+1}, 0xffff0000, v{vYY[mu]+i}")
    return L
def treduce(s0,s1,s2,s3,gap=[]):
    return M(f"v_permlane32_swap_b32 v{s0}, v{s2}\nv_permlane32_swap_b32 v{s1}, v{s3}\nv_add_f32 v{s0}, v{s0}, v{s2}\nv_add_f32 v{s1}, v{s1}, v{s3}")+gap+M(f"v_permlane16_swap_b32 v{s0}, v{s1}\nv_add_f32 v{s0}, v{s0}, v{s1}")

SX=[104,106]
def fin1a(mu,S=None):
    X=vXst[mu]; S=SX[mu] if S is None else S
    L=M(f"v_add_f32 v{S}, v{X}, v{X+1}\nv_mul_f32 v{S+1}, v{X}, v{X}")
    for e in range(1,8):
        if e>1: L+=M(f"v_add_f32 v{S}, v{S}, v{X+e}")
        L+=M(f"v_fmac_f32 v{S+1}, v{X+e}, v{X+e}")
    return L
def fin1(a, layer, mu, T, unpacked=False, S=None):
    X=vXst[mu]; L=[] if unpacked else unpackY(mu,T); S=T+8 if S is None else S
    s0=SX[mu] if layer==0 else S
    A=[] if layer==0 else fin1a(mu,S)
    Bq=M(f"v_mul_f32 v{S+2}, v{X}, v{T}\nv_add_f32 v{S+3}, v{T}, v{T+1}")
    for e in range(1,8):
        Bq+=M(f"v_fmac_f32 v{S+2}, v{X+e}, v{T+e}")
        if e>1: Bq+=M(f"v_add_f32 v{S+3}, v{S+3}, v{T+e}")
    while A or Bq:
        if A: L.append(A.pop(0))
        if Bq: L.append(Bq.pop(0))
    L+=treduce(s0,s0+1,S+2,S+3,M(f"s_add_u32 s{sT0}, s{sGR}, {(layer*2+mu)*262144}"))
    L+=M(f"buffer_store_dword v{s0}, v{vGs}, {srd(WS)}, s{sT0} offen{a.sc}")
    return L

def fin2(a, layer, mu, T, Y=None, pk=False):
    X=vXst[mu]; Gd=T; up=unpackY(mu,T+16) if Y is None else []; Y=T+16 if Y is None else Y
    ld,ck=a.check([f"buffer_load_dwordx4 {V(Gd+4*i)}, v{vGl}, {srd(WS)}, s{sCK2} offen offset:{256*i} sc1" for i in range(4)],
         ([f"v_max3_u32 v{PT}, v{Gd}, v{Gd+1}, v{Gd+2}"]+[f"v_max3_u32 v{PT}, v{PT}, v{Gd+3+2*i}, v{Gd+4+2*i}" for i in range(6)]+[f"v_max_u32 v{PT}, v{PT}, v{Gd+15}"])+[f"v_cmp_eq_u32 vcc, -1, v{PT}"],"gr")
    ld=M(f"s_add_u32 s{sCK2}, s{sGRl}, {(layer*2+mu)*262144}")+ld+up
    L=list(ck)
    P2=lambda r: V(r,2)
    if pk:
        for k in (0,2): L+=M(f"v_pk_add_f32 {P2(Gd+k)}, {P2(Gd+k)}, {P2(Gd+4+k)}\nv_pk_add_f32 {P2(Gd+8+k)}, {P2(Gd+8+k)}, {P2(Gd+12+k)}")
        for k in (0,2): L+=M(f"v_pk_add_f32 {P2(Gd+k)}, {P2(Gd+k)}, {P2(Gd+8+k)}")
    else:
        for k in range(4): L+=M(f"v_add_f32 v{Gd+k}, v{Gd+k}, v{Gd+4+k}\nv_add_f32 v{Gd+8+k}, v{Gd+8+k}, v{Gd+12+k}")
        for k in (0,2,1,3): L+=M(f"v_add_f32 v{Gd+k}, v{Gd+k}, v{Gd+8+k}")
    L+=treduce(Gd,Gd+1,Gd+2,Gd+3)
    A,B,C,D=Gd,Gd+1,Gd+2,Gd+3
    L+=M(f"v_mov_b32 v{B}, v{A}\nv_permlane16_swap_b32 v{A}, v{B}\nv_mov_b32 v{C}, v{A}\nv_mov_b32 v{D}, v{B}\nv_permlane32_swap_b32 v{A}, v{C}\nv_permlane32_swap_b32 v{B}, v{D}")
    inv="0x3b000000"
    L+=M(f"""v_mul_f32 v{A}, {inv}, v{A}
        v_mul_f32 v{B}, {inv}, v{B}
        v_fma_f32 v{B}, -v{A}, v{A}, v{B}
        v_max_f32 v{B}, 0, v{B}
        v_add_f32 v{B}, 0x3727c5ac, v{B}
        v_rsq_f32 v{B}, v{B}
        v_fma_f32 v{C}, -v{A}, v{D}, v{C}
        v_mul_f32 v{C}, {inv}, v{C}
        v_fma_f32 v{C}, v{B}, v{C}, v{A}
        v_mul_f32 v{A}, v{A}, v{B}""")
    if pk:
        for e in range(0,8,2): L+=M(f"v_pk_fma_f32 {P2(Gd+4+e)}, {P2(X+e)}, {P2(A)}, {P2(A)} op_sel:[0,1,0] op_sel_hi:[1,1,0] neg_lo:[0,0,1] neg_hi:[0,0,1]")
        for e in range(0,8,2): L+=M(f"v_pk_fma_f32 {P2(X+e)}, {P2(Gd+4+e)}, {P2(Y+e)}, {P2(X+e)}")
        for e in range(0,8,2): L+=M(f"v_pk_add_f32 {P2(Y+e)}, {P2(X+e)}, {P2(C)} op_sel_hi:[1,0] neg_lo:[0,1] neg_hi:[0,1]")
    else:
        for e in range(8): L+=M(f"v_fma_f32 v{Gd+4+e}, v{X+e}, v{B}, -v{A}")
        for e in range(8): L+=M(f"v_fmac_f32 v{X+e}, v{Gd+4+e}, v{Y+e}")
        for e in range(8): L+=M(f"v_sub_f32 v{Y+e}, v{X+e}, v{C}")
    L+=M(f"s_add_u32 s{sT0}, s{sXS}, {mu*65536}")
    for i in range(4): L+=M(f"v_cvt_pk_bf16_f32 v{Gd+4+i}, v{Y+2*i}, v{Y+2*i+1}")
    L+=M(f"buffer_store_dwordx4 {V(Gd+4)}, v{vL}, {srd(WS)}, s{sT0} offen{a.sc or (' nt' if CFG['ntx']>layer else '')}",f"xs{mu}")
    L+=M(f"v_mul_f32 v{A}, v{Y}, v{Y}")
    for e in range(1,8): L+=M(f"v_fmac_f32 v{A}, v{Y+e}, v{Y+e}")
    L+=M(f"""v_mov_b32 v{B}, v{A}
        s_nop 0
        s_add_u32 s{sT1}, s{sS5}, {(layer*2+mu)*65536}
        v_permlane32_swap_b32 v{A}, v{B}
        v_add_f32 v{A}, v{A}, v{B}
        v_mov_b32 v{B}, v{A}
        v_permlane16_swap_b32 v{A}, v{B}
        v_add_f32 v{A}, v{A}, v{B}""")
    L+=M(f"buffer_store_dword v{A}, v{vS5s}, {srd(WS)}, s{sT1} offen{a.sc}")
    tail=M(f"s_add_u32 s22, s{sFLH}, {XF(layer,mu)}")+[('WVM',f"xs{mu}")]+M(f"buffer_store_dword v{vTAG}, v{vOne}, {srd(WS)}, s22 offen{a.sc}")
    return ld,L,tail

def flag_check(a, off, vaddr, name):
    ld,ck=a.check([f"buffer_load_dword v{PT+1}, v{vaddr}, {srd(WS)}, s{sCK1} offen sc1"],[f"v_cmp_ne_u32 vcc, s{sTAG}, v{PT+1}"],name)
    return M(f"s_lshl_b32 s{sCK1}, s{sFL}, 1\ns_add_u32 s{sCK1}, s{sCK1}, {off}")+ld, ck
XF=lambda layer,mu: OFF_XFLAG+layer*16384+mu*256
HF=lambda layer,k: OFF_HFLAG+layer*16384+k*256

def x_dma(mu, pair, stage, q):
    L=M(f"s_add_u32 m0, s{sXW}, {q+stage*8192}\ns_mov_b32 s{sSOFF}, {mu*65536+pair*32768+stage*8192}")
    for i in range(4): L+=M(f"buffer_load_dwordx4 v{vXD}, {srd(WS)}, s{sSOFF} offen offset:{1024*i} sc1 lds",f"x{mu}{pair}{stage}")
    return LW(L,(q+stage*8192,q+stage*8192+8192),(q+16384+stage*8192,q+16384+stage*8192+8192))
vAS1,vAS2,vAD=136,138,135
def alias_setup():
    return M(f"""s_mul_i32 s{sT0}, s{sG}, {65536-8*HKS*1024}
        s_add_u32 s{sT0}, s{sT0}, {OFF_YT-OFF_H}
        v_and_b32 v{vAS1}, 1, v{vQ}
        v_mul_u32_u24 v{vAS1}, {0x100000-HKS*1024}, v{vAS1}
        s_mul_i32 s{sT1}, s{sRH}, {0x100000-HKS*1024}
        v_add_u32 v{vAS1}, s{sT0}, v{vAS1}
        s_add_u32 s{sT0}, s{sT0}, s{sT1}
        v_add_u32 v{vAS2}, v{vHS2}, v{vAS1}
        v_add_u32 v{vAS1}, v{vHS1}, v{vAS1}
        v_add_u32 v{vAD}, s{sT0}, v{vHD}""")
AL=lambda mu,t: (CFG['alias']>=1 and (mu,t)==(1,1)) or (CFG['alias']>=2 and (mu,t)==(0,0))
def h_dma(mu, t, grp, q):
    n=4 if grp<2 else 3
    L=M(f"s_add_u32 m0, s{sM4 if grp<2 else sM3}, {q+t*8192}\ns_add_u32 s{sSOFF}, s{sC4 if grp<2 else sC3}, {(0 if AL(mu,t) else (mu*4+2*t)*HKS*1024)+grp*8192}")
    for i in range(n): L+=M(f"buffer_load_dwordx4 v{vAD if AL(mu,t) else vHD}, {srd(WS)}, s{sSOFF} offen offset:{1024*i} sc1 lds",f"h{mu}{t}{grp}")
    return LW(L,*[(q+(2*k+t)*8192,q+(2*k+t)*8192+2*n*1024) for k in range(2)])
def h_touch(ks,base=204):
    L=[]
    for k in ks:
        L+=M(f"s_mov_b32 s{sT2}, {2*k*HKS*1024}\nbuffer_load_dword v{base+2*k}, v{vHS1}, {srd(WS)}, s{sT2} offen sc1\nbuffer_load_dword v{base+1+2*k}, v{vHS2}, {srd(WS)}, s{sT2} offen sc1","tch")
    return L
SC1K=lambda: {0:[],2:[k for k in range(4) if not AL(k>>1,k&1)],8:[0,1],3:[],4:[0,1],5:[0,1,2],6:[0,1],7:[0]}[CFG['touch']]
TCHK=lambda: {0:[],2:[],8:[],3:[0,1,2,3],4:[2,3],5:[],6:[],7:[]}[CFG['touch']]
TINK=lambda: {8:[2],5:[3],6:[2,3],7:[1,2,3]}.get(CFG['touch'],[])

_uid=[0]
RING6=[FR+4*k for k in range(6)]; RING8=RING6+[ACC0+16,ACC0+20]
def g1_steps(buf, q, bar=None):
    A=(ACC0,ACC1)[buf]; bar=bar or {}; qo=q&65535; out=[]
    for s in range(16):
        pre=(M(f"v_add_u32 v{vA0}, {q&~65535}, v{vL}") if s==0 else [])+bar.get(s,[])
        rd=[lambda F,tok,s=s,t=t: LR(mk(f"ds_read_b128 {V(F)}, v{vA0} offset:{qo+t*16384+s*1024}",tok),(q+t*16384+s*1024,q+t*16384+s*1024+1024)) for t in range(2)]
        mf=lambda F,s=s: [mk(f"v_mfma_f32_16x16x32_bf16 {V(A+12*t+4*w)}, {W1(s,w)}, {V(F[t])}, {'0' if s==0 else V(A+12*t+4*w)}") for t,w in ([(t,w) for t in range(2) for w in range(3)],[(t,w) for w in range(3) for t in range(2)],[(0,0),(0,1),(0,2),(1,2),(1,1),(1,0)],[(0,0),(1,0),(1,1),(0,1),(0,2),(1,2)])[CFG['o1']]]
        out.append((pre,rd,mf,RING6))
    return out
def g2_steps(qs, bar=None):
    bar=bar or {}; out=[]
    def setq(q): return M(f"s_add_u32 s{sQ}, s{sHK}, {q&~65535}\nv_add_u32 v{vA0}, s{sQ}, v{vL}\ns_add_u32 s{sQ}, s{sHS}, {q&~65535}\nv_add_u32 v{vA1}, s{sQ}, v{vL}")
    for i in range(22):
        q=qs[i>>3]; pre=bar.get(i,[])
        if i%8==0 and (i==0 or (q&~65535)!=(qs[(i>>3)-1]&~65535)): pre=setq(q)+pre
        rd=[lambda F,tok,i=i,q=q,t=t: LR(mk(f"ds_read_b128 {V(F)}, v{(vA0,vA1)[t]} offset:{(q&65535)+(i&7)*1024}",tok),*[(q+w*8192+(i&7)*1024,q+w*8192+(i&7)*1024+1024) for w in range(4)]) for t in (1,0)]
        mf=lambda F,i=i: [mk(f"v_mfma_f32_16x16x32_bf16 {V(ACC0+8*t+4*c)}, {W2(i,c)}, {V(F[1-t])}, {'0' if i==0 else V(ACC0+8*t+4*c)}") for t,c in ([(1,0),(1,1),(0,0),(0,1)],[(1,0),(0,0),(1,1),(0,1)],[(1,0),(1,1),(0,1),(0,0)])[CFG['o2']]]
        out.append((pre,rd,mf,RING8))
    return out
def g2_pass(qs, t, bar=None):
    bar=bar or {}; out=[]
    for i in range(22):
        q=qs[i>>3]; pre=bar.get(i,[])
        if i%8==0 and (i==0 or (q&~65535)!=(qs[(i>>3)-1]&~65535)):
            pre=M(f"s_lshl_b32 s{sQ}, s{sKH}, 14\ns_add_u32 s{sQ}, s{sQ}, {(q&~65535)+t*8192}\nv_add_u32 v{vA0}, s{sQ}, v{vL}")+pre
        rd=[lambda F,tok,i=i,q=q: LR(mk(f"ds_read_b128 {V(F)}, v{vA0} offset:{(q&65535)+(i&7)*1024}",tok),*[(q+(2*k+t)*8192+(i&7)*1024,q+(2*k+t)*8192+(i&7)*1024+1024) for k in range(2)])]
        mf=lambda F,i=i: [mk(f"v_mfma_f32_16x16x32_bf16 {V(ACC1+8*t+4*c)}, {W2(i,c)}, {V(F[0])}, {'0' if i==0 else V(ACC1+8*t+4*c)}") for c in range(2)]
        out.append((pre,rd,mf,RING8))
    return out
def backbone(steps, marks=None):
    marks=marks or {}; LA=CFG['la']
    start=[]; n=0
    for st in steps: start.append(n); n+=len(st[2]([FR]*2))
    start.append(n)
    last={}; F=[]; place={}; pos=-1; toks=[]
    for k,(pre,rd,mf,ring) in enumerate(steps):
        _uid[0]+=1; tok=f"f{_uid[0]}"; toks.append(tok); fs=[]
        for j,r in enumerate(rd):
            u=min([x for x in ring if x not in fs],key=lambda x:last.get(x,-99+ring.index(x)*0.01)); fs.append(u)
            p=max(start[k]-LA+j, last.get(u,-99), pos+1 if pos>=0 else -1)
            p=min(p,start[k]-1) if start[k]>0 else -1
            if p<0: p=-1
            place.setdefault(p,[]).extend((pre if j==0 else [])+[r(u,tok)]); pos=max(pos,p)
        for u in fs: last[u]=start[k+1]-1
        F.append(fs)
    L=list(place.get(-1,[]))+[('WLG',toks[0])]; n=0
    for k,(pre,rd,mf,ring) in enumerate(steps):
        ms=mf(F[k])
        for j,m in enumerate(ms):
            L.append(m); L+=place.get(n,[])
            if j==len(ms)-1 and k+1<len(steps): L.append(('WLG',toks[k+1]))
            n+=1
        L+=marks.get(k,[])
    return L

def g1_epi(a, buf, mu, pair, sc):
    A=(ACC0,ACC1)[buf]; E=EP; L=[]
    n=E; mreg=E+4
    M0=A+8; M1=A+20
    for t in range(2):
        Gt=A+12*t; Ut=Gt+4
        for r in range(4): L+=M(f"v_max_f32 v{Gt+r}, 0, v{Gt+r}")
        for r in range(4): L+=M(f"v_mul_f32 v{Gt+r}, v{Gt+r}, v{Ut+r}")
        L+=M(f"v_cvt_pk_bf16_f32 v{n+2*t}, v{Gt}, v{Gt+1}\nv_cvt_pk_bf16_f32 v{n+2*t+1}, v{Gt+2}, v{Gt+3}")
    for r in range(4): L+=M(f"v_permlane16_swap_b32 v{M0+r}, v{M1+r}")
    L+=M(f"v_permlane16_swap_b32 v{n}, v{n+2}\nv_permlane16_swap_b32 v{n+1}, v{n+3}\ns_mov_b32 s{sT1}, {0 if AL(mu,pair) else (mu*4+2*pair)*HKS*1024}")
    L+=M(f"buffer_store_dwordx4 {V(n)}, v{vAS1 if AL(mu,pair) else vHS1}, {srd(WS)}, s{sT1} offen{sc}",f"hs{mu}{pair}")
    for r in range(4): L+=M(f"v_max_f32 v{M0+r}, 0, v{M0+r}")
    for r in range(4): L+=M(f"v_mul_f32 v{M0+r}, v{M0+r}, v{M1+r}")
    L+=M(f"v_cvt_pk_bf16_f32 v{mreg}, v{M0}, v{M0+1}\nv_cvt_pk_bf16_f32 v{mreg+1}, v{M0+2}, v{M0+3}")
    L+=M(f"v_mov_b32 v{E+6}, v{E+4}\nv_mov_b32 v{E+7}, v{E+5}\ns_nop 0\nv_permlane32_swap_b32 v{E+4}, v{E+6}\nv_permlane32_swap_b32 v{E+5}, v{E+7}")
    L+=M(f"buffer_store_dwordx4 {V(E+4)}, v{vAS2 if AL(mu,pair) else vHS2}, {srd(WS)}, s{sT1} offen{sc}",f"hs{mu}{pair}")
    return L
def h_flag(a, layer, k):
    return M(f"s_add_u32 s22, s{sFLH}, {HF(layer,k)}")+[('WVM',f"hs{k>>1}{k&1}")]+M(f"buffer_store_dword v{vTAG}, v{vOne}, {srd(WS)}, s22 offen{a.sc}")

def s5_get(a, layer, mu):
    T=140
    ld,ck=a.check([f"buffer_load_dwordx4 {V(T)}, v{vS5l}, {srd(WS)}, s{sCK3} offen sc1"],
         [f"v_max3_u32 v{PT+2}, v{T}, v{T+1}, v{T+2}",f"v_max_u32 v{PT+2}, v{PT+2}, v{T+3}",f"v_cmp_eq_u32 vcc, -1, v{PT+2}"],"s5")
    ld=M(f"s_add_u32 s{sCK3}, s{sS5l}, {(layer*2+mu)*65536}")+ld
    L=list(ck)+M(f"""v_add_f32 v{T}, v{T}, v{T+1}
        v_add_f32 v{T+2}, v{T+2}, v{T+3}
        v_add_f32 v{T}, v{T}, v{T+2}
        v_mov_b32 v{T+1}, v{T}
        s_nop 0
        v_permlane32_swap_b32 v{T}, v{T+1}
        v_add_f32 v{T}, v{T}, v{T+1}
        v_mov_b32 v{T+1}, v{T}
        s_nop 0
        v_permlane16_swap_b32 v{T}, v{T+1}
        v_add_f32 v{T}, v{T}, v{T+1}
        v_mul_f32 v{T}, 0x3b000000, v{T}
        v_add_f32 v{T}, 0x3727c5ac, v{T}
        v_rcp_f32 v{vR2}, v{T}""")
    return ld,L
def ex_addr(qspare):
    return M(f"s_add_u32 s{sT0}, s{sHW}, {qspare+6144}\nv_add_u32 v{EP}, s{sT0}, v{vL}\ns_xor_b32 s{sT0}, s{sHW}, 16384\ns_add_u32 s{sT0}, s{sT0}, {qspare+6144}\nv_add_u32 v{EP+1}, s{sT0}, v{vL}")
def g2_tail(mu, qsp, keep, send):
    X=vXst[mu]; R=[(qsp+w*8192+6144,qsp+w*8192+8192) for w in range(4)]
    pre=LW(M(f"ds_write_b128 v{EP}, {V(send)}\nds_write_b128 v{EP}, {V(send+4)} offset:1024",f"ew{mu}"),*R)
    pre+=[mk(f"v_fmac_f32 v{X+e}, v{vR2}, v{keep+e}") for e in range(8)]
    post=LR(M(f"ds_read_b128 {V(send)}, v{EP+1}\nds_read_b128 {V(send+4)}, v{EP+1} offset:1024","ex"),*R)
    post+=[mk(f"v_fmac_f32 v{X+e}, v{vR2}, v{send+e}") for e in range(8)]
    return pre,post
def out_store(a, mu, T):
    X=vXst[mu]
    L=[mk(f"v_cvt_pk_bf16_f32 v{T+i}, v{X+2*i}, v{X+2*i+1}") for i in range(4)]
    return L+M(f"buffer_store_dwordx4 {V(T)}, v{vTok}, {srd(SO_)}, {'0' if mu==0 else 's%d'%sMB} offen{('',' sc1',' nt')[CFG['outsc']]}")

def wbl2(a):
    Lw=a.label("wb"); w=mk("buffer_wbl2 sc1"); w.ghost=1
    return [M(f"s_or_b32 s{sT2}, s{sR}, s{sWV}\ns_cmp_lg_u32 s{sT2}, {CFG['wbid']}\ns_cbranch_scc1 {Lw}")+[w,mk(Lw+":")]]
def finish_kernel(a):
    a(f"s_or_b32 s{sT0}, s2, s{sWV}\ns_cmp_eq_u32 s{sT0}, 0\ns_cselect_b32 s{sT0}, {OFF_NONCE}, {OOB}")
    a(f"buffer_store_dword v{vTAG}, v{vOne}, {srd(WS)}, s{sT0} offen sc1")
    if CFG['stamps'] and a.tag!='S':
        a.stamp("end","*")
        if CFG.get('amp') is not None:
            j=CFG['amp']
            a(f"s_sub_u32 s96, s{STAMP0+j}, s{STAMP0}\ns_mul_i32 s96, s96, {CFG.get('ampk',4)}\ns_add_u32 s96, s96, s{STAMP0+len(stamp_names)-1}")
            a("L_amp:\ns_memrealtime s[100:101]\ns_waitcnt lgkmcnt(0)\ns_sub_u32 s97, s100, s96\ns_cmp_lt_i32 s97, 0\ns_cbranch_scc1 L_amp")
        a("s_memtime s[100:101]\ns_waitcnt lgkmcnt(0)\ns_sub_u32 s99, s100, s99")
        a(f"s_lshl_b32 s{sT0}, s2, 2\ns_add_u32 s{sT0}, s{sT0}, s{sWV}\ns_lshl_b32 s{sT0}, s{sT0}, 8\ns_add_u32 s{sT0}, s{sT0}, {OFF_STAMP}")
        for i in range(len(stamp_names)):
            a(f"v_mov_b32 v40, s{STAMP0+i}")
            a(f"buffer_store_dword v40, v{vOne}, {srd(WS)}, s{sT0} offen offset:{4*i}")
        if CFG.get('trace'): a(f"s_add_u32 s{sT1}, s{sT0}, 0x100000\nbuffer_store_dword v139, v{vFX}, {srd(WS)}, s{sT1} offen")
        a(f"v_mov_b32 v40, s98\nbuffer_store_dword v40, v{vOne}, {srd(WS)}, s{sT0} offen offset:248")
        a(f"v_mov_b32 v40, s99\nbuffer_store_dword v40, v{vOne}, {srd(WS)}, s{sT0} offen offset:252")
    a("s_endpgm")

WV=lambda t:('WVM',t)
WL=lambda t:('WLG',t)
AT=lambda n:('AT',n)

def vm_par(layer):
    C=CFG
    def f(x):
        t=x.tok or ''
        if x.dma:
            if t[0]=='c': return (C['mW'],150,11)
            if t[0]=='h' and layer==0 and 2*int(t[1])+int(t[2]) in SC1K(): return (C['mM'],C['mMs'],8)
            return (C['mL'],C['mLs'],8)
        if t=='tch': return (C['mH'],20,8)
        if t.startswith('w2_'): return (C['mM'],C['mW2'],8)
        if not x.load:
            if x.op.endswith('x4'): return (C['mS1'] if 'sc1' in x.text else C['mS'],70,8)
            return (C['mS1'] if 'sc1' in x.text else 400,10,1)
        if t.endswith(tuple('0123456789')) and '_ppr' in t: return (700,20,22)
        return (C['mL'],25,8) if x.op.endswith('x4') else (C['mL'],10,2)
    return f
def feed(vm,items,t):
    for x in items:
        for y in (x if isinstance(x,list) else [x]):
            if isinstance(y,tuple):
                if y[0]=='WVM': t=max(t,vm.done.get(y[1],t))
            elif y.kind=='vmem': t=vm.issue(y,t)+4
            elif y.kind!='none': t+=4.5
    return t

def body(a):
    P=paced; BY=lambda n:('BY',n); SY=lambda n:('SYNC',n); AF=lambda n,g=0:('AFTER',n,g); GP=lambda n:('GAP',n)
    B=lambda *w:[list(w)+[mk("s_barrier")]]
    C=CFG
    nxs=lambda r,mu: [i for i,x in enumerate(r) if isinstance(x,I) and x.tok==f"xs{mu}"][0]+1
    qs=list(Q)
    if C['afirst']:
        a.flat(fin1(a,0,0,72)); a.flat(conv_epi(1)[1])
    else: a.flat(fin1(a,0,0,ACC0))
    if CFG.get('trace')=='CV': a("v_mov_b32 v139, v194")
    a.stamp("fin1 A","f")
    lA,rA,tA=fin2(a,0,0,ACC0,pk=C['pk']); lB,rB,tB=fin2(a,0,1,232,pk=C['pk'])
    glB,gcB=y_check(a,1)
    pk,ps=pp_pack()
    W2Q[:]=w2_loads()
    a(f"s_mul_i32 s{sT0}, s{sCT2}, 43\ns_mul_i32 s{sT1}, s{sKH}, 21\ns_add_u32 s{sT0}, s{sT0}, s{sT1}\ns_lshl_b32 s{sT0}, s{sT0}, 7\ns_add_u32 s{sCK3}, s{sT0}, {OFF_P2F}")
    a(f"v_min_u32 v{PT+3}, 21, v{vLane}\nv_lshlrev_b32 v{PT+3}, 7, v{PT+3}")
    pl_,pc_=a.check([f"buffer_load_dword v{PT+2}, v{PT+3}, {srd(WS)}, s{sCK3} offen sc1"],[f"v_cmp_ne_u32 vcc, s{sTAG}, v{PT+2}"],"pp")
    ppf=M(f"buffer_store_dword v{vTAG}, v{vOne}, {srd(WS)}, s{sPF} offen sc1")
    if C['pkat']==3: a.waitvm('pps'); a.flat(ppf); ppf=[]
    a.flat(extras(3)); Wp(a,'YS')
    if C['pkat']==2: a.flat(pk); a.flat(ps)
    a.flat(x0_state(1))
    a.waitvm("yt1")
    Wp(a,'F1')
    a.flat(lA); a.flat(glB)
    if C['pkat']==3 and W2E(): a.flat(pl_)
    a.flat(extras(4)); Wp(a,'F2')
    if C['pkat']==0: a.flat(pk); a.flat(ps)
    a.stamp("yB acked","f")
    a.flat(rA[:10])
    if C['pkat']==3 and W2E(): a.flat(pc_); pl_=[]; pc_=[]
    Wp(a,'FA'); a.flat(rA[10:]); Wp(a,'FX')
    a.stamp("fin2 A","f")
    a.flat(gcB)
    y_stage(a,1,wops(PL().get('SB',"")))
    a.flat(tA)
    if C['pkat']==1: a.flat(pk); a.flat(ps)
    else: a.waitvm("pps"); a.flat(ppf); ppf=[]
    Wp(a,'FB')
    a.flat(fin1(a,0,1,ACC1))
    a.stamp("fin1 B","f")
    xl,xc=flag_check(a,XF(0,0),vFX,"xf")
    early='p' in PL().get('XD','')
    Wp(a,'XW'); a.flat(xl)
    if early: a.flat(pl_)
    a.flat(xc)
    if early: a.flat(pc_); pl_=[]; pc_=[]
    Wp(a,'XB')
    lead=lB+x_dma(0,0,0,qs[0])+x_dma(0,0,1,qs[0])+(alias_setup() if C['alias'] else [])+rB[:nxs(rB,1)]+wops(PL().get('XD',""))
    a.flat(lead)
    A1,B0,B1,GA,GB,GC=96,192,288,384,472,516
    for layer in range(2):
        g="ab"[layer]
        xa0,xa1,xb0,xb1,e=qs
        hs = lambda k: ' sc1' if (layer==0 and k in SC1K()) else (a.sc or (' nt' if (C['nth'] and layer==1) else ''))
        L0 = layer==0
        a.stamp(f"L{layer} start",g+'m')
        hq=[(xa0,xa1,e),(xb0,xb1,xa0)]
        X=lambda mu,p,q: x_dma(mu,p,0,q)+x_dma(mu,p,1,q)
        H=lambda mu,t,grp: h_dma(mu,t,grp,hq[mu][grp])
        xl,xc=flag_check(a,XF(layer,1),vFX,"xf")
        s7=[]
        def HC(k,after=None,gap=None):
            l,c=flag_check(a,HF(layer,k),vFX if (k==1 and C['alias']>=2) else vFH,"hf")
            s7.extend([AF('xc'),AF(f"f{k}",after or (C['hca0'] if L0 else C['hca']))]+l+[SY(f"l{k}")]+c+[SY(f"c{k}")])
            return [AF(f"c{k}")]
        sl,sr=s5_get(a,layer,0)
        def SB(n,*w):
            if layer==0: return BAR(*w)
            return a.st(n+" pre","c")+list(w)+a.st(n+" waited","c")+[mk("s_barrier")]+a.st(n+" post","c")
        steps = g1_steps(0,xa0,{0:BAR(WV("x000")),8:BAR(WV("x001"))}) + g1_steps(1,xa1,{0:BAR(WV("x011"))}) \
              + g1_steps(0,xb0,{0:BAR(WV("x101"))}) + g1_steps(1,xb1,{0:BAR(WV("x111"))}) \
              + g2_steps(hq[0],{**({i:[WV(f"w2_{i}")] for i in range(22)} if L0 else {}),0:BAR(WV("h010"),WV("h000"),WV("w2_0")),8:BAR(WV("h011"),WV("h001"),WV("w2_8")),16:BAR(WV("h012"),WV("h002"),WV("w2_16"))}) \
              + g2_pass(hq[1],0,{0:BAR(WV("h101"),WV("h100")),16:BAR(WV("h102"))}) + g2_pass(hq[1],1,{0:BAR(WV("h110")),8:BAR(WV("h111")),16:BAR(WV("h112"))})
        marks={15:a.st(f"L{layer} A0",g),31:a.st(f"L{layer} A1",g),47:a.st(f"L{layer} B0",g),63:a.st(f"L{layer} B1",g),85:a.st(f"L{layer} GA",g)}
        bb=backbone(steps,marks)
        def epi(k):
            E=g1_epi(a,k&1,k>>1,k&1,hs(k))
            if k>0 and L0 and C['hold']:
                n=[i for i,x in enumerate(E) if x.kind=='vmem'][0]; E=E[:n]+[AF(f"l{k-1}")]+E[n:]
            if C['alias']>=2 and k in(0,3):
                n=[i for i,x in enumerate(E) if isinstance(x,I) and x.kind=='vmem'][0]; E=E[:n]+[AF('xc' if k==0 else 'c1')]+E[n:]
            if k<3: return [AT(96*(k+1)+2),('DENS',C['dens0'] if L0 else C['dens1'])]+E+[('DENS',0),SY(f"e{k}"),BY(96*(k+2) if k<2 else GA-30)]
            return [AT(GA+1),('DENS',C['dens'])]+E+[('DENS',0),SY("e3")]+sr
        s3=[]
        for k in range(4): s3+=[AF(f"e{k}")]+([AF('h00'),WV('h002'),WV('h001'),WV('h000')] if (k==1 and C['alias']>=2) else [])+h_flag(a,layer,k)+[SY(f"f{k}")]
        YT=ACC1+16
        nq=[xa1,e,xb0,xb1,xa0]
        slB,srB=s5_get(a,layer,1)
        preA,postA=g2_tail(0,e,ACC0,ACC0+8)
        tailA=ex_addr(e)+(unpackY(0,YT) if L0 else [])+slB+[BY(GB),AT(GB+1),('DENS',C['densa'] if L0 else 2)]+preA+[GP(C['exg'])]+B(WL("ew0"))+postA[:2]+[GP(C['exg2'])]+postA[2:]
        if L0:
            lA,rA,tA=fin2(a,1,0,ACC0,YT)
            xlA,xcA=flag_check(a,XF(1,0),vFX,"xf")
            tailA+=fin1(a,1,0,YT,True,ACC0)+[('DENS',0)]+srB+ex_addr(xa0)+[('GAPV',C['gbl'])]+lA+[('DENS',C['dens2'])]+rA[:nxs(rA,0)]+[('DENS',0),SY('r')]+rA[nxs(rA,0):]+unpackY(1,YT)
        else:
            tailA+=out_store(a,0,YT)+[('DENS',0)]+srB+ex_addr(xa0)+([AT(GC+C['wbat'])]+wbl2(a) if C['wbl2'] else [])
        g1=C['g1']
        K=lambda it,c=None,cap=64: bk(it,C['bk'] if c is None else c,cap)
        dl0=(B1-34 if C['alias']>=2 else GA-44)
        sA = HC(0)+K(H(0,0,0))+[BY(dl0),AT(B0-10)]+K(H(0,0,1))+[BY(dl0+4)]+K(H(0,0,2))+[SY('h00'),BY(dl0+6)]
        sB = HC(1)+K(H(0,1,0))+[BY(GA-36)]+K(H(0,1,1))+[BY(GA-4)]+K(H(0,1,2))+[BY(GA+28)]
        sC = HC(2)+K(H(1,0,0))+[BY(GB-34),AT(GA-10)]+K(H(1,0,1))+[BY(GB-30)]
        sD = [AT(GA+54)]+K(H(1,0,2))+[BY(GB)]+HC(3,C['gahl'])+K(H(1,1,0))+[BY(GC-22)]+K(H(1,1,1))+[BY(GC-6)]+K(H(1,1,2))+[BY(GC+10)]
        if L0:
            pl=PL(); pend=pl.get('PEND',[]); rest=pl.get('REST',[])
            s1=[];s2=[]
            for k in rest: s1+=K(wops(f"i{k}"),400)
            rest=[int(str(k).split('@')[0]) for k in rest]
            s1+=[SY('irest')]+([AF('fr')] if any(slot_of[k]==SLOT[4] for k in pend) else [])+K(X(0,1,xa1))+[BY(A1-30)]
            for k in pend: s2+=wops(f"r{k}")+[BY(max(12*k-4,30))]
            late=pl.get('LATE',[])
            if late:
                s2+=[AT(38)]+B(WV(f'c{late[-1]}'))
                for k in late: s2+=wops(f'r{k}')+[BY(12*k-4)]
                pend=pend+late
            last=pend[-1] if pend else None
            if rest:
                s2+=[AF('irest')]+B(WV(f"c{rest[-1]}"))
                for k in rest: s2+=wops(f"r{k}")+[BY(12*k-4)]
                last=rest[-1]
            if last is not None: s2+=[GP(4)]+B(WL(f"cr{last}"))
            s2+=[SY('fr'),AT(C['tin'])]+h_touch(TINK(),127)
            s4=([WV('pps')]+ppf+[GP(40)] if ppf else [])+[AT(C['w2at'])]+pl_+pc_+[AF(C['w2af'])]
            i=0
            while W2Q:
                if i==10: s4+=[AF('fB')]
                s4+=K(w2_take(2),C['bkw'],C['capw'])+[BY(GA+4*i-C['w2lead'])]; i+=1
        else:
            s1=[SY('irest'),AF('lB')]+K(X(0,1,xa1))+[BY(A1-30)]; s2=[SY('fr')]; s4=[]
        if L0: s5=[SY('rB')]+rB[nxs(rB,1):]+[SY('fB')]
        else: s5=[AT(C['a0l'])]+lB+[SY('lB'),('DENS',C['densb'])]+rB[:nxs(rB,1)]+[('DENS',0),SY('rB')]+rB[nxs(rB,1):]+[BY(A1)]
        s3=[AF('rB')]+tB+[SY('tB')]+s3
        s1+=[AF('tB',C['a1xl0'] if L0 else C['a1xl'])]+xl+[SY('xl')]+xc+[SY('xc'),AF('fr')]+K(X(1,0,xb0))+[BY(B0-30)]+K(X(1,1,xb1))+[BY(B1-30)]
        s1+=sA+sB+sC+sD
        s6 = ([] if L0 else [AF('xl')])+epi(0)+epi(1)+epi(2)+sl+epi(3)+[BY(GB-12)]+tailA
        vm=VMM(vm_par(layer)); t0=feed(vm,lead,0)
        out,rest=weave(bb,[s3,s7,s1,s4,s2,s5,s6],vm=vm,t0=t0,log=f"L{layer}"+('!' if C.get('v')==2 else '') if (C.get('v') and a.tag=='F') else None)
        a.ext(a.trace(out,CFG.get('tev_',10),f'G{layer}')); a.ext(rest)
        if C.get('v'): print("  leftover after G2(B):",len(rest))
        a.stamp(f"L{layer} GB",g)
        Ls=a.label("sw")
        a(f"s_nop 7\ns_cmp_eq_u32 s{sKH}, 0\ns_cbranch_scc1 {Ls}")
        for k in range(8): a(f"v_swap_b32 v{ACC1+k}, v{ACC1+8+k}")
        a.lab(Ls)
        preB,postB=g2_tail(1,xa0,ACC1,ACC1+8)
        a.flat(preB)
        if L0: a.flat(tA)
        a("s_waitcnt lgkmcnt(0)\ns_barrier")
        a.flat(postB)
        if L0:
            a.flat(fin1(a,1,1,YT,True,ACC1))
            lB,rB,tB=fin2(a,1,1,ACC1,YT)
            a.flat(xlA); a.flat(xcA); lead=X(0,0,nq[0]); a.ext(lead)
        else:
            a.flat(out_store(a,1,YT))
        a.stamp(f"L{layer} tailB",g)
        qs=nq
    finish_kernel(a)

def main():
    a=G('F','')
    entry(a); p0(a); conv(a)
    nfront=len(a.L)
    b=G('S',' sc1'); b.nlab=0
    front=list(a.L)
    body(a)
    rep=[]
    items=finish(a.L,rep)
    print("LDS ordering problems:",lds_check(items))
    for o in a.ool: items+=finish(o)
    items.append(mk("L_fast_end:"))
    if CFG['slow']:
        b.L=front+[mk("L_slow:")]; body(b)
        full=finish(b.L)
        k=[i for i,x in enumerate(full) if x.text=="L_slow:"][0]
        items+=full[k:k+1]+[mk("s_nop 4")]+full[k+1:]
        for o in b.ool: items+=finish(o)
    items.append(mk("L_end:")); items.append(mk("s_endpgm"))
    hdr=open(os.path.join(os.path.dirname(os.path.abspath(__file__)),"header.txt")).read()
    src=kernel_file(NAME,text(items),"; @launch grid=(256,1,1) block=(256,1,1) lds=163840",header=hdr)
    open(sys.argv[1],"w").write(src)
    open("stamp_names.txt","w").write("\n".join(stamp_names)); open("trace_names.txt","w").write("\n".join(trace_names)); open("site_names.txt","w").write(" ".join(site_names))
    n=sum(1 for i in items if i.kind!='none')
    print(f"{n} instructions, {len(src)} bytes of text, {sum(x for x,_ in rep)} nop states padded in fast path")
    if CFG.get('v'):
        for x in rep: print("   pad",x)
main()
```

```python
import sys, os
from asmlib import *
from layout import *

NAME="interleave_layers__ssm_conv_h3__glu_gated_reglu__prompt_kernel"
CFG=dict(fb1=0, mG=25, pk=1, hpri=1, hsplit=1, ft1=1, kl=5, afirst=0, idle=1, alias=1, o1=0, o2=0, swz=1, z14=1, tpre=1, dot2=1, a1xl0=30, tin=100, mH=1300, hold=0, hca0=24, dens0=8, mW2=62, hat=2, hmid=100, bk=60, bkw=60, capw=64, mL=350, mLs=80, mM=600, mMs=95, mW=850, mS=600, mS1=950, ssmat=0, nth=1, ntx=2, wbat=24, wbid=0, ppat=1, tat=2, pkat=2, fbpre=1, cg0=30, gbt0=28, xg0=16, w2af='irest', densb=4, qat=1, gbs5=8, la=12, clr=1, utouch=0, f1max=2048, cann=56, plan=38, chl=40, cla=9, cdens=4, cslots=2, chc=40, cack=54, rot=1, cm2=70, cm3=120, a0l=1, a0c=24, a1xl=18, dens=5, fl=30, fl0=52, hca=18, hcg=22, g1=4, g2=5, g3=4, dens1=2, gahl=16, gahc=14, hbgap=4, tev=6, tev2=5, dens2=8, densa=5, exg=2, exg2=4, gbl=16, gbc=14, gbt=28, gbxl=20, b0hl=80, w2at=1, w2gap=5, w2lead=40, rrest=56, cgap=3, warm=1, stamps=0, stop=None, slow=1, prefetch=1, touch=2, dgather=1, dstage=1, wbl2=0, outsc=2)
for a_ in sys.argv[2:]:
    k,v=a_.split('='); CFG[k]=int(v) if v.lstrip('-').isdigit() else v

sX,sR,sWV,sG,sM,sRH,sCT2,sKH,sCHH,sTAG,sHELLO=4,5,6,7,8,9,10,11,12,13,14
sT0,sT1,sT2,sT3=3,15,60,61
sCNT=62; sSOFF=63
WS,SK_,SV_,SQ_,SH_,SWG,SWU,SWD,SO_,SSK,SD_=16,20,24,28,32,36,40,44,48,52,56
srd=lambda b:f"s[{b}:{b+3}]"
sXW,sHW,sHK,sHS,sXS,sFL,sGR,sS5,sGRl,sS5l=64,65,66,67,68,69,70,71,72,73
sW1W,sWo,sHF,sW2B=74,75,76,77
sPS,sPD,sPF,sW20=56,57,58,59
sCK1,sCK2,sCK3,sQ=20,21,24,25
sCH,sUO,sMB=26,27,0
sMODE=34; sFLH=23; sC4,sC3,sM4,sM3=52,53,54,55
sFLG=1
STAMP0=78
Q=[0,32768,65536,98304,131072]
TCP=4160; TCH=4*TCP; L_TOEP=0
L_U=2*TCH; UCH=4608
L_K=L_U+2*UCH; CHP=1056; L_V=L_K+9*CHP
L_CX=L_K
L_YS=0
L_WS=65536; WSL=24576
SLOT=[L_WS+k*WSL for k in range(4)]
L_YS=SLOT[3]+16384
L_PP=SLOT[3]
SLOT=SLOT[:3]+[8192,36864,L_PP]
vL=1; vOne=2; vTok=3; vGs=4; vGl=5; vS5s=6; vS5l=7; vXD=8; vHD=9; vHS1=10; vHS2=11; vFX=12; vFH=13
vTAG=14; vR2=15
vXst=[16,24]; vYY=[32,36]
ACC0,ACC1,FR,vA0,vA1,EP,PT=40,64,88,112,113,114,122
vW2,vT2,vWc0=126,127,128
vW1=[129,130,131]; vTa,vTm,vWc1=132,133,134
vLane,vJ,vQ,vYo,vD=135,136,137,138,139
vCg,vCs=124,125
vHa=15
vCXw,vCXo,vCXp,vKV,vGA,vGW,vGT,vFT=160,161,162,163,164,165,166,167
vKD,vUP,vPK,vGD,vGC,vQT,vTch=168,172,176,184,192,196,193
W2V=144; W2A=192
def W1(s,t): b=(s*3+t)*4; return f"a[{b}:{b+3}]"
def W1h(s,t,hh): b=(s*3+t)*4+2*hh; return f"a[{b}:{b+1}]"
def W2(i,t):
    k=(i*2+t)*4
    return f"v[{W2V+k}:{W2V+k+3}]" if k<112 else f"a[{W2A+k-112}:{W2A+k-112+3}]"
def W2h(i,t,hh):
    k=(i*2+t)*4+2*hh
    return f"v[{W2V+k}:{W2V+k+1}]" if k<112 else f"a[{W2A+k-112}:{W2A+k-112+1}]"
V=lambda b,n=4: f"v[{b}:{b+n-1}]"
OOB=0x7FFFFF00
vST=lambda: 140 if CFG.get('trace')=='CV' else 139
POLLMAX=1<<16
def M(text,tok=None): return [mk(l.strip(),tok) for l in text.split('\n') if l.strip()]
BAR=lambda *pre: list(pre)+[mk("s_barrier")]

trace_names=[]; stamp_names=[]; site_names=[]
class G(Asm):
    def __init__(s,tag='',sc=''):
        super().__init__(); s.tag=tag; s.sc=sc; s.ool=[]
    def st(s,name,grp='m'):
        if not CFG['stamps'] or s.tag=='S': return []
        if grp!='*' and not any(c in str(CFG['stamps']) for c in grp): return []
        stamp_names.append(name); i=len(stamp_names)-1
        assert i<20, "too many stamps"
        return M(f"{'s_memtime' if CFG.get('clk') else 's_memrealtime'} s[100:101]\ns_waitcnt lgkmcnt(0)\ns_mov_b32 s{STAMP0+i if (i or CFG['kl']!=5) else 97}, s100")
    def trace(s, items, every, name):
        if s.tag=='S' or CFG.get('trace')!=name: return items
        out=[]; n=0
        for it in items:
            out.append(it)
            if isinstance(it,I) and it.kind=='mfma':
                if n%every==0 and CFG.get('tr0',0)<=n<CFG.get('tr0',0)+58*every: out+=s.light(f"{name}+{n}")
                n+=1
        return out+s.light(name+" end")+M("s_nop 15\ns_nop 15\ns_nop 15\ns_nop 15")+s.light(None)+s.light(None)
    def light(s,name):
        k=len(trace_names); trace_names.append(name or "")
        L=[]
        if name: x=mk(f"s_memtime s[{90+2*(k%3)}:{91+2*(k%3)}]"); x.light=1; x.defs=set(); L.append(x)
        if k>=2: L+=M(f"v_writelane_b32 v{vST()}, s{90+2*((k-2)%3)}, {k-2}")
        return L
    def stamp(s,name,grp='m'): s.ext(s.st(name,grp))
    def lr(s,n,*r): LR([i for i in s.L[-n:] if isinstance(i,I)],*r)
    def lw(s,n,*r): LW([i for i in s.L[-n:] if isinstance(i,I)],*r)
    def label(s,p): s.nlab+=1; return f"L{s.tag}_{p}_{s.nlab}"
    def check(s, loads, checks, name):
        R=s.label(name+'r'); L=s.label(name+'l'); B=s.label(name+'b')
        o=Asm(); o.lab(R); o(f"s_mov_b32 s{sCNT}, 0")
        if CFG['stamps'] and s.tag!='S':
            n=len(site_names); site_names.append(name); o(f"s_bitset1_b32 s98, {n}")
        o.lab(L)
        for l in loads: o(l)
        o("s_waitcnt vmcnt(0)")
        for c in checks: o(c)
        o(f"s_cbranch_vccz {B}\ns_add_u32 s{sCNT}, s{sCNT}, 1\ns_cmp_lt_u32 s{sCNT}, {POLLMAX}\ns_cbranch_scc1 {L}\ns_branch {B}")
        s.ool.append(o.L)
        ck=[mk(c) for c in checks]
        return [mk(l,R) for l in loads], [('WVM',R)]+ck[:-1]+[[ck[-1],mk(f"s_cbranch_vccnz {R}"),mk(B+":")]]
    def flat(s, items):
        for it in items:
            if isinstance(it,list): s.ext(it)
            elif isinstance(it,tuple) and it[0] in('AT','GAP','GAPV','SYNC','AFTER','BY','DENS','BK'): pass
            else: s.L.append(it)
    def weave(s, bb, *streams, slots=2, name=None):
        out,rest=weave(bb,streams,slots)
        s.ext(s.trace(out,CFG.get('tev_',4),name) if name else out); s.ext(rest)
        if rest and CFG.get('v'): print("  leftover fillers:",len(rest),[getattr(r,'text',r) for r in rest[:2]])

def entry(a):
    a.stamp("entry","*")
    if CFG["stamps"]: a("s_memtime s[100:101]\ns_waitcnt lgkmcnt(0)\ns_mov_b32 s99, s100\ns_mov_b32 s98, 0")
    a("s_cmp_ge_u32 s2, 256\ns_cbranch_scc1 L_end")
    first=((SK_,8),(SV_,16),(SSK,24),(WS,96)); later=((SH_,32),(SD_,40),(SQ_,0),(SWG,56),(SWU,64),(SWD,72),(SO_,80))
    if CFG['kl']==2: a("s_load_dwordx4 s[64:67], s[0:1], 8"); later=((SSK,24),(WS,96))+later; first=()
    if CFG['kl']==4: a("s_load_dwordx8 s[64:71], s[0:1], 8"); first=((WS,96),); later=later[1:]
    if CFG['kl']==5: a("s_load_dwordx16 s[64:79], s[0:1], 0\ns_load_dwordx8 s[80:87], s[0:1], 64"); first=((WS,96),); later=()
    if CFG['kl']==3: first=first[:2]; later=((SSK,24),(WS,96))+later
    for b,off in first+(() if CFG['kl'] else later):
        a(f"s_load_dwordx2 s[{b}:{b+1}], s[0:1], {off}")
    a(f"v_lshrrev_b32 v40, 6, v0\nv_and_b32 v{vLane}, 63, v0")
    a(f"s_and_b32 s{sX}, s2, 7\ns_lshr_b32 s{sR}, s2, 3")
    a(f"v_readfirstlane_b32 s{sWV}, v40")
    a(f"v_lshlrev_b32 v{vL}, 4, v{vLane}")
    if CFG['prefetch']:
        a(f"s_getpc_b64 s[{sT2}:{sT2+1}]")
        a("L_pc:")
        a(f"s_lshl_b32 s{sT0}, s{sWV}, 5\ns_add_u32 s{sT0}, s{sT0}, s{sR}\ns_lshl_b32 s{sT0}, s{sT0}, 10")
        a(f"v_add_u32 v42, s{sT0}, v{vL}\nv_min_u32 v42, L_fast_end-L_pc-16, v42")
        a(f"v_mov_b32 v43, s{sT2+1}\nv_add_co_u32 v42, vcc, s{sT2}, v42")
        a(f"v_lshrrev_b32 v48, 3, v{vLane}\nv_and_b32 v49, 7, v{vLane}")
        a("v_addc_co_u32 v43, vcc, 0, v43, vcc")
        a("global_load_dwordx4 v[44:47], v[42:43], off")
    else:
        a(f"v_lshrrev_b32 v48, 3, v{vLane}\nv_and_b32 v49, 7, v{vLane}")
    a(f"v_lshlrev_b32 v49, 4, v49\nv_lshl_add_u32 v{vW2}, v48, 10, v49")
    a(f"s_lshl_b32 s{sT0}, s{sR}, 16\ns_lshl_b32 s{sT1}, s{sX}, 7\ns_add_u32 s{sT0}, s{sT0}, s{sT1}")
    a(f"s_sub_u32 s{sT1}, s{sT0}, 8192\nv_add_u32 v49, s{sT1}, v{vW2}")
    a(f"s_lshl_b32 s{sT1}, s{sWV}, 13\ns_add_u32 s{sT0}, s{sT0}, s{sT1}\nv_add_u32 v48, s{sT0}, v{vW2}")
    a(f"s_mul_i32 s{sT1}, s{sWV}, {CHP}\ns_mov_b32 s{sSOFF}, 32768")
    for b,n in ((SK_,2<<20),(SV_,2<<20),(WS,256<<20),(SSK,4096)):
        a(f"s_mov_b32 s{b+2}, {n}\ns_mov_b32 s{b+3}, 0x20000")
    a(f"v_and_b32 v{vJ}, 15, v{vLane}\nv_lshrrev_b32 v{vQ}, 4, v{vLane}")
    a(f"s_lshl_b32 s{sT0}, s{sX}, 6\ns_lshl_b32 s{sT2}, s{sWV}, 4\ns_add_u32 s{sT0}, s{sT0}, s{sT2}\nv_add_u32 v55, s{sT0}, v{vJ}")
    a(f"v_lshlrev_b32 v78, 3, v55\nv_mov_b32 v50, 0")
    a(f"s_add_u32 m0, s{sT1}, {L_K+CHP}\ns_mov_b32 s{sT2}, {L_V+8*CHP}")
    a("s_waitcnt lgkmcnt(0)")
    if CFG['kl']!=5: a.stamp("kernarg","f")
    if CFG['kl']==5: a(f"s_mov_b64 s[{SK_}:{SK_+1}], s[66:67]\ns_mov_b64 s[{SV_}:{SV_+1}], s[68:69]")
    if CFG['kl'] in(2,4): a(f"s_mov_b64 s[{SK_}:{SK_+1}], s[64:65]\ns_mov_b64 s[{SV_}:{SV_+1}], s[66:67]")
    if CFG.get('probe'):
        if CFG['probe']==1: a("s_load_dwordx2 s[96:97], s[0:1], 48\ns_waitcnt lgkmcnt(0)\ns_mov_b32 s98, 0x200000\ns_mov_b32 s99, 0x20000"); S="s[96:99]"; base=0
        else: S=srd(WS); base=CFG['probe']<<24
        a(f"s_lshl_b32 s95, s2, 2\ns_add_u32 s95, s95, s{sWV}\ns_lshl_b32 s95, s95, 11\ns_add_u32 s95, s95, {base}\nv_mov_b32 v60, s95")
        for i in range(16):
            a(f"buffer_load_dword v61, v60, {S}, 0 offen offset:{128*i}\nv_and_b32 v61, 0, v61\nv_add_u32 v60, v60, v61")
    a(f"buffer_load_dwordx4 v48, {srd(SK_)}, 0 offen lds","kv")
    a(f"s_add_u32 m0, s{sT1}, {L_V}");       a(f"buffer_load_dwordx4 v48, {srd(SV_)}, 0 offen lds","kv")
    a(f"s_add_u32 m0, s{sT1}, {L_K+5*CHP}"); a(f"buffer_load_dwordx4 v48, {srd(SK_)}, s{sSOFF} offen lds","kv")
    a(f"s_add_u32 m0, s{sT1}, {L_V+4*CHP}"); a(f"buffer_load_dwordx4 v48, {srd(SV_)}, s{sSOFF} offen lds","kv")
    a(f"s_cmp_eq_u32 s{sWV}, 3\ns_cselect_b32 m0, {L_K}, s{sT2}\ns_cselect_b32 s{sSOFF}, 0, {OOB}")
    a(f"buffer_load_dwordx4 v49, {srd(SK_)}, s{sSOFF} offen lds","kv")
    a.lw(13,(L_K,L_V+8*CHP+1024))
    if CFG['kl']==4: a(f"s_mov_b64 s[{SSK}:{SSK+1}], s[68:69]\ns_mov_b64 s[{SH_}:{SH_+1}], s[70:71]")
    if CFG['kl']==5:
        for b,r in ((SSK,70),(SH_,72),(SD_,74),(SQ_,64),(SWG,78),(SWU,80),(SWD,82),(SO_,84)): a(f"s_mov_b64 s[{b}:{b+1}], s[{r}:{r+1}]")
    if CFG['kl'] in(2,3):
        for b,off in later: a(f"s_load_dwordx2 s[{b}:{b+1}], s[0:1], {off}")
        later=()
    a(f"buffer_load_dwordx2 {V(80,2)}, v78, {srd(SSK)}, 0 offen")
    a(f"buffer_load_dword v51, v50, {srd(WS)}, 0 offen sc1")
    if CFG['kl']:
        for b,off in later: a(f"s_load_dwordx2 s[{b}:{b+1}], s[0:1], {off}")
    if CFG['kl']==5 and CFG['stamps']: a(f"s_mov_b32 s{STAMP0}, s97")
    a.stamp("kv issued","f")
    for b,n in ((SH_,4096),(SD_,1024),(SQ_,2<<20),(SWG,512*1376*2),(SWU,512*1376*2),(SWD,512*1376*2),(SO_,2<<20)):
        a(f"s_mov_b32 s{b+2}, {n}\ns_mov_b32 s{b+3}, 0x20000")
    a(f"""s_lshr_b32 s{sT0}, s{sR}, 4
        s_lshl_b32 s{sG}, s{sX}, 1
        s_add_u32 s{sG}, s{sG}, s{sT0}
        s_and_b32 s{sM}, s{sR}, 15
        s_lshr_b32 s{sRH}, s{sM}, 3
        s_and_b32 s{sCT2}, s{sM}, 7
        s_lshr_b32 s{sKH}, s{sWV}, 1
        s_and_b32 s{sCHH}, s{sWV}, 1
        s_waitcnt lgkmcnt(0)
        s_mov_b32 s{sMB}, 0x100000""")
    a(f"s_cmp_eq_u32 s{sM}, 15\ns_cselect_b32 s{SWG+2}, 0, s{SWG+2}\ns_cselect_b32 s{SWU+2}, 0, s{SWU+2}")
    a(f"s_lshl_b32 s{sT0}, s{sX}, 6\ns_lshl_b32 s{sT1}, s{sR}, 1\ns_add_u32 s{sT0}, s{sT0}, s{sT1}\ns_add_u32 s{sT2}, s{sT0}, s{sKH}")
    a(f"s_lshl_b32 s{sT0}, s{sT2}, 12\ns_add_u32 s{SH_}, s{SH_}, s{sT0}\ns_addc_u32 s{SH_+1}, s{SH_+1}, 0")
    a(f"s_lshl_b32 s{sT0}, s{sCHH}, 11\nv_add_u32 v52, s{sT0}, v{vL}")
    a(f"v_min_u32 v53, 1, v{vLane}\nv_lshlrev_b32 v53, 4, v53\nv_subrev_u32 v53, 32, v53")
    a(f"s_lshl_b32 s{sT0}, s{sT2}, 1\nv_mov_b32 v{vD}, s{sT0}")
    if CFG['ssmat']==0: ssm_loads(a)
    a(f"""v_and_b32 v96, 1, v{vQ}
        v_lshlrev_b32 v96, 2, v96
        v_lshrrev_b32 v97, 2, v{vJ}
        v_add_u32 v96, v96, v97
        v_lshlrev_b32 v96, 16, v96
        v_and_b32 v97, 3, v{vJ}
        v_lshl_add_u32 v96, v97, 5, v96
        v_lshrrev_b32 v97, 1, v{vQ}
        v_lshl_add_u32 v96, v97, 4, v96
        s_lshl_b32 s{sT0}, s{sCHH}, 19
        s_lshl_b32 s{sT1}, s{sT2}, 7
        s_add_u32 s{sT0}, s{sT0}, s{sT1}
        s_add_u32 s{sT0}, s{sT0}, {OFF_YT}
        v_add_u32 v{vYo}, s{sT0}, v96
        s_mov_b32 s{sHELLO}, s{sT2}""")
    a(f"v_mov_b32 v{vOne}, {OOB}\nv_cmp_eq_u32 vcc, 0, v{vLane}\nv_cndmask_b32 v{vOne}, v{vOne}, v50, vcc")
    a(f"""s_lshl_b32 s{sT0}, s{sG}, 2
        s_lshl_b32 s{sT1}, s{sRH}, 1
        s_add_u32 s{sT1}, s{sT1}, s{sKH}
        s_add_u32 s{sT0}, s{sT0}, s{sT1}
        s_lshl_b32 s{sT1}, s{sKH}, 1
        s_add_u32 s{sT1}, s{sT1}, s{sRH}""")
    a(f"""s_lshl_b32 s{sGRl}, s{sT0}, 12
        s_add_u32 s{sGRl}, s{sGRl}, {OFF_GRAN}
        s_lshl_b32 s{sS5l}, s{sT0}, 10
        s_add_u32 s{sS5l}, s{sS5l}, {OFF_S5}
        s_lshl_b32 s{sT3}, s{sCT2}, 1
        s_add_u32 s{sT3}, s{sT3}, s{sCHH}""")
    a(f"""s_lshl_b32 s{sGR}, s{sT3}, 8
        s_add_u32 s{sGR}, s{sGR}, s{sGRl}
        s_lshl_b32 s{sS5}, s{sT3}, 2
        s_add_u32 s{sS5}, s{sS5}, s{sS5l}
        s_lshl_b32 s{sXS}, s{sG}, 17
        s_lshl_b32 s{sT1}, s{sT1}, 14
        s_add_u32 s{sXS}, s{sXS}, s{sT1}
        s_lshl_b32 s{sT1}, s{sX}, {1 if CFG['rot'] else 8}
        s_sub_u32 s{sT1}, s{sT3}, s{sT1}
        s_and_b32 s{sT1}, s{sT1}, 15
        s_lshl_b32 s{sT1}, s{sT1}, 10
        s_add_u32 s{sXS}, s{sXS}, s{sT1}
        s_add_u32 s{sXS}, s{sXS}, {OFF_XF}
        s_lshl_b32 s{sT0}, s{sT0}, 14
        s_lshl_b32 s{sT1}, s{sT3}, 6
        s_add_u32 s{sT0}, s{sT0}, s{sT1}""")
    a(f"v_lshlrev_b32 v{vTok}, 10, v{vJ}\nv_lshl_add_u32 v{vTok}, v{vQ}, 4, v{vTok}\nv_add_u32 v{vTok}, s{sT0}, v{vTok}")
    a(f"v_lshlrev_b32 v{vGs}, 4, v{vJ}\nv_lshl_add_u32 v{vGl}, v{vQ}, 10, v{vGs}\nv_lshl_add_u32 v{vGs}, v{vQ}, 2, v{vGs}")
    a(f"v_lshlrev_b32 v{vS5l}, 6, v{vJ}\nv_mov_b32 v{vS5s}, {OOB}\nv_cmp_eq_u32 vcc, 0, v{vQ}\nv_cndmask_b32 v{vS5s}, v{vS5s}, v{vS5l}, vcc")
    a(f"v_lshl_add_u32 v{vS5l}, v{vQ}, 4, v{vS5l}")
    a(f"s_lshl_b32 s{sT0}, s{sX}, 5\ns_add_u32 s{sT0}, s{sT0}, s{sR}\ns_lshl_b32 s{sHF}, s{sT0}, 7\ns_lshl_b32 s{sT0}, s{sWV}, 2\ns_add_u32 s{sHF}, s{sHF}, s{sT0}\ns_add_u32 s{sHF}, s{sHF}, {OFF_HELLO}")
    a(f"""s_lshl_b32 s{sXW}, s{sCHH}, 14
        s_lshl_b32 s{sT0}, s{sKH}, 12
        s_add_u32 s{sXW}, s{sXW}, s{sT0}
        s_lshl_b32 s{sT0}, s{sG}, 17
        s_add_u32 s{sT0}, s{sT0}, s{sXW}
        s_add_u32 s{sT0}, s{sT0}, {OFF_XF}
        v_add_u32 v{vXD}, s{sT0}, v{vL}
        s_lshl_b32 s{sHW}, s{sWV}, 13
        s_mul_i32 s{sHK}, s{sKH}, {3*8192}
        s_lshl_b32 s{sHS}, s{sKH}, 13
        s_add_u32 s{sHS}, s{sHS}, 8192
        s_lshl_b32 s{sT0}, s{sG}, 3
        s_add_u32 s{sT1}, s{sRH}, s{sT0}
        s_mul_i32 s{sT1}, s{sT1}, {HKS}
        s_mul_i32 s{sT3}, s{sKH}, 21
        s_add_u32 s{sT1}, s{sT1}, s{sT3}
        s_lshl_b32 s{sT1}, s{sT1}, 10
        s_add_u32 s{sT1}, s{sT1}, {OFF_H}
        v_add_u32 v{vHD}, s{sT1}, v{vL}""")
    a(f"""s_mul_i32 s{sT0}, s{sT0}, {HKS*1024}
        s_mul_i32 s{sT1}, s{sM}, 12
        s_mul_i32 s{sT3}, s{sWV}, 3
        s_add_u32 s{sT1}, s{sT1}, s{sT3}
        s_lshl_b32 s{sT1}, s{sT1}, 8
        s_add_u32 s{sT0}, s{sT0}, s{sT1}
        s_add_u32 s{sT0}, s{sT0}, {OFF_H}
        s_mov_b32 s{sT1}, {HKS*1024}
        v_lshlrev_b32 v97, 4, v{vJ}
        v_add_u32 v97, s{sT0}, v97
        v_and_b32 v98, 1, v{vQ}
        v_mad_u32_u24 v{vHS1}, v98, s{sT1}, v97
        v_add_u32 v{vHS2}, 512, v{vHS1}
        v_cmp_gt_u32 vcc, 32, v{vLane}
        v_mov_b32 v97, {OOB}
        v_cndmask_b32 v{vHS2}, v97, v{vHS2}, vcc
        v_lshrrev_b32 v98, 1, v{vQ}
        v_lshl_add_u32 v{vHS1}, v98, 8, v{vHS1}
        v_lshlrev_b32 v{vFX}, 2, v{vLane}
        v_min_u32 v{vFH}, 57, v{vLane}
        v_lshlrev_b32 v{vFH}, 2, v{vFH}
        s_lshl_b32 s{sFL}, s{sG}, 9
        s_lshl_b32 s{sFLG}, s{sM}, 2
        s_add_u32 s{sFLG}, s{sFLG}, s{sWV}
        s_lshl_b32 s{sFLG}, s{sFLG}, 2
        s_add_u32 s{sFLG}, s{sFLG}, s{sFL}
        s_nop 0""")
    if CFG['idle']:
        a(f"""s_lshl_b32 s{sT0}, s{sM}, 2
            s_add_u32 s{sT0}, s{sT0}, s{sWV}
            s_cmp_ge_u32 s{sT0}, 58
            s_cselect_b32 s{sT0}, 0x40000000, 0
            v_or_b32 v{vHS1}, s{sT0}, v{vHS1}
            v_or_b32 v{vHS2}, s{sT0}, v{vHS2}
            s_cmp_eq_u32 s{sM}, 15
            s_cselect_b32 s{sT0}, 0x40000000, 0
            v_or_b32 v{vXD}, s{sT0}, v{vXD}""")
    w_setup(a)
    a(f"""v_mul_u32_u24 v83, {2*CHP}, v{vQ}
        v_bfe_u32 v101, v{vLane}, 2, 2
        v_lshl_add_u32 v83, v101, 7, v83
        v_and_b32 v101, 3, v{vLane}
        v_lshl_add_u32 v83, v101, 3, v83
        s_lshl_b32 s{sT0}, s{sWV}, 5
        v_add_u32 v83, s{sT0}, v83""")
    a(f"v_and_b32 v55, -9, v55\nv_lshlrev_b32 v55, 12, v55\nv_lshl_add_u32 v55, v{vQ}, 5, v55\nv_lshrrev_b32 v101, 3, v{vJ}\nv_lshl_add_u32 v55, v101, 4, v55\ns_lshl_b32 s{sT0}, s{sR}, 7\ns_add_u32 s{sT0}, s{sT0}, {OFF_KVT}\nv_add_u32 v55, s{sT0}, v55")
    a(f"v_lshrrev_b32 v100, 5, v{vLane}\nv_mul_u32_u24 v100, {UCH-512}, v100\nv_add_u32 v100, v100, v{vL}")
    a("v_mov_b32 v104, 0\nv_mov_b32 v105, 0\nv_mov_b32 v106, 0\nv_mov_b32 v107, 0")
    a(f"ds_write_b128 v100, {V(104)} offset:{L_U}"); a.lw(1,(L_U,L_U+512),(L_U+UCH,L_U+UCH+512))
    a(f"""s_lshl_b32 s{sT0}, s{sWV}, 12
        s_add_u32 s{sT1}, s{sT0}, {L_CX}
        v_add_u32 v{vCXw}, s{sT1}, v{vL}
        s_lshl_b32 s{sT2}, s{sCHH}, 11
        v_add_u32 v{vCXo}, s{sT2}, v{vCXw}
        v_xor_b32 v{vCXp}, 4096, v{vL}
        s_xor_b32 s{sT0}, s{sT0}, 4096
        s_add_u32 s{sT0}, s{sT0}, s{sT2}
        s_add_u32 s{sT0}, s{sT0}, {L_CX}
        v_add_u32 v{vCXp}, s{sT0}, v{vL}
        s_lshl_b32 s{sT0}, s{sCHH}, 10
        s_mul_i32 s{sT1}, s{sKH}, {UCH}
        s_add_u32 s{sT0}, s{sT0}, s{sT1}
        s_add_u32 s{sT0}, s{sT0}, {L_U+512+8}
        v_lshlrev_b32 v{vKV}, 5, v{vJ}
        v_lshrrev_b32 v100, 1, v{vQ}
        v_lshl_add_u32 v{vKV}, v100, 4, v{vKV}
        v_and_b32 v100, 1, v{vQ}
        v_lshlrev_b32 v100, 3, v100
        v_sub_u32 v{vKV}, v{vKV}, v100
        v_add_u32 v{vKV}, s{sT0}, v{vKV}
        v_lshrrev_b32 v100, 2, v0
        v_lshlrev_b32 v100, 7, v100
        v_and_b32 v101, 3, v0
        v_lshl_add_u32 v100, v101, 4, v100
        s_lshl_b32 s{sT0}, s{sG}, 16
        s_lshl_b32 s{sT1}, s{sCT2}, 13
        s_add_u32 s{sT0}, s{sT0}, s{sT1}
        s_lshl_b32 s{sT1}, s{sRH}, 6
        s_add_u32 s{sT0}, s{sT0}, s{sT1}
        s_add_u32 s{sT0}, s{sT0}, {OFF_YT}
        v_add_u32 v{vGA}, s{sT0}, v100
        v_lshlrev_b32 v{vGW}, 4, v0
        v_add_u32 v{vGW}, {L_YS}, v{vGW}
        v_bfe_u32 v100, v{vLane}, 2, 2
        v_lshl_add_u32 v100, v{vQ}, 3, v100
        v_lshlrev_b32 v100, 6, v100
        v_and_b32 v101, 3, v{vLane}
        v_lshl_add_u32 v100, v101, 3, v100
        s_lshl_b32 s{sT0}, s{sCHH}, 11
        s_lshl_b32 s{sT1}, s{sKH}, 5
        s_add_u32 s{sT0}, s{sT0}, s{sT1}
        s_add_u32 s{sT0}, s{sT0}, {L_YS}
        v_add_u32 v{vGT}, s{sT0}, v100
        v_and_b32 v100, 7, v{vLane}
        v_lshlrev_b32 v100, 7, v100
        v_bfe_u32 v101, v{vLane}, 3, 2
        v_lshl_add_u32 v100, v101, 14, v100
        s_lshl_b32 s{sT0}, s{sFL}, 1
        s_add_u32 s{sT0}, s{sT0}, {OFF_XFLAG}
        v_add_u32 v{vFT}, s{sT0}, v100
        v_and_b32 v100, 31, v{vLane}
        v_lshlrev_b32 v100, 7, v100
        v_cmp_gt_u32 vcc, 32, v{vLane}
        s_lshl_b32 s{sT0}, s{sCT2}, 12
        s_lshl_b32 s{sT1}, s{sX}, 12
        v_mov_b32 v101, s{sT0}
        v_mov_b32 v102, s{sT1}
        v_cndmask_b32 v101, v101, v102, vcc
        v_add_u32 v100, {OFF_HELLO}, v100
        v_add_u32 v{vHa}, v100, v101""")
    if CFG['hsplit']:
        a(f"""s_and_b32 s{sT2}, s{sWV}, 1
            s_lshl_b32 s{sT2}, s{sT2}, 11
            s_cmp_lt_u32 s{sWV}, 2
            s_cselect_b32 s{sT0}, s{sT1}, s{sT0}
            s_add_u32 s{sT0}, s{sT0}, s{sT2}
            s_add_u32 s{sT0}, s{sT0}, {OFF_HELLO}
            v_lshlrev_b32 v100, 7, v{vJ}
            v_add_u32 v{vHa}, s{sT0}, v100""")
    a(f"""s_lshl_b32 s{sT0}, s{sHELLO}, 12
        s_lshl_b32 s{sT1}, s{sCHH}, 11
        s_add_u32 s{sT0}, s{sT0}, s{sT1}
        s_add_u32 s{sT0}, s{sT0}, {OFF_KVT}
        v_lshlrev_b32 v100, 7, v{vLane}
        v_add_u32 v100, s{sT0}, v100
        s_lshr_b32 s{sT0}, s{sR}, 3
        s_lshl_b32 s{sT1}, s{sX}, 2
        s_add_u32 s{sT0}, s{sT0}, s{sT1}
        s_lshl_b32 s{sT0}, s{sT0}, 7
        s_add_u32 s{sT0}, s{sT0}, {OFF_F1L}
        v_mov_b32 v101, s{sT0}
        v_cmp_gt_u32 vcc, 16, v{vLane}
        v_cndmask_b32 v{vTch}, v101, v100, vcc""")
    if CFG['ft1']:
        a(f"s_lshl_b32 s{sT0}, s{sM}, 2\ns_add_u32 s{sT0}, s{sT0}, s{sWV}\ns_and_b32 s{sT0}, s{sT0}, 31\ns_nop 1\nv_readlane_b32 s{sT0}, v{vFT}, s{sT0}\nv_writelane_b32 v{vTch}, s{sT0}, 17")
    if CFG['utouch']==0: a(f"buffer_load_dword v{vTch}, v{vTch}, {srd(WS)}, 0 offen sc1")
    if CFG['ssmat']==1: ssm_loads(a)
    a(f"""v_lshlrev_b32 v{vCg}, 4, v{vJ}
        v_lshl_add_u32 v{vCg}, v{vQ}, 18, v{vCg}
        v_lshrrev_b32 v{vCs}, 3, v{vLane}
        v_lshlrev_b32 v{vCs}, 16, v{vCs}
        v_and_b32 v100, 7, v{vLane}
        v_lshl_add_u32 v{vCs}, v100, 4, v{vCs}
        s_lshl_b32 s{sT0}, s{sCHH}, 17
        s_lshl_b32 s{sT1}, s{sCT2}, 7
        s_add_u32 s{sT0}, s{sT0}, s{sT1}
        s_add_u32 s{sT0}, s{sT0}, s{sS5l}
        v_add_u32 v{vCs}, s{sT0}, v{vCs}
        v_cmp_gt_u32 vcc, 16, v{vLane}
        v_mov_b32 v100, {OOB}
        v_add_u32 v{vCg}, s{sGR}, v{vCg}
        v_cndmask_b32 v{vCs}, v100, v{vCs}, vcc""")
    if CFG['clr']==0: clears(a)
    a.stamp("setup done","f")

def ssm_loads(a):
    a(f"s_mul_i32 s{sT0}, s{sKH}, {UCH}\ns_lshl_b32 s{sT1}, s{sCHH}, 11\ns_add_u32 s{sT0}, s{sT0}, s{sT1}\ns_add_u32 m0, s{sT0}, {L_U+512}")
    a(f"buffer_load_dwordx4 v{vL}, {srd(SH_)}, s{sT1} offen lds\nbuffer_load_dwordx4 v{vL}, {srd(SH_)}, s{sT1} offen offset:1024 lds","ssm")
    a.lw(2,(L_U+512,L_U+UCH),(L_U+UCH+512,L_U+2*UCH))
    a(f"buffer_load_ushort v{vD}, v{vD}, {srd(SD_)}, 0 offen")

def clears(a,tok=None):
    a("v_mov_b32 v112, -1\nv_mov_b32 v113, -1\nv_mov_b32 v114, -1\nv_mov_b32 v115, -1")
    a(f"""buffer_store_dwordx4 {V(112)}, v{vYo}, {srd(WS)}, 0 offen sc1
        buffer_store_dwordx4 {V(112)}, v{vYo}, {srd(WS)}, s{sMB} offen sc1
        buffer_store_dwordx4 {V(112)}, v{vCg}, {srd(WS)}, 0 offen sc1
        buffer_store_dwordx4 {V(112)}, v{vCs}, {srd(WS)}, 0 offen sc1""",tok)

def w_setup(a):
    lane,j,q=vLane,vJ,vQ
    for b in range(3):
        a(f"v_add_u32 v100, {64*b}, v{lane}\nv_mul_u32_u24 v101, 43691, v100\nv_lshrrev_b32 v101, 19, v101")
        a(f"v_mul_u32_u24 v102, 12, v101\nv_sub_u32 v100, v100, v102\nv_lshlrev_b32 v100, 4, v100")
        if CFG['swz']:
            a("v_lshrrev_b32 v102, 3, v101\nv_lshlrev_b32 v102, 5, v102\nv_sub_u32 v100, v100, v102\nv_add_u32 v102, 192, v100\nv_min_u32 v100, v100, v102")
        a(f"v_mul_u32_u24 v101, 2752, v101\nv_add_u32 v{vW1[b]}, v100, v101")
        if CFG['z14']: a(f"s_cmp_eq_u32 s{sM}, 14\ns_cselect_b32 s{sT0}, 64, 192\nv_cmp_gt_u32 vcc, s{sT0}, v100\nv_mov_b32 v101, 0x40000000\nv_cndmask_b32 v{vW1[b]}, v101, v{vW1[b]}, vcc")
    a(f"s_mul_i32 s{sT0}, s{sWV}, {16*2752}\ns_mul_i32 s{sT1}, s{sM}, 192\ns_add_u32 s{sT0}, s{sT0}, s{sT1}")
    for b in range(3):
        a(f"v_add_u32 v{vW1[b]}, s{sT0}, v{vW1[b]}")
        if b: a(f"v_subrev_u32 v{vW1[b]}, {1024*b}, v{vW1[b]}")
    a(f"""v_bfe_u32 v100, v{lane}, 2, 2
        v_lshl_add_u32 v100, v{q}, 3, v100
        v_and_b32 v101, 3, v{lane}
        v_mul_u32_u24 v102, 192, v100
        s_mul_i32 s{sT0}, s{sWV}, 48
        v_and_b32 v104, {1 if CFG['swz'] else 0}, v{q}
        v_lshlrev_b32 v104, 5, v104
        v_add_u32 v104, s{sT0}, v104
        v_lshl_add_u32 v103, v101, 3, v104
        v_subrev_u32 v105, 192, v103
        v_min_u32 v103, v103, v105
        v_add_u32 v{vTa}, v102, v103
        v_lshrrev_b32 v103, 1, v101
        v_lshl_add_u32 v103, v103, 3, v104
        v_add_u32 v103, 32, v103
        v_subrev_u32 v105, 192, v103
        v_min_u32 v103, v103, v105
        v_add_u32 v102, v102, v103
        v_and_b32 v103, 1, v101
        v_mul_u32_u24 v103, 12288, v103
        v_add_u32 v{vTm}, v102, v103
        v_lshlrev_b32 v102, 7, v100
        v_lshl_add_u32 v102, v101, 4, v102
        s_lshl_b32 s{sT1}, s{sWV}, 12
        s_add_u32 s{sT1}, s{sT1}, {L_PP}
        v_add_u32 v{vT2}, s{sT1}, v102
        s_mul_i32 s{sW1W}, s{sWV}, 3072""")

def c_dma(n, slot):
    if CFG.get('now1'): return []
    L=M(f"s_add_u32 s{sWo}, s{sX}, {n}\ns_and_b32 s{sWo}, s{sWo}, 7\ns_mul_i32 s{sWo}, s{sWo}, {64*2752}") if CFG['rot'] else M(f"s_mov_b32 s{sWo}, {n*64*2752}")
    for mat,S in ((0,SWG),(1,SWU)):
        L+=M(f"s_add_u32 m0, s{sW1W}, {slot+mat*12288}")
        for b in range(3): L+=M(f"buffer_load_dwordx4 v{vW1[b]}, {srd(S)}, s{sWo} offen offset:{1024*b} lds",f"c{n}")
    return LW(L,(slot,slot+WSL))
def c_read(n, slot):
    if CFG.get('now1'): return []
    L=M(f"v_add_u32 v{vWc0}, {slot}, v{vTa}\nv_add_u32 v{vWc1}, {slot}, v{vTm}")
    for sp in range(2):
        s=2*n+sp
        for hh in range(2):
            o=sp*6144+hh*768
            L+=M(f"""ds_read_b64_tr_b16 {W1h(s,0,hh)}, v{vWc0} offset:{o}
                     ds_read_b64_tr_b16 {W1h(s,1,hh)}, v{vWc0} offset:{o+12288}
                     ds_read_b64_tr_b16 {W1h(s,2,hh)}, v{vWc1} offset:{o}""",f"cr{n}")
    return LR(L,(slot,slot+WSL))
def pp_setup():
    return M(f"""s_lshl_b32 s{sT0}, s{sWV}, 8
        s_add_u32 s{sT0}, s{sT0}, s2
        s_mul_i32 s{sT1}, s{sT0}, 1525
        s_lshr_b32 s{sT1}, s{sT1}, 16
        s_mul_i32 s{sT2}, s{sT1}, 43
        s_sub_u32 s{sT2}, s{sT0}, s{sT2}
        s_lshl_b32 s{sPS}, s{sT2}, 15
        s_lshl_b32 s{sT3}, s{sT1}, 7
        s_add_u32 s{sPS}, s{sPS}, s{sT3}
        s_mul_i32 s{sPD}, s{sT1}, 86
        s_add_u32 s{sPD}, s{sPD}, s{sT2}
        s_lshl_b32 s{sPD}, s{sPD}, 11
        s_add_u32 s{sPD}, s{sPD}, {OFF_P2}
        s_lshl_b32 s{sPF}, s{sT0}, 7
        s_add_u32 s{sPF}, s{sPF}, {OFF_P2F}
        s_cmp_lt_u32 s{sT0}, 344
        s_cselect_b32 s{sPS}, s{sPS}, {OOB}
        s_cselect_b32 s{sPD}, s{sPD}, {OOB}
        s_cselect_b32 s{sPF}, s{sPF}, {OOB}
        s_lshl_b32 s{sT0}, s{sCT2}, 1
        s_add_u32 s{sT0}, s{sT0}, s{sCHH}
        s_mul_i32 s{sT0}, s{sT0}, 43
        s_mul_i32 s{sT1}, s{sKH}, 21
        s_add_u32 s{sT0}, s{sT0}, s{sT1}
        s_lshl_b32 s{sT0}, s{sT0}, 11
        s_add_u32 s{sW2B}, s{sT0}, {OFF_P2}
        s_cmp_eq_u32 s{sKH}, 0
        s_cselect_b32 s{sW20}, s{sW2B}, {OOB}""")
def pp_load():
    L=M(f"s_lshl_b32 s{sT3}, s{sWV}, 12")
    for r in range(4):
        L+=M(f"s_add_u32 m0, s{sT3}, {L_PP+1024*r}\ns_add_u32 s{sWo}, s{sPS}, {8192*r}")
        L+=M(f"buffer_load_dwordx4 v{vW2}, {srd(SWD)}, s{sWo} offen lds","pp")
    for x in L: x.priv=1
    return LW(L,(L_PP,L_PP+16384))
def touches():
    return M(f"""buffer_load_dword v{vCg}, v{vCg}, {srd(WS)}, 0 offen sc1
        buffer_load_dword v{vCs}, v{vCs}, {srd(WS)}, 0 offen sc1
        buffer_load_dword v{vFT}, v{vFT}, {srd(WS)}, 0 offen sc1""")[:2 if CFG['ft1'] else 3]
def extras(pos): return (pp_load() if CFG['ppat']==pos else [])+(touches() if CFG['tat']==pos else [])+(h_touch(TCHK()) if CFG['hat']==pos else [])
def pp_pack():
    L=[('WVM','pp')]
    for c in range(2):
        for t in range(2):
            for hh in range(2): L+=LR(M(f"ds_read_b64_tr_b16 {V(W2V+8*c+4*t+2*hh,2)}, v{vT2} offset:{hh*512+64*c+8*t}"),(L_PP,L_PP+16384))
    for x in L[1:]: x.priv=1
    S=[]
    for c in range(2):
        S+=M(f"s_add_u32 s{sT2}, s{sPD}, {c*43*2048}")
        for t in range(2): S+=M(f"buffer_store_dwordx4 {V(W2V+8*c+4*t)}, v{vL}, {srd(WS)}, s{sT2} offen offset:{1024*t} sc1","pps")
    return L,S
def W2E():
    n=sum(int(o[1:]) for v in PL().values() if isinstance(v,str) for o in v.split() if o[0]=='p')
    assert n%4==0 and n<=16
    return n//2
def w2_loads():
    L=[]
    ne=W2E()
    for i in list(range(22-ne,22))+list(range(22-ne)):
        so=sW20 if i==0 else (sW2B if i==1 else sPS)
        if i>=2 and i%2==0: L+=M(f"s_add_u32 s{sPS}, s{sW2B}, {i*2048}")
        for t in range(2): L+=M(f"buffer_load_dwordx4 {W2(i,t)}, v{vL}, {srd(WS)}, s{so} offen offset:{(i&1)*2048+t*1024} sc1",f"w2_{i}")
    return L
W2Q=[]
def w2_take(n):
    out=[]
    while W2Q and n>0:
        x=W2Q.pop(0); out.append(x)
        if x.kind=='vmem': n-=1
    return out

PLANS={
 0:dict(),
 1:dict(FL="i0", T2="i1", CV=[("a",20,"r0"),("d",40,"i2"),("a",84,"w1 b r1"),("d",100,"i3@0")], YS="i4@5", YA="w3 b r2 r3", GL="i5@1 w4 l b r4", ST="i6@2", PEND=[5,6], REST=["7@0"]),
 3:dict(FL="i0", T2="i1 w0 b r0", CV=[("d",2,"i2"),("d",68,"i3@0")], CE="w2", YS="r1 r2 i4@3", F1="r3", F2="i5@1", FB="r4", XD="", PEND=[5], REST=["6@2","7@0"]),
 6:dict(T2="i0", CV=[("d",40,"i1"),("d",90,"i2")], CE="w1", YS="i3@3 r0 r1", SA="w2", F1="r2 i4@0", F2="", FX="i5@1", SB="w4", FB="r3 r4", XD="", PEND=[5], REST=["6@2","7@0"]),
 8:dict(T0="i0", FL="i1", T2="i2 w1 b r0 r1", CV=[("d",20,"i3@0"),("d",68,"i4@1")], CE="w3", YS="i5@3 r2 r3", F1="r4", F2="i6@2", FX="i7@0", FB="r5", PEND=[6,7]),
 12:dict(T0="i0", FL="i1", T2="i2 w1 b r0 r1", CV=[("d",20,"i3@0"),("d",68,"i4@1")], CE="w3", YS="i5@3 r2 r3", F1="r4", F2="i6@2", FX="i7@0", FB="r5", XD="p6", PEND=[6,7]),
 13:dict(T0="i0", FL="i1", T2="i2", CV=[("a",6,"r0 r1"),("a",52,"L1 b"),("d",54,"i3@0"),("d",100,"i4@1")], CE="w3", YS="i5@3 r2 r3", SA="w4", F1="r4", F2="i6@2", FX="i7@0", FB="r5", PEND=[6,7]),
 14:dict(T0="i0", T2="i1", CV=[("a",6,"r0"),("d",24,"i2"),("d",70,"i3@0")], CE="w2", YS="i4@3 r1 r2", F1="r3", F2="i5@1", FX="i6@2", FB="r4", PEND=[5,6], REST=["7@0"]),
 15:dict(FL="i0", T2="i1", CV=[("a",6,"r0"),("d",4,"i2"),("a",40,"w1 L0 b r1"),("d",50,"i3@0"),("a",94,"w2 L1 b r2"),("d",98,"i4@1")], CE="w3", YS="i5@3 r3", SA="w4", F1="r4", F2="i6@2", FX="i7@0", FB="r5", PEND=[6,7]),
 16:dict(T1="i0", T2="i1", CV=[("a",6,"r0"),("d",4,"i2"),("a",40,"w1 L0 b r1"),("d",50,"i3@0"),("a",94,"w2 L1 b r2"),("d",98,"i4@1")], CE="w3", YS="i5@3 r3", SA="w4", F1="r4", F2="i6@2", FX="i7@0", FB="r5", PEND=[6,7]),
 22:dict(T0="i0", FL="i1", T2="i2", CV=[("a",6,"r0 r1"),("a",52,"L1 b"),("d",54,"i3@0"),("d",100,"i4@1")], CE="w3", YS="i5@3 r2 r3 w4 l b r4", F2="i6@2", FX="l b i7@1", FB="r5", XB="l b", PEND=[6,7]),
 23:dict(T0="i0", FL="i1", T2="i2", CV=[("a",6,"r0 r1"),("a",52,"L1 b"),("d",54,"i3@0"),("d",100,"i4@1")], CE="w3", YS="i5@3 r2 r3", F2="w4 l b i6@2 r4", FX="i7@0", FB="r5", XB="l b", PEND=[6,7]),
 24:dict(T0="i0", FL="i1", T2="i2", CV=[("a",6,"r0 r1"),("a",52,"L1 b"),("d",54,"i3@0"),("g",0,"i4@1")], CE="w3", SA="w4", YS="i5@3 r2 r3 r4", F2="l b i6@2", FX="i7@0", FB="r5", XB="l b", PEND=[6,7]),
 25:dict(T0="i0", FL="i1", T2="i2", CV=[("a",6,"r0 r1"),("a",44,"L1 b"),("d",46,"i3@0"),("d",72,"i4@1")], CE="w3", SA="w4", YS="i5@3 r2 r3 r4", F2="l b i6@2", FX="i7@0", FB="r5", XB="l b", PEND=[6,7]),
 26:dict(T0="i0", T1="i1", T2="i2", CV=[("a",6,"r0 r1"),("a",52,"L1 b"),("d",54,"i3@0"),("d",100,"i4@1")], CE="w3", SA="w4", YS="i5@3 r2 r3 r4", F2="l b i6@2", FX="i7@0", FB="r5", XB="l b", PEND=[6,7]),
 27:dict(T1="i0", FL="i1", T2="i2", CV=[("a",6,"r0 r1"),("a",52,"L1 b"),("d",54,"i3@0"),("d",100,"i4@1")], CE="w3", SA="w4", YS="i5@3 r2 r3 r4", F2="l b i6@2", FX="i7@0", FB="r5", XB="l b", PEND=[6,7]),
 28:dict(T0="i0", T1="i1", FL="i2", CV=[("a",6,"r0 r1"),("a",52,"L1 b"),("d",54,"i3@0"),("d",100,"i4@1")], CE="w3", SA="w4", YS="i5@3 r2 r3 r4", F2="l b i6@2", FX="i7@0", FB="r5", XB="l b", PEND=[6,7]),
 29:dict(T0="i0 i1", T2="i2", CV=[("a",6,"r0 r1"),("a",52,"L1 b"),("d",54,"i3@0"),("d",100,"i4@1")], CE="w3", SA="w4", YS="i5@3 r2 r3 r4", F2="l b i6@2", FX="i7@0", FB="r5", XB="l b", PEND=[6,7]),
 30:dict(T1="i0", FL="i1", T2="i2", CV=[("a",6,"r0 r1"),("a",44,"L1 w2 b r2"),("d",46,"i3@0"),("d",76,"i4@1"),("a",90,"L2 b"),("d",108,"i5@2")], CE="w3", SA="w4", YS="i6@3 r3 r4", F2="w5 l b i7@0 r5", FB="r6", XB="l b", PEND=[7]),
 31:dict(T1="i0", FL="i1", T2="i2", CV=[("a",6,"r0 r1"),("a",52,"L1 b"),("d",54,"i3@0"),("d",100,"i4@1")], CE="w3", SA="w4", YS="i5@3 r2 r3 r4", F2="l b i6@2", FB="r5", XB="l b", PEND=[6], REST=["7@0"]),
 33:dict(T1="i0", FL="i1", T2="i2", CV=[("a",6,"r0 r1"),("a",52,"L1 b"),("d",54,"i3@0"),("d",100,"i4@1")], CE="w3", SA="w4", YS="i5@3 r2 r3 r4", F2="l b i6@2", FB="i7@0 r5", XB="l b", PEND=[6,7]),
 34:dict(T1="i0", FL="i1", T2="i2", CV=[("a",6,"r0 r1"),("a",52,"L1 b"),("d",54,"i3@0"),("d",100,"i4@1")], CE="w3", SA="w4", YS="i5@3 r2 r3 r4", F2="l b i6@2 i7@0", FB="r5", XB="l b", PEND=[6,7]),
 35:dict(T1="i0", FL="i1", T2="i2", CV=[("a",6,"r0 r1"),("a",52,"L1 b"),("d",54,"i3@0"),("d",100,"i4@1")], CE="w3", SA="w4", YS="i5@3 i6@4 r2 r3 r4", FX="l b i7@0", SB="w6", FB="r5 r6", XB="l b", PEND=[7]),
 36:dict(T1="i0", FL="i1", T2="i2", CV=[("a",6,"r0 r1"),("a",52,"L1 b"),("d",54,"i3@0"),("d",100,"i4@1")], CE="w3", SA="w4", YS="i5@3 r2 r3 r4", F2="l b i6@2", FX="i7@0", FB="r5", XB="l b", XD="p4", PEND=[6,7]),
 37:dict(T1="i0", FL="i1", T2="i2", CV=[("a",6,"r0 r1"),("a",44,"L1 w2 b r2"),("d",46,"i3@0"),("d",66,"i4@1"),("a",80,"L2 b"),("d",88,"i5@2"),("a",100,"w3 b r3"),("a",120,"L3 b"),("d",126,"i6@0")], CE="w4", SA="w5", YS="i7@3 r4 r5", SB="w7", FB="r6 r7", XB="l b"),
 38:dict(T1="i0", FL="i1", T2="i2", CV=[("a",6,"r0 r1"),("a",44,"L1 w2 b r2"),("d",46,"i3@0"),("d",66,"i4@1"),("a",80,"L2 b"),("d",88,"i5@2")], CE="w4", SA="w5", YS="i6@3 r3 r4 r5", F2="l b i7@0", FB="r6", XB="l b", PEND=[7]),
 39:dict(T1="i0", FL="i1", T2="i2", CV=[("a",6,"r0 r1"),("a",44,"L1 w2 b r2"),("d",46,"i3@0"),("d",66,"i4@1"),("a",80,"L2 b"),("d",88,"i5@2")], CE="w4", Y0="i6@3", SA="w5", YS="i7@4 r3 r4 r5", SB="w7", FB="r6 r7", XB="l b"),
 40:dict(T1="i0", T2="i1", CV=[("d",24,"i2"),("a",6,"r0"),("a",44,"w1 L0 b r1"),("d","b44","i3@0"),("a",70,"L1 w2 b r2"),("d","b70","i4@1"),("a",96,"L2 w3 b"),("d","b96","i5@2")], CE="w4", SA="w5", YS="i6@3 r3 r4 r5", F2="l b i7@0", FB="r6", XB="l b", PEND=[7]),
 41:dict(FL="i0", T2="i1", CV=[("d",24,"i2"),("a",6,"r0"),("a",44,"w1 L0 b r1"),("d","b44","i3@0"),("a",70,"L1 w2 b r2"),("d","b70","i4@1"),("a",96,"L2 w3 b"),("d","b96","i5@2")], CE="w4", SA="w5", YS="i6@3 r3 r4 r5", F2="l b i7@0", FB="r6", XB="l b", PEND=[7]),
 42:dict(T0="i0", T2="i1", CV=[("d",24,"i2"),("a",6,"r0"),("a",44,"w1 L0 b r1"),("d","b44","i3@0"),("a",70,"L1 w2 b r2"),("d","b70","i4@1"),("a",96,"L2 w3 b"),("d","b96","i5@2")], CE="w4", SA="w5", YS="i6@3 r3 r4 r5", F2="l b i7@0", FB="r6", XB="l b", PEND=[7]),
 43:dict(T1="i0", FL="i1", T2="i2", CV=[("a",6,"r0 r1"),("a",44,"L1 w2 b r2"),("d",46,"i3@0"),("d",66,"i4@1"),("a",80,"L2 b"),("d",88,"i5@2")], CE="w4", SA="w5", YS="i6@4 r3 r4 r5", F2="l b i7@0", PEND=[6,7]),
 44:dict(T1="i0", FL="i1", T2="i2", CV=[("a",6,"r0 r1"),("a",44,"L1 w2 b r2"),("d",46,"i3@0"),("d",66,"i4@1"),("a",80,"L2 b"),("d",88,"i5@2")], CE="w4", SA="w5", YS="i6@4 r3 r4 r5", FX="l b i7@0", PEND=[6,7]),
 45:dict(T1="i0", FL="i1", T2="i2", CV=[("a",6,"r0 r1"),("a",44,"L1 w2 b r2"),("d",46,"i3@0"),("d",66,"i4@1"),("a",80,"L2 b"),("d",88,"i5@2")], CE="w4", SA="w5", YS="i6@4 r3 r4 r5", FB="i7@0", PEND=[6,7]),
 46:dict(T1="i0", FL="i1", T2="i2", CV=[("a",6,"r0 r1"),("a",44,"L1 w2 b r2"),("d",46,"i3@0"),("d",66,"i4@1"),("a",80,"L2 b"),("d",88,"i5@2")], CE="w4", SA="w5", YS="i6@3 r3 r4 r5", F2="l b x7@0", FB="r6", XB="l b", XD="y7", LATE=[7]),
 47:dict(T1="i0", FL="i1", T2="i2", CV=[("a",6,"r0 r1"),("a",44,"L1 w2 b r2"),("d",46,"i3@0"),("d",66,"i4@1"),("a",80,"L2 b"),("d",88,"i5@2")], CE="w4", SA="w5", YS="i6@3 r3 r4 r5", F2="l b x7@0", FX="y7", FB="r6", XB="l b", PEND=[7]),
 48:dict(T1="i0", FL="i1", T2="i2", CV=[("a",6,"r0 r1"),("a",44,"L1 w2 b r2"),("d",46,"i3@0"),("d",66,"i4@1"),("a",80,"L2 b"),("d",88,"i5@2")], CE="w4", SA="w5", YS="i6@3 r3 r4 r5", FB="r6", XB="l b", XD="i7@0", LATE=[7]),
 49:dict(T1="i0", FL="i1", T2="i2", CV=[("a",6,"r0 r1"),("a",44,"L1 w2 b r2"),("d",46,"i3@0"),("d",66,"i4@1"),("a",80,"L2 b"),("d",88,"i5@2")], CE="w4", SA="w5", Y0="x6@3", YS="y6 r3 r4 r5", F2="l b x7@0", FB="r6", XB="l b", XD="y7", LATE=[7]),
 50:dict(T1="i0", FL="i1", T2="i2", CV=[("a",6,"r0 r1"),("a",44,"L1 w2 b r2"),("d",46,"i3@0"),("d",66,"i4@1"),("a",80,"L2 b"),("d",88,"i5@2")], CE="w4", SA="w5", YS="i6@3 r3 r4 r5", F2="l b i7@0", FX="p2", FB="r6 p2", XB="l b", XD="p4", PEND=[7]),
 51:dict(T1="i0", FL="i1", T2="i2", CV=[("a",6,"r0 r1"),("a",44,"L1 w2 b r2"),("d",46,"i3@0"),("d",66,"i4@1"),("a",80,"L2 b"),("d",88,"i5@2")], CE="w4", SA="w5", YS="i6@3 r3 r4 r5", F2="l b i7@0", FX="p3", FB="r6 p3", XB="l b", XD="p6", PEND=[7]),
 52:dict(T1="i0", FL="i1", T2="i2", CV=[("a",6,"r0 r1"),("a",44,"L1 w2 b r2"),("d",46,"i3@0"),("d",66,"i4@1"),("a",80,"L2 b"),("d",88,"i5@2")], CE="w4", SA="w5", YS="i6@3 r3 r4 r5", F2="l b i7@0", FB="r6", XB="l b", XD="p8", PEND=[7]),
 53:dict(T1="i0", FL="i1", T2="i2", CV=[("a",6,"r0 r1"),("a",44,"L1 w2 b r2"),("d",46,"i3@0"),("d",66,"i4@1"),("a",80,"L2 b"),("d",88,"i5@2")], CE="w4", SA="w5", YS="i6@3 r3 r4 r5", F2="l b i7@0", FX="p4", FB="r6", XB="l b", XD="p4", PEND=[7]),
 54:dict(T1="i0", FL="i1", T2="i2", CV=[("a",6,"r0 r1"),("a",44,"L1 w2 b r2"),("d",46,"i3@0"),("d",66,"i4@1"),("a",80,"L2 b"),("d",88,"i5@2")], CE="w4", SA="w5", YS="i6@3 r3 r4 r5", F2="l b i7@0", FA="p4", FX="p4", FB="r6 p4", XB="l b", XD="p4", PEND=[7]),
 17:dict(T0="i0", FL="i1", T2="i2", CV=[("a",6,"r0 r1"),("a",52,"L1 b"),("d",54,"i3@0"),("d",100,"i4@1")], CE="w3", Y0="i5@3", SA="w4", YS="r2 r3 r4", FX="l b i6@2", FB="i7@0 r5", PEND=[6,7]),
 18:dict(T0="i0", FL="i1", T2="i2", CV=[("a",6,"r0 r1"),("a",52,"L1 b"),("d",54,"i3@0"),("d",100,"i4@1")], CE="w3", SA="w4", YS="i5@3 r2 r3 r4", F2="l b i6@2", FX="i7@0", FB="r5", XB="l b", PEND=[6,7]),
 20:dict(T0="i0", FL="i1", T2="i2", CV=[("a",6,"r0 r1"),("a",52,"L1 b"),("d",54,"i3@0"),("d",100,"i4@1")], CE="w3", SA="w4", YS="i5@3 r2 r3 r4", FA="l b i6@2", FX="i7@0", FB="r5", PEND=[6,7]),
 21:dict(T0="i0", FL="i1", T2="i2", CV=[("a",6,"r0 r1"),("a",52,"L1 b"),("d",54,"i3@0"),("d",100,"i4@1")], CE="w3", Y0="i5@3", SA="w4", YS="r2 r3 r4 l b i6@2", FX="i7@0", FB="r5", PEND=[6,7]),
 19:dict(T0="i0", FL="i1", T2="i2", CV=[("a",6,"r0 r1"),("a",52,"L1 b"),("d",54,"i3@0"),("d",100,"i4@1")], CE="w3", Y0="i5@3", SA="w4", YS="r2 r3 r4", FA="l b i6@2", FX="i7@0", FB="r5", PEND=[6,7]),
 10:dict(T0="i0", T2="i1 w0 b r0", CV=[("d",20,"i2"),("d",68,"i3@0")], CE="w2", YS="i4@3 r1 r2", F1="r3", F2="i5@1", FX="i6@2", FB="r4", PEND=[5,6], REST=["7@0"]),
 11:dict(T0="i0", T1="i1", T2="i2 w1 b r0 r1", CV=[("d",14,"i3@0"),("d",56,"i4@1"),("a",70,"w2 b r2"),("a",96,"L2 b"),("d",100,"i5@2")], CE="w4", YS="i6@3 r3 r4", SA="w5", F1="r5", F2="i7@0", FB="r6", XD="p4", PEND=[7]),
 7:dict(FL="i0", T2="i1 w0 b r0", CV=[("d",20,"i2"),("d",68,"i3@0")], CE="w2", YS="i4@3 r1 r2", F1="r3", F2="i5@1", FX="i6@2", FB="r4", PEND=[5,6], REST=["7@0"]),
 4:dict(FL="i0", T2="i1 w0 b r0", CV=[("d",2,"i2"),("d",50,"i3@0")], CE="w2", YS="i4@3 r1 r2", F1="r3", F2="i5@1", FX="i6@2", FB="r4", PEND=[5,6], REST=["7@0"]),
 5:dict(T1="i0", FL="", T2="i1 w0 b r0", CV=[("d",2,"i2"),("d",46,"i3@0"),("a",60,"w1 b r1"),("a",84,"L1 b"),("d",92,"i4@1")], CE="w3", YS="i5@3 r2 r3", SA="w4", F1="r4", F2="i6@2", FX="i7@0", FB="r5", PEND=[6,7]),
 2:dict(FL="i0", T2="i1", CV=[("a",20,"r0"),("d",30,"i2"),("a",70,"w1 b r1"),("d",80,"i3@0"),("a",124,"w2 b r2")], YS="i4@5 i5@1", YA="w4 b r3 r4", GL="i6@2 w5 l b r5", ST="i7@0", PEND=[6,7], FA="p4", FB="p4", XD="p4"),
 9:dict(ST="i0 i1 "+" ".join(f"w{n} l b "+(f"i{n+2} " if n+2<8 else "")+f"r{n}" for n in range(8))+" l b"),
}
slot_of={}
def wops(txt):
    L=[]
    for op in txt.split():
        at=None
        if '@' in op: op,at=op.split('@'); at=int(at)
        k=int(op[1:]) if len(op)>1 else None
        if op[0]=='i': slot_of[k]=SLOT[at if at is not None else k%3]; L+=c_dma(k,slot_of[k])
        elif op[0]=='x': slot_of[k]=SLOT[at if at is not None else k%3]; L+=c_dma(k,slot_of[k])[:-4]
        elif op[0]=='y': d=c_dma(k,slot_of[k]); L+=d[:-8]+d[-4:]
        elif op[0]=='r': L+=c_read(k,slot_of[k])
        elif op[0]=='w': L.append(('WVM',f"c{k}"))
        elif op[0]=='l': L+=M("s_waitcnt lgkmcnt(0)")
        elif op[0]=='L': L.append(('WLG',f"cr{k}"))
        elif op[0]=='b': L+=M("s_barrier")
        elif op[0]=='p': L+=w2_take(k)
    return L
def PL(): return eval(CFG['plan']) if isinstance(CFG['plan'],str) else PLANS[CFG['plan']]
def Wp(a,point): a.flat(wops(PL().get(point,"")))

def toeplitz(a):
    a("s_waitcnt lgkmcnt(0)\ns_barrier")
    a(f"s_mul_i32 s{sT0}, s{sKH}, {UCH}\ns_add_u32 s{sT0}, s{sT0}, {L_U+512}\nv_add_u32 v54, s{sT0}, v52\nv_add_u32 v78, s{sT0}, v53")
    for rho,(va,off) in enumerate(((54,0),(54,1024),(78,0))):
        d=56+8*rho
        a(f"ds_read_b128 {V(d)}, v{va} offset:{off}\nds_read_b64 {V(d+4,2)}, v{va} offset:{off+16}","raw"); a.lr(2,(L_U,L_U+2*UCH))
    a(f"s_mul_i32 s{sT0}, s{sKH}, {TCH}\ns_add_u32 s{sT0}, s{sT0}, {L_TOEP+32}")
    a(f"v_add_u32 v52, s{sT0}, v52\nv_add_u32 v53, s{sT0}, v53")
    for rho,(va,off) in enumerate(((52,0),(52,1024),(53,0))):
        d=56+8*rho; t=100+12*(rho%2)
        a(f"ds_write_b128 v{va}, {V(d)} offset:{off}")
        for i in range(4): a(f"v_alignbit_b32 v{t+i}, v{d+i+1}, v{d+i}, 16")
        a(f"ds_write_b128 v{va}, {V(t)} offset:{off+TCP}")
        for i in range(4): a(f"v_mov_b32 v{t+4+i}, v{d+i+1}")
        a(f"ds_write_b128 v{va}, {V(t+4)} offset:{off+2*TCP}")
        for i in range(4): a(f"v_alignbit_b32 v{t+8+i}, v{d+i+2}, v{d+i+1}, 16")
        a(f"ds_write_b128 v{va}, {V(t+8)} offset:{off+3*TCP}"); a.lw(16,(L_TOEP,L_TOEP+2*TCH))
        if rho==1: a.waitlg("raw"); a("s_barrier")

def p0(a):
    a.waitvm("kv"); a("s_barrier")
    a.stamp("kv landed","f")
    KR=84; VR=94
    for i in range(5):
        R=4+4*i; a(f"ds_read_b64_tr_b16 {V(KR+2*i,2)}, v83 offset:{L_K+(R>>3)*CHP+(R&7)*128}")
    for i in range(4):
        R=4*i; a(f"ds_read_b64_tr_b16 {V(VR+2*i,2)}, v83 offset:{L_V+(R>>3)*CHP+(R&7)*128}")
    a.lr(9,(L_K,L_V+8*CHP))
    Wp(a,'T0')
    O=16
    if CFG['dot2']:
        a("""v_alignbit_b32 v40, v80, v80, 16
            v_alignbit_b32 v41, v81, v81, 16
            v_and_b32 v42, 0xffff, v80
            v_and_b32 v43, 0xffff0000, v81
            v_and_b32 v44, 0xffff0000, v80
            v_and_b32 v45, 0xffff, v81
            v_or_b32 v44, v44, v45""")
        for i in range(8):
            P=KR+2+i
            a(f"v_dot2_f32_bf16 v{O+2*i}, v{P}, v42, 0\nv_dot2_f32_bf16 v{O+2*i+1}, v{P}, v40, 0")
        for i in range(8):
            P=KR+2+i
            a(f"v_dot2_f32_bf16 v{O+2*i}, v{P-1}, v44, v{O+2*i}\nv_dot2_f32_bf16 v{O+2*i+1}, v{P-1}, v41, v{O+2*i+1}")
        for i in range(8): a(f"v_dot2_f32_bf16 v{O+2*i}, v{KR+i}, v43, v{O+2*i}")
    else:
        a("v_lshlrev_b32 v40, 16, v80\nv_and_b32 v41, 0xffff0000, v80\nv_lshlrev_b32 v42, 16, v81\nv_and_b32 v43, 0xffff0000, v81")
        K=lambda t: 108+t-2
        for i in range(10):
            if i>0: a(f"v_lshlrev_b32 v{102+2*i}, 16, v{KR+i}")
            a(f"v_and_b32 v{103+2*i}, 0xffff0000, v{KR+i}")
        for t in range(16):
            a(f"v_mul_f32 v{O+t}, v40, v{K(t)}")
            a(f"v_fmac_f32 v{O+t}, v41, v{K(t-1)}")
            a(f"v_fmac_f32 v{O+t}, v42, v{K(t-2)}")
            a(f"v_fmac_f32 v{O+t}, v43, v{K(t-3)}")
    for i in range(8):
        a(f"v_lshlrev_b32 v102, 16, v{VR+i}\nv_and_b32 v103, 0xffff0000, v{VR+i}")
        if CFG['pk']: a(f"v_pk_mul_f32 {V(O+2*i,2)}, {V(O+2*i,2)}, v[102:103]")
        else: a(f"v_mul_f32 v{O+2*i}, v{O+2*i}, v102\nv_mul_f32 v{O+1+2*i}, v{O+1+2*i}, v103")
    for o in range(2):
        for d in range(4): a(f"v_cvt_pk_bf16_f32 v{KR+4*o+d}, v{O+8*o+7-2*d}, v{O+8*o+6-2*d}")
    for d in range(4): a(f"v_mov_b32 v{102+d}, v{KR+4+d}")
    for d in range(4): a(f"v_mov_b32_dpp v{KR+4+d}, v{KR+d} row_ror:8 row_mask:0xf bank_mask:0x3")
    for d in range(4): a(f"v_mov_b32_dpp v{KR+d}, v{102+d} row_ror:8 row_mask:0xf bank_mask:0xc")
    a(f"s_mov_b32 s{sT0}, 32768")
    a(f"buffer_store_dwordx4 {V(KR)}, v55, {srd(WS)}, 0 offen\nbuffer_store_dwordx4 {V(KR+4)}, v55, {srd(WS)}, s{sT0} offen","kvs")
    if CFG['utouch']==1: a(f"buffer_load_dword v{vTch}, v{vTch}, {srd(WS)}, 0 offen sc1")
    a.stamp("p0 computed","f")
    if CFG['clr']==1: clears(a)
    Wp(a,'T1')
    a(f"s_mov_b32 s{sCH}, s{sHELLO}\ns_getreg_b32 s{sHELLO}, hwreg(HW_REG_XCC_ID, 0, 4)")
    a(f"v_readfirstlane_b32 s{sTAG}, v51")
    a(f"s_add_u32 s{sTAG}, s{sTAG}, 0x9E3779B0\ns_and_b32 s{sTAG}, s{sTAG}, 0xFFFFFFF0\ns_and_b32 s{sHELLO}, s{sHELLO}, 15\ns_or_b32 s{sHELLO}, s{sHELLO}, s{sTAG}")
    a(f"v_mov_b32 v{vTAG}, s{sTAG}\nv_mov_b32 v98, s{sHELLO}")
    a.ext(pp_setup())
    a(f"""s_add_u32 s{sFLH}, s{sFLG}, s{sFL}
        s_lshl_b32 s{sC4}, s{sCHH}, 12
        s_mul_i32 s{sC3}, s{sCHH}, 3072
        s_lshl_b32 s{sM4}, s{sKH}, 14
        s_add_u32 s{sM3}, s{sM4}, s{sC3}
        s_add_u32 s{sM4}, s{sM4}, s{sC4}""")
    a(f"s_lshl_b32 s{sT0}, s{sX}, 2\ns_add_u32 s{sT1}, s{sT0}, s{sWV}\ns_lshl_b32 s{sT1}, s{sT1}, 5\ns_add_u32 s{sT1}, s{sT1}, s{sR}\ns_lshl_b32 s{sT1}, s{sT1}, 2\ns_add_u32 s{sT1}, s{sT1}, {OFF_F1L}")
    a(f"s_lshr_b32 s{sCK1}, s{sR}, 3\ns_add_u32 s{sCK1}, s{sCK1}, s{sT0}\ns_lshl_b32 s{sCK1}, s{sCK1}, 7\ns_add_u32 s{sCK1}, s{sCK1}, {OFF_F1L}")
    a(f"v_and_b32 v97, 31, v{vLane}\nv_lshlrev_b32 v97, 2, v97\ns_mov_b32 s{sMODE}, 0")
    if CFG['tpre']: a.waitvm("ssm"); toeplitz(a)
    a.waitvm("kvs")
    a(f"buffer_store_dword v98, v{vOne}, {srd(WS)}, s{sT1} offen")
    a.stamp("kvT published","f")
    if CFG['clr']==3: clears(a)
    if CFG['qat']==0: a(f"buffer_load_dwordx4 {V(vQT)}, v{vTok}, {srd(SQ_)}, 0 offen\nbuffer_load_dwordx4 {V(vQT+4)}, v{vTok}, {srd(SQ_)}, s{sMB} offen")
    a.flat(extras(0))
    Wp(a,'FL')
    if not CFG['tpre']: toeplitz(a)
    a(f"""s_lshl_b32 s{sT0}, s{sCH}, 12
        s_lshl_b32 s{sT1}, s{sCHH}, 11
        s_add_u32 s{sT0}, s{sT0}, s{sT1}
        s_add_u32 s{sT0}, s{sT0}, {OFF_KVT}
        s_mul_i32 s{sUO}, s{sKH}, {UCH}
        s_add_u32 s{sT1}, s{sT1}, s{sUO}""")
    a.stamp("toeplitz","f")
    o=Asm(); o.lab("L_f1r"); o(f"s_mov_b32 s{sCNT}, 0")
    if CFG['stamps']: site_names.append("f1"); o(f"s_bitset1_b32 s98, {len(site_names)-1}")
    o.lab("L_f1l")
    o(f"""buffer_load_dword v99, v97, {srd(WS)}, s{sCK1} offen sc1
        s_waitcnt vmcnt(0)
        v_cmp_ne_u32 vcc, s{sHELLO}, v99
        s_cbranch_vccz L_f1b
        s_add_u32 s{sCNT}, s{sCNT}, 1
        s_cmp_lt_u32 s{sCNT}, {CFG['f1max']}
        s_cbranch_scc1 L_f1l""")
    o.lab("L_f1s")
    o(f"""s_mov_b32 s{sMODE}, 1
        s_mov_b32 s{sT2}, 32768
        buffer_store_dwordx4 {V(KR)}, v55, {srd(WS)}, 0 offen sc1
        buffer_store_dwordx4 {V(KR+4)}, v55, {srd(WS)}, s{sT2} offen sc1
        s_lshl_b32 s{sT2}, s{sX}, 2
        s_add_u32 s{sT3}, s{sT2}, s{sWV}
        s_lshl_b32 s{sT3}, s{sT3}, 5
        s_add_u32 s{sT3}, s{sT3}, s{sR}
        s_lshl_b32 s{sT3}, s{sT3}, 7
        s_add_u32 s{sT3}, s{sT3}, {OFF_F1}
        s_lshr_b32 s{sCK1}, s{sR}, 3
        s_add_u32 s{sCK1}, s{sCK1}, s{sT2}
        s_lshl_b32 s{sCK1}, s{sCK1}, 12
        s_add_u32 s{sCK1}, s{sCK1}, {OFF_F1}
        v_lshlrev_b32 v97, 5, v97
        s_waitcnt vmcnt(0)
        buffer_store_dword v{vTAG}, v{vOne}, {srd(WS)}, s{sT3} offen sc1
        s_mov_b32 s{sCNT}, 0""")
    o.lab("L_f1g")
    o(f"""buffer_load_dword v99, v97, {srd(WS)}, s{sCK1} offen sc1
        s_waitcnt vmcnt(0)
        v_cmp_ne_u32 vcc, s{sTAG}, v99
        s_cbranch_vccz L_f1b
        s_add_u32 s{sCNT}, s{sCNT}, 1
        s_cmp_lt_u32 s{sCNT}, {POLLMAX}
        s_cbranch_scc1 L_f1g
        s_branch L_f1b""")
    a.ool.append(o.L)
    ck=M(f"v_cmp_ne_u32 vcc, s{sHELLO}, v99\ns_cbranch_vccnz L_f1r\nL_f1b:") if CFG['slow']!=2 else M("s_waitcnt vmcnt(0)\ns_branch L_f1s\nL_f1b:")
    a(f"buffer_load_dword v99, v97, {srd(WS)}, s{sCK1} offen sc1")
    a(f"""s_lshl_b32 s{sT3}, s{sCHH}, 8
        s_sub_u32 s{sT2}, s{sUO}, s{sT3}
        s_add_u32 s{sT2}, s{sT2}, {L_U+480-192}
        v_lshlrev_b32 v141, 5, v{vJ}
        v_lshl_add_u32 v141, v{vQ}, 4, v141
        v_add_u32 v141, s{sT2}, v141
        v_add_u32 v142, 1, v{vJ}
        v_and_b32 v143, 3, v142
        v_mul_u32_u24 v143, {TCP}, v143
        v_lshrrev_b32 v142, 2, v142
        v_lshl_add_u32 v142, v142, 3, v143
        v_lshlrev_b32 v143, 4, v{vQ}
        v_sub_u32 v142, v142, v143
        s_mul_i32 s{sT2}, s{sKH}, {TCH}
        s_add_u32 s{sT2}, s{sT2}, s{sT3}
        s_add_u32 s{sT2}, s{sT2}, {L_TOEP+48}
        v_add_u32 v142, s{sT2}, v142
        s_add_u32 m0, s{sT1}, {L_U+512}""")
    a.flat(ck)
    a.stamp("f1 seen","f")
    a(f"buffer_load_dwordx4 v{vL}, {srd(WS)}, s{sT0} offen sc1 lds","u")
    a(f"buffer_load_dwordx4 v{vL}, {srd(WS)}, s{sT0} offen offset:1024 sc1 lds","u")
    a.lw(2,(L_U+512,L_U+UCH),(L_U+UCH+512,L_U+2*UCH))
    if CFG['clr']==4: clears(a,"clr")
    if CFG['clr'] in(1,3): a(f"buffer_store_dword v98, v{vOne}, {srd(WS)}, s{sHF} offen sc1")
    a.flat(extras(5))
    Wp(a,'T2')
    a(f"v_lshlrev_b32 v{vD}, 16, v{vD}")
    a.waitvm("u"); a("s_waitcnt lgkmcnt(0)\ns_barrier")
    a.stamp("U landed","f")

def conv_backbone():
    ACC=40; GR=72; Ureg=[16,20,24,28,32,36,104,108]
    seq=[]
    for it in range(4):
        o=4*(it&1)
        for e in range(4):
            for w in range(3-e,-1,-1): seq.append((w+e,o+e,o+w,('G',e,it,1),('U',w,it,1),it==0 and e==0))
    n1=len(seq)
    for it in range(4):
        pairs=[(e,w) for e in range(8) for w in range(7-e,max(0,4-e)-1,-1)]
        if it==0: pairs=[p for p in pairs if p[0]<4 and p[1]<4]+[p for p in pairs if not(p[0]<4 and p[1]<4)]
        seen=set()
        for e,w in pairs:
            seq.append((w+e,e,w,('G',e,it,2),('U',w,it,2),it==0 and (w+e) not in seen)); seen.add(w+e)
    reads={}; lastuse={}
    for n,(c,g,u,gid,uid,f) in enumerate(seq):
        for ph,i in ((('G',g),gid),(('U',u),uid)):
            if i not in reads: reads[i]=dict(ph=ph,need=n,earliest=lastuse.get(ph,-1))
            lastuse[ph]=n
    def emit(i):
        kind,k,it,_=i; ph=reads[i]['ph'][1]
        if kind=='U': return [LR(mk(f"ds_read_b128 {V(Ureg[ph])}, v141 offset:{512*k+192-64*it}"),(L_U,L_U+2*UCH))]
        return LR([mk(f"ds_read_b64 {V(GR+4*ph,2)}, v142 offset:{512*k+64*it}"),mk(f"ds_read_b64 {V(GR+4*ph+2,2)}, v142 offset:{512*k+64*it+8}")],(L_TOEP,L_TOEP+2*TCH))
    todo=[]
    for i in sorted(reads,key=lambda i:reads[i]['need']):
        for x in emit(i): todo.append((reads[i]['earliest'],reads[i]['need'],x))
    bb=[x for e,n,x in todo if n<4]; todo=[t for t in todo if t[1]>=4]
    for n,(c,g,u,gid,uid,f) in enumerate(seq):
        bb.append(mk(f"v_mfma_f32_16x16x32_bf16 {V(ACC+4*c)}, {V(GR+4*g)}, {V(Ureg[u])}, {'0' if f else V(ACC+4*c)}"))
        k=0
        while True:
            cand=[t for t in todo if t[0]<=n]
            if not cand: break
            t=cand[0]
            if k>=1 and not(k<2 and t[1]-n<=CFG['cla']) and not t[1]-n<=2: break
            bb.append(t[2]); todo.remove(t); k+=1
    assert not todo
    return bb,n1

def conv_epi(st):
    ACC=40+16*st; P=vPK+4*st; R=(L_CX,L_CX+16384)
    W=LW([mk(f"ds_write_b128 v{vCXw}, {V(ACC+4*k)} offset:{1024*k}",f"cx{st}") for k in range(4)],R)
    K=LR([mk(f"ds_read_b64 {V(vKD+2*k,2)}, v{vKV} offset:{2048*st+512*k}") for k in range(2)],(L_U,L_U+2*UCH))
    L=[]
    for k in range(2): L+=LR(M(f"ds_read_b128 {V(ACC+4*k)}, v{vCXo} offset:{1024*k}\nds_read_b128 {V(ACC+8+4*k)}, v{vCXp} offset:{1024*k}",f"cy{st}"),R)
    for k in range(2):
        A=ACC+4*k
        L+=M(f"v_and_b32 v{vUP}, 0xffff0000, v{vKD+1+2*k}\nv_lshlrev_b32 v{vUP+1}, 16, v{vKD+1+2*k}\nv_and_b32 v{vUP+2}, 0xffff0000, v{vKD+2*k}\nv_lshlrev_b32 v{vUP+3}, 16, v{vKD+2*k}")
        for r in range(4): L+=M(f"v_fmac_f32 v{A+r}, v{vD}, v{vUP+r}")
        if st==1 and CFG['pk']:
            for r in (0,2): L+=M(f"v_pk_add_f32 {V(A+r,2)}, {V(A+r,2)}, {V(A+8+r,2)}")
        else:
            for r in range(4): L+=M(f"v_add_f32 v{A+r}, v{A+r}, v{A+8+r}")
        L+=M(f"v_cvt_pk_bf16_f32 v{P+2*k}, v{A}, v{A+1}\nv_cvt_pk_bf16_f32 v{P+1+2*k}, v{A+2}, v{A+3}")
    L+=M(f"s_nop 0\nv_permlane16_swap_b32 v{P}, v{P+2}\nv_permlane16_swap_b32 v{P+1}, v{P+3}")
    L+=M(f"buffer_store_dwordx4 {V(P)}, v{vYo}, {srd(WS)}, {'0' if st==0 else 's%d'%sMB} offen sc1",f"yt{st}")
    return W+K,L

def y_check(a,mu):
    D=vGD+4*mu
    return a.check([f"buffer_load_dwordx4 {V(D)}, v{vGA}, {srd(WS)}, {'0' if mu==0 else 's%d'%sMB} offen sc1"],
         [f"v_max3_u32 v{vGC}, v{D}, v{D+1}, v{D+2}",f"v_max_u32 v{vGC}, v{vGC}, v{D+3}",f"v_cmp_eq_u32 vcc, -1, v{vGC}"],"yt")
def y_stage(a,mu,mid=[]):
    a(f"ds_write_b128 v{vGW}, {V(vGD+4*mu)} offset:{4096*mu}"); a.lw(1,(L_YS+4096*mu,L_YS+4096*mu+4096))
    a.flat(mid)
    a("s_waitcnt lgkmcnt(0)\ns_barrier")
    for hh in range(2):
        a(f"ds_read_b64_tr_b16 {V(vYY[mu]+2*hh,2)}, v{vGT} offset:{4096*mu+256*hh}")
        a.lr(1,(L_YS+4096*mu,L_YS+4096*mu+4096))

def x0_state(mu):
    S=SX[mu]; L=M(f"v_mov_b32 v{vGC}, 0x3f803f80")
    for i in range(4): L+=M(f"v_lshlrev_b32 v{vXst[mu]+2*i}, 16, v{vQT+4*mu+i}\nv_and_b32 v{vXst[mu]+2*i+1}, 0xffff0000, v{vQT+4*mu+i}")
    for i in range(4):
        q=vQT+4*mu+i
        L+=M(f"v_dot2_f32_bf16 v{S}, v{q}, v{vGC}, {'0' if i==0 else 'v%d'%S}\nv_dot2_f32_bf16 v{S+1}, v{q}, v{q}, {'0' if i==0 else 'v%d'%(S+1)}")
    return L

def conv(a):
    C=CFG
    bb,n1=conv_backbone()
    qld=M(f"""buffer_load_dwordx4 {V(vQT)}, v{vTok}, {srd(SQ_)}, 0 offen
        buffer_load_dwordx4 {V(vQT+4)}, v{vTok}, {srd(SQ_)}, s{sMB} offen
        buffer_load_dword v{vCg}, v{vCg}, {srd(WS)}, 0 offen sc1
        buffer_load_dword v{vCs}, v{vCs}, {srd(WS)}, 0 offen sc1
        buffer_load_dword v{vFT}, v{vFT}, {srd(WS)}, 0 offen sc1""")
    hl,hc=a.check([f"buffer_load_dwordx4 {V(112)}, v{vHa}, {srd(WS)}, 0 offen sc1"],
         [f"v_xor_b32 v113, s{sTAG}, v113",f"v_xor_b32 v114, s{sTAG}, v114",f"v_xor_b32 v115, s{sTAG}, v115",
          "v_or3_b32 v113, v113, v114, v115",f"v_xor_b32 v114, s{sTAG}, v112","v_or_b32 v113, v113, v114","v_cmp_lt_u32 vcc, 15, v113"],"h2")
    pk,ps=pp_pack()
    dmas=paced((qld[:2] if C['qat']==1 else [])+extras(1),3); fill=[]
    for kind,at,ops in PL().get('CV',[]):
        it=wops(ops)
        if kind=='d': dmas+=[('AT',at) if isinstance(at,int) else ('AFTER',at)]+paced(it,C['cgap'])
        elif kind=='g': dmas+=[('AFTER','g0')]+paced(it,3)
        else:
            k=[i for i,x in enumerate(it) if isinstance(x,I) and x.op=='s_barrier']
            if k: it=[it[:k[0]+1],('SYNC',f'b{at}')]+it[k[0]+1:]
            fill+=[('AT',at)]+it
    dmas+=[('AT',C['hmid'])]+paced(extras(6),3)
    w0,e0=conv_epi(0)
    gl,a.gcA=y_check(a,0)
    crit=([('AT',C['chl'])]+hl+[('SYNC','hl')] if C['hpri'] else [])+[('AT',n1+2),('DENS',C['cdens'])]+w0+[('GAP',3),[('WLG','cx0'),mk("s_barrier")]]+e0[:-1]+([] if C['clr']==4 else [('AFTER','hl')])+e0[-1:]+[('DENS',0),('SYNC','y0'),('AFTER','hl',C['chc'])]+hc \
        +[[('WLG','cy0'),mk("s_barrier")],('AFTER','y0',C['cack']),('WVM','yt0')]+gl+[('SYNC','g0')]
    ann=[('AT',C['cann']),('WVM','clr')]+M(f"buffer_store_dword v{vTAG}, v{vOne}, {srd(WS)}, s{sHF} offen sc1") if C['clr']==4 else []
    third=ann+([] if C['hpri'] else [('AT',C['chl'])]+hl+[('SYNC','hl')])+[('AFTER','g0'),('AFTER','dd')]+paced((qld[:2] if C['qat']==2 else [])+extras(2),2)
    fourth=[('AFTER','g0')]+pk+[('GAP',4)]+paced(ps,3) if C['pkat']==3 else []
    a.weave(bb,crit,dmas+[('SYNC','dd')],fill,third,fourth,slots=C['cslots'],name='CV')
    a.stamp("conv mfma done","f")
    w1,e1=conv_epi(1)
    if CFG.get('trace')=='CV': a("v_mov_b32 v194, v140")
    if C['afirst']:
        a.flat(w1); a.flat(x0_state(0)); a.flat(a.gcA)
        a.stamp("yT stored","f"); a.stamp("yA gathered","f")
        y_stage(a,0,wops(PL().get('CE',"")))
    else:
        Wp(a,'CE')
        a.flat(w1); a("s_waitcnt lgkmcnt(0)\ns_barrier"); a.flat(e1)
        a.stamp("yT stored","f")
        Wp(a,'Y0')
        a.flat(x0_state(0))
        a.flat(a.gcA)
        a.stamp("yA gathered","f")
        y_stage(a,0,wops(PL().get('SA',"")))
    Wp(a,'ST')
    if CFG['slow']: a(f"s_cmp_lg_u32 s{sMODE}, 0\ns_cbranch_scc1 L_slow")

def unpackY(mu,T):
    L=[]
    for i in range(4): L+=M(f"v_lshlrev_b32 v{T+2*i}, 16, v{vYY[mu]+i}\nv_and_b32 v{T+2*i+1}, 0xffff0000, v{vYY[mu]+i}")
    return L
def treduce(s0,s1,s2,s3,gap=[]):
    return M(f"v_permlane32_swap_b32 v{s0}, v{s2}\nv_permlane32_swap_b32 v{s1}, v{s3}\nv_add_f32 v{s0}, v{s0}, v{s2}\nv_add_f32 v{s1}, v{s1}, v{s3}")+gap+M(f"v_permlane16_swap_b32 v{s0}, v{s1}\nv_add_f32 v{s0}, v{s0}, v{s1}")

SX=[104,106]
def fin1a(mu,S=None):
    X=vXst[mu]; S=SX[mu] if S is None else S
    L=M(f"v_add_f32 v{S}, v{X}, v{X+1}\nv_mul_f32 v{S+1}, v{X}, v{X}")
    for e in range(1,8):
        if e>1: L+=M(f"v_add_f32 v{S}, v{S}, v{X+e}")
        L+=M(f"v_fmac_f32 v{S+1}, v{X+e}, v{X+e}")
    return L
def fin1(a, layer, mu, T, unpacked=False, S=None):
    X=vXst[mu]; L=[] if unpacked else unpackY(mu,T); S=T+8 if S is None else S
    s0=SX[mu] if layer==0 else S
    A=[] if layer==0 else fin1a(mu,S)
    Bq=M(f"v_mul_f32 v{S+2}, v{X}, v{T}\nv_add_f32 v{S+3}, v{T}, v{T+1}")
    for e in range(1,8):
        Bq+=M(f"v_fmac_f32 v{S+2}, v{X+e}, v{T+e}")
        if e>1: Bq+=M(f"v_add_f32 v{S+3}, v{S+3}, v{T+e}")
    while A or Bq:
        if A: L.append(A.pop(0))
        if Bq: L.append(Bq.pop(0))
    L+=treduce(s0,s0+1,S+2,S+3,M(f"s_add_u32 s{sT0}, s{sGR}, {(layer*2+mu)*262144}"))
    L+=M(f"buffer_store_dword v{s0}, v{vGs}, {srd(WS)}, s{sT0} offen{a.sc}")
    return L

def fin2(a, layer, mu, T, Y=None, pk=False):
    X=vXst[mu]; Gd=T; up=unpackY(mu,T+16) if Y is None else []; Y=T+16 if Y is None else Y
    ld,ck=a.check([f"buffer_load_dwordx4 {V(Gd+4*i)}, v{vGl}, {srd(WS)}, s{sCK2} offen offset:{256*i} sc1" for i in range(4)],
         ([f"v_max3_u32 v{PT}, v{Gd}, v{Gd+1}, v{Gd+2}"]+[f"v_max3_u32 v{PT}, v{PT}, v{Gd+3+2*i}, v{Gd+4+2*i}" for i in range(6)]+[f"v_max_u32 v{PT}, v{PT}, v{Gd+15}"])+[f"v_cmp_eq_u32 vcc, -1, v{PT}"],"gr")
    ld=M(f"s_add_u32 s{sCK2}, s{sGRl}, {(layer*2+mu)*262144}")+ld+up
    L=list(ck)
    P2=lambda r: V(r,2)
    if pk:
        for k in (0,2): L+=M(f"v_pk_add_f32 {P2(Gd+k)}, {P2(Gd+k)}, {P2(Gd+4+k)}\nv_pk_add_f32 {P2(Gd+8+k)}, {P2(Gd+8+k)}, {P2(Gd+12+k)}")
        for k in (0,2): L+=M(f"v_pk_add_f32 {P2(Gd+k)}, {P2(Gd+k)}, {P2(Gd+8+k)}")
    else:
        for k in range(4): L+=M(f"v_add_f32 v{Gd+k}, v{Gd+k}, v{Gd+4+k}\nv_add_f32 v{Gd+8+k}, v{Gd+8+k}, v{Gd+12+k}")
        for k in (0,2,1,3): L+=M(f"v_add_f32 v{Gd+k}, v{Gd+k}, v{Gd+8+k}")
    L+=treduce(Gd,Gd+1,Gd+2,Gd+3)
    A,B,C,D=Gd,Gd+1,Gd+2,Gd+3
    L+=M(f"v_mov_b32 v{B}, v{A}\nv_permlane16_swap_b32 v{A}, v{B}\nv_mov_b32 v{C}, v{A}\nv_mov_b32 v{D}, v{B}\nv_permlane32_swap_b32 v{A}, v{C}\nv_permlane32_swap_b32 v{B}, v{D}")
    inv="0x3b000000"
    L+=M(f"""v_mul_f32 v{A}, {inv}, v{A}
        v_mul_f32 v{B}, {inv}, v{B}
        v_fma_f32 v{B}, -v{A}, v{A}, v{B}
        v_max_f32 v{B}, 0, v{B}
        v_add_f32 v{B}, 0x3727c5ac, v{B}
        v_rsq_f32 v{B}, v{B}
        v_fma_f32 v{C}, -v{A}, v{D}, v{C}
        v_mul_f32 v{C}, {inv}, v{C}
        v_fma_f32 v{C}, v{B}, v{C}, v{A}
        v_mul_f32 v{A}, v{A}, v{B}""")
    if pk:
        for e in range(0,8,2): L+=M(f"v_pk_fma_f32 {P2(Gd+4+e)}, {P2(X+e)}, {P2(A)}, {P2(A)} op_sel:[0,1,0] op_sel_hi:[1,1,0] neg_lo:[0,0,1] neg_hi:[0,0,1]")
        for e in range(0,8,2): L+=M(f"v_pk_fma_f32 {P2(X+e)}, {P2(Gd+4+e)}, {P2(Y+e)}, {P2(X+e)}")
        for e in range(0,8,2): L+=M(f"v_pk_add_f32 {P2(Y+e)}, {P2(X+e)}, {P2(C)} op_sel_hi:[1,0] neg_lo:[0,1] neg_hi:[0,1]")
    else:
        for e in range(8): L+=M(f"v_fma_f32 v{Gd+4+e}, v{X+e}, v{B}, -v{A}")
        for e in range(8): L+=M(f"v_fmac_f32 v{X+e}, v{Gd+4+e}, v{Y+e}")
        for e in range(8): L+=M(f"v_sub_f32 v{Y+e}, v{X+e}, v{C}")
    L+=M(f"s_add_u32 s{sT0}, s{sXS}, {mu*65536}")
    for i in range(4): L+=M(f"v_cvt_pk_bf16_f32 v{Gd+4+i}, v{Y+2*i}, v{Y+2*i+1}")
    L+=M(f"buffer_store_dwordx4 {V(Gd+4)}, v{vL}, {srd(WS)}, s{sT0} offen{a.sc or (' nt' if CFG['ntx']>layer else '')}",f"xs{mu}")
    L+=M(f"v_mul_f32 v{A}, v{Y}, v{Y}")
    for e in range(1,8): L+=M(f"v_fmac_f32 v{A}, v{Y+e}, v{Y+e}")
    L+=M(f"""v_mov_b32 v{B}, v{A}
        s_nop 0
        s_add_u32 s{sT1}, s{sS5}, {(layer*2+mu)*65536}
        v_permlane32_swap_b32 v{A}, v{B}
        v_add_f32 v{A}, v{A}, v{B}
        v_mov_b32 v{B}, v{A}
        v_permlane16_swap_b32 v{A}, v{B}
        v_add_f32 v{A}, v{A}, v{B}""")
    L+=M(f"buffer_store_dword v{A}, v{vS5s}, {srd(WS)}, s{sT1} offen{a.sc}")
    tail=M(f"s_add_u32 s22, s{sFLH}, {XF(layer,mu)}")+[('WVM',f"xs{mu}")]+M(f"buffer_store_dword v{vTAG}, v{vOne}, {srd(WS)}, s22 offen{a.sc}")
    return ld,L,tail

def flag_check(a, off, vaddr, name):
    ld,ck=a.check([f"buffer_load_dword v{PT+1}, v{vaddr}, {srd(WS)}, s{sCK1} offen sc1"],[f"v_cmp_ne_u32 vcc, s{sTAG}, v{PT+1}"],name)
    return M(f"s_lshl_b32 s{sCK1}, s{sFL}, 1\ns_add_u32 s{sCK1}, s{sCK1}, {off}")+ld, ck
XF=lambda layer,mu: OFF_XFLAG+layer*16384+mu*256
HF=lambda layer,k: OFF_HFLAG+layer*16384+k*256

def x_dma(mu, pair, stage, q):
    L=M(f"s_add_u32 m0, s{sXW}, {q+stage*8192}\ns_mov_b32 s{sSOFF}, {mu*65536+pair*32768+stage*8192}")
    for i in range(4): L+=M(f"buffer_load_dwordx4 v{vXD}, {srd(WS)}, s{sSOFF} offen offset:{1024*i} sc1 lds",f"x{mu}{pair}{stage}")
    return LW(L,(q+stage*8192,q+stage*8192+8192),(q+16384+stage*8192,q+16384+stage*8192+8192))
vAS1,vAS2,vAD=136,138,135
def alias_setup():
    return M(f"""s_mul_i32 s{sT0}, s{sG}, {65536-8*HKS*1024}
        s_add_u32 s{sT0}, s{sT0}, {OFF_YT-OFF_H}
        v_and_b32 v{vAS1}, 1, v{vQ}
        v_mul_u32_u24 v{vAS1}, {0x100000-HKS*1024}, v{vAS1}
        s_mul_i32 s{sT1}, s{sRH}, {0x100000-HKS*1024}
        v_add_u32 v{vAS1}, s{sT0}, v{vAS1}
        s_add_u32 s{sT0}, s{sT0}, s{sT1}
        v_add_u32 v{vAS2}, v{vHS2}, v{vAS1}
        v_add_u32 v{vAS1}, v{vHS1}, v{vAS1}
        v_add_u32 v{vAD}, s{sT0}, v{vHD}""")
AL=lambda mu,t: (CFG['alias']>=1 and (mu,t)==(1,1)) or (CFG['alias']>=2 and (mu,t)==(0,0))
def h_dma(mu, t, grp, q):
    n=4 if grp<2 else 3
    L=M(f"s_add_u32 m0, s{sM4 if grp<2 else sM3}, {q+t*8192}\ns_add_u32 s{sSOFF}, s{sC4 if grp<2 else sC3}, {(0 if AL(mu,t) else (mu*4+2*t)*HKS*1024)+grp*8192}")
    for i in range(n): L+=M(f"buffer_load_dwordx4 v{vAD if AL(mu,t) else vHD}, {srd(WS)}, s{sSOFF} offen offset:{1024*i} sc1 lds",f"h{mu}{t}{grp}")
    return LW(L,*[(q+(2*k+t)*8192,q+(2*k+t)*8192+2*n*1024) for k in range(2)])
def h_touch(ks,base=204):
    L=[]
    for k in ks:
        L+=M(f"s_mov_b32 s{sT2}, {2*k*HKS*1024}\nbuffer_load_dword v{base+2*k}, v{vHS1}, {srd(WS)}, s{sT2} offen sc1\nbuffer_load_dword v{base+1+2*k}, v{vHS2}, {srd(WS)}, s{sT2} offen sc1","tch")
    return L
SC1K=lambda: {0:[],2:[k for k in range(4) if not AL(k>>1,k&1)],8:[0,1],3:[],4:[0,1],5:[0,1,2],6:[0,1],7:[0]}[CFG['touch']]
TCHK=lambda: {0:[],2:[],8:[],3:[0,1,2,3],4:[2,3],5:[],6:[],7:[]}[CFG['touch']]
TINK=lambda: {8:[2],5:[3],6:[2,3],7:[1,2,3]}.get(CFG['touch'],[])

_uid=[0]
RING6=[FR+4*k for k in range(6)]; RING8=RING6+[ACC0+16,ACC0+20]
def g1_steps(buf, q, bar=None):
    A=(ACC0,ACC1)[buf]; bar=bar or {}; qo=q&65535; out=[]
    for s in range(16):
        pre=(M(f"v_add_u32 v{vA0}, {q&~65535}, v{vL}") if s==0 else [])+bar.get(s,[])
        rd=[lambda F,tok,s=s,t=t: LR(mk(f"ds_read_b128 {V(F)}, v{vA0} offset:{qo+t*16384+s*1024}",tok),(q+t*16384+s*1024,q+t*16384+s*1024+1024)) for t in range(2)]
        mf=lambda F,s=s: [mk(f"v_mfma_f32_16x16x32_bf16 {V(A+12*t+4*w)}, {W1(s,w)}, {V(F[t])}, {'0' if s==0 else V(A+12*t+4*w)}") for t,w in ([(t,w) for t in range(2) for w in range(3)],[(t,w) for w in range(3) for t in range(2)],[(0,0),(0,1),(0,2),(1,2),(1,1),(1,0)],[(0,0),(1,0),(1,1),(0,1),(0,2),(1,2)])[CFG['o1']]]
        out.append((pre,rd,mf,RING6))
    return out
def g2_steps(qs, bar=None):
    bar=bar or {}; out=[]
    def setq(q): return M(f"s_add_u32 s{sQ}, s{sHK}, {q&~65535}\nv_add_u32 v{vA0}, s{sQ}, v{vL}\ns_add_u32 s{sQ}, s{sHS}, {q&~65535}\nv_add_u32 v{vA1}, s{sQ}, v{vL}")
    for i in range(22):
        q=qs[i>>3]; pre=bar.get(i,[])
        if i%8==0 and (i==0 or (q&~65535)!=(qs[(i>>3)-1]&~65535)): pre=setq(q)+pre
        rd=[lambda F,tok,i=i,q=q,t=t: LR(mk(f"ds_read_b128 {V(F)}, v{(vA0,vA1)[t]} offset:{(q&65535)+(i&7)*1024}",tok),*[(q+w*8192+(i&7)*1024,q+w*8192+(i&7)*1024+1024) for w in range(4)]) for t in (1,0)]
        mf=lambda F,i=i: [mk(f"v_mfma_f32_16x16x32_bf16 {V(ACC0+8*t+4*c)}, {W2(i,c)}, {V(F[1-t])}, {'0' if i==0 else V(ACC0+8*t+4*c)}") for t,c in ([(1,0),(1,1),(0,0),(0,1)],[(1,0),(0,0),(1,1),(0,1)],[(1,0),(1,1),(0,1),(0,0)])[CFG['o2']]]
        out.append((pre,rd,mf,RING8))
    return out
def g2_pass(qs, t, bar=None):
    bar=bar or {}; out=[]
    for i in range(22):
        q=qs[i>>3]; pre=bar.get(i,[])
        if i%8==0 and (i==0 or (q&~65535)!=(qs[(i>>3)-1]&~65535)):
            pre=M(f"s_lshl_b32 s{sQ}, s{sKH}, 14\ns_add_u32 s{sQ}, s{sQ}, {(q&~65535)+t*8192}\nv_add_u32 v{vA0}, s{sQ}, v{vL}")+pre
        rd=[lambda F,tok,i=i,q=q: LR(mk(f"ds_read_b128 {V(F)}, v{vA0} offset:{(q&65535)+(i&7)*1024}",tok),*[(q+(2*k+t)*8192+(i&7)*1024,q+(2*k+t)*8192+(i&7)*1024+1024) for k in range(2)])]
        mf=lambda F,i=i: [mk(f"v_mfma_f32_16x16x32_bf16 {V(ACC1+8*t+4*c)}, {W2(i,c)}, {V(F[0])}, {'0' if i==0 else V(ACC1+8*t+4*c)}") for c in range(2)]
        out.append((pre,rd,mf,RING8))
    return out
def backbone(steps, marks=None):
    marks=marks or {}; LA=CFG['la']
    start=[]; n=0
    for st in steps: start.append(n); n+=len(st[2]([FR]*2))
    start.append(n)
    last={}; F=[]; place={}; pos=-1; toks=[]
    for k,(pre,rd,mf,ring) in enumerate(steps):
        _uid[0]+=1; tok=f"f{_uid[0]}"; toks.append(tok); fs=[]
        for j,r in enumerate(rd):
            u=min([x for x in ring if x not in fs],key=lambda x:last.get(x,-99+ring.index(x)*0.01)); fs.append(u)
            p=max(start[k]-LA+j, last.get(u,-99), pos+1 if pos>=0 else -1)
            p=min(p,start[k]-1) if start[k]>0 else -1
            if p<0: p=-1
            place.setdefault(p,[]).extend((pre if j==0 else [])+[r(u,tok)]); pos=max(pos,p)
        for u in fs: last[u]=start[k+1]-1
        F.append(fs)
    L=list(place.get(-1,[]))+[('WLG',toks[0])]; n=0
    for k,(pre,rd,mf,ring) in enumerate(steps):
        ms=mf(F[k])
        for j,m in enumerate(ms):
            L.append(m); L+=place.get(n,[])
            if j==len(ms)-1 and k+1<len(steps): L.append(('WLG',toks[k+1]))
            n+=1
        L+=marks.get(k,[])
    return L

def g1_epi(a, buf, mu, pair, sc):
    A=(ACC0,ACC1)[buf]; E=EP; L=[]
    n=E; mreg=E+4
    M0=A+8; M1=A+20
    for t in range(2):
        Gt=A+12*t; Ut=Gt+4
        for r in range(4): L+=M(f"v_max_f32 v{Gt+r}, 0, v{Gt+r}")
        for r in range(4): L+=M(f"v_mul_f32 v{Gt+r}, v{Gt+r}, v{Ut+r}")
        L+=M(f"v_cvt_pk_bf16_f32 v{n+2*t}, v{Gt}, v{Gt+1}\nv_cvt_pk_bf16_f32 v{n+2*t+1}, v{Gt+2}, v{Gt+3}")
    for r in range(4): L+=M(f"v_permlane16_swap_b32 v{M0+r}, v{M1+r}")
    L+=M(f"v_permlane16_swap_b32 v{n}, v{n+2}\nv_permlane16_swap_b32 v{n+1}, v{n+3}\ns_mov_b32 s{sT1}, {0 if AL(mu,pair) else (mu*4+2*pair)*HKS*1024}")
    L+=M(f"buffer_store_dwordx4 {V(n)}, v{vAS1 if AL(mu,pair) else vHS1}, {srd(WS)}, s{sT1} offen{sc}",f"hs{mu}{pair}")
    for r in range(4): L+=M(f"v_max_f32 v{M0+r}, 0, v{M0+r}")
    for r in range(4): L+=M(f"v_mul_f32 v{M0+r}, v{M0+r}, v{M1+r}")
    L+=M(f"v_cvt_pk_bf16_f32 v{mreg}, v{M0}, v{M0+1}\nv_cvt_pk_bf16_f32 v{mreg+1}, v{M0+2}, v{M0+3}")
    L+=M(f"v_mov_b32 v{E+6}, v{E+4}\nv_mov_b32 v{E+7}, v{E+5}\ns_nop 0\nv_permlane32_swap_b32 v{E+4}, v{E+6}\nv_permlane32_swap_b32 v{E+5}, v{E+7}")
    L+=M(f"buffer_store_dwordx4 {V(E+4)}, v{vAS2 if AL(mu,pair) else vHS2}, {srd(WS)}, s{sT1} offen{sc}",f"hs{mu}{pair}")
    return L
def h_flag(a, layer, k):
    return M(f"s_add_u32 s22, s{sFLH}, {HF(layer,k)}")+[('WVM',f"hs{k>>1}{k&1}")]+M(f"buffer_store_dword v{vTAG}, v{vOne}, {srd(WS)}, s22 offen{a.sc}")

def s5_get(a, layer, mu):
    T=140
    ld,ck=a.check([f"buffer_load_dwordx4 {V(T)}, v{vS5l}, {srd(WS)}, s{sCK3} offen sc1"],
         [f"v_max3_u32 v{PT+2}, v{T}, v{T+1}, v{T+2}",f"v_max_u32 v{PT+2}, v{PT+2}, v{T+3}",f"v_cmp_eq_u32 vcc, -1, v{PT+2}"],"s5")
    ld=M(f"s_add_u32 s{sCK3}, s{sS5l}, {(layer*2+mu)*65536}")+ld
    L=list(ck)+M(f"""v_add_f32 v{T}, v{T}, v{T+1}
        v_add_f32 v{T+2}, v{T+2}, v{T+3}
        v_add_f32 v{T}, v{T}, v{T+2}
        v_mov_b32 v{T+1}, v{T}
        s_nop 0
        v_permlane32_swap_b32 v{T}, v{T+1}
        v_add_f32 v{T}, v{T}, v{T+1}
        v_mov_b32 v{T+1}, v{T}
        s_nop 0
        v_permlane16_swap_b32 v{T}, v{T+1}
        v_add_f32 v{T}, v{T}, v{T+1}
        v_mul_f32 v{T}, 0x3b000000, v{T}
        v_add_f32 v{T}, 0x3727c5ac, v{T}
        v_rcp_f32 v{vR2}, v{T}""")
    return ld,L
def ex_addr(qspare):
    return M(f"s_add_u32 s{sT0}, s{sHW}, {qspare+6144}\nv_add_u32 v{EP}, s{sT0}, v{vL}\ns_xor_b32 s{sT0}, s{sHW}, 16384\ns_add_u32 s{sT0}, s{sT0}, {qspare+6144}\nv_add_u32 v{EP+1}, s{sT0}, v{vL}")
def g2_tail(mu, qsp, keep, send):
    X=vXst[mu]; R=[(qsp+w*8192+6144,qsp+w*8192+8192) for w in range(4)]
    pre=LW(M(f"ds_write_b128 v{EP}, {V(send)}\nds_write_b128 v{EP}, {V(send+4)} offset:1024",f"ew{mu}"),*R)
    pre+=[mk(f"v_fmac_f32 v{X+e}, v{vR2}, v{keep+e}") for e in range(8)]
    post=LR(M(f"ds_read_b128 {V(send)}, v{EP+1}\nds_read_b128 {V(send+4)}, v{EP+1} offset:1024","ex"),*R)
    post+=[mk(f"v_fmac_f32 v{X+e}, v{vR2}, v{send+e}") for e in range(8)]
    return pre,post
def out_store(a, mu, T):
    X=vXst[mu]
    L=[mk(f"v_cvt_pk_bf16_f32 v{T+i}, v{X+2*i}, v{X+2*i+1}") for i in range(4)]
    return L+M(f"buffer_store_dwordx4 {V(T)}, v{vTok}, {srd(SO_)}, {'0' if mu==0 else 's%d'%sMB} offen{('',' sc1',' nt')[CFG['outsc']]}")

def wbl2(a):
    Lw=a.label("wb"); w=mk("buffer_wbl2 sc1"); w.ghost=1
    return [M(f"s_or_b32 s{sT2}, s{sR}, s{sWV}\ns_cmp_lg_u32 s{sT2}, {CFG['wbid']}\ns_cbranch_scc1 {Lw}")+[w,mk(Lw+":")]]
def finish_kernel(a):
    a(f"s_or_b32 s{sT0}, s2, s{sWV}\ns_cmp_eq_u32 s{sT0}, 0\ns_cselect_b32 s{sT0}, {OFF_NONCE}, {OOB}")
    a(f"buffer_store_dword v{vTAG}, v{vOne}, {srd(WS)}, s{sT0} offen sc1")
    if CFG['stamps'] and a.tag!='S':
        a.stamp("end","*")
        if CFG.get('amp') is not None:
            j=CFG['amp']
            a(f"s_sub_u32 s96, s{STAMP0+j}, s{STAMP0}\ns_mul_i32 s96, s96, {CFG.get('ampk',4)}\ns_add_u32 s96, s96, s{STAMP0+len(stamp_names)-1}")
            a("L_amp:\ns_memrealtime s[100:101]\ns_waitcnt lgkmcnt(0)\ns_sub_u32 s97, s100, s96\ns_cmp_lt_i32 s97, 0\ns_cbranch_scc1 L_amp")
        a("s_memtime s[100:101]\ns_waitcnt lgkmcnt(0)\ns_sub_u32 s99, s100, s99")
        a(f"s_lshl_b32 s{sT0}, s2, 2\ns_add_u32 s{sT0}, s{sT0}, s{sWV}\ns_lshl_b32 s{sT0}, s{sT0}, 8\ns_add_u32 s{sT0}, s{sT0}, {OFF_STAMP}")
        for i in range(len(stamp_names)):
            a(f"v_mov_b32 v40, s{STAMP0+i}")
            a(f"buffer_store_dword v40, v{vOne}, {srd(WS)}, s{sT0} offen offset:{4*i}")
        if CFG.get('trace'): a(f"s_add_u32 s{sT1}, s{sT0}, 0x100000\nbuffer_store_dword v139, v{vFX}, {srd(WS)}, s{sT1} offen")
        a(f"v_mov_b32 v40, s98\nbuffer_store_dword v40, v{vOne}, {srd(WS)}, s{sT0} offen offset:248")
        a(f"v_mov_b32 v40, s99\nbuffer_store_dword v40, v{vOne}, {srd(WS)}, s{sT0} offen offset:252")
    a("s_endpgm")

WV=lambda t:('WVM',t)
WL=lambda t:('WLG',t)
AT=lambda n:('AT',n)

def vm_par(layer):
    C=CFG
    def f(x):
        t=x.tok or ''
        if x.dma:
            if t[0]=='c': return (C['mW'],150,11)
            if t[0]=='h' and layer==0 and 2*int(t[1])+int(t[2]) in SC1K(): return (C['mM'],C['mMs'],8)
            return (C['mL'],C['mLs'],8)
        if t=='tch': return (C['mH'],20,8)
        if t.startswith('w2_'): return (C['mM'],C['mW2'],8)
        if not x.load:
            if x.op.endswith('x4'): return (C['mS1'] if 'sc1' in x.text else C['mS'],70,8)
            return (C['mS1'] if 'sc1' in x.text else 400,10,1)
        if t.endswith(tuple('0123456789')) and '_ppr' in t: return (700,20,22)
        return (C['mL'],C['mG'],8) if x.op.endswith('x4') else (C['mL'],10,2)
    return f
def feed(vm,items,t):
    for x in items:
        for y in (x if isinstance(x,list) else [x]):
            if isinstance(y,tuple):
                if y[0]=='WVM': t=max(t,vm.done.get(y[1],t))
            elif y.kind=='vmem': t=vm.issue(y,t)+4
            elif y.kind!='none': t+=4.5
    return t

def body(a):
    P=paced; BY=lambda n:('BY',n); SY=lambda n:('SYNC',n); AF=lambda n,g=0:('AFTER',n,g); GP=lambda n:('GAP',n)
    B=lambda *w:[list(w)+[mk("s_barrier")]]
    C=CFG
    nxs=lambda r,mu: [i for i,x in enumerate(r) if isinstance(x,I) and x.tok==f"xs{mu}"][0]+1
    qs=list(Q)
    if C['afirst']:
        a.flat(fin1(a,0,0,72)); a.flat(conv_epi(1)[1])
    else: a.flat(fin1(a,0,0,ACC0))
    if CFG.get('trace')=='CV': a("v_mov_b32 v139, v194")
    a.stamp("fin1 A","f")
    lA,rA,tA=fin2(a,0,0,ACC0,pk=C['pk']); lB,rB,tB=fin2(a,0,1,232,pk=C['pk'])
    glB,gcB=y_check(a,1)
    pk,ps=pp_pack()
    W2Q[:]=w2_loads()
    a(f"s_mul_i32 s{sT0}, s{sCT2}, 43\ns_mul_i32 s{sT1}, s{sKH}, 21\ns_add_u32 s{sT0}, s{sT0}, s{sT1}\ns_lshl_b32 s{sT0}, s{sT0}, 7\ns_add_u32 s{sCK3}, s{sT0}, {OFF_P2F}")
    a(f"v_min_u32 v{PT+3}, 21, v{vLane}\nv_lshlrev_b32 v{PT+3}, 7, v{PT+3}")
    pl_,pc_=a.check([f"buffer_load_dword v{PT+2}, v{PT+3}, {srd(WS)}, s{sCK3} offen sc1"],[f"v_cmp_ne_u32 vcc, s{sTAG}, v{PT+2}"],"pp")
    ppf=M(f"buffer_store_dword v{vTAG}, v{vOne}, {srd(WS)}, s{sPF} offen sc1")
    if C['pkat']==3: a.waitvm('pps'); a.flat(ppf); ppf=[]
    a.flat(extras(3)); Wp(a,'YS')
    if C['pkat']==2: a.flat(pk); a.flat(ps)
    a.flat(x0_state(1))
    a.waitvm("yt1")
    Wp(a,'F1')
    a.flat(lA); a.flat(glB)
    if C['pkat']==3 and W2E(): a.flat(pl_)
    a.flat(extras(4)); Wp(a,'F2')
    if C['pkat']==0: a.flat(pk); a.flat(ps)
    a.stamp("yB acked","f")
    a.flat(rA[:10])
    if C['pkat']==3 and W2E(): a.flat(pc_); pl_=[]; pc_=[]
    Wp(a,'FA'); a.flat(rA[10:]); Wp(a,'FX')
    a.stamp("fin2 A","f")
    a.flat(gcB)
    y_stage(a,1,wops(PL().get('SB',"")))
    a.flat(tA)
    if C['pkat']==1: a.flat(pk); a.flat(ps)
    else: a.waitvm("pps"); a.flat(ppf); ppf=[]
    Wp(a,'FB')
    a.flat(fin1(a,0,1,ACC1))
    a.stamp("fin1 B","f")
    xl,xc=flag_check(a,XF(0,0),vFX,"xf")
    early='p' in PL().get('XD','')
    Wp(a,'XW'); a.flat(xl)
    if early: a.flat(pl_)
    a.flat(xc)
    if early: a.flat(pc_); pl_=[]; pc_=[]
    Wp(a,'XB')
    lead=lB+x_dma(0,0,0,qs[0])+x_dma(0,0,1,qs[0])+(alias_setup() if C['alias'] else [])+rB[:nxs(rB,1)]+wops(PL().get('XD',""))
    a.flat(lead)
    A1,B0,B1,GA,GB,GC=96,192,288,384,472,516
    for layer in range(2):
        g="ab"[layer]
        xa0,xa1,xb0,xb1,e=qs
        hs = lambda k: ' sc1' if (layer==0 and k in SC1K()) else (a.sc or (' nt' if (C['nth'] and layer==1) else ''))
        L0 = layer==0
        a.stamp(f"L{layer} start",g+'m')
        hq=[(xa0,xa1,e),(xb0,xb1,xa0)]
        X=lambda mu,p,q: x_dma(mu,p,0,q)+x_dma(mu,p,1,q)
        H=lambda mu,t,grp: h_dma(mu,t,grp,hq[mu][grp])
        xl,xc=flag_check(a,XF(layer,1),vFX,"xf")
        s7=[]
        def HC(k,after=None,gap=None):
            l,c=flag_check(a,HF(layer,k),vFX if (k==1 and C['alias']>=2) else vFH,"hf")
            s7.extend([AF('xc'),AF(f"f{k}",after or (C['hca0'] if L0 else C['hca']))]+l+[SY(f"l{k}")]+c+[SY(f"c{k}")])
            return [AF(f"c{k}")]
        sl,sr=s5_get(a,layer,0)
        def SB(n,*w):
            if layer==0: return BAR(*w)
            return a.st(n+" pre","c")+list(w)+a.st(n+" waited","c")+[mk("s_barrier")]+a.st(n+" post","c")
        steps = g1_steps(0,xa0,{0:BAR(WV("x000")),8:BAR(WV("x001"))}) + g1_steps(1,xa1,{0:BAR(WV("x011"))}) \
              + g1_steps(0,xb0,{0:BAR(WV("x101"))}) + g1_steps(1,xb1,{0:BAR(WV("x111"))}) \
              + g2_steps(hq[0],{**({i:[WV(f"w2_{i}")] for i in range(22)} if L0 else {}),0:BAR(WV("h010"),WV("h000"),WV("w2_0")),8:BAR(WV("h011"),WV("h001"),WV("w2_8")),16:BAR(WV("h012"),WV("h002"),WV("w2_16"))}) \
              + g2_pass(hq[1],0,{0:BAR(WV("h101"),WV("h100")),16:BAR(WV("h102"))}) + g2_pass(hq[1],1,{0:BAR(WV("h110")),8:BAR(WV("h111")),16:BAR(WV("h112"))})
        marks={15:a.st(f"L{layer} A0",g),31:a.st(f"L{layer} A1",g),47:a.st(f"L{layer} B0",g),63:a.st(f"L{layer} B1",g),85:a.st(f"L{layer} GA",g)}
        bb=backbone(steps,marks)
        def epi(k):
            E=g1_epi(a,k&1,k>>1,k&1,hs(k))
            if k>0 and L0 and C['hold']:
                n=[i for i,x in enumerate(E) if x.kind=='vmem'][0]; E=E[:n]+[AF(f"l{k-1}")]+E[n:]
            if C['alias']>=2 and k in(0,3):
                n=[i for i,x in enumerate(E) if isinstance(x,I) and x.kind=='vmem'][0]; E=E[:n]+[AF('xc' if k==0 else 'c1')]+E[n:]
            if k<3: return [AT(96*(k+1)+2),('DENS',C['dens0'] if L0 else C['dens1'])]+E+[('DENS',0),SY(f"e{k}"),BY(96*(k+2) if k<2 else GA-30)]
            return [AT(GA+1),('DENS',C['dens'])]+E+[('DENS',0),SY("e3")]+sr
        s3=[]
        for k in range(4): s3+=[AF(f"e{k}")]+([AF('h00'),WV('h002'),WV('h001'),WV('h000')] if (k==1 and C['alias']>=2) else [])+h_flag(a,layer,k)+[SY(f"f{k}")]
        YT=ACC1+16
        nq=[xa1,e,xb0,xb1,xa0]
        slB,srB=s5_get(a,layer,1)
        preA,postA=g2_tail(0,e,ACC0,ACC0+8)
        tailA=ex_addr(e)+(unpackY(0,YT) if L0 else [])+slB+[BY(GB),AT(GB+1),('DENS',C['densa'] if L0 else 2)]+preA+[GP(C['exg'])]+B(WL("ew0"))+postA[:2]+[GP(C['exg2'])]+postA[2:]
        if L0:
            lA,rA,tA=fin2(a,1,0,ACC0,YT)
            xlA,xcA=flag_check(a,XF(1,0),vFX,"xf")
            tailA+=fin1(a,1,0,YT,True,ACC0)+[('DENS',0)]+srB+ex_addr(xa0)+[('GAPV',C['gbl'])]+lA+[('DENS',C['dens2'])]+rA[:nxs(rA,0)]+[('DENS',0),SY('r')]+rA[nxs(rA,0):]+unpackY(1,YT)
        else:
            tailA+=out_store(a,0,YT)+[('DENS',0)]+srB+ex_addr(xa0)+([AT(GC+C['wbat'])]+wbl2(a) if C['wbl2'] else [])
        g1=C['g1']
        K=lambda it,c=None,cap=64: bk(it,C['bk'] if c is None else c,cap)
        dl0=(B1-34 if C['alias']>=2 else GA-44)
        sA = HC(0)+K(H(0,0,0))+[BY(dl0),AT(B0-10)]+K(H(0,0,1))+[BY(dl0+4)]+K(H(0,0,2))+[SY('h00'),BY(dl0+6)]
        sB = HC(1)+K(H(0,1,0))+[BY(GA-36)]+K(H(0,1,1))+[BY(GA-4)]+K(H(0,1,2))+[BY(GA+28)]
        sC = HC(2)+K(H(1,0,0))+[BY(GB-34),AT(GA-10)]+K(H(1,0,1))+[BY(GB-30)]
        sD = [AT(GA+54)]+K(H(1,0,2))+[BY(GB)]+HC(3,C['gahl'])+K(H(1,1,0))+[BY(GC-22)]+K(H(1,1,1))+[BY(GC-6)]+K(H(1,1,2))+[BY(GC+10)]
        if L0:
            pl=PL(); pend=pl.get('PEND',[]); rest=pl.get('REST',[])
            s1=[];s2=[]
            for k in rest: s1+=K(wops(f"i{k}"),400)
            rest=[int(str(k).split('@')[0]) for k in rest]
            s1+=[SY('irest')]+([AF('fr')] if any(slot_of[k]==SLOT[4] for k in pend) else [])+K(X(0,1,xa1))+[BY(A1-30)]
            for k in pend: s2+=wops(f"r{k}")+[BY(max(12*k-4,30))]
            late=pl.get('LATE',[])
            if late:
                s2+=[AT(38)]+B(WV(f'c{late[-1]}'))
                for k in late: s2+=wops(f'r{k}')+[BY(12*k-4)]
                pend=pend+late
            last=pend[-1] if pend else None
            if rest:
                s2+=[AF('irest')]+B(WV(f"c{rest[-1]}"))
                for k in rest: s2+=wops(f"r{k}")+[BY(12*k-4)]
                last=rest[-1]
            if last is not None: s2+=[GP(4)]+B(WL(f"cr{last}"))
            s2+=[SY('fr'),AT(C['tin'])]+h_touch(TINK(),127)
            s4=([WV('pps')]+ppf+[GP(40)] if ppf else [])+[AT(C['w2at'])]+pl_+pc_+[AF(C['w2af'])]
            i=0
            while W2Q:
                if i==10: s4+=[AF('fB')]
                s4+=K(w2_take(2),C['bkw'],C['capw'])+[BY(GA+4*i-C['w2lead'])]; i+=1
        else:
            s1=[SY('irest'),AF('lB')]+K(X(0,1,xa1))+[BY(A1-30)]; s2=[SY('fr')]; s4=[]
        if L0 or C['fb1']: s5=[SY('rB'),SY('lB')]+rB[nxs(rB,1):]+[SY('fB'),BY(A1)]
        else: s5=[AT(C['a0l'])]+lB+[SY('lB'),('DENS',C['densb'])]+rB[:nxs(rB,1)]+[('DENS',0),SY('rB')]+rB[nxs(rB,1):]+[BY(A1)]
        s3=[AF('rB')]+tB+[SY('tB')]+s3
        s1+=[AF('tB',C['a1xl0'] if L0 else C['a1xl'])]+xl+[SY('xl')]+xc+[SY('xc'),AF('fr')]+K(X(1,0,xb0))+[BY(B0-30)]+K(X(1,1,xb1))+[BY(B1-30)]
        s1+=sA+sB+sC+sD
        s6 = ([] if L0 else [AF('xl')])+epi(0)+epi(1)+epi(2)+sl+epi(3)+[BY(GB-12)]+tailA
        vm=VMM(vm_par(layer)); t0=feed(vm,lead,0)
        out,rest=weave(bb,[s3,s7,s1,s4,s2,s5,s6],vm=vm,t0=t0,log=f"L{layer}"+('!' if C.get('v')==2 else '') if (C.get('v') and a.tag=='F') else None)
        a.ext(a.trace(out,CFG.get('tev_',10),f'G{layer}')); a.ext(rest)
        if C.get('v'): print("  leftover after G2(B):",len(rest))
        a.stamp(f"L{layer} GB",g)
        Ls=a.label("sw")
        a(f"s_nop 7\ns_cmp_eq_u32 s{sKH}, 0\ns_cbranch_scc1 {Ls}")
        for k in range(8): a(f"v_swap_b32 v{ACC1+k}, v{ACC1+8+k}")
        a.lab(Ls)
        preB,postB=g2_tail(1,xa0,ACC1,ACC1+8)
        a.flat(preB)
        if L0: a.flat(tA)
        a("s_waitcnt lgkmcnt(0)\ns_barrier")
        a.flat(postB)
        if L0:
            a.flat(fin1(a,1,1,YT,True,ACC1))
            lB,rB,tB=fin2(a,1,1,ACC1,YT,pk=bool(C['fb1'] and C['pk']))
            a.flat(xlA); a.flat(xcA); lead=X(0,0,nq[0])
            if C['fb1']==1: lead=lB+lead+rB[:nxs(rB,1)]
            if C['fb1']==2: lead=lead[:6]+lB+lead[6:]+rB[:nxs(rB,1)]
            a.flat(lead)
        else:
            a.flat(out_store(a,1,YT))
        a.stamp(f"L{layer} tailB",g)
        qs=nq
    finish_kernel(a)

def main():
    a=G('F','')
    entry(a); p0(a); conv(a)
    nfront=len(a.L)
    b=G('S',' sc1'); b.nlab=0
    front=list(a.L)
    body(a)
    rep=[]
    items=finish(a.L,rep)
    print("LDS ordering problems:",lds_check(items))
    for o in a.ool: items+=finish(o)
    items.append(mk("L_fast_end:"))
    if CFG['slow']:
        b.L=front+[mk("L_slow:")]; body(b)
        full=finish(b.L)
        k=[i for i,x in enumerate(full) if x.text=="L_slow:"][0]
        items+=full[k:k+1]+[mk("s_nop 4")]+full[k+1:]
        for o in b.ool: items+=finish(o)
    items.append(mk("L_end:")); items.append(mk("s_endpgm"))
    hdr=open(os.path.join(os.path.dirname(os.path.abspath(__file__)),"header.txt")).read()
    src=kernel_file(NAME,text(items),"; @launch grid=(256,1,1) block=(256,1,1) lds=163840",header=hdr)
    open(sys.argv[1],"w").write(src)
    open("stamp_names.txt","w").write("\n".join(stamp_names)); open("trace_names.txt","w").write("\n".join(trace_names)); open("site_names.txt","w").write(" ".join(site_names))
    n=sum(1 for i in items if i.kind!='none')
    print(f"{n} instructions, {len(src)} bytes of text, {sum(x for x,_ in rep)} nop states padded in fast path")
    if CFG.get('v'):
        for x in rep: print("   pad",x)
main()
```

```python
import sys, os
from asmlib import *
from layout import *

NAME="interleave_layers__ssm_conv_h3__glu_gated_reglu__prompt_kernel"
CFG=dict(alpre=1, xlmid=36, fb1=0, mG=25, pk=1, hpri=1, hsplit=1, ft1=1, kl=5, afirst=0, idle=1, alias=1, o1=0, o2=0, swz=1, z14=1, tpre=1, dot2=1, a1xl0=30, tin=100, mH=1300, hold=0, hca0=24, dens0=8, mW2=62, hat=2, hmid=100, bk=60, bkw=60, capw=64, mL=350, mLs=80, mM=600, mMs=95, mW=850, mS=600, mS1=950, ssmat=0, nth=1, ntx=2, wbat=24, wbid=0, ppat=1, tat=2, pkat=2, fbpre=1, cg0=30, gbt0=28, xg0=16, w2af='irest', densb=4, qat=1, gbs5=8, la=12, clr=1, utouch=0, f1max=2048, cann=56, plan=58, chl=40, cla=9, cdens=4, cslots=2, chc=40, cack=54, rot=1, cm2=70, cm3=120, a0l=1, a0c=24, a1xl=18, dens=5, fl=30, fl0=52, hca=18, hcg=22, g1=4, g2=5, g3=4, dens1=2, gahl=16, gahc=14, hbgap=4, tev=6, tev2=5, dens2=8, densa=5, exg=2, exg2=4, gbl=12, gbc=14, gbt=28, gbxl=20, b0hl=80, w2at=1, w2gap=5, w2lead=40, rrest=56, cgap=3, warm=1, stamps=0, stop=None, slow=1, prefetch=1, touch=2, dgather=1, dstage=1, wbl2=0, outsc=2)
for a_ in sys.argv[2:]:
    k,v=a_.split('='); CFG[k]=int(v) if v.lstrip('-').isdigit() else v

sX,sR,sWV,sG,sM,sRH,sCT2,sKH,sCHH,sTAG,sHELLO=4,5,6,7,8,9,10,11,12,13,14
sT0,sT1,sT2,sT3=3,15,60,61
sCNT=62; sSOFF=63
WS,SK_,SV_,SQ_,SH_,SWG,SWU,SWD,SO_,SSK,SD_=16,20,24,28,32,36,40,44,48,52,56
srd=lambda b:f"s[{b}:{b+3}]"
sXW,sHW,sHK,sHS,sXS,sFL,sGR,sS5,sGRl,sS5l=64,65,66,67,68,69,70,71,72,73
sW1W,sWo,sHF,sW2B=74,75,76,77
sPS,sPD,sPF,sW20=56,57,58,59
sCK1,sCK2,sCK3,sQ=20,21,24,25
sCH,sUO,sMB=26,27,0
sMODE=34; sFLH=23; sC4,sC3,sM4,sM3=52,53,54,55
sFLG=1
STAMP0=78
Q=[0,32768,65536,98304,131072]
TCP=4160; TCH=4*TCP; L_TOEP=0
L_U=2*TCH; UCH=4608
L_K=L_U+2*UCH; CHP=1056; L_V=L_K+9*CHP
L_CX=L_K
L_YS=0
L_WS=65536; WSL=24576
SLOT=[L_WS+k*WSL for k in range(4)]
L_YS=SLOT[3]+16384
L_PP=SLOT[3]
SLOT=SLOT[:3]+[8192,36864,L_PP]
vL=1; vOne=2; vTok=3; vGs=4; vGl=5; vS5s=6; vS5l=7; vXD=8; vHD=9; vHS1=10; vHS2=11; vFX=12; vFH=13
vTAG=14; vR2=15
vXst=[16,24]; vYY=[32,36]
ACC0,ACC1,FR,vA0,vA1,EP,PT=40,64,88,112,113,114,122
vW2,vT2,vWc0=126,127,128
vW1=[129,130,131]; vTa,vTm,vWc1=132,133,134
vLane,vJ,vQ,vYo,vD=135,136,137,138,139
vCg,vCs=124,125
vHa=15
vCXw,vCXo,vCXp,vKV,vGA,vGW,vGT,vFT=160,161,162,163,164,165,166,167
vKD,vUP,vPK,vGD,vGC,vQT,vTch=168,172,176,184,192,196,193
W2V=144; W2A=192
def W1(s,t): b=(s*3+t)*4; return f"a[{b}:{b+3}]"
def W1h(s,t,hh): b=(s*3+t)*4+2*hh; return f"a[{b}:{b+1}]"
def W2(i,t):
    k=(i*2+t)*4
    return f"v[{W2V+k}:{W2V+k+3}]" if k<112 else f"a[{W2A+k-112}:{W2A+k-112+3}]"
def W2h(i,t,hh):
    k=(i*2+t)*4+2*hh
    return f"v[{W2V+k}:{W2V+k+1}]" if k<112 else f"a[{W2A+k-112}:{W2A+k-112+1}]"
V=lambda b,n=4: f"v[{b}:{b+n-1}]"
OOB=0x7FFFFF00
vST=lambda: 140 if CFG.get('trace')=='CV' else 139
POLLMAX=1<<16
def M(text,tok=None): return [mk(l.strip(),tok) for l in text.split('\n') if l.strip()]
BAR=lambda *pre: list(pre)+[mk("s_barrier")]

trace_names=[]; stamp_names=[]; site_names=[]
class G(Asm):
    def __init__(s,tag='',sc=''):
        super().__init__(); s.tag=tag; s.sc=sc; s.ool=[]
    def st(s,name,grp='m'):
        if not CFG['stamps'] or s.tag=='S': return []
        if grp!='*' and not any(c in str(CFG['stamps']) for c in grp): return []
        stamp_names.append(name); i=len(stamp_names)-1
        assert i<20, "too many stamps"
        return M(f"{'s_memtime' if CFG.get('clk') else 's_memrealtime'} s[100:101]\ns_waitcnt lgkmcnt(0)\ns_mov_b32 s{STAMP0+i if (i or CFG['kl']!=5) else 97}, s100")
    def trace(s, items, every, name):
        if s.tag=='S' or CFG.get('trace')!=name: return items
        out=[]; n=0
        for it in items:
            out.append(it)
            if isinstance(it,I) and it.kind=='mfma':
                if n%every==0 and CFG.get('tr0',0)<=n<CFG.get('tr0',0)+58*every: out+=s.light(f"{name}+{n}")
                n+=1
        return out+s.light(name+" end")+M("s_nop 15\ns_nop 15\ns_nop 15\ns_nop 15")+s.light(None)+s.light(None)
    def light(s,name):
        k=len(trace_names); trace_names.append(name or "")
        L=[]
        if name: x=mk(f"s_memtime s[{90+2*(k%3)}:{91+2*(k%3)}]"); x.light=1; x.defs=set(); L.append(x)
        if k>=2: L+=M(f"v_writelane_b32 v{vST()}, s{90+2*((k-2)%3)}, {k-2}")
        return L
    def stamp(s,name,grp='m'): s.ext(s.st(name,grp))
    def lr(s,n,*r): LR([i for i in s.L[-n:] if isinstance(i,I)],*r)
    def lw(s,n,*r): LW([i for i in s.L[-n:] if isinstance(i,I)],*r)
    def label(s,p): s.nlab+=1; return f"L{s.tag}_{p}_{s.nlab}"
    def check(s, loads, checks, name):
        R=s.label(name+'r'); L=s.label(name+'l'); B=s.label(name+'b')
        o=Asm(); o.lab(R); o(f"s_mov_b32 s{sCNT}, 0")
        if CFG['stamps'] and s.tag!='S':
            n=len(site_names); site_names.append(name); o(f"s_bitset1_b32 s98, {n}")
        o.lab(L)
        for l in loads: o(l)
        o("s_waitcnt vmcnt(0)")
        for c in checks: o(c)
        o(f"s_cbranch_vccz {B}\ns_add_u32 s{sCNT}, s{sCNT}, 1\ns_cmp_lt_u32 s{sCNT}, {POLLMAX}\ns_cbranch_scc1 {L}\ns_branch {B}")
        s.ool.append(o.L)
        ck=[mk(c) for c in checks]
        return [mk(l,R) for l in loads], [('WVM',R)]+ck[:-1]+[[ck[-1],mk(f"s_cbranch_vccnz {R}"),mk(B+":")]]
    def flat(s, items):
        for it in items:
            if isinstance(it,list): s.ext(it)
            elif isinstance(it,tuple) and it[0] in('AT','GAP','GAPV','SYNC','AFTER','BY','DENS','BK'): pass
            else: s.L.append(it)
    def weave(s, bb, *streams, slots=2, name=None):
        out,rest=weave(bb,streams,slots)
        s.ext(s.trace(out,CFG.get('tev_',4),name) if name else out); s.ext(rest)
        if rest and CFG.get('v'): print("  leftover fillers:",len(rest),[getattr(r,'text',r) for r in rest[:2]])

def entry(a):
    a.stamp("entry","*")
    if CFG["stamps"]: a("s_memtime s[100:101]\ns_waitcnt lgkmcnt(0)\ns_mov_b32 s99, s100\ns_mov_b32 s98, 0")
    a("s_cmp_ge_u32 s2, 256\ns_cbranch_scc1 L_end")
    first=((SK_,8),(SV_,16),(SSK,24),(WS,96)); later=((SH_,32),(SD_,40),(SQ_,0),(SWG,56),(SWU,64),(SWD,72),(SO_,80))
    if CFG['kl']==2: a("s_load_dwordx4 s[64:67], s[0:1], 8"); later=((SSK,24),(WS,96))+later; first=()
    if CFG['kl']==4: a("s_load_dwordx8 s[64:71], s[0:1], 8"); first=((WS,96),); later=later[1:]
    if CFG['kl']==5: a("s_load_dwordx16 s[64:79], s[0:1], 0\ns_load_dwordx8 s[80:87], s[0:1], 64"); first=((WS,96),); later=()
    if CFG['kl']==3: first=first[:2]; later=((SSK,24),(WS,96))+later
    for b,off in first+(() if CFG['kl'] else later):
        a(f"s_load_dwordx2 s[{b}:{b+1}], s[0:1], {off}")
    a(f"v_lshrrev_b32 v40, 6, v0\nv_and_b32 v{vLane}, 63, v0")
    a(f"s_and_b32 s{sX}, s2, 7\ns_lshr_b32 s{sR}, s2, 3")
    a(f"v_readfirstlane_b32 s{sWV}, v40")
    a(f"v_lshlrev_b32 v{vL}, 4, v{vLane}")
    if CFG['prefetch']:
        a(f"s_getpc_b64 s[{sT2}:{sT2+1}]")
        a("L_pc:")
        a(f"s_lshl_b32 s{sT0}, s{sWV}, 5\ns_add_u32 s{sT0}, s{sT0}, s{sR}\ns_lshl_b32 s{sT0}, s{sT0}, 10")
        a(f"v_add_u32 v42, s{sT0}, v{vL}\nv_min_u32 v42, L_fast_end-L_pc-16, v42")
        a(f"v_mov_b32 v43, s{sT2+1}\nv_add_co_u32 v42, vcc, s{sT2}, v42")
        a(f"v_lshrrev_b32 v48, 3, v{vLane}\nv_and_b32 v49, 7, v{vLane}")
        a("v_addc_co_u32 v43, vcc, 0, v43, vcc")
        a("global_load_dwordx4 v[44:47], v[42:43], off")
    else:
        a(f"v_lshrrev_b32 v48, 3, v{vLane}\nv_and_b32 v49, 7, v{vLane}")
    a(f"v_lshlrev_b32 v49, 4, v49\nv_lshl_add_u32 v{vW2}, v48, 10, v49")
    a(f"s_lshl_b32 s{sT0}, s{sR}, 16\ns_lshl_b32 s{sT1}, s{sX}, 7\ns_add_u32 s{sT0}, s{sT0}, s{sT1}")
    a(f"s_sub_u32 s{sT1}, s{sT0}, 8192\nv_add_u32 v49, s{sT1}, v{vW2}")
    a(f"s_lshl_b32 s{sT1}, s{sWV}, 13\ns_add_u32 s{sT0}, s{sT0}, s{sT1}\nv_add_u32 v48, s{sT0}, v{vW2}")
    a(f"s_mul_i32 s{sT1}, s{sWV}, {CHP}\ns_mov_b32 s{sSOFF}, 32768")
    for b,n in ((SK_,2<<20),(SV_,2<<20),(WS,256<<20),(SSK,4096)):
        a(f"s_mov_b32 s{b+2}, {n}\ns_mov_b32 s{b+3}, 0x20000")
    a(f"v_and_b32 v{vJ}, 15, v{vLane}\nv_lshrrev_b32 v{vQ}, 4, v{vLane}")
    a(f"s_lshl_b32 s{sT0}, s{sX}, 6\ns_lshl_b32 s{sT2}, s{sWV}, 4\ns_add_u32 s{sT0}, s{sT0}, s{sT2}\nv_add_u32 v55, s{sT0}, v{vJ}")
    a(f"v_lshlrev_b32 v78, 3, v55\nv_mov_b32 v50, 0")
    a(f"s_add_u32 m0, s{sT1}, {L_K+CHP}\ns_mov_b32 s{sT2}, {L_V+8*CHP}")
    a("s_waitcnt lgkmcnt(0)")
    if CFG['kl']!=5: a.stamp("kernarg","f")
    if CFG['kl']==5: a(f"s_mov_b64 s[{SK_}:{SK_+1}], s[66:67]\ns_mov_b64 s[{SV_}:{SV_+1}], s[68:69]")
    if CFG['kl'] in(2,4): a(f"s_mov_b64 s[{SK_}:{SK_+1}], s[64:65]\ns_mov_b64 s[{SV_}:{SV_+1}], s[66:67]")
    if CFG.get('probe'):
        if CFG['probe']==1: a("s_load_dwordx2 s[96:97], s[0:1], 48\ns_waitcnt lgkmcnt(0)\ns_mov_b32 s98, 0x200000\ns_mov_b32 s99, 0x20000"); S="s[96:99]"; base=0
        else: S=srd(WS); base=CFG['probe']<<24
        a(f"s_lshl_b32 s95, s2, 2\ns_add_u32 s95, s95, s{sWV}\ns_lshl_b32 s95, s95, 11\ns_add_u32 s95, s95, {base}\nv_mov_b32 v60, s95")
        for i in range(16):
            a(f"buffer_load_dword v61, v60, {S}, 0 offen offset:{128*i}\nv_and_b32 v61, 0, v61\nv_add_u32 v60, v60, v61")
    a(f"buffer_load_dwordx4 v48, {srd(SK_)}, 0 offen lds","kv")
    a(f"s_add_u32 m0, s{sT1}, {L_V}");       a(f"buffer_load_dwordx4 v48, {srd(SV_)}, 0 offen lds","kv")
    a(f"s_add_u32 m0, s{sT1}, {L_K+5*CHP}"); a(f"buffer_load_dwordx4 v48, {srd(SK_)}, s{sSOFF} offen lds","kv")
    a(f"s_add_u32 m0, s{sT1}, {L_V+4*CHP}"); a(f"buffer_load_dwordx4 v48, {srd(SV_)}, s{sSOFF} offen lds","kv")
    a(f"s_cmp_eq_u32 s{sWV}, 3\ns_cselect_b32 m0, {L_K}, s{sT2}\ns_cselect_b32 s{sSOFF}, 0, {OOB}")
    a(f"buffer_load_dwordx4 v49, {srd(SK_)}, s{sSOFF} offen lds","kv")
    a.lw(13,(L_K,L_V+8*CHP+1024))
    if CFG['kl']==4: a(f"s_mov_b64 s[{SSK}:{SSK+1}], s[68:69]\ns_mov_b64 s[{SH_}:{SH_+1}], s[70:71]")
    if CFG['kl']==5:
        for b,r in ((SSK,70),(SH_,72),(SD_,74),(SQ_,64),(SWG,78),(SWU,80),(SWD,82),(SO_,84)): a(f"s_mov_b64 s[{b}:{b+1}], s[{r}:{r+1}]")
    if CFG['kl'] in(2,3):
        for b,off in later: a(f"s_load_dwordx2 s[{b}:{b+1}], s[0:1], {off}")
        later=()
    a(f"buffer_load_dwordx2 {V(80,2)}, v78, {srd(SSK)}, 0 offen")
    a(f"buffer_load_dword v51, v50, {srd(WS)}, 0 offen sc1")
    if CFG['kl']:
        for b,off in later: a(f"s_load_dwordx2 s[{b}:{b+1}], s[0:1], {off}")
    if CFG['kl']==5 and CFG['stamps']: a(f"s_mov_b32 s{STAMP0}, s97")
    a.stamp("kv issued","f")
    for b,n in ((SH_,4096),(SD_,1024),(SQ_,2<<20),(SWG,512*1376*2),(SWU,512*1376*2),(SWD,512*1376*2),(SO_,2<<20)):
        a(f"s_mov_b32 s{b+2}, {n}\ns_mov_b32 s{b+3}, 0x20000")
    a(f"""s_lshr_b32 s{sT0}, s{sR}, 4
        s_lshl_b32 s{sG}, s{sX}, 1
        s_add_u32 s{sG}, s{sG}, s{sT0}
        s_and_b32 s{sM}, s{sR}, 15
        s_lshr_b32 s{sRH}, s{sM}, 3
        s_and_b32 s{sCT2}, s{sM}, 7
        s_lshr_b32 s{sKH}, s{sWV}, 1
        s_and_b32 s{sCHH}, s{sWV}, 1
        s_waitcnt lgkmcnt(0)
        s_mov_b32 s{sMB}, 0x100000""")
    a(f"s_cmp_eq_u32 s{sM}, 15\ns_cselect_b32 s{SWG+2}, 0, s{SWG+2}\ns_cselect_b32 s{SWU+2}, 0, s{SWU+2}")
    a(f"s_lshl_b32 s{sT0}, s{sX}, 6\ns_lshl_b32 s{sT1}, s{sR}, 1\ns_add_u32 s{sT0}, s{sT0}, s{sT1}\ns_add_u32 s{sT2}, s{sT0}, s{sKH}")
    a(f"s_lshl_b32 s{sT0}, s{sT2}, 12\ns_add_u32 s{SH_}, s{SH_}, s{sT0}\ns_addc_u32 s{SH_+1}, s{SH_+1}, 0")
    a(f"s_lshl_b32 s{sT0}, s{sCHH}, 11\nv_add_u32 v52, s{sT0}, v{vL}")
    a(f"v_min_u32 v53, 1, v{vLane}\nv_lshlrev_b32 v53, 4, v53\nv_subrev_u32 v53, 32, v53")
    a(f"s_lshl_b32 s{sT0}, s{sT2}, 1\nv_mov_b32 v{vD}, s{sT0}")
    if CFG['ssmat']==0: ssm_loads(a)
    a(f"""v_and_b32 v96, 1, v{vQ}
        v_lshlrev_b32 v96, 2, v96
        v_lshrrev_b32 v97, 2, v{vJ}
        v_add_u32 v96, v96, v97
        v_lshlrev_b32 v96, 16, v96
        v_and_b32 v97, 3, v{vJ}
        v_lshl_add_u32 v96, v97, 5, v96
        v_lshrrev_b32 v97, 1, v{vQ}
        v_lshl_add_u32 v96, v97, 4, v96
        s_lshl_b32 s{sT0}, s{sCHH}, 19
        s_lshl_b32 s{sT1}, s{sT2}, 7
        s_add_u32 s{sT0}, s{sT0}, s{sT1}
        s_add_u32 s{sT0}, s{sT0}, {OFF_YT}
        v_add_u32 v{vYo}, s{sT0}, v96
        s_mov_b32 s{sHELLO}, s{sT2}""")
    a(f"v_mov_b32 v{vOne}, {OOB}\nv_cmp_eq_u32 vcc, 0, v{vLane}\nv_cndmask_b32 v{vOne}, v{vOne}, v50, vcc")
    a(f"""s_lshl_b32 s{sT0}, s{sG}, 2
        s_lshl_b32 s{sT1}, s{sRH}, 1
        s_add_u32 s{sT1}, s{sT1}, s{sKH}
        s_add_u32 s{sT0}, s{sT0}, s{sT1}
        s_lshl_b32 s{sT1}, s{sKH}, 1
        s_add_u32 s{sT1}, s{sT1}, s{sRH}""")
    a(f"""s_lshl_b32 s{sGRl}, s{sT0}, 12
        s_add_u32 s{sGRl}, s{sGRl}, {OFF_GRAN}
        s_lshl_b32 s{sS5l}, s{sT0}, 10
        s_add_u32 s{sS5l}, s{sS5l}, {OFF_S5}
        s_lshl_b32 s{sT3}, s{sCT2}, 1
        s_add_u32 s{sT3}, s{sT3}, s{sCHH}""")
    a(f"""s_lshl_b32 s{sGR}, s{sT3}, 8
        s_add_u32 s{sGR}, s{sGR}, s{sGRl}
        s_lshl_b32 s{sS5}, s{sT3}, 2
        s_add_u32 s{sS5}, s{sS5}, s{sS5l}
        s_lshl_b32 s{sXS}, s{sG}, 17
        s_lshl_b32 s{sT1}, s{sT1}, 14
        s_add_u32 s{sXS}, s{sXS}, s{sT1}
        s_lshl_b32 s{sT1}, s{sX}, {1 if CFG['rot'] else 8}
        s_sub_u32 s{sT1}, s{sT3}, s{sT1}
        s_and_b32 s{sT1}, s{sT1}, 15
        s_lshl_b32 s{sT1}, s{sT1}, 10
        s_add_u32 s{sXS}, s{sXS}, s{sT1}
        s_add_u32 s{sXS}, s{sXS}, {OFF_XF}
        s_lshl_b32 s{sT0}, s{sT0}, 14
        s_lshl_b32 s{sT1}, s{sT3}, 6
        s_add_u32 s{sT0}, s{sT0}, s{sT1}""")
    a(f"v_lshlrev_b32 v{vTok}, 10, v{vJ}\nv_lshl_add_u32 v{vTok}, v{vQ}, 4, v{vTok}\nv_add_u32 v{vTok}, s{sT0}, v{vTok}")
    a(f"v_lshlrev_b32 v{vGs}, 4, v{vJ}\nv_lshl_add_u32 v{vGl}, v{vQ}, 10, v{vGs}\nv_lshl_add_u32 v{vGs}, v{vQ}, 2, v{vGs}")
    a(f"v_lshlrev_b32 v{vS5l}, 6, v{vJ}\nv_mov_b32 v{vS5s}, {OOB}\nv_cmp_eq_u32 vcc, 0, v{vQ}\nv_cndmask_b32 v{vS5s}, v{vS5s}, v{vS5l}, vcc")
    a(f"v_lshl_add_u32 v{vS5l}, v{vQ}, 4, v{vS5l}")
    a(f"s_lshl_b32 s{sT0}, s{sX}, 5\ns_add_u32 s{sT0}, s{sT0}, s{sR}\ns_lshl_b32 s{sHF}, s{sT0}, 7\ns_lshl_b32 s{sT0}, s{sWV}, 2\ns_add_u32 s{sHF}, s{sHF}, s{sT0}\ns_add_u32 s{sHF}, s{sHF}, {OFF_HELLO}")
    a(f"""s_lshl_b32 s{sXW}, s{sCHH}, 14
        s_lshl_b32 s{sT0}, s{sKH}, 12
        s_add_u32 s{sXW}, s{sXW}, s{sT0}
        s_lshl_b32 s{sT0}, s{sG}, 17
        s_add_u32 s{sT0}, s{sT0}, s{sXW}
        s_add_u32 s{sT0}, s{sT0}, {OFF_XF}
        v_add_u32 v{vXD}, s{sT0}, v{vL}
        s_lshl_b32 s{sHW}, s{sWV}, 13
        s_mul_i32 s{sHK}, s{sKH}, {3*8192}
        s_lshl_b32 s{sHS}, s{sKH}, 13
        s_add_u32 s{sHS}, s{sHS}, 8192
        s_lshl_b32 s{sT0}, s{sG}, 3
        s_add_u32 s{sT1}, s{sRH}, s{sT0}
        s_mul_i32 s{sT1}, s{sT1}, {HKS}
        s_mul_i32 s{sT3}, s{sKH}, 21
        s_add_u32 s{sT1}, s{sT1}, s{sT3}
        s_lshl_b32 s{sT1}, s{sT1}, 10
        s_add_u32 s{sT1}, s{sT1}, {OFF_H}
        v_add_u32 v{vHD}, s{sT1}, v{vL}""")
    a(f"""s_mul_i32 s{sT0}, s{sT0}, {HKS*1024}
        s_mul_i32 s{sT1}, s{sM}, 12
        s_mul_i32 s{sT3}, s{sWV}, 3
        s_add_u32 s{sT1}, s{sT1}, s{sT3}
        s_lshl_b32 s{sT1}, s{sT1}, 8
        s_add_u32 s{sT0}, s{sT0}, s{sT1}
        s_add_u32 s{sT0}, s{sT0}, {OFF_H}
        s_mov_b32 s{sT1}, {HKS*1024}
        v_lshlrev_b32 v97, 4, v{vJ}
        v_add_u32 v97, s{sT0}, v97
        v_and_b32 v98, 1, v{vQ}
        v_mad_u32_u24 v{vHS1}, v98, s{sT1}, v97
        v_add_u32 v{vHS2}, 512, v{vHS1}
        v_cmp_gt_u32 vcc, 32, v{vLane}
        v_mov_b32 v97, {OOB}
        v_cndmask_b32 v{vHS2}, v97, v{vHS2}, vcc
        v_lshrrev_b32 v98, 1, v{vQ}
        v_lshl_add_u32 v{vHS1}, v98, 8, v{vHS1}
        v_lshlrev_b32 v{vFX}, 2, v{vLane}
        v_min_u32 v{vFH}, 57, v{vLane}
        v_lshlrev_b32 v{vFH}, 2, v{vFH}
        s_lshl_b32 s{sFL}, s{sG}, 9
        s_lshl_b32 s{sFLG}, s{sM}, 2
        s_add_u32 s{sFLG}, s{sFLG}, s{sWV}
        s_lshl_b32 s{sFLG}, s{sFLG}, 2
        s_add_u32 s{sFLG}, s{sFLG}, s{sFL}
        s_nop 0""")
    if CFG['idle']:
        a(f"""s_lshl_b32 s{sT0}, s{sM}, 2
            s_add_u32 s{sT0}, s{sT0}, s{sWV}
            s_cmp_ge_u32 s{sT0}, 58
            s_cselect_b32 s{sT0}, 0x40000000, 0
            v_or_b32 v{vHS1}, s{sT0}, v{vHS1}
            v_or_b32 v{vHS2}, s{sT0}, v{vHS2}
            s_cmp_eq_u32 s{sM}, 15
            s_cselect_b32 s{sT0}, 0x40000000, 0
            v_or_b32 v{vXD}, s{sT0}, v{vXD}""")
    w_setup(a)
    a(f"""v_mul_u32_u24 v83, {2*CHP}, v{vQ}
        v_bfe_u32 v101, v{vLane}, 2, 2
        v_lshl_add_u32 v83, v101, 7, v83
        v_and_b32 v101, 3, v{vLane}
        v_lshl_add_u32 v83, v101, 3, v83
        s_lshl_b32 s{sT0}, s{sWV}, 5
        v_add_u32 v83, s{sT0}, v83""")
    a(f"v_and_b32 v55, -9, v55\nv_lshlrev_b32 v55, 12, v55\nv_lshl_add_u32 v55, v{vQ}, 5, v55\nv_lshrrev_b32 v101, 3, v{vJ}\nv_lshl_add_u32 v55, v101, 4, v55\ns_lshl_b32 s{sT0}, s{sR}, 7\ns_add_u32 s{sT0}, s{sT0}, {OFF_KVT}\nv_add_u32 v55, s{sT0}, v55")
    a(f"v_lshrrev_b32 v100, 5, v{vLane}\nv_mul_u32_u24 v100, {UCH-512}, v100\nv_add_u32 v100, v100, v{vL}")
    a("v_mov_b32 v104, 0\nv_mov_b32 v105, 0\nv_mov_b32 v106, 0\nv_mov_b32 v107, 0")
    a(f"ds_write_b128 v100, {V(104)} offset:{L_U}"); a.lw(1,(L_U,L_U+512),(L_U+UCH,L_U+UCH+512))
    a(f"""s_lshl_b32 s{sT0}, s{sWV}, 12
        s_add_u32 s{sT1}, s{sT0}, {L_CX}
        v_add_u32 v{vCXw}, s{sT1}, v{vL}
        s_lshl_b32 s{sT2}, s{sCHH}, 11
        v_add_u32 v{vCXo}, s{sT2}, v{vCXw}
        v_xor_b32 v{vCXp}, 4096, v{vL}
        s_xor_b32 s{sT0}, s{sT0}, 4096
        s_add_u32 s{sT0}, s{sT0}, s{sT2}
        s_add_u32 s{sT0}, s{sT0}, {L_CX}
        v_add_u32 v{vCXp}, s{sT0}, v{vL}
        s_lshl_b32 s{sT0}, s{sCHH}, 10
        s_mul_i32 s{sT1}, s{sKH}, {UCH}
        s_add_u32 s{sT0}, s{sT0}, s{sT1}
        s_add_u32 s{sT0}, s{sT0}, {L_U+512+8}
        v_lshlrev_b32 v{vKV}, 5, v{vJ}
        v_lshrrev_b32 v100, 1, v{vQ}
        v_lshl_add_u32 v{vKV}, v100, 4, v{vKV}
        v_and_b32 v100, 1, v{vQ}
        v_lshlrev_b32 v100, 3, v100
        v_sub_u32 v{vKV}, v{vKV}, v100
        v_add_u32 v{vKV}, s{sT0}, v{vKV}
        v_lshrrev_b32 v100, 2, v0
        v_lshlrev_b32 v100, 7, v100
        v_and_b32 v101, 3, v0
        v_lshl_add_u32 v100, v101, 4, v100
        s_lshl_b32 s{sT0}, s{sG}, 16
        s_lshl_b32 s{sT1}, s{sCT2}, 13
        s_add_u32 s{sT0}, s{sT0}, s{sT1}
        s_lshl_b32 s{sT1}, s{sRH}, 6
        s_add_u32 s{sT0}, s{sT0}, s{sT1}
        s_add_u32 s{sT0}, s{sT0}, {OFF_YT}
        v_add_u32 v{vGA}, s{sT0}, v100
        v_lshlrev_b32 v{vGW}, 4, v0
        v_add_u32 v{vGW}, {L_YS}, v{vGW}
        v_bfe_u32 v100, v{vLane}, 2, 2
        v_lshl_add_u32 v100, v{vQ}, 3, v100
        v_lshlrev_b32 v100, 6, v100
        v_and_b32 v101, 3, v{vLane}
        v_lshl_add_u32 v100, v101, 3, v100
        s_lshl_b32 s{sT0}, s{sCHH}, 11
        s_lshl_b32 s{sT1}, s{sKH}, 5
        s_add_u32 s{sT0}, s{sT0}, s{sT1}
        s_add_u32 s{sT0}, s{sT0}, {L_YS}
        v_add_u32 v{vGT}, s{sT0}, v100
        v_and_b32 v100, 7, v{vLane}
        v_lshlrev_b32 v100, 7, v100
        v_bfe_u32 v101, v{vLane}, 3, 2
        v_lshl_add_u32 v100, v101, 14, v100
        s_lshl_b32 s{sT0}, s{sFL}, 1
        s_add_u32 s{sT0}, s{sT0}, {OFF_XFLAG}
        v_add_u32 v{vFT}, s{sT0}, v100
        v_and_b32 v100, 31, v{vLane}
        v_lshlrev_b32 v100, 7, v100
        v_cmp_gt_u32 vcc, 32, v{vLane}
        s_lshl_b32 s{sT0}, s{sCT2}, 12
        s_lshl_b32 s{sT1}, s{sX}, 12
        v_mov_b32 v101, s{sT0}
        v_mov_b32 v102, s{sT1}
        v_cndmask_b32 v101, v101, v102, vcc
        v_add_u32 v100, {OFF_HELLO}, v100
        v_add_u32 v{vHa}, v100, v101""")
    if CFG['hsplit']:
        a(f"""s_and_b32 s{sT2}, s{sWV}, 1
            s_lshl_b32 s{sT2}, s{sT2}, 11
            s_cmp_lt_u32 s{sWV}, 2
            s_cselect_b32 s{sT0}, s{sT1}, s{sT0}
            s_add_u32 s{sT0}, s{sT0}, s{sT2}
            s_add_u32 s{sT0}, s{sT0}, {OFF_HELLO}
            v_lshlrev_b32 v100, 7, v{vJ}
            v_add_u32 v{vHa}, s{sT0}, v100""")
    a(f"""s_lshl_b32 s{sT0}, s{sHELLO}, 12
        s_lshl_b32 s{sT1}, s{sCHH}, 11
        s_add_u32 s{sT0}, s{sT0}, s{sT1}
        s_add_u32 s{sT0}, s{sT0}, {OFF_KVT}
        v_lshlrev_b32 v100, 7, v{vLane}
        v_add_u32 v100, s{sT0}, v100
        s_lshr_b32 s{sT0}, s{sR}, 3
        s_lshl_b32 s{sT1}, s{sX}, 2
        s_add_u32 s{sT0}, s{sT0}, s{sT1}
        s_lshl_b32 s{sT0}, s{sT0}, 7
        s_add_u32 s{sT0}, s{sT0}, {OFF_F1L}
        v_mov_b32 v101, s{sT0}
        v_cmp_gt_u32 vcc, 16, v{vLane}
        v_cndmask_b32 v{vTch}, v101, v100, vcc""")
    if CFG['ft1']:
        a(f"s_lshl_b32 s{sT0}, s{sM}, 2\ns_add_u32 s{sT0}, s{sT0}, s{sWV}\ns_and_b32 s{sT0}, s{sT0}, 31\ns_nop 1\nv_readlane_b32 s{sT0}, v{vFT}, s{sT0}\nv_writelane_b32 v{vTch}, s{sT0}, 17")
    if CFG['utouch']==0: a(f"buffer_load_dword v{vTch}, v{vTch}, {srd(WS)}, 0 offen sc1")
    if CFG['ssmat']==1: ssm_loads(a)
    a(f"""v_lshlrev_b32 v{vCg}, 4, v{vJ}
        v_lshl_add_u32 v{vCg}, v{vQ}, 18, v{vCg}
        v_lshrrev_b32 v{vCs}, 3, v{vLane}
        v_lshlrev_b32 v{vCs}, 16, v{vCs}
        v_and_b32 v100, 7, v{vLane}
        v_lshl_add_u32 v{vCs}, v100, 4, v{vCs}
        s_lshl_b32 s{sT0}, s{sCHH}, 17
        s_lshl_b32 s{sT1}, s{sCT2}, 7
        s_add_u32 s{sT0}, s{sT0}, s{sT1}
        s_add_u32 s{sT0}, s{sT0}, s{sS5l}
        v_add_u32 v{vCs}, s{sT0}, v{vCs}
        v_cmp_gt_u32 vcc, 16, v{vLane}
        v_mov_b32 v100, {OOB}
        v_add_u32 v{vCg}, s{sGR}, v{vCg}
        v_cndmask_b32 v{vCs}, v100, v{vCs}, vcc""")
    if CFG['clr']==0: clears(a)
    a.stamp("setup done","f")

def ssm_loads(a):
    a(f"s_mul_i32 s{sT0}, s{sKH}, {UCH}\ns_lshl_b32 s{sT1}, s{sCHH}, 11\ns_add_u32 s{sT0}, s{sT0}, s{sT1}\ns_add_u32 m0, s{sT0}, {L_U+512}")
    a(f"buffer_load_dwordx4 v{vL}, {srd(SH_)}, s{sT1} offen lds\nbuffer_load_dwordx4 v{vL}, {srd(SH_)}, s{sT1} offen offset:1024 lds","ssm")
    a.lw(2,(L_U+512,L_U+UCH),(L_U+UCH+512,L_U+2*UCH))
    a(f"buffer_load_ushort v{vD}, v{vD}, {srd(SD_)}, 0 offen")

def clears(a,tok=None):
    a("v_mov_b32 v112, -1\nv_mov_b32 v113, -1\nv_mov_b32 v114, -1\nv_mov_b32 v115, -1")
    a(f"""buffer_store_dwordx4 {V(112)}, v{vYo}, {srd(WS)}, 0 offen sc1
        buffer_store_dwordx4 {V(112)}, v{vYo}, {srd(WS)}, s{sMB} offen sc1
        buffer_store_dwordx4 {V(112)}, v{vCg}, {srd(WS)}, 0 offen sc1
        buffer_store_dwordx4 {V(112)}, v{vCs}, {srd(WS)}, 0 offen sc1""",tok)

def w_setup(a):
    lane,j,q=vLane,vJ,vQ
    for b in range(3):
        a(f"v_add_u32 v100, {64*b}, v{lane}\nv_mul_u32_u24 v101, 43691, v100\nv_lshrrev_b32 v101, 19, v101")
        a(f"v_mul_u32_u24 v102, 12, v101\nv_sub_u32 v100, v100, v102\nv_lshlrev_b32 v100, 4, v100")
        if CFG['swz']:
            a("v_lshrrev_b32 v102, 3, v101\nv_lshlrev_b32 v102, 5, v102\nv_sub_u32 v100, v100, v102\nv_add_u32 v102, 192, v100\nv_min_u32 v100, v100, v102")
        a(f"v_mul_u32_u24 v101, 2752, v101\nv_add_u32 v{vW1[b]}, v100, v101")
        if CFG['z14']: a(f"s_cmp_eq_u32 s{sM}, 14\ns_cselect_b32 s{sT0}, 64, 192\nv_cmp_gt_u32 vcc, s{sT0}, v100\nv_mov_b32 v101, 0x40000000\nv_cndmask_b32 v{vW1[b]}, v101, v{vW1[b]}, vcc")
    a(f"s_mul_i32 s{sT0}, s{sWV}, {16*2752}\ns_mul_i32 s{sT1}, s{sM}, 192\ns_add_u32 s{sT0}, s{sT0}, s{sT1}")
    for b in range(3):
        a(f"v_add_u32 v{vW1[b]}, s{sT0}, v{vW1[b]}")
        if b: a(f"v_subrev_u32 v{vW1[b]}, {1024*b}, v{vW1[b]}")
    a(f"""v_bfe_u32 v100, v{lane}, 2, 2
        v_lshl_add_u32 v100, v{q}, 3, v100
        v_and_b32 v101, 3, v{lane}
        v_mul_u32_u24 v102, 192, v100
        s_mul_i32 s{sT0}, s{sWV}, 48
        v_and_b32 v104, {1 if CFG['swz'] else 0}, v{q}
        v_lshlrev_b32 v104, 5, v104
        v_add_u32 v104, s{sT0}, v104
        v_lshl_add_u32 v103, v101, 3, v104
        v_subrev_u32 v105, 192, v103
        v_min_u32 v103, v103, v105
        v_add_u32 v{vTa}, v102, v103
        v_lshrrev_b32 v103, 1, v101
        v_lshl_add_u32 v103, v103, 3, v104
        v_add_u32 v103, 32, v103
        v_subrev_u32 v105, 192, v103
        v_min_u32 v103, v103, v105
        v_add_u32 v102, v102, v103
        v_and_b32 v103, 1, v101
        v_mul_u32_u24 v103, 12288, v103
        v_add_u32 v{vTm}, v102, v103
        v_lshlrev_b32 v102, 7, v100
        v_lshl_add_u32 v102, v101, 4, v102
        s_lshl_b32 s{sT1}, s{sWV}, 12
        s_add_u32 s{sT1}, s{sT1}, {L_PP}
        v_add_u32 v{vT2}, s{sT1}, v102
        s_mul_i32 s{sW1W}, s{sWV}, 3072""")

def c_dma(n, slot):
    if CFG.get('now1'): return []
    L=M(f"s_add_u32 s{sWo}, s{sX}, {n}\ns_and_b32 s{sWo}, s{sWo}, 7\ns_mul_i32 s{sWo}, s{sWo}, {64*2752}") if CFG['rot'] else M(f"s_mov_b32 s{sWo}, {n*64*2752}")
    for mat,S in ((0,SWG),(1,SWU)):
        L+=M(f"s_add_u32 m0, s{sW1W}, {slot+mat*12288}")
        for b in range(3): L+=M(f"buffer_load_dwordx4 v{vW1[b]}, {srd(S)}, s{sWo} offen offset:{1024*b} lds",f"c{n}")
    return LW(L,(slot,slot+WSL))
def c_read(n, slot):
    if CFG.get('now1'): return []
    L=M(f"v_add_u32 v{vWc0}, {slot}, v{vTa}\nv_add_u32 v{vWc1}, {slot}, v{vTm}")
    for sp in range(2):
        s=2*n+sp
        for hh in range(2):
            o=sp*6144+hh*768
            L+=M(f"""ds_read_b64_tr_b16 {W1h(s,0,hh)}, v{vWc0} offset:{o}
                     ds_read_b64_tr_b16 {W1h(s,1,hh)}, v{vWc0} offset:{o+12288}
                     ds_read_b64_tr_b16 {W1h(s,2,hh)}, v{vWc1} offset:{o}""",f"cr{n}")
    return LR(L,(slot,slot+WSL))
def pp_setup():
    return M(f"""s_lshl_b32 s{sT0}, s{sWV}, 8
        s_add_u32 s{sT0}, s{sT0}, s2
        s_mul_i32 s{sT1}, s{sT0}, 1525
        s_lshr_b32 s{sT1}, s{sT1}, 16
        s_mul_i32 s{sT2}, s{sT1}, 43
        s_sub_u32 s{sT2}, s{sT0}, s{sT2}
        s_lshl_b32 s{sPS}, s{sT2}, 15
        s_lshl_b32 s{sT3}, s{sT1}, 7
        s_add_u32 s{sPS}, s{sPS}, s{sT3}
        s_mul_i32 s{sPD}, s{sT1}, 86
        s_add_u32 s{sPD}, s{sPD}, s{sT2}
        s_lshl_b32 s{sPD}, s{sPD}, 11
        s_add_u32 s{sPD}, s{sPD}, {OFF_P2}
        s_lshl_b32 s{sPF}, s{sT0}, 7
        s_add_u32 s{sPF}, s{sPF}, {OFF_P2F}
        s_cmp_lt_u32 s{sT0}, 344
        s_cselect_b32 s{sPS}, s{sPS}, {OOB}
        s_cselect_b32 s{sPD}, s{sPD}, {OOB}
        s_cselect_b32 s{sPF}, s{sPF}, {OOB}
        s_lshl_b32 s{sT0}, s{sCT2}, 1
        s_add_u32 s{sT0}, s{sT0}, s{sCHH}
        s_mul_i32 s{sT0}, s{sT0}, 43
        s_mul_i32 s{sT1}, s{sKH}, 21
        s_add_u32 s{sT0}, s{sT0}, s{sT1}
        s_lshl_b32 s{sT0}, s{sT0}, 11
        s_add_u32 s{sW2B}, s{sT0}, {OFF_P2}
        s_cmp_eq_u32 s{sKH}, 0
        s_cselect_b32 s{sW20}, s{sW2B}, {OOB}""")
def pp_load():
    L=M(f"s_lshl_b32 s{sT3}, s{sWV}, 12")
    for r in range(4):
        L+=M(f"s_add_u32 m0, s{sT3}, {L_PP+1024*r}\ns_add_u32 s{sWo}, s{sPS}, {8192*r}")
        L+=M(f"buffer_load_dwordx4 v{vW2}, {srd(SWD)}, s{sWo} offen lds","pp")
    for x in L: x.priv=1
    return LW(L,(L_PP,L_PP+16384))
def touches():
    return M(f"""buffer_load_dword v{vCg}, v{vCg}, {srd(WS)}, 0 offen sc1
        buffer_load_dword v{vCs}, v{vCs}, {srd(WS)}, 0 offen sc1
        buffer_load_dword v{vFT}, v{vFT}, {srd(WS)}, 0 offen sc1""")[:2 if CFG['ft1'] else 3]
def extras(pos): return (pp_load() if CFG['ppat']==pos else [])+(touches() if CFG['tat']==pos else [])+(h_touch(TCHK()) if CFG['hat']==pos else [])
def pp_pack():
    L=[('WVM','pp')]
    for c in range(2):
        for t in range(2):
            for hh in range(2): L+=LR(M(f"ds_read_b64_tr_b16 {V(W2V+8*c+4*t+2*hh,2)}, v{vT2} offset:{hh*512+64*c+8*t}"),(L_PP,L_PP+16384))
    for x in L[1:]: x.priv=1
    S=[]
    for c in range(2):
        S+=M(f"s_add_u32 s{sT2}, s{sPD}, {c*43*2048}")
        for t in range(2): S+=M(f"buffer_store_dwordx4 {V(W2V+8*c+4*t)}, v{vL}, {srd(WS)}, s{sT2} offen offset:{1024*t} sc1","pps")
    return L,S
def W2E():
    n=sum(int(o[1:]) for v in PL().values() if isinstance(v,str) for o in v.split() if o[0]=='p')
    assert n%4==0 and n<=16
    return n//2
def w2_loads():
    L=[]
    ne=W2E()
    for i in list(range(22-ne,22))+list(range(22-ne)):
        so=sW20 if i==0 else (sW2B if i==1 else sPS)
        if i>=2 and i%2==0: L+=M(f"s_add_u32 s{sPS}, s{sW2B}, {i*2048}")
        for t in range(2): L+=M(f"buffer_load_dwordx4 {W2(i,t)}, v{vL}, {srd(WS)}, s{so} offen offset:{(i&1)*2048+t*1024} sc1",f"w2_{i}")
    return L
W2Q=[]
def w2_take(n):
    out=[]
    while W2Q and n>0:
        x=W2Q.pop(0); out.append(x)
        if x.kind=='vmem': n-=1
    return out

PLANS={
 0:dict(),
 1:dict(FL="i0", T2="i1", CV=[("a",20,"r0"),("d",40,"i2"),("a",84,"w1 b r1"),("d",100,"i3@0")], YS="i4@5", YA="w3 b r2 r3", GL="i5@1 w4 l b r4", ST="i6@2", PEND=[5,6], REST=["7@0"]),
 3:dict(FL="i0", T2="i1 w0 b r0", CV=[("d",2,"i2"),("d",68,"i3@0")], CE="w2", YS="r1 r2 i4@3", F1="r3", F2="i5@1", FB="r4", XD="", PEND=[5], REST=["6@2","7@0"]),
 6:dict(T2="i0", CV=[("d",40,"i1"),("d",90,"i2")], CE="w1", YS="i3@3 r0 r1", SA="w2", F1="r2 i4@0", F2="", FX="i5@1", SB="w4", FB="r3 r4", XD="", PEND=[5], REST=["6@2","7@0"]),
 8:dict(T0="i0", FL="i1", T2="i2 w1 b r0 r1", CV=[("d",20,"i3@0"),("d",68,"i4@1")], CE="w3", YS="i5@3 r2 r3", F1="r4", F2="i6@2", FX="i7@0", FB="r5", PEND=[6,7]),
 12:dict(T0="i0", FL="i1", T2="i2 w1 b r0 r1", CV=[("d",20,"i3@0"),("d",68,"i4@1")], CE="w3", YS="i5@3 r2 r3", F1="r4", F2="i6@2", FX="i7@0", FB="r5", XD="p6", PEND=[6,7]),
 13:dict(T0="i0", FL="i1", T2="i2", CV=[("a",6,"r0 r1"),("a",52,"L1 b"),("d",54,"i3@0"),("d",100,"i4@1")], CE="w3", YS="i5@3 r2 r3", SA="w4", F1="r4", F2="i6@2", FX="i7@0", FB="r5", PEND=[6,7]),
 14:dict(T0="i0", T2="i1", CV=[("a",6,"r0"),("d",24,"i2"),("d",70,"i3@0")], CE="w2", YS="i4@3 r1 r2", F1="r3", F2="i5@1", FX="i6@2", FB="r4", PEND=[5,6], REST=["7@0"]),
 15:dict(FL="i0", T2="i1", CV=[("a",6,"r0"),("d",4,"i2"),("a",40,"w1 L0 b r1"),("d",50,"i3@0"),("a",94,"w2 L1 b r2"),("d",98,"i4@1")], CE="w3", YS="i5@3 r3", SA="w4", F1="r4", F2="i6@2", FX="i7@0", FB="r5", PEND=[6,7]),
 16:dict(T1="i0", T2="i1", CV=[("a",6,"r0"),("d",4,"i2"),("a",40,"w1 L0 b r1"),("d",50,"i3@0"),("a",94,"w2 L1 b r2"),("d",98,"i4@1")], CE="w3", YS="i5@3 r3", SA="w4", F1="r4", F2="i6@2", FX="i7@0", FB="r5", PEND=[6,7]),
 22:dict(T0="i0", FL="i1", T2="i2", CV=[("a",6,"r0 r1"),("a",52,"L1 b"),("d",54,"i3@0"),("d",100,"i4@1")], CE="w3", YS="i5@3 r2 r3 w4 l b r4", F2="i6@2", FX="l b i7@1", FB="r5", XB="l b", PEND=[6,7]),
 23:dict(T0="i0", FL="i1", T2="i2", CV=[("a",6,"r0 r1"),("a",52,"L1 b"),("d",54,"i3@0"),("d",100,"i4@1")], CE="w3", YS="i5@3 r2 r3", F2="w4 l b i6@2 r4", FX="i7@0", FB="r5", XB="l b", PEND=[6,7]),
 24:dict(T0="i0", FL="i1", T2="i2", CV=[("a",6,"r0 r1"),("a",52,"L1 b"),("d",54,"i3@0"),("g",0,"i4@1")], CE="w3", SA="w4", YS="i5@3 r2 r3 r4", F2="l b i6@2", FX="i7@0", FB="r5", XB="l b", PEND=[6,7]),
 25:dict(T0="i0", FL="i1", T2="i2", CV=[("a",6,"r0 r1"),("a",44,"L1 b"),("d",46,"i3@0"),("d",72,"i4@1")], CE="w3", SA="w4", YS="i5@3 r2 r3 r4", F2="l b i6@2", FX="i7@0", FB="r5", XB="l b", PEND=[6,7]),
 26:dict(T0="i0", T1="i1", T2="i2", CV=[("a",6,"r0 r1"),("a",52,"L1 b"),("d",54,"i3@0"),("d",100,"i4@1")], CE="w3", SA="w4", YS="i5@3 r2 r3 r4", F2="l b i6@2", FX="i7@0", FB="r5", XB="l b", PEND=[6,7]),
 27:dict(T1="i0", FL="i1", T2="i2", CV=[("a",6,"r0 r1"),("a",52,"L1 b"),("d",54,"i3@0"),("d",100,"i4@1")], CE="w3", SA="w4", YS="i5@3 r2 r3 r4", F2="l b i6@2", FX="i7@0", FB="r5", XB="l b", PEND=[6,7]),
 28:dict(T0="i0", T1="i1", FL="i2", CV=[("a",6,"r0 r1"),("a",52,"L1 b"),("d",54,"i3@0"),("d",100,"i4@1")], CE="w3", SA="w4", YS="i5@3 r2 r3 r4", F2="l b i6@2", FX="i7@0", FB="r5", XB="l b", PEND=[6,7]),
 29:dict(T0="i0 i1", T2="i2", CV=[("a",6,"r0 r1"),("a",52,"L1 b"),("d",54,"i3@0"),("d",100,"i4@1")], CE="w3", SA="w4", YS="i5@3 r2 r3 r4", F2="l b i6@2", FX="i7@0", FB="r5", XB="l b", PEND=[6,7]),
 30:dict(T1="i0", FL="i1", T2="i2", CV=[("a",6,"r0 r1"),("a",44,"L1 w2 b r2"),("d",46,"i3@0"),("d",76,"i4@1"),("a",90,"L2 b"),("d",108,"i5@2")], CE="w3", SA="w4", YS="i6@3 r3 r4", F2="w5 l b i7@0 r5", FB="r6", XB="l b", PEND=[7]),
 31:dict(T1="i0", FL="i1", T2="i2", CV=[("a",6,"r0 r1"),("a",52,"L1 b"),("d",54,"i3@0"),("d",100,"i4@1")], CE="w3", SA="w4", YS="i5@3 r2 r3 r4", F2="l b i6@2", FB="r5", XB="l b", PEND=[6], REST=["7@0"]),
 33:dict(T1="i0", FL="i1", T2="i2", CV=[("a",6,"r0 r1"),("a",52,"L1 b"),("d",54,"i3@0"),("d",100,"i4@1")], CE="w3", SA="w4", YS="i5@3 r2 r3 r4", F2="l b i6@2", FB="i7@0 r5", XB="l b", PEND=[6,7]),
 34:dict(T1="i0", FL="i1", T2="i2", CV=[("a",6,"r0 r1"),("a",52,"L1 b"),("d",54,"i3@0"),("d",100,"i4@1")], CE="w3", SA="w4", YS="i5@3 r2 r3 r4", F2="l b i6@2 i7@0", FB="r5", XB="l b", PEND=[6,7]),
 35:dict(T1="i0", FL="i1", T2="i2", CV=[("a",6,"r0 r1"),("a",52,"L1 b"),("d",54,"i3@0"),("d",100,"i4@1")], CE="w3", SA="w4", YS="i5@3 i6@4 r2 r3 r4", FX="l b i7@0", SB="w6", FB="r5 r6", XB="l b", PEND=[7]),
 36:dict(T1="i0", FL="i1", T2="i2", CV=[("a",6,"r0 r1"),("a",52,"L1 b"),("d",54,"i3@0"),("d",100,"i4@1")], CE="w3", SA="w4", YS="i5@3 r2 r3 r4", F2="l b i6@2", FX="i7@0", FB="r5", XB="l b", XD="p4", PEND=[6,7]),
 37:dict(T1="i0", FL="i1", T2="i2", CV=[("a",6,"r0 r1"),("a",44,"L1 w2 b r2"),("d",46,"i3@0"),("d",66,"i4@1"),("a",80,"L2 b"),("d",88,"i5@2"),("a",100,"w3 b r3"),("a",120,"L3 b"),("d",126,"i6@0")], CE="w4", SA="w5", YS="i7@3 r4 r5", SB="w7", FB="r6 r7", XB="l b"),
 38:dict(T1="i0", FL="i1", T2="i2", CV=[("a",6,"r0 r1"),("a",44,"L1 w2 b r2"),("d",46,"i3@0"),("d",66,"i4@1"),("a",80,"L2 b"),("d",88,"i5@2")], CE="w4", SA="w5", YS="i6@3 r3 r4 r5", F2="l b i7@0", FB="r6", XB="l b", PEND=[7]),
 39:dict(T1="i0", FL="i1", T2="i2", CV=[("a",6,"r0 r1"),("a",44,"L1 w2 b r2"),("d",46,"i3@0"),("d",66,"i4@1"),("a",80,"L2 b"),("d",88,"i5@2")], CE="w4", Y0="i6@3", SA="w5", YS="i7@4 r3 r4 r5", SB="w7", FB="r6 r7", XB="l b"),
 40:dict(T1="i0", T2="i1", CV=[("d",24,"i2"),("a",6,"r0"),("a",44,"w1 L0 b r1"),("d","b44","i3@0"),("a",70,"L1 w2 b r2"),("d","b70","i4@1"),("a",96,"L2 w3 b"),("d","b96","i5@2")], CE="w4", SA="w5", YS="i6@3 r3 r4 r5", F2="l b i7@0", FB="r6", XB="l b", PEND=[7]),
 41:dict(FL="i0", T2="i1", CV=[("d",24,"i2"),("a",6,"r0"),("a",44,"w1 L0 b r1"),("d","b44","i3@0"),("a",70,"L1 w2 b r2"),("d","b70","i4@1"),("a",96,"L2 w3 b"),("d","b96","i5@2")], CE="w4", SA="w5", YS="i6@3 r3 r4 r5", F2="l b i7@0", FB="r6", XB="l b", PEND=[7]),
 42:dict(T0="i0", T2="i1", CV=[("d",24,"i2"),("a",6,"r0"),("a",44,"w1 L0 b r1"),("d","b44","i3@0"),("a",70,"L1 w2 b r2"),("d","b70","i4@1"),("a",96,"L2 w3 b"),("d","b96","i5@2")], CE="w4", SA="w5", YS="i6@3 r3 r4 r5", F2="l b i7@0", FB="r6", XB="l b", PEND=[7]),
 43:dict(T1="i0", FL="i1", T2="i2", CV=[("a",6,"r0 r1"),("a",44,"L1 w2 b r2"),("d",46,"i3@0"),("d",66,"i4@1"),("a",80,"L2 b"),("d",88,"i5@2")], CE="w4", SA="w5", YS="i6@4 r3 r4 r5", F2="l b i7@0", PEND=[6,7]),
 44:dict(T1="i0", FL="i1", T2="i2", CV=[("a",6,"r0 r1"),("a",44,"L1 w2 b r2"),("d",46,"i3@0"),("d",66,"i4@1"),("a",80,"L2 b"),("d",88,"i5@2")], CE="w4", SA="w5", YS="i6@4 r3 r4 r5", FX="l b i7@0", PEND=[6,7]),
 45:dict(T1="i0", FL="i1", T2="i2", CV=[("a",6,"r0 r1"),("a",44,"L1 w2 b r2"),("d",46,"i3@0"),("d",66,"i4@1"),("a",80,"L2 b"),("d",88,"i5@2")], CE="w4", SA="w5", YS="i6@4 r3 r4 r5", FB="i7@0", PEND=[6,7]),
 46:dict(T1="i0", FL="i1", T2="i2", CV=[("a",6,"r0 r1"),("a",44,"L1 w2 b r2"),("d",46,"i3@0"),("d",66,"i4@1"),("a",80,"L2 b"),("d",88,"i5@2")], CE="w4", SA="w5", YS="i6@3 r3 r4 r5", F2="l b x7@0", FB="r6", XB="l b", XD="y7", LATE=[7]),
 47:dict(T1="i0", FL="i1", T2="i2", CV=[("a",6,"r0 r1"),("a",44,"L1 w2 b r2"),("d",46,"i3@0"),("d",66,"i4@1"),("a",80,"L2 b"),("d",88,"i5@2")], CE="w4", SA="w5", YS="i6@3 r3 r4 r5", F2="l b x7@0", FX="y7", FB="r6", XB="l b", PEND=[7]),
 48:dict(T1="i0", FL="i1", T2="i2", CV=[("a",6,"r0 r1"),("a",44,"L1 w2 b r2"),("d",46,"i3@0"),("d",66,"i4@1"),("a",80,"L2 b"),("d",88,"i5@2")], CE="w4", SA="w5", YS="i6@3 r3 r4 r5", FB="r6", XB="l b", XD="i7@0", LATE=[7]),
 49:dict(T1="i0", FL="i1", T2="i2", CV=[("a",6,"r0 r1"),("a",44,"L1 w2 b r2"),("d",46,"i3@0"),("d",66,"i4@1"),("a",80,"L2 b"),("d",88,"i5@2")], CE="w4", SA="w5", Y0="x6@3", YS="y6 r3 r4 r5", F2="l b x7@0", FB="r6", XB="l b", XD="y7", LATE=[7]),
 50:dict(T1="i0", FL="i1", T2="i2", CV=[("a",6,"r0 r1"),("a",44,"L1 w2 b r2"),("d",46,"i3@0"),("d",66,"i4@1"),("a",80,"L2 b"),("d",88,"i5@2")], CE="w4", SA="w5", YS="i6@3 r3 r4 r5", F2="l b i7@0", FX="p2", FB="r6 p2", XB="l b", XD="p4", PEND=[7]),
 51:dict(T1="i0", FL="i1", T2="i2", CV=[("a",6,"r0 r1"),("a",44,"L1 w2 b r2"),("d",46,"i3@0"),("d",66,"i4@1"),("a",80,"L2 b"),("d",88,"i5@2")], CE="w4", SA="w5", YS="i6@3 r3 r4 r5", F2="l b i7@0", FX="p3", FB="r6 p3", XB="l b", XD="p6", PEND=[7]),
 52:dict(T1="i0", FL="i1", T2="i2", CV=[("a",6,"r0 r1"),("a",44,"L1 w2 b r2"),("d",46,"i3@0"),("d",66,"i4@1"),("a",80,"L2 b"),("d",88,"i5@2")], CE="w4", SA="w5", YS="i6@3 r3 r4 r5", F2="l b i7@0", FB="r6", XB="l b", XD="p8", PEND=[7]),
 53:dict(T1="i0", FL="i1", T2="i2", CV=[("a",6,"r0 r1"),("a",44,"L1 w2 b r2"),("d",46,"i3@0"),("d",66,"i4@1"),("a",80,"L2 b"),("d",88,"i5@2")], CE="w4", SA="w5", YS="i6@3 r3 r4 r5", F2="l b i7@0", FX="p4", FB="r6", XB="l b", XD="p4", PEND=[7]),
 54:dict(T1="i0", FL="i1", T2="i2", CV=[("a",6,"r0 r1"),("a",44,"L1 w2 b r2"),("d",46,"i3@0"),("d",66,"i4@1"),("a",80,"L2 b"),("d",88,"i5@2")], CE="w4", SA="w5", YS="i6@3 r3 r4 r5", F2="l b i7@0", FA="p4", FX="p4", FB="r6 p4", XB="l b", XD="p4", PEND=[7]),
 58:dict(T1="i0", FL="i1", T2="i2", CV=[("a",6,"r0 r1"),("a",44,"L1 w2 b r2"),("d","b44","i3@0"),("d",66,"i4@1"),("a",80,"L2 b"),("d","b80","i5@2")], CE="w4", SA="w5", YS="i6@3 r3 r4 r5", F2="l b i7@0", XW="r6", XB="l b", PEND=[7]),
 59:dict(T1="i0", FL="i1", T2="i2", CV=[("a",6,"r0 r1"),("a",44,"L1 w2 b r2"),("d","b44","i3@0"),("d",66,"i4@1"),("a",80,"L2 b"),("d","b80","i5@2")], CE="w4", SA="w5", YS="i6@3 r3 r4 r5", F2="l b i7@0", FB="r6", XB="l b", PEND=[7]),
 17:dict(T0="i0", FL="i1", T2="i2", CV=[("a",6,"r0 r1"),("a",52,"L1 b"),("d",54,"i3@0"),("d",100,"i4@1")], CE="w3", Y0="i5@3", SA="w4", YS="r2 r3 r4", FX="l b i6@2", FB="i7@0 r5", PEND=[6,7]),
 18:dict(T0="i0", FL="i1", T2="i2", CV=[("a",6,"r0 r1"),("a",52,"L1 b"),("d",54,"i3@0"),("d",100,"i4@1")], CE="w3", SA="w4", YS="i5@3 r2 r3 r4", F2="l b i6@2", FX="i7@0", FB="r5", XB="l b", PEND=[6,7]),
 20:dict(T0="i0", FL="i1", T2="i2", CV=[("a",6,"r0 r1"),("a",52,"L1 b"),("d",54,"i3@0"),("d",100,"i4@1")], CE="w3", SA="w4", YS="i5@3 r2 r3 r4", FA="l b i6@2", FX="i7@0", FB="r5", PEND=[6,7]),
 21:dict(T0="i0", FL="i1", T2="i2", CV=[("a",6,"r0 r1"),("a",52,"L1 b"),("d",54,"i3@0"),("d",100,"i4@1")], CE="w3", Y0="i5@3", SA="w4", YS="r2 r3 r4 l b i6@2", FX="i7@0", FB="r5", PEND=[6,7]),
 19:dict(T0="i0", FL="i1", T2="i2", CV=[("a",6,"r0 r1"),("a",52,"L1 b"),("d",54,"i3@0"),("d",100,"i4@1")], CE="w3", Y0="i5@3", SA="w4", YS="r2 r3 r4", FA="l b i6@2", FX="i7@0", FB="r5", PEND=[6,7]),
 10:dict(T0="i0", T2="i1 w0 b r0", CV=[("d",20,"i2"),("d",68,"i3@0")], CE="w2", YS="i4@3 r1 r2", F1="r3", F2="i5@1", FX="i6@2", FB="r4", PEND=[5,6], REST=["7@0"]),
 11:dict(T0="i0", T1="i1", T2="i2 w1 b r0 r1", CV=[("d",14,"i3@0"),("d",56,"i4@1"),("a",70,"w2 b r2"),("a",96,"L2 b"),("d",100,"i5@2")], CE="w4", YS="i6@3 r3 r4", SA="w5", F1="r5", F2="i7@0", FB="r6", XD="p4", PEND=[7]),
 7:dict(FL="i0", T2="i1 w0 b r0", CV=[("d",20,"i2"),("d",68,"i3@0")], CE="w2", YS="i4@3 r1 r2", F1="r3", F2="i5@1", FX="i6@2", FB="r4", PEND=[5,6], REST=["7@0"]),
 4:dict(FL="i0", T2="i1 w0 b r0", CV=[("d",2,"i2"),("d",50,"i3@0")], CE="w2", YS="i4@3 r1 r2", F1="r3", F2="i5@1", FX="i6@2", FB="r4", PEND=[5,6], REST=["7@0"]),
 5:dict(T1="i0", FL="", T2="i1 w0 b r0", CV=[("d",2,"i2"),("d",46,"i3@0"),("a",60,"w1 b r1"),("a",84,"L1 b"),("d",92,"i4@1")], CE="w3", YS="i5@3 r2 r3", SA="w4", F1="r4", F2="i6@2", FX="i7@0", FB="r5", PEND=[6,7]),
 2:dict(FL="i0", T2="i1", CV=[("a",20,"r0"),("d",30,"i2"),("a",70,"w1 b r1"),("d",80,"i3@0"),("a",124,"w2 b r2")], YS="i4@5 i5@1", YA="w4 b r3 r4", GL="i6@2 w5 l b r5", ST="i7@0", PEND=[6,7], FA="p4", FB="p4", XD="p4"),
 9:dict(ST="i0 i1 "+" ".join(f"w{n} l b "+(f"i{n+2} " if n+2<8 else "")+f"r{n}" for n in range(8))+" l b"),
}
slot_of={}
def wops(txt):
    L=[]
    for op in txt.split():
        at=None
        if '@' in op: op,at=op.split('@'); at=int(at)
        k=int(op[1:]) if len(op)>1 else None
        if op[0]=='i': slot_of[k]=SLOT[at if at is not None else k%3]; L+=c_dma(k,slot_of[k])
        elif op[0]=='x': slot_of[k]=SLOT[at if at is not None else k%3]; L+=c_dma(k,slot_of[k])[:-4]
        elif op[0]=='y': d=c_dma(k,slot_of[k]); L+=d[:-8]+d[-4:]
        elif op[0]=='r': L+=c_read(k,slot_of[k])
        elif op[0]=='w': L.append(('WVM',f"c{k}"))
        elif op[0]=='l': L+=M("s_waitcnt lgkmcnt(0)")
        elif op[0]=='L': L.append(('WLG',f"cr{k}"))
        elif op[0]=='b': L+=M("s_barrier")
        elif op[0]=='p': L+=w2_take(k)
    return L
def PL(): return eval(CFG['plan']) if isinstance(CFG['plan'],str) else PLANS[CFG['plan']]
def Wp(a,point): a.flat(wops(PL().get(point,"")))

def toeplitz(a):
    a("s_waitcnt lgkmcnt(0)\ns_barrier")
    a(f"s_mul_i32 s{sT0}, s{sKH}, {UCH}\ns_add_u32 s{sT0}, s{sT0}, {L_U+512}\nv_add_u32 v54, s{sT0}, v52\nv_add_u32 v78, s{sT0}, v53")
    for rho,(va,off) in enumerate(((54,0),(54,1024),(78,0))):
        d=56+8*rho
        a(f"ds_read_b128 {V(d)}, v{va} offset:{off}\nds_read_b64 {V(d+4,2)}, v{va} offset:{off+16}","raw"); a.lr(2,(L_U,L_U+2*UCH))
    a(f"s_mul_i32 s{sT0}, s{sKH}, {TCH}\ns_add_u32 s{sT0}, s{sT0}, {L_TOEP+32}")
    a(f"v_add_u32 v52, s{sT0}, v52\nv_add_u32 v53, s{sT0}, v53")
    for rho,(va,off) in enumerate(((52,0),(52,1024),(53,0))):
        d=56+8*rho; t=100+12*(rho%2)
        a(f"ds_write_b128 v{va}, {V(d)} offset:{off}")
        for i in range(4): a(f"v_alignbit_b32 v{t+i}, v{d+i+1}, v{d+i}, 16")
        a(f"ds_write_b128 v{va}, {V(t)} offset:{off+TCP}")
        for i in range(4): a(f"v_mov_b32 v{t+4+i}, v{d+i+1}")
        a(f"ds_write_b128 v{va}, {V(t+4)} offset:{off+2*TCP}")
        for i in range(4): a(f"v_alignbit_b32 v{t+8+i}, v{d+i+2}, v{d+i+1}, 16")
        a(f"ds_write_b128 v{va}, {V(t+8)} offset:{off+3*TCP}"); a.lw(16,(L_TOEP,L_TOEP+2*TCH))
        if rho==1: a.waitlg("raw"); a("s_barrier")

def p0(a):
    a.waitvm("kv"); a("s_barrier")
    a.stamp("kv landed","f")
    KR=84; VR=94
    for i in range(5):
        R=4+4*i; a(f"ds_read_b64_tr_b16 {V(KR+2*i,2)}, v83 offset:{L_K+(R>>3)*CHP+(R&7)*128}")
    for i in range(4):
        R=4*i; a(f"ds_read_b64_tr_b16 {V(VR+2*i,2)}, v83 offset:{L_V+(R>>3)*CHP+(R&7)*128}")
    a.lr(9,(L_K,L_V+8*CHP))
    Wp(a,'T0')
    O=16
    if CFG['dot2']:
        a("""v_alignbit_b32 v40, v80, v80, 16
            v_alignbit_b32 v41, v81, v81, 16
            v_and_b32 v42, 0xffff, v80
            v_and_b32 v43, 0xffff0000, v81
            v_and_b32 v44, 0xffff0000, v80
            v_and_b32 v45, 0xffff, v81
            v_or_b32 v44, v44, v45""")
        for i in range(8):
            P=KR+2+i
            a(f"v_dot2_f32_bf16 v{O+2*i}, v{P}, v42, 0\nv_dot2_f32_bf16 v{O+2*i+1}, v{P}, v40, 0")
        for i in range(8):
            P=KR+2+i
            a(f"v_dot2_f32_bf16 v{O+2*i}, v{P-1}, v44, v{O+2*i}\nv_dot2_f32_bf16 v{O+2*i+1}, v{P-1}, v41, v{O+2*i+1}")
        for i in range(8): a(f"v_dot2_f32_bf16 v{O+2*i}, v{KR+i}, v43, v{O+2*i}")
    else:
        a("v_lshlrev_b32 v40, 16, v80\nv_and_b32 v41, 0xffff0000, v80\nv_lshlrev_b32 v42, 16, v81\nv_and_b32 v43, 0xffff0000, v81")
        K=lambda t: 108+t-2
        for i in range(10):
            if i>0: a(f"v_lshlrev_b32 v{102+2*i}, 16, v{KR+i}")
            a(f"v_and_b32 v{103+2*i}, 0xffff0000, v{KR+i}")
        for t in range(16):
            a(f"v_mul_f32 v{O+t}, v40, v{K(t)}")
            a(f"v_fmac_f32 v{O+t}, v41, v{K(t-1)}")
            a(f"v_fmac_f32 v{O+t}, v42, v{K(t-2)}")
            a(f"v_fmac_f32 v{O+t}, v43, v{K(t-3)}")
    for i in range(8):
        a(f"v_lshlrev_b32 v102, 16, v{VR+i}\nv_and_b32 v103, 0xffff0000, v{VR+i}")
        if CFG['pk']: a(f"v_pk_mul_f32 {V(O+2*i,2)}, {V(O+2*i,2)}, v[102:103]")
        else: a(f"v_mul_f32 v{O+2*i}, v{O+2*i}, v102\nv_mul_f32 v{O+1+2*i}, v{O+1+2*i}, v103")
    for o in range(2):
        for d in range(4): a(f"v_cvt_pk_bf16_f32 v{KR+4*o+d}, v{O+8*o+7-2*d}, v{O+8*o+6-2*d}")
    for d in range(4): a(f"v_mov_b32 v{102+d}, v{KR+4+d}")
    for d in range(4): a(f"v_mov_b32_dpp v{KR+4+d}, v{KR+d} row_ror:8 row_mask:0xf bank_mask:0x3")
    for d in range(4): a(f"v_mov_b32_dpp v{KR+d}, v{102+d} row_ror:8 row_mask:0xf bank_mask:0xc")
    a(f"s_mov_b32 s{sT0}, 32768")
    a(f"buffer_store_dwordx4 {V(KR)}, v55, {srd(WS)}, 0 offen\nbuffer_store_dwordx4 {V(KR+4)}, v55, {srd(WS)}, s{sT0} offen","kvs")
    if CFG['utouch']==1: a(f"buffer_load_dword v{vTch}, v{vTch}, {srd(WS)}, 0 offen sc1")
    a.stamp("p0 computed","f")
    if CFG['clr']==1: clears(a)
    Wp(a,'T1')
    a(f"s_mov_b32 s{sCH}, s{sHELLO}\ns_getreg_b32 s{sHELLO}, hwreg(HW_REG_XCC_ID, 0, 4)")
    a(f"v_readfirstlane_b32 s{sTAG}, v51")
    a(f"s_add_u32 s{sTAG}, s{sTAG}, 0x9E3779B0\ns_and_b32 s{sTAG}, s{sTAG}, 0xFFFFFFF0\ns_and_b32 s{sHELLO}, s{sHELLO}, 15\ns_or_b32 s{sHELLO}, s{sHELLO}, s{sTAG}")
    a(f"v_mov_b32 v{vTAG}, s{sTAG}\nv_mov_b32 v98, s{sHELLO}")
    a.ext(pp_setup())
    a(f"""s_add_u32 s{sFLH}, s{sFLG}, s{sFL}
        s_lshl_b32 s{sC4}, s{sCHH}, 12
        s_mul_i32 s{sC3}, s{sCHH}, 3072
        s_lshl_b32 s{sM4}, s{sKH}, 14
        s_add_u32 s{sM3}, s{sM4}, s{sC3}
        s_add_u32 s{sM4}, s{sM4}, s{sC4}""")
    a(f"s_lshl_b32 s{sT0}, s{sX}, 2\ns_add_u32 s{sT1}, s{sT0}, s{sWV}\ns_lshl_b32 s{sT1}, s{sT1}, 5\ns_add_u32 s{sT1}, s{sT1}, s{sR}\ns_lshl_b32 s{sT1}, s{sT1}, 2\ns_add_u32 s{sT1}, s{sT1}, {OFF_F1L}")
    a(f"s_lshr_b32 s{sCK1}, s{sR}, 3\ns_add_u32 s{sCK1}, s{sCK1}, s{sT0}\ns_lshl_b32 s{sCK1}, s{sCK1}, 7\ns_add_u32 s{sCK1}, s{sCK1}, {OFF_F1L}")
    a(f"v_and_b32 v97, 31, v{vLane}\nv_lshlrev_b32 v97, 2, v97\ns_mov_b32 s{sMODE}, 0")
    if CFG['tpre']: a.waitvm("ssm"); toeplitz(a)
    a.waitvm("kvs")
    a(f"buffer_store_dword v98, v{vOne}, {srd(WS)}, s{sT1} offen")
    a.stamp("kvT published","f")
    if CFG['clr']==3: clears(a)
    if CFG['qat']==0: a(f"buffer_load_dwordx4 {V(vQT)}, v{vTok}, {srd(SQ_)}, 0 offen\nbuffer_load_dwordx4 {V(vQT+4)}, v{vTok}, {srd(SQ_)}, s{sMB} offen")
    a.flat(extras(0))
    Wp(a,'FL')
    if not CFG['tpre']: toeplitz(a)
    a(f"""s_lshl_b32 s{sT0}, s{sCH}, 12
        s_lshl_b32 s{sT1}, s{sCHH}, 11
        s_add_u32 s{sT0}, s{sT0}, s{sT1}
        s_add_u32 s{sT0}, s{sT0}, {OFF_KVT}
        s_mul_i32 s{sUO}, s{sKH}, {UCH}
        s_add_u32 s{sT1}, s{sT1}, s{sUO}""")
    a.stamp("toeplitz","f")
    o=Asm(); o.lab("L_f1r"); o(f"s_mov_b32 s{sCNT}, 0")
    if CFG['stamps']: site_names.append("f1"); o(f"s_bitset1_b32 s98, {len(site_names)-1}")
    o.lab("L_f1l")
    o(f"""buffer_load_dword v99, v97, {srd(WS)}, s{sCK1} offen sc1
        s_waitcnt vmcnt(0)
        v_cmp_ne_u32 vcc, s{sHELLO}, v99
        s_cbranch_vccz L_f1b
        s_add_u32 s{sCNT}, s{sCNT}, 1
        s_cmp_lt_u32 s{sCNT}, {CFG['f1max']}
        s_cbranch_scc1 L_f1l""")
    o.lab("L_f1s")
    o(f"""s_mov_b32 s{sMODE}, 1
        s_mov_b32 s{sT2}, 32768
        buffer_store_dwordx4 {V(KR)}, v55, {srd(WS)}, 0 offen sc1
        buffer_store_dwordx4 {V(KR+4)}, v55, {srd(WS)}, s{sT2} offen sc1
        s_lshl_b32 s{sT2}, s{sX}, 2
        s_add_u32 s{sT3}, s{sT2}, s{sWV}
        s_lshl_b32 s{sT3}, s{sT3}, 5
        s_add_u32 s{sT3}, s{sT3}, s{sR}
        s_lshl_b32 s{sT3}, s{sT3}, 7
        s_add_u32 s{sT3}, s{sT3}, {OFF_F1}
        s_lshr_b32 s{sCK1}, s{sR}, 3
        s_add_u32 s{sCK1}, s{sCK1}, s{sT2}
        s_lshl_b32 s{sCK1}, s{sCK1}, 12
        s_add_u32 s{sCK1}, s{sCK1}, {OFF_F1}
        v_lshlrev_b32 v97, 5, v97
        s_waitcnt vmcnt(0)
        buffer_store_dword v{vTAG}, v{vOne}, {srd(WS)}, s{sT3} offen sc1
        s_mov_b32 s{sCNT}, 0""")
    o.lab("L_f1g")
    o(f"""buffer_load_dword v99, v97, {srd(WS)}, s{sCK1} offen sc1
        s_waitcnt vmcnt(0)
        v_cmp_ne_u32 vcc, s{sTAG}, v99
        s_cbranch_vccz L_f1b
        s_add_u32 s{sCNT}, s{sCNT}, 1
        s_cmp_lt_u32 s{sCNT}, {POLLMAX}
        s_cbranch_scc1 L_f1g
        s_branch L_f1b""")
    a.ool.append(o.L)
    ck=M(f"v_cmp_ne_u32 vcc, s{sHELLO}, v99\ns_cbranch_vccnz L_f1r\nL_f1b:") if CFG['slow']!=2 else M("s_waitcnt vmcnt(0)\ns_branch L_f1s\nL_f1b:")
    a(f"buffer_load_dword v99, v97, {srd(WS)}, s{sCK1} offen sc1")
    a(f"""s_lshl_b32 s{sT3}, s{sCHH}, 8
        s_sub_u32 s{sT2}, s{sUO}, s{sT3}
        s_add_u32 s{sT2}, s{sT2}, {L_U+480-192}
        v_lshlrev_b32 v141, 5, v{vJ}
        v_lshl_add_u32 v141, v{vQ}, 4, v141
        v_add_u32 v141, s{sT2}, v141
        v_add_u32 v142, 1, v{vJ}
        v_and_b32 v143, 3, v142
        v_mul_u32_u24 v143, {TCP}, v143
        v_lshrrev_b32 v142, 2, v142
        v_lshl_add_u32 v142, v142, 3, v143
        v_lshlrev_b32 v143, 4, v{vQ}
        v_sub_u32 v142, v142, v143
        s_mul_i32 s{sT2}, s{sKH}, {TCH}
        s_add_u32 s{sT2}, s{sT2}, s{sT3}
        s_add_u32 s{sT2}, s{sT2}, {L_TOEP+48}
        v_add_u32 v142, s{sT2}, v142
        s_add_u32 m0, s{sT1}, {L_U+512}""")
    a.flat(ck)
    a.stamp("f1 seen","f")
    a(f"buffer_load_dwordx4 v{vL}, {srd(WS)}, s{sT0} offen sc1 lds","u")
    a(f"buffer_load_dwordx4 v{vL}, {srd(WS)}, s{sT0} offen offset:1024 sc1 lds","u")
    a.lw(2,(L_U+512,L_U+UCH),(L_U+UCH+512,L_U+2*UCH))
    if CFG['clr']==4: clears(a,"clr")
    if CFG['clr'] in(1,3): a(f"buffer_store_dword v98, v{vOne}, {srd(WS)}, s{sHF} offen sc1")
    a.flat(extras(5))
    Wp(a,'T2')
    a(f"v_lshlrev_b32 v{vD}, 16, v{vD}")
    a.waitvm("u"); a("s_waitcnt lgkmcnt(0)\ns_barrier")
    a.stamp("U landed","f")

def conv_backbone():
    ACC=40; GR=72; Ureg=[16,20,24,28,32,36,104,108]
    seq=[]
    for it in range(4):
        o=4*(it&1)
        for e in range(4):
            for w in range(3-e,-1,-1): seq.append((w+e,o+e,o+w,('G',e,it,1),('U',w,it,1),it==0 and e==0))
    n1=len(seq)
    for it in range(4):
        pairs=[(e,w) for e in range(8) for w in range(7-e,max(0,4-e)-1,-1)]
        if it==0: pairs=[p for p in pairs if p[0]<4 and p[1]<4]+[p for p in pairs if not(p[0]<4 and p[1]<4)]
        seen=set()
        for e,w in pairs:
            seq.append((w+e,e,w,('G',e,it,2),('U',w,it,2),it==0 and (w+e) not in seen)); seen.add(w+e)
    reads={}; lastuse={}
    for n,(c,g,u,gid,uid,f) in enumerate(seq):
        for ph,i in ((('G',g),gid),(('U',u),uid)):
            if i not in reads: reads[i]=dict(ph=ph,need=n,earliest=lastuse.get(ph,-1))
            lastuse[ph]=n
    def emit(i):
        kind,k,it,_=i; ph=reads[i]['ph'][1]
        if kind=='U': return [LR(mk(f"ds_read_b128 {V(Ureg[ph])}, v141 offset:{512*k+192-64*it}"),(L_U,L_U+2*UCH))]
        return LR([mk(f"ds_read_b64 {V(GR+4*ph,2)}, v142 offset:{512*k+64*it}"),mk(f"ds_read_b64 {V(GR+4*ph+2,2)}, v142 offset:{512*k+64*it+8}")],(L_TOEP,L_TOEP+2*TCH))
    todo=[]
    for i in sorted(reads,key=lambda i:reads[i]['need']):
        for x in emit(i): todo.append((reads[i]['earliest'],reads[i]['need'],x))
    bb=[x for e,n,x in todo if n<4]; todo=[t for t in todo if t[1]>=4]
    for n,(c,g,u,gid,uid,f) in enumerate(seq):
        bb.append(mk(f"v_mfma_f32_16x16x32_bf16 {V(ACC+4*c)}, {V(GR+4*g)}, {V(Ureg[u])}, {'0' if f else V(ACC+4*c)}"))
        k=0
        while True:
            cand=[t for t in todo if t[0]<=n]
            if not cand: break
            t=cand[0]
            if k>=1 and not(k<2 and t[1]-n<=CFG['cla']) and not t[1]-n<=2: break
            bb.append(t[2]); todo.remove(t); k+=1
    assert not todo
    return bb,n1

def conv_epi(st):
    ACC=40+16*st; P=vPK+4*st; R=(L_CX,L_CX+16384)
    W=LW([mk(f"ds_write_b128 v{vCXw}, {V(ACC+4*k)} offset:{1024*k}",f"cx{st}") for k in range(4)],R)
    K=LR([mk(f"ds_read_b64 {V(vKD+2*k,2)}, v{vKV} offset:{2048*st+512*k}") for k in range(2)],(L_U,L_U+2*UCH))
    L=[]
    for k in range(2): L+=LR(M(f"ds_read_b128 {V(ACC+4*k)}, v{vCXo} offset:{1024*k}\nds_read_b128 {V(ACC+8+4*k)}, v{vCXp} offset:{1024*k}",f"cy{st}"),R)
    for k in range(2):
        A=ACC+4*k
        L+=M(f"v_and_b32 v{vUP}, 0xffff0000, v{vKD+1+2*k}\nv_lshlrev_b32 v{vUP+1}, 16, v{vKD+1+2*k}\nv_and_b32 v{vUP+2}, 0xffff0000, v{vKD+2*k}\nv_lshlrev_b32 v{vUP+3}, 16, v{vKD+2*k}")
        for r in range(4): L+=M(f"v_fmac_f32 v{A+r}, v{vD}, v{vUP+r}")
        if st==1 and CFG['pk']:
            for r in (0,2): L+=M(f"v_pk_add_f32 {V(A+r,2)}, {V(A+r,2)}, {V(A+8+r,2)}")
        else:
            for r in range(4): L+=M(f"v_add_f32 v{A+r}, v{A+r}, v{A+8+r}")
        L+=M(f"v_cvt_pk_bf16_f32 v{P+2*k}, v{A}, v{A+1}\nv_cvt_pk_bf16_f32 v{P+1+2*k}, v{A+2}, v{A+3}")
    L+=M(f"s_nop 0\nv_permlane16_swap_b32 v{P}, v{P+2}\nv_permlane16_swap_b32 v{P+1}, v{P+3}")
    L+=M(f"buffer_store_dwordx4 {V(P)}, v{vYo}, {srd(WS)}, {'0' if st==0 else 's%d'%sMB} offen sc1",f"yt{st}")
    return W+K,L

def y_check(a,mu):
    D=vGD+4*mu
    return a.check([f"buffer_load_dwordx4 {V(D)}, v{vGA}, {srd(WS)}, {'0' if mu==0 else 's%d'%sMB} offen sc1"],
         [f"v_max3_u32 v{vGC}, v{D}, v{D+1}, v{D+2}",f"v_max_u32 v{vGC}, v{vGC}, v{D+3}",f"v_cmp_eq_u32 vcc, -1, v{vGC}"],"yt")
def y_stage(a,mu,mid=[]):
    a(f"ds_write_b128 v{vGW}, {V(vGD+4*mu)} offset:{4096*mu}"); a.lw(1,(L_YS+4096*mu,L_YS+4096*mu+4096))
    a.flat(mid)
    a("s_waitcnt lgkmcnt(0)\ns_barrier")
    for hh in range(2):
        a(f"ds_read_b64_tr_b16 {V(vYY[mu]+2*hh,2)}, v{vGT} offset:{4096*mu+256*hh}")
        a.lr(1,(L_YS+4096*mu,L_YS+4096*mu+4096))

def x0_state(mu):
    S=SX[mu]; L=M(f"v_mov_b32 v{vGC}, 0x3f803f80")
    for i in range(4): L+=M(f"v_lshlrev_b32 v{vXst[mu]+2*i}, 16, v{vQT+4*mu+i}\nv_and_b32 v{vXst[mu]+2*i+1}, 0xffff0000, v{vQT+4*mu+i}")
    for i in range(4):
        q=vQT+4*mu+i
        L+=M(f"v_dot2_f32_bf16 v{S}, v{q}, v{vGC}, {'0' if i==0 else 'v%d'%S}\nv_dot2_f32_bf16 v{S+1}, v{q}, v{q}, {'0' if i==0 else 'v%d'%(S+1)}")
    return L

def conv(a):
    C=CFG
    bb,n1=conv_backbone()
    qld=M(f"""buffer_load_dwordx4 {V(vQT)}, v{vTok}, {srd(SQ_)}, 0 offen
        buffer_load_dwordx4 {V(vQT+4)}, v{vTok}, {srd(SQ_)}, s{sMB} offen
        buffer_load_dword v{vCg}, v{vCg}, {srd(WS)}, 0 offen sc1
        buffer_load_dword v{vCs}, v{vCs}, {srd(WS)}, 0 offen sc1
        buffer_load_dword v{vFT}, v{vFT}, {srd(WS)}, 0 offen sc1""")
    hl,hc=a.check([f"buffer_load_dwordx4 {V(112)}, v{vHa}, {srd(WS)}, 0 offen sc1"],
         [f"v_xor_b32 v113, s{sTAG}, v113",f"v_xor_b32 v114, s{sTAG}, v114",f"v_xor_b32 v115, s{sTAG}, v115",
          "v_or3_b32 v113, v113, v114, v115",f"v_xor_b32 v114, s{sTAG}, v112","v_or_b32 v113, v113, v114","v_cmp_lt_u32 vcc, 15, v113"],"h2")
    pk,ps=pp_pack()
    dmas=paced((qld[:2] if C['qat']==1 else [])+extras(1),3); fill=[]
    for kind,at,ops in PL().get('CV',[]):
        it=wops(ops)
        if kind=='d': dmas+=[('AT',at) if isinstance(at,int) else ('AFTER',at)]+paced(it,C['cgap'])
        elif kind=='g': dmas+=[('AFTER','g0')]+paced(it,3)
        else:
            k=[i for i,x in enumerate(it) if isinstance(x,I) and x.op=='s_barrier']
            if k: it=[it[:k[0]+1],('SYNC',f'b{at}')]+it[k[0]+1:]
            fill+=[('AT',at)]+it
    dmas+=[('AT',C['hmid'])]+paced(extras(6),3)
    w0,e0=conv_epi(0)
    gl,a.gcA=y_check(a,0)
    crit=([('AT',C['chl'])]+hl+[('SYNC','hl')] if C['hpri'] else [])+[('AT',n1+2),('DENS',C['cdens'])]+w0+[('GAP',3),[('WLG','cx0'),mk("s_barrier")]]+e0[:-1]+([] if C['clr']==4 else [('AFTER','hl')])+e0[-1:]+[('DENS',0),('SYNC','y0'),('AFTER','hl',C['chc'])]+hc \
        +[[('WLG','cy0'),mk("s_barrier")],('AFTER','y0',C['cack']),('WVM','yt0')]+gl+[('SYNC','g0')]
    ann=[('AT',C['cann']),('WVM','clr')]+M(f"buffer_store_dword v{vTAG}, v{vOne}, {srd(WS)}, s{sHF} offen sc1") if C['clr']==4 else []
    third=ann+([] if C['hpri'] else [('AT',C['chl'])]+hl+[('SYNC','hl')])+[('AFTER','g0'),('AFTER','dd')]+paced((qld[:2] if C['qat']==2 else [])+extras(2),2)
    fourth=[('AFTER','g0')]+pk+[('GAP',4)]+paced(ps,3) if C['pkat']==3 else []
    a.weave(bb,crit,dmas+[('SYNC','dd')],fill,third,fourth,slots=C['cslots'],name='CV')
    a.stamp("conv mfma done","f")
    w1,e1=conv_epi(1)
    if CFG.get('trace')=='CV': a("v_mov_b32 v194, v140")
    if C['afirst']:
        a.flat(w1); a.flat(x0_state(0)); a.flat(a.gcA)
        a.stamp("yT stored","f"); a.stamp("yA gathered","f")
        y_stage(a,0,wops(PL().get('CE',"")))
    else:
        Wp(a,'CE')
        a.flat(w1); a("s_waitcnt lgkmcnt(0)\ns_barrier"); a.flat(e1)
        a.stamp("yT stored","f")
        Wp(a,'Y0')
        a.flat(x0_state(0))
        a.flat(a.gcA)
        a.stamp("yA gathered","f")
        y_stage(a,0,wops(PL().get('SA',"")))
    Wp(a,'ST')
    if CFG['slow']: a(f"s_cmp_lg_u32 s{sMODE}, 0\ns_cbranch_scc1 L_slow")

def unpackY(mu,T):
    L=[]
    for i in range(4): L+=M(f"v_lshlrev_b32 v{T+2*i}, 16, v{vYY[mu]+i}\nv_and_b32 v{T+2*i+1}, 0xffff0000, v{vYY[mu]+i}")
    return L
def treduce(s0,s1,s2,s3,gap=[]):
    return M(f"v_permlane32_swap_b32 v{s0}, v{s2}\nv_permlane32_swap_b32 v{s1}, v{s3}\nv_add_f32 v{s0}, v{s0}, v{s2}\nv_add_f32 v{s1}, v{s1}, v{s3}")+gap+M(f"v_permlane16_swap_b32 v{s0}, v{s1}\nv_add_f32 v{s0}, v{s0}, v{s1}")

SX=[104,106]
def fin1a(mu,S=None):
    X=vXst[mu]; S=SX[mu] if S is None else S
    L=M(f"v_add_f32 v{S}, v{X}, v{X+1}\nv_mul_f32 v{S+1}, v{X}, v{X}")
    for e in range(1,8):
        if e>1: L+=M(f"v_add_f32 v{S}, v{S}, v{X+e}")
        L+=M(f"v_fmac_f32 v{S+1}, v{X+e}, v{X+e}")
    return L
def fin1(a, layer, mu, T, unpacked=False, S=None):
    X=vXst[mu]; L=[] if unpacked else unpackY(mu,T); S=T+8 if S is None else S
    s0=SX[mu] if layer==0 else S
    A=[] if layer==0 else fin1a(mu,S)
    Bq=M(f"v_mul_f32 v{S+2}, v{X}, v{T}\nv_add_f32 v{S+3}, v{T}, v{T+1}")
    for e in range(1,8):
        Bq+=M(f"v_fmac_f32 v{S+2}, v{X+e}, v{T+e}")
        if e>1: Bq+=M(f"v_add_f32 v{S+3}, v{S+3}, v{T+e}")
    while A or Bq:
        if A: L.append(A.pop(0))
        if Bq: L.append(Bq.pop(0))
    L+=treduce(s0,s0+1,S+2,S+3,M(f"s_add_u32 s{sT0}, s{sGR}, {(layer*2+mu)*262144}"))
    L+=M(f"buffer_store_dword v{s0}, v{vGs}, {srd(WS)}, s{sT0} offen{a.sc}")
    return L

def fin2(a, layer, mu, T, Y=None, pk=False):
    X=vXst[mu]; Gd=T; up=unpackY(mu,T+16) if Y is None else []; Y=T+16 if Y is None else Y
    ld,ck=a.check([f"buffer_load_dwordx4 {V(Gd+4*i)}, v{vGl}, {srd(WS)}, s{sCK2} offen offset:{256*i} sc1" for i in range(4)],
         ([f"v_max3_u32 v{PT}, v{Gd}, v{Gd+1}, v{Gd+2}"]+[f"v_max3_u32 v{PT}, v{PT}, v{Gd+3+2*i}, v{Gd+4+2*i}" for i in range(6)]+[f"v_max_u32 v{PT}, v{PT}, v{Gd+15}"])+[f"v_cmp_eq_u32 vcc, -1, v{PT}"],"gr")
    ld=M(f"s_add_u32 s{sCK2}, s{sGRl}, {(layer*2+mu)*262144}")+ld+up
    L=list(ck)
    P2=lambda r: V(r,2)
    if pk:
        for k in (0,2): L+=M(f"v_pk_add_f32 {P2(Gd+k)}, {P2(Gd+k)}, {P2(Gd+4+k)}\nv_pk_add_f32 {P2(Gd+8+k)}, {P2(Gd+8+k)}, {P2(Gd+12+k)}")
        for k in (0,2): L+=M(f"v_pk_add_f32 {P2(Gd+k)}, {P2(Gd+k)}, {P2(Gd+8+k)}")
    else:
        for k in range(4): L+=M(f"v_add_f32 v{Gd+k}, v{Gd+k}, v{Gd+4+k}\nv_add_f32 v{Gd+8+k}, v{Gd+8+k}, v{Gd+12+k}")
        for k in (0,2,1,3): L+=M(f"v_add_f32 v{Gd+k}, v{Gd+k}, v{Gd+8+k}")
    L+=treduce(Gd,Gd+1,Gd+2,Gd+3)
    A,B,C,D=Gd,Gd+1,Gd+2,Gd+3
    L+=M(f"v_mov_b32 v{B}, v{A}\nv_permlane16_swap_b32 v{A}, v{B}\nv_mov_b32 v{C}, v{A}\nv_mov_b32 v{D}, v{B}\nv_permlane32_swap_b32 v{A}, v{C}\nv_permlane32_swap_b32 v{B}, v{D}")
    inv="0x3b000000"
    L+=M(f"""v_mul_f32 v{A}, {inv}, v{A}
        v_mul_f32 v{B}, {inv}, v{B}
        v_fma_f32 v{B}, -v{A}, v{A}, v{B}
        v_max_f32 v{B}, 0, v{B}
        v_add_f32 v{B}, 0x3727c5ac, v{B}
        v_rsq_f32 v{B}, v{B}
        v_fma_f32 v{C}, -v{A}, v{D}, v{C}
        v_mul_f32 v{C}, {inv}, v{C}
        v_fma_f32 v{C}, v{B}, v{C}, v{A}
        v_mul_f32 v{A}, v{A}, v{B}""")
    if pk:
        for e in range(0,8,2): L+=M(f"v_pk_fma_f32 {P2(Gd+4+e)}, {P2(X+e)}, {P2(A)}, {P2(A)} op_sel:[0,1,0] op_sel_hi:[1,1,0] neg_lo:[0,0,1] neg_hi:[0,0,1]")
        for e in range(0,8,2): L+=M(f"v_pk_fma_f32 {P2(X+e)}, {P2(Gd+4+e)}, {P2(Y+e)}, {P2(X+e)}")
        for e in range(0,8,2): L+=M(f"v_pk_add_f32 {P2(Y+e)}, {P2(X+e)}, {P2(C)} op_sel_hi:[1,0] neg_lo:[0,1] neg_hi:[0,1]")
    else:
        for e in range(8): L+=M(f"v_fma_f32 v{Gd+4+e}, v{X+e}, v{B}, -v{A}")
        for e in range(8): L+=M(f"v_fmac_f32 v{X+e}, v{Gd+4+e}, v{Y+e}")
        for e in range(8): L+=M(f"v_sub_f32 v{Y+e}, v{X+e}, v{C}")
    L+=M(f"s_add_u32 s{sT0}, s{sXS}, {mu*65536}")
    for i in range(4): L+=M(f"v_cvt_pk_bf16_f32 v{Gd+4+i}, v{Y+2*i}, v{Y+2*i+1}")
    L+=M(f"buffer_store_dwordx4 {V(Gd+4)}, v{vL}, {srd(WS)}, s{sT0} offen{a.sc or (' nt' if CFG['ntx']>layer else '')}",f"xs{mu}")
    L+=M(f"v_mul_f32 v{A}, v{Y}, v{Y}")
    for e in range(1,8): L+=M(f"v_fmac_f32 v{A}, v{Y+e}, v{Y+e}")
    L+=M(f"""v_mov_b32 v{B}, v{A}
        s_nop 0
        s_add_u32 s{sT1}, s{sS5}, {(layer*2+mu)*65536}
        v_permlane32_swap_b32 v{A}, v{B}
        v_add_f32 v{A}, v{A}, v{B}
        v_mov_b32 v{B}, v{A}
        v_permlane16_swap_b32 v{A}, v{B}
        v_add_f32 v{A}, v{A}, v{B}""")
    L+=M(f"buffer_store_dword v{A}, v{vS5s}, {srd(WS)}, s{sT1} offen{a.sc}")
    tail=M(f"s_add_u32 s22, s{sFLH}, {XF(layer,mu)}")+[('WVM',f"xs{mu}")]+M(f"buffer_store_dword v{vTAG}, v{vOne}, {srd(WS)}, s22 offen{a.sc}")
    return ld,L,tail

def flag_check(a, off, vaddr, name):
    ld,ck=a.check([f"buffer_load_dword v{PT+1}, v{vaddr}, {srd(WS)}, s{sCK1} offen sc1"],[f"v_cmp_ne_u32 vcc, s{sTAG}, v{PT+1}"],name)
    return M(f"s_lshl_b32 s{sCK1}, s{sFL}, 1\ns_add_u32 s{sCK1}, s{sCK1}, {off}")+ld, ck
XF=lambda layer,mu: OFF_XFLAG+layer*16384+mu*256
HF=lambda layer,k: OFF_HFLAG+layer*16384+k*256

def x_dma(mu, pair, stage, q):
    L=M(f"s_add_u32 m0, s{sXW}, {q+stage*8192}\ns_mov_b32 s{sSOFF}, {mu*65536+pair*32768+stage*8192}")
    for i in range(4): L+=M(f"buffer_load_dwordx4 v{vXD}, {srd(WS)}, s{sSOFF} offen offset:{1024*i} sc1 lds",f"x{mu}{pair}{stage}")
    return LW(L,(q+stage*8192,q+stage*8192+8192),(q+16384+stage*8192,q+16384+stage*8192+8192))
vAS1,vAS2,vAD=136,138,135
def alias_setup():
    return M(f"""s_mul_i32 s{sT0}, s{sG}, {65536-8*HKS*1024}
        s_add_u32 s{sT0}, s{sT0}, {OFF_YT-OFF_H}
        v_and_b32 v{vAS1}, 1, v{vQ}
        v_mul_u32_u24 v{vAS1}, {0x100000-HKS*1024}, v{vAS1}
        s_mul_i32 s{sT1}, s{sRH}, {0x100000-HKS*1024}
        v_add_u32 v{vAS1}, s{sT0}, v{vAS1}
        s_add_u32 s{sT0}, s{sT0}, s{sT1}
        v_add_u32 v{vAS2}, v{vHS2}, v{vAS1}
        v_add_u32 v{vAS1}, v{vHS1}, v{vAS1}
        v_add_u32 v{vAD}, s{sT0}, v{vHD}""")
AL=lambda mu,t: (CFG['alias']>=1 and (mu,t)==(1,1)) or (CFG['alias']>=2 and (mu,t)==(0,0))
def h_dma(mu, t, grp, q):
    n=4 if grp<2 else 3
    L=M(f"s_add_u32 m0, s{sM4 if grp<2 else sM3}, {q+t*8192}\ns_add_u32 s{sSOFF}, s{sC4 if grp<2 else sC3}, {(0 if AL(mu,t) else (mu*4+2*t)*HKS*1024)+grp*8192}")
    for i in range(n): L+=M(f"buffer_load_dwordx4 v{vAD if AL(mu,t) else vHD}, {srd(WS)}, s{sSOFF} offen offset:{1024*i} sc1 lds",f"h{mu}{t}{grp}")
    return LW(L,*[(q+(2*k+t)*8192,q+(2*k+t)*8192+2*n*1024) for k in range(2)])
def h_touch(ks,base=204):
    L=[]
    for k in ks:
        L+=M(f"s_mov_b32 s{sT2}, {2*k*HKS*1024}\nbuffer_load_dword v{base+2*k}, v{vHS1}, {srd(WS)}, s{sT2} offen sc1\nbuffer_load_dword v{base+1+2*k}, v{vHS2}, {srd(WS)}, s{sT2} offen sc1","tch")
    return L
SC1K=lambda: {0:[],2:[k for k in range(4) if not AL(k>>1,k&1)],8:[0,1],3:[],4:[0,1],5:[0,1,2],6:[0,1],7:[0]}[CFG['touch']]
TCHK=lambda: {0:[],2:[],8:[],3:[0,1,2,3],4:[2,3],5:[],6:[],7:[]}[CFG['touch']]
TINK=lambda: {8:[2],5:[3],6:[2,3],7:[1,2,3]}.get(CFG['touch'],[])

_uid=[0]
RING6=[FR+4*k for k in range(6)]; RING8=RING6+[ACC0+16,ACC0+20]
def g1_steps(buf, q, bar=None):
    A=(ACC0,ACC1)[buf]; bar=bar or {}; qo=q&65535; out=[]
    for s in range(16):
        pre=(M(f"v_add_u32 v{vA0}, {q&~65535}, v{vL}") if s==0 else [])+bar.get(s,[])
        rd=[lambda F,tok,s=s,t=t: LR(mk(f"ds_read_b128 {V(F)}, v{vA0} offset:{qo+t*16384+s*1024}",tok),(q+t*16384+s*1024,q+t*16384+s*1024+1024)) for t in range(2)]
        mf=lambda F,s=s: [mk(f"v_mfma_f32_16x16x32_bf16 {V(A+12*t+4*w)}, {W1(s,w)}, {V(F[t])}, {'0' if s==0 else V(A+12*t+4*w)}") for t,w in ([(t,w) for t in range(2) for w in range(3)],[(t,w) for w in range(3) for t in range(2)],[(0,0),(0,1),(0,2),(1,2),(1,1),(1,0)],[(0,0),(1,0),(1,1),(0,1),(0,2),(1,2)])[CFG['o1']]]
        out.append((pre,rd,mf,RING6))
    return out
def g2_steps(qs, bar=None):
    bar=bar or {}; out=[]
    def setq(q): return M(f"s_add_u32 s{sQ}, s{sHK}, {q&~65535}\nv_add_u32 v{vA0}, s{sQ}, v{vL}\ns_add_u32 s{sQ}, s{sHS}, {q&~65535}\nv_add_u32 v{vA1}, s{sQ}, v{vL}")
    for i in range(22):
        q=qs[i>>3]; pre=bar.get(i,[])
        if i%8==0 and (i==0 or (q&~65535)!=(qs[(i>>3)-1]&~65535)): pre=setq(q)+pre
        rd=[lambda F,tok,i=i,q=q,t=t: LR(mk(f"ds_read_b128 {V(F)}, v{(vA0,vA1)[t]} offset:{(q&65535)+(i&7)*1024}",tok),*[(q+w*8192+(i&7)*1024,q+w*8192+(i&7)*1024+1024) for w in range(4)]) for t in (1,0)]
        mf=lambda F,i=i: [mk(f"v_mfma_f32_16x16x32_bf16 {V(ACC0+8*t+4*c)}, {W2(i,c)}, {V(F[1-t])}, {'0' if i==0 else V(ACC0+8*t+4*c)}") for t,c in ([(1,0),(1,1),(0,0),(0,1)],[(1,0),(0,0),(1,1),(0,1)],[(1,0),(1,1),(0,1),(0,0)])[CFG['o2']]]
        out.append((pre,rd,mf,RING8))
    return out
def g2_pass(qs, t, bar=None):
    bar=bar or {}; out=[]
    for i in range(22):
        q=qs[i>>3]; pre=bar.get(i,[])
        if i%8==0 and (i==0 or (q&~65535)!=(qs[(i>>3)-1]&~65535)):
            pre=M(f"s_lshl_b32 s{sQ}, s{sKH}, 14\ns_add_u32 s{sQ}, s{sQ}, {(q&~65535)+t*8192}\nv_add_u32 v{vA0}, s{sQ}, v{vL}")+pre
        rd=[lambda F,tok,i=i,q=q: LR(mk(f"ds_read_b128 {V(F)}, v{vA0} offset:{(q&65535)+(i&7)*1024}",tok),*[(q+(2*k+t)*8192+(i&7)*1024,q+(2*k+t)*8192+(i&7)*1024+1024) for k in range(2)])]
        mf=lambda F,i=i: [mk(f"v_mfma_f32_16x16x32_bf16 {V(ACC1+8*t+4*c)}, {W2(i,c)}, {V(F[0])}, {'0' if i==0 else V(ACC1+8*t+4*c)}") for c in range(2)]
        out.append((pre,rd,mf,RING8))
    return out
def backbone(steps, marks=None):
    marks=marks or {}; LA=CFG['la']
    start=[]; n=0
    for st in steps: start.append(n); n+=len(st[2]([FR]*2))
    start.append(n)
    last={}; F=[]; place={}; pos=-1; toks=[]
    for k,(pre,rd,mf,ring) in enumerate(steps):
        _uid[0]+=1; tok=f"f{_uid[0]}"; toks.append(tok); fs=[]
        for j,r in enumerate(rd):
            u=min([x for x in ring if x not in fs],key=lambda x:last.get(x,-99+ring.index(x)*0.01)); fs.append(u)
            p=max(start[k]-LA+j, last.get(u,-99), pos+1 if pos>=0 else -1)
            p=min(p,start[k]-1) if start[k]>0 else -1
            if p<0: p=-1
            place.setdefault(p,[]).extend((pre if j==0 else [])+[r(u,tok)]); pos=max(pos,p)
        for u in fs: last[u]=start[k+1]-1
        F.append(fs)
    L=list(place.get(-1,[]))+[('WLG',toks[0])]; n=0
    for k,(pre,rd,mf,ring) in enumerate(steps):
        ms=mf(F[k])
        for j,m in enumerate(ms):
            L.append(m); L+=place.get(n,[])
            if j==len(ms)-1 and k+1<len(steps): L.append(('WLG',toks[k+1]))
            n+=1
        L+=marks.get(k,[])
    return L

def g1_epi(a, buf, mu, pair, sc):
    A=(ACC0,ACC1)[buf]; E=EP; L=[]
    n=E; mreg=E+4
    M0=A+8; M1=A+20
    for t in range(2):
        Gt=A+12*t; Ut=Gt+4
        for r in range(4): L+=M(f"v_max_f32 v{Gt+r}, 0, v{Gt+r}")
        for r in range(4): L+=M(f"v_mul_f32 v{Gt+r}, v{Gt+r}, v{Ut+r}")
        L+=M(f"v_cvt_pk_bf16_f32 v{n+2*t}, v{Gt}, v{Gt+1}\nv_cvt_pk_bf16_f32 v{n+2*t+1}, v{Gt+2}, v{Gt+3}")
    for r in range(4): L+=M(f"v_permlane16_swap_b32 v{M0+r}, v{M1+r}")
    L+=M(f"v_permlane16_swap_b32 v{n}, v{n+2}\nv_permlane16_swap_b32 v{n+1}, v{n+3}\ns_mov_b32 s{sT1}, {0 if AL(mu,pair) else (mu*4+2*pair)*HKS*1024}")
    L+=M(f"buffer_store_dwordx4 {V(n)}, v{vAS1 if AL(mu,pair) else vHS1}, {srd(WS)}, s{sT1} offen{sc}",f"hs{mu}{pair}")
    for r in range(4): L+=M(f"v_max_f32 v{M0+r}, 0, v{M0+r}")
    for r in range(4): L+=M(f"v_mul_f32 v{M0+r}, v{M0+r}, v{M1+r}")
    L+=M(f"v_cvt_pk_bf16_f32 v{mreg}, v{M0}, v{M0+1}\nv_cvt_pk_bf16_f32 v{mreg+1}, v{M0+2}, v{M0+3}")
    L+=M(f"v_mov_b32 v{E+6}, v{E+4}\nv_mov_b32 v{E+7}, v{E+5}\ns_nop 0\nv_permlane32_swap_b32 v{E+4}, v{E+6}\nv_permlane32_swap_b32 v{E+5}, v{E+7}")
    L+=M(f"buffer_store_dwordx4 {V(E+4)}, v{vAS2 if AL(mu,pair) else vHS2}, {srd(WS)}, s{sT1} offen{sc}",f"hs{mu}{pair}")
    return L
def h_flag(a, layer, k):
    return M(f"s_add_u32 s22, s{sFLH}, {HF(layer,k)}")+[('WVM',f"hs{k>>1}{k&1}")]+M(f"buffer_store_dword v{vTAG}, v{vOne}, {srd(WS)}, s22 offen{a.sc}")

def s5_get(a, layer, mu):
    T=140
    ld,ck=a.check([f"buffer_load_dwordx4 {V(T)}, v{vS5l}, {srd(WS)}, s{sCK3} offen sc1"],
         [f"v_max3_u32 v{PT+2}, v{T}, v{T+1}, v{T+2}",f"v_max_u32 v{PT+2}, v{PT+2}, v{T+3}",f"v_cmp_eq_u32 vcc, -1, v{PT+2}"],"s5")
    ld=M(f"s_add_u32 s{sCK3}, s{sS5l}, {(layer*2+mu)*65536}")+ld
    L=list(ck)+M(f"""v_add_f32 v{T}, v{T}, v{T+1}
        v_add_f32 v{T+2}, v{T+2}, v{T+3}
        v_add_f32 v{T}, v{T}, v{T+2}
        v_mov_b32 v{T+1}, v{T}
        s_nop 0
        v_permlane32_swap_b32 v{T}, v{T+1}
        v_add_f32 v{T}, v{T}, v{T+1}
        v_mov_b32 v{T+1}, v{T}
        s_nop 0
        v_permlane16_swap_b32 v{T}, v{T+1}
        v_add_f32 v{T}, v{T}, v{T+1}
        v_mul_f32 v{T}, 0x3b000000, v{T}
        v_add_f32 v{T}, 0x3727c5ac, v{T}
        v_rcp_f32 v{vR2}, v{T}""")
    return ld,L
def ex_addr(qspare):
    return M(f"s_add_u32 s{sT0}, s{sHW}, {qspare+6144}\nv_add_u32 v{EP}, s{sT0}, v{vL}\ns_xor_b32 s{sT0}, s{sHW}, 16384\ns_add_u32 s{sT0}, s{sT0}, {qspare+6144}\nv_add_u32 v{EP+1}, s{sT0}, v{vL}")
def g2_tail(mu, qsp, keep, send):
    X=vXst[mu]; R=[(qsp+w*8192+6144,qsp+w*8192+8192) for w in range(4)]
    pre=LW(M(f"ds_write_b128 v{EP}, {V(send)}\nds_write_b128 v{EP}, {V(send+4)} offset:1024",f"ew{mu}"),*R)
    pre+=[mk(f"v_fmac_f32 v{X+e}, v{vR2}, v{keep+e}") for e in range(8)]
    post=LR(M(f"ds_read_b128 {V(send)}, v{EP+1}\nds_read_b128 {V(send+4)}, v{EP+1} offset:1024","ex"),*R)
    post+=[mk(f"v_fmac_f32 v{X+e}, v{vR2}, v{send+e}") for e in range(8)]
    return pre,post
def out_store(a, mu, T):
    X=vXst[mu]
    L=[mk(f"v_cvt_pk_bf16_f32 v{T+i}, v{X+2*i}, v{X+2*i+1}") for i in range(4)]
    return L+M(f"buffer_store_dwordx4 {V(T)}, v{vTok}, {srd(SO_)}, {'0' if mu==0 else 's%d'%sMB} offen{('',' sc1',' nt')[CFG['outsc']]}")

def wbl2(a):
    Lw=a.label("wb"); w=mk("buffer_wbl2 sc1"); w.ghost=1
    return [M(f"s_or_b32 s{sT2}, s{sR}, s{sWV}\ns_cmp_lg_u32 s{sT2}, {CFG['wbid']}\ns_cbranch_scc1 {Lw}")+[w,mk(Lw+":")]]
def finish_kernel(a):
    a(f"s_or_b32 s{sT0}, s2, s{sWV}\ns_cmp_eq_u32 s{sT0}, 0\ns_cselect_b32 s{sT0}, {OFF_NONCE}, {OOB}")
    a(f"buffer_store_dword v{vTAG}, v{vOne}, {srd(WS)}, s{sT0} offen sc1")
    if CFG['stamps'] and a.tag!='S':
        a.stamp("end","*")
        if CFG.get('amp') is not None:
            j=CFG['amp']
            a(f"s_sub_u32 s96, s{STAMP0+j}, s{STAMP0}\ns_mul_i32 s96, s96, {CFG.get('ampk',4)}\ns_add_u32 s96, s96, s{STAMP0+len(stamp_names)-1}")
            a("L_amp:\ns_memrealtime s[100:101]\ns_waitcnt lgkmcnt(0)\ns_sub_u32 s97, s100, s96\ns_cmp_lt_i32 s97, 0\ns_cbranch_scc1 L_amp")
        a("s_memtime s[100:101]\ns_waitcnt lgkmcnt(0)\ns_sub_u32 s99, s100, s99")
        a(f"s_lshl_b32 s{sT0}, s2, 2\ns_add_u32 s{sT0}, s{sT0}, s{sWV}\ns_lshl_b32 s{sT0}, s{sT0}, 8\ns_add_u32 s{sT0}, s{sT0}, {OFF_STAMP}")
        for i in range(len(stamp_names)):
            a(f"v_mov_b32 v40, s{STAMP0+i}")
            a(f"buffer_store_dword v40, v{vOne}, {srd(WS)}, s{sT0} offen offset:{4*i}")
        if CFG.get('trace'): a(f"s_add_u32 s{sT1}, s{sT0}, 0x100000\nbuffer_store_dword v139, v{vFX}, {srd(WS)}, s{sT1} offen")
        a(f"v_mov_b32 v40, s98\nbuffer_store_dword v40, v{vOne}, {srd(WS)}, s{sT0} offen offset:248")
        a(f"v_mov_b32 v40, s99\nbuffer_store_dword v40, v{vOne}, {srd(WS)}, s{sT0} offen offset:252")
    a("s_endpgm")

WV=lambda t:('WVM',t)
WL=lambda t:('WLG',t)
AT=lambda n:('AT',n)

def vm_par(layer):
    C=CFG
    def f(x):
        t=x.tok or ''
        if x.dma:
            if t[0]=='c': return (C['mW'],150,11)
            if t[0]=='h' and layer==0 and 2*int(t[1])+int(t[2]) in SC1K(): return (C['mM'],C['mMs'],8)
            return (C['mL'],C['mLs'],8)
        if t=='tch': return (C['mH'],20,8)
        if t.startswith('w2_'): return (C['mM'],C['mW2'],8)
        if not x.load:
            if x.op.endswith('x4'): return (C['mS1'] if 'sc1' in x.text else C['mS'],70,8)
            return (C['mS1'] if 'sc1' in x.text else 400,10,1)
        if t.endswith(tuple('0123456789')) and '_ppr' in t: return (700,20,22)
        return (C['mL'],C['mG'],8) if x.op.endswith('x4') else (C['mL'],10,2)
    return f
def feed(vm,items,t):
    for x in items:
        for y in (x if isinstance(x,list) else [x]):
            if isinstance(y,tuple):
                if y[0]=='WVM': t=max(t,vm.done.get(y[1],t))
            elif y.kind=='vmem': t=vm.issue(y,t)+4
            elif y.kind!='none': t+=4.5
    return t

def body(a):
    P=paced; BY=lambda n:('BY',n); SY=lambda n:('SYNC',n); AF=lambda n,g=0:('AFTER',n,g); GP=lambda n:('GAP',n)
    B=lambda *w:[list(w)+[mk("s_barrier")]]
    C=CFG
    nxs=lambda r,mu: [i for i,x in enumerate(r) if isinstance(x,I) and x.tok==f"xs{mu}"][0]+1
    qs=list(Q)
    if C['afirst']:
        a.flat(fin1(a,0,0,72)); a.flat(conv_epi(1)[1])
    else: a.flat(fin1(a,0,0,ACC0))
    if CFG.get('trace')=='CV': a("v_mov_b32 v139, v194")
    a.stamp("fin1 A","f")
    lA,rA,tA=fin2(a,0,0,ACC0,pk=C['pk']); lB,rB,tB=fin2(a,0,1,232,pk=C['pk'])
    glB,gcB=y_check(a,1)
    pk,ps=pp_pack()
    W2Q[:]=w2_loads()
    a(f"s_mul_i32 s{sT0}, s{sCT2}, 43\ns_mul_i32 s{sT1}, s{sKH}, 21\ns_add_u32 s{sT0}, s{sT0}, s{sT1}\ns_lshl_b32 s{sT0}, s{sT0}, 7\ns_add_u32 s{sCK3}, s{sT0}, {OFF_P2F}")
    a(f"v_min_u32 v{PT+3}, 21, v{vLane}\nv_lshlrev_b32 v{PT+3}, 7, v{PT+3}")
    pl_,pc_=a.check([f"buffer_load_dword v{PT+2}, v{PT+3}, {srd(WS)}, s{sCK3} offen sc1"],[f"v_cmp_ne_u32 vcc, s{sTAG}, v{PT+2}"],"pp")
    ppf=M(f"buffer_store_dword v{vTAG}, v{vOne}, {srd(WS)}, s{sPF} offen sc1")
    if C['pkat']==3: a.waitvm('pps'); a.flat(ppf); ppf=[]
    a.flat(extras(3)); Wp(a,'YS')
    if C['pkat']==2: a.flat(pk); a.flat(ps)
    a.flat(x0_state(1))
    a.waitvm("yt1")
    Wp(a,'F1')
    a.flat(lA); a.flat(glB)
    if C['pkat']==3 and W2E(): a.flat(pl_)
    a.flat(extras(4)); Wp(a,'F2')
    if C['pkat']==0: a.flat(pk); a.flat(ps)
    a.stamp("yB acked","f")
    a.flat(rA[:10])
    if C['pkat']==3 and W2E(): a.flat(pc_); pl_=[]; pc_=[]
    Wp(a,'FA'); a.flat(rA[10:]); Wp(a,'FX')
    a.stamp("fin2 A","f")
    a.flat(gcB)
    y_stage(a,1,wops(PL().get('SB',"")))
    a.flat(tA)
    if C['pkat']==1: a.flat(pk); a.flat(ps)
    else: a.waitvm("pps"); a.flat(ppf); ppf=[]
    Wp(a,'FB')
    a.flat(fin1(a,0,1,ACC1))
    a.stamp("fin1 B","f")
    xl,xc=flag_check(a,XF(0,0),vFX,"xf")
    early='p' in PL().get('XD','')
    Wp(a,'XW')
    if C['alias'] and C['alpre']: a.flat(alias_setup())
    a.flat(xl)
    if early: a.flat(pl_)
    a.flat(xc)
    if early: a.flat(pc_); pl_=[]; pc_=[]
    Wp(a,'XB')
    lead=lB+x_dma(0,0,0,qs[0])+x_dma(0,0,1,qs[0])+(alias_setup() if (C['alias'] and not C['alpre']) else [])+rB[:nxs(rB,1)]+wops(PL().get('XD',""))
    a.flat(lead)
    A1,B0,B1,GA,GB,GC=96,192,288,384,472,516
    for layer in range(2):
        g="ab"[layer]
        xa0,xa1,xb0,xb1,e=qs
        hs = lambda k: ' sc1' if (layer==0 and k in SC1K()) else (a.sc or (' nt' if (C['nth'] and layer==1) else ''))
        L0 = layer==0
        a.stamp(f"L{layer} start",g+'m')
        hq=[(xa0,xa1,e),(xb0,xb1,xa0)]
        X=lambda mu,p,q: x_dma(mu,p,0,q)+x_dma(mu,p,1,q)
        H=lambda mu,t,grp: h_dma(mu,t,grp,hq[mu][grp])
        xl,xc=flag_check(a,XF(layer,1),vFX,"xf")
        s7=[]
        def HC(k,after=None,gap=None):
            l,c=flag_check(a,HF(layer,k),vFX if (k==1 and C['alias']>=2) else vFH,"hf")
            s7.extend([AF('xc'),AF(f"f{k}",after or (C['hca0'] if L0 else C['hca']))]+l+[SY(f"l{k}")]+c+[SY(f"c{k}")])
            return [AF(f"c{k}")]
        sl,sr=s5_get(a,layer,0)
        def SB(n,*w):
            if layer==0: return BAR(*w)
            return a.st(n+" pre","c")+list(w)+a.st(n+" waited","c")+[mk("s_barrier")]+a.st(n+" post","c")
        steps = g1_steps(0,xa0,{0:BAR(WV("x000")),8:BAR(WV("x001"))}) + g1_steps(1,xa1,{0:BAR(WV("x011"))}) \
              + g1_steps(0,xb0,{0:BAR(WV("x101"))}) + g1_steps(1,xb1,{0:BAR(WV("x111"))}) \
              + g2_steps(hq[0],{**({i:[WV(f"w2_{i}")] for i in range(22)} if L0 else {}),0:BAR(WV("h010"),WV("h000"),WV("w2_0")),8:BAR(WV("h011"),WV("h001"),WV("w2_8")),16:BAR(WV("h012"),WV("h002"),WV("w2_16"))}) \
              + g2_pass(hq[1],0,{0:BAR(WV("h101"),WV("h100")),16:BAR(WV("h102"))}) + g2_pass(hq[1],1,{0:BAR(WV("h110")),8:BAR(WV("h111")),16:BAR(WV("h112"))})
        marks={15:a.st(f"L{layer} A0",g),31:a.st(f"L{layer} A1",g),47:a.st(f"L{layer} B0",g),63:a.st(f"L{layer} B1",g),85:a.st(f"L{layer} GA",g)}
        bb=backbone(steps,marks)
        def epi(k):
            E=g1_epi(a,k&1,k>>1,k&1,hs(k))
            if k>0 and L0 and C['hold']:
                n=[i for i,x in enumerate(E) if x.kind=='vmem'][0]; E=E[:n]+[AF(f"l{k-1}")]+E[n:]
            if C['alias']>=2 and k in(0,3):
                n=[i for i,x in enumerate(E) if isinstance(x,I) and x.kind=='vmem'][0]; E=E[:n]+[AF('xc' if k==0 else 'c1')]+E[n:]
            if k<3: return [AT(96*(k+1)+2),('DENS',C['dens0'] if L0 else C['dens1'])]+E+[('DENS',0),SY(f"e{k}"),BY(96*(k+2) if k<2 else GA-30)]
            return [AT(GA+1),('DENS',C['dens'])]+E+[('DENS',0),SY("e3")]+sr
        s3=[]
        for k in range(4): s3+=[AF(f"e{k}")]+([AF('h00'),WV('h002'),WV('h001'),WV('h000')] if (k==1 and C['alias']>=2) else [])+h_flag(a,layer,k)+[SY(f"f{k}")]
        YT=ACC1+16
        nq=[xa1,e,xb0,xb1,xa0]
        slB,srB=s5_get(a,layer,1)
        preA,postA=g2_tail(0,e,ACC0,ACC0+8)
        tailA=ex_addr(e)+(unpackY(0,YT) if L0 else [])+slB+[BY(GB),AT(GB+1),('DENS',C['densa'] if L0 else 2)]+preA+[GP(C['exg'])]+B(WL("ew0"))+postA[:2]+[GP(C['exg2'])]+postA[2:]
        if L0:
            lA,rA,tA=fin2(a,1,0,ACC0,YT)
            xlA,xcA=flag_check(a,XF(1,0),vFX,"xf")
            tailA+=fin1(a,1,0,YT,True,ACC0)+[('DENS',0)]+srB+ex_addr(xa0)+[('GAPV',C['gbl'])]+lA+[('DENS',C['dens2'])]+rA[:nxs(rA,0)]+[('DENS',0),SY('r')]+rA[nxs(rA,0):]+unpackY(1,YT)
        else:
            tailA+=out_store(a,0,YT)+[('DENS',0)]+srB+ex_addr(xa0)+([AT(GC+C['wbat'])]+wbl2(a) if C['wbl2'] else [])
        g1=C['g1']
        K=lambda it,c=None,cap=64: bk(it,C['bk'] if c is None else c,cap)
        dl0=(B1-34 if C['alias']>=2 else GA-44)
        sA = HC(0)+K(H(0,0,0))+[BY(dl0),AT(B0-10)]+K(H(0,0,1))+[BY(dl0+4)]+K(H(0,0,2))+[SY('h00'),BY(dl0+6)]
        sB = HC(1)+K(H(0,1,0))+[BY(GA-36)]+K(H(0,1,1))+[BY(GA-4)]+K(H(0,1,2))+[BY(GA+28)]
        sC = HC(2)+K(H(1,0,0))+[BY(GB-34),AT(GA-10)]+K(H(1,0,1))+[BY(GB-30)]
        sD = [AT(GA+54)]+K(H(1,0,2))+[BY(GB)]+HC(3,C['gahl'])+K(H(1,1,0))+[BY(GC-22)]+K(H(1,1,1))+[BY(GC-6)]+K(H(1,1,2))+[BY(GC+10)]
        if L0:
            pl=PL(); pend=pl.get('PEND',[]); rest=pl.get('REST',[])
            s1=[];s2=[]
            for k in rest: s1+=K(wops(f"i{k}"),400)
            rest=[int(str(k).split('@')[0]) for k in rest]
            s1+=[SY('irest')]+([AF('fr')] if any(slot_of[k]==SLOT[4] for k in pend) else [])+K(X(0,1,xa1))+[BY(A1-30)]
            for k in pend: s2+=wops(f"r{k}")+[BY(max(12*k-4,30))]
            late=pl.get('LATE',[])
            if late:
                s2+=[AT(38)]+B(WV(f'c{late[-1]}'))
                for k in late: s2+=wops(f'r{k}')+[BY(12*k-4)]
                pend=pend+late
            last=pend[-1] if pend else None
            if rest:
                s2+=[AF('irest')]+B(WV(f"c{rest[-1]}"))
                for k in rest: s2+=wops(f"r{k}")+[BY(12*k-4)]
                last=rest[-1]
            if last is not None: s2+=[GP(4)]+B(WL(f"cr{last}"))
            s2+=[SY('fr'),AT(C['tin'])]+h_touch(TINK(),127)
            s4=([WV('pps')]+ppf+[GP(40)] if ppf else [])+[AT(C['w2at'])]+pl_+pc_+[AF(C['w2af'])]
            i=0
            while W2Q:
                if i==10: s4+=[AF('fB')]
                s4+=K(w2_take(2),C['bkw'],C['capw'])+[BY(GA+4*i-C['w2lead'])]; i+=1
        else:
            s1=[SY('irest'),AF('lB')]+K(X(0,1,xa1))+[BY(A1-30)]; s2=[SY('fr')]; s4=[]
        if L0 or C['fb1']: s5=[SY('rB'),SY('lB')]+rB[nxs(rB,1):]+[SY('fB'),BY(A1)]
        else: s5=[AT(C['a0l'])]+lB+[SY('lB'),('DENS',C['densb'])]+rB[:nxs(rB,1)]+[('DENS',0),SY('rB')]+rB[nxs(rB,1):]+[BY(A1)]
        s3=[AF('rB')]+tB+[SY('tB')]+s3
        s1+=[AF('tB',C['a1xl0'] if L0 else C['a1xl'])]+xl+[SY('xl')]+xc+[SY('xc'),AF('fr')]+K(X(1,0,xb0))+[BY(B0-30)]+K(X(1,1,xb1))+[BY(B1-30)]
        s1+=sA+sB+sC+sD
        s6 = ([] if L0 else [AF('xl')])+epi(0)+epi(1)+epi(2)+sl+epi(3)+[BY(GB-12)]+tailA
        vm=VMM(vm_par(layer)); t0=feed(vm,lead,0)
        out,rest=weave(bb,[s3,s7,s1,s4,s2,s5,s6],vm=vm,t0=t0,log=f"L{layer}"+('!' if C.get('v')==2 else '') if (C.get('v') and a.tag=='F') else None)
        a.ext(a.trace(out,CFG.get('tev_',10),f'G{layer}')); a.ext(rest)
        if C.get('v'): print("  leftover after G2(B):",len(rest))
        a.stamp(f"L{layer} GB",g)
        Ls=a.label("sw")
        a(f"s_nop 7\ns_cmp_eq_u32 s{sKH}, 0\ns_cbranch_scc1 {Ls}")
        for k in range(8): a(f"v_swap_b32 v{ACC1+k}, v{ACC1+8+k}")
        a.lab(Ls)
        preB,postB=g2_tail(1,xa0,ACC1,ACC1+8)
        a.flat(preB)
        if L0: a.flat(tA)
        a("s_waitcnt lgkmcnt(0)\ns_barrier")
        if L0 and C['xlmid']==99: a.flat(postB[:2]); a.flat(xlA); a.flat(postB[2:]); xlA=[]
        else: a.flat(postB)
        if L0:
            f1=fin1(a,1,1,YT,True,ACC1); n=C['xlmid']
            if 0<n<99: a.flat(f1[:-n]); a.flat(xlA); a.flat(f1[-n:]); xlA=[]
            else: a.flat(f1)
            lB,rB,tB=fin2(a,1,1,ACC1,YT,pk=bool(C['fb1'] and C['pk']))
            a.flat(xlA); a.flat(xcA); lead=X(0,0,nq[0])
            if C['fb1']==1: lead=lB+lead+rB[:nxs(rB,1)]
            if C['fb1']==2: lead=lead[:6]+lB+lead[6:]+rB[:nxs(rB,1)]
            a.flat(lead)
        else:
            a.flat(out_store(a,1,YT))
        a.stamp(f"L{layer} tailB",g)
        qs=nq
    finish_kernel(a)

def main():
    a=G('F','')
    entry(a); p0(a); conv(a)
    nfront=len(a.L)
    b=G('S',' sc1'); b.nlab=0
    front=list(a.L)
    body(a)
    rep=[]
    items=finish(a.L,rep)
    print("LDS ordering problems:",lds_check(items))
    for o in a.ool: items+=finish(o)
    items.append(mk("L_fast_end:"))
    if CFG['slow']:
        b.L=front+[mk("L_slow:")]; body(b)
        full=finish(b.L)
        k=[i for i,x in enumerate(full) if x.text=="L_slow:"][0]
        items+=full[k:k+1]+[mk("s_nop 4")]+full[k+1:]
        for o in b.ool: items+=finish(o)
    items.append(mk("L_end:")); items.append(mk("s_endpgm"))
    hdr=open(os.path.join(os.path.dirname(os.path.abspath(__file__)),"header.txt")).read()
    src=kernel_file(NAME,text(items),"; @launch grid=(256,1,1) block=(256,1,1) lds=163840",header=hdr)
    open(sys.argv[1],"w").write(src)
    open("stamp_names.txt","w").write("\n".join(stamp_names)); open("trace_names.txt","w").write("\n".join(trace_names)); open("site_names.txt","w").write(" ".join(site_names))
    n=sum(1 for i in items if i.kind!='none')
    print(f"{n} instructions, {len(src)} bytes of text, {sum(x for x,_ in rep)} nop states padded in fast path")
    if CFG.get('v'):
        for x in rep: print("   pad",x)
main()
```
